```python
import torch

def _softmax(x, axis=-1):
    return torch.softmax(x, dim=axis)
def _gelu(x):
    return torch.nn.functional.gelu(x, approximate="tanh")
def _silu(x):
    return torch.nn.functional.silu(x)
def _sigmoid(x):
    return torch.sigmoid(x)
def _layernorm(x, axis=-1, eps=1e-5):
    m = x.mean(dim=axis, keepdim=True)
    v = x.var(dim=axis, keepdim=True, unbiased=False)
    return (x - m) / torch.sqrt(v + eps)
def _scatter_add(tgt, idx, src, axis=0):
    return tgt.clone().index_add_(axis, idx, src)
def _segment_sum(src, seg, n):
    out = torch.zeros((n,) + src.shape[1:], dtype=src.dtype)
    return out.index_add_(0, seg, src)
def _pad(x, pw):
    flat = tuple(v for pair in reversed(pw) for v in pair)
    return torch.nn.functional.pad(x, flat)

kernel_name = 'sequential_preLN__ssm_conv_h3__dense_activation_silu__prompt'

def setup_inputs():

    _w = (lambda a: (lambda t: t.to(torch.bfloat16) if t.is_floating_point() else t)(torch.as_tensor(a)))
    def _A_setup():
        B, S, D = 1, 2048, 1024
        ks = 4
        return {
            "q": _w((lambda *s: torch.randn(*s, dtype=torch.bfloat16) * 0.05)(B, S, D)),
            "k": _w((lambda *s: torch.randn(*s, dtype=torch.bfloat16) * 0.2)(B, S, D)),
            "v": _w((lambda *s: torch.randn(*s, dtype=torch.bfloat16) * 0.2)(B, S, D)),
            "shift_k": _w((lambda *s: torch.randn(*s, dtype=torch.bfloat16) * 0.2)(D, ks) * 0.5),
            "ssm_k": _w((lambda *s: torch.randn(*s, dtype=torch.bfloat16) * 0.4)(D, S) * (1.0 / S ** 0.5)),
            "ssm_D": _w((lambda *s: torch.randn(*s, dtype=torch.bfloat16) * 0.2)(D)),
        }
    _A_in = _A_setup()

    def _B_setup():
        B, S, D, F = 1, 2048, 1024, 3584
        return {
            "x": _w((lambda *s: torch.randn(*s, dtype=torch.bfloat16) * 0.05)(B, S, D)),
            "w1": _w((lambda *s: torch.randn(*s, dtype=torch.bfloat16) * 0.8)(D, F) * (D ** -0.5)),
            "w2": _w((lambda *s: torch.randn(*s, dtype=torch.bfloat16) * 0.1)(F, D) * (F ** -0.5)),
        }
    _B_in = _B_setup()

    return {
        "A_q": _A_in["q"],
        "A_k": _A_in["k"],
        "A_v": _A_in["v"],
        "A_shift_k": _A_in["shift_k"],
        "A_ssm_k": _A_in["ssm_k"],
        "A_ssm_D": _A_in["ssm_D"],
        "B_x": _B_in["x"],
        "B_w1": _B_in["w1"],
        "B_w2": _B_in["w2"],
    }

def reference(A_q, A_k, A_v, A_shift_k, A_ssm_k, A_ssm_D, B_x, B_w1, B_w2):
    def _A_ref(q, k, v, shift_k, ssm_k, ssm_D):
        B, S, D = q.shape
        ks = shift_k.shape[-1]
        k_pad = _pad(k, ((0, 0), (ks - 1, 0), (0, 0)))
        k_shift = torch.zeros_like(k)
        for t in range(ks):
            k_shift = k_shift + k_pad[:, t:t + S, :] * shift_k[:, ks - 1 - t][None, None, :]
        kv = k_shift * v
        L = 2 * S
        kv_pad = _pad(kv, ((0, 0), (0, S), (0, 0)))
        kf_pad = _pad(ssm_k, ((0, 0), (0, S)))
        kv_f = (lambda x, axes=(-2,-1): torch.fft.rfft2(x.float(), dim=axes))(kv_pad[:, None, :, :], axes=(1, 2))
        kf_f = (lambda x, axes=(-2,-1): torch.fft.rfft2(x.float(), dim=axes))(kf_pad[:, None, :], axes=(1, 2))
        kf_f = (lambda x, *d: x.permute(*d))(kf_f, 1, 2, 0)
        y_f = kv_f * kf_f[None, :, :, :]
        y = (lambda x, s, axes=(-2,-1): torch.fft.irfft2(x, s=s, dim=axes).to(torch.bfloat16))(y_f, (1, L), axes=(1, 2))[:, 0, :S, :]
        y = y + kv * ssm_D[None, None, :]
        return q * y

    def _B_ref(x, w1, w2):
        h = torch.einsum("bsd,df->bsf", x, w1)
        h = _silu(h)
        out = torch.einsum("bsf,fd->bsd", h, w2)
        return out

    x = A_q
    h = x + _A_ref(_layernorm(x, axis=-1), A_k, A_v, A_shift_k, A_ssm_k, A_ssm_D)
    h2 = h + _B_ref(_layernorm(h, axis=-1), B_w1, B_w2)
    return h2
```

```python
class Kern:
    def __init__(self, name, grid, block, lds, nvgpr, nsgpr=102, accum=None, nagpr=0):
        self.name = name; self.grid = grid; self.block = block; self.lds = lds
        self.nvgpr = nvgpr; self.nsgpr = nsgpr; self.nagpr = nagpr
        self.accum = accum if accum is not None else (nvgpr + 3) // 4 * 4
        self.lines = []
        self.uid = 0
    def e(self, s):
        for ln in s.strip("\n").split("\n"):
            ln = ln.strip()
            if ln:
                self.lines.append("    " + ln)
    def c(self, s):
        self.lines.append("    ; " + s)
    def label(self, l):
        self.lines.append(f"{self.name}_{l}:")
    def L(self, l):
        return f"{self.name}_{l}"
    def srd(self, d, lo, hi, nbytes):
        self.e(f"s_mov_b32 s{d}, s{lo}")
        self.e(f"s_and_b32 s{d+1}, s{hi}, 0xffff")
        self.e(f"s_mov_b32 s{d+2}, 0x{nbytes:x}")
        self.e(f"s_mov_b32 s{d+3}, 0x20000")
    def text(self):
        out = [f".globl {self.name}", ".p2align 8", f".type {self.name},@function", f"{self.name}:"]
        out += self.lines
        return "\n".join(out) + "\n"
    def desc(self):
        nfv = self.accum + self.nagpr if self.nagpr else self.nvgpr
        return f""".amdhsa_kernel {self.name}
  .amdhsa_next_free_vgpr {nfv}
  .amdhsa_next_free_sgpr {self.nsgpr}
  .amdhsa_accum_offset {self.accum}
  .amdhsa_group_segment_fixed_size 0
  .amdhsa_kernarg_size 96
  .amdhsa_user_sgpr_count 2
  .amdhsa_user_sgpr_kernarg_segment_ptr 1
  .amdhsa_system_sgpr_workgroup_id_x 1
.end_amdhsa_kernel
"""

def vr(a, n):
    return f"v[{a}:{a+n-1}]" if n > 1 else f"v{a}"
def ar(a, n):
    return f"a[{a}:{a+n-1}]" if n > 1 else f"a{a}"
def sr(a, n):
    return f"s[{a}:{a+n-1}]" if n > 1 else f"s{a}"

HEADER = """; Kernarg layout (96 bytes, ptrs only, base s[0:1]):
"""

def build(kerns, order=None):
    order = order or kerns
    s = HEADER
    for k in order:
        s += f"; @launch kernel={k.name} grid=({k.grid},1,1) block=({k.block},1,1) lds={k.lds}\n"
    s += '.amdgcn_target "amdgcn-amd-amdhsa--gfx950"\n.text\n'
    for k in kerns:
        s += k.text()
    s += '.section .rodata,"a"\n'
    for k in kerns:
        s += ".p2align 6\n" + k.desc()
    return s
```

```python
from asmlib import *
from layout import *

def bf16_round(k, dst, src):
    k.e(f"v_cvt_pk_bf16_f32 v{dst}, v{src}, v{src}")
    k.e(f"v_and_b32 v{dst}, 0xffff0000, v{dst}")

def ln_stats(k, s_, q_, m_, r_, t_):
    n = len(s_)
    for i in range(n): k.e(f"v_mul_f32 v{m_[i]}, 0x3a800000, v{s_[i]}")
    for i in range(n): k.e(f"v_mul_f32 v{t_[i]}, 0x3a800000, v{q_[i]}")
    for i in range(n): k.e(f"v_fma_f32 v{t_[i]}, -v{m_[i]}, v{m_[i]}, v{t_[i]}")
    for i in range(n): k.e(f"v_max_f32 v{t_[i]}, 0, v{t_[i]}")
    for i in range(n): bf16_round(k, m_[i], m_[i])
    for i in range(n): bf16_round(k, t_[i], t_[i])
    for i in range(n): k.e(f"v_add_f32 v{t_[i]}, 0x3727c5ac, v{t_[i]}")
    for i in range(n): bf16_round(k, t_[i], t_[i])
    for i in range(n): k.e(f"v_sqrt_f32 v{t_[i]}, v{t_[i]}")
    k.e("s_nop 0")
    for i in range(n): bf16_round(k, t_[i], t_[i])
    for i in range(n): k.e(f"v_rcp_f32 v{r_[i]}, v{t_[i]}")
    k.e("s_nop 0")

def make_k0():
    k = Kern("prep_kernel", 256, 256, 32768, nvgpr=128)
    e = k.e
    e("s_cmp_ge_u32 s2, 256")
    e(f"s_cbranch_scc1 {k.L('end')}")
    e("s_load_dwordx8 s[4:11], s[0:1], 0")
    e("s_load_dwordx2 s[12:13], s[0:1], 32")
    e("s_load_dwordx2 s[14:15], s[0:1], 88")
    e("v_and_b32 v6, 15, v0")
    e("v_lshrrev_b32 v7, 4, v0")
    e("s_lshr_b32 s40, s2, 3")
    e("s_and_b32 s41, s2, 7")
    e("s_lshl_b32 s42, s40, 17")
    e("s_lshl_b32 s43, s41, 8")
    e("s_add_u32 s42, s42, s43")
    e("v_lshlrev_b32 v1, 13, v7")
    e("v_lshl_add_u32 v1, v6, 4, v1")
    e("v_add_u32 v1, s42, v1")
    e("v_add_u32 v2, 0x1000, v1")
    e("v_add_u32 v3, 0xffffe800, v1")
    e("v_add_u32 v4, 0xfffff000, v1")
    e("v_add_u32 v5, 0xfffff800, v1")
    e("s_lshl_b32 s44, s41, 10")
    e("v_lshlrev_b32 v8, 6, v6")
    e("v_add_u32 v8, s44, v8")
    e("v_and_b32 v9, 63, v0")
    e("v_lshrrev_b32 v10, 6, v0")
    e("v_lshlrev_b32 v10, 12, v10")
    e("v_lshl_add_u32 v9, v9, 4, v10")
    e("s_lshl_b32 s45, s2, 14")
    e("s_lshl_b32 s46, s41, 19")
    e("s_lshl_b32 s47, s40, 14")
    e("s_add_u32 s46, s46, s47")
    e("v_lshlrev_b32 v11, 6, v0")
    e("s_waitcnt lgkmcnt(0)")
    k.srd(16, 4, 5, 4*MB)
    k.srd(20, 6, 7, 4*MB)
    k.srd(24, 8, 9, 4*MB)
    k.srd(28, 10, 11, 8192)
    k.srd(32, 14, 15, WS_BYTES)
    k.srd(36, 12, 13, 4*MB)
    KR = 12
    VR = 40
    XR = 56
    SK = 72
    ST = 88
    e(f"buffer_load_dwordx4 {vr(SK,4)}, v8, s[28:31], 0 offen")
    e(f"buffer_load_dwordx4 {vr(SK+4,4)}, v8, s[28:31], 0 offen offset:16")
    e(f"buffer_load_dwordx4 {vr(SK+8,4)}, v8, s[28:31], 0 offen offset:32")
    e(f"buffer_load_dwordx4 {vr(SK+12,4)}, v8, s[28:31], 0 offen offset:48")
    e(f"buffer_load_dwordx4 {vr(KR,4)}, v3, s[20:23], 0 offen")
    e(f"buffer_load_dwordx4 {vr(KR+4,4)}, v4, s[20:23], 0 offen")
    e(f"buffer_load_dwordx4 {vr(KR+8,4)}, v5, s[20:23], 0 offen")
    for i in range(4):
        e(f"buffer_load_dwordx4 {vr(KR+12+4*i,4)}, v{1+i//2}, s[20:23], 0 offen offset:{2048*(i%2)}")
    for i in range(4):
        e(f"buffer_load_dwordx4 {vr(VR+4*i,4)}, v{1+i//2}, s[24:27], 0 offen offset:{2048*(i%2)}")
    for i in range(4):
        e(f"buffer_load_dwordx4 {vr(XR+4*i,4)}, v{1+i//2}, s[16:19], 0 offen offset:{2048*(i%2)}")
    for i in range(4):
        e(f"buffer_load_dwordx4 {vr(ST+4*i,4)}, v9, s[16:19], s45 offen offset:{1024*i}")
    e("buffer_load_dword v127, v11, s[36:39], s46 offen")
    e("v_and_b32 v10, 14, v6")
    e("v_xor_b32 v11, v10, v7")
    e("v_xor_b32 v10, 1, v11")
    e("v_lshlrev_b32 v8, 10, v6")
    e("v_lshl_add_u32 v10, v10, 3, v8")
    e("v_lshl_add_u32 v11, v11, 3, v8")
    e("s_mov_b32 s48, 0x05040100")
    e("s_mov_b32 s49, 0x07060302")
    e("s_mov_b32 s50, 0xffff0000")
    T = 104
    KU = 112
    A = 2
    ACC = [2, 4, 8, 126]
    ACC = [2, 4, 8, 6]
    PK = 104
    e("s_waitcnt vmcnt(9)")
    for jj in range(4):
        for c in range(2):
            d0 = SK + 4*jj + 2*c
            e(f"v_lshlrev_b32 v{T+0+c}, 16, v{d0}")
            e(f"v_and_b32 v{T+2+c}, s50, v{d0}")
            e(f"v_lshlrev_b32 v{T+4+c}, 16, v{d0+1}")
            e(f"v_and_b32 v{T+6+c}, s50, v{d0+1}")
        for r in range(7):
            e(f"v_lshlrev_b32 v{KU+2*r}, 16, v{KR+4*r+jj}")
            e(f"v_and_b32 v{KU+2*r+1}, s50, v{KR+4*r+jj}")
        for tap in (3, 2, 1, 0):
            for i in range(4):
                kk = KU + 2*(i+3-tap)
                if tap == 3:
                    e(f"v_pk_mul_f32 {vr(ACC[i],2)}, {vr(kk,2)}, {vr(T+2*tap,2)}")
                else:
                    e(f"v_pk_fma_f32 {vr(ACC[i],2)}, {vr(kk,2)}, {vr(T+2*tap,2)}, {vr(ACC[i],2)}")
        for i in range(4):
            e(f"v_lshlrev_b32 v{KU+2*i}, 16, v{VR+4*i+jj}")
            e(f"v_and_b32 v{KU+2*i+1}, s50, v{VR+4*i+jj}")
        for i in range(4):
            e(f"v_pk_mul_f32 {vr(ACC[i],2)}, {vr(ACC[i],2)}, {vr(KU+2*i,2)}")
        P = KU + 8 + 0
        for c in range(2):
            e(f"v_cvt_pk_bf16_f32 v{P+2*c}, v{ACC[3]+c}, v{ACC[2]+c}")
            e(f"v_cvt_pk_bf16_f32 v{P+2*c+1}, v{ACC[1]+c}, v{ACC[0]+c}")
        for c in range(2):
            e(f"ds_write_b64 v10, {vr(P+2*c,2)} offset:{128*(2*jj+c)}")
    e("s_waitcnt vmcnt(5)")
    for jj in range(4):
        for c in range(2):
            P = KR + 4*jj + 2*c
            sel = "s48" if c == 0 else "s49"
            e(f"v_perm_b32 v{P}, v{XR+4+jj}, v{XR+jj}, {sel}")
            e(f"v_perm_b32 v{P+1}, v{XR+12+jj}, v{XR+8+jj}, {sel}")
            e(f"ds_write_b64 v11, {vr(P,2)} offset:{16384+128*(2*jj+c)}")
    e("v_and_b32 v1, 7, v0")
    e("v_lshrrev_b32 v2, 7, v0")
    e("v_xor_b32 v2, v2, v1")
    e("v_lshrrev_b32 v3, 3, v0")
    e("v_lshlrev_b32 v4, 7, v3")
    e("v_lshl_add_u32 v4, v2, 4, v4")
    e("v_xor_b32 v5, 32, v4")
    e("v_xor_b32 v6, 64, v4")
    e("v_xor_b32 v7, 96, v4")
    e("v_lshlrev_b32 v3, 12, v3")
    e("v_lshl_add_u32 v3, v1, 4, v3")
    e("s_lshl_b32 s51, s41, 19")
    e("s_lshl_b32 s52, s40, 7")
    e("s_add_u32 s51, s51, s52")
    for i in range(8):
        e(f"s_add_u32 s{56+i}, s51, 0x{(i%4)*131072 + (XT if i >= 4 else UT):x}")
    e("s_waitcnt lgkmcnt(0)")
    e("s_barrier")
    R = 40
    for i in range(8):
        e(f"ds_read_b128 {vr(R+4*i,4)}, v{4+i%4} offset:{4096*(i%4) + (16384 if i >= 4 else 0)}")
    e("s_waitcnt vmcnt(1)")
    S = [104, 105]; Q = [106, 107]
    for r in range(2):
        e(f"v_mov_b32 v{S[r]}, 0"); e(f"v_mov_b32 v{Q[r]}, 0")
    e("s_mov_b32 s53, 0x3f803f80")
    for j in range(8):
        for r in range(2):
            e(f"v_dot2c_f32_bf16 v{S[r]}, s53, v{ST+8*r+j}")
            e(f"v_dot2c_f32_bf16 v{Q[r]}, v{ST+8*r+j}, v{ST+8*r+j}")
    for i in range(8):
        e(f"s_waitcnt lgkmcnt({7-i})")
        e(f"buffer_store_dwordx4 {vr(R+4*i,4)}, v3, s[32:35], s{56+i} offen")
    for mode in ("quad_perm:[1,0,3,2] row_mask:0xf", "quad_perm:[2,3,0,1] row_mask:0xf", "row_half_mirror row_mask:0xf",
                 "row_mirror row_mask:0xf", "row_bcast:15 row_mask:0xa", "row_bcast:31 row_mask:0xc"):
        for r in S + Q:
            e(f"v_add_f32_dpp v{r}, v{r}, v{r} {mode} bank_mask:0xf")
    ln_stats(k, S, Q, [108, 109], [110, 111], [112, 113])
    e("v_lshrrev_b32 v1, 6, v0")
    e("v_lshlrev_b32 v1, 3, v1")
    e("s_lshl_b32 s54, s2, 5")
    e(f"s_add_u32 s54, s54, 0x{MX:x}")
    e(f"s_add_u32 s55, s54, 0x{RX-MX:x}")
    e("v_mov_b32 v2, 0")
    e("v_and_b32 v3, 63, v0")
    e("v_lshlrev_b32 v3, 3, v3")
    e("v_mov_b32 v4, 0")
    e("v_mov_b32 v5, 0")
    e("s_lshl_b32 s56, s2, 9")
    e(f"s_add_u32 s56, s56, 0x{FLG:x}")
    e("buffer_store_dwordx2 v[4:5], v3, s[32:35], s56 offen")
    e("s_mov_b32 exec_lo, 0")
    e("s_mov_b32 exec_hi, 0x80000000")
    e("buffer_store_dwordx2 v[108:109], v1, s[32:35], s54 offen")
    e("buffer_store_dwordx2 v[110:111], v1, s[32:35], s55 offen")
    k.label("end")
    e("s_endpgm")
    return k
```

```python
from asmlib import *
from layout import *

KCP = 4160
REG = 4*KCP + 512 + 4096
STAT = 4*REG

def make_k1():
    k = Kern("conv_kernel", 256, 512, STAT + 16384, nvgpr=208)
    e = k.e
    e("s_cmp_ge_u32 s2, 256")
    e(f"s_cbranch_scc1 {k.L('end')}")
    e("s_load_dwordx4 s[4:7], s[0:1], 32")
    e("s_load_dwordx2 s[8:9], s[0:1], 88")
    e("s_load_dwordx4 s[36:39], s[0:1], 56")
    e("v_lshrrev_b32 v1, 6, v0")
    e("v_and_b32 v0, 63, v0")
    e("v_readfirstlane_b32 s10, v1")
    e("s_cmp_ge_u32 s10, 4")
    e(f"s_cbranch_scc1 {k.L('helper')}")
    e("s_and_b32 s11, s2, 7")
    e("s_lshr_b32 s12, s2, 3")
    e("s_lshl_b32 s11, s11, 7")
    e("s_lshl_b32 s12, s12, 2")
    e("s_add_u32 s11, s11, s12")
    e("s_add_u32 s11, s11, s10")
    e("s_lshl_b32 s12, s11, 12")
    e(f"s_mul_i32 s13, s10, {REG}")
    e("v_lshlrev_b32 v2, 4, v0")
    e("v_add_u32 v3, -8, v2")
    e("v_add_u32 v4, 1016, v2")
    e("v_and_b32 v5, 15, v0")
    e("v_lshrrev_b32 v6, 4, v0")
    e("s_waitcnt lgkmcnt(0)")
    e("s_add_u32 s16, s4, s12")
    e("s_addc_u32 s17, s5, 0")
    e("s_and_b32 s17, s17, 0xffff")
    e("s_mov_b32 s18, 4096")
    e("s_mov_b32 s19, 0x20000")
    k.srd(20, 8, 9, WS_BYTES)
    e("s_and_b32 s14, s11, -2")
    e("s_lshl_b32 s14, s14, 1")
    e("s_load_dword s15, s[6:7], s14")
    Y = 8
    W = 24
    for i in range(4):
        e(f"buffer_load_dwordx4 {vr(Y+4*i,4)}, v2, s[16:19], 0 offen offset:{1024*i}")
        if i == 0: e(f"buffer_load_dwordx2 {vr(W,2)}, v3, s[16:19], 0 offen")
        else:      e(f"buffer_load_dwordx2 {vr(W+2*i,2)}, v4, s[16:19], 0 offen offset:{1024*(i-1)}")
    e(f"s_add_u32 s24, s13, {4*KCP+512}")
    e(f"s_add_u32 s25, s12, 0x{UT:x}")
    e("s_mov_b32 m0, s24")
    e("s_nop 0")
    for p in range(4):
        e(f"buffer_load_dwordx4 v2, s[20:23], s25 offen offset:{1024*p} lds")
    e("s_lshl_b32 s26, s10, 12")
    e(f"s_add_u32 s27, s26, {STAT}")
    e(f"s_add_u32 s26, s26, 0x{MX:x}")
    e("s_mov_b32 m0, s27")
    e("s_nop 0")
    for p in range(4):
        e(f"buffer_load_dwordx4 v2, s[20:23], s26 offen offset:{1024*p} lds")
    XV = 192
    e("v_lshlrev_b32 v7, 5, v5")
    e("v_lshl_add_u32 v7, v6, 3, v7")
    e(f"s_add_u32 s28, s12, 0x{XT:x}")
    e(f"s_add_u32 s29, s12, 0x{HT:x}")
    for t in range(8):
        e(f"buffer_load_dwordx2 {vr(XV+2*t,2)}, v7, s[20:23], s28 offen offset:{512*t}")
    e("v_bfe_u32 v32, v0, 1, 2")
    e(f"v_mul_u32_u24 v32, {KCP}, v32")
    e("v_and_b32 v33, 1, v0")
    e("v_lshl_add_u32 v32, v33, 4, v32")
    e(f"v_add_u32 v33, {4*KCP}, v2")
    e("v_cmp_gt_u32 vcc, 32, v0")
    e("v_mov_b32 v36, 0"); e("v_mov_b32 v37, 0"); e("v_mov_b32 v38, 0"); e("v_mov_b32 v39, 0")
    e("v_cndmask_b32 v32, v32, v33, vcc")
    e("v_add_u32 v32, s13, v32")
    e("ds_write_b128 v32, v[36:39]")
    e("v_sub_u32 v33, 7, v5")
    e("v_and_b32 v33, 3, v33")
    e(f"v_mul_u32_u24 v33, {KCP}, v33")
    e("v_lshrrev_b32 v34, 2, v5")
    e("v_lshl_add_u32 v33, v34, 3, v33")
    e("v_lshlrev_b32 v34, 4, v6")
    e("v_sub_u32 v33, v33, v34")
    e("s_add_u32 s30, s13, 24")
    e("v_add_u32 v1, s30, v33")
    e("v_lshlrev_b32 v33, 5, v5")
    e("v_add_u32 v33, v33, v34")
    e(f"s_add_u32 s30, s13, {4*KCP + 512 - 32*15}")
    e("v_add_u32 v3, s30, v33")
    e("s_add_u32 s30, s13, 32")
    e("v_add_u32 v4, s30, v2")
    e("v_lshrrev_b32 v33, 3, v5")
    e("v_add_u32 v33, 2, v33")
    e("v_and_b32 v34, 7, v5")
    e("v_sub_u32 v34, 7, v34")
    e("v_cmp_eq_u32 vcc, v33, v6")
    e("v_lshrrev_b32 v35, 1, v34")
    e("v_and_b32 v34, 1, v34")
    e("v_cndmask_b32 v35, 9, v35, vcc")
    e("v_lshlrev_b32 v34, 4, v34")
    e("s_waitcnt lgkmcnt(0)")
    e("s_and_b32 s31, s11, 1")
    e("s_lshl_b32 s31, s31, 4")
    e("s_lshr_b32 s15, s15, s31")
    e("s_and_b32 s15, s15, 0xffff")
    e("v_mov_b32 v33, s15")
    e("v_lshlrev_b32 v34, v34, v33")
    for r in range(4):
        e(f"v_cmp_eq_u32 vcc, {r}, v35")
        e("s_nop 1")
        e(f"v_cndmask_b32 v{40+r}, 0, v34, vcc")
    for i in range(4):
        e(f"s_waitcnt vmcnt({16 + 2*(3-i)})")
        y = Y + 4*i; w = W + 2*i
        X = 44 + 12*(i % 2); P1 = X + 4; P3 = X + 8
        e(f"ds_write_b128 v4, {vr(y,4)} offset:{1024*i}")
        e(f"v_mov_b32 v{X}, v{w+1}")
        for j in range(3): e(f"v_mov_b32 v{X+1+j}, v{y+j}")
        e(f"ds_write_b128 v4, {vr(X,4)} offset:{1024*i + 2*KCP}")
        e(f"v_alignbit_b32 v{P1}, v{y}, v{w+1}, 16")
        for j in range(3): e(f"v_alignbit_b32 v{P1+1+j}, v{y+1+j}, v{y+j}, 16")
        e(f"ds_write_b128 v4, {vr(P1,4)} offset:{1024*i + KCP}")
        e(f"v_alignbit_b32 v{P3}, v{w+1}, v{w}, 16")
        for j in range(3): e(f"v_mov_b32 v{P3+1+j}, v{P1+j}")
        e(f"ds_write_b128 v4, {vr(P3,4)} offset:{1024*i + 3*KCP}")
    FA = [64, 128]
    FB = [96, 160]
    ACC = 8
    def reads(buf, ep):
        r = []
        for w in range(8):
            r.append(f"ds_read_b128 {vr(FB[buf]+4*w,4)}, v3 offset:{512*w + 32*(15-ep)}")
        for v in range(8):
            r.append(f"ds_read_b64 {vr(FA[buf]+4*v,2)}, v1 offset:{32*ep + 512*v}")
            r.append(f"ds_read_b64 {vr(FA[buf]+4*v+2,2)}, v1 offset:{32*ep + 512*v + 8}")
        return r
    def mfmas(buf):
        m = []
        for v in range(8):
            for w in range(8 - v):
                t = v + w
                m.append(f"v_mfma_f32_16x16x32_bf16 {vr(ACC+4*t,4)}, {vr(FA[buf]+4*v,4)}, {vr(FB[buf]+4*w,4)}, {vr(ACC+4*t,4)}")
        return m
    e("s_waitcnt vmcnt(12) lgkmcnt(0)")
    rd = reads(0, 1)
    for r in rd[:15]: e(r)
    e("s_waitcnt lgkmcnt(7)")
    for t in range(8):
        e(f"v_mfma_f32_16x16x32_bf16 {vr(ACC+4*t,4)}, v[40:43], {vr(FB[0]+4*t,4)}, 0")
        e(rd[15+t])
    e(rd[23])
    e("s_mov_b32 s33, 0")
    k.label("loop")
    for buf, nxt in ((0, 3), (1, 5)):
        e("s_waitcnt lgkmcnt(0)")
        rd = reads(1 - buf, nxt)
        if buf == 1:
            pass
        for i, m in enumerate(mfmas(buf)):
            e(m)
            if i < len(rd): e(rd[i])
    e("v_add_u32 v1, 128, v1")
    e("v_add_u32 v3, -128, v3")
    e("s_add_u32 s33, s33, 1")
    e("s_cmp_lt_u32 s33, 4")
    e(f"s_cbranch_scc1 {k.L('loop')}")
    e("v_lshlrev_b32 v1, 6, v5")
    e("v_lshl_add_u32 v1, v6, 4, v1")
    e(f"v_add_u32 v1, {STAT}, v1")
    e("s_waitcnt vmcnt(0) lgkmcnt(0)")
    e("s_barrier")
    MS = 64; RS = 96
    for t in range(8):
        e(f"ds_read_b128 {vr(MS+4*t,4)}, v1 offset:{1024*t}")
        e(f"ds_read_b128 {vr(RS+4*t,4)}, v1 offset:{1024*t+8192}")
    e("s_mov_b32 s34, 0xffff0000")
    for t in range(8):
        xu = 128 + 8*(t % 2); q = xu + 4
        e(f"v_lshlrev_b32 v{xu}, 16, v{XV+2*t}")
        e(f"v_and_b32 v{xu+1}, s34, v{XV+2*t}")
        e(f"v_lshlrev_b32 v{xu+2}, 16, v{XV+2*t+1}")
        e(f"v_and_b32 v{xu+3}, s34, v{XV+2*t+1}")
        e(f"s_waitcnt lgkmcnt({14-2*t})")
        for h in range(2):
            e(f"v_pk_add_f32 {vr(q+2*h,2)}, {vr(xu+2*h,2)}, {vr(MS+4*t+2*h,2)} neg_lo:[0,1] neg_hi:[0,1]")
        for h in range(2):
            e(f"v_pk_mul_f32 {vr(q+2*h,2)}, {vr(q+2*h,2)}, {vr(RS+4*t+2*h,2)}")
        for h in range(2):
            e(f"v_pk_fma_f32 {vr(q+2*h,2)}, {vr(q+2*h,2)}, {vr(ACC+4*t+2*h,2)}, {vr(xu+2*h,2)}")
        e(f"v_cvt_pk_bf16_f32 v{XV+2*t}, v{q}, v{q+1}")
        e(f"v_cvt_pk_bf16_f32 v{XV+2*t+1}, v{q+2}, v{q+3}")
        e(f"buffer_store_dwordx2 {vr(XV+2*t,2)}, v7, s[20:23], s29 offen offset:{512*t}")
    e("s_endpgm")
    k.label("helper")
    e("s_lshr_b32 s11, s2, 3")
    e("s_lshl_b32 s11, s11, 2")
    e("s_add_u32 s11, s11, s10")
    e("s_sub_u32 s11, s11, 4")
    e("s_and_b32 s12, s2, 7")
    e("s_cmp_ge_u32 s11, 112")
    e(f"s_cbranch_scc1 {k.L('w2warm')}")
    e("s_mul_i32 s13, s11, 4682")
    e("s_lshr_b32 s13, s13, 16")
    e("s_mul_i32 s14, s13, 14")
    e("s_sub_u32 s14, s11, s14")
    e("s_lshr_b32 s15, s12, 1")
    e("s_mul_i32 s15, s15, 896")
    e("s_lshl_b32 s14, s14, 6")
    e("s_add_u32 s14, s14, s15")
    e(f"s_mul_i32 s15, s13, {128*7168}")
    e("s_lshl_b32 s24, s14, 1")
    e("s_add_u32 s15, s15, s24")
    e("v_lshrrev_b32 v1, 3, v0")
    e("v_mul_u32_u24 v1, 7168, v1")
    e("v_and_b32 v2, 7, v0")
    e("v_lshl_add_u32 v1, v2, 4, v1")
    e("s_waitcnt lgkmcnt(0)")
    k.srd(16, 36, 37, 1024*3584*2)
    k.srd(20, 8, 9, WS_BYTES)
    for n in range(16):
        e(f"buffer_load_dwordx4 {vr(16+4*n,4)}, v1, s[16:19], s15 offen")
        e(f"s_add_u32 s15, s15, {8*7168}")
    for i in range(8): e(f"v_mov_b32 v{8+i}, 0")
    e("s_mov_b32 s25, 0x00003f80")
    e("s_mov_b32 s26, 0x3f800000")
    for n in range(16):
        e(f"s_waitcnt vmcnt({15-n})")
        for j in range(4):
            e(f"v_dot2c_f32_bf16 v{8+2*j}, s25, v{16+4*n+j}")
            e(f"v_dot2c_f32_bf16 v{9+2*j}, s26, v{16+4*n+j}")
    e("s_nop 2")
    for i in range(8): e(f"v_add_f32_dpp v{8+i}, v{8+i}, v{8+i} row_ror:8 row_mask:0xf bank_mask:0xf")
    for op in ("v_permlane32_swap_b32", "v_permlane16_swap_b32"):
        for i in range(8): e(f"v_mov_b32 v{16+i}, v{8+i}")
        e("s_nop 1")
        for i in range(8): e(f"{op} v{8+i}, v{16+i}")
        e("s_nop 1")
        for i in range(8): e(f"v_add_f32 v{8+i}, v{8+i}, v{16+i}")
    e("s_and_b32 s12, s12, 1")
    e("s_cmp_eq_u32 s12, 1")
    e(f"s_cbranch_scc1 {k.L('end')}")
    e(f"s_mul_i32 s15, s13, {3584*4}")
    e("s_lshl_b32 s14, s14, 2")
    e("s_add_u32 s15, s15, s14")
    e(f"s_add_u32 s15, s15, 0x{CS:x}")
    e("v_lshlrev_b32 v1, 5, v0")
    e("s_mov_b64 exec, 0xff")
    e("buffer_store_dwordx4 v[8:11], v1, s[20:23], s15 offen")
    e("buffer_store_dwordx4 v[12:15], v1, s[20:23], s15 offen offset:16")
    e("s_endpgm")
    k.label("w2warm")
    e("s_sub_u32 s11, s11, 112")
    e("s_lshl_b32 s11, s11, 3")
    e("s_add_u32 s11, s11, s12")
    e(f"s_mul_i32 s11, s11, {448*128}")
    e("v_lshlrev_b32 v1, 7, v0")
    e("s_waitcnt lgkmcnt(0)")
    k.srd(16, 38, 39, 1024*3584*2)
    for n in range(7):
        e(f"buffer_load_dword v{8+n}, v1, s[16:19], s11 offen")
        e(f"s_add_u32 s11, s11, {64*128}")
    k.label("end")
    e("s_endpgm")
    return k
```

```python
from asmlib import *
from layout import *
from k0 import ln_stats

STG = 45056
WOFF = 16384
NBUF = 3
STATS = NBUF * STG
CSL = STATS + 1024
NCS = 8

def make_k3():
    k = Kern("gemm1_kernel", 256, 512, CSL + 1024, nvgpr=224)
    e = k.e
    e("s_cmp_ge_u32 s2, 256")
    e(f"s_cbranch_scc1 {k.L('end')}")
    e("s_load_dwordx2 s[4:5], s[0:1], 56")
    e("s_load_dwordx2 s[6:7], s[0:1], 88")
    e("v_lshrrev_b32 v1, 6, v0")
    e("v_and_b32 v0, 63, v0")
    e("v_readfirstlane_b32 s10, v1")
    e("s_and_b32 s11, s2, 7")
    e("s_lshr_b32 s12, s2, 3")
    e("s_and_b32 s13, s11, 1")
    e("s_lshl_b32 s13, s13, 3")
    e("s_and_b32 s14, s12, 7")
    e("s_add_u32 s13, s13, s14")
    e("s_lshr_b32 s14, s11, 1")
    e("s_lshl_b32 s14, s14, 2")
    e("s_lshr_b32 s15, s12, 3")
    e("s_add_u32 s14, s14, s15")
    e("v_lshrrev_b32 v2, 4, v0")
    e("v_bfe_u32 v3, v0, 2, 2")
    e("v_and_b32 v4, 3, v0")
    e("v_and_b32 v5, 1, v2")
    e("v_lshl_or_b32 v6, v5, 2, v3")
    e("v_lshl_add_u32 v7, v2, 3, v3")
    e("v_lshlrev_b32 v8, 8, v7")
    e("v_lshl_add_u32 v8, v4, 3, v8")
    e("s_waitcnt lgkmcnt(0)")
    k.srd(16, 4, 5, 1024*3584*2)
    k.srd(20, 6, 7, WS_BYTES)
    e("s_cmp_ge_u32 s10, 4")
    e(f"s_cbranch_scc1 {k.L('loader')}")

    ACC = 16
    FW = [128, 172]
    FH = [156, 200]
    AH = [1, 2, 3, 4]
    AW = [9, 10, 11]
    e("s_and_b32 s24, s10, 1")
    e("s_lshr_b32 s25, s10, 1")
    e("v_mul_u32_u24 v12, 448, v7")
    e("v_lshl_add_u32 v12, v4, 3, v12")
    e(f"v_add_u32 v12, {WOFF}, v12")
    e("v_lshl_add_u32 v13, v5, 5, v12")
    e("v_xor_b32 v14, 1, v5")
    e("v_lshl_add_u32 v14, v14, 5, v12")
    e("s_lshl_b32 s26, s25, 8")
    e("v_add_u32 v9, s26, v13")
    e("v_add_u32 v10, s26, v14")
    e("s_cmp_eq_u32 s25, 0")
    e("s_cselect_b64 vcc, -1, 0")
    e("v_cndmask_b32 v11, v14, v13, vcc")
    e("v_add_u32 v11, 192, v11")
    e("v_mov_b32 v15, v2")
    e("s_lshl_b32 s26, s24, 2")
    for j in range(4):
        e(f"s_add_u32 s27, s26, {j}")
        e(f"v_xor_b32 v12, s27, v6")
        e(f"v_lshl_add_u32 v{AH[j]}, v12, 5, v8")
    for i in range(112):
        e(f"v_mov_b32 v{ACC+i}, 0")
    def reads(st, step):
        r = []
        for j in range(4):
            for h in range(2):
                r.append(f"ds_read_b64_tr_b16 {vr(FH[st]+4*j+2*h,2)}, v{AH[j]} offset:{8192*step+1024*h}")
        for i in range(7):
            a, o = (AW[i % 2], 64*(i//2)) if i < 6 else (AW[2], 0)
            for h in range(2):
                r.append(f"ds_read_b64_tr_b16 {vr(FW[st]+4*i+2*h,2)}, v{a} offset:{14336*step+1792*h+o}")
        return r
    def mfmas(st):
        return [f"v_mfma_f32_16x16x32_bf16 {vr(ACC+4*(4*i+j),4)}, {vr(FW[st]+4*i,4)}, {vr(FH[st]+4*j,4)}, {vr(ACC+4*(4*i+j),4)}"
                for i in range(7) for j in range(4)]
    e("s_mov_b32 s28, 0")
    e("s_mov_b32 s29, 0")
    e("s_barrier")
    for r in reads(0, 0): e(r)
    k.label("cloop")
    e("s_waitcnt lgkmcnt(0)")
    rd = reads(1, 1)
    sched = [2]*6 + [1]*10
    for i, m in enumerate(mfmas(0)):
        e(m)
        n = sched[i] if i < len(sched) else 0
        for _ in range(n): e(rd.pop(0))
        if i == 20:
            e("s_add_u32 s29, s29, 1")
            e(f"s_movk_i32 s30, 0x{STG//4:x}")
            e("s_cmp_eq_u32 s29, 3")
            e(f"s_cselect_b32 s30, {-2*STG//4}, s30")
            e("s_cselect_b32 s29, 0, s29")
            e("s_lshl_b32 s30, s30, 2")
    assert not rd
    e("s_waitcnt lgkmcnt(0)")
    e("s_barrier")
    rd = [f"v_add_u32 v{a}, s30, v{a}" for a in AH + AW] + reads(0, 0)
    sched = [2]*10 + [1]*9
    for i, m in enumerate(mfmas(1)):
        e(m)
        n = sched[i] if i < len(sched) else 0
        for _ in range(n): e(rd.pop(0))
        if i == 24:
            e("s_add_u32 s28, s28, 1")
            e("s_cmp_lt_u32 s28, 16")
    assert not rd
    e(f"s_cbranch_scc1 {k.L('cloop')}")
    e("v_and_b32 v1, 15, v0")
    e("s_lshl_b32 s26, s24, 9")
    e(f"s_add_u32 s26, s26, {STATS}")
    e("v_lshl_add_u32 v1, v1, 3, s26")
    e("s_lshl_b32 s26, s25, 9")
    e(f"s_add_u32 s26, s26, {CSL}")
    e("v_lshl_add_u32 v2, v15, 4, s26")
    e("s_mul_i32 s26, s25, 64")
    e(f"s_add_u32 s26, s26, {CSL+384}")
    e("v_lshl_add_u32 v3, v15, 4, s26")
    e("s_lshl_b32 s26, s25, 12")
    e("v_lshl_add_u32 v4, v0, 4, s26")
    e("s_lshl_b32 s26, s25, 3")
    e("s_add_u32 s26, s26, 3072")
    e("v_lshl_add_u32 v5, v0, 4, s26")
    e("s_lshl_b32 s26, s13, 3")
    e("s_lshl_b32 s27, s24, 2")
    e("s_add_u32 s26, s26, s27")
    e("s_mul_i32 s26, s26, 112")
    e("s_mul_i32 s27, s14, 7")
    e("s_add_u32 s26, s26, s27")
    e("s_lshl_b32 s26, s26, 10")
    e(f"s_add_u32 s32, s26, 0x{HM:x}")
    for j in range(1, 4):
        e(f"s_add_u32 s{32+j}, s32, {112*1024*j}")
    e("s_waitcnt lgkmcnt(0)")
    e("s_barrier")
    MR = 128
    C2 = 136
    CSV = 144
    for j in range(4):
        e(f"ds_read_b64 {vr(MR+2*j,2)}, v1 offset:{128*j}")
    for i in range(7):
        e(f"ds_read_b128 {vr(CSV+4*i,4)}, v{2 if i < 6 else 3} offset:{64*i if i < 6 else 0}")
    e("s_waitcnt lgkmcnt(0)")
    for j in range(4):
        e(f"v_mul_f32 v{C2+2*j}, 0xbfb8aa3b, v{MR+2*j+1}")
    T = 172
    def elem4(i, j, tb, out):
        a = ACC + 4*(4*i+j); p = tb; x = tb + 4
        for h in range(2):
            e(f"v_pk_fma_f32 {vr(a+2*h,2)}, {vr(CSV+4*i+2*h,2)}, {vr(MR+2*j,2)}, {vr(a+2*h,2)} op_sel_hi:[1,0,1] neg_lo:[0,1,0] neg_hi:[0,1,0]")
        for h in range(2):
            e(f"v_pk_mul_f32 {vr(x+2*h,2)}, {vr(a+2*h,2)}, {vr(C2+2*j,2)} op_sel_hi:[1,0]")
        for h in range(2):
            e(f"v_pk_mul_f32 {vr(p+2*h,2)}, {vr(a+2*h,2)}, {vr(MR+2*j,2)} op_sel:[0,1] op_sel_hi:[1,1]")
        for q in range(4): e(f"v_exp_f32 v{x+q}, v{x+q}")
        e("s_nop 0")
        for h in range(2):
            e(f"v_pk_add_f32 {vr(x+2*h,2)}, {vr(x+2*h,2)}, 1.0 op_sel_hi:[1,0]")
        for q in range(4): e(f"v_rcp_f32 v{x+q}, v{x+q}")
        e("s_nop 0")
        for h in range(2):
            e(f"v_pk_mul_f32 {vr(p+2*h,2)}, {vr(p+2*h,2)}, {vr(x+2*h,2)}")
        e(f"v_cvt_pk_bf16_f32 v{out}, v{p}, v{p+1}")
        e(f"v_cvt_pk_bf16_f32 v{out+1}, v{p+2}, v{p+3}")
    n = 0
    for j in range(4):
        for pr in range(4):
            o = 192 + 4*(n % 4); n += 1
            elem4(2*pr, j, T, o)
            if pr < 3:
                elem4(2*pr+1, j, T+8, o+2)
                e(f"buffer_store_dwordx4 {vr(o,4)}, v4, s[20:23], s{32+j} offen offset:{1024*pr}")
            else:
                e(f"buffer_store_dwordx2 {vr(o,2)}, v5, s[20:23], s{32+j} offen")
    e("s_endpgm")

    k.label("loader")
    e("s_sub_u32 s24, s10, 4")
    VH = 16
    VW = 20
    e("v_bfe_u32 v9, v0, 1, 3")
    e("v_and_b32 v10, 1, v0")
    e("v_lshlrev_b32 v10, 4, v10")
    e("v_lshl_add_u32 v10, v2, 12, v10")
    e("v_xor_b32 v9, v9, v2")
    for pp in range(4):
        if pp == 2: e("v_xor_b32 v9, 4, v9")
        e(f"v_lshl_add_u32 v{VH+pp}, v9, 5, v10")
        if pp: e(f"v_add_u32 v{VH+pp}, {pp*(16384-1024)}, v{VH+pp}")
    for q in range(7):
        e(f"v_add_u32 v9, {64*q}, v0")
        e("v_mul_u32_u24 v10, 9363, v9")
        e("v_lshrrev_b32 v10, 18, v10")
        e("v_mul_u32_u24 v11, 28, v10")
        e("v_sub_u32 v11, v9, v11")
        e("v_lshrrev_b32 v12, 2, v10")
        e("v_and_b32 v12, 2, v12")
        e("v_xor_b32 v11, v11, v12")
        e("v_mul_u32_u24 v12, 7168, v10")
        e("v_lshl_add_u32 v12, v11, 4, v12")
        e(f"v_add_u32 v{VW+q}, {-1024*(q%4)}, v12")
    e("s_lshl_b32 s25, s24, 16")
    e("s_lshl_b32 s26, s13, 8")
    e("s_add_u32 s25, s25, s26")
    e(f"s_add_u32 s25, s25, 0x{HT:x}")
    e(f"s_mul_i32 s26, s24, {16*7168}")
    e("s_mul_i32 s27, s14, 448")
    e("s_add_u32 s26, s26, s27")
    e("s_lshl_b32 s27, s24, 12")
    e("s_mul_i32 s28, s24, 7168")
    e(f"s_add_u32 s28, s28, {WOFF}")
    e("s_mov_b32 s29, 0")
    def issue():
        e("s_add_u32 m0, s27, s29")
        e("s_add_u32 s30, s28, s29")
        for pp in range(4):
            e(f"buffer_load_dwordx4 v{VH+pp}, s[20:23], s25 offen offset:{1024*pp} lds")
        e("s_mov_b32 m0, s30")
        e("s_add_u32 s25, s25, 0x40000")
        for q in range(4):
            e(f"buffer_load_dwordx4 v{VW+q}, s[16:19], s26 offen offset:{1024*q} lds")
        e("s_add_u32 m0, s30, 4096")
        e(f"s_add_u32 s29, s29, {STG}")
        for q in range(4, 7):
            e(f"buffer_load_dwordx4 v{VW+q}, s[16:19], s26 offen offset:{1024*(q-4)} lds")
        e(f"s_add_u32 s26, s26, {64*7168}")
        e(f"s_cmp_eq_u32 s29, {NBUF*STG}")
        e("s_cselect_b32 s29, 0, s29")
    issue()
    CSR = 28
    e("s_mul_i32 s31, s14, 896")
    e("s_mul_i32 s32, s24, 224")
    e("s_add_u32 s31, s31, s32")
    e(f"s_add_u32 s31, s31, 0x{CS:x}")
    e("v_lshlrev_b32 v9, 2, v0")
    for p in range(NCS):
        e(f"s_add_u32 s32, s31, {p*3584*4}")
        e(f"buffer_load_dword v{CSR+p}, v9, s[20:23], s32 offen")
    issue()
    issue()
    e("s_lshl_b32 s31, s24, 1")
    e("v_xor_b32 v12, s31, v6")
    e("v_lshl_add_u32 v36, v12, 5, v8")
    e("v_xor_b32 v37, 32, v36")
    S = [40, 41]; Q = [42, 43]
    for r in S + Q: e(f"v_mov_b32 v{r}, 0")
    e("s_mov_b32 s33, 0x3f803f80")
    e("s_mov_b32 s34, 0")
    D = 44
    def stats():
        e("v_add_u32 v38, s34, v36")
        e("v_add_u32 v39, s34, v37")
        for t in range(2):
            for st in range(2):
                for h in range(2):
                    e(f"ds_read_b64_tr_b16 {vr(D+8*t+4*st+2*h,2)}, v{38+t} offset:{8192*st+1024*h}")
        e(f"s_add_u32 s34, s34, {STG}")
        e(f"s_cmp_eq_u32 s34, {NBUF*STG}")
        e("s_cselect_b32 s34, 0, s34")
        e("s_waitcnt lgkmcnt(0)")
        for j in range(8):
            for t in range(2):
                e(f"v_dot2c_f32_bf16 v{S[t]}, s33, v{D+8*t+j}")
                e(f"v_dot2c_f32_bf16 v{Q[t]}, v{D+8*t+j}, v{D+8*t+j}")
    e(f"s_waitcnt vmcnt({22+NCS})")
    e("s_barrier")
    stats()
    e("s_mov_b32 s35, 0")
    k.label("lloop")
    e("s_cmp_lt_u32 s35, 14")
    e(f"s_cbranch_scc1 {k.L('lw11')}")
    e("s_waitcnt vmcnt(0)")
    k.label("lw11")
    e("s_waitcnt vmcnt(11)")
    e("s_barrier")
    e("s_cmp_ge_u32 s35, 13")
    e(f"s_cbranch_scc1 {k.L('noissue')}")
    issue()
    k.label("noissue")
    e("s_cmp_ge_u32 s35, 15")
    e(f"s_cbranch_scc1 {k.L('ldone')}")
    stats()
    e("s_add_u32 s35, s35, 1")
    e(f"s_branch {k.L('lloop')}")
    k.label("ldone")
    for op in ("v_permlane32_swap_b32", "v_permlane16_swap_b32"):
        for i, r in enumerate(S + Q): e(f"v_mov_b32 v{D+i}, v{r}")
        e("s_nop 1")
        for i, r in enumerate(S + Q): e(f"{op} v{r}, v{D+i}")
        e("s_nop 1")
        for i, r in enumerate(S + Q): e(f"v_add_f32 v{r}, v{r}, v{D+i}")
    ln_stats(k, S, Q, [50, 52], [51, 53], [54, 55])
    e("v_and_b32 v9, 15, v0")
    e("s_lshl_b32 s31, s24, 8")
    e(f"s_add_u32 s31, s31, {STATS}")
    e("v_lshl_add_u32 v9, v9, 3, s31")
    e("ds_write_b64 v9, v[50:51]")
    e("ds_write_b64 v9, v[52:53] offset:128")
    for p in range(1, NCS):
        e(f"v_add_f32 v{CSR}, v{CSR}, v{CSR+p}")
    e("s_mul_i32 s31, s24, 224")
    e(f"s_add_u32 s31, s31, {CSL}")
    e("v_lshl_add_u32 v9, v0, 2, s31")
    e("v_cmp_gt_u32 vcc, 56, v0")
    e("s_and_saveexec_b64 s[36:37], vcc")
    e(f"ds_write_b32 v9, v{CSR}")
    e("s_waitcnt lgkmcnt(0)")
    e("s_barrier")
    k.label("end")
    e("s_endpgm")
    return k
```

```python
from asmlib import *
from layout import *
import os

def make_k4(SPLIT=None):
    SPLIT = SPLIT or int(os.environ.get("K4_SPLIT", "2"))
    TN = 64 * SPLIT
    NS = 2 * SPLIT
    NSTG = 56 // SPLIT
    WOFF = 16384
    STG = WOFF + TN * 128
    NBUF = 5 if SPLIT == 1 else 4
    RES = NBUF * STG
    PW = 2 * SPLIT
    PP = 4 + PW
    k = Kern("gemm2_kernel", 256, 512, RES + 16384, nvgpr=160)
    e = k.e
    e("s_cmp_ge_u32 s2, 256")
    e(f"s_cbranch_scc1 {k.L('end')}")
    e("s_load_dwordx4 s[4:7], s[0:1], 64")
    e("s_load_dwordx2 s[8:9], s[0:1], 88")
    e("v_lshrrev_b32 v1, 6, v0")
    e("v_and_b32 v0, 63, v0")
    e("v_readfirstlane_b32 s10, v1")
    e("s_and_b32 s11, s2, 7")
    e("s_lshr_b32 s12, s2, 3")
    if SPLIT == 1:
        e("s_and_b32 s13, s11, 3")
        e("s_lshl_b32 s13, s13, 2")
        e("s_and_b32 s14, s12, 3")
        e("s_add_u32 s13, s13, s14")
        e("s_lshr_b32 s14, s11, 2")
        e("s_lshl_b32 s14, s14, 3")
        e("s_lshr_b32 s15, s12, 2")
        e("s_add_u32 s14, s14, s15")
        e("s_mov_b32 s15, 0")
    else:
        e("s_lshr_b32 s13, s11, 1")
        e("s_lshl_b32 s13, s13, 2")
        e("s_and_b32 s14, s12, 3")
        e("s_add_u32 s13, s13, s14")
        e("s_lshr_b32 s14, s12, 2")
        e("s_and_b32 s15, s11, 1")
    e("v_lshrrev_b32 v2, 4, v0")
    e("v_bfe_u32 v3, v0, 2, 2")
    e("v_and_b32 v4, 3, v0")
    e("v_lshl_add_u32 v7, v2, 2, v3")
    e("v_and_b32 v5, 7, v7")
    e("v_bfe_u32 v6, v7, 1, 2")
    e("s_waitcnt lgkmcnt(0)")
    k.srd(16, 4, 5, 1024*3584*2)
    k.srd(20, 8, 9, WS_BYTES)
    k.srd(40, 6, 7, 4*MB)
    e("s_cmp_ge_u32 s10, 4")
    e(f"s_cbranch_scc1 {k.L('loader')}")

    ACC = 16
    F0 = ACC + 16*NS
    FW = [F0, F0 + 16 + 4*NS]
    FH = [F0 + 16, F0 + 32 + 4*NS]
    AW = [8, 9, 10, 11]; AHr = 12
    wsh, wsg = (7, 6) if SPLIT == 1 else (8, 5)
    e(f"v_lshlrev_b32 v13, {wsh}, v7")
    e("v_lshl_add_u32 v13, v4, 3, v13")
    e(f"v_add_u32 v13, {WOFF}, v13")
    if SPLIT == 1:
        e("s_mov_b32 s25, 0")
        e("s_mov_b32 s24, s10")
    else:
        e("s_and_b32 s24, s10, 1")
        e("s_lshr_b32 s25, s10, 1")
    e("s_lshl_b32 s26, s25, 2")
    for i in range(4):
        e(f"s_add_u32 s27, s26, {i}")
        e(f"v_xor_b32 v14, s27, v{wsg}")
        e(f"v_lshl_add_u32 v{AW[i]}, v14, 5, v13")
    e("s_lshl_b32 s26, s24, 12")
    e(f"v_lshl_add_u32 v{AHr}, v0, 4, s26")
    for i in range(16*NS):
        e(f"v_mov_b32 v{ACC+i}, 0")
    def hoff(j):
        return 2048*j if SPLIT == 1 else 2048*(j % 2) + 8192*(j // 2)
    def reads(st, step):
        r = []
        for j in range(NS):
            r.append(f"ds_read_b128 {vr(FH[st]+4*j,4)}, v{AHr} offset:{hoff(j)+1024*step}")
        for i in range(4):
            for h in range(2):
                r.append(f"ds_read_b64_tr_b16 {vr(FW[st]+4*i+2*h,2)}, v{AW[i]} offset:{(TN*64)*step+(TN*32)*h}")
        return r
    def mfmas(st):
        return [f"v_mfma_f32_16x16x32_bf16 {vr(ACC+4*(NS*i+j),4)}, {vr(FW[st]+4*i,4)}, {vr(FH[st]+4*j,4)}, {vr(ACC+4*(NS*i+j),4)}"
                for i in range(4) for j in range(NS)]
    def weave(ms, rd, per):
        for i, m in enumerate(ms):
            e(m)
            for _ in range(per):
                if rd: e(rd.pop(0))
        assert not rd
    e("s_mov_b32 s28, 0")
    e("s_mov_b32 s29, 0")
    e("s_barrier")
    for r in reads(0, 0): e(r)
    k.label("cloop")
    e("s_add_u32 s29, s29, 1")
    e(f"s_mov_b32 s30, {STG}")
    e(f"s_cmp_eq_u32 s29, {NBUF}")
    e(f"s_cselect_b32 s30, {-(NBUF-1)*STG}, s30")
    e("s_cselect_b32 s29, 0, s29")
    e("s_waitcnt lgkmcnt(0)")
    weave(mfmas(0), reads(1, 1), 2)
    e("s_waitcnt lgkmcnt(0)")
    e("s_barrier")
    e("s_add_u32 s28, s28, 1")
    e(f"s_cmp_lt_u32 s28, {NSTG}")
    weave(mfmas(1), [f"v_add_u32 v{a}, s30, v{a}" for a in [AHr] + AW] + reads(0, 0), 3 if SPLIT == 1 else 2)
    e(f"s_cbranch_scc1 {k.L('cloop')}")
    T = F0
    if SPLIT == 2:
        e("s_lshl_b32 s26, s2, 2")
        e("s_add_u32 s26, s26, s10")
        e("s_xor_b32 s27, s26, 4")
        e("s_lshl_b32 s31, s26, 13")
        e(f"s_add_u32 s31, s31, 0x{PART:x}")
        e("s_lshl_b32 s32, s27, 13")
        e(f"s_add_u32 s32, s32, 0x{PART:x}")
        e("s_add_u32 s33, s31, 4096")
        e("s_add_u32 s34, s32, 4096")
        e("s_lshl_b32 s35, s26, 7")
        e(f"s_add_u32 s35, s35, 0x{FLG:x}")
        e("s_lshl_b32 s36, s27, 7")
        e(f"s_add_u32 s36, s36, 0x{FLG:x}")
        e("v_lshlrev_b32 v14, 4, v0")
        e("s_cmp_eq_u32 s15, 0")
        e(f"s_cbranch_scc1 {k.L('send_hi')}")
        for own in (1, 0):
            if own == 0: k.label("send_hi")
            for i in range(4):
                for jj in range(2):
                    j = 2*(1-own) + jj
                    n = 2*i + jj
                    e(f"buffer_store_dwordx4 {vr(ACC+4*(NS*i+j),4)}, v14, s[20:23], s{31 if n < 4 else 33} offen offset:{1024*(n%4)} sc1")
            if own == 1:
                e("s_nop 1")
                for i in range(4):
                    for q in range(8):
                        e(f"v_mov_b32 v{ACC+4*NS*i+q}, v{ACC+4*NS*i+8+q}")
                e(f"s_branch {k.L('sent')}")
        k.label("sent")
    rsh, rsg = (8, 5) if SPLIT == 1 else (7, 6)
    e(f"v_lshlrev_b32 v13, {rsh}, v7")
    e("v_lshl_add_u32 v13, v4, 3, v13")
    if SPLIT == 1:
        e(f"v_add_u32 v13, {RES}, v13")
    else:
        e("s_lshl_b32 s26, s25, 13")
        e(f"s_add_u32 s26, s26, {RES}")
        e("v_add_u32 v13, s26, v13")
    e("s_lshl_b32 s26, s24, 1")
    for j in range(2):
        e(f"s_add_u32 s27, s26, {j}")
        e(f"v_xor_b32 v15, s27, v{rsg}")
        e(f"v_lshl_add_u32 v{8+j}, v15, 5, v13")
    e("s_waitcnt lgkmcnt(0)")
    HR = T
    for i in range(4):
        for j in range(2):
            e(f"ds_read_b64_tr_b16 {vr(HR+2*(2*i+j),2)}, v{8+j} offset:{(16 << rsh)*i}")
    e("v_and_b32 v10, 15, v0")
    e("v_lshrrev_b32 v11, 1, v2")
    e("v_and_b32 v12, 7, v10")
    e("v_xor_b32 v11, v11, v12")
    e("v_lshlrev_b32 v11, 4, v11")
    e("v_lshl_add_u32 v11, v10, 7, v11")
    e("v_and_b32 v12, 1, v2")
    e("v_lshl_add_u32 v11, v12, 3, v11")
    e("s_lshl_b32 s26, s10, 12")
    e("v_add_u32 v3, s26, v11")
    e("v_xor_b32 v4, 32, v3")
    e("v_xor_b32 v5, 64, v3")
    e("v_xor_b32 v6, 96, v3")
    e("v_lshrrev_b32 v10, 3, v0")
    e("v_and_b32 v11, 7, v0")
    e("v_xor_b32 v12, v11, v10")
    e("v_lshlrev_b32 v12, 4, v12")
    e("v_lshl_add_u32 v12, v10, 7, v12")
    e("v_add_u32 v7, s26, v12")
    e("v_lshlrev_b32 v10, 11, v10")
    e("v_lshl_add_u32 v10, v11, 4, v10")
    e("s_lshl_b32 s26, s13, 7")
    e("s_lshl_b32 s27, s24, 5")
    e("s_add_u32 s26, s26, s27")
    e("s_lshl_b32 s27, s15, 6")
    e("s_add_u32 s26, s26, s27")
    e("s_lshl_b32 s26, s26, 11")
    e(f"s_mul_i32 s27, s14, {TN*2}")
    e("s_add_u32 s26, s26, s27")
    e("s_lshl_b32 s27, s25, 7")
    e("s_add_u32 s44, s26, s27")
    for q in range(1, 4):
        e(f"s_add_u32 s{44+q}, s44, {q*8*2048}")
    PR = T + 16
    if SPLIT == 2:
        e("v_mov_b32 v15, 0")
        e("v_mov_b32 v13, 1")
        e("s_waitcnt vmcnt(0)")
        e("s_mov_b64 s[38:39], exec")
        e("s_mov_b64 exec, 1")
        e("buffer_store_dword v13, v15, s[20:23], s35 offen sc1")
        e("s_mov_b32 s48, 0")
        k.label("poll")
        e("buffer_load_dword v13, v15, s[20:23], s36 offen sc1")
        e("s_add_u32 s48, s48, 1")
        e("s_cmp_gt_u32 s48, 0x200000")
        e(f"s_cbranch_scc1 {k.L('polled')}")
        e("s_waitcnt vmcnt(0)")
        e("v_readfirstlane_b32 s37, v13")
        e("s_cmp_eq_u32 s37, 1")
        e(f"s_cbranch_scc0 {k.L('poll')}")
        k.label("polled")
        e("s_mov_b64 exec, s[38:39]")
        for n in range(8):
            e(f"buffer_load_dwordx4 {vr(PR+4*n,4)}, v14, s[20:23], s{32 if n < 4 else 34} offen offset:{1024*(n%4)} sc1")
    e("s_mov_b32 s37, 0xffff0000")
    e("s_waitcnt lgkmcnt(0)")
    U = PR + 32
    for i in range(4):
        for j in range(2):
            n = 2*i + j; a = ACC + 4*(NS*i + j); u = U + 4*(n % 2)
            e(f"v_lshlrev_b32 v{u}, 16, v{HR+2*n}")
            e(f"v_and_b32 v{u+1}, s37, v{HR+2*n}")
            e(f"v_lshlrev_b32 v{u+2}, 16, v{HR+2*n+1}")
            e(f"v_and_b32 v{u+3}, s37, v{HR+2*n+1}")
            for h in range(2):
                e(f"v_pk_add_f32 {vr(a+2*h,2)}, {vr(a+2*h,2)}, {vr(u+2*h,2)}")
    for i in range(4):
        for j in range(2):
            n = 2*i + j; a = ACC + 4*(NS*i + j)
            if SPLIT == 2:
                e(f"s_waitcnt vmcnt({7-n})")
                for h in range(2):
                    e(f"v_pk_add_f32 {vr(a+2*h,2)}, {vr(a+2*h,2)}, {vr(PR+4*n+2*h,2)}")
            e(f"v_cvt_pk_bf16_f32 v{HR+2*n}, v{a}, v{a+1}")
            e(f"v_cvt_pk_bf16_f32 v{HR+2*n+1}, v{a+2}, v{a+3}")
            e(f"ds_write_b64 v{3+i}, {vr(HR+2*n,2)} offset:{2048*j}")
    e("s_waitcnt lgkmcnt(0)")
    for q in range(4):
        e(f"ds_read_b128 {vr(PR+4*q,4)}, v7 offset:{1024*q}")
    for q in range(4):
        e(f"s_waitcnt lgkmcnt({3-q})")
        e(f"buffer_store_dwordx4 {vr(PR+4*q,4)}, v10, s[40:43], s{44+q} offen")
    e("s_endpgm")

    k.label("loader")
    e("s_sub_u32 s24, s10, 4")
    VA = 16; VW = 18; VR = 22
    e(f"v_lshlrev_b32 v{VA}, 4, v0")
    e(f"v_add_u32 v{VA+1}, {112*1024-2048}, v{VA}")
    def pat256(dst, stride_sh, n):
        e("v_bfe_u32 v9, v0, 1, 3")
        e("v_and_b32 v10, 1, v0")
        e("v_lshlrev_b32 v10, 4, v10")
        e(f"v_lshl_add_u32 v10, v2, {stride_sh}, v10")
        e("v_xor_b32 v9, v9, v2")
        e("v_xor_b32 v11, 4, v9")
        for pp in range(n):
            e(f"v_lshl_add_u32 v{dst+pp}, v{9 if pp % 2 == 0 else 11}, 5, v10")
            if pp: e(f"v_add_u32 v{dst+pp}, {pp*((4 << stride_sh)-1024)}, v{dst+pp}")
    def pat128(dst, stride_sh, n):
        e("v_bfe_u32 v9, v0, 1, 2")
        e("v_xor_b32 v9, v9, v2")
        e("v_and_b32 v10, 1, v0")
        e("v_lshlrev_b32 v10, 4, v10")
        e("v_lshl_add_u32 v10, v9, 5, v10")
        e("v_lshrrev_b32 v9, 3, v0")
        e(f"v_lshl_add_u32 v{dst}, v9, {stride_sh}, v10")
        for pp in range(1, n):
            e(f"v_add_u32 v{dst+pp}, {pp*((8 << stride_sh)-1024)}, v{dst}")
    if SPLIT == 1:
        pat128(VW, 11, 2); pat256(VR, 12, 4)
    else:
        pat256(VW, 11, 4); pat128(VR, 12, 4)
    e("s_lshl_b32 s25, s13, 3")
    e("s_lshl_b32 s26, s24, 1")
    e("s_add_u32 s25, s25, s26")
    e("s_mul_i32 s25, s25, 112")
    e("s_mul_i32 s26, s15, 56")
    e("s_add_u32 s25, s25, s26")
    e("s_lshl_b32 s25, s25, 10")
    e(f"s_add_u32 s25, s25, 0x{HM:x}")
    e("s_mul_i32 s26, s15, 1792")
    e("s_lshl_b32 s27, s24, 4")
    e("s_add_u32 s26, s26, s27")
    e("s_lshl_b32 s26, s26, 11")
    e(f"s_mul_i32 s27, s14, {TN*2}")
    e("s_add_u32 s26, s26, s27")
    e("s_lshl_b32 s27, s24, 12")
    e(f"s_mul_i32 s28, s24, {PW*1024}")
    e(f"s_add_u32 s28, s28, {WOFF}")
    e("s_mov_b32 s29, 0")
    def issue():
        e("s_add_u32 m0, s27, s29")
        e("s_add_u32 s30, s28, s29")
        for pp in range(4):
            e(f"buffer_load_dwordx4 v{VA+pp//2}, s[20:23], s25 offen offset:{1024*pp} lds")
        e("s_mov_b32 m0, s30")
        e("s_add_u32 s25, s25, 2048")
        for pp in range(PW):
            e(f"buffer_load_dwordx4 v{VW+pp}, s[16:19], s26 offen offset:{1024*pp} lds")
        e(f"s_add_u32 s26, s26, {64*2048}")
        e(f"s_add_u32 s29, s29, {STG}")
        e(f"s_cmp_eq_u32 s29, {NBUF*STG}")
        e("s_cselect_b32 s29, 0, s29")
    for _ in range(NBUF): issue()
    e(f"s_mul_i32 s31, s14, {TN}")
    e(f"s_mul_i32 s32, s24, {TN//4}")
    e("s_add_u32 s31, s31, s32")
    e("s_lshl_b32 s31, s31, 12")
    e("s_lshl_b32 s32, s13, 8")
    e("s_add_u32 s31, s31, s32")
    e("s_lshl_b32 s32, s15, 7")
    e("s_add_u32 s31, s31, s32")
    e(f"s_add_u32 s31, s31, 0x{HT:x}")
    e(f"s_add_u32 m0, s27, {RES}")
    e("s_nop 0")
    for pp in range(4):
        e(f"buffer_load_dwordx4 v{VR+pp}, s[20:23], s31 offen offset:{1024*pp} lds")
    e(f"s_waitcnt vmcnt({(NBUF-1)*PP+4})")
    e("s_barrier")
    e(f"s_waitcnt vmcnt({(NBUF-2)*PP+4})")
    e("s_barrier")
    issue()
    e("s_mov_b32 s35, 1")
    k.label("lloop")
    e(f"s_waitcnt vmcnt({(NBUF-2)*PP})")
    e("s_barrier")
    issue()
    e("s_add_u32 s35, s35, 1")
    e(f"s_cmp_lt_u32 s35, {NSTG-NBUF}")
    e(f"s_cbranch_scc1 {k.L('lloop')}")
    for i in range(NSTG-NBUF, NSTG):
        left = max(NSTG - 1 - (i + 1), 0)
        e(f"s_waitcnt vmcnt({left*PP})")
        e("s_barrier")
    k.label("end")
    e("s_endpgm")
    return k
```

```python
import sys, importlib
from asmlib import *
import k0, k1
def main(out):
    ks = [k0.make_k0(), k1.make_k1()]
    try:
        import k3; ks.append(k3.make_k3())
        import k4; ks.append(k4.make_k4())
    except ImportError:
        pass
    open(out, "w").write(build(ks))
if __name__ == "__main__":
    main(sys.argv[1] if len(sys.argv) > 1 else "sequential_preLN__ssm_conv_h3__dense_activation_silu__prompt.s")
```

```python
import os
STAMP = int(os.environ.get('STAMP', '0'))
TS = 200 << 20
WT = os.environ.get('WT', '')
WT = (' ' + WT) if WT else ''
class Kern:
    def __init__(self, name, grid, block, lds, nvgpr, nsgpr=102, accum=None, nagpr=0):
        self.name = name; self.grid = grid; self.block = block; self.lds = lds
        self.nvgpr = nvgpr; self.nsgpr = nsgpr; self.nagpr = nagpr
        self.accum = accum if accum is not None else (nvgpr + 3) // 4 * 4
        self.lines = []
        self.uid = 0
    def e(self, s):
        for ln in s.strip("\n").split("\n"):
            ln = ln.strip()
            if ln:
                self.lines.append("    " + ln)
    def c(self, s):
        self.lines.append("    ; " + s)
    def label(self, l):
        self.lines.append(f"{self.name}_{l}:")
    def L(self, l):
        return f"{self.name}_{l}"
    def srd(self, d, lo, hi, nbytes):
        self.e(f"s_mov_b32 s{d}, s{lo}")
        self.e(f"s_and_b32 s{d+1}, s{hi}, 0xffff")
        self.e(f"s_mov_b32 s{d+2}, 0x{nbytes:x}")
        self.e(f"s_mov_b32 s{d+3}, 0x20000")
    def stamp(self, i):
        if not STAMP: return
        self.e(f"s_memrealtime s[{80+2*i}:{81+2*i}]")
        self.e(f"s_memtime s[{64+2*i}:{65+2*i}]")
        self.e("s_waitcnt lgkmcnt(0)")
    def dump_stamps(self, kid, srd, wave_sreg, n=8):
        if not STAMP: return
        self.stamp(n - 1)
        self.e("s_mov_b64 exec, 1")
        self.e(f"s_add_u32 s100, s2, {kid*256}")
        self.e("s_lshl_b32 s100, s100, 3")
        self.e(f"s_add_u32 s100, s100, s{wave_sreg}")
        self.e("s_lshl_b32 s100, s100, 7")
        self.e(f"s_add_u32 s100, s100, 0x{TS:x}")
        self.e("v_mov_b32 v0, 0")
        for q in range(8):
            for j in range(4):
                self.e(f"v_mov_b32 v{4+j}, s{(80+4*q+j) if q < 4 else (64+4*(q-4)+j)}")
            self.e(f"buffer_store_dwordx4 v[4:7], v0, s[{srd}:{srd+3}], s100 offen offset:{16*q}")
            self.e("s_nop 1")
    def clear_stamps(self):
        if not STAMP: return
        for i in range(32): self.e(f"s_mov_b32 s{64+i}, 0")
        self.stamp(0)
    def text(self):
        out = [f".globl {self.name}", ".p2align 8", f".type {self.name},@function", f"{self.name}:"]
        out += self.lines
        return "\n".join(out) + "\n"
    def desc(self):
        nfv = self.accum + self.nagpr if self.nagpr else self.nvgpr
        return f""".amdhsa_kernel {self.name}
  .amdhsa_next_free_vgpr {nfv}
  .amdhsa_next_free_sgpr {self.nsgpr}
  .amdhsa_accum_offset {self.accum}
  .amdhsa_group_segment_fixed_size 0
  .amdhsa_kernarg_size 96
  .amdhsa_user_sgpr_count 2
  .amdhsa_user_sgpr_kernarg_segment_ptr 1
  .amdhsa_system_sgpr_workgroup_id_x 1
.end_amdhsa_kernel
"""

def vr(a, n):
    return f"v[{a}:{a+n-1}]" if n > 1 else f"v{a}"
def ar(a, n):
    return f"a[{a}:{a+n-1}]" if n > 1 else f"a{a}"
def sr(a, n):
    return f"s[{a}:{a+n-1}]" if n > 1 else f"s{a}"

HEADER = """; Kernarg layout (96 bytes, ptrs only, base s[0:1]):
"""

def build(kerns, order=None):
    order = order or kerns
    s = HEADER
    for k in order:
        s += f"; @launch kernel={k.name} grid=({k.grid},1,1) block=({k.block},1,1) lds={k.lds}\n"
    s += '.amdgcn_target "amdgcn-amd-amdhsa--gfx950"\n.text\n'
    for k in kerns:
        s += k.text()
    s += '.section .rodata,"a"\n'
    for k in kerns:
        s += ".p2align 6\n" + k.desc()
    return s
```

```python
from asmlib import *
from layout import *

def bf16_round(k, dst, src):
    k.e(f"v_cvt_pk_bf16_f32 v{dst}, v{src}, v{src}")
    k.e(f"v_and_b32 v{dst}, 0xffff0000, v{dst}")

def ln_stats(k, s_, q_, m_, r_, t_):
    n = len(s_)
    for i in range(n): k.e(f"v_mul_f32 v{m_[i]}, 0x3a800000, v{s_[i]}")
    for i in range(n): k.e(f"v_mul_f32 v{t_[i]}, 0x3a800000, v{q_[i]}")
    for i in range(n): k.e(f"v_fma_f32 v{t_[i]}, -v{m_[i]}, v{m_[i]}, v{t_[i]}")
    for i in range(n): k.e(f"v_max_f32 v{t_[i]}, 0, v{t_[i]}")
    for i in range(n): bf16_round(k, m_[i], m_[i])
    for i in range(n): bf16_round(k, t_[i], t_[i])
    for i in range(n): k.e(f"v_add_f32 v{t_[i]}, 0x3727c5ac, v{t_[i]}")
    for i in range(n): bf16_round(k, t_[i], t_[i])
    for i in range(n): k.e(f"v_sqrt_f32 v{t_[i]}, v{t_[i]}")
    k.e("s_nop 0")
    for i in range(n): bf16_round(k, t_[i], t_[i])
    for i in range(n): k.e(f"v_rcp_f32 v{r_[i]}, v{t_[i]}")
    k.e("s_nop 0")

def make_k0():
    k = Kern("prep_kernel", 256, 256, 32768, nvgpr=128)
    e = k.e
    e("s_cmp_ge_u32 s2, 256")
    e(f"s_cbranch_scc1 {k.L('end')}")
    k.clear_stamps()
    e("s_load_dwordx8 s[4:11], s[0:1], 0")
    e("s_load_dwordx2 s[12:13], s[0:1], 32")
    e("s_load_dwordx2 s[14:15], s[0:1], 88")
    e("v_and_b32 v6, 15, v0")
    e("v_lshrrev_b32 v7, 4, v0")
    e("s_lshr_b32 s40, s2, 3")
    e("s_and_b32 s41, s2, 7")
    e("s_lshl_b32 s42, s40, 17")
    e("s_lshl_b32 s43, s41, 8")
    e("s_add_u32 s42, s42, s43")
    e("v_lshlrev_b32 v1, 13, v7")
    e("v_lshl_add_u32 v1, v6, 4, v1")
    e("v_add_u32 v1, s42, v1")
    e("v_add_u32 v2, 0x1000, v1")
    e("v_add_u32 v3, 0xffffe800, v1")
    e("v_add_u32 v4, 0xfffff000, v1")
    e("v_add_u32 v5, 0xfffff800, v1")
    e("s_lshl_b32 s44, s41, 10")
    e("v_lshlrev_b32 v8, 6, v6")
    e("v_add_u32 v8, s44, v8")
    e("v_and_b32 v9, 63, v0")
    e("v_lshrrev_b32 v10, 6, v0")
    e("v_lshlrev_b32 v10, 12, v10")
    e("v_lshl_add_u32 v9, v9, 4, v10")
    e("s_lshl_b32 s45, s2, 14")
    e("s_lshl_b32 s46, s41, 19")
    e("s_lshl_b32 s47, s40, 14")
    e("s_add_u32 s46, s46, s47")
    e("v_lshlrev_b32 v11, 6, v0")
    e("s_waitcnt lgkmcnt(0)")
    k.srd(16, 4, 5, 4*MB)
    k.srd(20, 6, 7, 4*MB)
    k.srd(24, 8, 9, 4*MB)
    k.srd(28, 10, 11, 8192)
    k.srd(32, 14, 15, WS_BYTES)
    k.srd(36, 12, 13, 4*MB)
    KR = 12
    VR = 40
    XR = 56
    SK = 72
    ST = 88
    e(f"buffer_load_dwordx4 {vr(SK,4)}, v8, s[28:31], 0 offen")
    e(f"buffer_load_dwordx4 {vr(SK+4,4)}, v8, s[28:31], 0 offen offset:16")
    e(f"buffer_load_dwordx4 {vr(SK+8,4)}, v8, s[28:31], 0 offen offset:32")
    e(f"buffer_load_dwordx4 {vr(SK+12,4)}, v8, s[28:31], 0 offen offset:48")
    e(f"buffer_load_dwordx4 {vr(KR,4)}, v3, s[20:23], 0 offen")
    e(f"buffer_load_dwordx4 {vr(KR+4,4)}, v4, s[20:23], 0 offen")
    e(f"buffer_load_dwordx4 {vr(KR+8,4)}, v5, s[20:23], 0 offen")
    for i in range(4):
        e(f"buffer_load_dwordx4 {vr(KR+12+4*i,4)}, v{1+i//2}, s[20:23], 0 offen offset:{2048*(i%2)}")
    for i in range(4):
        e(f"buffer_load_dwordx4 {vr(VR+4*i,4)}, v{1+i//2}, s[24:27], 0 offen offset:{2048*(i%2)}")
    for i in range(4):
        e(f"buffer_load_dwordx4 {vr(XR+4*i,4)}, v{1+i//2}, s[16:19], 0 offen offset:{2048*(i%2)}")
    for i in range(4):
        e(f"buffer_load_dwordx4 {vr(ST+4*i,4)}, v9, s[16:19], s45 offen offset:{1024*i}")
    e("buffer_load_dword v127, v11, s[36:39], s46 offen")
    e("v_and_b32 v10, 14, v6")
    e("v_xor_b32 v11, v10, v7")
    e("v_xor_b32 v10, 1, v11")
    e("v_lshlrev_b32 v8, 10, v6")
    e("v_lshl_add_u32 v10, v10, 3, v8")
    e("v_lshl_add_u32 v11, v11, 3, v8")
    e("s_mov_b32 s48, 0x05040100")
    e("s_mov_b32 s49, 0x07060302")
    e("s_mov_b32 s50, 0xffff0000")
    T = 104
    KU = 112
    A = 2
    ACC = [2, 4, 8, 126]
    ACC = [2, 4, 8, 6]
    PK = 104
    k.stamp(1)
    e("s_waitcnt vmcnt(9)")
    k.stamp(2)
    for jj in range(4):
        for c in range(2):
            d0 = SK + 4*jj + 2*c
            e(f"v_lshlrev_b32 v{T+0+c}, 16, v{d0}")
            e(f"v_and_b32 v{T+2+c}, s50, v{d0}")
            e(f"v_lshlrev_b32 v{T+4+c}, 16, v{d0+1}")
            e(f"v_and_b32 v{T+6+c}, s50, v{d0+1}")
        for r in range(7):
            e(f"v_lshlrev_b32 v{KU+2*r}, 16, v{KR+4*r+jj}")
            e(f"v_and_b32 v{KU+2*r+1}, s50, v{KR+4*r+jj}")
        for tap in (3, 2, 1, 0):
            for i in range(4):
                kk = KU + 2*(i+3-tap)
                if tap == 3:
                    e(f"v_pk_mul_f32 {vr(ACC[i],2)}, {vr(kk,2)}, {vr(T+2*tap,2)}")
                else:
                    e(f"v_pk_fma_f32 {vr(ACC[i],2)}, {vr(kk,2)}, {vr(T+2*tap,2)}, {vr(ACC[i],2)}")
        for i in range(4):
            e(f"v_lshlrev_b32 v{KU+2*i}, 16, v{VR+4*i+jj}")
            e(f"v_and_b32 v{KU+2*i+1}, s50, v{VR+4*i+jj}")
        for i in range(4):
            e(f"v_pk_mul_f32 {vr(ACC[i],2)}, {vr(ACC[i],2)}, {vr(KU+2*i,2)}")
        P = KU + 8 + 0
        for c in range(2):
            e(f"v_cvt_pk_bf16_f32 v{P+2*c}, v{ACC[3]+c}, v{ACC[2]+c}")
            e(f"v_cvt_pk_bf16_f32 v{P+2*c+1}, v{ACC[1]+c}, v{ACC[0]+c}")
        for c in range(2):
            e(f"ds_write_b64 v10, {vr(P+2*c,2)} offset:{128*(2*jj+c)}")
    e("s_waitcnt vmcnt(5)")
    for jj in range(4):
        for c in range(2):
            P = KR + 4*jj + 2*c
            sel = "s48" if c == 0 else "s49"
            e(f"v_perm_b32 v{P}, v{XR+4+jj}, v{XR+jj}, {sel}")
            e(f"v_perm_b32 v{P+1}, v{XR+12+jj}, v{XR+8+jj}, {sel}")
            e(f"ds_write_b64 v11, {vr(P,2)} offset:{16384+128*(2*jj+c)}")
    e("v_and_b32 v1, 7, v0")
    e("v_lshrrev_b32 v2, 7, v0")
    e("v_xor_b32 v2, v2, v1")
    e("v_lshrrev_b32 v3, 3, v0")
    e("v_lshlrev_b32 v4, 7, v3")
    e("v_lshl_add_u32 v4, v2, 4, v4")
    e("v_xor_b32 v5, 32, v4")
    e("v_xor_b32 v6, 64, v4")
    e("v_xor_b32 v7, 96, v4")
    e("v_lshlrev_b32 v3, 12, v3")
    e("v_lshl_add_u32 v3, v1, 4, v3")
    e("s_lshl_b32 s51, s41, 19")
    e("s_lshl_b32 s52, s40, 7")
    e("s_add_u32 s51, s51, s52")
    for i in range(8):
        e(f"s_add_u32 s{56+i}, s51, 0x{(i%4)*131072 + (XT if i >= 4 else UT):x}")
    e("s_waitcnt lgkmcnt(0)")
    k.stamp(3)
    e("s_barrier")
    R = 40
    for i in range(8):
        e(f"ds_read_b128 {vr(R+4*i,4)}, v{4+i%4} offset:{4096*(i%4) + (16384 if i >= 4 else 0)}")
    e("s_waitcnt vmcnt(1)")
    S = [104, 105]; Q = [106, 107]
    for r in range(2):
        e(f"v_mov_b32 v{S[r]}, 0"); e(f"v_mov_b32 v{Q[r]}, 0")
    e("s_mov_b32 s53, 0x3f803f80")
    for j in range(8):
        for r in range(2):
            e(f"v_dot2c_f32_bf16 v{S[r]}, s53, v{ST+8*r+j}")
            e(f"v_dot2c_f32_bf16 v{Q[r]}, v{ST+8*r+j}, v{ST+8*r+j}")
    for i in range(8):
        e(f"s_waitcnt lgkmcnt({7-i})")
        e(f"buffer_store_dwordx4 {vr(R+4*i,4)}, v3, s[32:35], s{56+i} offen")
    for mode in ("quad_perm:[1,0,3,2] row_mask:0xf", "quad_perm:[2,3,0,1] row_mask:0xf", "row_half_mirror row_mask:0xf",
                 "row_mirror row_mask:0xf", "row_bcast:15 row_mask:0xa", "row_bcast:31 row_mask:0xc"):
        for r in S + Q:
            e(f"v_add_f32_dpp v{r}, v{r}, v{r} {mode} bank_mask:0xf")
    ln_stats(k, S, Q, [108, 109], [110, 111], [112, 113])
    e("v_lshrrev_b32 v1, 6, v0")
    e("v_lshlrev_b32 v1, 3, v1")
    e("s_lshl_b32 s54, s2, 5")
    e(f"s_add_u32 s54, s54, 0x{MX:x}")
    e(f"s_add_u32 s55, s54, 0x{RX-MX:x}")
    e("v_mov_b32 v2, 0")
    e("v_and_b32 v3, 63, v0")
    e("v_lshlrev_b32 v3, 3, v3")
    e("v_mov_b32 v4, 0")
    e("v_mov_b32 v5, 0")
    e("s_lshl_b32 s56, s2, 9")
    e(f"s_add_u32 s56, s56, 0x{FLG:x}")
    e("buffer_store_dwordx2 v[4:5], v3, s[32:35], s56 offen")
    e("s_mov_b32 exec_lo, 0")
    e("s_mov_b32 exec_hi, 0x80000000")
    e("buffer_store_dwordx2 v[108:109], v1, s[32:35], s54 offen")
    e("buffer_store_dwordx2 v[110:111], v1, s[32:35], s55 offen")
    if STAMP:
        k.stamp(4)
        e("s_waitcnt vmcnt(0)")
        e("s_mov_b64 exec, -1")
        e("v_lshrrev_b32 v1, 6, v0")
        e("s_nop 0")
        e("v_readfirstlane_b32 s101, v1")
        k.dump_stamps(0, 32, 101)
    k.label("end")
    e("s_endpgm")
    return k
```

```python
from asmlib import *
from layout import *

KCP = 4160
REG = 4*KCP + 512 + 4096
STAT = 4*REG

def make_k1():
    k = Kern("conv_kernel", 256, 512, STAT + 16384, nvgpr=208)
    e = k.e
    e("s_cmp_ge_u32 s2, 256")
    e(f"s_cbranch_scc1 {k.L('end')}")
    k.clear_stamps()
    e("s_load_dwordx4 s[4:7], s[0:1], 32")
    e("s_load_dwordx2 s[8:9], s[0:1], 88")
    e("s_load_dwordx4 s[36:39], s[0:1], 56")
    e("v_lshrrev_b32 v1, 6, v0")
    e("v_and_b32 v0, 63, v0")
    e("v_readfirstlane_b32 s10, v1")
    e("s_cmp_ge_u32 s10, 4")
    e(f"s_cbranch_scc1 {k.L('helper')}")
    e("s_and_b32 s11, s2, 7")
    e("s_lshr_b32 s12, s2, 3")
    e("s_lshl_b32 s11, s11, 7")
    e("s_lshl_b32 s12, s12, 2")
    e("s_add_u32 s11, s11, s12")
    e("s_add_u32 s11, s11, s10")
    e("s_lshl_b32 s12, s11, 12")
    e(f"s_mul_i32 s13, s10, {REG}")
    e("v_lshlrev_b32 v2, 4, v0")
    e("v_add_u32 v3, -8, v2")
    e("v_add_u32 v4, 1016, v2")
    e("v_and_b32 v5, 15, v0")
    e("v_lshrrev_b32 v6, 4, v0")
    e("s_waitcnt lgkmcnt(0)")
    e("s_add_u32 s16, s4, s12")
    e("s_addc_u32 s17, s5, 0")
    e("s_and_b32 s17, s17, 0xffff")
    e("s_mov_b32 s18, 4096")
    e("s_mov_b32 s19, 0x20000")
    k.srd(20, 8, 9, WS_BYTES)
    e("s_and_b32 s14, s11, -2")
    e("s_lshl_b32 s14, s14, 1")
    e("s_load_dword s15, s[6:7], s14")
    Y = 8
    W = 24
    for i in range(4):
        e(f"buffer_load_dwordx4 {vr(Y+4*i,4)}, v2, s[16:19], 0 offen offset:{1024*i}")
        if i == 0: e(f"buffer_load_dwordx2 {vr(W,2)}, v3, s[16:19], 0 offen")
        else:      e(f"buffer_load_dwordx2 {vr(W+2*i,2)}, v4, s[16:19], 0 offen offset:{1024*(i-1)}")
    e(f"s_add_u32 s24, s13, {4*KCP+512}")
    e(f"s_add_u32 s25, s12, 0x{UT:x}")
    e("s_mov_b32 m0, s24")
    e("s_nop 0")
    for p in range(4):
        e(f"buffer_load_dwordx4 v2, s[20:23], s25 offen offset:{1024*p} lds")
    e("s_lshl_b32 s26, s10, 12")
    e(f"s_add_u32 s27, s26, {STAT}")
    e(f"s_add_u32 s26, s26, 0x{MX:x}")
    e("s_mov_b32 m0, s27")
    e("s_nop 0")
    for p in range(4):
        e(f"buffer_load_dwordx4 v2, s[20:23], s26 offen offset:{1024*p} lds")
    XV = 192
    e("v_lshlrev_b32 v7, 5, v5")
    e("v_lshl_add_u32 v7, v6, 3, v7")
    e(f"s_add_u32 s28, s12, 0x{XT:x}")
    e(f"s_add_u32 s29, s12, 0x{HT:x}")
    for t in range(8):
        e(f"buffer_load_dwordx2 {vr(XV+2*t,2)}, v7, s[20:23], s28 offen offset:{512*t}")
    e("v_bfe_u32 v32, v0, 1, 2")
    e(f"v_mul_u32_u24 v32, {KCP}, v32")
    e("v_and_b32 v33, 1, v0")
    e("v_lshl_add_u32 v32, v33, 4, v32")
    e(f"v_add_u32 v33, {4*KCP}, v2")
    e("v_cmp_gt_u32 vcc, 32, v0")
    e("v_mov_b32 v36, 0"); e("v_mov_b32 v37, 0"); e("v_mov_b32 v38, 0"); e("v_mov_b32 v39, 0")
    e("v_cndmask_b32 v32, v32, v33, vcc")
    e("v_add_u32 v32, s13, v32")
    e("ds_write_b128 v32, v[36:39]")
    e("v_sub_u32 v33, 7, v5")
    e("v_and_b32 v33, 3, v33")
    e(f"v_mul_u32_u24 v33, {KCP}, v33")
    e("v_lshrrev_b32 v34, 2, v5")
    e("v_lshl_add_u32 v33, v34, 3, v33")
    e("v_lshlrev_b32 v34, 4, v6")
    e("v_sub_u32 v33, v33, v34")
    e("s_add_u32 s30, s13, 24")
    e("v_add_u32 v1, s30, v33")
    e("v_lshlrev_b32 v33, 5, v5")
    e("v_add_u32 v33, v33, v34")
    e(f"s_add_u32 s30, s13, {4*KCP + 512 - 32*15}")
    e("v_add_u32 v3, s30, v33")
    e("s_add_u32 s30, s13, 32")
    e("v_add_u32 v4, s30, v2")
    e("v_lshrrev_b32 v33, 3, v5")
    e("v_add_u32 v33, 2, v33")
    e("v_and_b32 v34, 7, v5")
    e("v_sub_u32 v34, 7, v34")
    e("v_cmp_eq_u32 vcc, v33, v6")
    e("v_lshrrev_b32 v35, 1, v34")
    e("v_and_b32 v34, 1, v34")
    e("v_cndmask_b32 v35, 9, v35, vcc")
    e("v_lshlrev_b32 v34, 4, v34")
    e("s_waitcnt lgkmcnt(0)")
    e("s_and_b32 s31, s11, 1")
    e("s_lshl_b32 s31, s31, 4")
    e("s_lshr_b32 s15, s15, s31")
    e("s_and_b32 s15, s15, 0xffff")
    e("v_mov_b32 v33, s15")
    e("v_lshlrev_b32 v34, v34, v33")
    for r in range(4):
        e(f"v_cmp_eq_u32 vcc, {r}, v35")
        e("s_nop 1")
        e(f"v_cndmask_b32 v{40+r}, 0, v34, vcc")
    k.stamp(1)
    if STAMP:
        e("s_waitcnt vmcnt(22)")
        k.stamp(2)
    for i in range(4):
        e(f"s_waitcnt vmcnt({16 + 2*(3-i)})")
        y = Y + 4*i; w = W + 2*i
        X = 44 + 12*(i % 2); P1 = X + 4; P3 = X + 8
        e(f"ds_write_b128 v4, {vr(y,4)} offset:{1024*i}")
        e(f"v_mov_b32 v{X}, v{w+1}")
        for j in range(3): e(f"v_mov_b32 v{X+1+j}, v{y+j}")
        e(f"ds_write_b128 v4, {vr(X,4)} offset:{1024*i + 2*KCP}")
        e(f"v_alignbit_b32 v{P1}, v{y}, v{w+1}, 16")
        for j in range(3): e(f"v_alignbit_b32 v{P1+1+j}, v{y+1+j}, v{y+j}, 16")
        e(f"ds_write_b128 v4, {vr(P1,4)} offset:{1024*i + KCP}")
        e(f"v_alignbit_b32 v{P3}, v{w+1}, v{w}, 16")
        for j in range(3): e(f"v_mov_b32 v{P3+1+j}, v{P1+j}")
        e(f"ds_write_b128 v4, {vr(P3,4)} offset:{1024*i + 3*KCP}")
    FA = [64, 128]
    FB = [96, 160]
    ACC = 8
    def reads(buf, ep):
        r = []
        for w in range(8):
            r.append(f"ds_read_b128 {vr(FB[buf]+4*w,4)}, v3 offset:{512*w + 32*(15-ep)}")
        for v in range(8):
            r.append(f"ds_read_b64 {vr(FA[buf]+4*v,2)}, v1 offset:{32*ep + 512*v}")
            r.append(f"ds_read_b64 {vr(FA[buf]+4*v+2,2)}, v1 offset:{32*ep + 512*v + 8}")
        return r
    def mfmas(buf):
        m = []
        for v in range(8):
            for w in range(8 - v):
                t = v + w
                m.append(f"v_mfma_f32_16x16x32_bf16 {vr(ACC+4*t,4)}, {vr(FA[buf]+4*v,4)}, {vr(FB[buf]+4*w,4)}, {vr(ACC+4*t,4)}")
        return m
    e("s_waitcnt vmcnt(12) lgkmcnt(0)")
    k.stamp(3)
    rd = reads(0, 1)
    for r in rd[:15]: e(r)
    e("s_waitcnt lgkmcnt(7)")
    for t in range(8):
        e(f"v_mfma_f32_16x16x32_bf16 {vr(ACC+4*t,4)}, v[40:43], {vr(FB[0]+4*t,4)}, 0")
        e(rd[15+t])
    e(rd[23])
    e("s_mov_b32 s33, 0")
    k.label("loop")
    for buf, nxt in ((0, 3), (1, 5)):
        e("s_waitcnt lgkmcnt(0)")
        rd = reads(1 - buf, nxt)
        if buf == 1:
            pass
        for i, m in enumerate(mfmas(buf)):
            e(m)
            if i < len(rd): e(rd[i])
    e("v_add_u32 v1, 128, v1")
    e("v_add_u32 v3, -128, v3")
    e("s_add_u32 s33, s33, 1")
    e("s_cmp_lt_u32 s33, 4")
    e(f"s_cbranch_scc1 {k.L('loop')}")
    e("v_lshlrev_b32 v1, 6, v5")
    e("v_lshl_add_u32 v1, v6, 4, v1")
    e(f"v_add_u32 v1, {STAT}, v1")
    k.stamp(4)
    e("s_waitcnt vmcnt(0) lgkmcnt(0)")
    e("s_barrier")
    k.stamp(5)
    MS = 64; RS = 96
    for t in range(8):
        e(f"ds_read_b128 {vr(MS+4*t,4)}, v1 offset:{1024*t}")
        e(f"ds_read_b128 {vr(RS+4*t,4)}, v1 offset:{1024*t+8192}")
    e("s_mov_b32 s34, 0xffff0000")
    for t in range(8):
        xu = 128 + 8*(t % 2); q = xu + 4
        e(f"v_lshlrev_b32 v{xu}, 16, v{XV+2*t}")
        e(f"v_and_b32 v{xu+1}, s34, v{XV+2*t}")
        e(f"v_lshlrev_b32 v{xu+2}, 16, v{XV+2*t+1}")
        e(f"v_and_b32 v{xu+3}, s34, v{XV+2*t+1}")
        e(f"s_waitcnt lgkmcnt({14-2*t})")
        for h in range(2):
            e(f"v_pk_add_f32 {vr(q+2*h,2)}, {vr(xu+2*h,2)}, {vr(MS+4*t+2*h,2)} neg_lo:[0,1] neg_hi:[0,1]")
        for h in range(2):
            e(f"v_pk_mul_f32 {vr(q+2*h,2)}, {vr(q+2*h,2)}, {vr(RS+4*t+2*h,2)}")
        for h in range(2):
            e(f"v_pk_fma_f32 {vr(q+2*h,2)}, {vr(q+2*h,2)}, {vr(ACC+4*t+2*h,2)}, {vr(xu+2*h,2)}")
        e(f"v_cvt_pk_bf16_f32 v{XV+2*t}, v{q}, v{q+1}")
        e(f"v_cvt_pk_bf16_f32 v{XV+2*t+1}, v{q+2}, v{q+3}")
        e(f"buffer_store_dwordx2 {vr(XV+2*t,2)}, v7, s[20:23], s29 offen offset:{512*t}")
    if STAMP:
        k.stamp(6)
        e("s_waitcnt vmcnt(0)")
        k.dump_stamps(1, 20, 10)
    e("s_endpgm")
    k.label("helper")
    e("s_lshr_b32 s11, s2, 3")
    e("s_lshl_b32 s11, s11, 2")
    e("s_add_u32 s11, s11, s10")
    e("s_sub_u32 s11, s11, 4")
    e("s_and_b32 s12, s2, 7")
    e("s_cmp_ge_u32 s11, 112")
    e(f"s_cbranch_scc1 {k.L('w2warm')}")
    e("s_mul_i32 s13, s11, 4682")
    e("s_lshr_b32 s13, s13, 16")
    e("s_mul_i32 s14, s13, 14")
    e("s_sub_u32 s14, s11, s14")
    e("s_lshr_b32 s15, s12, 1")
    e("s_mul_i32 s15, s15, 896")
    e("s_lshl_b32 s14, s14, 6")
    e("s_add_u32 s14, s14, s15")
    e(f"s_mul_i32 s15, s13, {128*7168}")
    e("s_lshl_b32 s24, s14, 1")
    e("s_add_u32 s15, s15, s24")
    e("v_lshrrev_b32 v1, 3, v0")
    e("v_mul_u32_u24 v1, 7168, v1")
    e("v_and_b32 v2, 7, v0")
    e("v_lshl_add_u32 v1, v2, 4, v1")
    e("s_waitcnt lgkmcnt(0)")
    k.srd(16, 36, 37, 1024*3584*2)
    k.srd(20, 8, 9, WS_BYTES)
    for n in range(16):
        e(f"buffer_load_dwordx4 {vr(16+4*n,4)}, v1, s[16:19], s15 offen")
        e(f"s_add_u32 s15, s15, {8*7168}")
    for i in range(8): e(f"v_mov_b32 v{8+i}, 0")
    e("s_mov_b32 s25, 0x00003f80")
    e("s_mov_b32 s26, 0x3f800000")
    for n in range(16):
        e(f"s_waitcnt vmcnt({15-n})")
        for j in range(4):
            e(f"v_dot2c_f32_bf16 v{8+2*j}, s25, v{16+4*n+j}")
            e(f"v_dot2c_f32_bf16 v{9+2*j}, s26, v{16+4*n+j}")
    e("s_nop 2")
    for i in range(8): e(f"v_add_f32_dpp v{8+i}, v{8+i}, v{8+i} row_ror:8 row_mask:0xf bank_mask:0xf")
    for op in ("v_permlane32_swap_b32", "v_permlane16_swap_b32"):
        for i in range(8): e(f"v_mov_b32 v{16+i}, v{8+i}")
        e("s_nop 1")
        for i in range(8): e(f"{op} v{8+i}, v{16+i}")
        e("s_nop 1")
        for i in range(8): e(f"v_add_f32 v{8+i}, v{8+i}, v{16+i}")
    k.dump_stamps(1, 20, 10)
    e("s_and_b32 s12, s12, 1")
    e("s_cmp_eq_u32 s12, 1")
    e(f"s_cbranch_scc1 {k.L('end')}")
    e(f"s_mul_i32 s15, s13, {3584*4}")
    e("s_lshl_b32 s14, s14, 2")
    e("s_add_u32 s15, s15, s14")
    e(f"s_add_u32 s15, s15, 0x{CS:x}")
    e("v_lshlrev_b32 v1, 5, v0")
    e("s_mov_b64 exec, 0xff")
    e("buffer_store_dwordx4 v[8:11], v1, s[20:23], s15 offen")
    e("buffer_store_dwordx4 v[12:15], v1, s[20:23], s15 offen offset:16")
    e("s_endpgm")
    k.label("w2warm")
    e("s_sub_u32 s11, s11, 112")
    e("s_lshl_b32 s11, s11, 3")
    e("s_add_u32 s11, s11, s12")
    e(f"s_mul_i32 s11, s11, {448*128}")
    e("v_lshlrev_b32 v1, 7, v0")
    e("s_waitcnt lgkmcnt(0)")
    k.srd(16, 38, 39, 1024*3584*2)
    for n in range(7):
        e(f"buffer_load_dword v{8+n}, v1, s[16:19], s11 offen")
        e(f"s_add_u32 s11, s11, {64*128}")
    k.label("end")
    e("s_endpgm")
    return k
```

```python
from asmlib import *
from layout import *
from k0 import ln_stats
import os
X = os.environ.get('K3X', '')

STG = 45056
WOFF = 16384
NBUF = 3
STATS = NBUF * STG
CSL = STATS + 1024
NCS = 8

def make_k3():
    k = Kern("gemm1_kernel", 256, 512, CSL + 1024, nvgpr=224)
    e = k.e
    e("s_cmp_ge_u32 s2, 256")
    e(f"s_cbranch_scc1 {k.L('end')}")
    k.clear_stamps()
    e("s_load_dwordx2 s[4:5], s[0:1], 56")
    e("s_load_dwordx2 s[6:7], s[0:1], 88")
    e("v_lshrrev_b32 v1, 6, v0")
    e("v_and_b32 v0, 63, v0")
    e("v_readfirstlane_b32 s10, v1")
    e("s_and_b32 s11, s2, 7")
    e("s_lshr_b32 s12, s2, 3")
    e("s_and_b32 s13, s11, 1")
    e("s_lshl_b32 s13, s13, 3")
    e("s_and_b32 s14, s12, 7")
    e("s_add_u32 s13, s13, s14")
    e("s_lshr_b32 s14, s11, 1")
    e("s_lshl_b32 s14, s14, 2")
    e("s_lshr_b32 s15, s12, 3")
    e("s_add_u32 s14, s14, s15")
    e("v_lshrrev_b32 v2, 4, v0")
    e("v_bfe_u32 v3, v0, 2, 2")
    e("v_and_b32 v4, 3, v0")
    e("v_and_b32 v5, 1, v2")
    e("v_lshl_or_b32 v6, v5, 2, v3")
    e("v_lshl_add_u32 v7, v2, 3, v3")
    e("v_lshlrev_b32 v8, 8, v7")
    e("v_lshl_add_u32 v8, v4, 3, v8")
    e("s_waitcnt lgkmcnt(0)")
    k.srd(16, 4, 5, 1024*3584*2)
    k.srd(20, 6, 7, WS_BYTES)
    e("s_cmp_ge_u32 s10, 4")
    e(f"s_cbranch_scc1 {k.L('loader')}")

    ACC = 16
    FW = [128, 172]
    FH = [156, 200]
    AH = [1, 2, 3, 4]
    AW = [9, 10, 11]
    e("s_and_b32 s24, s10, 1")
    e("s_lshr_b32 s25, s10, 1")
    e("v_mul_u32_u24 v12, 448, v7")
    e("v_lshl_add_u32 v12, v4, 3, v12")
    e(f"v_add_u32 v12, {WOFF}, v12")
    e("v_lshl_add_u32 v13, v5, 5, v12")
    e("v_xor_b32 v14, 1, v5")
    e("v_lshl_add_u32 v14, v14, 5, v12")
    e("s_lshl_b32 s26, s25, 8")
    e("v_add_u32 v9, s26, v13")
    e("v_add_u32 v10, s26, v14")
    e("s_cmp_eq_u32 s25, 0")
    e("s_cselect_b64 vcc, -1, 0")
    e("v_cndmask_b32 v11, v14, v13, vcc")
    e("v_add_u32 v11, 192, v11")
    e("v_mov_b32 v15, v2")
    e("s_lshl_b32 s26, s24, 2")
    for j in range(4):
        e(f"s_add_u32 s27, s26, {j}")
        e(f"v_xor_b32 v12, s27, v6")
        e(f"v_lshl_add_u32 v{AH[j]}, v12, 5, v8")
    for i in range(112):
        e(f"v_mov_b32 v{ACC+i}, 0")
    def reads(st, step):
        r = []
        for j in range(4):
            for h in range(2):
                r.append(f"ds_read_b64_tr_b16 {vr(FH[st]+4*j+2*h,2)}, v{AH[j]} offset:{8192*step+1024*h}")
        for i in range(7):
            a, o = (AW[i % 2], 64*(i//2)) if i < 6 else (AW[2], 0)
            for h in range(2):
                r.append(f"ds_read_b64_tr_b16 {vr(FW[st]+4*i+2*h,2)}, v{a} offset:{14336*step+1792*h+o}")
        if 'r' in X: r = ["s_nop 0" for _ in r]
        return r
    def mfmas(st):
        if 'm' in X: return ["s_nop 0"] * 28
        return [f"v_mfma_f32_16x16x32_bf16 {vr(ACC+4*(4*i+j),4)}, {vr(FW[st]+4*i,4)}, {vr(FH[st]+4*j,4)}, {vr(ACC+4*(4*i+j),4)}"
                for i in range(7) for j in range(4)]
    e("s_mov_b32 s28, 0")
    e("s_mov_b32 s29, 0")
    k.stamp(1)
    e("s_barrier")
    k.stamp(2)
    for r in reads(0, 0): e(r)
    k.label("cloop")
    e("s_waitcnt lgkmcnt(0)")
    rd = reads(1, 1)
    sched = [2]*6 + [1]*10
    for i, m in enumerate(mfmas(0)):
        e(m)
        n = sched[i] if i < len(sched) else 0
        for _ in range(n): e(rd.pop(0))
        if i == 20:
            e("s_add_u32 s29, s29, 1")
            e(f"s_movk_i32 s30, 0x{STG//4:x}")
            e("s_cmp_eq_u32 s29, 3")
            e(f"s_cselect_b32 s30, {-2*STG//4}, s30")
            e("s_cselect_b32 s29, 0, s29")
            e("s_lshl_b32 s30, s30, 2")
    assert not rd
    e("s_waitcnt lgkmcnt(0)")
    e("s_barrier")
    rd = [f"v_add_u32 v{a}, s30, v{a}" for a in AH + AW] + reads(0, 0)
    sched = [2]*10 + [1]*9
    for i, m in enumerate(mfmas(1)):
        e(m)
        n = sched[i] if i < len(sched) else 0
        for _ in range(n): e(rd.pop(0))
        if i == 24:
            e("s_add_u32 s28, s28, 1")
            e("s_cmp_lt_u32 s28, 16")
    assert not rd
    e(f"s_cbranch_scc1 {k.L('cloop')}")
    e("v_and_b32 v1, 15, v0")
    e("s_lshl_b32 s26, s24, 9")
    e(f"s_add_u32 s26, s26, {STATS}")
    e("v_lshl_add_u32 v1, v1, 3, s26")
    e("s_lshl_b32 s26, s25, 9")
    e(f"s_add_u32 s26, s26, {CSL}")
    e("v_lshl_add_u32 v2, v15, 4, s26")
    e("s_mul_i32 s26, s25, 64")
    e(f"s_add_u32 s26, s26, {CSL+384}")
    e("v_lshl_add_u32 v3, v15, 4, s26")
    e("s_lshl_b32 s26, s25, 12")
    e("v_lshl_add_u32 v4, v0, 4, s26")
    e("s_lshl_b32 s26, s25, 3")
    e("s_add_u32 s26, s26, 3072")
    e("v_lshl_add_u32 v5, v0, 4, s26")
    e("s_lshl_b32 s26, s13, 3")
    e("s_lshl_b32 s27, s24, 2")
    e("s_add_u32 s26, s26, s27")
    e("s_mul_i32 s26, s26, 112")
    e("s_mul_i32 s27, s14, 7")
    e("s_add_u32 s26, s26, s27")
    e("s_lshl_b32 s26, s26, 10")
    e(f"s_add_u32 s32, s26, 0x{HM:x}")
    for j in range(1, 4):
        e(f"s_add_u32 s{32+j}, s32, {112*1024*j}")
    e("s_waitcnt lgkmcnt(0)")
    k.stamp(3)
    e("s_barrier")
    k.stamp(4)
    MR = 128
    C2 = 136
    CSV = 144
    for j in range(4):
        e(f"ds_read_b64 {vr(MR+2*j,2)}, v1 offset:{128*j}")
    for i in range(7):
        e(f"ds_read_b128 {vr(CSV+4*i,4)}, v{2 if i < 6 else 3} offset:{64*i if i < 6 else 0}")
    e("s_waitcnt lgkmcnt(0)")
    for j in range(4):
        e(f"v_mul_f32 v{C2+2*j}, 0xbfb8aa3b, v{MR+2*j+1}")
    T = 172
    def elem4(i, j, tb, out):
        a = ACC + 4*(4*i+j); p = tb; x = tb + 4
        for h in range(2):
            e(f"v_pk_fma_f32 {vr(a+2*h,2)}, {vr(CSV+4*i+2*h,2)}, {vr(MR+2*j,2)}, {vr(a+2*h,2)} op_sel_hi:[1,0,1] neg_lo:[0,1,0] neg_hi:[0,1,0]")
        for h in range(2):
            e(f"v_pk_mul_f32 {vr(x+2*h,2)}, {vr(a+2*h,2)}, {vr(C2+2*j,2)} op_sel_hi:[1,0]")
        for h in range(2):
            e(f"v_pk_mul_f32 {vr(p+2*h,2)}, {vr(a+2*h,2)}, {vr(MR+2*j,2)} op_sel:[0,1] op_sel_hi:[1,1]")
        for q in range(4): e(f"v_exp_f32 v{x+q}, v{x+q}")
        e("s_nop 0")
        for h in range(2):
            e(f"v_pk_add_f32 {vr(x+2*h,2)}, {vr(x+2*h,2)}, 1.0 op_sel_hi:[1,0]")
        for q in range(4): e(f"v_rcp_f32 v{x+q}, v{x+q}")
        e("s_nop 0")
        for h in range(2):
            e(f"v_pk_mul_f32 {vr(p+2*h,2)}, {vr(p+2*h,2)}, {vr(x+2*h,2)}")
        e(f"v_cvt_pk_bf16_f32 v{out}, v{p}, v{p+1}")
        e(f"v_cvt_pk_bf16_f32 v{out+1}, v{p+2}, v{p+3}")
    n = 0
    for j in range(4):
        for pr in range(4):
            o = 192 + 4*(n % 4); n += 1
            elem4(2*pr, j, T, o)
            if pr < 3:
                elem4(2*pr+1, j, T+8, o+2)
                e(f"buffer_store_dwordx4 {vr(o,4)}, v4, s[20:23], s{32+j} offen offset:{1024*pr}")
            else:
                e(f"buffer_store_dwordx2 {vr(o,2)}, v5, s[20:23], s{32+j} offen")
    if STAMP:
        k.stamp(5)
        e("s_waitcnt vmcnt(0)")
        k.dump_stamps(2, 20, 10)
    e("s_endpgm")

    k.label("loader")
    e("s_sub_u32 s24, s10, 4")
    VH = 16
    VW = 20
    e("v_bfe_u32 v9, v0, 1, 3")
    e("v_and_b32 v10, 1, v0")
    e("v_lshlrev_b32 v10, 4, v10")
    e("v_lshl_add_u32 v10, v2, 12, v10")
    e("v_xor_b32 v9, v9, v2")
    for pp in range(4):
        if pp == 2: e("v_xor_b32 v9, 4, v9")
        e(f"v_lshl_add_u32 v{VH+pp}, v9, 5, v10")
        if pp: e(f"v_add_u32 v{VH+pp}, {pp*(16384-1024)}, v{VH+pp}")
    for q in range(7):
        e(f"v_add_u32 v9, {64*q}, v0")
        e("v_mul_u32_u24 v10, 9363, v9")
        e("v_lshrrev_b32 v10, 18, v10")
        e("v_mul_u32_u24 v11, 28, v10")
        e("v_sub_u32 v11, v9, v11")
        e("v_lshrrev_b32 v12, 2, v10")
        e("v_and_b32 v12, 2, v12")
        e("v_xor_b32 v11, v11, v12")
        e("v_mul_u32_u24 v12, 7168, v10")
        e("v_lshl_add_u32 v12, v11, 4, v12")
        e(f"v_add_u32 v{VW+q}, {-1024*(q%4)}, v12")
    e("s_lshl_b32 s25, s24, 16")
    e("s_lshl_b32 s26, s13, 8")
    e("s_add_u32 s25, s25, s26")
    e(f"s_add_u32 s25, s25, 0x{HT:x}")
    e(f"s_mul_i32 s26, s24, {16*7168}")
    e("s_mul_i32 s27, s14, 448")
    e("s_add_u32 s26, s26, s27")
    e("s_lshl_b32 s27, s24, 12")
    e("s_mul_i32 s28, s24, 7168")
    e(f"s_add_u32 s28, s28, {WOFF}")
    e("s_mov_b32 s29, 0")
    def issue():
        if 'd' in X: return
        e("s_add_u32 m0, s27, s29")
        e("s_add_u32 s30, s28, s29")
        for pp in range(4):
            e(f"buffer_load_dwordx4 v{VH+pp}, s[20:23], s25 offen offset:{1024*pp} lds")
        e("s_mov_b32 m0, s30")
        e("s_add_u32 s25, s25, 0x40000")
        for q in range(4):
            e(f"buffer_load_dwordx4 v{VW+q}, s[16:19], s26 offen offset:{1024*q} lds")
        e("s_add_u32 m0, s30, 4096")
        e(f"s_add_u32 s29, s29, {STG}")
        for q in range(4, 7):
            e(f"buffer_load_dwordx4 v{VW+q}, s[16:19], s26 offen offset:{1024*(q-4)} lds")
        e(f"s_add_u32 s26, s26, {64*7168}")
        e(f"s_cmp_eq_u32 s29, {NBUF*STG}")
        e("s_cselect_b32 s29, 0, s29")
    issue()
    CSR = 28
    e("s_mul_i32 s31, s14, 896")
    e("s_mul_i32 s32, s24, 224")
    e("s_add_u32 s31, s31, s32")
    e(f"s_add_u32 s31, s31, 0x{CS:x}")
    e("v_lshlrev_b32 v9, 2, v0")
    for p in range(NCS):
        e(f"s_add_u32 s32, s31, {p*3584*4}")
        e(f"buffer_load_dword v{CSR+p}, v9, s[20:23], s32 offen")
    issue()
    issue()
    e("s_lshl_b32 s31, s24, 1")
    e("v_xor_b32 v12, s31, v6")
    e("v_lshl_add_u32 v36, v12, 5, v8")
    e("v_xor_b32 v37, 32, v36")
    S = [40, 41]; Q = [42, 43]
    for r in S + Q: e(f"v_mov_b32 v{r}, 0")
    e("s_mov_b32 s33, 0x3f803f80")
    e("s_mov_b32 s34, 0")
    D = 44
    def stats():
        if 's' in X: return
        e("v_add_u32 v38, s34, v36")
        e("v_add_u32 v39, s34, v37")
        for t in range(2):
            for st in range(2):
                for h in range(2):
                    e(f"ds_read_b64_tr_b16 {vr(D+8*t+4*st+2*h,2)}, v{38+t} offset:{8192*st+1024*h}")
        e(f"s_add_u32 s34, s34, {STG}")
        e(f"s_cmp_eq_u32 s34, {NBUF*STG}")
        e("s_cselect_b32 s34, 0, s34")
        e("s_waitcnt lgkmcnt(0)")
        for j in range(8):
            for t in range(2):
                e(f"v_dot2c_f32_bf16 v{S[t]}, s33, v{D+8*t+j}")
                e(f"v_dot2c_f32_bf16 v{Q[t]}, v{D+8*t+j}, v{D+8*t+j}")
    k.stamp(1)
    e(f"s_waitcnt vmcnt({22+NCS})")
    k.stamp(2)
    e("s_barrier")
    stats()
    e("s_mov_b32 s35, 0")
    k.label("lloop")
    e("s_cmp_lt_u32 s35, 14")
    e(f"s_cbranch_scc1 {k.L('lw11')}")
    e("s_waitcnt vmcnt(0)")
    k.label("lw11")
    e("s_waitcnt vmcnt(11)")
    e("s_barrier")
    e("s_cmp_ge_u32 s35, 13")
    e(f"s_cbranch_scc1 {k.L('noissue')}")
    issue()
    k.label("noissue")
    e("s_cmp_ge_u32 s35, 15")
    e(f"s_cbranch_scc1 {k.L('ldone')}")
    stats()
    e("s_add_u32 s35, s35, 1")
    e(f"s_branch {k.L('lloop')}")
    k.label("ldone")
    k.stamp(3)
    for op in ("v_permlane32_swap_b32", "v_permlane16_swap_b32"):
        for i, r in enumerate(S + Q): e(f"v_mov_b32 v{D+i}, v{r}")
        e("s_nop 1")
        for i, r in enumerate(S + Q): e(f"{op} v{r}, v{D+i}")
        e("s_nop 1")
        for i, r in enumerate(S + Q): e(f"v_add_f32 v{r}, v{r}, v{D+i}")
    ln_stats(k, S, Q, [50, 52], [51, 53], [54, 55])
    e("v_and_b32 v9, 15, v0")
    e("s_lshl_b32 s31, s24, 8")
    e(f"s_add_u32 s31, s31, {STATS}")
    e("v_lshl_add_u32 v9, v9, 3, s31")
    e("ds_write_b64 v9, v[50:51]")
    e("ds_write_b64 v9, v[52:53] offset:128")
    for p in range(1, NCS):
        e(f"v_add_f32 v{CSR}, v{CSR}, v{CSR+p}")
    e("s_mul_i32 s31, s24, 224")
    e(f"s_add_u32 s31, s31, {CSL}")
    e("v_lshl_add_u32 v9, v0, 2, s31")
    e("v_cmp_gt_u32 vcc, 56, v0")
    e("s_and_saveexec_b64 s[36:37], vcc")
    e(f"ds_write_b32 v9, v{CSR}")
    e("s_waitcnt lgkmcnt(0)")
    e("s_barrier")
    k.dump_stamps(2, 20, 10)
    k.label("end")
    e("s_endpgm")
    return k
```

```python
from asmlib import *
from layout import *
import os

def make_k4(SPLIT=None):
    SPLIT = SPLIT or int(os.environ.get("K4_SPLIT", "2"))
    TN = 64 * SPLIT
    NS = 2 * SPLIT
    NSTG = 56 // SPLIT
    WOFF = 16384
    STG = WOFF + TN * 128
    NBUF = 5 if SPLIT == 1 else 4
    RES = NBUF * STG
    PW = 2 * SPLIT
    PP = 4 + PW
    k = Kern("gemm2_kernel", 256, 512, RES + 16384, nvgpr=160)
    e = k.e
    e("s_cmp_ge_u32 s2, 256")
    e(f"s_cbranch_scc1 {k.L('end')}")
    k.clear_stamps()
    e("s_load_dwordx4 s[4:7], s[0:1], 64")
    e("s_load_dwordx2 s[8:9], s[0:1], 88")
    e("v_lshrrev_b32 v1, 6, v0")
    e("v_and_b32 v0, 63, v0")
    e("v_readfirstlane_b32 s10, v1")
    e("s_and_b32 s11, s2, 7")
    e("s_lshr_b32 s12, s2, 3")
    if SPLIT == 1:
        e("s_and_b32 s13, s11, 3")
        e("s_lshl_b32 s13, s13, 2")
        e("s_and_b32 s14, s12, 3")
        e("s_add_u32 s13, s13, s14")
        e("s_lshr_b32 s14, s11, 2")
        e("s_lshl_b32 s14, s14, 3")
        e("s_lshr_b32 s15, s12, 2")
        e("s_add_u32 s14, s14, s15")
        e("s_mov_b32 s15, 0")
    else:
        e("s_lshr_b32 s13, s11, 1")
        e("s_lshl_b32 s13, s13, 2")
        e("s_and_b32 s14, s12, 3")
        e("s_add_u32 s13, s13, s14")
        e("s_lshr_b32 s14, s12, 2")
        e("s_and_b32 s15, s11, 1")
    e("v_lshrrev_b32 v2, 4, v0")
    e("v_bfe_u32 v3, v0, 2, 2")
    e("v_and_b32 v4, 3, v0")
    e("v_lshl_add_u32 v7, v2, 2, v3")
    e("v_and_b32 v5, 7, v7")
    e("v_bfe_u32 v6, v7, 1, 2")
    e("s_waitcnt lgkmcnt(0)")
    k.srd(16, 4, 5, 1024*3584*2)
    k.srd(20, 8, 9, WS_BYTES)
    k.srd(40, 6, 7, 4*MB)
    e("s_cmp_ge_u32 s10, 4")
    e(f"s_cbranch_scc1 {k.L('loader')}")

    ACC = 16
    F0 = ACC + 16*NS
    FW = [F0, F0 + 16 + 4*NS]
    FH = [F0 + 16, F0 + 32 + 4*NS]
    AW = [8, 9, 10, 11]; AHr = 12
    wsh, wsg = (7, 6) if SPLIT == 1 else (8, 5)
    e(f"v_lshlrev_b32 v13, {wsh}, v7")
    e("v_lshl_add_u32 v13, v4, 3, v13")
    e(f"v_add_u32 v13, {WOFF}, v13")
    if SPLIT == 1:
        e("s_mov_b32 s25, 0")
        e("s_mov_b32 s24, s10")
    else:
        e("s_and_b32 s24, s10, 1")
        e("s_lshr_b32 s25, s10, 1")
    e("s_lshl_b32 s26, s25, 2")
    for i in range(4):
        e(f"s_add_u32 s27, s26, {i}")
        e(f"v_xor_b32 v14, s27, v{wsg}")
        e(f"v_lshl_add_u32 v{AW[i]}, v14, 5, v13")
    e("s_lshl_b32 s26, s24, 12")
    e(f"v_lshl_add_u32 v{AHr}, v0, 4, s26")
    for i in range(16*NS):
        e(f"v_mov_b32 v{ACC+i}, 0")
    def hoff(j):
        return 2048*j if SPLIT == 1 else 2048*(j % 2) + 8192*(j // 2)
    def reads(st, step):
        r = []
        for j in range(NS):
            r.append(f"ds_read_b128 {vr(FH[st]+4*j,4)}, v{AHr} offset:{hoff(j)+1024*step}")
        for i in range(4):
            for h in range(2):
                r.append(f"ds_read_b64_tr_b16 {vr(FW[st]+4*i+2*h,2)}, v{AW[i]} offset:{(TN*64)*step+(TN*32)*h}")
        return r
    def mfmas(st):
        return [f"v_mfma_f32_16x16x32_bf16 {vr(ACC+4*(NS*i+j),4)}, {vr(FW[st]+4*i,4)}, {vr(FH[st]+4*j,4)}, {vr(ACC+4*(NS*i+j),4)}"
                for i in range(4) for j in range(NS)]
    def weave(ms, rd, per):
        for i, m in enumerate(ms):
            e(m)
            for _ in range(per):
                if rd: e(rd.pop(0))
        assert not rd
    e("s_mov_b32 s28, 0")
    e("s_mov_b32 s29, 0")
    k.stamp(1)
    e("s_barrier")
    k.stamp(2)
    for r in reads(0, 0): e(r)
    k.label("cloop")
    e("s_add_u32 s29, s29, 1")
    e(f"s_mov_b32 s30, {STG}")
    e(f"s_cmp_eq_u32 s29, {NBUF}")
    e(f"s_cselect_b32 s30, {-(NBUF-1)*STG}, s30")
    e("s_cselect_b32 s29, 0, s29")
    e("s_waitcnt lgkmcnt(0)")
    weave(mfmas(0), reads(1, 1), 2)
    e("s_waitcnt lgkmcnt(0)")
    e("s_barrier")
    e("s_add_u32 s28, s28, 1")
    e(f"s_cmp_lt_u32 s28, {NSTG}")
    weave(mfmas(1), [f"v_add_u32 v{a}, s30, v{a}" for a in [AHr] + AW] + reads(0, 0), 3 if SPLIT == 1 else 2)
    e(f"s_cbranch_scc1 {k.L('cloop')}")
    k.stamp(3)
    T = F0
    if SPLIT == 2:
        e("s_lshl_b32 s26, s2, 2")
        e("s_add_u32 s26, s26, s10")
        e("s_xor_b32 s27, s26, 4")
        e("s_lshl_b32 s31, s26, 13")
        e(f"s_add_u32 s31, s31, 0x{PART:x}")
        e("s_lshl_b32 s32, s27, 13")
        e(f"s_add_u32 s32, s32, 0x{PART:x}")
        e("s_add_u32 s33, s31, 4096")
        e("s_add_u32 s34, s32, 4096")
        e("s_lshl_b32 s35, s26, 7")
        e(f"s_add_u32 s35, s35, 0x{FLG:x}")
        e("s_lshl_b32 s36, s27, 7")
        e(f"s_add_u32 s36, s36, 0x{FLG:x}")
        e("v_lshlrev_b32 v14, 4, v0")
        e("s_cmp_eq_u32 s15, 0")
        e(f"s_cbranch_scc1 {k.L('send_hi')}")
        for own in (1, 0):
            if own == 0: k.label("send_hi")
            for i in range(4):
                for jj in range(2):
                    j = 2*(1-own) + jj
                    n = 2*i + jj
                    e(f"buffer_store_dwordx4 {vr(ACC+4*(NS*i+j),4)}, v14, s[20:23], s{31 if n < 4 else 33} offen offset:{1024*(n%4)} sc1")
            if own == 1:
                e("s_nop 1")
                for i in range(4):
                    for q in range(8):
                        e(f"v_mov_b32 v{ACC+4*NS*i+q}, v{ACC+4*NS*i+8+q}")
                e(f"s_branch {k.L('sent')}")
        k.label("sent")
    rsh, rsg = (8, 5) if SPLIT == 1 else (7, 6)
    e(f"v_lshlrev_b32 v13, {rsh}, v7")
    e("v_lshl_add_u32 v13, v4, 3, v13")
    if SPLIT == 1:
        e(f"v_add_u32 v13, {RES}, v13")
    else:
        e("s_lshl_b32 s26, s25, 13")
        e(f"s_add_u32 s26, s26, {RES}")
        e("v_add_u32 v13, s26, v13")
    e("s_lshl_b32 s26, s24, 1")
    for j in range(2):
        e(f"s_add_u32 s27, s26, {j}")
        e(f"v_xor_b32 v15, s27, v{rsg}")
        e(f"v_lshl_add_u32 v{8+j}, v15, 5, v13")
    e("s_waitcnt lgkmcnt(0)")
    HR = T
    for i in range(4):
        for j in range(2):
            e(f"ds_read_b64_tr_b16 {vr(HR+2*(2*i+j),2)}, v{8+j} offset:{(16 << rsh)*i}")
    e("v_and_b32 v10, 15, v0")
    e("v_lshrrev_b32 v11, 1, v2")
    e("v_and_b32 v12, 7, v10")
    e("v_xor_b32 v11, v11, v12")
    e("v_lshlrev_b32 v11, 4, v11")
    e("v_lshl_add_u32 v11, v10, 7, v11")
    e("v_and_b32 v12, 1, v2")
    e("v_lshl_add_u32 v11, v12, 3, v11")
    e("s_lshl_b32 s26, s10, 12")
    e("v_add_u32 v3, s26, v11")
    e("v_xor_b32 v4, 32, v3")
    e("v_xor_b32 v5, 64, v3")
    e("v_xor_b32 v6, 96, v3")
    e("v_lshrrev_b32 v10, 3, v0")
    e("v_and_b32 v11, 7, v0")
    e("v_xor_b32 v12, v11, v10")
    e("v_lshlrev_b32 v12, 4, v12")
    e("v_lshl_add_u32 v12, v10, 7, v12")
    e("v_add_u32 v7, s26, v12")
    e("v_lshlrev_b32 v10, 11, v10")
    e("v_lshl_add_u32 v10, v11, 4, v10")
    e("s_lshl_b32 s26, s13, 7")
    e("s_lshl_b32 s27, s24, 5")
    e("s_add_u32 s26, s26, s27")
    e("s_lshl_b32 s27, s15, 6")
    e("s_add_u32 s26, s26, s27")
    e("s_lshl_b32 s26, s26, 11")
    e(f"s_mul_i32 s27, s14, {TN*2}")
    e("s_add_u32 s26, s26, s27")
    e("s_lshl_b32 s27, s25, 7")
    e("s_add_u32 s44, s26, s27")
    for q in range(1, 4):
        e(f"s_add_u32 s{44+q}, s44, {q*8*2048}")
    PR = T + 16
    if SPLIT == 2:
        e("v_mov_b32 v15, 0")
        e("v_mov_b32 v13, 1")
        e("s_waitcnt vmcnt(0)")
        k.stamp(4)
        e("s_mov_b64 s[38:39], exec")
        e("s_mov_b64 exec, 1")
        e("buffer_store_dword v13, v15, s[20:23], s35 offen sc1")
        e("s_mov_b32 s48, 0")
        k.label("poll")
        e("buffer_load_dword v13, v15, s[20:23], s36 offen sc1")
        e("s_add_u32 s48, s48, 1")
        e("s_cmp_gt_u32 s48, 0x200000")
        e(f"s_cbranch_scc1 {k.L('polled')}")
        e("s_waitcnt vmcnt(0)")
        e("v_readfirstlane_b32 s37, v13")
        e("s_cmp_eq_u32 s37, 1")
        e(f"s_cbranch_scc0 {k.L('poll')}")
        k.label("polled")
        k.stamp(5)
        e("s_mov_b64 exec, s[38:39]")
        for n in range(8):
            e(f"buffer_load_dwordx4 {vr(PR+4*n,4)}, v14, s[20:23], s{32 if n < 4 else 34} offen offset:{1024*(n%4)} sc1")
    e("s_mov_b32 s37, 0xffff0000")
    e("s_waitcnt lgkmcnt(0)")
    U = PR + 32
    for i in range(4):
        for j in range(2):
            n = 2*i + j; a = ACC + 4*(NS*i + j); u = U + 4*(n % 2)
            e(f"v_lshlrev_b32 v{u}, 16, v{HR+2*n}")
            e(f"v_and_b32 v{u+1}, s37, v{HR+2*n}")
            e(f"v_lshlrev_b32 v{u+2}, 16, v{HR+2*n+1}")
            e(f"v_and_b32 v{u+3}, s37, v{HR+2*n+1}")
            for h in range(2):
                e(f"v_pk_add_f32 {vr(a+2*h,2)}, {vr(a+2*h,2)}, {vr(u+2*h,2)}")
    for i in range(4):
        for j in range(2):
            n = 2*i + j; a = ACC + 4*(NS*i + j)
            if SPLIT == 2:
                e(f"s_waitcnt vmcnt({7-n})")
                for h in range(2):
                    e(f"v_pk_add_f32 {vr(a+2*h,2)}, {vr(a+2*h,2)}, {vr(PR+4*n+2*h,2)}")
            e(f"v_cvt_pk_bf16_f32 v{HR+2*n}, v{a}, v{a+1}")
            e(f"v_cvt_pk_bf16_f32 v{HR+2*n+1}, v{a+2}, v{a+3}")
            e(f"ds_write_b64 v{3+i}, {vr(HR+2*n,2)} offset:{2048*j}")
    e("s_waitcnt lgkmcnt(0)")
    for q in range(4):
        e(f"ds_read_b128 {vr(PR+4*q,4)}, v7 offset:{1024*q}")
    for q in range(4):
        e(f"s_waitcnt lgkmcnt({3-q})")
        e(f"buffer_store_dwordx4 {vr(PR+4*q,4)}, v10, s[40:43], s{44+q} offen")
    if STAMP:
        k.stamp(6)
        e("s_waitcnt vmcnt(0)")
        k.dump_stamps(3, 20, 10)
    e("s_endpgm")

    k.label("loader")
    e("s_sub_u32 s24, s10, 4")
    VA = 16; VW = 18; VR = 22
    e(f"v_lshlrev_b32 v{VA}, 4, v0")
    e(f"v_add_u32 v{VA+1}, {112*1024-2048}, v{VA}")
    def pat256(dst, stride_sh, n):
        e("v_bfe_u32 v9, v0, 1, 3")
        e("v_and_b32 v10, 1, v0")
        e("v_lshlrev_b32 v10, 4, v10")
        e(f"v_lshl_add_u32 v10, v2, {stride_sh}, v10")
        e("v_xor_b32 v9, v9, v2")
        e("v_xor_b32 v11, 4, v9")
        for pp in range(n):
            e(f"v_lshl_add_u32 v{dst+pp}, v{9 if pp % 2 == 0 else 11}, 5, v10")
            if pp: e(f"v_add_u32 v{dst+pp}, {pp*((4 << stride_sh)-1024)}, v{dst+pp}")
    def pat128(dst, stride_sh, n):
        e("v_bfe_u32 v9, v0, 1, 2")
        e("v_xor_b32 v9, v9, v2")
        e("v_and_b32 v10, 1, v0")
        e("v_lshlrev_b32 v10, 4, v10")
        e("v_lshl_add_u32 v10, v9, 5, v10")
        e("v_lshrrev_b32 v9, 3, v0")
        e(f"v_lshl_add_u32 v{dst}, v9, {stride_sh}, v10")
        for pp in range(1, n):
            e(f"v_add_u32 v{dst+pp}, {pp*((8 << stride_sh)-1024)}, v{dst}")
    if SPLIT == 1:
        pat128(VW, 11, 2); pat256(VR, 12, 4)
    else:
        pat256(VW, 11, 4); pat128(VR, 12, 4)
    e("s_lshl_b32 s25, s13, 3")
    e("s_lshl_b32 s26, s24, 1")
    e("s_add_u32 s25, s25, s26")
    e("s_mul_i32 s25, s25, 112")
    e("s_mul_i32 s26, s15, 56")
    e("s_add_u32 s25, s25, s26")
    e("s_lshl_b32 s25, s25, 10")
    e(f"s_add_u32 s25, s25, 0x{HM:x}")
    e("s_mul_i32 s26, s15, 1792")
    e("s_lshl_b32 s27, s24, 4")
    e("s_add_u32 s26, s26, s27")
    e("s_lshl_b32 s26, s26, 11")
    e(f"s_mul_i32 s27, s14, {TN*2}")
    e("s_add_u32 s26, s26, s27")
    e("s_lshl_b32 s27, s24, 12")
    e(f"s_mul_i32 s28, s24, {PW*1024}")
    e(f"s_add_u32 s28, s28, {WOFF}")
    e("s_mov_b32 s29, 0")
    def issue():
        e("s_add_u32 m0, s27, s29")
        e("s_add_u32 s30, s28, s29")
        for pp in range(4):
            e(f"buffer_load_dwordx4 v{VA+pp//2}, s[20:23], s25 offen offset:{1024*pp} lds")
        e("s_mov_b32 m0, s30")
        e("s_add_u32 s25, s25, 2048")
        for pp in range(PW):
            e(f"buffer_load_dwordx4 v{VW+pp}, s[16:19], s26 offen offset:{1024*pp} lds")
        e(f"s_add_u32 s26, s26, {64*2048}")
        e(f"s_add_u32 s29, s29, {STG}")
        e(f"s_cmp_eq_u32 s29, {NBUF*STG}")
        e("s_cselect_b32 s29, 0, s29")
    for _ in range(NBUF): issue()
    e(f"s_mul_i32 s31, s14, {TN}")
    e(f"s_mul_i32 s32, s24, {TN//4}")
    e("s_add_u32 s31, s31, s32")
    e("s_lshl_b32 s31, s31, 12")
    e("s_lshl_b32 s32, s13, 8")
    e("s_add_u32 s31, s31, s32")
    e("s_lshl_b32 s32, s15, 7")
    e("s_add_u32 s31, s31, s32")
    e(f"s_add_u32 s31, s31, 0x{HT:x}")
    e(f"s_add_u32 m0, s27, {RES}")
    e("s_nop 0")
    for pp in range(4):
        e(f"buffer_load_dwordx4 v{VR+pp}, s[20:23], s31 offen offset:{1024*pp} lds")
    k.stamp(1)
    e(f"s_waitcnt vmcnt({(NBUF-1)*PP+4})")
    k.stamp(2)
    e("s_barrier")
    e(f"s_waitcnt vmcnt({(NBUF-2)*PP+4})")
    e("s_barrier")
    issue()
    e("s_mov_b32 s35, 1")
    k.label("lloop")
    e(f"s_waitcnt vmcnt({(NBUF-2)*PP})")
    e("s_barrier")
    issue()
    e("s_add_u32 s35, s35, 1")
    e(f"s_cmp_lt_u32 s35, {NSTG-NBUF}")
    e(f"s_cbranch_scc1 {k.L('lloop')}")
    for i in range(NSTG-NBUF, NSTG):
        left = max(NSTG - 1 - (i + 1), 0)
        e(f"s_waitcnt vmcnt({left*PP})")
        e("s_barrier")
    k.dump_stamps(3, 20, 10)
    k.label("end")
    e("s_endpgm")
    return k
```

```python
import sys, os
from asmlib import *
import k0, k1, k3, k4
def nop_kernel():
    k = Kern("nop_kernel", 256, 256, 0, nvgpr=8, nsgpr=16)
    k.e("s_endpgm")
    return k
def main(out):
    ks = [k0.make_k0(), k1.make_k1(), k3.make_k3(), k4.make_k4()]
    order = list(ks)
    v = os.environ.get("VAR", "")
    if v.startswith("nop"):
        n = nop_kernel(); ks.append(n); order += [n] * int(v[3:])
    if v.startswith("pre"):
        n = nop_kernel(); ks.append(n); order = [n] * int(v[3:]) + order
    if v == "twice":
        order = order + order
    open(out, "w").write(build(ks, order))
if __name__ == "__main__":
    main(sys.argv[1] if len(sys.argv) > 1 else "sequential_preLN__ssm_conv_h3__dense_activation_silu__prompt.s")
```

```python
from asmlib import *
from layout import *
import os
NT0 = os.environ.get('NT0', ' nt')
NTS = os.environ.get('NTS', ' nt')

def bf16_round(k, dst, src):
    k.e(f"v_cvt_pk_bf16_f32 v{dst}, v{src}, v{src}")
    k.e(f"v_and_b32 v{dst}, 0xffff0000, v{dst}")

def ln_stats(k, s_, q_, m_, r_, t_, recip=True):
    n = len(s_)
    for i in range(n): k.e(f"v_mul_f32 v{m_[i]}, 0x3a800000, v{s_[i]}")
    for i in range(n): k.e(f"v_mul_f32 v{t_[i]}, 0x3a800000, v{q_[i]}")
    for i in range(n): k.e(f"v_fma_f32 v{t_[i]}, -v{m_[i]}, v{m_[i]}, v{t_[i]}")
    for i in range(n): k.e(f"v_max_f32 v{t_[i]}, 0, v{t_[i]}")
    for i in range(n): bf16_round(k, m_[i], m_[i])
    for i in range(n): bf16_round(k, t_[i], t_[i])
    for i in range(n): k.e(f"v_add_f32 v{t_[i]}, 0x3727c5ac, v{t_[i]}")
    for i in range(n): bf16_round(k, t_[i], t_[i])
    for i in range(n): k.e(f"v_sqrt_f32 v{t_[i]}, v{t_[i]}")
    k.e("s_nop 0")
    for i in range(n): bf16_round(k, t_[i], t_[i])
    if not recip: return
    for i in range(n): k.e(f"v_rcp_f32 v{r_[i]}, v{t_[i]}")
    k.e("s_nop 0")

def make_k0():
    k = Kern("prep_kernel", 256, 256, 32768, nvgpr=128)
    e = k.e
    e("s_cmp_ge_u32 s2, 256")
    e(f"s_cbranch_scc1 {k.L('end')}")
    k.clear_stamps()
    e("s_load_dwordx8 s[4:11], s[0:1], 0")
    e("s_load_dwordx2 s[12:13], s[0:1], 32")
    e("s_load_dwordx2 s[14:15], s[0:1], 88")
    e("v_and_b32 v6, 15, v0")
    e("v_lshrrev_b32 v7, 4, v0")
    e("s_lshr_b32 s40, s2, 3")
    e("s_and_b32 s41, s2, 7")
    e("s_lshl_b32 s42, s40, 17")
    e("s_lshl_b32 s43, s41, 8")
    e("s_add_u32 s42, s42, s43")
    e("v_lshlrev_b32 v1, 13, v7")
    e("v_lshl_add_u32 v1, v6, 4, v1")
    e("v_add_u32 v1, s42, v1")
    e("v_add_u32 v2, 0x1000, v1")
    e("v_add_u32 v3, 0xffffe800, v1")
    e("v_add_u32 v4, 0xfffff000, v1")
    e("v_add_u32 v5, 0xfffff800, v1")
    e("s_lshl_b32 s44, s41, 10")
    e("v_lshlrev_b32 v8, 6, v6")
    e("v_add_u32 v8, s44, v8")
    e("v_and_b32 v9, 63, v0")
    e("v_lshrrev_b32 v10, 6, v0")
    e("v_lshlrev_b32 v10, 12, v10")
    e("v_lshl_add_u32 v9, v9, 4, v10")
    e("s_lshl_b32 s45, s2, 14")
    e("s_lshl_b32 s46, s41, 19")
    e("s_lshl_b32 s47, s40, 14")
    e("s_add_u32 s46, s46, s47")
    e("v_lshlrev_b32 v11, 6, v0")
    e("s_waitcnt lgkmcnt(0)")
    k.srd(16, 4, 5, 4*MB)
    k.srd(20, 6, 7, 4*MB)
    k.srd(24, 8, 9, 4*MB)
    k.srd(28, 10, 11, 8192)
    k.srd(32, 14, 15, WS_BYTES)
    k.srd(36, 12, 13, 4*MB)
    KR = 12
    VR = 40
    XR = 56
    SK = 72
    ST = 88
    e(f"buffer_load_dwordx4 {vr(SK,4)}, v8, s[28:31], 0 offen")
    e(f"buffer_load_dwordx4 {vr(SK+4,4)}, v8, s[28:31], 0 offen offset:16")
    e(f"buffer_load_dwordx4 {vr(SK+8,4)}, v8, s[28:31], 0 offen offset:32")
    e(f"buffer_load_dwordx4 {vr(SK+12,4)}, v8, s[28:31], 0 offen offset:48")
    e(f"buffer_load_dwordx4 {vr(KR,4)}, v3, s[20:23], 0 offen{NT0}")
    e(f"buffer_load_dwordx4 {vr(KR+4,4)}, v4, s[20:23], 0 offen{NT0}")
    e(f"buffer_load_dwordx4 {vr(KR+8,4)}, v5, s[20:23], 0 offen{NT0}")
    for i in range(4):
        e(f"buffer_load_dwordx4 {vr(KR+12+4*i,4)}, v{1+i//2}, s[20:23], 0 offen offset:{2048*(i%2)}{NT0}")
    for i in range(4):
        e(f"buffer_load_dwordx4 {vr(VR+4*i,4)}, v{1+i//2}, s[24:27], 0 offen offset:{2048*(i%2)}{NT0}")
    for i in range(4):
        e(f"buffer_load_dwordx4 {vr(XR+4*i,4)}, v{1+i//2}, s[16:19], 0 offen offset:{2048*(i%2)}{NT0}")
    for i in range(4):
        e(f"buffer_load_dwordx4 {vr(ST+4*i,4)}, v9, s[16:19], s45 offen offset:{1024*i}{NT0}")
    e("v_mov_b32 v126, v11")
    e("v_and_b32 v10, 14, v6")
    e("v_xor_b32 v11, v10, v7")
    e("v_xor_b32 v10, 1, v11")
    e("v_lshlrev_b32 v8, 10, v6")
    e("v_lshl_add_u32 v10, v10, 3, v8")
    e("v_lshl_add_u32 v11, v11, 3, v8")
    e("s_mov_b32 s48, 0x05040100")
    e("s_mov_b32 s49, 0x07060302")
    e("s_mov_b32 s50, 0xffff0000")
    T = 104
    KU = 112
    A = 2
    ACC = [2, 4, 8, 126]
    ACC = [2, 4, 8, 6]
    PK = 104
    k.stamp(1)
    e("s_waitcnt vmcnt(8)")
    e(f"buffer_load_dword v127, v126, s[36:39], s46 offen{NTS}")
    k.stamp(2)
    for jj in range(4):
        for c in range(2):
            d0 = SK + 4*jj + 2*c
            e(f"v_lshlrev_b32 v{T+0+c}, 16, v{d0}")
            e(f"v_and_b32 v{T+2+c}, s50, v{d0}")
            e(f"v_lshlrev_b32 v{T+4+c}, 16, v{d0+1}")
            e(f"v_and_b32 v{T+6+c}, s50, v{d0+1}")
        for r in range(7):
            e(f"v_lshlrev_b32 v{KU+2*r}, 16, v{KR+4*r+jj}")
            e(f"v_and_b32 v{KU+2*r+1}, s50, v{KR+4*r+jj}")
        for tap in (3, 2, 1, 0):
            for i in range(4):
                kk = KU + 2*(i+3-tap)
                if tap == 3:
                    e(f"v_pk_mul_f32 {vr(ACC[i],2)}, {vr(kk,2)}, {vr(T+2*tap,2)}")
                else:
                    e(f"v_pk_fma_f32 {vr(ACC[i],2)}, {vr(kk,2)}, {vr(T+2*tap,2)}, {vr(ACC[i],2)}")
        for i in range(4):
            e(f"v_lshlrev_b32 v{KU+2*i}, 16, v{VR+4*i+jj}")
            e(f"v_and_b32 v{KU+2*i+1}, s50, v{VR+4*i+jj}")
        for i in range(4):
            e(f"v_pk_mul_f32 {vr(ACC[i],2)}, {vr(ACC[i],2)}, {vr(KU+2*i,2)}")
        P = KU + 8 + 0
        for c in range(2):
            e(f"v_cvt_pk_bf16_f32 v{P+2*c}, v{ACC[3]+c}, v{ACC[2]+c}")
            e(f"v_cvt_pk_bf16_f32 v{P+2*c+1}, v{ACC[1]+c}, v{ACC[0]+c}")
        for c in range(2):
            e(f"ds_write_b64 v10, {vr(P+2*c,2)} offset:{128*(2*jj+c)}")
    e("s_waitcnt vmcnt(5)")
    for jj in range(4):
        for c in range(2):
            P = KR + 4*jj + 2*c
            sel = "s48" if c == 0 else "s49"
            e(f"v_perm_b32 v{P}, v{XR+4+jj}, v{XR+jj}, {sel}")
            e(f"v_perm_b32 v{P+1}, v{XR+12+jj}, v{XR+8+jj}, {sel}")
            e(f"ds_write_b64 v11, {vr(P,2)} offset:{16384+128*(2*jj+c)}")
    e("v_and_b32 v1, 7, v0")
    e("v_lshrrev_b32 v2, 7, v0")
    e("v_xor_b32 v2, v2, v1")
    e("v_lshrrev_b32 v3, 3, v0")
    e("v_lshlrev_b32 v4, 7, v3")
    e("v_lshl_add_u32 v4, v2, 4, v4")
    e("v_xor_b32 v5, 32, v4")
    e("v_xor_b32 v6, 64, v4")
    e("v_xor_b32 v7, 96, v4")
    e("v_lshlrev_b32 v3, 12, v3")
    e("v_lshl_add_u32 v3, v1, 4, v3")
    e("s_lshl_b32 s51, s41, 19")
    e("s_lshl_b32 s52, s40, 7")
    e("s_add_u32 s51, s51, s52")
    for i in range(8):
        e(f"s_add_u32 s{56+i}, s51, 0x{(i%4)*131072 + (XT if i >= 4 else UT):x}")
    e("s_waitcnt lgkmcnt(0)")
    k.stamp(3)
    e("s_barrier")
    R = 40
    for i in range(8):
        e(f"ds_read_b128 {vr(R+4*i,4)}, v{4+i%4} offset:{4096*(i%4) + (16384 if i >= 4 else 0)}")
    e("s_waitcnt vmcnt(1)")
    S = [104, 105]; Q = [106, 107]
    for r in range(2):
        e(f"v_mov_b32 v{S[r]}, 0"); e(f"v_mov_b32 v{Q[r]}, 0")
    e("s_mov_b32 s53, 0x3f803f80")
    for j in range(8):
        for r in range(2):
            e(f"v_dot2c_f32_bf16 v{S[r]}, s53, v{ST+8*r+j}")
            e(f"v_dot2c_f32_bf16 v{Q[r]}, v{ST+8*r+j}, v{ST+8*r+j}")
    for i in range(8):
        e(f"s_waitcnt lgkmcnt({7-i})")
        e(f"buffer_store_dwordx4 {vr(R+4*i,4)}, v3, s[32:35], s{56+i} offen sc1")
    for mode in ("quad_perm:[1,0,3,2] row_mask:0xf", "quad_perm:[2,3,0,1] row_mask:0xf", "row_half_mirror row_mask:0xf",
                 "row_mirror row_mask:0xf", "row_bcast:15 row_mask:0xa", "row_bcast:31 row_mask:0xc"):
        for r in S + Q:
            e(f"v_add_f32_dpp v{r}, v{r}, v{r} {mode} bank_mask:0xf")
    ln_stats(k, S, Q, [108, 109], [110, 111], [112, 113])
    e("v_lshrrev_b32 v1, 6, v0")
    e("v_lshlrev_b32 v1, 3, v1")
    e("s_lshl_b32 s54, s2, 5")
    e(f"s_add_u32 s54, s54, 0x{MX:x}")
    e(f"s_add_u32 s55, s54, 0x{RX-MX:x}")
    e("v_mov_b32 v2, 0")
    e("v_and_b32 v3, 63, v0")
    e("v_lshlrev_b32 v3, 3, v3")
    e("v_mov_b32 v4, 0")
    e("v_mov_b32 v5, 0")
    e("s_lshl_b32 s56, s2, 9")
    e(f"s_add_u32 s56, s56, 0x{FLG:x}")
    e("buffer_store_dwordx2 v[4:5], v3, s[32:35], s56 offen")
    e("v_mov_b32 v4, -1")
    e("v_lshlrev_b32 v3, 2, v0")
    e("s_lshl_b32 s56, s2, 10")
    e(f"s_add_u32 s56, s56, 0x{SP:x}")
    e("buffer_store_dword v4, v3, s[32:35], s56 offen")
    e("s_mov_b32 exec_lo, 0")
    e("s_mov_b32 exec_hi, 0x80000000")
    e("buffer_store_dwordx2 v[108:109], v1, s[32:35], s54 offen")
    e("buffer_store_dwordx2 v[110:111], v1, s[32:35], s55 offen")
    if STAMP:
        k.stamp(4)
        e("s_waitcnt vmcnt(0)")
        e("s_mov_b64 exec, -1")
        e("v_lshrrev_b32 v1, 6, v0")
        e("s_nop 0")
        e("v_readfirstlane_b32 s101, v1")
        k.dump_stamps(0, 32, 101)
    k.label("end")
    e("s_endpgm")
    return k
```

```python
from asmlib import *
from layout import *
from k0 import ln_stats
import os
F = os.environ.get('K0X', '')

KCP = 4160
REG = 4*KCP + 512 + 4096
TILE = 0
SKL = 32768
FLAG = SKL + 1024
REG0 = FLAG + 128
STAT = REG0 + 4*REG
NCS1 = 4

def make_k01():
    k = Kern("front_kernel", 256, 512, STAT + 16384, nvgpr=208)
    e = k.e
    e("s_cmp_ge_u32 s2, 256")
    e(f"s_cbranch_scc1 {k.L('end')}")
    k.clear_stamps()
    e("s_load_dwordx8 s[4:11], s[0:1], 0")
    e("s_load_dwordx4 s[12:15], s[0:1], 32")
    e("s_load_dwordx4 s[52:55], s[0:1], 80")
    e("s_load_dwordx4 s[56:59], s[0:1], 56")
    e("v_lshrrev_b32 v1, 6, v0")
    e("s_lshr_b32 s40, s2, 3")
    e("v_readfirstlane_b32 s60, v1")
    e("s_and_b32 s41, s2, 7")
    e("s_lshl_b32 s61, s41, 7")
    e("s_lshl_b32 s62, s40, 2")
    e("s_add_u32 s61, s61, s62")
    e("s_and_b32 s62, s60, 3")
    e("s_add_u32 s61, s61, s62")
    e(f"s_mul_i32 s63, s62, {REG}")
    e(f"s_add_u32 s63, s63, {REG0}")
    e("s_cmp_ge_u32 s60, 4")
    e(f"s_cbranch_scc1 {k.L('bwave')}")
    e("s_barrier")
    def spin(off_expr, cond, lab, sleep=0, wide=False):
        k.label(lab)
        if sleep: e(f"s_sleep {sleep}")
        e("ds_read_b32 v34, v33")
        e("s_waitcnt lgkmcnt(0)")
        e(cond)
        e(f"s_cbranch_vccnz {k.L(lab)}")

    def publish(cnt_off, base, lab, r=200):
        e(f"v_mov_b32 v{r}, {FLAG + cnt_off}")
        e(f"v_mov_b32 v{r+1}, 1")
        e("s_mov_b64 exec, 1")
        e(f"ds_add_rtn_u32 v{r+2}, v{r}, v{r+1}")
        e("s_waitcnt lgkmcnt(0)")
        e(f"v_readfirstlane_b32 s3, v{r+2}")
        e("s_cmp_eq_u32 s3, 3")
        e(f"s_cbranch_scc0 {k.L(lab)}")
        e("s_lshl_b32 s3, s40, 7")
        e(f"v_mov_b32 v{r}, s3")
        e(f"s_add_u32 s3, s27, 0x{base:x}")
        e(f"buffer_store_dwordx2 v[204:205], v{r}, s[32:35], s3 offen sc1")
        k.label(lab)
        e("s_mov_b64 exec, -1")
    def poll(base, lab):
        e("v_and_b32 v121, 31, v0")
        e("v_lshlrev_b32 v121, 7, v121")
        e(f"s_add_u32 s28, s27, 0x{base:x}")
        e("s_mov_b32 s3, 0")
        k.label(lab)
        e("buffer_load_dwordx2 v[122:123], v121, s[32:35], s28 offen sc1")
        e("s_add_u32 s3, s3, 1")
        e("s_cmp_gt_u32 s3, 0x100000")
        e(f"s_cbranch_scc1 {k.L(lab + '_x')}")
        e("s_waitcnt vmcnt(0)")
        e("v_cmp_ne_u64 vcc, v[122:123], v[204:205]")
        e(f"s_cbranch_vccnz {k.L(lab)}")
        k.label(lab + "_x")
        e("s_waitcnt vmcnt(0)")
    def gettag(lab):
        e(f"v_mov_b32 v120, {FLAG+48}")
        e("s_lshl_b32 s27, s41, 12")
        k.label(lab)
        e("ds_read_b64 v[204:205], v120")
        e("s_waitcnt lgkmcnt(0)")
        e("v_cmp_eq_u32 vcc, 0, v204")
        e(f"s_cbranch_vccnz {k.L(lab)}")

    e("v_and_b32 v6, 15, v0")
    e("v_lshrrev_b32 v7, 4, v0")
    e("s_lshl_b32 s42, s40, 17")
    e("s_lshl_b32 s43, s41, 8")
    e("s_add_u32 s42, s42, s43")
    e("v_lshlrev_b32 v1, 13, v7")
    e("v_lshl_add_u32 v1, v6, 4, v1")
    e("v_add_u32 v1, s42, v1")
    e("v_add_u32 v2, 0x1000, v1")
    e("v_add_u32 v3, 0xffffe800, v1")
    e("v_add_u32 v4, 0xfffff000, v1")
    e("v_add_u32 v5, 0xfffff800, v1")
    e("s_lshl_b32 s48, s41, 10")
    e("v_and_b32 v9, 63, v0")
    e("v_lshlrev_b32 v9, 4, v9")
    e(f"s_mov_b32 m0, {SKL}")
    e("s_waitcnt lgkmcnt(0)")
    k.srd(20, 6, 7, 4*MB)
    k.srd(24, 8, 9, 4*MB)
    k.srd(28, 10, 11, 8192)
    KR = 12; VR = 40; XR = 56; SK = 72
    e("buffer_load_dwordx4 v9, s[28:31], s48 offen lds")
    e(f"buffer_load_dwordx4 {vr(KR,4)}, v3, s[20:23], 0 offen nt")
    e(f"buffer_load_dwordx4 {vr(KR+4,4)}, v4, s[20:23], 0 offen nt")
    e(f"buffer_load_dwordx4 {vr(KR+8,4)}, v5, s[20:23], 0 offen nt")
    for i in range(4):
        e(f"buffer_load_dwordx4 {vr(KR+12+4*i,4)}, v{1+i//2}, s[20:23], 0 offen offset:{2048*(i%2)} nt")
    for i in range(4):
        e(f"buffer_load_dwordx4 {vr(VR+4*i,4)}, v{1+i//2}, s[24:27], 0 offen offset:{2048*(i%2)} nt")
    k.srd(16, 4, 5, 4*MB)
    for i in range(4):
        e(f"buffer_load_dwordx4 {vr(XR+4*i,4)}, v{1+i//2}, s[16:19], 0 offen offset:{2048*(i%2)} nt")
    k.srd(32, 54, 55, WS_BYTES)
    e("s_and_b32 s3, s61, -2")
    e("s_lshl_b32 s3, s3, 1")
    e("s_load_dword s15, s[14:15], s3") if False else e("s_load_dword s51, s[14:15], s3")
    e("v_and_b32 v10, 14, v6")
    e("v_xor_b32 v11, v10, v7")
    e("v_xor_b32 v10, 1, v11")
    e("v_lshlrev_b32 v8, 10, v6")
    e("v_lshl_add_u32 v10, v10, 3, v8")
    e("v_lshl_add_u32 v11, v11, 3, v8")
    e(f"v_lshlrev_b32 v8, 6, v6")
    e("s_mov_b32 s48, 0x05040100")
    e("s_mov_b32 s49, 0x07060302")
    e("s_mov_b32 s50, 0xffff0000")
    T = 104; KU = 112
    ACC = [2, 4, 8, 6]
    k.stamp(1)
    e("s_waitcnt vmcnt(15)")
    for q in range(4):
        e(f"ds_read_b128 {vr(SK+4*q,4)}, v8 offset:{SKL+16*q}")
    e("s_waitcnt vmcnt(4) lgkmcnt(0)")
    k.stamp(2)
    for jj in range(4):
        for c in range(2):
            d0 = SK + 4*jj + 2*c
            e(f"v_lshlrev_b32 v{T+0+c}, 16, v{d0}")
            e(f"v_and_b32 v{T+2+c}, s50, v{d0}")
            e(f"v_lshlrev_b32 v{T+4+c}, 16, v{d0+1}")
            e(f"v_and_b32 v{T+6+c}, s50, v{d0+1}")
        for r in range(7):
            e(f"v_lshlrev_b32 v{KU+2*r}, 16, v{KR+4*r+jj}")
            e(f"v_and_b32 v{KU+2*r+1}, s50, v{KR+4*r+jj}")
        for tap in (3, 2, 1, 0):
            for i in range(4):
                kk = KU + 2*(i+3-tap)
                if tap == 3:
                    e(f"v_pk_mul_f32 {vr(ACC[i],2)}, {vr(kk,2)}, {vr(T+2*tap,2)}")
                else:
                    e(f"v_pk_fma_f32 {vr(ACC[i],2)}, {vr(kk,2)}, {vr(T+2*tap,2)}, {vr(ACC[i],2)}")
        for i in range(4):
            e(f"v_lshlrev_b32 v{KU+2*i}, 16, v{VR+4*i+jj}")
            e(f"v_and_b32 v{KU+2*i+1}, s50, v{VR+4*i+jj}")
        for i in range(4):
            e(f"v_pk_mul_f32 {vr(ACC[i],2)}, {vr(ACC[i],2)}, {vr(KU+2*i,2)}")
        P = KU + 8
        for c in range(2):
            e(f"v_cvt_pk_bf16_f32 v{P+2*c}, v{ACC[3]+c}, v{ACC[2]+c}")
            e(f"v_cvt_pk_bf16_f32 v{P+2*c+1}, v{ACC[1]+c}, v{ACC[0]+c}")
        for c in range(2):
            e(f"ds_write_b64 v10, {vr(P+2*c,2)} offset:{128*(2*jj+c)}")
    e("s_waitcnt vmcnt(0)")
    for jj in range(4):
        for c in range(2):
            P = KR + 4*jj + 2*c
            sel = "s48" if c == 0 else "s49"
            e(f"v_perm_b32 v{P}, v{XR+4+jj}, v{XR+jj}, {sel}")
            e(f"v_perm_b32 v{P+1}, v{XR+12+jj}, v{XR+8+jj}, {sel}")
            e(f"ds_write_b64 v11, {vr(P,2)} offset:{16384+128*(2*jj+c)}")
    e("v_and_b32 v1, 7, v0")
    e("v_lshrrev_b32 v2, 7, v0")
    e("v_xor_b32 v2, v2, v1")
    e("v_lshrrev_b32 v3, 3, v0")
    e("v_lshlrev_b32 v4, 7, v3")
    e("v_lshl_add_u32 v4, v2, 4, v4")
    e("v_xor_b32 v5, 32, v4")
    e("v_xor_b32 v6, 64, v4")
    e("v_xor_b32 v7, 96, v4")
    e("v_lshlrev_b32 v3, 12, v3")
    e("v_lshl_add_u32 v3, v1, 4, v3")
    e("s_lshl_b32 s4, s41, 19")
    e("s_lshl_b32 s5, s40, 7")
    e("s_add_u32 s4, s4, s5")
    for i in range(8):
        e(f"s_add_u32 s{16+i}, s4, 0x{(i%4)*131072 + (XT if i >= 4 else UT):x}")
    e("s_waitcnt lgkmcnt(0)")
    k.stamp(3)
    e(f"v_mov_b32 v33, {FLAG+12}")
    e("v_mov_b32 v34, 1")
    e("s_mov_b64 exec, 1")
    e("ds_add_u32 v33, v34")
    e("s_mov_b64 exec, -1")
    spin(0, "v_cmp_gt_u32 vcc, 4, v34", "waitT")
    R = 40
    for i in range(8):
        e(f"ds_read_b128 {vr(R+4*i,4)}, v{4+i%4} offset:{TILE + 4096*(i%4) + (16384 if i >= 4 else 0)}")
    for i in range(4):
        e(f"s_waitcnt lgkmcnt({7-i})")
        e(f"buffer_store_dwordx4 {vr(R+4*i,4)}, v3, s[32:35], s{16+i} offen sc1")
    e("v_mov_b32 v37, v3")
    e("v_and_b32 v0, 63, v0")
    e("v_lshlrev_b32 v2, 4, v0")
    e("v_and_b32 v5, 15, v0")
    e("v_lshrrev_b32 v6, 4, v0")
    e("s_lshl_b32 s12, s61, 12")
    e("v_lshlrev_b32 v7, 5, v5")
    e("v_lshl_add_u32 v7, v6, 3, v7")
    e(f"s_add_u32 s29, s12, 0x{HT:x}")
    e("v_sub_u32 v33, 7, v5")
    e("v_and_b32 v33, 3, v33")
    e(f"v_mul_u32_u24 v33, {KCP}, v33")
    e("v_lshrrev_b32 v34, 2, v5")
    e("v_lshl_add_u32 v33, v34, 3, v33")
    e("v_lshlrev_b32 v34, 4, v6")
    e("v_sub_u32 v33, v33, v34")
    e("s_add_u32 s30, s63, 24")
    e("v_add_u32 v1, s30, v33")
    e("v_lshlrev_b32 v33, 5, v5")
    e("v_add_u32 v33, v33, v34")
    e(f"s_add_u32 s30, s63, {4*KCP + 512 - 32*15}")
    e("v_add_u32 v3, s30, v33")
    AD = 72
    e("v_lshrrev_b32 v33, 3, v5")
    e("v_add_u32 v33, 2, v33")
    e("v_and_b32 v34, 7, v5")
    e("v_sub_u32 v34, 7, v34")
    e("v_cmp_eq_u32 vcc, v33, v6")
    e("v_lshrrev_b32 v35, 1, v34")
    e("v_and_b32 v34, 1, v34")
    e("v_cndmask_b32 v35, 9, v35, vcc")
    e("v_lshlrev_b32 v34, 4, v34")
    e("s_and_b32 s31, s61, 1")
    e("s_lshl_b32 s31, s31, 4")
    e("s_lshr_b32 s51, s51, s31")
    e("s_and_b32 s51, s51, 0xffff")
    e("v_mov_b32 v33, s51")
    e("v_lshlrev_b32 v34, v34, v33")
    for r in range(4):
        e(f"v_cmp_eq_u32 vcc, {r}, v35")
        e("s_nop 1")
        e(f"v_cndmask_b32 v{192+r}, 0, v34, vcc")
    AD = 192
    e(f"s_add_u32 s24, s63, {4*KCP+512}")
    e(f"s_add_u32 s25, s12, 0x{UT:x}")
    gettag("tagA")
    e("s_waitcnt vmcnt(0)")
    publish(0, FU, "pubU")
    k.stamp(4)
    for i in range(4, 8):
        e(f"buffer_store_dwordx4 {vr(R+4*i,4)}, v37, s[32:35], s{16+i} offen sc1")
    e(f"v_mov_b32 v33, {FLAG+8}")
    e("s_waitcnt vmcnt(0)")
    publish(4, FX, "pubX")
    e("s_cmp_eq_u32 s60, 0")
    e(f"s_cbranch_scc0 {k.L('relay')}")
    poll(FU, "pollU")
    e("v_mov_b32 v34, 1")
    e("ds_write_b32 v33, v34")
    e(f"s_branch {k.L('go')}")
    spin(0, "v_cmp_eq_u32 vcc, 0, v34", "relay", sleep=1)
    k.label("go")
    e("s_mov_b32 m0, s24")
    e("s_nop 0")
    for p in range(4):
        e(f"buffer_load_dwordx4 v2, s[32:35], s25 offen offset:{1024*p} sc1 lds")
    FA = [64, 128]; FB = [96, 160]; AC = 8
    def reads(buf, ep):
        r = []
        for w in range(8):
            r.append(f"ds_read_b128 {vr(FB[buf]+4*w,4)}, v3 offset:{512*w + 32*(15-ep)}")
        for v in range(8):
            r.append(f"ds_read_b64 {vr(FA[buf]+4*v,2)}, v1 offset:{32*ep + 512*v}")
            r.append(f"ds_read_b64 {vr(FA[buf]+4*v+2,2)}, v1 offset:{32*ep + 512*v + 8}")
        return r
    def mfmas(buf):
        m = []
        for v in range(8):
            for w in range(8 - v):
                t = v + w
                m.append(f"v_mfma_f32_16x16x32_bf16 {vr(AC+4*t,4)}, {vr(FA[buf]+4*v,4)}, {vr(FB[buf]+4*w,4)}, {vr(AC+4*t,4)}")
        return m
    e("s_lshl_b32 s3, s60, 2")
    e(f"s_add_u32 s3, s3, {FLAG+32}")
    e("v_mov_b32 v33, s3")
    k.label("waitK")
    e("ds_read_b32 v34, v33")
    e("s_waitcnt lgkmcnt(0)")
    e("v_cmp_eq_u32 vcc, 0, v34")
    e(f"s_cbranch_vccnz {k.L('waitK')}")
    rd = reads(0, 1)
    for r in rd[8:]: e(r)
    e("s_waitcnt vmcnt(0) lgkmcnt(0)")
    k.stamp(5)
    for r in rd[:8]: e(r)
    for t in range(8):
        e(f"s_waitcnt lgkmcnt({7-t})")
        e(f"v_mfma_f32_16x16x32_bf16 {vr(AC+4*t,4)}, {vr(AD,4)}, {vr(FB[0]+4*t,4)}, 0")
    e("s_mov_b32 s33, 0") if False else e("s_mov_b32 s26, 0")
    k.label("loop")
    for buf, nxt in ((0, 3), (1, 5)):
        e("s_waitcnt lgkmcnt(0)")
        rd = reads(1 - buf, nxt)
        for i, m in enumerate(mfmas(buf)):
            e(m)
            if i < len(rd): e(rd[i])
    e("v_add_u32 v1, 128, v1")
    e("v_add_u32 v3, -128, v3")
    e("s_add_u32 s26, s26, 1")
    e("s_cmp_lt_u32 s26, 4")
    e(f"s_cbranch_scc1 {k.L('loop')}")
    e("v_lshlrev_b32 v1, 6, v5")
    e("v_lshl_add_u32 v1, v6, 4, v1")
    e(f"v_add_u32 v1, {STAT}, v1")
    e("s_lshl_b32 s26, s60, 12")
    e(f"s_add_u32 s26, s26, {TILE}")
    e("v_add_u32 v2, s26, v7")
    e(f"v_mov_b32 v3, {FLAG+16}")
    k.stamp(6)
    k.label("spoll")
    e("ds_read_b64 v[64:65], v3")
    e("s_waitcnt lgkmcnt(0)")
    e("v_and_b32 v64, v64, v65")
    e("v_cmp_eq_u32 vcc, 0, v64")
    e(f"s_cbranch_vccnz {k.L('spoll')}")
    MS = 64; RS = 96; XV = 176
    for t in range(8):
        e(f"ds_read_b64 {vr(XV+2*t,2)}, v2 offset:{512*t}")
    for t in range(3):
        e(f"ds_read_b128 {vr(MS+4*t,4)}, v1 offset:{1024*t}")
        e(f"ds_read_b128 {vr(RS+4*t,4)}, v1 offset:{1024*t+8192}")
    e("s_waitcnt lgkmcnt(6)")
    for t in range(8):
        if t + 3 < 8:
            e(f"ds_read_b128 {vr(MS+4*(t+3),4)}, v1 offset:{1024*(t+3)}")
            e(f"ds_read_b128 {vr(RS+4*(t+3),4)}, v1 offset:{1024*(t+3)+8192}")
        xu = 128 + 8*(t % 2); q = xu + 4
        e(f"v_lshlrev_b32 v{xu}, 16, v{XV+2*t}")
        e(f"v_and_b32 v{xu+1}, s50, v{XV+2*t}")
        e(f"v_lshlrev_b32 v{xu+2}, 16, v{XV+2*t+1}")
        e(f"v_and_b32 v{xu+3}, s50, v{XV+2*t+1}")
        e(f"s_waitcnt lgkmcnt({2*min(3, 7-t)})")
        for h in range(2):
            e(f"v_pk_add_f32 {vr(q+2*h,2)}, {vr(xu+2*h,2)}, {vr(MS+4*t+2*h,2)} neg_lo:[0,1] neg_hi:[0,1]")
        for h in range(2):
            e(f"v_pk_mul_f32 {vr(q+2*h,2)}, {vr(q+2*h,2)}, {vr(RS+4*t+2*h,2)}")
        for h in range(2):
            e(f"v_pk_fma_f32 {vr(q+2*h,2)}, {vr(q+2*h,2)}, {vr(AC+4*t+2*h,2)}, {vr(xu+2*h,2)}")
        e(f"v_cvt_pk_bf16_f32 v{XV+2*t}, v{q}, v{q+1}")
        e(f"v_cvt_pk_bf16_f32 v{XV+2*t+1}, v{q+2}, v{q+3}")
        e(f"buffer_store_dwordx2 {vr(XV+2*t,2)}, v7, s[32:35], s29 offen offset:{512*t} sc1")
    if STAMP:
        e("s_waitcnt vmcnt(0)")
        k.dump_stamps(0, 32, 60)
    e("s_endpgm")

    k.label("bwave")
    e("s_setprio 3")
    e("v_and_b32 v0, 63, v0")
    e("v_lshlrev_b32 v2, 4, v0")
    e("v_mov_b32 v36, 0"); e("v_mov_b32 v37, 0"); e("v_mov_b32 v38, 0"); e("v_mov_b32 v39, 0")
    e("v_min_u32 v33, 48, v2")
    e(f"v_add_u32 v33, {FLAG}, v33")
    e("ds_write_b128 v33, v[36:39]")
    e("s_memrealtime s[48:49]")
    e("v_add_u32 v3, -8, v2")
    e("v_add_u32 v4, 1016, v2")
    e("s_lshl_b32 s42, s61, 12")
    e("s_waitcnt lgkmcnt(0)")
    e("s_barrier")
    e("s_add_u32 s20, s12, s42")
    e("s_addc_u32 s21, s13, 0")
    e("s_and_b32 s21, s21, 0xffff")
    e("s_mov_b32 s22, 4096")
    e("s_mov_b32 s23, 0x20000")
    k.srd(44, 52, 53, 256)
    e("v_mov_b32 v1, 0")
    e("s_or_b32 s48, s48, 1")
    e("s_add_u32 s3, s2, s62")
    e("s_cmp_eq_u32 s3, 0")
    e(f"s_cbranch_scc0 {k.L('notag')}")
    e("v_mov_b32 v40, s48"); e("v_mov_b32 v41, s49")
    e("s_mov_b64 exec, 1")
    e("buffer_store_dwordx2 v[40:41], v1, s[44:47], 0 offen sc1")
    e("s_mov_b64 exec, -1")
    k.label("notag")
    e("s_setprio 0")
    Y = 8; W = 24; ST = 88
    for i in range(4):
        e(f"buffer_load_dwordx4 {vr(Y+4*i,4)}, v2, s[20:23], 0 offen offset:{1024*i} nt")
        if i == 0: e(f"buffer_load_dwordx2 {vr(W,2)}, v3, s[20:23], 0 offen nt")
        else:      e(f"buffer_load_dwordx2 {vr(W+2*i,2)}, v4, s[20:23], 0 offen offset:{1024*(i-1)} nt")
    k.srd(16, 4, 5, 4*MB)
    k.srd(32, 54, 55, WS_BYTES)
    e("s_lshl_b32 s43, s2, 14")
    e("s_lshl_b32 s3, s62, 12")
    e("s_add_u32 s43, s43, s3")
    for i in range(4):
        e(f"buffer_load_dwordx4 {vr(ST+4*i,4)}, v2, s[16:19], s43 offen offset:{1024*i} nt")
    e("v_bfe_u32 v32, v0, 1, 2")
    e(f"v_mul_u32_u24 v32, {KCP}, v32")
    e("v_and_b32 v33, 1, v0")
    e("v_lshl_add_u32 v32, v33, 4, v32")
    e(f"v_add_u32 v33, {4*KCP}, v2")
    e("v_cmp_gt_u32 vcc, 32, v0")
    e("s_nop 1")
    e("v_cndmask_b32 v32, v32, v33, vcc")
    e("v_add_u32 v32, s63, v32")
    e("ds_write_b128 v32, v[36:39]")
    k.stamp(1)
    e("s_cmp_eq_u32 s62, 0")
    e(f"s_cbranch_scc0 {k.L('notag2')}")
    e("s_mov_b32 s3, 0")
    k.label("polltag")
    e("buffer_load_dwordx2 v[40:41], v1, s[44:47], 0 offen sc1")
    e("s_add_u32 s3, s3, 1")
    e("s_cmp_gt_u32 s3, 0x100000")
    e(f"s_cbranch_scc1 {k.L('polltag_x')}")
    e("s_waitcnt vmcnt(0)")
    e("v_cmp_eq_u32 vcc, 0, v40")
    e(f"s_cbranch_vccnz {k.L('polltag')}")
    k.label("polltag_x")
    e("s_waitcnt vmcnt(0)")
    e("v_or_b32 v40, 1, v40")
    e(f"v_mov_b32 v1, {FLAG+48}")
    e("ds_write_b64 v1, v[40:41]")
    k.label("notag2")
    e("s_add_u32 s30, s63, 32")
    e("v_add_u32 v4, s30, v2")
    for i in range(4):
        e(f"s_waitcnt vmcnt({4 + 2*(3-i)})")
        y = Y + 4*i; w = W + 2*i
        X = 44 + 12*(i % 2); P1 = X + 4; P3 = X + 8
        e(f"ds_write_b128 v4, {vr(y,4)} offset:{1024*i}")
        e(f"v_mov_b32 v{X}, v{w+1}")
        for j in range(3): e(f"v_mov_b32 v{X+1+j}, v{y+j}")
        e(f"ds_write_b128 v4, {vr(X,4)} offset:{1024*i + 2*KCP}")
        e(f"v_alignbit_b32 v{P1}, v{y}, v{w+1}, 16")
        for j in range(3): e(f"v_alignbit_b32 v{P1+1+j}, v{y+1+j}, v{y+j}, 16")
        e(f"ds_write_b128 v4, {vr(P1,4)} offset:{1024*i + KCP}")
        e(f"v_alignbit_b32 v{P3}, v{w+1}, v{w}, 16")
        for j in range(3): e(f"v_mov_b32 v{P3+1+j}, v{P1+j}")
        e(f"ds_write_b128 v4, {vr(P3,4)} offset:{1024*i + 3*KCP}")
    e("s_lshl_b32 s3, s62, 2")
    e(f"s_add_u32 s3, s3, {FLAG+32}")
    e("v_mov_b32 v33, s3")
    e("v_mov_b32 v34, 1")
    e("s_waitcnt lgkmcnt(0)")
    e("ds_write_b32 v33, v34")
    k.stamp(2)
    gettag("tagB")
    S = [104, 105]; Q = [106, 107]
    for r in S + Q: e(f"v_mov_b32 v{r}, 0")
    e("s_mov_b32 s48, 0x3f803f80")
    e("s_waitcnt vmcnt(0)")
    for j in range(8):
        for r in range(2):
            e(f"v_dot2c_f32_bf16 v{S[r]}, s48, v{ST+8*r+j}")
            e(f"v_dot2c_f32_bf16 v{Q[r]}, v{ST+8*r+j}, v{ST+8*r+j}")
    e("s_nop 2")
    for mode in ("quad_perm:[1,0,3,2] row_mask:0xf", "quad_perm:[2,3,0,1] row_mask:0xf", "row_half_mirror row_mask:0xf",
                 "row_mirror row_mask:0xf", "row_bcast:15 row_mask:0xa", "row_bcast:31 row_mask:0xc"):
        for r in S + Q:
            e(f"v_add_f32_dpp v{r}, v{r}, v{r} {mode} bank_mask:0xf")
    ln_stats(k, S, Q, [108, 109], None, [112, 113], recip=False)
    e("s_mov_b32 s48, 0x07060302")
    e("v_perm_b32 v202, v112, v108, s48")
    e("v_perm_b32 v203, v113, v109, s48")
    e("v_mov_b32 v1, 0")
    e("s_lshl_b32 s48, s2, 6")
    e("s_lshl_b32 s49, s62, 4")
    e("s_add_u32 s48, s48, s49")
    e(f"s_add_u32 s48, s48, 0x{SG:x}")
    e("s_mov_b32 exec_lo, 0")
    e("s_mov_b32 exec_hi, 0x80000000")
    e("buffer_store_dwordx4 v[202:205], v1, s[32:35], s48 offen sc1")
    e("s_mov_b64 exec, -1")
    e("v_mov_b32 v36, 0")
    e("s_lshl_b32 s48, s2, 9")
    e("s_lshl_b32 s49, s62, 7")
    e("s_add_u32 s48, s48, s49")
    e(f"s_add_u32 s48, s48, 0x{FLG:x}")
    e("v_lshlrev_b32 v34, 1, v0")
    e("buffer_store_short v36, v34, s[32:35], s48 offen")
    e("s_lshl_b32 s48, s2, 7")
    e("s_and_b32 s49, s62, 1")
    e("s_lshl_b32 s49, s49, 15")
    e("s_add_u32 s48, s48, s49")
    e(f"s_add_u32 s48, s48, 0x{HFL:x}")
    e("buffer_store_short v36, v34, s[32:35], s48 offen")
    e("s_lshl_b32 s48, s2, 10")
    e("s_lshl_b32 s49, s62, 8")
    e("s_add_u32 s48, s48, s49")
    e(f"s_add_u32 s48, s48, 0x{SP:x}")
    e("v_lshlrev_b32 v34, 2, v0")
    e("v_mov_b32 v35, -1")
    e("buffer_store_dword v35, v34, s[32:35], s48 offen")
    k.stamp(3)
    e("s_cmp_ge_u32 s62, 2")
    e(f"s_cbranch_scc1 {k.L('bfetch')}")
    e(f"v_mov_b32 v33, {FLAG+16}")
    spin(0, "v_cmp_eq_u32 vcc, 0, v34", "waitU", sleep=2)
    e(f"v_mov_b32 v33, {FLAG+20}")
    spin(0, "v_cmp_eq_u32 vcc, 0, v34", "waitU2", sleep=2)
    k.stamp(4)
    e("s_lshl_b32 s11, s40, 1")
    e("s_add_u32 s11, s11, s62")
    if 'n' in F:
        e("s_and_b32 s3, s41, 1")
        e("s_and_b32 s13, s11, 1")
        e("s_cmp_eq_u32 s3, s13")
        e(f"s_cbranch_scc0 {k.L('bdone')}")
    e("s_cmp_ge_u32 s11, 56")
    e(f"s_cbranch_scc1 {k.L('bdone')}")
    e("s_mul_i32 s13, s11, 4682")
    e("s_lshr_b32 s13, s13, 16")
    e("s_mul_i32 s14, s13, 14")
    e("s_sub_u32 s14, s11, s14")
    e("s_lshr_b32 s15, s41, 1")
    e("s_mul_i32 s15, s15, 896")
    e("s_lshl_b32 s14, s14, 6")
    e("s_add_u32 s14, s14, s15")
    e(f"s_mul_i32 s15, s13, {256*7168}")
    e("s_lshl_b32 s24, s14, 1")
    e("s_add_u32 s15, s15, s24")
    e("v_lshrrev_b32 v1, 3, v0")
    e("v_mul_u32_u24 v1, 7168, v1")
    e("v_and_b32 v2, 7, v0")
    e("v_lshl_add_u32 v1, v2, 4, v1")
    k.srd(16, 56, 57, 1024*3584*2)
    for n in range(32):
        e(f"buffer_load_dwordx4 {vr(16+4*n,4)}, v1, s[16:19], s15 offen{' nt' if 'n' in F else ''}")
        e(f"s_add_u32 s15, s15, {8*7168}")
    for i in range(8): e(f"v_mov_b32 v{8+i}, 0")
    e("s_mov_b32 s25, 0xffff0000")
    for n in range(32):
        e(f"s_waitcnt vmcnt({31-n})")
        for j in range(4):
            e(f"v_lshlrev_b32 v{144+2*j}, 16, v{16+4*n+j}")
            e(f"v_and_b32 v{145+2*j}, s25, v{16+4*n+j}")
        for j in range(8):
            e(f"v_add_f32 v{8+j}, v{8+j}, v{144+j}")
    e("s_nop 1")
    for i in range(8): e(f"v_add_f32_dpp v{8+i}, v{8+i}, v{8+i} row_ror:8 row_mask:0xf bank_mask:0xf")
    for op in ("v_permlane32_swap_b32", "v_permlane16_swap_b32"):
        for i in range(8): e(f"v_mov_b32 v{16+i}, v{8+i}")
        e("s_nop 1")
        for i in range(8): e(f"{op} v{8+i}, v{16+i}")
        e("s_nop 1")
        for i in range(8): e(f"v_add_f32 v{8+i}, v{8+i}, v{16+i}")
    if 'n' not in F:
        e("s_and_b32 s12, s41, 1")
        e("s_cmp_eq_u32 s12, 1")
        e(f"s_cbranch_scc1 {k.L('bdone')}")
    e(f"s_mul_i32 s15, s13, {3584*4}")
    e("s_lshl_b32 s14, s14, 2")
    e("s_add_u32 s15, s15, s14")
    e(f"s_add_u32 s15, s15, 0x{CS:x}")
    e("v_lshlrev_b32 v1, 5, v0")
    e("s_mov_b64 exec, 0xff")
    e("buffer_store_dwordx4 v[8:11], v1, s[32:35], s15 offen")
    e("buffer_store_dwordx4 v[12:15], v1, s[32:35], s15 offen offset:16")
    e(f"s_branch {k.L('bdone')}")
    k.label("bfetch")
    poll(FX, "pollX")
    k.stamp(4)
    e("s_sub_u32 s11, s62, 2")
    e("s_lshl_b32 s12, s11, 13")
    e("s_sub_u32 s13, s61, s62")
    e("s_lshl_b32 s13, s13, 12")
    e("s_add_u32 s13, s13, s12")
    for q in range(2):
        e(f"s_add_u32 m0, s12, {TILE + 4096*q}")
        e(f"s_add_u32 s14, s13, 0x{XT + 4096*q:x}")
        for p in range(4):
            e(f"buffer_load_dwordx4 v2, s[32:35], s14 offen offset:{1024*p} sc1 lds")
    e(f"s_add_u32 s13, s12, 0x{SG:x}")
    e("s_add_u32 s14, s13, 4096")
    e("s_mov_b32 s3, 0")
    k.label("pollS")
    for q in range(8):
        e(f"buffer_load_dwordx4 {vr(16+4*q,4)}, v2, s[32:35], s{13 + q//4} offen offset:{1024*(q%4)} sc1")
    e("s_add_u32 s3, s3, 1")
    e("s_cmp_gt_u32 s3, 0x40000")
    e(f"s_cbranch_scc1 {k.L('pollS_x')}")
    e("s_waitcnt vmcnt(0)")
    e("s_mov_b64 s[22:23], 0")
    for q in range(8):
        e(f"v_cmp_ne_u64 vcc, {vr(18+4*q,2)}, v[204:205]")
        e("s_or_b64 s[22:23], s[22:23], vcc")
    e("s_cmp_lg_u64 s[22:23], 0")
    e(f"s_cbranch_scc1 {k.L('pollS')}")
    k.label("pollS_x")
    e("s_waitcnt vmcnt(0)")
    e("s_lshl_b32 s13, s11, 12")
    e(f"s_add_u32 s13, s13, {STAT}")
    e("v_lshl_add_u32 v3, v0, 3, s13")
    e("s_mov_b32 s14, 0xffff0000")
    for q in range(8):
        g = 16 + 4*q
        e(f"v_and_b32 v{g+2}, s14, v{g}")
        e(f"v_and_b32 v{g+3}, s14, v{g+1}")
        e(f"v_lshlrev_b32 v{g}, 16, v{g}")
        e(f"v_lshlrev_b32 v{g+1}, 16, v{g+1}")
        e(f"v_rcp_f32 v{g+2}, v{g+2}")
        e(f"v_rcp_f32 v{g+3}, v{g+3}")
        e(f"ds_write_b64 v3, {vr(g,2)} offset:{512*q}")
        e(f"ds_write_b64 v3, {vr(g+2,2)} offset:{512*q+8192}")
    k.srd(16, 58, 59, 1024*3584*2)
    e("s_lshl_b32 s30, s2, 1")
    e("s_add_u32 s30, s30, s11")
    e(f"s_mul_i32 s30, s30, {112*128}")
    e("v_lshlrev_b32 v6, 7, v0")
    e("v_add_u32 v7, 6144, v6")
    e("s_lshl_b32 s12, s11, 2")
    e(f"s_add_u32 s12, s12, {FLAG+16}")
    e("v_mov_b32 v4, s12")
    e("v_mov_b32 v5, 1")
    e("s_waitcnt lgkmcnt(0)")
    e("ds_write_b32 v4, v5")
    if 'w' not in F:
        e("buffer_load_dword v8, v6, s[16:19], s30 offen")
        e("buffer_load_dword v9, v7, s[16:19], s30 offen")
    k.stamp(5)
    k.label("bdone")
    if STAMP:
        e("s_waitcnt vmcnt(0)")
        k.dump_stamps(0, 32, 60)
    k.label("end")
    e("s_endpgm")
    return k
```

```python
from asmlib import *
from layout import *
import os
K1WT = os.environ.get('K1WT', ' sc1')
NTW = os.environ.get('NTW', '')

KCP = 4160
REG = 4*KCP + 512 + 4096
STAT = 4*REG
FLAG = STAT + 16384

def make_k1():
    k = Kern("conv_kernel", 256, 512, FLAG + 16, nvgpr=208)
    e = k.e
    e("s_cmp_ge_u32 s2, 256")
    e(f"s_cbranch_scc1 {k.L('end')}")
    k.clear_stamps()
    e("s_load_dwordx4 s[4:7], s[0:1], 32")
    e("s_load_dwordx2 s[8:9], s[0:1], 88")
    e("s_load_dwordx4 s[36:39], s[0:1], 56")
    e("v_lshrrev_b32 v1, 6, v0")
    e("v_and_b32 v0, 63, v0")
    e("v_readfirstlane_b32 s10, v1")
    e("s_cmp_ge_u32 s10, 4")
    e(f"s_cbranch_scc1 {k.L('helper')}")
    e("s_and_b32 s11, s2, 7")
    e("s_lshr_b32 s12, s2, 3")
    e("s_lshl_b32 s11, s11, 7")
    e("s_lshl_b32 s12, s12, 2")
    e("s_add_u32 s11, s11, s12")
    e("s_add_u32 s11, s11, s10")
    e("s_lshl_b32 s12, s11, 12")
    e(f"s_mul_i32 s13, s10, {REG}")
    e("v_lshlrev_b32 v2, 4, v0")
    e("v_add_u32 v3, -8, v2")
    e("v_add_u32 v4, 1016, v2")
    e("v_and_b32 v5, 15, v0")
    e("v_lshrrev_b32 v6, 4, v0")
    e("s_waitcnt lgkmcnt(0)")
    e("s_add_u32 s16, s4, s12")
    e("s_addc_u32 s17, s5, 0")
    e("s_and_b32 s17, s17, 0xffff")
    e("s_mov_b32 s18, 4096")
    e("s_mov_b32 s19, 0x20000")
    k.srd(20, 8, 9, WS_BYTES)
    e("s_and_b32 s14, s11, -2")
    e("s_lshl_b32 s14, s14, 1")
    e("s_load_dword s15, s[6:7], s14")
    Y = 8
    W = 24
    for i in range(4):
        e(f"buffer_load_dwordx4 {vr(Y+4*i,4)}, v2, s[16:19], 0 offen offset:{1024*i}")
        if i == 0: e(f"buffer_load_dwordx2 {vr(W,2)}, v3, s[16:19], 0 offen")
        else:      e(f"buffer_load_dwordx2 {vr(W+2*i,2)}, v4, s[16:19], 0 offen offset:{1024*(i-1)}")
    e(f"s_add_u32 s24, s13, {4*KCP+512}")
    e(f"s_add_u32 s25, s12, 0x{UT:x}")
    e("s_mov_b32 m0, s24")
    e("s_nop 0")
    for p in range(4):
        e(f"buffer_load_dwordx4 v2, s[20:23], s25 offen offset:{1024*p} lds")
    XV = 192
    e("v_lshlrev_b32 v7, 5, v5")
    e("v_lshl_add_u32 v7, v6, 3, v7")
    e(f"s_add_u32 s28, s12, 0x{XT:x}")
    e(f"s_add_u32 s29, s12, 0x{HT:x}")
    for t in range(8):
        e(f"buffer_load_dwordx2 {vr(XV+2*t,2)}, v7, s[20:23], s28 offen offset:{512*t}")
    e(f"v_mov_b32 v32, {FLAG}")
    e("v_mov_b32 v36, 0"); e("v_mov_b32 v37, 0"); e("v_mov_b32 v38, 0"); e("v_mov_b32 v39, 0")
    e("ds_write_b128 v32, v[36:39]")
    e("s_waitcnt lgkmcnt(0)")
    e("s_barrier")
    e("v_bfe_u32 v32, v0, 1, 2")
    e(f"v_mul_u32_u24 v32, {KCP}, v32")
    e("v_and_b32 v33, 1, v0")
    e("v_lshl_add_u32 v32, v33, 4, v32")
    e(f"v_add_u32 v33, {4*KCP}, v2")
    e("v_cmp_gt_u32 vcc, 32, v0")
    e("s_nop 1")
    e("v_cndmask_b32 v32, v32, v33, vcc")
    e("v_add_u32 v32, s13, v32")
    e("ds_write_b128 v32, v[36:39]")
    e("v_sub_u32 v33, 7, v5")
    e("v_and_b32 v33, 3, v33")
    e(f"v_mul_u32_u24 v33, {KCP}, v33")
    e("v_lshrrev_b32 v34, 2, v5")
    e("v_lshl_add_u32 v33, v34, 3, v33")
    e("v_lshlrev_b32 v34, 4, v6")
    e("v_sub_u32 v33, v33, v34")
    e("s_add_u32 s30, s13, 24")
    e("v_add_u32 v1, s30, v33")
    e("v_lshlrev_b32 v33, 5, v5")
    e("v_add_u32 v33, v33, v34")
    e(f"s_add_u32 s30, s13, {4*KCP + 512 - 32*15}")
    e("v_add_u32 v3, s30, v33")
    e("s_add_u32 s30, s13, 32")
    e("v_add_u32 v4, s30, v2")
    e("v_lshrrev_b32 v33, 3, v5")
    e("v_add_u32 v33, 2, v33")
    e("v_and_b32 v34, 7, v5")
    e("v_sub_u32 v34, 7, v34")
    e("v_cmp_eq_u32 vcc, v33, v6")
    e("v_lshrrev_b32 v35, 1, v34")
    e("v_and_b32 v34, 1, v34")
    e("v_cndmask_b32 v35, 9, v35, vcc")
    e("v_lshlrev_b32 v34, 4, v34")
    e("s_waitcnt lgkmcnt(0)")
    e("s_and_b32 s31, s11, 1")
    e("s_lshl_b32 s31, s31, 4")
    e("s_lshr_b32 s15, s15, s31")
    e("s_and_b32 s15, s15, 0xffff")
    e("v_mov_b32 v33, s15")
    e("v_lshlrev_b32 v34, v34, v33")
    for r in range(4):
        e(f"v_cmp_eq_u32 vcc, {r}, v35")
        e("s_nop 1")
        e(f"v_cndmask_b32 v{40+r}, 0, v34, vcc")
    k.stamp(1)
    if STAMP:
        e("s_waitcnt vmcnt(18)")
        k.stamp(2)
    for i in range(4):
        e(f"s_waitcnt vmcnt({12 + 2*(3-i)})")
        y = Y + 4*i; w = W + 2*i
        X = 44 + 12*(i % 2); P1 = X + 4; P3 = X + 8
        e(f"ds_write_b128 v4, {vr(y,4)} offset:{1024*i}")
        e(f"v_mov_b32 v{X}, v{w+1}")
        for j in range(3): e(f"v_mov_b32 v{X+1+j}, v{y+j}")
        e(f"ds_write_b128 v4, {vr(X,4)} offset:{1024*i + 2*KCP}")
        e(f"v_alignbit_b32 v{P1}, v{y}, v{w+1}, 16")
        for j in range(3): e(f"v_alignbit_b32 v{P1+1+j}, v{y+1+j}, v{y+j}, 16")
        e(f"ds_write_b128 v4, {vr(P1,4)} offset:{1024*i + KCP}")
        e(f"v_alignbit_b32 v{P3}, v{w+1}, v{w}, 16")
        for j in range(3): e(f"v_mov_b32 v{P3+1+j}, v{P1+j}")
        e(f"ds_write_b128 v4, {vr(P3,4)} offset:{1024*i + 3*KCP}")
    FA = [64, 128]
    FB = [96, 160]
    ACC = 8
    def reads(buf, ep):
        r = []
        for w in range(8):
            r.append(f"ds_read_b128 {vr(FB[buf]+4*w,4)}, v3 offset:{512*w + 32*(15-ep)}")
        for v in range(8):
            r.append(f"ds_read_b64 {vr(FA[buf]+4*v,2)}, v1 offset:{32*ep + 512*v}")
            r.append(f"ds_read_b64 {vr(FA[buf]+4*v+2,2)}, v1 offset:{32*ep + 512*v + 8}")
        return r
    def mfmas(buf):
        m = []
        for v in range(8):
            for w in range(8 - v):
                t = v + w
                m.append(f"v_mfma_f32_16x16x32_bf16 {vr(ACC+4*t,4)}, {vr(FA[buf]+4*v,4)}, {vr(FB[buf]+4*w,4)}, {vr(ACC+4*t,4)}")
        return m
    e("s_waitcnt vmcnt(8) lgkmcnt(0)")
    k.stamp(3)
    rd = reads(0, 1)
    for r in rd[:15]: e(r)
    e("s_waitcnt lgkmcnt(7)")
    for t in range(8):
        e(f"v_mfma_f32_16x16x32_bf16 {vr(ACC+4*t,4)}, v[40:43], {vr(FB[0]+4*t,4)}, 0")
        e(rd[15+t])
    e(rd[23])
    e("s_mov_b32 s33, 0")
    k.label("loop")
    for buf, nxt in ((0, 3), (1, 5)):
        e("s_waitcnt lgkmcnt(0)")
        rd = reads(1 - buf, nxt)
        if buf == 1:
            pass
        for i, m in enumerate(mfmas(buf)):
            e(m)
            if i < len(rd): e(rd[i])
    e("v_add_u32 v1, 128, v1")
    e("v_add_u32 v3, -128, v3")
    e("s_add_u32 s33, s33, 1")
    e("s_cmp_lt_u32 s33, 4")
    e(f"s_cbranch_scc1 {k.L('loop')}")
    e("v_lshlrev_b32 v1, 6, v5")
    e("v_lshl_add_u32 v1, v6, 4, v1")
    e(f"v_add_u32 v1, {STAT}, v1")
    k.stamp(4)
    e(f"v_mov_b32 v3, {FLAG}")
    k.label("spoll")
    e("ds_read_b128 v[64:67], v3")
    e("s_waitcnt vmcnt(0) lgkmcnt(0)")
    e("v_and_b32 v64, v64, v65")
    e("v_and_b32 v66, v66, v67")
    e("v_and_b32 v64, v64, v66")
    e("v_cmp_eq_u32 vcc, 0, v64")
    e(f"s_cbranch_vccnz {k.L('spoll')}")
    k.stamp(5)
    MS = 64; RS = 96
    for t in range(8):
        e(f"ds_read_b128 {vr(MS+4*t,4)}, v1 offset:{1024*t}")
        e(f"ds_read_b128 {vr(RS+4*t,4)}, v1 offset:{1024*t+8192}")
    e("s_mov_b32 s34, 0xffff0000")
    for t in range(8):
        xu = 128 + 8*(t % 2); q = xu + 4
        e(f"v_lshlrev_b32 v{xu}, 16, v{XV+2*t}")
        e(f"v_and_b32 v{xu+1}, s34, v{XV+2*t}")
        e(f"v_lshlrev_b32 v{xu+2}, 16, v{XV+2*t+1}")
        e(f"v_and_b32 v{xu+3}, s34, v{XV+2*t+1}")
        e(f"s_waitcnt lgkmcnt({14-2*t})")
        for h in range(2):
            e(f"v_pk_add_f32 {vr(q+2*h,2)}, {vr(xu+2*h,2)}, {vr(MS+4*t+2*h,2)} neg_lo:[0,1] neg_hi:[0,1]")
        for h in range(2):
            e(f"v_pk_mul_f32 {vr(q+2*h,2)}, {vr(q+2*h,2)}, {vr(RS+4*t+2*h,2)}")
        for h in range(2):
            e(f"v_pk_fma_f32 {vr(q+2*h,2)}, {vr(q+2*h,2)}, {vr(ACC+4*t+2*h,2)}, {vr(xu+2*h,2)}")
        e(f"v_cvt_pk_bf16_f32 v{XV+2*t}, v{q}, v{q+1}")
        e(f"v_cvt_pk_bf16_f32 v{XV+2*t+1}, v{q+2}, v{q+3}")
        e(f"buffer_store_dwordx2 {vr(XV+2*t,2)}, v7, s[20:23], s29 offen offset:{512*t}{K1WT}")
    if STAMP:
        k.stamp(6)
        e("s_waitcnt vmcnt(0)")
        k.dump_stamps(1, 20, 10)
    e("s_endpgm")
    k.label("helper")
    e("s_sub_u32 s27, s10, 4")
    e("s_lshl_b32 s26, s27, 12")
    e(f"s_add_u32 m0, s26, {STAT}")
    e(f"s_add_u32 s26, s26, 0x{MX:x}")
    e("s_lshl_b32 s27, s27, 2")
    e(f"s_add_u32 s27, s27, {FLAG}")
    e("v_lshlrev_b32 v3, 4, v0")
    e("v_mov_b32 v4, s27")
    e("v_mov_b32 v5, 1")
    e("s_waitcnt lgkmcnt(0)")
    k.srd(20, 8, 9, WS_BYTES)
    e("s_barrier")
    for p in range(4):
        e(f"buffer_load_dwordx4 v3, s[20:23], s26 offen offset:{1024*p} lds")
    e("s_lshr_b32 s11, s2, 3")
    e("s_lshl_b32 s11, s11, 2")
    e("s_add_u32 s11, s11, s10")
    e("s_sub_u32 s11, s11, 4")
    e("s_and_b32 s12, s2, 7")
    k.srd(40, 38, 39, 1024*3584*2)
    e("s_lshl_b32 s30, s2, 2")
    e("s_add_u32 s30, s30, s10")
    e("s_sub_u32 s30, s30, 4")
    e(f"s_mul_i32 s30, s30, {56*128}")
    e("v_lshlrev_b32 v6, 7, v0")
    e("s_cmp_lt_u32 s11, 112")
    e(f"s_cbranch_scc1 {k.L('hwork')}")
    e("buffer_load_dword v7, v6, s[40:43], s30 offen")
    e("s_waitcnt vmcnt(1)")
    e("ds_write_b32 v4, v5")
    e("s_endpgm")
    k.label("hwork")
    e("s_mul_i32 s13, s11, 4682")
    e("s_lshr_b32 s13, s13, 16")
    e("s_mul_i32 s14, s13, 14")
    e("s_sub_u32 s14, s11, s14")
    e("s_lshr_b32 s15, s12, 1")
    e("s_mul_i32 s15, s15, 896")
    e("s_lshl_b32 s14, s14, 6")
    e("s_add_u32 s14, s14, s15")
    e(f"s_mul_i32 s15, s13, {128*7168}")
    e("s_lshl_b32 s24, s14, 1")
    e("s_add_u32 s15, s15, s24")
    e("v_lshrrev_b32 v1, 3, v0")
    e("v_mul_u32_u24 v1, 7168, v1")
    e("v_and_b32 v2, 7, v0")
    e("v_lshl_add_u32 v1, v2, 4, v1")
    k.srd(16, 36, 37, 1024*3584*2)
    for n in range(16):
        e(f"buffer_load_dwordx4 {vr(16+4*n,4)}, v1, s[16:19], s15 offen{NTW}")
        e(f"s_add_u32 s15, s15, {8*7168}")
    e("buffer_load_dword v7, v6, s[40:43], s30 offen")
    e("s_waitcnt vmcnt(17)")
    e("ds_write_b32 v4, v5")
    for i in range(8): e(f"v_mov_b32 v{8+i}, 0")
    e("s_mov_b32 s25, 0xffff0000")
    for n in range(16):
        e(f"s_waitcnt vmcnt({16-n})")
        for j in range(4):
            e(f"v_lshlrev_b32 v{80+2*j}, 16, v{16+4*n+j}")
            e(f"v_and_b32 v{81+2*j}, s25, v{16+4*n+j}")
        for j in range(8):
            e(f"v_add_f32 v{8+j}, v{8+j}, v{80+j}")
    e("s_nop 2")
    for i in range(8): e(f"v_add_f32_dpp v{8+i}, v{8+i}, v{8+i} row_ror:8 row_mask:0xf bank_mask:0xf")
    for op in ("v_permlane32_swap_b32", "v_permlane16_swap_b32"):
        for i in range(8): e(f"v_mov_b32 v{16+i}, v{8+i}")
        e("s_nop 1")
        for i in range(8): e(f"{op} v{8+i}, v{16+i}")
        e("s_nop 1")
        for i in range(8): e(f"v_add_f32 v{8+i}, v{8+i}, v{16+i}")
    e("s_and_b32 s12, s12, 1")
    e("s_cmp_eq_u32 s12, 1")
    e(f"s_cbranch_scc1 {k.L('hdone')}")
    e(f"s_mul_i32 s15, s13, {3584*4}")
    e("s_lshl_b32 s14, s14, 2")
    e("s_add_u32 s15, s15, s14")
    e(f"s_add_u32 s15, s15, 0x{CS:x}")
    e("v_lshlrev_b32 v1, 5, v0")
    e("s_mov_b64 exec, 0xff")
    e("buffer_store_dwordx4 v[8:11], v1, s[20:23], s15 offen")
    e("buffer_store_dwordx4 v[12:15], v1, s[20:23], s15 offen offset:16")
    k.label("hdone")
    k.dump_stamps(1, 20, 10)
    k.label("end")
    e("s_endpgm")
    return k
```

```python
from asmlib import *
from layout import *
from k0 import ln_stats
import os
X = os.environ.get('K3X', '')
K3WT = int(os.environ.get('K3WT', '2'))
NTW = ' nt' if 'n' in X else ''
PFS = int(os.environ.get('PFS', '128'))

STG = 45056
WOFF = 16384
NBUF = 3
STATS = NBUF * STG
CSL = STATS + 1024
NCS = 4

def make_k3():
    k = Kern("gemm1_kernel", 256, 512, CSL + 1024, nvgpr=224)
    e = k.e
    e("s_cmp_ge_u32 s2, 256")
    e(f"s_cbranch_scc1 {k.L('end')}")
    k.clear_stamps()
    e("s_load_dwordx4 s[4:7], s[0:1], 56")
    e("s_load_dwordx2 s[8:9], s[0:1], 88")
    e("v_lshrrev_b32 v1, 6, v0")
    e("v_and_b32 v0, 63, v0")
    e("v_readfirstlane_b32 s10, v1")
    e("s_and_b32 s11, s2, 7")
    e("s_lshr_b32 s12, s2, 3")
    if '2' in X:
        e("s_lshr_b32 s13, s11, 1")
        e("s_lshl_b32 s13, s13, 2")
        e("s_and_b32 s14, s12, 3")
        e("s_add_u32 s13, s13, s14")
        e("s_and_b32 s14, s11, 1")
        e("s_lshl_b32 s14, s14, 3")
        e("s_lshr_b32 s15, s12, 2")
        e("s_add_u32 s14, s14, s15")
    else:
        e("s_and_b32 s13, s11, 1")
        e("s_lshl_b32 s13, s13, 3")
        e("s_and_b32 s14, s12, 7")
        e("s_add_u32 s13, s13, s14")
        e("s_lshr_b32 s14, s11, 1")
        e("s_lshl_b32 s14, s14, 2")
        e("s_lshr_b32 s15, s12, 3")
        e("s_add_u32 s14, s14, s15")
    e("v_lshrrev_b32 v2, 4, v0")
    e("s_cmp_ge_u32 s10, 4")
    e(f"s_cbranch_scc1 {k.L('loader')}")
    def trcommon():
        e("v_bfe_u32 v3, v0, 2, 2")
        e("v_and_b32 v4, 3, v0")
        e("v_and_b32 v5, 1, v2")
        e("v_lshl_or_b32 v6, v5, 2, v3")
        e("v_lshl_add_u32 v7, v2, 3, v3")
        e("v_lshlrev_b32 v8, 8, v7")
        e("v_lshl_add_u32 v8, v4, 3, v8")

    trcommon()
    ACC = 16
    FW = [128, 172]
    FH = [156, 200]
    AH = [1, 2, 3, 4]
    AW = [9, 10, 11]
    e("s_and_b32 s24, s10, 1")
    e("s_lshr_b32 s25, s10, 1")
    e("v_mul_u32_u24 v12, 448, v7")
    e("v_lshl_add_u32 v12, v4, 3, v12")
    e(f"v_add_u32 v12, {WOFF}, v12")
    e("v_lshl_add_u32 v13, v5, 5, v12")
    e("v_xor_b32 v14, 1, v5")
    e("v_lshl_add_u32 v14, v14, 5, v12")
    e("s_lshl_b32 s26, s25, 8")
    e("v_add_u32 v9, s26, v13")
    e("v_add_u32 v10, s26, v14")
    e("s_cmp_eq_u32 s25, 0")
    e("s_cselect_b64 vcc, -1, 0")
    e("v_cndmask_b32 v11, v14, v13, vcc")
    e("v_add_u32 v11, 192, v11")
    e("v_mov_b32 v15, v2")
    e("s_lshl_b32 s26, s24, 2")
    for j in range(4):
        e(f"s_add_u32 s27, s26, {j}")
        e(f"v_xor_b32 v12, s27, v6")
        e(f"v_lshl_add_u32 v{AH[j]}, v12, 5, v8")
    for i in range(112):
        e(f"v_mov_b32 v{ACC+i}, 0")
    e("s_waitcnt lgkmcnt(0)")
    k.srd(20, 8, 9, WS_BYTES)
    def reads(st, step):
        r = []
        for j in range(4):
            for h in range(2):
                r.append(f"ds_read_b64_tr_b16 {vr(FH[st]+4*j+2*h,2)}, v{AH[j]} offset:{8192*step+1024*h}")
        for i in range(7):
            a, o = (AW[i % 2], 64*(i//2)) if i < 6 else (AW[2], 0)
            for h in range(2):
                r.append(f"ds_read_b64_tr_b16 {vr(FW[st]+4*i+2*h,2)}, v{a} offset:{14336*step+1792*h+o}")
        if 'r' in X: r = ["s_nop 0" for _ in r]
        return r
    def mfmas(st):
        if 'm' in X: return ["s_nop 0"] * 28
        return [f"v_mfma_f32_16x16x32_bf16 {vr(ACC+4*(4*i+j),4)}, {vr(FW[st]+4*i,4)}, {vr(FH[st]+4*j,4)}, {vr(ACC+4*(4*i+j),4)}"
                for i in range(7) for j in range(4)]
    e("s_mov_b32 s28, 0")
    e("s_mov_b32 s29, 0")
    k.stamp(1)
    e("s_barrier")
    k.stamp(2)
    for r in reads(0, 0): e(r)
    k.label("cloop")
    e("s_waitcnt lgkmcnt(0)")
    rd = reads(1, 1)
    sched = [2]*6 + [1]*10
    for i, m in enumerate(mfmas(0)):
        e(m)
        n = sched[i] if i < len(sched) else 0
        for _ in range(n): e(rd.pop(0))
        if i == 20:
            e("s_add_u32 s29, s29, 1")
            e(f"s_mov_b32 s30, {STG}")
            e("s_cmp_eq_u32 s29, 3")
            e(f"s_cselect_b32 s30, {-2*STG}, s30")
            e("s_cselect_b32 s29, 0, s29")
    assert not rd
    e("s_waitcnt lgkmcnt(0)")
    e("s_barrier")
    rd = [f"v_add_u32 v{a}, s30, v{a}" for a in AH + AW] + reads(0, 0)
    sched = [2]*10 + [1]*9
    for i, m in enumerate(mfmas(1)):
        e(m)
        n = sched[i] if i < len(sched) else 0
        for _ in range(n): e(rd.pop(0))
        if i == 24:
            e("s_add_u32 s28, s28, 1")
            e("s_cmp_lt_u32 s28, 16")
    assert not rd
    e(f"s_cbranch_scc1 {k.L('cloop')}")
    e("v_and_b32 v1, 15, v0")
    e("s_lshl_b32 s26, s24, 9")
    e(f"s_add_u32 s26, s26, {STATS}")
    e("v_lshl_add_u32 v1, v1, 3, s26")
    e("s_lshl_b32 s26, s25, 9")
    e(f"s_add_u32 s26, s26, {CSL}")
    e("v_lshl_add_u32 v2, v15, 4, s26")
    e("s_mul_i32 s26, s25, 64")
    e(f"s_add_u32 s26, s26, {CSL+384}")
    e("v_lshl_add_u32 v3, v15, 4, s26")
    e("s_lshl_b32 s26, s25, 12")
    e("v_lshl_add_u32 v4, v0, 4, s26")
    e("s_lshl_b32 s26, s25, 3")
    e("s_add_u32 s26, s26, 3072")
    e("v_lshl_add_u32 v5, v0, 4, s26")
    e("s_lshl_b32 s26, s13, 3")
    e("s_lshl_b32 s27, s24, 2")
    e("s_add_u32 s26, s26, s27")
    e("s_mul_i32 s26, s26, 112")
    e("s_mul_i32 s27, s14, 7")
    e("s_add_u32 s26, s26, s27")
    e("s_lshl_b32 s26, s26, 10")
    e(f"s_add_u32 s32, s26, 0x{HM:x}")
    for j in range(1, 4):
        e(f"s_add_u32 s{32+j}, s32, {112*1024*j}")
    e("s_waitcnt lgkmcnt(0)")
    k.stamp(4)
    MR = 128
    C2 = 136
    CSV = 144
    for j in range(4):
        e(f"ds_read_b64 {vr(MR+2*j,2)}, v1 offset:{128*j}")
    for i in range(7):
        e(f"ds_read_b128 {vr(CSV+4*i,4)}, v{2 if i < 6 else 3} offset:{64*i if i < 6 else 0}")
    e("s_waitcnt lgkmcnt(0)")
    for j in range(4):
        e(f"v_mul_f32 v{C2+2*j}, 0xbfb8aa3b, v{MR+2*j+1}")
    T = 172
    def elem8(tiles, out):
        P = T; Xr = T + 8
        def each(f):
            for n, (i, j) in enumerate(tiles):
                for h in range(2):
                    e(f(ACC + 4*(4*i+j) + 2*h, CSV + 4*i + 2*h, j, P + 4*n + 2*h, Xr + 4*n + 2*h))
        each(lambda a, c, j, p, x: f"v_pk_fma_f32 {vr(a,2)}, {vr(c,2)}, {vr(MR+2*j,2)}, {vr(a,2)} op_sel_hi:[1,0,1] neg_lo:[0,1,0] neg_hi:[0,1,0]")
        each(lambda a, c, j, p, x: f"v_pk_mul_f32 {vr(x,2)}, {vr(a,2)}, {vr(C2+2*j,2)} op_sel_hi:[1,0]")
        for q in range(8): e(f"v_exp_f32 v{Xr+q}, v{Xr+q}")
        each(lambda a, c, j, p, x: f"v_pk_mul_f32 {vr(p,2)}, {vr(a,2)}, {vr(MR+2*j,2)} op_sel:[0,1] op_sel_hi:[1,1]")
        each(lambda a, c, j, p, x: f"v_pk_add_f32 {vr(x,2)}, {vr(x,2)}, 1.0 op_sel_hi:[1,0]")
        for q in range(8): e(f"v_rcp_f32 v{Xr+q}, v{Xr+q}")
        each(lambda a, c, j, p, x: f"v_pk_mul_f32 {vr(p,2)}, {vr(p,2)}, {vr(x,2)}")
        for q in range(4): e(f"v_cvt_pk_bf16_f32 v{out+q}, v{P+2*q}, v{P+2*q+1}")
    n = 0
    for j in range(4):
        for pr in range(3):
            o = 192 + 4*(n % 4); n += 1
            elem8([(2*pr, j), (2*pr+1, j)], o)
            e(f"buffer_store_dwordx4 {vr(o,4)}, v4, s[20:23], s{32+j} offen offset:{1024*pr}{' sc1' if j < K3WT else ''}")
        if j % 2 == 1:
            o = 192 + 4*(n % 4); n += 1
            elem8([(6, j-1), (6, j)], o)
            e(f"buffer_store_dwordx2 {vr(o,2)}, v5, s[20:23], s{32+j-1} offen")
            e(f"buffer_store_dwordx2 {vr(o+2,2)}, v5, s[20:23], s{32+j} offen")
    if STAMP:
        k.stamp(5)
        e("s_waitcnt vmcnt(0)")
        k.dump_stamps(1, 20, 10)
    e("s_endpgm")

    k.label("loader")
    e("s_sub_u32 s24, s10, 4")
    VH = 16
    VW = 20
    e("s_lshl_b32 s47, s24, 16")
    e("s_lshl_b32 s26, s13, 8")
    e("s_add_u32 s47, s47, s26")
    e(f"s_add_u32 s47, s47, 0x{HT:x}")
    e(f"s_mul_i32 s48, s24, {16*7168}")
    e("s_mul_i32 s27, s14, 448")
    e("s_add_u32 s48, s48, s27")
    e("s_mov_b32 s36, s14" if 'o' not in X else "s_mov_b32 s36, 0")
    e("s_mov_b32 s49, 0")
    e("s_lshl_b32 s25, s36, 18")
    e("s_add_u32 s25, s25, s47")
    e(f"s_mul_i32 s26, s36, {64*7168}")
    e("s_add_u32 s26, s26, s48")
    e("s_lshl_b32 s27, s24, 12")
    e("s_mul_i32 s28, s24, 7168")
    e(f"s_add_u32 s28, s28, {WOFF}")
    e("v_bfe_u32 v9, v0, 1, 3")
    e("v_and_b32 v10, 1, v0")
    e("v_lshlrev_b32 v10, 4, v10")
    e("v_lshl_add_u32 v10, v2, 12, v10")
    e("v_xor_b32 v9, v9, v2")
    for pp in range(4):
        if pp == 2: e("v_xor_b32 v9, 4, v9")
        e(f"v_lshl_add_u32 v{VH+pp}, v9, 5, v10")
        if pp: e(f"v_add_u32 v{VH+pp}, {pp*(16384-1024)}, v{VH+pp}")
    def wpat(q):
        e(f"v_add_u32 v9, {64*q}, v0")
        e("v_mul_u32_u24 v10, 9363, v9")
        e("v_lshrrev_b32 v10, 18, v10")
        e("v_mul_u32_u24 v11, 28, v10")
        e("v_sub_u32 v11, v9, v11")
        e("v_lshrrev_b32 v12, 2, v10")
        e("v_and_b32 v12, 2, v12")
        e("v_xor_b32 v11, v11, v12")
        e("v_mul_u32_u24 v12, 7168, v10")
        e("v_lshl_add_u32 v12, v11, 4, v12")
        e(f"v_add_u32 v{VW+q}, {-1024*(q%4)}, v12")
    wpat(0); wpat(1)
    e("s_mov_b32 m0, s27")
    e("s_waitcnt lgkmcnt(0)")
    k.srd(20, 8, 9, WS_BYTES)
    k.srd(16, 4, 5, 1024*3584*2)
    dma = (lambda s: None) if 'd' in X else e
    def advance():
        e("s_add_u32 s49, s49, 1")
        e("s_add_u32 s37, s36, 1")
        e("s_and_b32 s37, s37, 3")
        e("s_and_b32 s36, s36, 12")
        e("s_or_b32 s36, s36, s37")
        e("s_and_b32 s37, s49, 3")
        e("s_cmp_eq_u32 s37, 0")
        e("s_cselect_b32 s37, 4, 0")
        e("s_add_u32 s36, s36, s37")
        e("s_and_b32 s36, s36, 15")
        e("s_lshl_b32 s25, s36, 18")
        e("s_add_u32 s25, s25, s47")
        e(f"s_mul_i32 s26, s36, {64*7168}")
        e("s_add_u32 s26, s26, s48")
    for pp in range(4):
        dma(f"buffer_load_dwordx4 v{VH+pp}, s[20:23], s25 offen offset:{1024*pp} lds")
    e("s_mov_b32 m0, s28")
    e("s_nop 0")
    for q in range(7):
        if q >= 2: wpat(q)
        if q == 4: e("s_add_u32 m0, s28, 4096"); e("s_nop 0")
        dma(f"buffer_load_dwordx4 v{VW+q}, s[16:19], s26 offen offset:{1024*(q%4)}{NTW} lds")
    advance()
    e(f"s_mov_b32 s29, {STG}")
    def issue():
        e("s_add_u32 m0, s27, s29")
        e("s_add_u32 s30, s28, s29")
        for pp in range(4):
            dma(f"buffer_load_dwordx4 v{VH+pp}, s[20:23], s25 offen offset:{1024*pp} lds")
        e("s_mov_b32 m0, s30")
        e("s_nop 0")
        for q in range(4):
            dma(f"buffer_load_dwordx4 v{VW+q}, s[16:19], s26 offen offset:{1024*q}{NTW} lds")
        e("s_add_u32 m0, s30, 4096")
        e(f"s_add_u32 s29, s29, {STG}")
        for q in range(4, 7):
            dma(f"buffer_load_dwordx4 v{VW+q}, s[16:19], s26 offen offset:{1024*(q-4)}{NTW} lds")
        e(f"s_cmp_eq_u32 s29, {NBUF*STG}")
        e("s_cselect_b32 s29, 0, s29")
        advance()
    issue()
    k.stamp(1)
    e("s_waitcnt vmcnt(11)")
    k.stamp(2)
    e("s_barrier")
    CSR = 28
    e("s_mul_i32 s31, s14, 896")
    e("s_mul_i32 s32, s24, 224")
    e("s_add_u32 s31, s31, s32")
    e(f"s_add_u32 s31, s31, 0x{CS:x}")
    e("v_lshlrev_b32 v9, 2, v0")
    for p in range(NCS):
        e(f"s_add_u32 s32, s31, {p*3584*4}")
        e(f"buffer_load_dword v{CSR+p}, v9, s[20:23], s32 offen")
    issue()
    trcommon()
    e("s_lshl_b32 s31, s24, 1")
    e("v_xor_b32 v12, s31, v6")
    e("v_lshl_add_u32 v36, v12, 5, v8")
    e("v_xor_b32 v37, 32, v36")
    S = [40, 42]; Q = [44, 46]
    for r in range(40, 48): e(f"v_mov_b32 v{r}, 0")
    e("s_mov_b32 s33, 0xffff0000")
    D = 48; U = 64
    for t in range(2):
        for st in range(2):
            for h in range(2):
                e(f"ds_read_b64_tr_b16 {vr(D+8*t+4*st+2*h,2)}, v{36+t} offset:{8192*st+1024*h}")
    e("s_waitcnt lgkmcnt(0)")
    for j in range(8):
        for t in range(2):
            u = U + 2*t
            e(f"v_lshlrev_b32 v{u}, 16, v{D+8*t+j}")
            e(f"v_and_b32 v{u+1}, s33, v{D+8*t+j}")
        for t in range(2):
            u = U + 2*t
            for q in range(2):
                e(f"v_add_f32 v{S[t]+q}, v{S[t]+q}, v{u+q}")
                e(f"v_fmac_f32 v{Q[t]+q}, v{u+q}, v{u+q}")
    def greduce(regs):
        for op in ("v_permlane32_swap_b32", "v_permlane16_swap_b32"):
            for i, r in enumerate(regs): e(f"v_mov_b32 v{D+i}, v{r}")
            e("s_nop 1")
            for i, r in enumerate(regs): e(f"{op} v{r}, v{D+i}")
            e("s_nop 1")
            for i, r in enumerate(regs): e(f"v_add_f32 v{r}, v{r}, v{D+i}")
    for r in S + Q: e(f"v_add_f32 v{r}, v{r}, v{r+1}")
    greduce(S + Q)
    e("v_cmp_gt_u32 vcc, 16, v0")
    e("s_lshl_b32 s31, s13, 14")
    e("s_lshl_b32 s32, s24, 8")
    e("s_add_u32 s31, s31, s32")
    e(f"s_add_u32 s31, s31, 0x{SP:x}")
    e("s_lshl_b32 s32, s14, 10")
    e("s_add_u32 s32, s32, s31")
    e(f"v_cndmask_b32 v{U}, v{S[1]}, v{S[0]}, vcc")
    e(f"v_cndmask_b32 v{U+1}, v{Q[1]}, v{Q[0]}, vcc")
    e("v_lshlrev_b32 v9, 3, v0")
    e("s_mov_b64 exec, 0xffffffff")
    e(f"buffer_store_dwordx2 {vr(U,2)}, v9, s[20:23], s32 offen sc1")
    e("s_mov_b64 exec, -1")
    e("s_lshl_b32 s50, s2, 2")
    e("s_add_u32 s50, s50, s24")
    e(f"s_mul_i32 s50, s50, {56*128}")
    e("s_add_u32 s50, s6, s50")
    e("s_addc_u32 s51, s7, 0")
    e("s_mov_b32 s35, 0")
    k.label("lloop")
    e("s_cmp_eq_u32 s35, 0")
    e(f"s_cbranch_scc1 {k.L('lw20')}")
    e("s_cmp_eq_u32 s35, 1")
    e(f"s_cbranch_scc1 {k.L('lw12')}")
    e("s_waitcnt vmcnt(11)")
    k.label("lw12")
    e("s_waitcnt vmcnt(12)")
    k.label("lw20")
    e(f"s_waitcnt vmcnt({12+NCS})")
    e("s_barrier")
    e("s_cmp_ge_u32 s35, 13")
    e(f"s_cbranch_scc1 {k.L('ldone')}")
    issue()
    if 'W' in X:
        e("s_cmp_ge_u32 s35, 8")
        e(f"s_cbranch_scc1 {k.L('nowarm')}")
        for q in range(7*128//PFS):
            e(f"s_load_dword s52, s[50:51], {PFS*q}")
        e(f"s_add_u32 s50, s50, {7*128}")
        e("s_addc_u32 s51, s51, 0")
        k.label("nowarm")
    e("s_add_u32 s35, s35, 1")
    e(f"s_branch {k.L('lloop')}")
    k.label("ldone")
    k.stamp(3)
    e("v_and_b32 v10, 15, v0")
    e("v_lshlrev_b32 v9, 4, v10")
    e("v_lshl_add_u32 v9, v2, 10, v9")
    for q in range(1, 4): e(f"s_add_u32 s{43+q}, s31, {4096*q}")
    e("s_mov_b32 s39, 0")
    G = 48
    k.label("poll")
    for q in range(4):
        e(f"buffer_load_dwordx4 {vr(G+4*q,4)}, v9, s[20:23], s{31 if q == 0 else 43+q} offen sc1")
    e("s_add_u32 s39, s39, 1")
    e("s_cmp_gt_u32 s39, 0x100000")
    e(f"s_cbranch_scc1 {k.L('polled')}")
    e("s_waitcnt vmcnt(0)")
    e(f"v_max_u32 v64, v{G+1}, v{G+3}")
    for q in range(1, 4):
        e(f"v_max3_u32 v64, v{G+4*q+1}, v{G+4*q+3}, v64")
    e("v_cmp_eq_u32 vcc, -1, v64")
    e(f"s_cbranch_vccnz {k.L('poll')}")
    k.label("polled")
    e("s_waitcnt vmcnt(0)")
    for q in range(1, 4):
        for j in range(4):
            e(f"v_add_f32 v{40+j}, v{G+j if q == 1 else 40+j}, v{G+4*q+j}")
    greduce([40, 41, 42, 43])
    ln_stats(k, [40, 42], [41, 43], [56, 58], [57, 59], [60, 61])
    e("s_lshl_b32 s31, s24, 8")
    e(f"s_add_u32 s31, s31, {STATS}")
    e("v_lshl_add_u32 v9, v10, 4, s31")
    e("ds_write_b128 v9, v[56:59]")
    for p in range(1, NCS):
        e(f"v_add_f32 v{CSR}, v{CSR}, v{CSR+p}")
    e("s_mul_i32 s31, s24, 224")
    e(f"s_add_u32 s31, s31, {CSL}")
    e("v_lshl_add_u32 v9, v0, 2, s31")
    e("v_cmp_gt_u32 vcc, 56, v0")
    e("s_and_saveexec_b64 s[36:37], vcc")
    e(f"ds_write_b32 v9, v{CSR}")
    e("s_waitcnt lgkmcnt(0)")
    k.stamp(4)
    e("s_barrier")
    e("s_barrier")
    k.dump_stamps(1, 20, 10)
    k.label("end")
    e("s_endpgm")
    return k
```

```python
from asmlib import *
from layout import *
from k0 import ln_stats
import os
X = os.environ.get('MX', '')
RW = int(os.environ.get('K4RW', '4'))

STG1 = 45056; WOFF = 16384; NB1 = 3
STG2 = 32768; NB2 = 4; RES = NB2 * STG2; NST2 = 28
STATS = RES + 16384
CSL = STATS + 1024
MISC = CSL + 1024
NCS = 4

def weave(e, ms, fill, waits=None, mid=None, sched=None):
    fill = list(fill)
    for i, m in enumerate(ms):
        if mid and i == mid[0]:
            for t in mid[1]: e(t)
        if waits and i in waits: e(waits[i])
        e(m)
        for _ in range(sched[i] if i < len(sched) else 0):
            if fill: e(fill.pop(0))
    assert not fill, fill

def make_k34():
    k = Kern("mlp_kernel", 256, 512, MISC + 64, nvgpr=224)
    e = k.e
    e("s_cmp_ge_u32 s2, 256")
    e(f"s_cbranch_scc1 {k.L('end')}")
    k.clear_stamps()
    e("s_load_dwordx4 s[4:7], s[0:1], 56")
    e("s_load_dwordx2 s[8:9], s[0:1], 88")
    e("s_load_dwordx2 s[56:57], s[0:1], 72")
    e("v_lshrrev_b32 v1, 6, v0")
    e("v_and_b32 v0, 63, v0")
    e("v_readfirstlane_b32 s10, v1")
    e("s_and_b32 s11, s2, 7")
    e("s_lshr_b32 s12, s2, 3")
    e("s_lshr_b32 s13, s11, 1")
    e("s_lshl_b32 s13, s13, 2")
    e("s_and_b32 s14, s12, 3")
    e("s_add_u32 s13, s13, s14")
    e("s_and_b32 s15, s11, 1")
    e("s_lshr_b32 s53, s12, 2")
    e("s_lshl_b32 s14, s15, 3")
    e("s_add_u32 s14, s14, s53")
    e("v_lshrrev_b32 v2, 4, v0")
    e("s_cmp_ge_u32 s10, 4")
    e(f"s_cbranch_scc1 {k.L('loader')}")
    def trcommon():
        e("v_bfe_u32 v3, v0, 2, 2")
        e("v_and_b32 v4, 3, v0")
        e("v_and_b32 v5, 1, v2")
        e("v_lshl_or_b32 v6, v5, 2, v3")
        e("v_lshl_add_u32 v7, v2, 3, v3")
        e("v_lshlrev_b32 v8, 8, v7")
        e("v_lshl_add_u32 v8, v4, 3, v8")

    trcommon()
    ACC = 16; FW = [128, 172]; FH = [156, 200]
    AH = [1, 2, 3, 4]; AW = [9, 10, 11]
    e("s_and_b32 s24, s10, 1")
    e("s_lshr_b32 s25, s10, 1")
    e("v_mul_u32_u24 v12, 448, v7")
    e("v_lshl_add_u32 v12, v4, 3, v12")
    e(f"v_add_u32 v12, {WOFF}, v12")
    e("v_lshl_add_u32 v13, v5, 5, v12")
    e("v_xor_b32 v14, 1, v5")
    e("v_lshl_add_u32 v14, v14, 5, v12")
    e("s_lshl_b32 s26, s25, 8")
    e("v_add_u32 v9, s26, v13")
    e("v_add_u32 v10, s26, v14")
    e("s_cmp_eq_u32 s25, 0")
    e("s_cselect_b64 vcc, -1, 0")
    e("v_cndmask_b32 v11, v14, v13, vcc")
    e("v_add_u32 v11, 192, v11")
    e("v_mov_b32 v15, v2")
    e("s_lshl_b32 s26, s24, 2")
    for j in range(4):
        e(f"s_add_u32 s27, s26, {j}")
        e(f"v_xor_b32 v12, s27, v6")
        e(f"v_lshl_add_u32 v{AH[j]}, v12, 5, v8")
    for i in range(112):
        e(f"v_mov_b32 v{ACC+i}, 0")
    e("s_waitcnt lgkmcnt(0)")
    k.srd(20, 8, 9, WS_BYTES)
    k.srd(44, 56, 57, 4*MB)
    def reads1(st, step):
        r = []
        for j in range(4):
            for h in range(2):
                r.append(f"ds_read_b64_tr_b16 {vr(FH[st]+4*j+2*h,2)}, v{AH[j]} offset:{8192*step+1024*h}")
        for i in range(7):
            a, o = (AW[i % 2], 64*(i//2)) if i < 6 else (AW[2], 0)
            for h in range(2):
                r.append(f"ds_read_b64_tr_b16 {vr(FW[st]+4*i+2*h,2)}, v{a} offset:{14336*step+1792*h+o}")
        return r
    def mfmas1(st):
        return [f"v_mfma_f32_16x16x32_bf16 {vr(ACC+4*(4*i+j),4)}, {vr(FW[st]+4*i,4)}, {vr(FH[st]+4*j,4)}, {vr(ACC+4*(4*i+j),4)}"
                for i in range(7) for j in range(4)]
    e("s_mov_b32 s28, 0")
    e("s_mov_b32 s29, 0")
    e("s_barrier")
    k.stamp(1)
    for r in reads1(0, 0): e(r)
    k.label("c1loop")
    sal = ["s_add_u32 s29, s29, 1", f"s_mov_b32 s30, {STG1}", "s_cmp_eq_u32 s29, 3", f"s_cselect_b32 s30, {-2*STG1}, s30",
           "s_cselect_b32 s29, 0, s29", "s_add_u32 s28, s28, 1"]
    weave(e, mfmas1(0), reads1(1, 1) + sal, waits={4*i: f"s_waitcnt lgkmcnt({min(15, 12+2*i)})" for i in range(7)}, sched=[1]*28)
    weave(e, mfmas1(1), [f"v_add_u32 v{a}, s30, v{a}" for a in AH + AW] + reads1(0, 0) + ["s_cmp_lt_u32 s28, 16"],
          waits={0: "s_waitcnt lgkmcnt(12)"}, mid=(4, ["s_waitcnt lgkmcnt(0)", "s_barrier"]), sched=[0]*4 + [2]*6 + [1]*18)
    e(f"s_cbranch_scc1 {k.L('c1loop')}")
    k.stamp(2)
    e("v_and_b32 v1, 15, v0")
    e("s_lshl_b32 s26, s24, 9")
    e(f"s_add_u32 s26, s26, {STATS}")
    e("v_lshl_add_u32 v1, v1, 3, s26")
    e("s_lshl_b32 s26, s25, 9")
    e(f"s_add_u32 s26, s26, {CSL}")
    e("v_lshl_add_u32 v2, v15, 4, s26")
    e("s_mul_i32 s26, s25, 64")
    e(f"s_add_u32 s26, s26, {CSL+384}")
    e("v_lshl_add_u32 v3, v15, 4, s26")
    e(f"v_mov_b32 v6, {MISC}")
    e("s_waitcnt lgkmcnt(0)")
    MR = 128; C2 = 136; CSV = 144
    e("ds_read_b32 v7, v6 offset:4")
    for j in range(4):
        e(f"ds_read_b64 {vr(MR+2*j,2)}, v1 offset:{128*j}")
    for i in range(7):
        e(f"ds_read_b128 {vr(CSV+4*i,4)}, v{2 if i < 6 else 3} offset:{64*i if i < 6 else 0}")
    e("s_lshl_b32 s26, s25, 12")
    e("v_lshl_add_u32 v4, v0, 4, s26")
    e("s_lshl_b32 s26, s25, 3")
    e("s_add_u32 s26, s26, 3072")
    e("v_lshl_add_u32 v5, v0, 4, s26")
    e("s_lshl_b32 s26, s13, 3")
    e("s_lshl_b32 s27, s24, 2")
    e("s_add_u32 s26, s26, s27")
    e("s_mul_i32 s26, s26, 112")
    e("s_mul_i32 s27, s14, 7")
    e("s_add_u32 s26, s26, s27")
    e("s_lshl_b32 s26, s26, 10")
    e(f"s_add_u32 s32, s26, 0x{HM:x}")
    for j in range(1, 4):
        e(f"s_add_u32 s{32+j}, s32, {112*1024*j}")
    e("s_waitcnt lgkmcnt(0)")
    e("v_readfirstlane_b32 s54, v7")
    for j in range(4):
        e(f"v_mul_f32 v{C2+2*j}, 0xbfb8aa3b, v{MR+2*j+1}")
    e("s_cmp_eq_u32 s54, 1")
    nsite = [0]
    def store2(ops):
        n = nsite[0]; nsite[0] += 1
        e(f"s_cbranch_scc1 {k.L(f'pl{n}')}")
        for o in ops: e(o + " sc1")
        e(f"s_branch {k.L(f'st{n}')}")
        k.label(f"pl{n}")
        for o in ops: e(o)
        k.label(f"st{n}")
    T = 172
    def elem8(tiles, out):
        P = T; Xr = T + 8
        def each(f):
            for n, (i, j) in enumerate(tiles):
                for h in range(2):
                    e(f(ACC + 4*(4*i+j) + 2*h, CSV + 4*i + 2*h, j, P + 4*n + 2*h, Xr + 4*n + 2*h))
        each(lambda a, c, j, p, x: f"v_pk_fma_f32 {vr(a,2)}, {vr(c,2)}, {vr(MR+2*j,2)}, {vr(a,2)} op_sel_hi:[1,0,1] neg_lo:[0,1,0] neg_hi:[0,1,0]")
        each(lambda a, c, j, p, x: f"v_pk_mul_f32 {vr(x,2)}, {vr(a,2)}, {vr(C2+2*j,2)} op_sel_hi:[1,0]")
        for q in range(8): e(f"v_exp_f32 v{Xr+q}, v{Xr+q}")
        each(lambda a, c, j, p, x: f"v_pk_mul_f32 {vr(p,2)}, {vr(a,2)}, {vr(MR+2*j,2)} op_sel:[0,1] op_sel_hi:[1,1]")
        each(lambda a, c, j, p, x: f"v_pk_add_f32 {vr(x,2)}, {vr(x,2)}, 1.0 op_sel_hi:[1,0]")
        for q in range(8): e(f"v_rcp_f32 v{Xr+q}, v{Xr+q}")
        each(lambda a, c, j, p, x: f"v_pk_mul_f32 {vr(p,2)}, {vr(p,2)}, {vr(x,2)}")
        for q in range(4): e(f"v_cvt_pk_bf16_f32 v{out+q}, v{P+2*q}, v{P+2*q+1}")
    n = 0
    for j in range(4):
        for pr in range(3):
            o = 192 + 4*(n % 4); n += 1
            elem8([(2*pr, j), (2*pr+1, j)], o)
            store2([f"buffer_store_dwordx4 {vr(o,4)}, v4, s[20:23], s{32+j} offen offset:{1024*pr}"])
        if j % 2 == 1:
            o = 192 + 4*(n % 4); n += 1
            elem8([(6, j-1), (6, j)], o)
            store2([f"buffer_store_dwordx2 {vr(o,2)}, v5, s[20:23], s{32+j-1} offen",
                    f"buffer_store_dwordx2 {vr(o+2,2)}, v5, s[20:23], s{32+j} offen"])
    k.stamp(3)

    NS = 4
    F0 = ACC + 64
    GW = [F0, F0 + 32]; GH = [F0 + 16, F0 + 48]
    BW = [8, 9, 10, 11]; BH = 12
    e("v_mov_b32 v2, v15")
    e("v_bfe_u32 v3, v0, 2, 2")
    e("v_and_b32 v4, 3, v0")
    e("v_lshl_add_u32 v7, v2, 2, v3")
    e("v_and_b32 v5, 7, v7")
    e("v_lshlrev_b32 v13, 8, v7")
    e("v_lshl_add_u32 v13, v4, 3, v13")
    e(f"v_add_u32 v13, {WOFF}, v13")
    e("s_lshl_b32 s26, s25, 2")
    for i in range(4):
        e(f"s_add_u32 s27, s26, {i}")
        e(f"v_xor_b32 v14, s27, v5")
        e(f"v_lshl_add_u32 v{BW[i]}, v14, 5, v13")
    e("s_lshl_b32 s26, s24, 12")
    e(f"v_lshl_add_u32 v{BH}, v0, 4, s26")
    for i in range(64):
        e(f"v_mov_b32 v{ACC+i}, 0")
    e("v_mov_b32 v13, 1")
    e("s_lshl_b32 s26, s2, 7")
    e(f"s_add_u32 s26, s26, 0x{HFL:x}")
    e("v_mov_b32 v14, 0")
    e("s_waitcnt vmcnt(0)")
    e("s_mov_b64 exec, 1")
    e("ds_add_rtn_u32 v1, v6, v13")
    e("s_waitcnt lgkmcnt(0)")
    e("v_readfirstlane_b32 s27, v1")
    e("s_cmp_eq_u32 s27, 3")
    e(f"s_cbranch_scc0 {k.L('noflag')}")
    e("s_cmp_eq_u32 s54, 1")
    store2(["buffer_store_dword v13, v14, s[20:23], s26 offen"])
    k.label("noflag")
    e("s_mov_b64 exec, -1")
    e("v_bfe_u32 v6, v7, 1, 2")
    def hoff(j): return 2048*(j % 2) + 8192*(j // 2)
    def reads2(st, step):
        r = []
        for j in range(NS):
            r.append(f"ds_read_b128 {vr(GH[st]+4*j,4)}, v{BH} offset:{hoff(j)+1024*step}")
        for i in range(4):
            for h in range(2):
                r.append(f"ds_read_b64_tr_b16 {vr(GW[st]+4*i+2*h,2)}, v{BW[i]} offset:{8192*step+4096*h}")
        return r
    def mfmas2(st):
        return [f"v_mfma_f32_16x16x32_bf16 {vr(ACC+4*(NS*i+j),4)}, {vr(GW[st]+4*i,4)}, {vr(GH[st]+4*j,4)}, {vr(ACC+4*(NS*i+j),4)}"
                for i in range(4) for j in range(NS)]
    e("s_mov_b32 s28, 0")
    e("s_mov_b32 s29, 0")
    e("s_barrier")
    k.stamp(4)
    for r in reads2(0, 0): e(r)
    k.label("c2loop")
    sal = ["s_add_u32 s29, s29, 1", f"s_mov_b32 s30, {STG2}", f"s_cmp_eq_u32 s29, {NB2}", f"s_cselect_b32 s30, {-(NB2-1)*STG2}, s30",
           "s_cselect_b32 s29, 0, s29", "s_add_u32 s28, s28, 1"]
    weave(e, mfmas2(0), reads2(1, 1) + sal,
          waits={0: "s_waitcnt lgkmcnt(6)", 4: "s_waitcnt lgkmcnt(12)", 8: "s_waitcnt lgkmcnt(14)", 12: "s_waitcnt lgkmcnt(12)"},
          sched=[2]*6 + [1]*6)
    weave(e, mfmas2(1), [f"v_add_u32 v{a}, s30, v{a}" for a in [BH] + BW] + reads2(0, 0) + [f"s_cmp_lt_u32 s28, {NST2}"],
          waits={0: "s_waitcnt lgkmcnt(6)"}, mid=(4, ["s_waitcnt lgkmcnt(0)", "s_barrier"]), sched=[0]*4 + [2]*6 + [1]*6)
    e(f"s_cbranch_scc1 {k.L('c2loop')}")
    k.stamp(5)
    T = F0
    e("s_lshl_b32 s26, s2, 2")
    e("s_add_u32 s26, s26, s10")
    e("s_xor_b32 s27, s26, 4")
    e("s_lshl_b32 s31, s26, 13")
    e(f"s_add_u32 s31, s31, 0x{PART:x}")
    e("s_lshl_b32 s32, s27, 13")
    e(f"s_add_u32 s32, s32, 0x{PART:x}")
    e("s_add_u32 s33, s31, 4096")
    e("s_add_u32 s34, s32, 4096")
    e("s_lshl_b32 s35, s26, 7")
    e(f"s_add_u32 s35, s35, 0x{FLG:x}")
    e("s_lshl_b32 s36, s27, 7")
    e(f"s_add_u32 s36, s36, 0x{FLG:x}")
    e("v_lshlrev_b32 v14, 4, v0")
    e("s_cmp_eq_u32 s15, 0")
    e(f"s_cbranch_scc1 {k.L('send_hi')}")
    for own in (1, 0):
        if own == 0: k.label("send_hi")
        for i in range(4):
            for jj in range(2):
                j = 2*(1-own) + jj
                n = 2*i + jj
                e(f"buffer_store_dwordx4 {vr(ACC+4*(NS*i+j),4)}, v14, s[20:23], s{31 if n < 4 else 33} offen offset:{1024*(n%4)} sc1")
        if own == 1:
            e("s_nop 1")
            for i in range(4):
                for q in range(8):
                    e(f"v_mov_b32 v{ACC+4*NS*i+q}, v{ACC+4*NS*i+8+q}")
            e(f"s_branch {k.L('sent')}")
    k.label("sent")
    e("v_lshlrev_b32 v13, 7, v7")
    e("v_lshl_add_u32 v13, v4, 3, v13")
    e("s_lshl_b32 s26, s25, 13")
    e(f"s_add_u32 s26, s26, {RES}")
    e("v_add_u32 v13, s26, v13")
    e("s_lshl_b32 s26, s24, 1")
    for j in range(2):
        e(f"s_add_u32 s27, s26, {j}")
        e(f"v_xor_b32 v15, s27, v6")
        e(f"v_lshl_add_u32 v{8+j}, v15, 5, v13")
    e("s_waitcnt lgkmcnt(0)")
    HR = T
    for i in range(4):
        for j in range(2):
            e(f"ds_read_b64_tr_b16 {vr(HR+2*(2*i+j),2)}, v{8+j} offset:{2048*i}")
    e("v_and_b32 v10, 15, v0")
    e("v_lshrrev_b32 v11, 1, v2")
    e("v_and_b32 v12, 7, v10")
    e("v_xor_b32 v11, v11, v12")
    e("v_lshlrev_b32 v11, 4, v11")
    e("v_lshl_add_u32 v11, v10, 7, v11")
    e("v_and_b32 v12, 1, v2")
    e("v_lshl_add_u32 v11, v12, 3, v11")
    e("s_lshl_b32 s26, s10, 12")
    e("v_add_u32 v3, s26, v11")
    e("v_xor_b32 v4, 32, v3")
    e("v_xor_b32 v5, 64, v3")
    e("v_xor_b32 v6, 96, v3")
    e("v_lshrrev_b32 v10, 3, v0")
    e("v_and_b32 v11, 7, v0")
    e("v_xor_b32 v12, v11, v10")
    e("v_lshlrev_b32 v12, 4, v12")
    e("v_lshl_add_u32 v12, v10, 7, v12")
    e("v_add_u32 v7, s26, v12")
    e("v_lshlrev_b32 v10, 11, v10")
    e("v_lshl_add_u32 v10, v11, 4, v10")
    e("s_lshl_b32 s26, s13, 7")
    e("s_lshl_b32 s27, s24, 5")
    e("s_add_u32 s26, s26, s27")
    e("s_lshl_b32 s27, s15, 6")
    e("s_add_u32 s26, s26, s27")
    e("s_lshl_b32 s26, s26, 11")
    e("s_lshl_b32 s27, s53, 8")
    e("s_add_u32 s26, s26, s27")
    e("s_lshl_b32 s27, s25, 7")
    e("s_add_u32 s48, s26, s27")
    for q in range(1, 4):
        e(f"s_add_u32 s{48+q}, s48, {q*8*2048}")
    PR = T + 16; U = PR + 32
    e("s_mov_b32 s37, 0xffff0000")
    e("s_waitcnt lgkmcnt(0)")
    for i in range(4):
        for j in range(2):
            n = 2*i + j; a = ACC + 4*(NS*i + j); u = U + 4*(n % 2)
            e(f"v_lshlrev_b32 v{u}, 16, v{HR+2*n}")
            e(f"v_and_b32 v{u+1}, s37, v{HR+2*n}")
            e(f"v_lshlrev_b32 v{u+2}, 16, v{HR+2*n+1}")
            e(f"v_and_b32 v{u+3}, s37, v{HR+2*n+1}")
            for h in range(2):
                e(f"v_pk_add_f32 {vr(a+2*h,2)}, {vr(a+2*h,2)}, {vr(u+2*h,2)}")
    e("v_mov_b32 v15, 0")
    e("v_mov_b32 v13, 1")
    e("s_waitcnt vmcnt(0)")
    e("s_mov_b64 exec, 1")
    e("buffer_store_dword v13, v15, s[20:23], s35 offen sc1")
    e("s_mov_b32 s38, 0")
    k.label("poll")
    e("buffer_load_dword v13, v15, s[20:23], s36 offen sc1")
    e("s_add_u32 s38, s38, 1")
    e("s_cmp_gt_u32 s38, 0x200000")
    e(f"s_cbranch_scc1 {k.L('polled')}")
    e("s_waitcnt vmcnt(0)")
    e("v_readfirstlane_b32 s39, v13")
    e("s_cmp_eq_u32 s39, 1")
    e(f"s_cbranch_scc0 {k.L('poll')}")
    k.label("polled")
    k.stamp(6)
    e("s_mov_b64 exec, -1")
    for n in range(8):
        e(f"buffer_load_dwordx4 {vr(PR+4*n,4)}, v14, s[20:23], s{32 if n < 4 else 34} offen offset:{1024*(n%4)} sc1")
    for i in range(4):
        for j in range(2):
            n = 2*i + j; a = ACC + 4*(NS*i + j)
            e(f"s_waitcnt vmcnt({7-n})")
            for h in range(2):
                e(f"v_pk_add_f32 {vr(a+2*h,2)}, {vr(a+2*h,2)}, {vr(PR+4*n+2*h,2)}")
            e(f"v_cvt_pk_bf16_f32 v{HR+2*n}, v{a}, v{a+1}")
            e(f"v_cvt_pk_bf16_f32 v{HR+2*n+1}, v{a+2}, v{a+3}")
            e(f"ds_write_b64 v{3+i}, {vr(HR+2*n,2)} offset:{2048*j}")
    e("s_waitcnt lgkmcnt(0)")
    for q in range(4):
        e(f"ds_read_b128 {vr(PR+4*q,4)}, v7 offset:{1024*q}")
    for q in range(4):
        e(f"s_waitcnt lgkmcnt({3-q})")
        e(f"buffer_store_dwordx4 {vr(PR+4*q,4)}, v10, s[44:47], s{48+q} offen")
    if STAMP:
        e("s_waitcnt vmcnt(0)")
        k.dump_stamps(1, 20, 10)
    e("s_endpgm")

    k.label("loader")
    e("s_sub_u32 s24, s10, 4")
    VH = 16; VW = 20
    e("s_lshl_b32 s47, s24, 16")
    e("s_lshl_b32 s26, s13, 8")
    e("s_add_u32 s47, s47, s26")
    e(f"s_add_u32 s47, s47, 0x{HT:x}")
    e(f"s_mul_i32 s48, s24, {16*7168}")
    e("s_mul_i32 s27, s14, 448")
    e("s_add_u32 s48, s48, s27")
    e("s_mov_b32 s36, s14")
    e("s_mov_b32 s49, 0")
    e("s_lshl_b32 s25, s36, 18")
    e("s_add_u32 s25, s25, s47")
    e(f"s_mul_i32 s26, s36, {64*7168}")
    e("s_add_u32 s26, s26, s48")
    e("s_lshl_b32 s27, s24, 12")
    e("s_mul_i32 s28, s24, 7168")
    e(f"s_add_u32 s28, s28, {WOFF}")
    e("v_bfe_u32 v9, v0, 1, 3")
    e("v_and_b32 v10, 1, v0")
    e("v_lshlrev_b32 v10, 4, v10")
    e("v_lshl_add_u32 v10, v2, 12, v10")
    e("v_xor_b32 v9, v9, v2")
    for pp in range(4):
        if pp == 2: e("v_xor_b32 v9, 4, v9")
        e(f"v_lshl_add_u32 v{VH+pp}, v9, 5, v10")
        if pp: e(f"v_add_u32 v{VH+pp}, {pp*(16384-1024)}, v{VH+pp}")
    def wpat(q):
        e(f"v_add_u32 v9, {64*q}, v0")
        e("v_mul_u32_u24 v10, 9363, v9")
        e("v_lshrrev_b32 v10, 18, v10")
        e("v_mul_u32_u24 v11, 28, v10")
        e("v_sub_u32 v11, v9, v11")
        e("v_lshrrev_b32 v12, 2, v10")
        e("v_and_b32 v12, 2, v12")
        e("v_xor_b32 v11, v11, v12")
        e("v_mul_u32_u24 v12, 7168, v10")
        e("v_lshl_add_u32 v12, v11, 4, v12")
        e(f"v_add_u32 v{VW+q}, {-1024*(q%4)}, v12")
    wpat(0); wpat(1)
    e("s_mov_b32 m0, s27")
    e("s_waitcnt lgkmcnt(0)")
    k.srd(20, 8, 9, WS_BYTES)
    k.srd(16, 4, 5, 1024*3584*2)
    def advance():
        e("s_add_u32 s49, s49, 1")
        e("s_add_u32 s37, s36, 1")
        e("s_and_b32 s37, s37, 3")
        e("s_and_b32 s36, s36, 12")
        e("s_or_b32 s36, s36, s37")
        e("s_and_b32 s37, s49, 3")
        e("s_cmp_eq_u32 s37, 0")
        e("s_cselect_b32 s37, 4, 0")
        e("s_add_u32 s36, s36, s37")
        e("s_and_b32 s36, s36, 15")
        e("s_lshl_b32 s25, s36, 18")
        e("s_add_u32 s25, s25, s47")
        e(f"s_mul_i32 s26, s36, {64*7168}")
        e("s_add_u32 s26, s26, s48")
    for pp in range(4):
        e(f"buffer_load_dwordx4 v{VH+pp}, s[20:23], s25 offen offset:{1024*pp} lds")
    e("s_mov_b32 m0, s28")
    e("s_nop 0")
    for q in range(7):
        if q >= 2: wpat(q)
        if q == 4: e("s_add_u32 m0, s28, 4096"); e("s_nop 0")
        e(f"buffer_load_dwordx4 v{VW+q}, s[16:19], s26 offen offset:{1024*(q%4)} lds")
    advance()
    e(f"s_mov_b32 s29, {STG1}")
    def issue1():
        e("s_add_u32 m0, s27, s29")
        e("s_add_u32 s30, s28, s29")
        for pp in range(4):
            e(f"buffer_load_dwordx4 v{VH+pp}, s[20:23], s25 offen offset:{1024*pp} lds")
        e("s_mov_b32 m0, s30")
        e("s_nop 0")
        for q in range(4):
            e(f"buffer_load_dwordx4 v{VW+q}, s[16:19], s26 offen offset:{1024*q} lds")
        e("s_add_u32 m0, s30, 4096")
        e(f"s_add_u32 s29, s29, {STG1}")
        for q in range(4, 7):
            e(f"buffer_load_dwordx4 v{VW+q}, s[16:19], s26 offen offset:{1024*(q-4)} lds")
        e(f"s_cmp_eq_u32 s29, {NB1*STG1}")
        e("s_cselect_b32 s29, 0, s29")
        advance()
    issue1()
    e("s_waitcnt vmcnt(11)")
    e("s_barrier")
    k.stamp(1)
    CSR = 28
    e("s_mul_i32 s31, s14, 896")
    e("s_mul_i32 s32, s24, 224")
    e("s_add_u32 s31, s31, s32")
    e(f"s_add_u32 s31, s31, 0x{CS:x}")
    e("v_lshlrev_b32 v9, 2, v0")
    for p in range(NCS):
        e(f"s_add_u32 s32, s31, {p*3584*4}")
        e(f"buffer_load_dword v{CSR+p}, v9, s[20:23], s32 offen")
    issue1()
    trcommon()
    e("s_lshl_b32 s31, s24, 1")
    e("v_xor_b32 v12, s31, v6")
    e("v_lshl_add_u32 v36, v12, 5, v8")
    e("v_xor_b32 v37, 32, v36")
    S = [40, 42]; Q = [44, 46]
    for r in range(40, 48): e(f"v_mov_b32 v{r}, 0")
    e("s_mov_b32 s33, 0xffff0000")
    D = 48; U = 64
    for t in range(2):
        for st in range(2):
            for h in range(2):
                e(f"ds_read_b64_tr_b16 {vr(D+8*t+4*st+2*h,2)}, v{36+t} offset:{8192*st+1024*h}")
    e("s_waitcnt lgkmcnt(0)")
    for j in range(8):
        for t in range(2):
            u = U + 2*t
            e(f"v_lshlrev_b32 v{u}, 16, v{D+8*t+j}")
            e(f"v_and_b32 v{u+1}, s33, v{D+8*t+j}")
        for t in range(2):
            u = U + 2*t
            for q in range(2):
                e(f"v_add_f32 v{S[t]+q}, v{S[t]+q}, v{u+q}")
                e(f"v_fmac_f32 v{Q[t]+q}, v{u+q}, v{u+q}")
    def greduce(regs):
        for op in ("v_permlane32_swap_b32", "v_permlane16_swap_b32"):
            for i, r in enumerate(regs): e(f"v_mov_b32 v{D+i}, v{r}")
            e("s_nop 1")
            for i, r in enumerate(regs): e(f"{op} v{r}, v{D+i}")
            e("s_nop 1")
            for i, r in enumerate(regs): e(f"v_add_f32 v{r}, v{r}, v{D+i}")
    for r in S + Q: e(f"v_add_f32 v{r}, v{r}, v{r+1}")
    greduce(S + Q)
    e("v_cmp_gt_u32 vcc, 16, v0")
    e("s_lshl_b32 s31, s13, 14")
    e("s_lshl_b32 s32, s24, 8")
    e("s_add_u32 s31, s31, s32")
    e(f"s_add_u32 s31, s31, 0x{SP:x}")
    e("s_lshl_b32 s32, s14, 10")
    e("s_add_u32 s32, s32, s31")
    e(f"v_cndmask_b32 v{U}, v{S[1]}, v{S[0]}, vcc")
    e(f"v_cndmask_b32 v{U+1}, v{Q[1]}, v{Q[0]}, vcc")
    e("v_lshlrev_b32 v9, 3, v0")
    e("s_getreg_b32 s55, hwreg(HW_REG_XCC_ID, 0, 4)")
    e("s_add_u32 s55, s55, 1")
    if 'f' in X: e("s_add_u32 s55, s55, s2")
    e("v_mov_b32 v38, s55")
    e("v_mov_b32 v39, 0")
    e("s_lshl_b32 s34, s2, 7")
    e(f"s_add_u32 s34, s34, 0x{XID:x}")
    e("s_mov_b64 exec, 0xffffffff")
    e(f"buffer_store_dwordx2 {vr(U,2)}, v9, s[20:23], s32 offen sc1")
    e("s_mov_b64 exec, 1")
    e("buffer_store_dword v38, v39, s[20:23], s34 offen sc1")
    e("s_mov_b64 exec, -1")
    e("s_mov_b32 s35, 0")
    k.label("l1loop")
    e("s_cmp_eq_u32 s35, 0")
    e(f"s_cbranch_scc1 {k.L('lw20')}")
    e("s_cmp_eq_u32 s35, 1")
    e(f"s_cbranch_scc1 {k.L('lw12')}")
    e("s_waitcnt vmcnt(11)")
    k.label("lw12")
    e("s_waitcnt vmcnt(13)")
    k.label("lw20")
    e(f"s_waitcnt vmcnt({13+NCS})")
    e("s_barrier")
    e("s_cmp_ge_u32 s35, 13")
    e(f"s_cbranch_scc1 {k.L('l1done')}")
    issue1()
    e("s_add_u32 s35, s35, 1")
    e(f"s_branch {k.L('l1loop')}")
    k.label("l1done")
    k.stamp(2)
    e("v_and_b32 v10, 15, v0")
    e("v_lshlrev_b32 v9, 4, v10")
    e("v_lshl_add_u32 v9, v2, 10, v9")
    for q in range(1, 4): e(f"s_add_u32 s{43+q}, s31, {4096*q}")
    e("v_and_b32 v11, 7, v0")
    e("v_lshlrev_b32 v11, 12, v11")
    e("s_and_b32 s34, s2, 31")
    e("s_lshl_b32 s34, s34, 7")
    e(f"s_add_u32 s50, s34, 0x{XID:x}")
    e(f"s_add_u32 s51, s34, 0x{HFL:x}")
    e("s_mov_b32 s39, 0")
    G = 48
    k.label("spoll")
    for q in range(4):
        e(f"buffer_load_dwordx4 {vr(G+4*q,4)}, v9, s[20:23], s{31 if q == 0 else 43+q} offen sc1")
    e("buffer_load_dword v65, v11, s[20:23], s50 offen sc1")
    e("s_add_u32 s39, s39, 1")
    e("s_cmp_gt_u32 s39, 0x100000")
    e(f"s_cbranch_scc1 {k.L('spolled')}")
    e("s_waitcnt vmcnt(0)")
    e("v_add_u32 v66, -1, v65")
    e(f"v_max3_u32 v64, v{G+1}, v{G+3}, v66")
    for q in range(1, 4):
        e(f"v_max3_u32 v64, v{G+4*q+1}, v{G+4*q+3}, v64")
    e("v_cmp_eq_u32 vcc, -1, v64")
    e(f"s_cbranch_vccnz {k.L('spoll')}")
    k.label("spolled")
    e("s_waitcnt vmcnt(0)")
    e("v_cmp_ne_u32 vcc, s55, v65")
    for q in range(1, 4):
        for j in range(4):
            e(f"v_add_f32 v{40+j}, v{G+j if q == 1 else 40+j}, v{G+4*q+j}")
    e("s_cmp_eq_u64 vcc, 0")
    e("s_cselect_b32 s54, 1, 2")
    greduce([40, 41, 42, 43])
    ln_stats(k, [40, 42], [41, 43], [56, 58], [57, 59], [60, 61])
    e("s_lshl_b32 s31, s24, 8")
    e(f"s_add_u32 s31, s31, {STATS}")
    e("v_lshl_add_u32 v9, v10, 4, s31")
    e("ds_write_b128 v9, v[56:59]")
    e(f"v_mov_b32 v9, {MISC}")
    e("v_mov_b32 v62, 0")
    e("v_mov_b32 v63, s54")
    e("ds_write_b64 v9, v[62:63]")
    for p in range(1, NCS):
        e(f"v_add_f32 v{CSR}, v{CSR}, v{CSR+p}")
    e("s_mul_i32 s31, s24, 224")
    e(f"s_add_u32 s31, s31, {CSL}")
    e("v_lshl_add_u32 v9, v0, 2, s31")
    e("v_cmp_gt_u32 vcc, 56, v0")
    e("s_and_saveexec_b64 s[36:37], vcc")
    e(f"ds_write_b32 v9, v{CSR}")
    e("s_mov_b64 exec, -1")
    e("s_waitcnt lgkmcnt(0)")
    e("s_barrier")
    VA = 16; VW2 = 18; VR = 22
    e(f"v_lshlrev_b32 v{VA}, 4, v0")
    e(f"v_add_u32 v{VA+1}, {112*1024-2048}, v{VA}")
    e("v_bfe_u32 v9, v0, 1, 3")
    e("v_and_b32 v10, 1, v0")
    e("v_lshlrev_b32 v10, 4, v10")
    e("v_lshl_add_u32 v10, v2, 11, v10")
    e("v_xor_b32 v9, v9, v2")
    e("v_xor_b32 v12, 4, v9")
    for pp in range(4):
        e(f"v_lshl_add_u32 v{VW2+pp}, v{9 if pp % 2 == 0 else 12}, 5, v10")
        if pp: e(f"v_add_u32 v{VW2+pp}, {pp*(8192-1024)}, v{VW2+pp}")
    e("v_bfe_u32 v9, v0, 1, 2")
    e("v_xor_b32 v9, v9, v2")
    e("v_and_b32 v10, 1, v0")
    e("v_lshlrev_b32 v10, 4, v10")
    e("v_lshl_add_u32 v10, v9, 5, v10")
    e("v_lshrrev_b32 v9, 3, v0")
    e(f"v_lshl_add_u32 v{VR}, v9, 12, v10")
    for pp in range(1, 4):
        e(f"v_add_u32 v{VR+pp}, {pp*(32768-1024)}, v{VR}")
    k.srd(40, 6, 7, 1024*3584*2)
    e("s_lshl_b32 s47, s13, 3")
    e("s_lshl_b32 s26, s24, 1")
    e("s_add_u32 s47, s47, s26")
    e("s_mul_i32 s47, s47, 112")
    e("s_mul_i32 s26, s15, 56")
    e("s_add_u32 s47, s47, s26")
    e("s_lshl_b32 s47, s47, 10")
    e(f"s_add_u32 s47, s47, 0x{HM:x}")
    e("s_mul_i32 s48, s15, 1792")
    e("s_lshl_b32 s27, s24, 4")
    e("s_add_u32 s48, s48, s27")
    e("s_lshl_b32 s48, s48, 11")
    e("s_lshl_b32 s27, s53, 8")
    e("s_add_u32 s48, s48, s27")
    e("s_add_u32 s36, s13, s53")
    e(f"s_and_b32 s36, s36, {RW-1}")
    e("s_lshl_b32 s27, s24, 12")
    e(f"s_add_u32 s28, s27, {WOFF}")
    assert RW == NB2 or RW == 1
    def st_of(n):
        e(f"s_add_u32 s37, s36, {n}")
        if RW > 1: e(f"s_and_b32 s37, s37, {RW-1}")
    e("s_barrier")
    k.stamp(3)
    for n in range(NB2):
        st_of(n)
        e("s_lshl_b32 s26, s37, 17")
        e("s_add_u32 s26, s26, s48")
        e(f"s_add_u32 m0, s28, {n*STG2}")
        e("s_nop 0")
        for pp in range(4):
            e(f"buffer_load_dwordx4 v{VW2+pp}, s[40:43], s26 offen offset:{1024*pp} lds")
    e("s_lshl_b32 s31, s53, 7")
    e("s_lshl_b32 s32, s24, 5")
    e("s_add_u32 s31, s31, s32")
    e("s_lshl_b32 s31, s31, 12")
    e("s_lshl_b32 s32, s13, 8")
    e("s_add_u32 s31, s31, s32")
    e("s_lshl_b32 s32, s15, 7")
    e("s_add_u32 s31, s31, s32")
    e(f"s_add_u32 s31, s31, 0x{HT:x}")
    e(f"s_add_u32 m0, s27, {RES}")
    e("s_nop 0")
    for pp in range(4):
        e(f"buffer_load_dwordx4 v{VR+pp}, s[20:23], s31 offen offset:{1024*pp} lds")
    e("s_mov_b32 s39, 0")
    k.label("hpoll")
    e("s_sleep 2")
    e("buffer_load_dword v65, v11, s[20:23], s51 offen sc1")
    e("s_add_u32 s39, s39, 1")
    e("s_cmp_gt_u32 s39, 0x100000")
    e(f"s_cbranch_scc1 {k.L('hpolled')}")
    e("s_waitcnt vmcnt(0)")
    e("v_cmp_ne_u32 vcc, 1, v65")
    e(f"s_cbranch_vccnz {k.L('hpoll')}")
    k.label("hpolled")
    k.stamp(4)
    for n in range(NB2):
        st_of(n)
        e("s_lshl_b32 s25, s37, 11")
        e("s_add_u32 s25, s25, s47")
        e(f"s_add_u32 m0, s27, {n*STG2}")
        e("s_nop 0")
        for pp in range(4):
            e(f"buffer_load_dwordx4 v{VA+pp//2}, s[20:23], s25 offen offset:{1024*pp} sc1 lds")
        if n == 1:
            e("s_waitcnt vmcnt(4)")
            e("s_barrier")
    e("s_mov_b32 s29, 0")
    e(f"s_mov_b32 s35, {NB2}")
    def issue2():
        e("s_add_u32 s37, s36, s35")
        if RW > 1:
            e(f"s_and_b32 s37, s37, {RW-1}")
            e(f"s_andn2_b32 s38, s35, {RW-1}")
            e("s_or_b32 s37, s37, s38")
        e("s_lshl_b32 s25, s37, 11")
        e("s_add_u32 s25, s25, s47")
        e("s_lshl_b32 s26, s37, 17")
        e("s_add_u32 m0, s27, s29")
        e("s_add_u32 s26, s26, s48")
        for pp in range(4):
            e(f"buffer_load_dwordx4 v{VA+pp//2}, s[20:23], s25 offen offset:{1024*pp} sc1 lds")
        e("s_add_u32 m0, s28, s29")
        e(f"s_add_u32 s29, s29, {STG2}")
        for pp in range(4):
            e(f"buffer_load_dwordx4 v{VW2+pp}, s[40:43], s26 offen offset:{1024*pp} lds")
        e(f"s_and_b32 s29, s29, {NB2*STG2-1}")
        e("s_add_u32 s35, s35, 1")
    e("s_waitcnt vmcnt(8)")
    e("s_barrier")
    issue2()
    e("s_waitcnt vmcnt(12)")
    e("s_barrier")
    issue2()
    k.label("l2loop")
    e("s_waitcnt vmcnt(16)")
    e("s_barrier")
    issue2()
    e(f"s_cmp_lt_u32 s35, {NST2}")
    e(f"s_cbranch_scc1 {k.L('l2loop')}")
    for i in range(NST2-NB2, NST2):
        left = max(NST2 - 1 - (i + 1), 0)
        e(f"s_waitcnt vmcnt({left*8})")
        e("s_barrier")
    k.dump_stamps(1, 20, 10)
    k.label("end")
    e("s_endpgm")
    return k
```

```python
from asmlib import *
from layout import *
import os
X = os.environ.get('K4X', '')
RW = int(os.environ.get('K4RW', '4'))
RMUL = int(os.environ.get('K4RMUL', '1'))

def make_k4(SPLIT=None):
    SPLIT = SPLIT or int(os.environ.get("K4_SPLIT", "2"))
    TN = 64 * SPLIT
    NS = 2 * SPLIT
    NSTG = 56 // SPLIT
    WOFF = 16384
    STG = WOFF + TN * 128
    NBUF = 5 if SPLIT == 1 else 4
    RES = NBUF * STG
    PW = 2 * SPLIT
    PP = 4 + PW
    k = Kern("gemm2_kernel", 256, 512, RES + 16384, nvgpr=160)
    e = k.e
    e("s_cmp_ge_u32 s2, 256")
    e(f"s_cbranch_scc1 {k.L('end')}")
    k.clear_stamps()
    e("s_load_dwordx4 s[4:7], s[0:1], 64")
    e("s_load_dwordx2 s[8:9], s[0:1], 88")
    e("v_lshrrev_b32 v1, 6, v0")
    e("v_and_b32 v0, 63, v0")
    e("v_readfirstlane_b32 s10, v1")
    e("s_and_b32 s11, s2, 7")
    e("s_lshr_b32 s12, s2, 3")
    if SPLIT == 1:
        e("s_and_b32 s13, s11, 3")
        e("s_lshl_b32 s13, s13, 2")
        e("s_and_b32 s14, s12, 3")
        e("s_add_u32 s13, s13, s14")
        e("s_lshr_b32 s14, s11, 2")
        e("s_lshl_b32 s14, s14, 3")
        e("s_lshr_b32 s15, s12, 2")
        e("s_add_u32 s14, s14, s15")
        e("s_mov_b32 s15, 0")
    else:
        e("s_lshr_b32 s13, s11, 1")
        e("s_lshl_b32 s13, s13, 2")
        e("s_and_b32 s14, s12, 3")
        e("s_add_u32 s13, s13, s14")
        e("s_lshr_b32 s14, s12, 2")
        e("s_and_b32 s15, s11, 1")
    e("v_lshrrev_b32 v2, 4, v0")
    e("v_bfe_u32 v3, v0, 2, 2")
    e("v_and_b32 v4, 3, v0")
    e("v_lshl_add_u32 v7, v2, 2, v3")
    e("v_and_b32 v5, 7, v7")
    e("v_bfe_u32 v6, v7, 1, 2")
    e("s_waitcnt lgkmcnt(0)")
    k.srd(16, 4, 5, 1024*3584*2)
    k.srd(20, 8, 9, WS_BYTES)
    k.srd(40, 6, 7, 4*MB)
    e("s_cmp_ge_u32 s10, 4")
    e(f"s_cbranch_scc1 {k.L('loader')}")

    ACC = 16
    F0 = ACC + 16*NS
    FW = [F0, F0 + 16 + 4*NS]
    FH = [F0 + 16, F0 + 32 + 4*NS]
    AW = [8, 9, 10, 11]; AHr = 12
    wsh, wsg = (7, 6) if SPLIT == 1 else (8, 5)
    e(f"v_lshlrev_b32 v13, {wsh}, v7")
    e("v_lshl_add_u32 v13, v4, 3, v13")
    e(f"v_add_u32 v13, {WOFF}, v13")
    if SPLIT == 1:
        e("s_mov_b32 s25, 0")
        e("s_mov_b32 s24, s10")
    else:
        e("s_and_b32 s24, s10, 1")
        e("s_lshr_b32 s25, s10, 1")
    e("s_lshl_b32 s26, s25, 2")
    for i in range(4):
        e(f"s_add_u32 s27, s26, {i}")
        e(f"v_xor_b32 v14, s27, v{wsg}")
        e(f"v_lshl_add_u32 v{AW[i]}, v14, 5, v13")
    e("s_lshl_b32 s26, s24, 12")
    e(f"v_lshl_add_u32 v{AHr}, v0, 4, s26")
    for i in range(16*NS):
        e(f"v_mov_b32 v{ACC+i}, 0")
    def hoff(j):
        return 2048*j if SPLIT == 1 else 2048*(j % 2) + 8192*(j // 2)
    def reads(st, step):
        r = []
        for j in range(NS):
            r.append(f"ds_read_b128 {vr(FH[st]+4*j,4)}, v{AHr} offset:{hoff(j)+1024*step}")
        for i in range(4):
            for h in range(2):
                r.append(f"ds_read_b64_tr_b16 {vr(FW[st]+4*i+2*h,2)}, v{AW[i]} offset:{(TN*64)*step+(TN*32)*h}")
        if 'r' in X: r = ["s_nop 0" for _ in r]
        return r
    def mfmas(st):
        if 'm' in X: return ["s_nop 0"] * (4*NS)
        return [f"v_mfma_f32_16x16x32_bf16 {vr(ACC+4*(NS*i+j),4)}, {vr(FW[st]+4*i,4)}, {vr(FH[st]+4*j,4)}, {vr(ACC+4*(NS*i+j),4)}"
                for i in range(4) for j in range(NS)]
    def weave(ms, rd, per):
        for i, m in enumerate(ms):
            e(m)
            for _ in range(per):
                if rd: e(rd.pop(0))
        assert not rd
    e("s_mov_b32 s28, 0")
    e("s_mov_b32 s29, 0")
    k.stamp(1)
    e("s_barrier")
    k.stamp(2)
    for r in reads(0, 0): e(r)
    k.label("cloop")
    e("s_add_u32 s29, s29, 1")
    e(f"s_mov_b32 s30, {STG}")
    e(f"s_cmp_eq_u32 s29, {NBUF}")
    e(f"s_cselect_b32 s30, {-(NBUF-1)*STG}, s30")
    e("s_cselect_b32 s29, 0, s29")
    e("s_waitcnt lgkmcnt(0)")
    weave(mfmas(0), reads(1, 1), 2)
    e("s_waitcnt lgkmcnt(0)")
    e("s_barrier")
    e("s_add_u32 s28, s28, 1")
    e(f"s_cmp_lt_u32 s28, {NSTG}")
    weave(mfmas(1), [f"v_add_u32 v{a}, s30, v{a}" for a in [AHr] + AW] + reads(0, 0), 3 if SPLIT == 1 else 2)
    e(f"s_cbranch_scc1 {k.L('cloop')}")
    k.stamp(3)
    T = F0
    if SPLIT == 2:
        e("s_lshl_b32 s26, s2, 2")
        e("s_add_u32 s26, s26, s10")
        e("s_xor_b32 s27, s26, 4")
        e("s_lshl_b32 s31, s26, 13")
        e(f"s_add_u32 s31, s31, 0x{PART:x}")
        e("s_lshl_b32 s32, s27, 13")
        e(f"s_add_u32 s32, s32, 0x{PART:x}")
        e("s_add_u32 s33, s31, 4096")
        e("s_add_u32 s34, s32, 4096")
        e("s_lshl_b32 s35, s26, 7")
        e(f"s_add_u32 s35, s35, 0x{FLG:x}")
        e("s_lshl_b32 s36, s27, 7")
        e(f"s_add_u32 s36, s36, 0x{FLG:x}")
        e("v_lshlrev_b32 v14, 4, v0")
        e("s_cmp_eq_u32 s15, 0")
        e(f"s_cbranch_scc1 {k.L('send_hi')}")
        for own in (1, 0):
            if own == 0: k.label("send_hi")
            for i in range(4):
                for jj in range(2):
                    j = 2*(1-own) + jj
                    n = 2*i + jj
                    e(f"buffer_store_dwordx4 {vr(ACC+4*(NS*i+j),4)}, v14, s[20:23], s{31 if n < 4 else 33} offen offset:{1024*(n%4)} sc1")
            if own == 1:
                e("s_nop 1")
                for i in range(4):
                    for q in range(8):
                        e(f"v_mov_b32 v{ACC+4*NS*i+q}, v{ACC+4*NS*i+8+q}")
                e(f"s_branch {k.L('sent')}")
        k.label("sent")
    rsh, rsg = (8, 5) if SPLIT == 1 else (7, 6)
    e(f"v_lshlrev_b32 v13, {rsh}, v7")
    e("v_lshl_add_u32 v13, v4, 3, v13")
    if SPLIT == 1:
        e(f"v_add_u32 v13, {RES}, v13")
    else:
        e("s_lshl_b32 s26, s25, 13")
        e(f"s_add_u32 s26, s26, {RES}")
        e("v_add_u32 v13, s26, v13")
    e("s_lshl_b32 s26, s24, 1")
    for j in range(2):
        e(f"s_add_u32 s27, s26, {j}")
        e(f"v_xor_b32 v15, s27, v{rsg}")
        e(f"v_lshl_add_u32 v{8+j}, v15, 5, v13")
    e("s_waitcnt lgkmcnt(0)")
    HR = T
    for i in range(4):
        for j in range(2):
            e(f"ds_read_b64_tr_b16 {vr(HR+2*(2*i+j),2)}, v{8+j} offset:{(16 << rsh)*i}")
    e("v_and_b32 v10, 15, v0")
    e("v_lshrrev_b32 v11, 1, v2")
    e("v_and_b32 v12, 7, v10")
    e("v_xor_b32 v11, v11, v12")
    e("v_lshlrev_b32 v11, 4, v11")
    e("v_lshl_add_u32 v11, v10, 7, v11")
    e("v_and_b32 v12, 1, v2")
    e("v_lshl_add_u32 v11, v12, 3, v11")
    e("s_lshl_b32 s26, s10, 12")
    e("v_add_u32 v3, s26, v11")
    e("v_xor_b32 v4, 32, v3")
    e("v_xor_b32 v5, 64, v3")
    e("v_xor_b32 v6, 96, v3")
    e("v_lshrrev_b32 v10, 3, v0")
    e("v_and_b32 v11, 7, v0")
    e("v_xor_b32 v12, v11, v10")
    e("v_lshlrev_b32 v12, 4, v12")
    e("v_lshl_add_u32 v12, v10, 7, v12")
    e("v_add_u32 v7, s26, v12")
    e("v_lshlrev_b32 v10, 11, v10")
    e("v_lshl_add_u32 v10, v11, 4, v10")
    e("s_lshl_b32 s26, s13, 7")
    e("s_lshl_b32 s27, s24, 5")
    e("s_add_u32 s26, s26, s27")
    e("s_lshl_b32 s27, s15, 6")
    e("s_add_u32 s26, s26, s27")
    e("s_lshl_b32 s26, s26, 11")
    e(f"s_mul_i32 s27, s14, {TN*2}")
    e("s_add_u32 s26, s26, s27")
    e("s_lshl_b32 s27, s25, 7")
    e("s_add_u32 s44, s26, s27")
    for q in range(1, 4):
        e(f"s_add_u32 s{44+q}, s44, {q*8*2048}")
    PR = T + 16
    if SPLIT == 2:
        e("v_mov_b32 v15, 0")
        e("v_mov_b32 v13, 1")
        e("s_waitcnt vmcnt(0)")
        k.stamp(4)
        e("s_mov_b64 s[38:39], exec")
        e("s_mov_b64 exec, 1")
        e("buffer_store_dword v13, v15, s[20:23], s35 offen sc1")
        e("s_mov_b32 s48, 0")
        k.label("poll")
        e("buffer_load_dword v13, v15, s[20:23], s36 offen sc1")
        e("s_add_u32 s48, s48, 1")
        e("s_cmp_gt_u32 s48, 0x200000")
        e(f"s_cbranch_scc1 {k.L('polled')}")
        e("s_waitcnt vmcnt(0)")
        e("v_readfirstlane_b32 s37, v13")
        e("s_cmp_eq_u32 s37, 1")
        e(f"s_cbranch_scc0 {k.L('poll')}")
        k.label("polled")
        k.stamp(5)
        e("s_mov_b64 exec, s[38:39]")
        for n in range(8):
            e(f"buffer_load_dwordx4 {vr(PR+4*n,4)}, v14, s[20:23], s{32 if n < 4 else 34} offen offset:{1024*(n%4)} sc1")
    e("s_mov_b32 s37, 0xffff0000")
    e("s_waitcnt lgkmcnt(0)")
    U = PR + 32
    for i in range(4):
        for j in range(2):
            n = 2*i + j; a = ACC + 4*(NS*i + j); u = U + 4*(n % 2)
            e(f"v_lshlrev_b32 v{u}, 16, v{HR+2*n}")
            e(f"v_and_b32 v{u+1}, s37, v{HR+2*n}")
            e(f"v_lshlrev_b32 v{u+2}, 16, v{HR+2*n+1}")
            e(f"v_and_b32 v{u+3}, s37, v{HR+2*n+1}")
            for h in range(2):
                e(f"v_pk_add_f32 {vr(a+2*h,2)}, {vr(a+2*h,2)}, {vr(u+2*h,2)}")
    for i in range(4):
        for j in range(2):
            n = 2*i + j; a = ACC + 4*(NS*i + j)
            if SPLIT == 2:
                e(f"s_waitcnt vmcnt({7-n})")
                for h in range(2):
                    e(f"v_pk_add_f32 {vr(a+2*h,2)}, {vr(a+2*h,2)}, {vr(PR+4*n+2*h,2)}")
            e(f"v_cvt_pk_bf16_f32 v{HR+2*n}, v{a}, v{a+1}")
            e(f"v_cvt_pk_bf16_f32 v{HR+2*n+1}, v{a+2}, v{a+3}")
            e(f"ds_write_b64 v{3+i}, {vr(HR+2*n,2)} offset:{2048*j}")
    e("s_waitcnt lgkmcnt(0)")
    for q in range(4):
        e(f"ds_read_b128 {vr(PR+4*q,4)}, v7 offset:{1024*q}")
    for q in range(4):
        e(f"s_waitcnt lgkmcnt({3-q})")
        e(f"buffer_store_dwordx4 {vr(PR+4*q,4)}, v10, s[40:43], s{44+q} offen")
    if STAMP:
        k.stamp(6)
        e("s_waitcnt vmcnt(0)")
        k.dump_stamps(2, 20, 10)
    e("s_endpgm")

    k.label("loader")
    e("s_sub_u32 s24, s10, 4")
    VA = 16; VW = 18; VR = 22
    e(f"v_lshlrev_b32 v{VA}, 4, v0")
    e(f"v_add_u32 v{VA+1}, {112*1024-2048}, v{VA}")
    def pat256(dst, stride_sh, n):
        e("v_bfe_u32 v9, v0, 1, 3")
        e("v_and_b32 v10, 1, v0")
        e("v_lshlrev_b32 v10, 4, v10")
        e(f"v_lshl_add_u32 v10, v2, {stride_sh}, v10")
        e("v_xor_b32 v9, v9, v2")
        e("v_xor_b32 v11, 4, v9")
        for pp in range(n):
            e(f"v_lshl_add_u32 v{dst+pp}, v{9 if pp % 2 == 0 else 11}, 5, v10")
            if pp: e(f"v_add_u32 v{dst+pp}, {pp*((4 << stride_sh)-1024)}, v{dst+pp}")
    def pat128(dst, stride_sh, n):
        e("v_bfe_u32 v9, v0, 1, 2")
        e("v_xor_b32 v9, v9, v2")
        e("v_and_b32 v10, 1, v0")
        e("v_lshlrev_b32 v10, 4, v10")
        e("v_lshl_add_u32 v10, v9, 5, v10")
        e("v_lshrrev_b32 v9, 3, v0")
        e(f"v_lshl_add_u32 v{dst}, v9, {stride_sh}, v10")
        for pp in range(1, n):
            e(f"v_add_u32 v{dst+pp}, {pp*((8 << stride_sh)-1024)}, v{dst}")
    if SPLIT == 1:
        pat128(VW, 11, 2); pat256(VR, 12, 4)
    else:
        pat256(VW, 11, 4); pat128(VR, 12, 4)
    e("s_lshl_b32 s25, s13, 3")
    e("s_lshl_b32 s26, s24, 1")
    e("s_add_u32 s25, s25, s26")
    e("s_mul_i32 s25, s25, 112")
    e("s_mul_i32 s26, s15, 56")
    e("s_add_u32 s25, s25, s26")
    e("s_lshl_b32 s25, s25, 10")
    e(f"s_add_u32 s25, s25, 0x{HM:x}")
    e("s_mul_i32 s26, s15, 1792")
    e("s_lshl_b32 s27, s24, 4")
    e("s_add_u32 s26, s26, s27")
    e("s_lshl_b32 s26, s26, 11")
    e(f"s_mul_i32 s27, s14, {TN*2}")
    e("s_add_u32 s26, s26, s27")
    e("s_mov_b32 s47, s25")
    e("s_mov_b32 s48, s26")
    e("s_and_b32 s36, s13, 3")
    e(f"s_mul_i32 s36, s36, {RMUL}")
    e("s_add_u32 s36, s36, s14")
    for _ in range((3*RMUL + 1024//TN - 1)//RW):
        e(f"s_cmp_ge_u32 s36, {RW}")
        e(f"s_cselect_b32 s37, {RW}, 0")
        e("s_sub_u32 s36, s36, s37")
    e("s_mov_b32 s49, 0")
    e("s_mov_b32 s50, 0")
    def setoffs():
        e("s_add_u32 s37, s50, s36")
        e("s_lshl_b32 s25, s37, 11")
        e("s_add_u32 s25, s25, s47")
        e("s_lshl_b32 s26, s37, 17")
        e("s_add_u32 s26, s26, s48")
    setoffs()
    e("s_lshl_b32 s27, s24, 12")
    e(f"s_mul_i32 s28, s24, {PW*1024}")
    e(f"s_add_u32 s28, s28, {WOFF}")
    e("s_mov_b32 s29, 0")
    def issue():
        if 'd' in X: return
        e("s_add_u32 m0, s27, s29")
        e("s_add_u32 s30, s28, s29")
        for pp in range(4):
            e(f"buffer_load_dwordx4 v{VA+pp//2}, s[20:23], s25 offen offset:{1024*pp} lds")
        e("s_mov_b32 m0, s30")
        e("s_add_u32 s36, s36, 1")
        for pp in range(PW):
            e(f"buffer_load_dwordx4 v{VW+pp}, s[16:19], s26 offen offset:{1024*pp}{' nt' if 'n' in X else ''} lds")
        e(f"s_add_u32 s29, s29, {STG}")
        e(f"s_cmp_eq_u32 s29, {NBUF*STG}")
        e("s_cselect_b32 s29, 0, s29")
        e(f"s_cmp_eq_u32 s36, {RW}")
        e("s_cselect_b32 s36, 0, s36")
        e("s_add_u32 s49, s49, 1")
        e(f"s_cmp_eq_u32 s49, {RW}")
        e("s_cselect_b32 s49, 0, s49")
        e(f"s_cselect_b32 s37, {RW}, 0")
        e("s_add_u32 s50, s50, s37")
        setoffs()
    issue()
    issue()
    k.stamp(1)
    e(f"s_waitcnt vmcnt({PP})")
    k.stamp(2)
    e("s_barrier")
    for _ in range(NBUF - 2): issue()
    e(f"s_mul_i32 s31, s14, {TN}")
    e(f"s_mul_i32 s32, s24, {TN//4}")
    e("s_add_u32 s31, s31, s32")
    e("s_lshl_b32 s31, s31, 12")
    e("s_lshl_b32 s32, s13, 8")
    e("s_add_u32 s31, s31, s32")
    e("s_lshl_b32 s32, s15, 7")
    e("s_add_u32 s31, s31, s32")
    e(f"s_add_u32 s31, s31, 0x{HT:x}")
    e(f"s_add_u32 m0, s27, {RES}")
    e("s_nop 0")
    for pp in range(4):
        e(f"buffer_load_dwordx4 v{VR+pp}, s[20:23], s31 offen offset:{1024*pp} lds")
    e(f"s_waitcnt vmcnt({(NBUF-2)*PP+4})")
    e("s_barrier")
    issue()
    e("s_mov_b32 s35, 1")
    k.label("lloop")
    e(f"s_waitcnt vmcnt({(NBUF-2)*PP})")
    e("s_barrier")
    issue()
    e("s_add_u32 s35, s35, 1")
    e(f"s_cmp_lt_u32 s35, {NSTG-NBUF}")
    e(f"s_cbranch_scc1 {k.L('lloop')}")
    for i in range(NSTG-NBUF, NSTG):
        left = max(NSTG - 1 - (i + 1), 0)
        e(f"s_waitcnt vmcnt({left*PP})")
        e("s_barrier")
    k.dump_stamps(2, 20, 10)
    k.label("end")
    e("s_endpgm")
    return k
```

```python
MB = 1 << 20
WS_BYTES = 256 * MB
UT = 0
XT = 4 * MB
HT = 8 * MB
MX = 12 * MB
RX = MX + 8192
CS = 12 * MB + 65536
HM = 16 * MB
PART = 32 * MB
FLG = 13 * MB
SP = 14 * MB
FU = 15 * MB
FX = FU + 32768
SG = FU + 65536
HFL = FLG + 0x20000
XID = FLG + 0x28000
FB_ = 0x20000
F2 = FU + 0x40000
FHT = FU + 0x48000
SP2 = 14 * MB
CP = 14 * MB + 0x80000
```

```python
import sys, os
from asmlib import *
import k0, k1, k01, k3, k4, k34
def nop_kernel():
    k = Kern("nop_kernel", 256, 256, 0, nvgpr=8, nsgpr=16)
    k.e("s_endpgm")
    return k
def main(out):
    ks = [k01.make_k01(), k34.make_k34()] if os.environ.get('SEP', '') == '' else [k01.make_k01(), k3.make_k3(), k4.make_k4()]
    order = list(ks)
    v = os.environ.get("VAR", "")
    if v.startswith("nop"):
        n = nop_kernel(); ks.append(n); order += [n] * int(v[3:])
    if v.startswith("pre"):
        n = nop_kernel(); ks.append(n); order = [n] * int(v[3:]) + order
    if v == "dup":
        order = [ks[0], ks[1], ks[1], ks[2], ks[2]]
    if v == "twice":
        order = order + order
    open(out, "w").write(build(ks, order))
if __name__ == "__main__":
    main(sys.argv[1] if len(sys.argv) > 1 else "sequential_preLN__ssm_conv_h3__dense_activation_silu__prompt.s")
```

```python
from asmlib import *
from layout import *
from k0 import ln_stats
import os
F = os.environ.get('K0X', 'wn')

KCP = 4160
REG = 4*KCP + 512 + 4096
TILE = 0
SKL = 32768
FLAG = SKL + 1024
REG0 = FLAG + 128
STAT = REG0 + 4*REG
TAG = 204

def make_k01():
    k = Kern("front_kernel", 256, 512, STAT + 16384, nvgpr=208)
    e = k.e
    e("s_cmp_ge_u32 s2, 256")
    e(f"s_cbranch_scc1 {k.L('end')}")
    k.clear_stamps()
    e("s_load_dwordx8 s[4:11], s[0:1], 0")
    e("s_load_dwordx4 s[52:55], s[0:1], 80")
    e("s_load_dwordx4 s[12:15], s[0:1], 32")
    e("s_load_dwordx4 s[56:59], s[0:1], 56")
    e("v_lshrrev_b32 v1, 6, v0")
    e("s_lshr_b32 s40, s2, 3")
    e("v_readfirstlane_b32 s60, v1")
    e("s_and_b32 s41, s2, 7")
    e("s_lshl_b32 s61, s41, 7")
    e("s_lshl_b32 s62, s40, 2")
    e("s_add_u32 s61, s61, s62")
    e("s_and_b32 s62, s60, 3")
    e("s_add_u32 s61, s61, s62")
    e(f"s_mul_i32 s63, s62, {REG}")
    e(f"s_add_u32 s63, s63, {REG0}")
    e("s_lshl_b32 s39, s41, 12")
    e("v_mov_b32 v207, 0")
    e("s_getreg_b32 s38, hwreg(HW_REG_XCC_ID, 0, 4)")
    if 'f' in F: e("s_add_u32 s38, s38, s40")
    e("v_mov_b32 v206, s38")
    e("s_cmp_ge_u32 s60, 4")
    e(f"s_cbranch_scc1 {k.L('bwave')}")
    e("s_barrier")

    def spin(off, cond, lab, sleep=0):
        if off is not None: e(f"v_mov_b32 v33, {off}")
        k.label(lab)
        if sleep: e(f"s_sleep {sleep}")
        e("ds_read_b32 v34, v33")
        e("s_waitcnt lgkmcnt(0)")
        e(cond)
        e(f"s_cbranch_vccnz {k.L(lab)}")
    def setflag(off):
        e(f"v_mov_b32 v200, {off}")
        e("v_mov_b32 v201, 1")
        e("ds_write_b32 v200, v201")
    def publish(cnt_off, base, lab, r=200):
        e(f"v_mov_b32 v{r}, {FLAG + cnt_off}")
        e(f"v_mov_b32 v{r+1}, 1")
        e("s_mov_b64 exec, 1")
        e(f"ds_add_rtn_u32 v{r+2}, v{r}, v{r+1}")
        e("s_waitcnt lgkmcnt(0)")
        e(f"v_readfirstlane_b32 s3, v{r+2}")
        e("s_cmp_eq_u32 s3, 3")
        e(f"s_cbranch_scc0 {k.L(lab)}")
        e("s_lshl_b32 s3, s40, 7")
        e(f"v_mov_b32 v{r}, s3")
        e(f"s_add_u32 s3, s39, 0x{base:x}")
        e(f"buffer_store_dwordx3 {vr(TAG,3)}, v{r}, s[32:35], s3 offen")
        e(f"s_add_u32 s3, s3, 0x{FB_:x}")
        e(f"buffer_store_dwordx3 {vr(TAG,3)}, v{r}, s[32:35], s3 offen sc1")
        k.label(lab)
        e("s_mov_b64 exec, -1")
    def poll(base, lab, dual=True):
        e("v_and_b32 v121, 31, v0")
        e("v_lshlrev_b32 v121, 7, v121")
        e(f"s_add_u32 s28, s39, 0x{base:x}")
        e(f"s_add_u32 s29, s39, 0x{base + FB_:x}")
        e("s_mov_b32 s3, 0")
        e("v_mov_b32 v122, 0")
        k.label(lab)
        e("buffer_load_dwordx3 v[116:118], v121, s[32:35], s28 offen sc1")
        e("s_add_u32 s3, s3, 1")
        if dual:
            e("s_and_b32 s26, s3, 3")
            e(f"s_cbranch_scc1 {k.L(lab + '_a')}")
            e("buffer_load_dwordx3 v[122:124], v121, s[32:35], s29 offen sc1")
            k.label(lab + "_a")
        e("s_cmp_gt_u32 s3, 0x100000")
        e(f"s_cbranch_scc1 {k.L(lab + '_x')}")
        e("s_waitcnt vmcnt(0)")
        e(f"v_cmp_ne_u64 vcc, v[116:117], {vr(TAG,2)}")
        if dual:
            e(f"v_cmp_ne_u64 s[24:25], v[122:123], {vr(TAG,2)}")
            e("s_nop 0")
            e("v_cndmask_b32 v118, v118, v124, vcc")
            e("s_and_b64 vcc, vcc, s[24:25]")
        e(f"s_cbranch_vccnz {k.L(lab)}")
        k.label(lab + "_x")
        e("s_waitcnt vmcnt(0)")
    def tagload():
        e(f"buffer_load_dwordx2 {vr(TAG,2)}, v207, s[44:47], 0 offen sc1")
    def tagcheck(lab):
        e("s_mov_b32 s3, 0")
        k.label(lab)
        e(f"v_cmp_eq_u32 vcc, 0, v{TAG}")
        e(f"s_cbranch_vccz {k.L(lab + '_x')}")
        tagload()
        e("s_waitcnt vmcnt(0)")
        e("s_add_u32 s3, s3, 1")
        e("s_cmp_lt_u32 s3, 0x100000")
        e(f"s_cbranch_scc1 {k.L(lab)}")
        k.label(lab + "_x")

    e("v_and_b32 v6, 15, v0")
    e("v_lshrrev_b32 v7, 4, v0")
    e("s_lshl_b32 s42, s40, 17")
    e("s_lshl_b32 s43, s41, 8")
    e("s_add_u32 s42, s42, s43")
    e("v_lshlrev_b32 v1, 13, v7")
    e("v_lshl_add_u32 v1, v6, 4, v1")
    e("v_add_u32 v1, s42, v1")
    e("v_add_u32 v2, 0x1000, v1")
    e("v_add_u32 v3, 0xffffe800, v1")
    e("v_add_u32 v4, 0xfffff000, v1")
    e("v_add_u32 v5, 0xfffff800, v1")
    e("s_lshl_b32 s48, s41, 10")
    e("v_and_b32 v9, 63, v0")
    e("v_lshlrev_b32 v9, 4, v9")
    e(f"s_mov_b32 m0, {SKL}")
    e("s_waitcnt lgkmcnt(0)")
    k.srd(20, 6, 7, 4*MB)
    k.srd(24, 8, 9, 4*MB)
    k.srd(28, 10, 11, 8192)
    KR = 12; VR = 40; XR = 56; SK = 72
    e("buffer_load_dwordx4 v9, s[28:31], s48 offen lds")
    for i in range(4):
        e(f"buffer_load_dwordx4 {vr(KR+12+4*i,4)}, v{1+i//2}, s[20:23], 0 offen offset:{2048*(i%2)} nt")
    for i in range(4):
        e(f"buffer_load_dwordx4 {vr(VR+4*i,4)}, v{1+i//2}, s[24:27], 0 offen offset:{2048*(i%2)} nt")
    e(f"buffer_load_dwordx4 {vr(KR,4)}, v3, s[20:23], 0 offen nt")
    e(f"buffer_load_dwordx4 {vr(KR+4,4)}, v4, s[20:23], 0 offen nt")
    e(f"buffer_load_dwordx4 {vr(KR+8,4)}, v5, s[20:23], 0 offen nt")
    k.srd(16, 4, 5, 4*MB)
    for i in range(4):
        e(f"buffer_load_dwordx4 {vr(XR+4*i,4)}, v{1+i//2}, s[16:19], 0 offen offset:{2048*(i%2)} nt")
    k.srd(44, 52, 53, 256)
    tagload()
    k.srd(32, 54, 55, WS_BYTES)
    e("s_and_b32 s3, s61, -2")
    e("s_lshl_b32 s3, s3, 1")
    e("s_load_dword s51, s[14:15], s3")
    e("v_and_b32 v10, 14, v6")
    e("v_xor_b32 v11, v10, v7")
    e("v_xor_b32 v10, 1, v11")
    e("v_lshlrev_b32 v8, 10, v6")
    e("v_lshl_add_u32 v10, v10, 3, v8")
    e("v_lshl_add_u32 v11, v11, 3, v8")
    e(f"v_lshlrev_b32 v8, 6, v6")
    e("s_mov_b32 s48, 0x05040100")
    e("s_mov_b32 s49, 0x07060302")
    e("s_mov_b32 s50, 0xffff0000")
    T = 104; KU = 112
    ACC = [2, 4, 8, 6]
    k.stamp(1)
    e("s_waitcnt vmcnt(16)")
    for q in range(4):
        e(f"ds_read_b128 {vr(SK+4*q,4)}, v8 offset:{SKL+16*q}")
    e("s_waitcnt vmcnt(5) lgkmcnt(0)")
    setflag(FLAG + 24)
    k.stamp(2)
    for jj in range(4):
        for c in range(2):
            d0 = SK + 4*jj + 2*c
            e(f"v_lshlrev_b32 v{T+0+c}, 16, v{d0}")
            e(f"v_and_b32 v{T+2+c}, s50, v{d0}")
            e(f"v_lshlrev_b32 v{T+4+c}, 16, v{d0+1}")
            e(f"v_and_b32 v{T+6+c}, s50, v{d0+1}")
        for r in range(7):
            e(f"v_lshlrev_b32 v{KU+2*r}, 16, v{KR+4*r+jj}")
            e(f"v_and_b32 v{KU+2*r+1}, s50, v{KR+4*r+jj}")
        for tap in (3, 2, 1, 0):
            for i in range(4):
                kk = KU + 2*(i+3-tap)
                if tap == 3:
                    e(f"v_pk_mul_f32 {vr(ACC[i],2)}, {vr(kk,2)}, {vr(T+2*tap,2)}")
                else:
                    e(f"v_pk_fma_f32 {vr(ACC[i],2)}, {vr(kk,2)}, {vr(T+2*tap,2)}, {vr(ACC[i],2)}")
        for i in range(4):
            e(f"v_lshlrev_b32 v{KU+2*i}, 16, v{VR+4*i+jj}")
            e(f"v_and_b32 v{KU+2*i+1}, s50, v{VR+4*i+jj}")
        for i in range(4):
            e(f"v_pk_mul_f32 {vr(ACC[i],2)}, {vr(ACC[i],2)}, {vr(KU+2*i,2)}")
        P = KU + 8
        for c in range(2):
            e(f"v_cvt_pk_bf16_f32 v{P+2*c}, v{ACC[3]+c}, v{ACC[2]+c}")
            e(f"v_cvt_pk_bf16_f32 v{P+2*c+1}, v{ACC[1]+c}, v{ACC[0]+c}")
        for c in range(2):
            e(f"ds_write_b64 v10, {vr(P+2*c,2)} offset:{128*(2*jj+c)}")
    e("s_waitcnt vmcnt(1)")
    for jj in range(4):
        for c in range(2):
            P = KR + 4*jj + 2*c
            sel = "s48" if c == 0 else "s49"
            e(f"v_perm_b32 v{P}, v{XR+4+jj}, v{XR+jj}, {sel}")
            e(f"v_perm_b32 v{P+1}, v{XR+12+jj}, v{XR+8+jj}, {sel}")
            e(f"ds_write_b64 v11, {vr(P,2)} offset:{16384+128*(2*jj+c)}")
    e("v_and_b32 v1, 7, v0")
    e("v_lshrrev_b32 v2, 7, v0")
    e("v_xor_b32 v2, v2, v1")
    e("v_lshrrev_b32 v3, 3, v0")
    e("v_lshlrev_b32 v4, 7, v3")
    e("v_lshl_add_u32 v4, v2, 4, v4")
    e("v_xor_b32 v5, 32, v4")
    e("v_xor_b32 v6, 64, v4")
    e("v_xor_b32 v7, 96, v4")
    e("v_lshlrev_b32 v3, 12, v3")
    e("v_lshl_add_u32 v37, v1, 4, v3")
    e(f"v_mov_b32 v33, {FLAG+12}")
    e("v_mov_b32 v34, 1")
    e("s_waitcnt lgkmcnt(0)")
    e("s_mov_b64 exec, 1")
    e("ds_add_u32 v33, v34")
    e("s_mov_b64 exec, -1")
    e("s_lshl_b32 s4, s41, 19")
    e("s_lshl_b32 s5, s40, 7")
    e("s_add_u32 s4, s4, s5")
    for i in range(8):
        e(f"s_add_u32 s{16+i}, s4, 0x{(i%4)*131072 + (XT if i >= 4 else UT):x}")
    k.stamp(3)
    spin(None, "v_cmp_gt_u32 vcc, 4, v34", "waitT")
    R = 40
    for i in range(8):
        e(f"ds_read_b128 {vr(R+4*i,4)}, v{4+i%4} offset:{TILE + 4096*(i%4) + (16384 if i >= 4 else 0)}")
    for i in range(4):
        e(f"s_waitcnt lgkmcnt({7-i})")
        e(f"buffer_store_dwordx4 {vr(R+4*i,4)}, v37, s[32:35], s{16+i} offen")
    e("v_and_b32 v0, 63, v0")
    e("v_and_b32 v5, 15, v0")
    e("v_lshrrev_b32 v6, 4, v0")
    e("s_lshl_b32 s12, s61, 12")
    e("v_lshlrev_b32 v7, 5, v5")
    e("v_lshl_add_u32 v7, v6, 3, v7")
    e(f"s_add_u32 s29, s12, 0x{HT:x}")
    e("v_sub_u32 v33, 7, v5")
    e("v_and_b32 v33, 3, v33")
    e(f"v_mul_u32_u24 v33, {KCP}, v33")
    e("v_lshrrev_b32 v34, 2, v5")
    e("v_lshl_add_u32 v33, v34, 3, v33")
    e("v_lshlrev_b32 v34, 4, v6")
    e("v_sub_u32 v33, v33, v34")
    e("s_add_u32 s30, s63, 24")
    e("v_add_u32 v1, s30, v33")
    e("v_lshlrev_b32 v33, 5, v5")
    e("v_add_u32 v33, v33, v34")
    e(f"s_add_u32 s30, s63, {4*KCP + 512 - 32*15}")
    e("v_add_u32 v3, s30, v33")
    AD = 192
    e("v_lshrrev_b32 v33, 3, v5")
    e("v_add_u32 v33, 2, v33")
    e("v_and_b32 v34, 7, v5")
    e("v_sub_u32 v34, 7, v34")
    e("v_cmp_eq_u32 vcc, v33, v6")
    e("v_lshrrev_b32 v35, 1, v34")
    e("v_and_b32 v34, 1, v34")
    e("v_cndmask_b32 v35, 9, v35, vcc")
    e("v_lshlrev_b32 v34, 4, v34")
    e("s_and_b32 s31, s61, 1")
    e("s_lshl_b32 s31, s31, 4")
    e("s_lshr_b32 s51, s51, s31")
    e("s_and_b32 s51, s51, 0xffff")
    e("v_mov_b32 v33, s51")
    e("v_lshlrev_b32 v34, v34, v33")
    for r in range(4):
        e(f"v_cmp_eq_u32 vcc, {r}, v35")
        e("s_nop 1")
        e(f"v_cndmask_b32 v{AD+r}, 0, v34, vcc")
    e("s_waitcnt vmcnt(0)")
    tagcheck("tagA")
    publish(0, FU, "pubU")
    k.stamp(4)
    for i in range(4, 8):
        e(f"buffer_store_dwordx4 {vr(R+4*i,4)}, v37, s[32:35], s{16+i} offen")
    FA = [64, 128]; FB = [96, 160]; AC = 8
    def reads(buf, ep):
        r = []
        for w in range(8):
            r.append(f"ds_read_b128 {vr(FB[buf]+4*w,4)}, v3 offset:{512*w + 32*(15-ep)}")
        for v in range(8):
            r.append(f"ds_read_b64 {vr(FA[buf]+4*v,2)}, v1 offset:{32*ep + 512*v}")
            r.append(f"ds_read_b64 {vr(FA[buf]+4*v+2,2)}, v1 offset:{32*ep + 512*v + 8}")
        return r
    def mfmas(buf):
        m = []
        for v in range(8):
            for w in range(8 - v):
                t = v + w
                m.append(f"v_mfma_f32_16x16x32_bf16 {vr(AC+4*t,4)}, {vr(FA[buf]+4*v,4)}, {vr(FB[buf]+4*w,4)}, {vr(AC+4*t,4)}")
        return m
    e("s_waitcnt vmcnt(0)")
    publish(4, FX, "pubX")
    e("s_lshl_b32 s3, s60, 2")
    e(f"s_add_u32 s3, s3, {FLAG+32}")
    e("v_mov_b32 v33, s3")
    spin(None, "v_cmp_eq_u32 vcc, 0, v34", "waitK")
    rd = reads(0, 1)
    for r in rd[8:]: e(r)
    spin(FLAG + 28, "v_cmp_eq_u32 vcc, 0, v34", "waitU")
    k.stamp(5)
    for r in rd[:8]: e(r)
    for t in range(8):
        e(f"s_waitcnt lgkmcnt({7-t})")
        e(f"v_mfma_f32_16x16x32_bf16 {vr(AC+4*t,4)}, {vr(AD,4)}, {vr(FB[0]+4*t,4)}, 0")
    e("s_mov_b32 s26, 0")
    k.label("loop")
    for buf, nxt in ((0, 3), (1, 5)):
        e("s_waitcnt lgkmcnt(0)")
        rd = reads(1 - buf, nxt)
        for i, m in enumerate(mfmas(buf)):
            e(m)
            if i < len(rd): e(rd[i])
    e("v_add_u32 v1, 128, v1")
    e("v_add_u32 v3, -128, v3")
    e("s_add_u32 s26, s26, 1")
    e("s_cmp_lt_u32 s26, 4")
    e(f"s_cbranch_scc1 {k.L('loop')}")
    e("v_lshlrev_b32 v1, 6, v5")
    e("v_lshl_add_u32 v1, v6, 4, v1")
    e(f"v_add_u32 v1, {STAT}, v1")
    e("s_lshl_b32 s26, s60, 12")
    e("v_add_u32 v2, s26, v7")
    e(f"v_mov_b32 v3, {FLAG+16}")
    k.stamp(6)
    k.label("spoll")
    e("ds_read_b64 v[64:65], v3")
    e("s_waitcnt lgkmcnt(0)")
    e("v_and_b32 v64, v64, v65")
    e("v_cmp_eq_u32 vcc, 0, v64")
    e(f"s_cbranch_vccnz {k.L('spoll')}")
    MS = 64; RS = 96; XV = 176
    for t in range(8):
        e(f"ds_read_b64 {vr(XV+2*t,2)}, v2 offset:{TILE+512*t}")
    for t in range(3):
        e(f"ds_read_b128 {vr(MS+4*t,4)}, v1 offset:{1024*t}")
        e(f"ds_read_b128 {vr(RS+4*t,4)}, v1 offset:{1024*t+8192}")
    e("s_waitcnt lgkmcnt(6)")
    for t in range(8):
        if t + 3 < 8:
            e(f"ds_read_b128 {vr(MS+4*(t+3),4)}, v1 offset:{1024*(t+3)}")
            e(f"ds_read_b128 {vr(RS+4*(t+3),4)}, v1 offset:{1024*(t+3)+8192}")
        xu = 128 + 8*(t % 2); q = xu + 4
        e(f"v_lshlrev_b32 v{xu}, 16, v{XV+2*t}")
        e(f"v_and_b32 v{xu+1}, s50, v{XV+2*t}")
        e(f"v_lshlrev_b32 v{xu+2}, 16, v{XV+2*t+1}")
        e(f"v_and_b32 v{xu+3}, s50, v{XV+2*t+1}")
        e(f"s_waitcnt lgkmcnt({2*min(3, 7-t)})")
        for h in range(2):
            e(f"v_pk_add_f32 {vr(q+2*h,2)}, {vr(xu+2*h,2)}, {vr(MS+4*t+2*h,2)} neg_lo:[0,1] neg_hi:[0,1]")
        for h in range(2):
            e(f"v_pk_mul_f32 {vr(q+2*h,2)}, {vr(q+2*h,2)}, {vr(RS+4*t+2*h,2)}")
        for h in range(2):
            e(f"v_pk_fma_f32 {vr(q+2*h,2)}, {vr(q+2*h,2)}, {vr(AC+4*t+2*h,2)}, {vr(xu+2*h,2)}")
        e(f"v_cvt_pk_bf16_f32 v{XV+2*t}, v{q}, v{q+1}")
        e(f"v_cvt_pk_bf16_f32 v{XV+2*t+1}, v{q+2}, v{q+3}")
        e(f"buffer_store_dwordx2 {vr(XV+2*t,2)}, v7, s[32:35], s29 offen offset:{512*t} sc1")
    if STAMP:
        e("s_waitcnt vmcnt(0)")
        k.dump_stamps(0, 32, 60)
    e("s_endpgm")

    k.label("bwave")
    e("s_setprio 3")
    e("v_and_b32 v0, 63, v0")
    e("v_lshlrev_b32 v2, 4, v0")
    e("v_mov_b32 v36, 0"); e("v_mov_b32 v37, 0"); e("v_mov_b32 v38, 0"); e("v_mov_b32 v39, 0")
    e("v_min_u32 v33, 32, v2")
    e(f"v_add_u32 v33, {FLAG}, v33")
    e("ds_write_b128 v33, v[36:39]")
    e("s_memrealtime s[48:49]")
    e("s_waitcnt lgkmcnt(0)")
    e("s_barrier")
    k.srd(44, 52, 53, 256)
    e("s_or_b32 s48, s48, 1")
    e("s_add_u32 s3, s2, s62")
    e("s_cmp_eq_u32 s3, 0")
    e(f"s_cbranch_scc0 {k.L('notag')}")
    e("v_mov_b32 v40, s48"); e("v_mov_b32 v41, s49")
    e("s_mov_b64 exec, 1")
    e("buffer_store_dwordx2 v[40:41], v207, s[44:47], 0 offen sc1")
    e("s_mov_b64 exec, -1")
    k.label("notag")
    e("s_setprio 0")
    e("v_add_u32 v3, -8, v2")
    e("v_add_u32 v4, 1016, v2")
    e("s_lshl_b32 s42, s61, 12")
    e("s_add_u32 s20, s12, s42")
    e("s_addc_u32 s21, s13, 0")
    e("s_and_b32 s21, s21, 0xffff")
    e("s_mov_b32 s22, 4096")
    e("s_mov_b32 s23, 0x20000")
    k.srd(16, 4, 5, 4*MB)
    k.srd(32, 54, 55, WS_BYTES)
    e("s_lshl_b32 s43, s2, 14")
    e("s_lshl_b32 s3, s62, 12")
    e("s_add_u32 s43, s43, s3")
    e("v_bfe_u32 v32, v0, 1, 2")
    e(f"v_mul_u32_u24 v32, {KCP}, v32")
    e("v_and_b32 v33, 1, v0")
    e("v_lshl_add_u32 v32, v33, 4, v32")
    e(f"v_add_u32 v33, {4*KCP}, v2")
    e("v_cmp_gt_u32 vcc, 32, v0")
    e("s_nop 1")
    e("v_cndmask_b32 v32, v32, v33, vcc")
    e("v_add_u32 v32, s63, v32")
    e("ds_write_b128 v32, v[36:39]")
    if 'e' not in F:
        spin(FLAG + 24, "v_cmp_eq_u32 vcc, 0, v34", "waitL", sleep=1)
    k.stamp(1)
    Y = 8; W = 24; ST = 88
    for i in range(4):
        e(f"buffer_load_dwordx4 {vr(Y+4*i,4)}, v2, s[20:23], 0 offen offset:{1024*i} nt")
        if i == 0: e(f"buffer_load_dwordx2 {vr(W,2)}, v3, s[20:23], 0 offen nt")
        else:      e(f"buffer_load_dwordx2 {vr(W+2*i,2)}, v4, s[20:23], 0 offen offset:{1024*(i-1)} nt")
    for i in range(4):
        e(f"buffer_load_dwordx4 {vr(ST+4*i,4)}, v2, s[16:19], s43 offen offset:{1024*i} nt")
    tagload()
    e("s_add_u32 s30, s63, 32")
    e("v_add_u32 v4, s30, v2")
    for i in range(4):
        e(f"s_waitcnt vmcnt({5 + 2*(3-i)})")
        y = Y + 4*i; w = W + 2*i
        X = 44 + 12*(i % 2); P1 = X + 4; P3 = X + 8
        e(f"ds_write_b128 v4, {vr(y,4)} offset:{1024*i}")
        e(f"v_mov_b32 v{X}, v{w+1}")
        for j in range(3): e(f"v_mov_b32 v{X+1+j}, v{y+j}")
        e(f"ds_write_b128 v4, {vr(X,4)} offset:{1024*i + 2*KCP}")
        e(f"v_alignbit_b32 v{P1}, v{y}, v{w+1}, 16")
        for j in range(3): e(f"v_alignbit_b32 v{P1+1+j}, v{y+1+j}, v{y+j}, 16")
        e(f"ds_write_b128 v4, {vr(P1,4)} offset:{1024*i + KCP}")
        e(f"v_alignbit_b32 v{P3}, v{w+1}, v{w}, 16")
        for j in range(3): e(f"v_mov_b32 v{P3+1+j}, v{P1+j}")
        e(f"ds_write_b128 v4, {vr(P3,4)} offset:{1024*i + 3*KCP}")
    e("s_lshl_b32 s3, s62, 2")
    e(f"s_add_u32 s3, s3, {FLAG+32}")
    e("v_mov_b32 v33, s3")
    e("v_mov_b32 v34, 1")
    e("s_waitcnt lgkmcnt(0)")
    e("ds_write_b32 v33, v34")
    k.stamp(2)
    S = [104, 105]; Q = [106, 107]
    for r in S + Q: e(f"v_mov_b32 v{r}, 0")
    e("s_mov_b32 s48, 0x3f803f80")
    e("s_waitcnt vmcnt(0)")
    for j in range(8):
        for r in range(2):
            e(f"v_dot2c_f32_bf16 v{S[r]}, s48, v{ST+8*r+j}")
            e(f"v_dot2c_f32_bf16 v{Q[r]}, v{ST+8*r+j}, v{ST+8*r+j}")
    e("s_nop 2")
    for mode in ("quad_perm:[1,0,3,2] row_mask:0xf", "quad_perm:[2,3,0,1] row_mask:0xf", "row_half_mirror row_mask:0xf",
                 "row_mirror row_mask:0xf", "row_bcast:15 row_mask:0xa", "row_bcast:31 row_mask:0xc"):
        for r in S + Q:
            e(f"v_add_f32_dpp v{r}, v{r}, v{r} {mode} bank_mask:0xf")
    ln_stats(k, S, Q, [108, 109], None, [112, 113], recip=False)
    tagcheck("tagB")
    e("s_mov_b32 s48, 0x07060302")
    e(f"v_perm_b32 v{TAG-2}, v112, v108, s48")
    e(f"v_perm_b32 v{TAG-1}, v113, v109, s48")
    e("s_lshl_b32 s48, s2, 6")
    e("s_lshl_b32 s49, s62, 4")
    e("s_add_u32 s48, s48, s49")
    e(f"s_add_u32 s48, s48, 0x{SG:x}")
    e("s_mov_b32 exec_lo, 0")
    e("s_mov_b32 exec_hi, 0x80000000")
    e(f"buffer_store_dwordx4 {vr(TAG-2,4)}, v207, s[32:35], s48 offen sc1")
    e("s_mov_b64 exec, -1")
    k.stamp(3)
    e("s_cmp_eq_u32 s62, 3")
    e(f"s_cbranch_scc0 {k.L('notB3')}")
    poll(FU, "pollU")
    e("v_cmp_ne_u32 vcc, s38, v118")
    e(f"s_cbranch_vccz {k.L('oneXCD')}")
    spin(FLAG + 4, "v_cmp_gt_u32 vcc, 4, v34", "waitX")
    e("buffer_wbl2 sc1")
    e("s_waitcnt vmcnt(0)")
    e("s_lshl_b32 s3, s40, 7")
    e("v_mov_b32 v200, s3")
    e(f"s_add_u32 s3, s39, 0x{F2:x}")
    e("s_mov_b64 exec, 1")
    e(f"buffer_store_dwordx3 {vr(TAG,3)}, v200, s[32:35], s3 offen sc1")
    e("s_mov_b64 exec, -1")
    poll(F2, "poll2", dual=False)
    e("buffer_inv sc1")
    e("s_waitcnt vmcnt(0)")
    k.label("oneXCD")
    k.stamp(1)
    if STAMP: e("s_mov_b32 s66, s3"); e("s_mov_b32 s67, 0")
    e("s_sub_u32 s13, s61, 3")
    e("s_lshl_b32 s13, s13, 12")
    for c in range(4):
        e(f"s_mov_b32 m0, {REG0 + c*REG + 4*KCP + 512}")
        e(f"s_add_u32 s14, s13, 0x{UT + 4096*c:x}")
        for p in range(4):
            e(f"buffer_load_dwordx4 v2, s[32:35], s14 offen offset:{1024*p} sc1 lds")
    setflag(FLAG + 8)
    e("s_waitcnt vmcnt(0)")
    setflag(FLAG + 28)
    k.stamp(2)
    k.label("notB3")
    e("s_lshl_b32 s48, s2, 9")
    e("s_lshl_b32 s49, s62, 7")
    e("s_add_u32 s48, s48, s49")
    e(f"s_add_u32 s48, s48, 0x{FLG:x}")
    e("v_lshlrev_b32 v34, 1, v0")
    e("buffer_store_short v207, v34, s[32:35], s48 offen")
    e("s_lshl_b32 s48, s2, 7")
    e("s_and_b32 s49, s62, 1")
    e("s_lshl_b32 s49, s49, 15")
    e("s_add_u32 s48, s48, s49")
    e(f"s_add_u32 s48, s48, 0x{HFL:x}")
    e("buffer_store_short v207, v34, s[32:35], s48 offen")
    e("s_lshl_b32 s48, s2, 10")
    e("s_lshl_b32 s49, s62, 8")
    e("s_add_u32 s48, s48, s49")
    e(f"s_add_u32 s48, s48, 0x{SP:x}")
    e("v_lshlrev_b32 v34, 2, v0")
    e("v_mov_b32 v35, -1")
    e("buffer_store_dword v35, v34, s[32:35], s48 offen")
    e("s_cmp_ge_u32 s62, 2")
    e(f"s_cbranch_scc1 {k.L('bfetch')}")
    spin(FLAG + 8, "v_cmp_eq_u32 vcc, 0, v34", "waitG", sleep=2)
    k.stamp(4)
    e("s_lshl_b32 s11, s40, 1")
    e("s_add_u32 s11, s11, s62")
    if 'n' in F:
        e("s_and_b32 s3, s41, 1")
        e("s_and_b32 s13, s11, 1")
        e("s_cmp_eq_u32 s3, s13")
        e(f"s_cbranch_scc0 {k.L('bdone')}")
    e("s_cmp_ge_u32 s11, 56")
    e(f"s_cbranch_scc1 {k.L('bdone')}")
    e("s_mul_i32 s13, s11, 4682")
    e("s_lshr_b32 s13, s13, 16")
    e("s_mul_i32 s14, s13, 14")
    e("s_sub_u32 s14, s11, s14")
    e("s_lshr_b32 s15, s41, 1")
    e("s_mul_i32 s15, s15, 896")
    e("s_lshl_b32 s14, s14, 6")
    e("s_add_u32 s14, s14, s15")
    e(f"s_mul_i32 s15, s13, {256*7168}")
    e("s_lshl_b32 s24, s14, 1")
    e("s_add_u32 s15, s15, s24")
    e("v_lshrrev_b32 v1, 3, v0")
    e("v_mul_u32_u24 v1, 7168, v1")
    e("v_and_b32 v2, 7, v0")
    e("v_lshl_add_u32 v1, v2, 4, v1")
    k.srd(16, 56, 57, 1024*3584*2)
    for n in range(32):
        e(f"buffer_load_dwordx4 {vr(16+4*n,4)}, v1, s[16:19], s15 offen{' nt' if 'n' in F else ''}")
        e(f"s_add_u32 s15, s15, {8*7168}")
    for i in range(8): e(f"v_mov_b32 v{8+i}, 0")
    e("s_mov_b32 s25, 0xffff0000")
    for n in range(32):
        e(f"s_waitcnt vmcnt({31-n})")
        for j in range(4):
            e(f"v_lshlrev_b32 v{144+2*j}, 16, v{16+4*n+j}")
            e(f"v_and_b32 v{145+2*j}, s25, v{16+4*n+j}")
        for j in range(8):
            e(f"v_add_f32 v{8+j}, v{8+j}, v{144+j}")
    e("s_nop 1")
    for i in range(8): e(f"v_add_f32_dpp v{8+i}, v{8+i}, v{8+i} row_ror:8 row_mask:0xf bank_mask:0xf")
    for op in ("v_permlane32_swap_b32", "v_permlane16_swap_b32"):
        for i in range(8): e(f"v_mov_b32 v{16+i}, v{8+i}")
        e("s_nop 1")
        for i in range(8): e(f"{op} v{8+i}, v{16+i}")
        e("s_nop 1")
        for i in range(8): e(f"v_add_f32 v{8+i}, v{8+i}, v{16+i}")
    if 'n' not in F:
        e("s_and_b32 s12, s41, 1")
        e("s_cmp_eq_u32 s12, 1")
        e(f"s_cbranch_scc1 {k.L('bdone')}")
    e(f"s_mul_i32 s15, s13, {3584*4}")
    e("s_lshl_b32 s14, s14, 2")
    e("s_add_u32 s15, s15, s14")
    e(f"s_add_u32 s15, s15, 0x{CS:x}")
    e("v_lshlrev_b32 v1, 5, v0")
    e("s_mov_b64 exec, 0xff")
    e("buffer_store_dwordx4 v[8:11], v1, s[32:35], s15 offen")
    e("buffer_store_dwordx4 v[12:15], v1, s[32:35], s15 offen offset:16")
    e(f"s_branch {k.L('bdone')}")
    k.label("bfetch")
    e("s_sub_u32 s11, s62, 2")
    e("s_lshl_b32 s12, s11, 13")
    spin(FLAG + 8, "v_cmp_eq_u32 vcc, 0, v34", "waitG2", sleep=1)
    poll(FX, "pollX")
    k.stamp(4)
    e("s_sub_u32 s13, s61, s62")
    e("s_lshl_b32 s13, s13, 12")
    e("s_add_u32 s13, s13, s12")
    for q in range(2):
        e(f"s_add_u32 m0, s12, {TILE + 4096*q}")
        e(f"s_add_u32 s14, s13, 0x{XT + 4096*q:x}")
        for p in range(4):
            e(f"buffer_load_dwordx4 v2, s[32:35], s14 offen offset:{1024*p} sc1 lds")
    e(f"s_add_u32 s13, s12, 0x{SG:x}")
    e("s_add_u32 s14, s13, 4096")
    e("s_mov_b32 s3, 0")
    for q in range(8):
        e(f"buffer_load_dwordx4 {vr(16+4*q,4)}, v2, s[32:35], s{13 + q//4} offen offset:{1024*(q%4)}")
    e(f"s_branch {k.L('pollS_c')}")
    k.label("pollS")
    for q in range(8):
        e(f"buffer_load_dwordx4 {vr(16+4*q,4)}, v2, s[32:35], s{13 + q//4} offen offset:{1024*(q%4)} sc1")
    k.label("pollS_c")
    e("s_add_u32 s3, s3, 1")
    e("s_cmp_gt_u32 s3, 0x40000")
    e(f"s_cbranch_scc1 {k.L('pollS_x')}")
    e("s_waitcnt vmcnt(0)")
    e("s_mov_b64 s[22:23], 0")
    for q in range(8):
        e(f"v_cmp_ne_u64 vcc, {vr(18+4*q,2)}, {vr(TAG,2)}")
        e("s_or_b64 s[22:23], s[22:23], vcc")
    e("s_cmp_lg_u64 s[22:23], 0")
    e(f"s_cbranch_scc0 {k.L('pollS_x')}")
    e("s_sleep 8")
    e(f"s_branch {k.L('pollS')}")
    k.label("pollS_x")
    e("s_waitcnt vmcnt(0)")
    k.stamp(6)
    e("s_lshl_b32 s13, s11, 12")
    e(f"s_add_u32 s13, s13, {STAT}")
    e("v_lshl_add_u32 v3, v0, 3, s13")
    e("s_mov_b32 s14, 0xffff0000")
    for q in range(8):
        g = 16 + 4*q
        e(f"v_and_b32 v{g+2}, s14, v{g}")
        e(f"v_and_b32 v{g+3}, s14, v{g+1}")
        e(f"v_lshlrev_b32 v{g}, 16, v{g}")
        e(f"v_lshlrev_b32 v{g+1}, 16, v{g+1}")
        e(f"v_rcp_f32 v{g+2}, v{g+2}")
        e(f"v_rcp_f32 v{g+3}, v{g+3}")
        e(f"ds_write_b64 v3, {vr(g,2)} offset:{512*q}")
        e(f"ds_write_b64 v3, {vr(g+2,2)} offset:{512*q+8192}")
    e("s_lshl_b32 s12, s11, 2")
    e(f"s_add_u32 s12, s12, {FLAG+16}")
    e("v_mov_b32 v4, s12")
    e("v_mov_b32 v5, 1")
    e("s_waitcnt vmcnt(0) lgkmcnt(0)")
    e("ds_write_b32 v4, v5")
    if 'b' in F:
        e("s_add_u32 s3, s40, s11")
        e("s_cmp_eq_u32 s3, 0")
        e(f"s_cbranch_scc0 {k.L('nowb')}")
        e("buffer_wbl2 sc1")
        k.label("nowb")
    if 'w' not in F:
        k.srd(16, 58, 59, 1024*3584*2)
        e("s_lshl_b32 s30, s2, 1")
        e("s_add_u32 s30, s30, s11")
        e(f"s_mul_i32 s30, s30, {112*128}")
        e("v_lshlrev_b32 v6, 7, v0")
        e("v_add_u32 v7, 6144, v6")
        e("buffer_load_dword v8, v6, s[16:19], s30 offen")
        e("buffer_load_dword v9, v7, s[16:19], s30 offen")
    k.stamp(5)
    k.label("bdone")
    if STAMP:
        e("s_waitcnt vmcnt(0)")
        k.dump_stamps(0, 32, 60)
    k.label("end")
    e("s_endpgm")
    return k
```

```python
from asmlib import *
from layout import *
from k0 import ln_stats
import os
X = os.environ.get('MX', '')
RW = int(os.environ.get('K4RW', '4'))

STG1 = 45056; WOFF = 16384; NB1 = 3
STG2 = 32768; NB2 = 4; RES = NB2 * STG2; NST2 = 28
STATS = RES + 16384
CSL = STATS + 1024
MISC = CSL + 1024
NCS = 4

def weave(e, ms, fill, waits=None, mid=None, sched=None):
    fill = list(fill)
    for i, m in enumerate(ms):
        if mid and i == mid[0]:
            for t in mid[1]: e(t)
        if waits and i in waits: e(waits[i])
        e(m)
        for _ in range(sched[i] if i < len(sched) else 0):
            if fill: e(fill.pop(0))
    assert not fill, fill

def make_k34():
    k = Kern("mlp_kernel", 256, 512, MISC + 64, nvgpr=224)
    e = k.e
    e("s_cmp_ge_u32 s2, 256")
    e(f"s_cbranch_scc1 {k.L('end')}")
    k.clear_stamps()
    e("s_load_dwordx4 s[4:7], s[0:1], 56")
    e("s_load_dwordx2 s[8:9], s[0:1], 88")
    e("s_load_dwordx2 s[56:57], s[0:1], 72")
    e("v_lshrrev_b32 v1, 6, v0")
    e("v_and_b32 v0, 63, v0")
    e("v_readfirstlane_b32 s10, v1")
    e("s_and_b32 s11, s2, 7")
    e("s_lshr_b32 s12, s2, 3")
    e("s_lshr_b32 s13, s11, 1")
    e("s_lshl_b32 s13, s13, 2")
    e("s_and_b32 s14, s12, 3")
    e("s_add_u32 s13, s13, s14")
    e("s_and_b32 s15, s11, 1")
    e("s_lshr_b32 s53, s12, 2")
    e("s_lshl_b32 s14, s15, 3")
    e("s_add_u32 s14, s14, s53")
    e("v_lshrrev_b32 v2, 4, v0")
    e("s_cmp_ge_u32 s10, 4")
    e(f"s_cbranch_scc1 {k.L('loader')}")
    def trcommon():
        e("v_bfe_u32 v3, v0, 2, 2")
        e("v_and_b32 v4, 3, v0")
        e("v_and_b32 v5, 1, v2")
        e("v_lshl_or_b32 v6, v5, 2, v3")
        e("v_lshl_add_u32 v7, v2, 3, v3")
        e("v_lshlrev_b32 v8, 8, v7")
        e("v_lshl_add_u32 v8, v4, 3, v8")

    trcommon()
    ACC = 16; FW = [128, 172]; FH = [156, 200]
    AH = [1, 2, 3, 4]; AW = [9, 10, 11]
    e("s_and_b32 s24, s10, 1")
    e("s_lshr_b32 s25, s10, 1")
    e("v_mul_u32_u24 v12, 448, v7")
    e("v_lshl_add_u32 v12, v4, 3, v12")
    e(f"v_add_u32 v12, {WOFF}, v12")
    e("v_lshl_add_u32 v13, v5, 5, v12")
    e("v_xor_b32 v14, 1, v5")
    e("v_lshl_add_u32 v14, v14, 5, v12")
    e("s_lshl_b32 s26, s25, 8")
    e("v_add_u32 v9, s26, v13")
    e("v_add_u32 v10, s26, v14")
    e("s_cmp_eq_u32 s25, 0")
    e("s_cselect_b64 vcc, -1, 0")
    e("v_cndmask_b32 v11, v14, v13, vcc")
    e("v_add_u32 v11, 192, v11")
    e("v_mov_b32 v15, v2")
    e("s_lshl_b32 s26, s24, 2")
    for j in range(4):
        e(f"s_add_u32 s27, s26, {j}")
        e(f"v_xor_b32 v12, s27, v6")
        e(f"v_lshl_add_u32 v{AH[j]}, v12, 5, v8")
    for i in range(112):
        e(f"v_mov_b32 v{ACC+i}, 0")
    e("s_waitcnt lgkmcnt(0)")
    k.srd(20, 8, 9, WS_BYTES)
    k.srd(44, 56, 57, 4*MB)
    def reads1(st, step):
        r = []
        for j in range(4):
            for h in range(2):
                r.append(f"ds_read_b64_tr_b16 {vr(FH[st]+4*j+2*h,2)}, v{AH[j]} offset:{8192*step+1024*h}")
        for i in range(7):
            a, o = (AW[i % 2], 64*(i//2)) if i < 6 else (AW[2], 0)
            for h in range(2):
                r.append(f"ds_read_b64_tr_b16 {vr(FW[st]+4*i+2*h,2)}, v{a} offset:{14336*step+1792*h+o}")
        return r
    def mfmas1(st):
        return [f"v_mfma_f32_16x16x32_bf16 {vr(ACC+4*(4*i+j),4)}, {vr(FW[st]+4*i,4)}, {vr(FH[st]+4*j,4)}, {vr(ACC+4*(4*i+j),4)}"
                for i in range(7) for j in range(4)]
    e("s_mov_b32 s28, 0")
    e("s_mov_b32 s29, 0")
    e("s_barrier")
    k.stamp(1)
    for r in reads1(0, 0): e(r)
    k.label("c1loop")
    sal = ["s_add_u32 s29, s29, 1", f"s_mov_b32 s30, {STG1}", "s_cmp_eq_u32 s29, 3", f"s_cselect_b32 s30, {-2*STG1}, s30",
           "s_cselect_b32 s29, 0, s29", "s_add_u32 s28, s28, 1"]
    weave(e, mfmas1(0), reads1(1, 1) + sal, waits={4*i: f"s_waitcnt lgkmcnt({min(15, 12+2*i)})" for i in range(7)}, sched=[1]*28)
    weave(e, mfmas1(1), [f"v_add_u32 v{a}, s30, v{a}" for a in AH + AW] + reads1(0, 0) + ["s_cmp_lt_u32 s28, 16"],
          waits={0: "s_waitcnt lgkmcnt(12)"}, mid=(4, ["s_waitcnt lgkmcnt(0)", "s_barrier"]), sched=[0]*4 + [2]*6 + [1]*18)
    e(f"s_cbranch_scc1 {k.L('c1loop')}")
    k.stamp(2)
    e("v_and_b32 v1, 15, v0")
    e("s_lshl_b32 s26, s24, 9")
    e(f"s_add_u32 s26, s26, {STATS}")
    e("v_lshl_add_u32 v1, v1, 3, s26")
    e("s_lshl_b32 s26, s25, 9")
    e(f"s_add_u32 s26, s26, {CSL}")
    e("v_lshl_add_u32 v2, v15, 4, s26")
    e("s_mul_i32 s26, s25, 64")
    e(f"s_add_u32 s26, s26, {CSL+384}")
    e("v_lshl_add_u32 v3, v15, 4, s26")
    e(f"v_mov_b32 v6, {MISC}")
    e("s_waitcnt lgkmcnt(0)")
    MR = 128; C2 = 136; CSV = 144
    e("ds_read_b32 v7, v6 offset:4")
    for j in range(4):
        e(f"ds_read_b64 {vr(MR+2*j,2)}, v1 offset:{128*j}")
    for i in range(7):
        e(f"ds_read_b128 {vr(CSV+4*i,4)}, v{2 if i < 6 else 3} offset:{64*i if i < 6 else 0}")
    e("s_lshl_b32 s26, s25, 12")
    e("v_lshl_add_u32 v4, v0, 4, s26")
    e("s_lshl_b32 s26, s25, 3")
    e("s_add_u32 s26, s26, 3072")
    e("v_lshl_add_u32 v5, v0, 4, s26")
    e("s_lshl_b32 s26, s13, 3")
    e("s_lshl_b32 s27, s24, 2")
    e("s_add_u32 s26, s26, s27")
    e("s_mul_i32 s26, s26, 112")
    e("s_mul_i32 s27, s14, 7")
    e("s_add_u32 s26, s26, s27")
    e("s_lshl_b32 s26, s26, 10")
    e(f"s_add_u32 s32, s26, 0x{HM:x}")
    for j in range(1, 4):
        e(f"s_add_u32 s{32+j}, s32, {112*1024*j}")
    e("s_waitcnt lgkmcnt(0)")
    e("v_readfirstlane_b32 s54, v7")
    for j in range(4):
        e(f"v_mul_f32 v{C2+2*j}, 0xbfb8aa3b, v{MR+2*j+1}")
    e("s_mov_b32 s58, 0xbfb8aa3b")
    e("s_mov_b32 s59, 0xbfb8aa3b")
    e("s_cmp_eq_u32 s54, 1")
    nsite = [0]
    def store2(ops):
        n = nsite[0]; nsite[0] += 1
        e(f"s_cbranch_scc1 {k.L(f'pl{n}')}")
        for o in ops: e(o + " sc1")
        e(f"s_branch {k.L(f'st{n}')}")
        k.label(f"pl{n}")
        for o in ops: e(o)
        k.label(f"st{n}")
    T = 172
    def elem8(tiles, out):
        P = T; Xr = T + 8
        def each(f):
            for n, (i, j) in enumerate(tiles):
                for h in range(2):
                    e(f(ACC + 4*(4*i+j) + 2*h, CSV + 4*i + 2*h, j, P + 4*n + 2*h, Xr + 4*n + 2*h))
        each(lambda a, c, j, p, x: f"v_pk_fma_f32 {vr(a,2)}, {vr(c,2)}, {vr(MR+2*j,2)}, {vr(a,2)} op_sel_hi:[1,0,1] neg_lo:[0,1,0] neg_hi:[0,1,0]")
        each(lambda a, c, j, p, x: f"v_pk_mul_f32 {vr(p,2)}, {vr(a,2)}, {vr(C2+2*j,2)} op_sel_hi:[1,0]")
        for q in range(8): e(f"v_exp_f32 v{Xr+q}, v{P+q}")
        each(lambda a, c, j, p, x: f"v_pk_fma_f32 {vr(x,2)}, {vr(x,2)}, s[58:59], s[58:59]")
        for q in range(8): e(f"v_rcp_f32 v{Xr+q}, v{Xr+q}")
        each(lambda a, c, j, p, x: f"v_pk_mul_f32 {vr(p,2)}, {vr(p,2)}, {vr(x,2)}")
        for q in range(4): e(f"v_cvt_pk_bf16_f32 v{out+q}, v{P+2*q}, v{P+2*q+1}")
    n = 0
    for j in range(4):
        for pr in range(3):
            o = 192 + 4*(n % 4); n += 1
            elem8([(2*pr, j), (2*pr+1, j)], o)
            store2([f"buffer_store_dwordx4 {vr(o,4)}, v4, s[20:23], s{32+j} offen offset:{1024*pr}"])
        if j % 2 == 1:
            o = 192 + 4*(n % 4); n += 1
            elem8([(6, j-1), (6, j)], o)
            store2([f"buffer_store_dwordx2 {vr(o,2)}, v5, s[20:23], s{32+j-1} offen",
                    f"buffer_store_dwordx2 {vr(o+2,2)}, v5, s[20:23], s{32+j} offen"])
    k.stamp(3)

    NS = 4
    F0 = ACC + 64
    GW = [F0, F0 + 32]; GH = [F0 + 16, F0 + 48]
    BW = [8, 9, 10, 11]; BH = 12
    e("v_mov_b32 v2, v15")
    e("v_bfe_u32 v3, v0, 2, 2")
    e("v_and_b32 v4, 3, v0")
    e("v_lshl_add_u32 v7, v2, 2, v3")
    e("v_and_b32 v5, 7, v7")
    e("v_lshlrev_b32 v13, 8, v7")
    e("v_lshl_add_u32 v13, v4, 3, v13")
    e(f"v_add_u32 v13, {WOFF}, v13")
    e("s_lshl_b32 s26, s25, 2")
    for i in range(4):
        e(f"s_add_u32 s27, s26, {i}")
        e(f"v_xor_b32 v14, s27, v5")
        e(f"v_lshl_add_u32 v{BW[i]}, v14, 5, v13")
    e("s_lshl_b32 s26, s24, 12")
    e(f"v_lshl_add_u32 v{BH}, v0, 4, s26")
    for i in range(64):
        e(f"v_mov_b32 v{ACC+i}, 0")
    e("v_mov_b32 v13, 1")
    e("s_lshl_b32 s26, s2, 7")
    e(f"s_add_u32 s26, s26, 0x{HFL:x}")
    e("v_mov_b32 v14, 0")
    e("s_waitcnt vmcnt(0)")
    e("s_mov_b64 exec, 1")
    e("ds_add_rtn_u32 v1, v6, v13")
    e("s_waitcnt lgkmcnt(0)")
    e("v_readfirstlane_b32 s27, v1")
    e("s_cmp_eq_u32 s27, 3")
    e(f"s_cbranch_scc0 {k.L('noflag')}")
    e("s_cmp_eq_u32 s54, 1")
    store2(["buffer_store_dword v13, v14, s[20:23], s26 offen"])
    k.label("noflag")
    e("s_mov_b64 exec, -1")
    e("v_bfe_u32 v6, v7, 1, 2")
    def hoff(j): return 2048*(j % 2) + 8192*(j // 2)
    def reads2(st, step):
        r = []
        for j in range(NS):
            r.append(f"ds_read_b128 {vr(GH[st]+4*j,4)}, v{BH} offset:{hoff(j)+1024*step}")
        for i in range(4):
            for h in range(2):
                r.append(f"ds_read_b64_tr_b16 {vr(GW[st]+4*i+2*h,2)}, v{BW[i]} offset:{8192*step+4096*h}")
        return r
    def mfmas2(st):
        return [f"v_mfma_f32_16x16x32_bf16 {vr(ACC+4*(NS*i+j),4)}, {vr(GW[st]+4*i,4)}, {vr(GH[st]+4*j,4)}, {vr(ACC+4*(NS*i+j),4)}"
                for i in range(4) for j in range(NS)]
    e("s_mov_b32 s28, 0")
    e("s_mov_b32 s29, 0")
    e("s_barrier")
    k.stamp(4)
    for r in reads2(0, 0): e(r)
    k.label("c2loop")
    sal = ["s_add_u32 s29, s29, 1", f"s_mov_b32 s30, {STG2}", f"s_cmp_eq_u32 s29, {NB2}", f"s_cselect_b32 s30, {-(NB2-1)*STG2}, s30",
           "s_cselect_b32 s29, 0, s29", "s_add_u32 s28, s28, 1"]
    weave(e, mfmas2(0), reads2(1, 1) + sal,
          waits={0: "s_waitcnt lgkmcnt(6)", 4: "s_waitcnt lgkmcnt(12)", 8: "s_waitcnt lgkmcnt(14)", 12: "s_waitcnt lgkmcnt(12)"},
          sched=[2]*6 + [1]*6)
    weave(e, mfmas2(1), [f"v_add_u32 v{a}, s30, v{a}" for a in [BH] + BW] + reads2(0, 0) + [f"s_cmp_lt_u32 s28, {NST2}"],
          waits={0: "s_waitcnt lgkmcnt(6)"}, mid=(4, ["s_waitcnt lgkmcnt(0)", "s_barrier"]), sched=[0]*4 + [2]*6 + [1]*6)
    e(f"s_cbranch_scc1 {k.L('c2loop')}")
    k.stamp(5)
    T = F0
    e("s_lshl_b32 s26, s2, 2")
    e("s_add_u32 s26, s26, s10")
    e("s_xor_b32 s27, s26, 4")
    e("s_lshl_b32 s31, s26, 13")
    e(f"s_add_u32 s31, s31, 0x{PART:x}")
    e("s_lshl_b32 s32, s27, 13")
    e(f"s_add_u32 s32, s32, 0x{PART:x}")
    e("s_add_u32 s33, s31, 4096")
    e("s_add_u32 s34, s32, 4096")
    e("s_lshl_b32 s35, s26, 7")
    e(f"s_add_u32 s35, s35, 0x{FLG:x}")
    e("s_lshl_b32 s36, s27, 7")
    e(f"s_add_u32 s36, s36, 0x{FLG:x}")
    e("v_lshlrev_b32 v14, 4, v0")
    e("s_cmp_eq_u32 s15, 0")
    e(f"s_cbranch_scc1 {k.L('send_hi')}")
    for own in (1, 0):
        if own == 0: k.label("send_hi")
        for i in range(4):
            for jj in range(2):
                j = 2*(1-own) + jj
                n = 2*i + jj
                e(f"buffer_store_dwordx4 {vr(ACC+4*(NS*i+j),4)}, v14, s[20:23], s{31 if n < 4 else 33} offen offset:{1024*(n%4)} sc1")
        if own == 1:
            e("s_nop 1")
            for i in range(4):
                for q in range(8):
                    e(f"v_mov_b32 v{ACC+4*NS*i+q}, v{ACC+4*NS*i+8+q}")
            e(f"s_branch {k.L('sent')}")
    k.label("sent")
    e("v_lshlrev_b32 v13, 7, v7")
    e("v_lshl_add_u32 v13, v4, 3, v13")
    e("s_lshl_b32 s26, s25, 13")
    e(f"s_add_u32 s26, s26, {RES}")
    e("v_add_u32 v13, s26, v13")
    e("s_lshl_b32 s26, s24, 1")
    for j in range(2):
        e(f"s_add_u32 s27, s26, {j}")
        e(f"v_xor_b32 v15, s27, v6")
        e(f"v_lshl_add_u32 v{8+j}, v15, 5, v13")
    e("s_waitcnt lgkmcnt(0)")
    HR = T
    for i in range(4):
        for j in range(2):
            e(f"ds_read_b64_tr_b16 {vr(HR+2*(2*i+j),2)}, v{8+j} offset:{2048*i}")
    e("v_and_b32 v10, 15, v0")
    e("v_lshrrev_b32 v11, 1, v2")
    e("v_and_b32 v12, 7, v10")
    e("v_xor_b32 v11, v11, v12")
    e("v_lshlrev_b32 v11, 4, v11")
    e("v_lshl_add_u32 v11, v10, 7, v11")
    e("v_and_b32 v12, 1, v2")
    e("v_lshl_add_u32 v11, v12, 3, v11")
    e("s_lshl_b32 s26, s10, 12")
    e("v_add_u32 v3, s26, v11")
    e("v_xor_b32 v4, 32, v3")
    e("v_xor_b32 v5, 64, v3")
    e("v_xor_b32 v6, 96, v3")
    e("v_lshrrev_b32 v10, 3, v0")
    e("v_and_b32 v11, 7, v0")
    e("v_xor_b32 v12, v11, v10")
    e("v_lshlrev_b32 v12, 4, v12")
    e("v_lshl_add_u32 v12, v10, 7, v12")
    e("v_add_u32 v7, s26, v12")
    e("v_lshlrev_b32 v10, 11, v10")
    e("v_lshl_add_u32 v10, v11, 4, v10")
    e("s_lshl_b32 s26, s13, 7")
    e("s_lshl_b32 s27, s24, 5")
    e("s_add_u32 s26, s26, s27")
    e("s_lshl_b32 s27, s15, 6")
    e("s_add_u32 s26, s26, s27")
    e("s_lshl_b32 s26, s26, 11")
    e("s_lshl_b32 s27, s53, 8")
    e("s_add_u32 s26, s26, s27")
    e("s_lshl_b32 s27, s25, 7")
    e("s_add_u32 s48, s26, s27")
    for q in range(1, 4):
        e(f"s_add_u32 s{48+q}, s48, {q*8*2048}")
    PR = T + 16; U = PR + 32
    e("s_mov_b32 s37, 0xffff0000")
    e("s_waitcnt lgkmcnt(0)")
    for i in range(4):
        for j in range(2):
            n = 2*i + j; a = ACC + 4*(NS*i + j); u = U + 4*(n % 2)
            e(f"v_lshlrev_b32 v{u}, 16, v{HR+2*n}")
            e(f"v_and_b32 v{u+1}, s37, v{HR+2*n}")
            e(f"v_lshlrev_b32 v{u+2}, 16, v{HR+2*n+1}")
            e(f"v_and_b32 v{u+3}, s37, v{HR+2*n+1}")
            for h in range(2):
                e(f"v_pk_add_f32 {vr(a+2*h,2)}, {vr(a+2*h,2)}, {vr(u+2*h,2)}")
    e("v_mov_b32 v15, 0")
    e("v_mov_b32 v13, 1")
    e("s_waitcnt vmcnt(0)")
    e("s_mov_b64 exec, 1")
    e("buffer_store_dword v13, v15, s[20:23], s35 offen sc1")
    e("s_mov_b32 s38, 0")
    k.label("poll")
    e("buffer_load_dword v13, v15, s[20:23], s36 offen sc1")
    e("s_add_u32 s38, s38, 1")
    e("s_cmp_gt_u32 s38, 0x200000")
    e(f"s_cbranch_scc1 {k.L('polled')}")
    e("s_waitcnt vmcnt(0)")
    e("v_readfirstlane_b32 s39, v13")
    e("s_cmp_eq_u32 s39, 1")
    e(f"s_cbranch_scc0 {k.L('poll')}")
    k.label("polled")
    k.stamp(6)
    e("s_mov_b64 exec, -1")
    for n in range(8):
        e(f"buffer_load_dwordx4 {vr(PR+4*n,4)}, v14, s[20:23], s{32 if n < 4 else 34} offen offset:{1024*(n%4)} sc1")
    for i in range(4):
        for j in range(2):
            n = 2*i + j; a = ACC + 4*(NS*i + j)
            e(f"s_waitcnt vmcnt({7-n})")
            for h in range(2):
                e(f"v_pk_add_f32 {vr(a+2*h,2)}, {vr(a+2*h,2)}, {vr(PR+4*n+2*h,2)}")
            e(f"v_cvt_pk_bf16_f32 v{HR+2*n}, v{a}, v{a+1}")
            e(f"v_cvt_pk_bf16_f32 v{HR+2*n+1}, v{a+2}, v{a+3}")
            e(f"ds_write_b64 v{3+i}, {vr(HR+2*n,2)} offset:{2048*j}")
    e("s_waitcnt lgkmcnt(0)")
    for q in range(4):
        e(f"ds_read_b128 {vr(PR+4*q,4)}, v7 offset:{1024*q}")
    for q in range(4):
        e(f"s_waitcnt lgkmcnt({3-q})")
        e(f"buffer_store_dwordx4 {vr(PR+4*q,4)}, v10, s[44:47], s{48+q} offen")
    if STAMP:
        e("s_waitcnt vmcnt(0)")
        k.dump_stamps(1, 20, 10)
    e("s_endpgm")

    k.label("loader")
    e("s_sub_u32 s24, s10, 4")
    VH = 16; VW = 20
    e("s_lshl_b32 s47, s24, 16")
    e("s_lshl_b32 s26, s13, 8")
    e("s_add_u32 s47, s47, s26")
    e(f"s_add_u32 s47, s47, 0x{HT:x}")
    e(f"s_mul_i32 s48, s24, {16*7168}")
    e("s_mul_i32 s27, s14, 448")
    e("s_add_u32 s48, s48, s27")
    e("s_mov_b32 s36, s14")
    e("s_mov_b32 s49, 0")
    e("s_lshl_b32 s25, s36, 18")
    e("s_add_u32 s25, s25, s47")
    e(f"s_mul_i32 s26, s36, {64*7168}")
    e("s_add_u32 s26, s26, s48")
    e("s_lshl_b32 s27, s24, 12")
    e("s_mul_i32 s28, s24, 7168")
    e(f"s_add_u32 s28, s28, {WOFF}")
    e("v_bfe_u32 v9, v0, 1, 3")
    e("v_and_b32 v10, 1, v0")
    e("v_lshlrev_b32 v10, 4, v10")
    e("v_lshl_add_u32 v10, v2, 12, v10")
    e("v_xor_b32 v9, v9, v2")
    for pp in range(4):
        if pp == 2: e("v_xor_b32 v9, 4, v9")
        e(f"v_lshl_add_u32 v{VH+pp}, v9, 5, v10")
        if pp: e(f"v_add_u32 v{VH+pp}, {pp*(16384-1024)}, v{VH+pp}")
    def wpat(q):
        e(f"v_add_u32 v9, {64*q}, v0")
        e("v_mul_u32_u24 v10, 9363, v9")
        e("v_lshrrev_b32 v10, 18, v10")
        e("v_mul_u32_u24 v11, 28, v10")
        e("v_sub_u32 v11, v9, v11")
        e("v_lshrrev_b32 v12, 2, v10")
        e("v_and_b32 v12, 2, v12")
        e("v_xor_b32 v11, v11, v12")
        e("v_mul_u32_u24 v12, 7168, v10")
        e("v_lshl_add_u32 v12, v11, 4, v12")
        e(f"v_add_u32 v{VW+q}, {-1024*(q%4)}, v12")
    wpat(0); wpat(1)
    e("s_mov_b32 m0, s27")
    e("s_waitcnt lgkmcnt(0)")
    k.srd(20, 8, 9, WS_BYTES)
    k.srd(16, 4, 5, 1024*3584*2)
    def advance():
        e("s_add_u32 s49, s49, 1")
        e("s_add_u32 s37, s36, 1")
        e("s_and_b32 s37, s37, 3")
        e("s_and_b32 s36, s36, 12")
        e("s_or_b32 s36, s36, s37")
        e("s_and_b32 s37, s49, 3")
        e("s_cmp_eq_u32 s37, 0")
        e("s_cselect_b32 s37, 4, 0")
        e("s_add_u32 s36, s36, s37")
        e("s_and_b32 s36, s36, 15")
        e("s_lshl_b32 s25, s36, 18")
        e("s_add_u32 s25, s25, s47")
        e(f"s_mul_i32 s26, s36, {64*7168}")
        e("s_add_u32 s26, s26, s48")
    for pp in range(4):
        e(f"buffer_load_dwordx4 v{VH+pp}, s[20:23], s25 offen offset:{1024*pp} lds")
    e("s_mov_b32 m0, s28")
    e("s_nop 0")
    for q in range(7):
        if q >= 2: wpat(q)
        if q == 4: e("s_add_u32 m0, s28, 4096"); e("s_nop 0")
        e(f"buffer_load_dwordx4 v{VW+q}, s[16:19], s26 offen offset:{1024*(q%4)} lds")
    advance()
    e(f"s_mov_b32 s29, {STG1}")
    def issue1():
        e("s_add_u32 m0, s27, s29")
        e("s_add_u32 s30, s28, s29")
        for pp in range(4):
            e(f"buffer_load_dwordx4 v{VH+pp}, s[20:23], s25 offen offset:{1024*pp} lds")
        e("s_mov_b32 m0, s30")
        e("s_nop 0")
        for q in range(4):
            e(f"buffer_load_dwordx4 v{VW+q}, s[16:19], s26 offen offset:{1024*q} lds")
        e("s_add_u32 m0, s30, 4096")
        e(f"s_add_u32 s29, s29, {STG1}")
        for q in range(4, 7):
            e(f"buffer_load_dwordx4 v{VW+q}, s[16:19], s26 offen offset:{1024*(q-4)} lds")
        e(f"s_cmp_eq_u32 s29, {NB1*STG1}")
        e("s_cselect_b32 s29, 0, s29")
        advance()
    issue1()
    e("s_waitcnt vmcnt(11)")
    e("s_barrier")
    k.stamp(1)
    CSR = 28
    e("s_mul_i32 s31, s14, 896")
    e("s_mul_i32 s32, s24, 224")
    e("s_add_u32 s31, s31, s32")
    e(f"s_add_u32 s31, s31, 0x{CS:x}")
    e("v_lshlrev_b32 v9, 2, v0")
    for p in range(NCS):
        e(f"s_add_u32 s32, s31, {p*3584*4}")
        e(f"buffer_load_dword v{CSR+p}, v9, s[20:23], s32 offen")
    issue1()
    trcommon()
    e("s_lshl_b32 s31, s24, 1")
    e("v_xor_b32 v12, s31, v6")
    e("v_lshl_add_u32 v36, v12, 5, v8")
    e("v_xor_b32 v37, 32, v36")
    S = [40, 42]; Q = [44, 46]
    for r in range(40, 48): e(f"v_mov_b32 v{r}, 0")
    e("s_mov_b32 s33, 0xffff0000")
    D = 48; U = 64
    for t in range(2):
        for st in range(2):
            for h in range(2):
                e(f"ds_read_b64_tr_b16 {vr(D+8*t+4*st+2*h,2)}, v{36+t} offset:{8192*st+1024*h}")
    e("s_waitcnt lgkmcnt(0)")
    for j in range(8):
        for t in range(2):
            u = U + 2*t
            e(f"v_lshlrev_b32 v{u}, 16, v{D+8*t+j}")
            e(f"v_and_b32 v{u+1}, s33, v{D+8*t+j}")
        for t in range(2):
            u = U + 2*t
            for q in range(2):
                e(f"v_add_f32 v{S[t]+q}, v{S[t]+q}, v{u+q}")
                e(f"v_fmac_f32 v{Q[t]+q}, v{u+q}, v{u+q}")
    def greduce(regs):
        for op in ("v_permlane32_swap_b32", "v_permlane16_swap_b32"):
            for i, r in enumerate(regs): e(f"v_mov_b32 v{D+i}, v{r}")
            e("s_nop 1")
            for i, r in enumerate(regs): e(f"{op} v{r}, v{D+i}")
            e("s_nop 1")
            for i, r in enumerate(regs): e(f"v_add_f32 v{r}, v{r}, v{D+i}")
    for r in S + Q: e(f"v_add_f32 v{r}, v{r}, v{r+1}")
    greduce(S + Q)
    e("v_cmp_gt_u32 vcc, 16, v0")
    e("s_lshl_b32 s31, s13, 14")
    e("s_lshl_b32 s32, s24, 8")
    e("s_add_u32 s31, s31, s32")
    e(f"s_add_u32 s31, s31, 0x{SP:x}")
    e("s_lshl_b32 s32, s14, 10")
    e("s_add_u32 s32, s32, s31")
    e(f"v_cndmask_b32 v{U}, v{S[1]}, v{S[0]}, vcc")
    e(f"v_cndmask_b32 v{U+1}, v{Q[1]}, v{Q[0]}, vcc")
    e("v_lshlrev_b32 v9, 3, v0")
    e("s_getreg_b32 s55, hwreg(HW_REG_XCC_ID, 0, 4)")
    e("s_add_u32 s55, s55, 1")
    if 'f' in X: e("s_add_u32 s55, s55, s2")
    e("v_mov_b32 v38, s55")
    e("v_mov_b32 v39, 0")
    e("s_lshl_b32 s34, s2, 7")
    e(f"s_add_u32 s34, s34, 0x{XID:x}")
    e("s_mov_b64 exec, 0xffffffff")
    e(f"buffer_store_dwordx2 {vr(U,2)}, v9, s[20:23], s32 offen sc1")
    e("s_mov_b64 exec, 1")
    e("buffer_store_dword v38, v39, s[20:23], s34 offen sc1")
    e("s_mov_b64 exec, -1")
    e("s_mov_b32 s35, 0")
    k.label("l1loop")
    e("s_cmp_eq_u32 s35, 0")
    e(f"s_cbranch_scc1 {k.L('lw20')}")
    e("s_cmp_eq_u32 s35, 1")
    e(f"s_cbranch_scc1 {k.L('lw12')}")
    e("s_waitcnt vmcnt(11)")
    k.label("lw12")
    e("s_waitcnt vmcnt(13)")
    k.label("lw20")
    e(f"s_waitcnt vmcnt({13+NCS})")
    e("s_barrier")
    e("s_cmp_ge_u32 s35, 13")
    e(f"s_cbranch_scc1 {k.L('l1done')}")
    issue1()
    e("s_add_u32 s35, s35, 1")
    e(f"s_branch {k.L('l1loop')}")
    k.label("l1done")
    k.stamp(2)
    e("v_and_b32 v10, 15, v0")
    e("v_lshlrev_b32 v9, 4, v10")
    e("v_lshl_add_u32 v9, v2, 10, v9")
    for q in range(1, 4): e(f"s_add_u32 s{43+q}, s31, {4096*q}")
    e("v_and_b32 v11, 7, v0")
    e("v_lshlrev_b32 v11, 12, v11")
    e("s_and_b32 s34, s2, 31")
    e("s_lshl_b32 s34, s34, 7")
    e(f"s_add_u32 s50, s34, 0x{XID:x}")
    e(f"s_add_u32 s51, s34, 0x{HFL:x}")
    e("s_mov_b32 s39, 0")
    G = 48
    k.label("spoll")
    for q in range(4):
        e(f"buffer_load_dwordx4 {vr(G+4*q,4)}, v9, s[20:23], s{31 if q == 0 else 43+q} offen sc1")
    e("buffer_load_dword v65, v11, s[20:23], s50 offen sc1")
    e("s_add_u32 s39, s39, 1")
    e("s_cmp_gt_u32 s39, 0x100000")
    e(f"s_cbranch_scc1 {k.L('spolled')}")
    e("s_waitcnt vmcnt(0)")
    e("v_add_u32 v66, -1, v65")
    e(f"v_max3_u32 v64, v{G+1}, v{G+3}, v66")
    for q in range(1, 4):
        e(f"v_max3_u32 v64, v{G+4*q+1}, v{G+4*q+3}, v64")
    e("v_cmp_eq_u32 vcc, -1, v64")
    e(f"s_cbranch_vccnz {k.L('spoll')}")
    k.label("spolled")
    e("s_waitcnt vmcnt(0)")
    e("v_cmp_ne_u32 vcc, s55, v65")
    for q in range(1, 4):
        for j in range(4):
            e(f"v_add_f32 v{40+j}, v{G+j if q == 1 else 40+j}, v{G+4*q+j}")
    e("s_cmp_eq_u64 vcc, 0")
    e("s_cselect_b32 s54, 1, 2")
    greduce([40, 41, 42, 43])
    ln_stats(k, [40, 42], [41, 43], [56, 58], [57, 59], [60, 61])
    e("s_lshl_b32 s31, s24, 8")
    e(f"s_add_u32 s31, s31, {STATS}")
    e("v_lshl_add_u32 v9, v10, 4, s31")
    e("ds_write_b128 v9, v[56:59]")
    e(f"v_mov_b32 v9, {MISC}")
    e("v_mov_b32 v62, 0")
    e("v_mov_b32 v63, s54")
    e("ds_write_b64 v9, v[62:63]")
    for p in range(1, NCS):
        e(f"v_add_f32 v{CSR}, v{CSR}, v{CSR+p}")
    e("s_mul_i32 s31, s24, 224")
    e(f"s_add_u32 s31, s31, {CSL}")
    e("v_lshl_add_u32 v9, v0, 2, s31")
    e("v_cmp_gt_u32 vcc, 56, v0")
    e("s_and_saveexec_b64 s[36:37], vcc")
    e(f"ds_write_b32 v9, v{CSR}")
    e("s_mov_b64 exec, -1")
    e("s_waitcnt lgkmcnt(0)")
    e("s_barrier")
    VA = 16; VW2 = 18; VR = 22
    e(f"v_lshlrev_b32 v{VA}, 4, v0")
    e(f"v_add_u32 v{VA+1}, {112*1024-2048}, v{VA}")
    e("v_bfe_u32 v9, v0, 1, 3")
    e("v_and_b32 v10, 1, v0")
    e("v_lshlrev_b32 v10, 4, v10")
    e("v_lshl_add_u32 v10, v2, 11, v10")
    e("v_xor_b32 v9, v9, v2")
    e("v_xor_b32 v12, 4, v9")
    for pp in range(4):
        e(f"v_lshl_add_u32 v{VW2+pp}, v{9 if pp % 2 == 0 else 12}, 5, v10")
        if pp: e(f"v_add_u32 v{VW2+pp}, {pp*(8192-1024)}, v{VW2+pp}")
    e("v_bfe_u32 v9, v0, 1, 2")
    e("v_xor_b32 v9, v9, v2")
    e("v_and_b32 v10, 1, v0")
    e("v_lshlrev_b32 v10, 4, v10")
    e("v_lshl_add_u32 v10, v9, 5, v10")
    e("v_lshrrev_b32 v9, 3, v0")
    e(f"v_lshl_add_u32 v{VR}, v9, 12, v10")
    for pp in range(1, 4):
        e(f"v_add_u32 v{VR+pp}, {pp*(32768-1024)}, v{VR}")
    k.srd(40, 6, 7, 1024*3584*2)
    e("s_lshl_b32 s47, s13, 3")
    e("s_lshl_b32 s26, s24, 1")
    e("s_add_u32 s47, s47, s26")
    e("s_mul_i32 s47, s47, 112")
    e("s_mul_i32 s26, s15, 56")
    e("s_add_u32 s47, s47, s26")
    e("s_lshl_b32 s47, s47, 10")
    e(f"s_add_u32 s47, s47, 0x{HM:x}")
    e("s_mul_i32 s48, s15, 1792")
    e("s_lshl_b32 s27, s24, 4")
    e("s_add_u32 s48, s48, s27")
    e("s_lshl_b32 s48, s48, 11")
    e("s_lshl_b32 s27, s53, 8")
    e("s_add_u32 s48, s48, s27")
    e("s_add_u32 s36, s13, s53")
    e(f"s_and_b32 s36, s36, {RW-1}")
    e("s_lshl_b32 s27, s24, 12")
    e(f"s_add_u32 s28, s27, {WOFF}")
    assert RW == NB2 or RW == 1
    def st_of(n):
        e(f"s_add_u32 s37, s36, {n}")
        if RW > 1: e(f"s_and_b32 s37, s37, {RW-1}")
    e("s_barrier")
    k.stamp(3)
    for n in range(NB2):
        st_of(n)
        e("s_lshl_b32 s26, s37, 17")
        e("s_add_u32 s26, s26, s48")
        e(f"s_add_u32 m0, s28, {n*STG2}")
        e("s_nop 0")
        for pp in range(4):
            e(f"buffer_load_dwordx4 v{VW2+pp}, s[40:43], s26 offen offset:{1024*pp} lds")
    e("s_lshl_b32 s31, s53, 7")
    e("s_lshl_b32 s32, s24, 5")
    e("s_add_u32 s31, s31, s32")
    e("s_lshl_b32 s31, s31, 12")
    e("s_lshl_b32 s32, s13, 8")
    e("s_add_u32 s31, s31, s32")
    e("s_lshl_b32 s32, s15, 7")
    e("s_add_u32 s31, s31, s32")
    e(f"s_add_u32 s31, s31, 0x{HT:x}")
    e(f"s_add_u32 m0, s27, {RES}")
    e("s_nop 0")
    for pp in range(4):
        e(f"buffer_load_dwordx4 v{VR+pp}, s[20:23], s31 offen offset:{1024*pp} lds")
    e("s_mov_b32 s39, 0")
    k.label("hpoll")
    e("s_sleep 2")
    e("buffer_load_dword v65, v11, s[20:23], s51 offen sc1")
    e("s_add_u32 s39, s39, 1")
    e("s_cmp_gt_u32 s39, 0x100000")
    e(f"s_cbranch_scc1 {k.L('hpolled')}")
    e("s_waitcnt vmcnt(0)")
    e("v_cmp_ne_u32 vcc, 1, v65")
    e(f"s_cbranch_vccnz {k.L('hpoll')}")
    k.label("hpolled")
    k.stamp(4)
    for n in range(NB2):
        st_of(n)
        e("s_lshl_b32 s25, s37, 11")
        e("s_add_u32 s25, s25, s47")
        e(f"s_add_u32 m0, s27, {n*STG2}")
        e("s_nop 0")
        for pp in range(4):
            e(f"buffer_load_dwordx4 v{VA+pp//2}, s[20:23], s25 offen offset:{1024*pp} sc1 lds")
        if n == 1:
            e("s_waitcnt vmcnt(4)")
            e("s_barrier")
    e("s_mov_b32 s29, 0")
    e(f"s_mov_b32 s35, {NB2}")
    def issue2():
        e("s_add_u32 s37, s36, s35")
        if RW > 1:
            e(f"s_and_b32 s37, s37, {RW-1}")
            e(f"s_andn2_b32 s38, s35, {RW-1}")
            e("s_or_b32 s37, s37, s38")
        e("s_lshl_b32 s25, s37, 11")
        e("s_add_u32 s25, s25, s47")
        e("s_lshl_b32 s26, s37, 17")
        e("s_add_u32 m0, s27, s29")
        e("s_add_u32 s26, s26, s48")
        for pp in range(4):
            e(f"buffer_load_dwordx4 v{VA+pp//2}, s[20:23], s25 offen offset:{1024*pp} sc1 lds")
        e("s_add_u32 m0, s28, s29")
        e(f"s_add_u32 s29, s29, {STG2}")
        for pp in range(4):
            e(f"buffer_load_dwordx4 v{VW2+pp}, s[40:43], s26 offen offset:{1024*pp} lds")
        e(f"s_and_b32 s29, s29, {NB2*STG2-1}")
        e("s_add_u32 s35, s35, 1")
    e("s_waitcnt vmcnt(8)")
    e("s_barrier")
    issue2()
    e("s_waitcnt vmcnt(12)")
    e("s_barrier")
    issue2()
    k.label("l2loop")
    e("s_waitcnt vmcnt(16)")
    e("s_barrier")
    issue2()
    e(f"s_cmp_lt_u32 s35, {NST2}")
    e(f"s_cbranch_scc1 {k.L('l2loop')}")
    for i in range(NST2-NB2, NST2):
        left = max(NST2 - 1 - (i + 1), 0)
        e(f"s_waitcnt vmcnt({left*8})")
        e("s_barrier")
    k.dump_stamps(1, 20, 10)
    k.label("end")
    e("s_endpgm")
    return k
```

```python
import os
STAMP = int(os.environ.get('STAMP', '0'))
TS = 200 << 20
WT = os.environ.get('WT', '')
WT = (' ' + WT) if WT else ''
class Kern:
    def __init__(self, name, grid, block, lds, nvgpr, nsgpr=102, accum=None, nagpr=0):
        self.name = name; self.grid = grid; self.block = block; self.lds = lds
        self.nvgpr = nvgpr; self.nsgpr = nsgpr; self.nagpr = nagpr
        self.accum = accum if accum is not None else (nvgpr + 3) // 4 * 4
        self.lines = []
        self.uid = 0
        self.pfx = ""
    def e(self, s):
        for ln in s.strip("\n").split("\n"):
            ln = ln.strip()
            if ln:
                self.lines.append("    " + ln)
    def c(self, s):
        self.lines.append("    ; " + s)
    def label(self, l):
        self.lines.append(f"{self.L(l)}:")
    def L(self, l):
        return f"L{self.name[:6]}_{self.pfx}{l}"
    def srd(self, d, lo, hi, nbytes):
        self.e(f"s_mov_b32 s{d}, s{lo}")
        self.e(f"s_and_b32 s{d+1}, s{hi}, 0xffff")
        self.e(f"s_mov_b32 s{d+2}, 0x{nbytes:x}")
        self.e(f"s_mov_b32 s{d+3}, 0x20000")
    def stamp(self, i):
        if not STAMP: return
        self.e(f"s_memrealtime s[{80+2*i}:{81+2*i}]")
        self.e(f"s_memtime s[{64+2*i}:{65+2*i}]")
        self.e("s_waitcnt lgkmcnt(0)")
    def dump_stamps(self, kid, srd, wave_sreg, n=8, keep=False):
        if not STAMP: return
        self.stamp(n - 1)
        self.e("s_mov_b64 exec, 1")
        self.e(f"s_add_u32 s100, s2, {kid*256}")
        self.e("s_lshl_b32 s100, s100, 3")
        self.e(f"s_add_u32 s100, s100, s{wave_sreg}")
        self.e("s_lshl_b32 s100, s100, 7")
        self.e(f"s_add_u32 s100, s100, 0x{TS:x}")
        self.e("v_mov_b32 v212, 0")
        for q in range(8):
            for j in range(4):
                self.e(f"v_mov_b32 v{208+j}, s{(80+4*q+j) if q < 4 else (64+4*(q-4)+j)}")
            self.e(f"buffer_store_dwordx4 v[208:211], v212, s[{srd}:{srd+3}], s100 offen offset:{16*q}")
            self.e("s_nop 1")
        if keep:
            self.e("s_mov_b64 exec, -1")
            self.clear_stamps()
    def clear_stamps(self):
        if not STAMP: return
        for i in range(32): self.e(f"s_mov_b32 s{64+i}, 0")
        self.stamp(0)
    def text(self):
        out = [f".globl {self.name}", ".p2align 8", f".type {self.name},@function", f"{self.name}:"]
        out += self.lines
        return "\n".join(out) + "\n"
    def desc(self):
        nfv = self.accum + self.nagpr if self.nagpr else self.nvgpr
        return f""".amdhsa_kernel {self.name}
  .amdhsa_next_free_vgpr {nfv}
  .amdhsa_next_free_sgpr {self.nsgpr}
  .amdhsa_accum_offset {self.accum}
  .amdhsa_group_segment_fixed_size 0
  .amdhsa_kernarg_size 96
  .amdhsa_user_sgpr_count 2
  .amdhsa_user_sgpr_kernarg_segment_ptr 1
  .amdhsa_system_sgpr_workgroup_id_x 1
.end_amdhsa_kernel
"""

def vr(a, n):
    return f"v[{a}:{a+n-1}]" if n > 1 else f"v{a}"
def ar(a, n):
    return f"a[{a}:{a+n-1}]" if n > 1 else f"a{a}"
def sr(a, n):
    return f"s[{a}:{a+n-1}]" if n > 1 else f"s{a}"

HEADER = """; Kernarg layout (96 bytes, ptrs only, base s[0:1]):
"""

def build(kerns, order=None):
    order = order or kerns
    s = HEADER
    for k in order:
        kn = f"kernel={k.name} " if len(order) > 1 else ""
        s += f"; @launch {kn}grid=({k.grid},1,1) block=({k.block},1,1) lds={k.lds}\n"
    s += '.amdgcn_target "amdgcn-amd-amdhsa--gfx950"\n.text\n'
    for k in kerns:
        s += k.text()
    s += '.section .rodata,"a"\n'
    for k in kerns:
        s += ".p2align 6\n" + k.desc()
    return s
```

```python
from asmlib import *
from layout import *
from k0 import ln_stats
import os
F = os.environ.get('K0X', 'wn')

KCP = 4160
REG = 4*KCP + 512 + 4096
REG0 = 0
SKL = 4*REG
TILE = 90112
STAT = TILE + 32768
FLAG = 149632
LDS_ALL = FLAG + 128
TAG = 204

def emit_front(k):
    e = k.e
    k.pfx = "f_"
    e("s_cmp_ge_u32 s2, 256")
    e(f"s_cbranch_scc1 {k.L('end')}")
    k.clear_stamps()
    e("s_load_dwordx8 s[4:11], s[0:1], 0")
    e("s_load_dwordx4 s[52:55], s[0:1], 80")
    e("s_load_dwordx4 s[12:15], s[0:1], 32")
    e("s_load_dwordx4 s[56:59], s[0:1], 56")
    e("v_lshrrev_b32 v1, 6, v0")
    e("s_lshr_b32 s40, s2, 3")
    e("v_readfirstlane_b32 s60, v1")
    e("s_and_b32 s41, s2, 7")
    e("s_lshl_b32 s61, s41, 7")
    e("s_lshl_b32 s62, s40, 2")
    e("s_add_u32 s61, s61, s62")
    e("s_and_b32 s62, s60, 3")
    e("s_add_u32 s61, s61, s62")
    e(f"s_mul_i32 s63, s62, {REG}")
    e(f"s_add_u32 s63, s63, {REG0}")
    e("s_lshl_b32 s39, s41, 12")
    e("v_mov_b32 v207, 0")
    e("s_getreg_b32 s38, hwreg(HW_REG_XCC_ID, 0, 4)")
    if 'f' in F: e("s_add_u32 s38, s38, s40")
    e("v_mov_b32 v206, s38")
    e("s_cmp_ge_u32 s60, 4")
    e(f"s_cbranch_scc1 {k.L('bwave')}")
    e("s_barrier")

    def spin(off, cond, lab, sleep=0):
        if off is not None: e(f"v_mov_b32 v33, {off}")
        k.label(lab)
        if sleep: e(f"s_sleep {sleep}")
        e("ds_read_b32 v34, v33")
        e("s_waitcnt lgkmcnt(0)")
        e(cond)
        e(f"s_cbranch_vccnz {k.L(lab)}")
    def setflag(off):
        e(f"v_mov_b32 v200, {off}")
        e("v_mov_b32 v201, 1")
        e("ds_write_b32 v200, v201")
    def publish(cnt_off, base, lab, r=200):
        e(f"v_mov_b32 v{r}, {FLAG + cnt_off}")
        e(f"v_mov_b32 v{r+1}, 1")
        e("s_mov_b64 exec, 1")
        e(f"ds_add_rtn_u32 v{r+2}, v{r}, v{r+1}")
        e("s_waitcnt lgkmcnt(0)")
        e(f"v_readfirstlane_b32 s3, v{r+2}")
        e("s_cmp_eq_u32 s3, 3")
        e(f"s_cbranch_scc0 {k.L(lab)}")
        e("s_lshl_b32 s3, s40, 7")
        e(f"v_mov_b32 v{r}, s3")
        e(f"s_add_u32 s3, s39, 0x{base:x}")
        e(f"buffer_store_dwordx3 {vr(TAG,3)}, v{r}, s[32:35], s3 offen")
        e(f"s_add_u32 s3, s3, 0x{FB_:x}")
        e(f"buffer_store_dwordx3 {vr(TAG,3)}, v{r}, s[32:35], s3 offen sc1")
        k.label(lab)
        e("s_mov_b64 exec, -1")
    def poll(base, lab, dual=True):
        e("v_and_b32 v121, 31, v0")
        e("v_lshlrev_b32 v121, 7, v121")
        e(f"s_add_u32 s28, s39, 0x{base:x}")
        e(f"s_add_u32 s29, s39, 0x{base + FB_:x}")
        e("s_mov_b32 s3, 0")
        e("v_mov_b32 v122, 0")
        k.label(lab)
        e("buffer_load_dwordx3 v[116:118], v121, s[32:35], s28 offen sc1")
        e("s_add_u32 s3, s3, 1")
        if dual:
            e("s_and_b32 s26, s3, 3")
            e(f"s_cbranch_scc1 {k.L(lab + '_a')}")
            e("buffer_load_dwordx3 v[122:124], v121, s[32:35], s29 offen sc1")
            k.label(lab + "_a")
        e("s_cmp_gt_u32 s3, 0x100000")
        e(f"s_cbranch_scc1 {k.L(lab + '_x')}")
        e("s_waitcnt vmcnt(0)")
        e(f"v_cmp_ne_u64 vcc, v[116:117], {vr(TAG,2)}")
        if dual:
            e(f"v_cmp_ne_u64 s[24:25], v[122:123], {vr(TAG,2)}")
            e("s_nop 0")
            e("v_cndmask_b32 v118, v118, v124, vcc")
            e("s_and_b64 vcc, vcc, s[24:25]")
        e(f"s_cbranch_vccnz {k.L(lab)}")
        k.label(lab + "_x")
        e("s_waitcnt vmcnt(0)")
    def tagload():
        e(f"buffer_load_dwordx2 {vr(TAG,2)}, v207, s[44:47], 0 offen sc1")
    def tagcheck(lab):
        e("s_mov_b32 s3, 0")
        k.label(lab)
        e(f"v_cmp_eq_u32 vcc, 0, v{TAG}")
        e(f"s_cbranch_vccz {k.L(lab + '_x')}")
        tagload()
        e("s_waitcnt vmcnt(0)")
        e("s_add_u32 s3, s3, 1")
        e("s_cmp_lt_u32 s3, 0x100000")
        e(f"s_cbranch_scc1 {k.L(lab)}")
        k.label(lab + "_x")
        e(f"v_readfirstlane_b32 s98, v{TAG}")
        e(f"v_readfirstlane_b32 s99, v{TAG+1}")
    def finish(lab, target):
        e("s_mov_b64 exec, -1")
        e(f"v_mov_b32 v200, {FLAG+52}")
        e("v_mov_b32 v201, 1")
        e("s_waitcnt vmcnt(0)")
        e("s_mov_b64 exec, 1")
        e("ds_add_rtn_u32 v202, v200, v201")
        e("s_waitcnt lgkmcnt(0)")
        e("v_readfirstlane_b32 s3, v202")
        e("s_cmp_eq_u32 s3, 7")
        e(f"s_cbranch_scc0 {k.L(lab)}")
        e("s_lshl_b32 s3, s2, 7")
        e(f"s_add_u32 s3, s3, 0x{FHT:x}")
        e(f"buffer_store_dwordx2 {vr(TAG,2)}, v207, s[32:35], s3 offen sc1")
        k.label(lab)
        e("s_mov_b64 exec, -1")
        e(f"s_branch {target}")

    e("v_and_b32 v6, 15, v0")
    e("v_lshrrev_b32 v7, 4, v0")
    e("s_lshl_b32 s42, s40, 17")
    e("s_lshl_b32 s43, s41, 8")
    e("s_add_u32 s42, s42, s43")
    e("v_lshlrev_b32 v1, 13, v7")
    e("v_lshl_add_u32 v1, v6, 4, v1")
    e("v_add_u32 v1, s42, v1")
    e("v_add_u32 v2, 0x1000, v1")
    e("v_add_u32 v3, 0xffffe800, v1")
    e("v_add_u32 v4, 0xfffff000, v1")
    e("v_add_u32 v5, 0xfffff800, v1")
    e("s_lshl_b32 s48, s41, 10")
    e("v_and_b32 v9, 63, v0")
    e("v_lshlrev_b32 v9, 4, v9")
    e(f"s_mov_b32 m0, {SKL}")
    e("s_waitcnt lgkmcnt(0)")
    k.srd(20, 6, 7, 4*MB)
    k.srd(24, 8, 9, 4*MB)
    k.srd(28, 10, 11, 8192)
    KR = 12; VR = 40; XR = 56; SK = 72
    e("buffer_load_dwordx4 v9, s[28:31], s48 offen lds")
    for i in range(4):
        e(f"buffer_load_dwordx4 {vr(KR+12+4*i,4)}, v{1+i//2}, s[20:23], 0 offen offset:{2048*(i%2)} nt")
    for i in range(4):
        e(f"buffer_load_dwordx4 {vr(VR+4*i,4)}, v{1+i//2}, s[24:27], 0 offen offset:{2048*(i%2)} nt")
    e(f"buffer_load_dwordx4 {vr(KR,4)}, v3, s[20:23], 0 offen nt")
    e(f"buffer_load_dwordx4 {vr(KR+4,4)}, v4, s[20:23], 0 offen nt")
    e(f"buffer_load_dwordx4 {vr(KR+8,4)}, v5, s[20:23], 0 offen nt")
    k.srd(16, 4, 5, 4*MB)
    for i in range(4):
        e(f"buffer_load_dwordx4 {vr(XR+4*i,4)}, v{1+i//2}, s[16:19], 0 offen offset:{2048*(i%2)} nt")
    k.srd(44, 52, 53, 256)
    tagload()
    k.srd(32, 54, 55, WS_BYTES)
    e("s_and_b32 s3, s61, -2")
    e("s_lshl_b32 s3, s3, 1")
    e("s_load_dword s51, s[14:15], s3")
    e("v_and_b32 v10, 14, v6")
    e("v_xor_b32 v11, v10, v7")
    e("v_xor_b32 v10, 1, v11")
    e("v_lshlrev_b32 v8, 10, v6")
    e("v_lshl_add_u32 v10, v10, 3, v8")
    e("v_lshl_add_u32 v11, v11, 3, v8")
    e(f"v_add_u32 v10, {TILE}, v10")
    e(f"v_add_u32 v11, {TILE}, v11")
    e(f"v_lshlrev_b32 v8, 6, v6")
    e(f"v_add_u32 v8, {SKL}, v8")
    e("s_mov_b32 s48, 0x05040100")
    e("s_mov_b32 s49, 0x07060302")
    e("s_mov_b32 s50, 0xffff0000")
    T = 104; KU = 112
    ACC = [2, 4, 8, 6]
    k.stamp(1)
    e("s_waitcnt vmcnt(16)")
    for q in range(4):
        e(f"ds_read_b128 {vr(SK+4*q,4)}, v8 offset:{16*q}")
    e("s_waitcnt vmcnt(5) lgkmcnt(0)")
    setflag(FLAG + 24)
    k.stamp(2)
    for jj in range(4):
        for c in range(2):
            d0 = SK + 4*jj + 2*c
            e(f"v_lshlrev_b32 v{T+0+c}, 16, v{d0}")
            e(f"v_and_b32 v{T+2+c}, s50, v{d0}")
            e(f"v_lshlrev_b32 v{T+4+c}, 16, v{d0+1}")
            e(f"v_and_b32 v{T+6+c}, s50, v{d0+1}")
        for r in range(7):
            e(f"v_lshlrev_b32 v{KU+2*r}, 16, v{KR+4*r+jj}")
            e(f"v_and_b32 v{KU+2*r+1}, s50, v{KR+4*r+jj}")
        for tap in (3, 2, 1, 0):
            for i in range(4):
                kk = KU + 2*(i+3-tap)
                if tap == 3:
                    e(f"v_pk_mul_f32 {vr(ACC[i],2)}, {vr(kk,2)}, {vr(T+2*tap,2)}")
                else:
                    e(f"v_pk_fma_f32 {vr(ACC[i],2)}, {vr(kk,2)}, {vr(T+2*tap,2)}, {vr(ACC[i],2)}")
        for i in range(4):
            e(f"v_lshlrev_b32 v{KU+2*i}, 16, v{VR+4*i+jj}")
            e(f"v_and_b32 v{KU+2*i+1}, s50, v{VR+4*i+jj}")
        for i in range(4):
            e(f"v_pk_mul_f32 {vr(ACC[i],2)}, {vr(ACC[i],2)}, {vr(KU+2*i,2)}")
        P = KU + 8
        for c in range(2):
            e(f"v_cvt_pk_bf16_f32 v{P+2*c}, v{ACC[3]+c}, v{ACC[2]+c}")
            e(f"v_cvt_pk_bf16_f32 v{P+2*c+1}, v{ACC[1]+c}, v{ACC[0]+c}")
        for c in range(2):
            e(f"ds_write_b64 v10, {vr(P+2*c,2)} offset:{128*(2*jj+c)}")
    e("s_waitcnt vmcnt(1)")
    for jj in range(4):
        for c in range(2):
            P = KR + 4*jj + 2*c
            sel = "s48" if c == 0 else "s49"
            e(f"v_perm_b32 v{P}, v{XR+4+jj}, v{XR+jj}, {sel}")
            e(f"v_perm_b32 v{P+1}, v{XR+12+jj}, v{XR+8+jj}, {sel}")
            e(f"ds_write_b64 v11, {vr(P,2)} offset:{16384+128*(2*jj+c)}")
    e("v_and_b32 v1, 7, v0")
    e("v_lshrrev_b32 v2, 7, v0")
    e("v_xor_b32 v2, v2, v1")
    e("v_lshrrev_b32 v3, 3, v0")
    e("v_lshlrev_b32 v4, 7, v3")
    e("v_lshl_add_u32 v4, v2, 4, v4")
    e(f"v_add_u32 v4, {TILE}, v4")
    e("v_xor_b32 v5, 32, v4")
    e("v_xor_b32 v6, 64, v4")
    e("v_xor_b32 v7, 96, v4")
    e("v_lshlrev_b32 v3, 12, v3")
    e("v_lshl_add_u32 v37, v1, 4, v3")
    e(f"v_mov_b32 v33, {FLAG+12}")
    e("v_mov_b32 v34, 1")
    e("s_waitcnt lgkmcnt(0)")
    e("s_mov_b64 exec, 1")
    e("ds_add_u32 v33, v34")
    e("s_mov_b64 exec, -1")
    e("s_lshl_b32 s4, s41, 19")
    e("s_lshl_b32 s5, s40, 7")
    e("s_add_u32 s4, s4, s5")
    for i in range(8):
        e(f"s_add_u32 s{16+i}, s4, 0x{(i%4)*131072 + (XT if i >= 4 else UT):x}")
    k.stamp(3)
    spin(None, "v_cmp_gt_u32 vcc, 4, v34", "waitT")
    R = 40
    for i in range(8):
        e(f"ds_read_b128 {vr(R+4*i,4)}, v{4+i%4} offset:{4096*(i%4) + (16384 if i >= 4 else 0)}")
    for i in range(4):
        e(f"s_waitcnt lgkmcnt({7-i})")
        e(f"buffer_store_dwordx4 {vr(R+4*i,4)}, v37, s[32:35], s{16+i} offen")
    e("v_and_b32 v0, 63, v0")
    e("v_and_b32 v5, 15, v0")
    e("v_lshrrev_b32 v6, 4, v0")
    e("s_lshl_b32 s12, s61, 12")
    e("v_lshlrev_b32 v7, 5, v5")
    e("v_lshl_add_u32 v7, v6, 3, v7")
    e(f"s_add_u32 s29, s12, 0x{HT:x}")
    e("v_sub_u32 v33, 7, v5")
    e("v_and_b32 v33, 3, v33")
    e(f"v_mul_u32_u24 v33, {KCP}, v33")
    e("v_lshrrev_b32 v34, 2, v5")
    e("v_lshl_add_u32 v33, v34, 3, v33")
    e("v_lshlrev_b32 v34, 4, v6")
    e("v_sub_u32 v33, v33, v34")
    e("s_add_u32 s30, s63, 24")
    e("v_add_u32 v1, s30, v33")
    e("v_lshlrev_b32 v33, 5, v5")
    e("v_add_u32 v33, v33, v34")
    e(f"s_add_u32 s30, s63, {4*KCP + 512 - 32*15}")
    e("v_add_u32 v3, s30, v33")
    AD = 192
    e("v_lshrrev_b32 v33, 3, v5")
    e("v_add_u32 v33, 2, v33")
    e("v_and_b32 v34, 7, v5")
    e("v_sub_u32 v34, 7, v34")
    e("v_cmp_eq_u32 vcc, v33, v6")
    e("v_lshrrev_b32 v35, 1, v34")
    e("v_and_b32 v34, 1, v34")
    e("v_cndmask_b32 v35, 9, v35, vcc")
    e("v_lshlrev_b32 v34, 4, v34")
    e("s_and_b32 s31, s61, 1")
    e("s_lshl_b32 s31, s31, 4")
    e("s_lshr_b32 s51, s51, s31")
    e("s_and_b32 s51, s51, 0xffff")
    e("v_mov_b32 v33, s51")
    e("v_lshlrev_b32 v34, v34, v33")
    for r in range(4):
        e(f"v_cmp_eq_u32 vcc, {r}, v35")
        e("s_nop 1")
        e(f"v_cndmask_b32 v{AD+r}, 0, v34, vcc")
    e("s_waitcnt vmcnt(0)")
    tagcheck("tagA")
    publish(0, FU, "pubU")
    k.stamp(4)
    for i in range(4, 8):
        e(f"buffer_store_dwordx4 {vr(R+4*i,4)}, v37, s[32:35], s{16+i} offen")
    FA = [64, 128]; FB = [96, 160]; AC = 8
    def reads(buf, ep):
        r = []
        for w in range(8):
            r.append(f"ds_read_b128 {vr(FB[buf]+4*w,4)}, v3 offset:{512*w + 32*(15-ep)}")
        for v in range(8):
            r.append(f"ds_read_b64 {vr(FA[buf]+4*v,2)}, v1 offset:{32*ep + 512*v}")
            r.append(f"ds_read_b64 {vr(FA[buf]+4*v+2,2)}, v1 offset:{32*ep + 512*v + 8}")
        return r
    def mfmas(buf):
        m = []
        for v in range(8):
            for w in range(8 - v):
                t = v + w
                m.append(f"v_mfma_f32_16x16x32_bf16 {vr(AC+4*t,4)}, {vr(FA[buf]+4*v,4)}, {vr(FB[buf]+4*w,4)}, {vr(AC+4*t,4)}")
        return m
    e("s_waitcnt vmcnt(0)")
    publish(4, FX, "pubX")
    e("s_lshl_b32 s3, s60, 2")
    e(f"s_add_u32 s3, s3, {FLAG+32}")
    e("v_mov_b32 v33, s3")
    spin(None, "v_cmp_eq_u32 vcc, 0, v34", "waitK")
    rd = reads(0, 1)
    for r in rd[8:]: e(r)
    spin(FLAG + 28, "v_cmp_eq_u32 vcc, 0, v34", "waitU")
    k.stamp(5)
    for r in rd[:8]: e(r)
    for t in range(8):
        e(f"s_waitcnt lgkmcnt({7-t})")
        e(f"v_mfma_f32_16x16x32_bf16 {vr(AC+4*t,4)}, {vr(AD,4)}, {vr(FB[0]+4*t,4)}, 0")
    e("s_mov_b32 s26, 0")
    k.label("loop")
    for buf, nxt in ((0, 3), (1, 5)):
        e("s_waitcnt lgkmcnt(0)")
        rd = reads(1 - buf, nxt)
        for i, m in enumerate(mfmas(buf)):
            e(m)
            if i < len(rd): e(rd[i])
    e("v_add_u32 v1, 128, v1")
    e("v_add_u32 v3, -128, v3")
    e("s_add_u32 s26, s26, 1")
    e("s_cmp_lt_u32 s26, 4")
    e(f"s_cbranch_scc1 {k.L('loop')}")
    e("v_lshlrev_b32 v1, 6, v5")
    e("v_lshl_add_u32 v1, v6, 4, v1")
    e(f"v_add_u32 v1, {STAT}, v1")
    e("s_lshl_b32 s26, s60, 12")
    e(f"s_add_u32 s26, s26, {TILE}")
    e("v_add_u32 v2, s26, v7")
    e(f"v_mov_b32 v200, {FLAG+48}")
    e("v_mov_b32 v201, 1")
    e("s_waitcnt lgkmcnt(0)")
    e("s_mov_b64 exec, 1")
    e("ds_add_u32 v200, v201")
    e("s_mov_b64 exec, -1")
    e(f"v_mov_b32 v3, {FLAG+16}")
    k.stamp(6)
    k.label("spoll")
    e("ds_read_b64 v[64:65], v3")
    e("s_waitcnt lgkmcnt(0)")
    e("v_and_b32 v64, v64, v65")
    e("v_cmp_eq_u32 vcc, 0, v64")
    e(f"s_cbranch_vccnz {k.L('spoll')}")
    MS = 64; RS = 96; XV = 176
    for t in range(8):
        e(f"ds_read_b64 {vr(XV+2*t,2)}, v2 offset:{512*t}")
    for t in range(3):
        e(f"ds_read_b128 {vr(MS+4*t,4)}, v1 offset:{1024*t}")
        e(f"ds_read_b128 {vr(RS+4*t,4)}, v1 offset:{1024*t+8192}")
    e("s_waitcnt lgkmcnt(6)")
    for t in range(8):
        if t + 3 < 8:
            e(f"ds_read_b128 {vr(MS+4*(t+3),4)}, v1 offset:{1024*(t+3)}")
            e(f"ds_read_b128 {vr(RS+4*(t+3),4)}, v1 offset:{1024*(t+3)+8192}")
        xu = 128 + 8*(t % 2); q = xu + 4
        e(f"v_lshlrev_b32 v{xu}, 16, v{XV+2*t}")
        e(f"v_and_b32 v{xu+1}, s50, v{XV+2*t}")
        e(f"v_lshlrev_b32 v{xu+2}, 16, v{XV+2*t+1}")
        e(f"v_and_b32 v{xu+3}, s50, v{XV+2*t+1}")
        e(f"s_waitcnt lgkmcnt({2*min(3, 7-t)})")
        for h in range(2):
            e(f"v_pk_add_f32 {vr(q+2*h,2)}, {vr(xu+2*h,2)}, {vr(MS+4*t+2*h,2)} neg_lo:[0,1] neg_hi:[0,1]")
        for h in range(2):
            e(f"v_pk_mul_f32 {vr(q+2*h,2)}, {vr(q+2*h,2)}, {vr(RS+4*t+2*h,2)}")
        for h in range(2):
            e(f"v_pk_fma_f32 {vr(q+2*h,2)}, {vr(q+2*h,2)}, {vr(AC+4*t+2*h,2)}, {vr(xu+2*h,2)}")
        e(f"v_cvt_pk_bf16_f32 v{XV+2*t}, v{q}, v{q+1}")
        e(f"v_cvt_pk_bf16_f32 v{XV+2*t+1}, v{q+2}, v{q+3}")
        e(f"buffer_store_dwordx2 {vr(XV+2*t,2)}, v7, s[32:35], s29 offen offset:{512*t} sc1")
    if STAMP: k.dump_stamps(0, 32, 60, keep=True)
    finish("finA", "Lmlp_compute")

    k.label("bwave")
    k.role = "B"
    e("s_setprio 3")
    e("v_and_b32 v0, 63, v0")
    e("v_lshlrev_b32 v2, 4, v0")
    e("v_mov_b32 v36, 0"); e("v_mov_b32 v37, 0"); e("v_mov_b32 v38, 0"); e("v_mov_b32 v39, 0")
    e("v_min_u32 v33, 48, v2")
    e(f"v_add_u32 v33, {FLAG}, v33")
    e("ds_write_b128 v33, v[36:39]")
    e("s_memrealtime s[48:49]")
    e("s_waitcnt lgkmcnt(0)")
    e("s_barrier")
    k.srd(44, 52, 53, 256)
    e("s_or_b32 s48, s48, 1")
    e("s_add_u32 s3, s2, s62")
    e("s_cmp_eq_u32 s3, 0")
    e(f"s_cbranch_scc0 {k.L('notag')}")
    e("v_mov_b32 v40, s48"); e("v_mov_b32 v41, s49")
    e("s_mov_b64 exec, 1")
    e("buffer_store_dwordx2 v[40:41], v207, s[44:47], 0 offen sc1")
    e("s_mov_b64 exec, -1")
    k.label("notag")
    e("s_setprio 0")
    e("v_add_u32 v3, -8, v2")
    e("v_add_u32 v4, 1016, v2")
    e("s_lshl_b32 s42, s61, 12")
    e("s_add_u32 s20, s12, s42")
    e("s_addc_u32 s21, s13, 0")
    e("s_and_b32 s21, s21, 0xffff")
    e("s_mov_b32 s22, 4096")
    e("s_mov_b32 s23, 0x20000")
    k.srd(16, 4, 5, 4*MB)
    k.srd(32, 54, 55, WS_BYTES)
    e("s_lshl_b32 s43, s2, 14")
    e("s_lshl_b32 s3, s62, 12")
    e("s_add_u32 s43, s43, s3")
    e("v_bfe_u32 v32, v0, 1, 2")
    e(f"v_mul_u32_u24 v32, {KCP}, v32")
    e("v_and_b32 v33, 1, v0")
    e("v_lshl_add_u32 v32, v33, 4, v32")
    e(f"v_add_u32 v33, {4*KCP}, v2")
    e("v_cmp_gt_u32 vcc, 32, v0")
    e("s_nop 1")
    e("v_cndmask_b32 v32, v32, v33, vcc")
    e("v_add_u32 v32, s63, v32")
    e("ds_write_b128 v32, v[36:39]")
    if 'e' not in F:
        spin(FLAG + 24, "v_cmp_eq_u32 vcc, 0, v34", "waitL", sleep=1)
    k.stamp(1)
    Y = 8; W = 24; ST = 88
    for i in range(4):
        e(f"buffer_load_dwordx4 {vr(Y+4*i,4)}, v2, s[20:23], 0 offen offset:{1024*i} nt")
        if i == 0: e(f"buffer_load_dwordx2 {vr(W,2)}, v3, s[20:23], 0 offen nt")
        else:      e(f"buffer_load_dwordx2 {vr(W+2*i,2)}, v4, s[20:23], 0 offen offset:{1024*(i-1)} nt")
    for i in range(4):
        e(f"buffer_load_dwordx4 {vr(ST+4*i,4)}, v2, s[16:19], s43 offen offset:{1024*i} nt")
    tagload()
    e("s_add_u32 s30, s63, 32")
    e("v_add_u32 v4, s30, v2")
    for i in range(4):
        e(f"s_waitcnt vmcnt({5 + 2*(3-i)})")
        y = Y + 4*i; w = W + 2*i
        X = 44 + 12*(i % 2); P1 = X + 4; P3 = X + 8
        e(f"ds_write_b128 v4, {vr(y,4)} offset:{1024*i}")
        e(f"v_mov_b32 v{X}, v{w+1}")
        for j in range(3): e(f"v_mov_b32 v{X+1+j}, v{y+j}")
        e(f"ds_write_b128 v4, {vr(X,4)} offset:{1024*i + 2*KCP}")
        e(f"v_alignbit_b32 v{P1}, v{y}, v{w+1}, 16")
        for j in range(3): e(f"v_alignbit_b32 v{P1+1+j}, v{y+1+j}, v{y+j}, 16")
        e(f"ds_write_b128 v4, {vr(P1,4)} offset:{1024*i + KCP}")
        e(f"v_alignbit_b32 v{P3}, v{w+1}, v{w}, 16")
        for j in range(3): e(f"v_mov_b32 v{P3+1+j}, v{P1+j}")
        e(f"ds_write_b128 v4, {vr(P3,4)} offset:{1024*i + 3*KCP}")
    e("s_lshl_b32 s3, s62, 2")
    e(f"s_add_u32 s3, s3, {FLAG+32}")
    e("v_mov_b32 v33, s3")
    e("v_mov_b32 v34, 1")
    e("s_waitcnt lgkmcnt(0)")
    e("ds_write_b32 v33, v34")
    k.stamp(2)
    S = [104, 105]; Q = [106, 107]
    for r in S + Q: e(f"v_mov_b32 v{r}, 0")
    e("s_mov_b32 s48, 0x3f803f80")
    e("s_waitcnt vmcnt(0)")
    for j in range(8):
        for r in range(2):
            e(f"v_dot2c_f32_bf16 v{S[r]}, s48, v{ST+8*r+j}")
            e(f"v_dot2c_f32_bf16 v{Q[r]}, v{ST+8*r+j}, v{ST+8*r+j}")
    e("s_nop 2")
    for mode in ("quad_perm:[1,0,3,2] row_mask:0xf", "quad_perm:[2,3,0,1] row_mask:0xf", "row_half_mirror row_mask:0xf",
                 "row_mirror row_mask:0xf", "row_bcast:15 row_mask:0xa", "row_bcast:31 row_mask:0xc"):
        for r in S + Q:
            e(f"v_add_f32_dpp v{r}, v{r}, v{r} {mode} bank_mask:0xf")
    ln_stats(k, S, Q, [108, 109], None, [112, 113], recip=False)
    tagcheck("tagB")
    e("s_mov_b32 s48, 0x07060302")
    e(f"v_perm_b32 v{TAG-2}, v112, v108, s48")
    e(f"v_perm_b32 v{TAG-1}, v113, v109, s48")
    e("s_lshl_b32 s48, s2, 6")
    e("s_lshl_b32 s49, s62, 4")
    e("s_add_u32 s48, s48, s49")
    e(f"s_add_u32 s48, s48, 0x{SG:x}")
    e("s_mov_b32 exec_lo, 0")
    e("s_mov_b32 exec_hi, 0x80000000")
    e(f"buffer_store_dwordx4 {vr(TAG-2,4)}, v207, s[32:35], s48 offen sc1")
    e("s_mov_b64 exec, -1")
    k.stamp(3)
    e("s_cmp_eq_u32 s62, 3")
    e(f"s_cbranch_scc0 {k.L('notB3')}")
    poll(FU, "pollU")
    e("v_cmp_ne_u32 vcc, s38, v118")
    e(f"s_cbranch_vccz {k.L('oneXCD')}")
    spin(FLAG + 4, "v_cmp_gt_u32 vcc, 4, v34", "waitX")
    e("buffer_wbl2 sc1")
    e("s_waitcnt vmcnt(0)")
    e("s_lshl_b32 s3, s40, 7")
    e("v_mov_b32 v200, s3")
    e(f"s_add_u32 s3, s39, 0x{F2:x}")
    e("s_mov_b64 exec, 1")
    e(f"buffer_store_dwordx3 {vr(TAG,3)}, v200, s[32:35], s3 offen sc1")
    e("s_mov_b64 exec, -1")
    poll(F2, "poll2", dual=False)
    e("buffer_inv sc1")
    e("s_waitcnt vmcnt(0)")
    k.label("oneXCD")
    k.stamp(1)
    if STAMP: e("s_mov_b32 s66, s3"); e("s_mov_b32 s67, 0")
    e("s_sub_u32 s13, s61, 3")
    e("s_lshl_b32 s13, s13, 12")
    for c in range(4):
        e(f"s_mov_b32 m0, {REG0 + c*REG + 4*KCP + 512}")
        e(f"s_add_u32 s14, s13, 0x{UT + 4096*c:x}")
        for p in range(4):
            e(f"buffer_load_dwordx4 v2, s[32:35], s14 offen offset:{1024*p} sc1 lds")
    setflag(FLAG + 8)
    e("s_waitcnt vmcnt(0)")
    setflag(FLAG + 28)
    k.stamp(2)
    k.label("notB3")
    e("s_cmp_eq_u32 s62, 1")
    e(f"s_cbranch_scc0 {k.L('notB1')}")
    e("s_lshl_b32 s3, s2, 7")
    e(f"s_add_u32 s3, s3, 0x{XID:x}")
    e("s_mov_b64 exec, 1")
    e(f"buffer_store_dwordx3 {vr(TAG,3)}, v207, s[32:35], s3 offen sc1")
    e("s_mov_b64 exec, -1")
    k.label("notB1")
    e("s_cmp_ge_u32 s62, 2")
    e(f"s_cbranch_scc1 {k.L('bfetch')}")
    spin(FLAG + 8, "v_cmp_eq_u32 vcc, 0, v34", "waitG", sleep=2)
    k.stamp(4)
    e("s_lshl_b32 s11, s40, 1")
    e("s_add_u32 s11, s11, s62")
    if 'n' in F:
        e("s_and_b32 s3, s41, 1")
        e("s_and_b32 s13, s11, 1")
        e("s_cmp_eq_u32 s3, s13")
        e(f"s_cbranch_scc0 {k.L('bdone')}")
    e("s_cmp_ge_u32 s11, 56")
    e(f"s_cbranch_scc1 {k.L('bdone')}")
    e("s_mul_i32 s13, s11, 4682")
    e("s_lshr_b32 s13, s13, 16")
    e("s_mul_i32 s14, s13, 14")
    e("s_sub_u32 s14, s11, s14")
    e("s_lshr_b32 s15, s41, 1")
    e("s_mul_i32 s15, s15, 896")
    e("s_lshl_b32 s14, s14, 6")
    e("s_add_u32 s14, s14, s15")
    e(f"s_mul_i32 s15, s13, {256*7168}")
    e("s_lshl_b32 s24, s14, 1")
    e("s_add_u32 s15, s15, s24")
    e("v_lshrrev_b32 v1, 3, v0")
    e("v_mul_u32_u24 v1, 7168, v1")
    e("v_and_b32 v2, 7, v0")
    e("v_lshl_add_u32 v1, v2, 4, v1")
    k.srd(16, 56, 57, 1024*3584*2)
    for n in range(32):
        e(f"buffer_load_dwordx4 {vr(16+4*n,4)}, v1, s[16:19], s15 offen{' nt' if 'n' in F else ''}")
        e(f"s_add_u32 s15, s15, {8*7168}")
    for i in range(8): e(f"v_mov_b32 v{8+i}, 0")
    e("s_mov_b32 s25, 0xffff0000")
    for n in range(32):
        e(f"s_waitcnt vmcnt({31-n})")
        for j in range(4):
            e(f"v_lshlrev_b32 v{144+2*j}, 16, v{16+4*n+j}")
            e(f"v_and_b32 v{145+2*j}, s25, v{16+4*n+j}")
        for j in range(8):
            e(f"v_add_f32 v{8+j}, v{8+j}, v{144+j}")
    e("s_nop 1")
    for i in range(8): e(f"v_add_f32_dpp v{8+i}, v{8+i}, v{8+i} row_ror:8 row_mask:0xf bank_mask:0xf")
    for op in ("v_permlane32_swap_b32", "v_permlane16_swap_b32"):
        for i in range(8): e(f"v_mov_b32 v{16+i}, v{8+i}")
        e("s_nop 1")
        for i in range(8): e(f"{op} v{8+i}, v{16+i}")
        e("s_nop 1")
        for i in range(8): e(f"v_add_f32 v{8+i}, v{8+i}, v{16+i}")
    if 'n' not in F:
        e("s_and_b32 s12, s41, 1")
        e("s_cmp_eq_u32 s12, 1")
        e(f"s_cbranch_scc1 {k.L('bdone')}")
    e(f"s_mul_i32 s15, s13, {3584*4}")
    e("s_lshl_b32 s14, s14, 2")
    e("s_add_u32 s15, s15, s14")
    e(f"s_add_u32 s15, s15, 0x{CS:x}")
    e("v_lshlrev_b32 v1, 5, v0")
    e("s_mov_b64 exec, 0xff")
    e("buffer_store_dwordx4 v[8:11], v1, s[32:35], s15 offen sc1")
    e("buffer_store_dwordx4 v[12:15], v1, s[32:35], s15 offen offset:16 sc1")
    e(f"s_branch {k.L('bdone')}")
    k.label("bfetch")
    e("s_sub_u32 s11, s62, 2")
    e("s_lshl_b32 s12, s11, 13")
    spin(FLAG + 8, "v_cmp_eq_u32 vcc, 0, v34", "waitG2", sleep=1)
    poll(FX, "pollX")
    k.stamp(4)
    e("s_sub_u32 s13, s61, s62")
    e("s_lshl_b32 s13, s13, 12")
    e("s_add_u32 s13, s13, s12")
    for q in range(2):
        e(f"s_add_u32 m0, s12, {TILE + 4096*q}")
        e(f"s_add_u32 s14, s13, 0x{XT + 4096*q:x}")
        for p in range(4):
            e(f"buffer_load_dwordx4 v2, s[32:35], s14 offen offset:{1024*p} sc1 lds")
    e(f"s_add_u32 s13, s12, 0x{SG:x}")
    e("s_add_u32 s14, s13, 4096")
    e("s_mov_b32 s3, 0")
    for q in range(8):
        e(f"buffer_load_dwordx4 {vr(16+4*q,4)}, v2, s[32:35], s{13 + q//4} offen offset:{1024*(q%4)}")
    e(f"s_branch {k.L('pollS_c')}")
    k.label("pollS")
    for q in range(8):
        e(f"buffer_load_dwordx4 {vr(16+4*q,4)}, v2, s[32:35], s{13 + q//4} offen offset:{1024*(q%4)} sc1")
    k.label("pollS_c")
    e("s_add_u32 s3, s3, 1")
    e("s_cmp_gt_u32 s3, 0x40000")
    e(f"s_cbranch_scc1 {k.L('pollS_x')}")
    e("s_waitcnt vmcnt(0)")
    e("s_mov_b64 s[22:23], 0")
    for q in range(8):
        e(f"v_cmp_ne_u64 vcc, {vr(18+4*q,2)}, {vr(TAG,2)}")
        e("s_or_b64 s[22:23], s[22:23], vcc")
    e("s_cmp_lg_u64 s[22:23], 0")
    e(f"s_cbranch_scc0 {k.L('pollS_x')}")
    e("s_sleep 8")
    e(f"s_branch {k.L('pollS')}")
    k.label("pollS_x")
    e("s_waitcnt vmcnt(0)")
    k.stamp(6)
    e("s_lshl_b32 s13, s11, 12")
    e(f"s_add_u32 s13, s13, {STAT}")
    e("v_lshl_add_u32 v3, v0, 3, s13")
    e("s_mov_b32 s14, 0xffff0000")
    for q in range(8):
        g = 16 + 4*q
        e(f"v_and_b32 v{g+2}, s14, v{g}")
        e(f"v_and_b32 v{g+3}, s14, v{g+1}")
        e(f"v_lshlrev_b32 v{g}, 16, v{g}")
        e(f"v_lshlrev_b32 v{g+1}, 16, v{g+1}")
        e(f"v_rcp_f32 v{g+2}, v{g+2}")
        e(f"v_rcp_f32 v{g+3}, v{g+3}")
        e(f"ds_write_b64 v3, {vr(g,2)} offset:{512*q}")
        e(f"ds_write_b64 v3, {vr(g+2,2)} offset:{512*q+8192}")
    e("s_lshl_b32 s12, s11, 2")
    e(f"s_add_u32 s12, s12, {FLAG+16}")
    e("v_mov_b32 v4, s12")
    e("v_mov_b32 v5, 1")
    e("s_waitcnt vmcnt(0) lgkmcnt(0)")
    e("ds_write_b32 v4, v5")
    if 'b' in F:
        e("s_add_u32 s3, s40, s11")
        e("s_cmp_eq_u32 s3, 0")
        e(f"s_cbranch_scc0 {k.L('nowb')}")
        e("buffer_wbl2 sc1")
        k.label("nowb")
    if 'w' not in F:
        k.srd(16, 58, 59, 1024*3584*2)
        e("s_lshl_b32 s30, s2, 1")
        e("s_add_u32 s30, s30, s11")
        e(f"s_mul_i32 s30, s30, {112*128}")
        e("v_lshlrev_b32 v6, 7, v0")
        e("v_add_u32 v7, 6144, v6")
        e("buffer_load_dword v8, v6, s[16:19], s30 offen")
        e("buffer_load_dword v9, v7, s[16:19], s30 offen")
    k.stamp(5)
    k.label("bdone")
    if STAMP: k.dump_stamps(0, 32, 60, keep=True)
    finish("finB", "Lmlp_loader")
    k.label("end")
    e("s_endpgm")
```

```python
from asmlib import *
from layout import *
from k0 import ln_stats
from kf import FLAG as FRONT_FLAG
import os
X = os.environ.get('MX', '')
FSLEEP = int(os.environ.get('FSLEEP', '4'))
RW = int(os.environ.get('K4RW', '4'))

STG1 = 45056; WOFF = 16384; NB1 = 3
STG2 = 32768; NB2 = 4; RES = NB2 * STG2; NST2 = 28
STATS = RES + 16384
CSL = STATS + 1024
MISC = CSL + 1024
NCS = 4

def weave(e, ms, fill, waits=None, mid=None, sched=None):
    fill = list(fill)
    for i, m in enumerate(ms):
        if mid and i == mid[0]:
            for t in mid[1]: e(t)
        if waits and i in waits: e(waits[i])
        e(m)
        for _ in range(sched[i] if i < len(sched) else 0):
            if fill: e(fill.pop(0))
    assert not fill, fill

def emit_mlp(k):
    e = k.e
    k.pfx = "m_"
    def entry():
        e("s_load_dwordx4 s[4:7], s[0:1], 56")
        e("s_load_dwordx2 s[8:9], s[0:1], 88")
        e("s_load_dwordx2 s[56:57], s[0:1], 72")
        e("s_mov_b32 s10, s60")
        e("s_mov_b32 s55, s38")
        e("s_and_b32 s11, s2, 7")
        e("s_lshr_b32 s12, s2, 3")
        e("s_lshr_b32 s13, s11, 1")
        e("s_lshl_b32 s13, s13, 2")
        e("s_and_b32 s14, s12, 3")
        e("s_add_u32 s13, s13, s14")
        e("s_and_b32 s15, s11, 1")
        e("s_lshr_b32 s53, s12, 2")
        e("s_lshl_b32 s14, s15, 3")
        e("s_add_u32 s14, s14, s53")
        e("v_lshrrev_b32 v2, 4, v0")
    k.lines.append("Lmlp_compute:")
    entry()
    def trcommon():
        e("v_bfe_u32 v3, v0, 2, 2")
        e("v_and_b32 v4, 3, v0")
        e("v_and_b32 v5, 1, v2")
        e("v_lshl_or_b32 v6, v5, 2, v3")
        e("v_lshl_add_u32 v7, v2, 3, v3")
        e("v_lshlrev_b32 v8, 8, v7")
        e("v_lshl_add_u32 v8, v4, 3, v8")

    trcommon()
    ACC = 16; FW = [128, 172]; FH = [156, 200]
    AH = [1, 2, 3, 4]; AW = [9, 10, 11]
    e("s_and_b32 s24, s10, 1")
    e("s_lshr_b32 s25, s10, 1")
    e("v_mul_u32_u24 v12, 448, v7")
    e("v_lshl_add_u32 v12, v4, 3, v12")
    e(f"v_add_u32 v12, {WOFF}, v12")
    e("v_lshl_add_u32 v13, v5, 5, v12")
    e("v_xor_b32 v14, 1, v5")
    e("v_lshl_add_u32 v14, v14, 5, v12")
    e("s_lshl_b32 s26, s25, 8")
    e("v_add_u32 v9, s26, v13")
    e("v_add_u32 v10, s26, v14")
    e("s_cmp_eq_u32 s25, 0")
    e("s_cselect_b64 vcc, -1, 0")
    e("v_cndmask_b32 v11, v14, v13, vcc")
    e("v_add_u32 v11, 192, v11")
    e("v_mov_b32 v15, v2")
    e("s_lshl_b32 s26, s24, 2")
    for j in range(4):
        e(f"s_add_u32 s27, s26, {j}")
        e(f"v_xor_b32 v12, s27, v6")
        e(f"v_lshl_add_u32 v{AH[j]}, v12, 5, v8")
    for i in range(112):
        e(f"v_mov_b32 v{ACC+i}, 0")
    e("s_waitcnt lgkmcnt(0)")
    k.srd(20, 8, 9, WS_BYTES)
    k.srd(44, 56, 57, 4*MB)
    def reads1(st, step):
        r = []
        for j in range(4):
            for h in range(2):
                r.append(f"ds_read_b64_tr_b16 {vr(FH[st]+4*j+2*h,2)}, v{AH[j]} offset:{8192*step+1024*h}")
        for i in range(7):
            a, o = (AW[i % 2], 64*(i//2)) if i < 6 else (AW[2], 0)
            for h in range(2):
                r.append(f"ds_read_b64_tr_b16 {vr(FW[st]+4*i+2*h,2)}, v{a} offset:{14336*step+1792*h+o}")
        return r
    def mfmas1(st):
        return [f"v_mfma_f32_16x16x32_bf16 {vr(ACC+4*(4*i+j),4)}, {vr(FW[st]+4*i,4)}, {vr(FH[st]+4*j,4)}, {vr(ACC+4*(4*i+j),4)}"
                for i in range(7) for j in range(4)]
    e("s_mov_b32 s28, 0")
    e("s_mov_b32 s29, 0")
    e("s_barrier")
    k.stamp(1)
    for r in reads1(0, 0): e(r)
    k.label("c1loop")
    sal = ["s_add_u32 s29, s29, 1", f"s_mov_b32 s30, {STG1}", "s_cmp_eq_u32 s29, 3", f"s_cselect_b32 s30, {-2*STG1}, s30",
           "s_cselect_b32 s29, 0, s29", "s_add_u32 s28, s28, 1"]
    weave(e, mfmas1(0), reads1(1, 1) + sal, waits={4*i: f"s_waitcnt lgkmcnt({min(15, 12+2*i)})" for i in range(7)}, sched=[1]*28)
    weave(e, mfmas1(1), [f"v_add_u32 v{a}, s30, v{a}" for a in AH + AW] + reads1(0, 0) + ["s_cmp_lt_u32 s28, 16"],
          waits={0: "s_waitcnt lgkmcnt(12)"}, mid=(4, ["s_waitcnt lgkmcnt(0)", "s_barrier"]), sched=[0]*4 + [2]*6 + [1]*18)
    e(f"s_cbranch_scc1 {k.L('c1loop')}")
    k.stamp(2)
    e("v_and_b32 v1, 15, v0")
    e("s_lshl_b32 s26, s24, 9")
    e(f"s_add_u32 s26, s26, {STATS}")
    e("v_lshl_add_u32 v1, v1, 3, s26")
    e("s_lshl_b32 s26, s25, 9")
    e(f"s_add_u32 s26, s26, {CSL}")
    e("v_lshl_add_u32 v2, v15, 4, s26")
    e("s_mul_i32 s26, s25, 64")
    e(f"s_add_u32 s26, s26, {CSL+384}")
    e("v_lshl_add_u32 v3, v15, 4, s26")
    e(f"v_mov_b32 v6, {MISC}")
    e("s_waitcnt lgkmcnt(0)")
    MR = 128; C2 = 136; CSV = 144
    e("ds_read_b32 v7, v6 offset:4")
    for j in range(4):
        e(f"ds_read_b64 {vr(MR+2*j,2)}, v1 offset:{128*j}")
    for i in range(7):
        e(f"ds_read_b128 {vr(CSV+4*i,4)}, v{2 if i < 6 else 3} offset:{64*i if i < 6 else 0}")
    e("s_lshl_b32 s26, s25, 12")
    e("v_lshl_add_u32 v4, v0, 4, s26")
    e("s_lshl_b32 s26, s25, 3")
    e("s_add_u32 s26, s26, 3072")
    e("v_lshl_add_u32 v5, v0, 4, s26")
    e("s_lshl_b32 s26, s13, 3")
    e("s_lshl_b32 s27, s24, 2")
    e("s_add_u32 s26, s26, s27")
    e("s_mul_i32 s26, s26, 112")
    e("s_mul_i32 s27, s14, 7")
    e("s_add_u32 s26, s26, s27")
    e("s_lshl_b32 s26, s26, 10")
    e(f"s_add_u32 s32, s26, 0x{HM:x}")
    for j in range(1, 4):
        e(f"s_add_u32 s{32+j}, s32, {112*1024*j}")
    e("s_waitcnt lgkmcnt(0)")
    e("v_readfirstlane_b32 s54, v7")
    for j in range(4):
        e(f"v_mul_f32 v{C2+2*j}, 0xbfb8aa3b, v{MR+2*j+1}")
    e("s_mov_b32 s58, 0xbfb8aa3b")
    e("s_mov_b32 s59, 0xbfb8aa3b")
    e("s_cmp_eq_u32 s54, 1")
    nsite = [0]
    def store2(ops):
        n = nsite[0]; nsite[0] += 1
        e(f"s_cbranch_scc1 {k.L(f'pl{n}')}")
        for o in ops: e(o + " sc1")
        e(f"s_branch {k.L(f'st{n}')}")
        k.label(f"pl{n}")
        for o in ops: e(o)
        k.label(f"st{n}")
    T = 172
    def elem8(tiles, out):
        P = T; Xr = T + 8
        def each(f):
            for n, (i, j) in enumerate(tiles):
                for h in range(2):
                    e(f(ACC + 4*(4*i+j) + 2*h, CSV + 4*i + 2*h, j, P + 4*n + 2*h, Xr + 4*n + 2*h))
        each(lambda a, c, j, p, x: f"v_pk_fma_f32 {vr(a,2)}, {vr(c,2)}, {vr(MR+2*j,2)}, {vr(a,2)} op_sel_hi:[1,0,1] neg_lo:[0,1,0] neg_hi:[0,1,0]")
        each(lambda a, c, j, p, x: f"v_pk_mul_f32 {vr(p,2)}, {vr(a,2)}, {vr(C2+2*j,2)} op_sel_hi:[1,0]")
        for q in range(8): e(f"v_exp_f32 v{Xr+q}, v{P+q}")
        each(lambda a, c, j, p, x: f"v_pk_fma_f32 {vr(x,2)}, {vr(x,2)}, s[58:59], s[58:59]")
        for q in range(8): e(f"v_rcp_f32 v{Xr+q}, v{Xr+q}")
        each(lambda a, c, j, p, x: f"v_pk_mul_f32 {vr(p,2)}, {vr(p,2)}, {vr(x,2)}")
        for q in range(4): e(f"v_cvt_pk_bf16_f32 v{out+q}, v{P+2*q}, v{P+2*q+1}")
    n = 0
    for j in range(4):
        for pr in range(3):
            o = 192 + 4*(n % 4); n += 1
            elem8([(2*pr, j), (2*pr+1, j)], o)
            store2([f"buffer_store_dwordx4 {vr(o,4)}, v4, s[20:23], s{32+j} offen offset:{1024*pr}"])
        if j % 2 == 1:
            o = 192 + 4*(n % 4); n += 1
            elem8([(6, j-1), (6, j)], o)
            store2([f"buffer_store_dwordx2 {vr(o,2)}, v5, s[20:23], s{32+j-1} offen",
                    f"buffer_store_dwordx2 {vr(o+2,2)}, v5, s[20:23], s{32+j} offen"])
    k.stamp(3)

    NS = 4
    F0 = ACC + 64
    GW = [F0, F0 + 32]; GH = [F0 + 16, F0 + 48]
    BW = [8, 9, 10, 11]; BH = 12
    e("v_mov_b32 v2, v15")
    e("v_bfe_u32 v3, v0, 2, 2")
    e("v_and_b32 v4, 3, v0")
    e("v_lshl_add_u32 v7, v2, 2, v3")
    e("v_and_b32 v5, 7, v7")
    e("v_lshlrev_b32 v13, 8, v7")
    e("v_lshl_add_u32 v13, v4, 3, v13")
    e(f"v_add_u32 v13, {WOFF}, v13")
    e("s_lshl_b32 s26, s25, 2")
    for i in range(4):
        e(f"s_add_u32 s27, s26, {i}")
        e(f"v_xor_b32 v14, s27, v5")
        e(f"v_lshl_add_u32 v{BW[i]}, v14, 5, v13")
    e("s_lshl_b32 s26, s24, 12")
    e(f"v_lshl_add_u32 v{BH}, v0, 4, s26")
    for i in range(64):
        e(f"v_mov_b32 v{ACC+i}, 0")
    e("v_mov_b32 v13, 1")
    e("s_lshl_b32 s26, s2, 7")
    e(f"s_add_u32 s26, s26, 0x{HFL:x}")
    e("v_mov_b32 v14, 0")
    e("v_mov_b32 v216, s98")
    e("v_mov_b32 v217, s99")
    e("s_waitcnt vmcnt(0)")
    e("s_mov_b64 exec, 1")
    e("ds_add_rtn_u32 v1, v6, v13")
    e("s_waitcnt lgkmcnt(0)")
    e("v_readfirstlane_b32 s27, v1")
    e("s_cmp_eq_u32 s27, 3")
    e(f"s_cbranch_scc0 {k.L('noflag')}")
    e("s_cmp_eq_u32 s54, 1")
    store2(["buffer_store_dwordx2 v[216:217], v14, s[20:23], s26 offen"])
    k.label("noflag")
    e("s_mov_b64 exec, -1")
    e("v_bfe_u32 v6, v7, 1, 2")
    def hoff(j): return 2048*(j % 2) + 8192*(j // 2)
    def reads2(st, step):
        r = []
        for j in range(NS):
            r.append(f"ds_read_b128 {vr(GH[st]+4*j,4)}, v{BH} offset:{hoff(j)+1024*step}")
        for i in range(4):
            for h in range(2):
                r.append(f"ds_read_b64_tr_b16 {vr(GW[st]+4*i+2*h,2)}, v{BW[i]} offset:{8192*step+4096*h}")
        return r
    def mfmas2(st):
        return [f"v_mfma_f32_16x16x32_bf16 {vr(ACC+4*(NS*i+j),4)}, {vr(GW[st]+4*i,4)}, {vr(GH[st]+4*j,4)}, {vr(ACC+4*(NS*i+j),4)}"
                for i in range(4) for j in range(NS)]
    e("s_mov_b32 s28, 0")
    e("s_mov_b32 s29, 0")
    e("s_barrier")
    k.stamp(4)
    for r in reads2(0, 0): e(r)
    k.label("c2loop")
    sal = ["s_add_u32 s29, s29, 1", f"s_mov_b32 s30, {STG2}", f"s_cmp_eq_u32 s29, {NB2}", f"s_cselect_b32 s30, {-(NB2-1)*STG2}, s30",
           "s_cselect_b32 s29, 0, s29", "s_add_u32 s28, s28, 1"]
    weave(e, mfmas2(0), reads2(1, 1) + sal,
          waits={0: "s_waitcnt lgkmcnt(6)", 4: "s_waitcnt lgkmcnt(12)", 8: "s_waitcnt lgkmcnt(14)", 12: "s_waitcnt lgkmcnt(12)"},
          sched=[2]*6 + [1]*6)
    weave(e, mfmas2(1), [f"v_add_u32 v{a}, s30, v{a}" for a in [BH] + BW] + reads2(0, 0) + [f"s_cmp_lt_u32 s28, {NST2}"],
          waits={0: "s_waitcnt lgkmcnt(6)"}, mid=(4, ["s_waitcnt lgkmcnt(0)", "s_barrier"]), sched=[0]*4 + [2]*6 + [1]*6)
    e(f"s_cbranch_scc1 {k.L('c2loop')}")
    k.stamp(5)
    T = F0
    e("s_lshl_b32 s26, s2, 2")
    e("s_add_u32 s26, s26, s10")
    e("s_xor_b32 s27, s26, 4")
    e("s_lshl_b32 s31, s26, 13")
    e(f"s_add_u32 s31, s31, 0x{PART:x}")
    e("s_lshl_b32 s32, s27, 13")
    e(f"s_add_u32 s32, s32, 0x{PART:x}")
    e("s_add_u32 s33, s31, 4096")
    e("s_add_u32 s34, s32, 4096")
    e("s_lshl_b32 s35, s26, 7")
    e(f"s_add_u32 s35, s35, 0x{FLG:x}")
    e("s_lshl_b32 s36, s27, 7")
    e(f"s_add_u32 s36, s36, 0x{FLG:x}")
    e("v_lshlrev_b32 v14, 4, v0")
    e("s_cmp_eq_u32 s15, 0")
    e(f"s_cbranch_scc1 {k.L('send_hi')}")
    for own in (1, 0):
        if own == 0: k.label("send_hi")
        for i in range(4):
            for jj in range(2):
                j = 2*(1-own) + jj
                n = 2*i + jj
                e(f"buffer_store_dwordx4 {vr(ACC+4*(NS*i+j),4)}, v14, s[20:23], s{31 if n < 4 else 33} offen offset:{1024*(n%4)} sc1")
        if own == 1:
            e("s_nop 1")
            for i in range(4):
                for q in range(8):
                    e(f"v_mov_b32 v{ACC+4*NS*i+q}, v{ACC+4*NS*i+8+q}")
            e(f"s_branch {k.L('sent')}")
    k.label("sent")
    e("v_lshlrev_b32 v13, 7, v7")
    e("v_lshl_add_u32 v13, v4, 3, v13")
    e("s_lshl_b32 s26, s25, 13")
    e(f"s_add_u32 s26, s26, {RES}")
    e("v_add_u32 v13, s26, v13")
    e("s_lshl_b32 s26, s24, 1")
    for j in range(2):
        e(f"s_add_u32 s27, s26, {j}")
        e(f"v_xor_b32 v15, s27, v6")
        e(f"v_lshl_add_u32 v{8+j}, v15, 5, v13")
    e("s_waitcnt lgkmcnt(0)")
    HR = T
    for i in range(4):
        for j in range(2):
            e(f"ds_read_b64_tr_b16 {vr(HR+2*(2*i+j),2)}, v{8+j} offset:{2048*i}")
    e("v_and_b32 v10, 15, v0")
    e("v_lshrrev_b32 v11, 1, v2")
    e("v_and_b32 v12, 7, v10")
    e("v_xor_b32 v11, v11, v12")
    e("v_lshlrev_b32 v11, 4, v11")
    e("v_lshl_add_u32 v11, v10, 7, v11")
    e("v_and_b32 v12, 1, v2")
    e("v_lshl_add_u32 v11, v12, 3, v11")
    e("s_lshl_b32 s26, s10, 12")
    e("v_add_u32 v3, s26, v11")
    e("v_xor_b32 v4, 32, v3")
    e("v_xor_b32 v5, 64, v3")
    e("v_xor_b32 v6, 96, v3")
    e("v_lshrrev_b32 v10, 3, v0")
    e("v_and_b32 v11, 7, v0")
    e("v_xor_b32 v12, v11, v10")
    e("v_lshlrev_b32 v12, 4, v12")
    e("v_lshl_add_u32 v12, v10, 7, v12")
    e("v_add_u32 v7, s26, v12")
    e("v_lshlrev_b32 v10, 11, v10")
    e("v_lshl_add_u32 v10, v11, 4, v10")
    e("s_lshl_b32 s26, s13, 7")
    e("s_lshl_b32 s27, s24, 5")
    e("s_add_u32 s26, s26, s27")
    e("s_lshl_b32 s27, s15, 6")
    e("s_add_u32 s26, s26, s27")
    e("s_lshl_b32 s26, s26, 11")
    e("s_lshl_b32 s27, s53, 8")
    e("s_add_u32 s26, s26, s27")
    e("s_lshl_b32 s27, s25, 7")
    e("s_add_u32 s48, s26, s27")
    for q in range(1, 4):
        e(f"s_add_u32 s{48+q}, s48, {q*8*2048}")
    PR = T + 16; U = PR + 32
    e("s_mov_b32 s37, 0xffff0000")
    e("s_waitcnt lgkmcnt(0)")
    for i in range(4):
        for j in range(2):
            n = 2*i + j; a = ACC + 4*(NS*i + j); u = U + 4*(n % 2)
            e(f"v_lshlrev_b32 v{u}, 16, v{HR+2*n}")
            e(f"v_and_b32 v{u+1}, s37, v{HR+2*n}")
            e(f"v_lshlrev_b32 v{u+2}, 16, v{HR+2*n+1}")
            e(f"v_and_b32 v{u+3}, s37, v{HR+2*n+1}")
            for h in range(2):
                e(f"v_pk_add_f32 {vr(a+2*h,2)}, {vr(a+2*h,2)}, {vr(u+2*h,2)}")
    e("v_mov_b32 v15, 0")
    e("s_waitcnt vmcnt(0)")
    e("s_mov_b64 exec, 1")
    e("buffer_store_dwordx2 v[216:217], v15, s[20:23], s35 offen sc1")
    e("s_mov_b32 s38, 0")
    k.label("poll")
    e("buffer_load_dwordx2 v[218:219], v15, s[20:23], s36 offen sc1")
    e("s_add_u32 s38, s38, 1")
    e("s_cmp_gt_u32 s38, 0x200000")
    e(f"s_cbranch_scc1 {k.L('polled')}")
    e("s_waitcnt vmcnt(0)")
    e("v_cmp_ne_u64 vcc, v[218:219], v[216:217]")
    e(f"s_cbranch_vccnz {k.L('poll')}")
    k.label("polled")
    k.stamp(6)
    e("s_mov_b64 exec, -1")
    for n in range(8):
        e(f"buffer_load_dwordx4 {vr(PR+4*n,4)}, v14, s[20:23], s{32 if n < 4 else 34} offen offset:{1024*(n%4)} sc1")
    for i in range(4):
        for j in range(2):
            n = 2*i + j; a = ACC + 4*(NS*i + j)
            e(f"s_waitcnt vmcnt({7-n})")
            for h in range(2):
                e(f"v_pk_add_f32 {vr(a+2*h,2)}, {vr(a+2*h,2)}, {vr(PR+4*n+2*h,2)}")
            e(f"v_cvt_pk_bf16_f32 v{HR+2*n}, v{a}, v{a+1}")
            e(f"v_cvt_pk_bf16_f32 v{HR+2*n+1}, v{a+2}, v{a+3}")
            e(f"ds_write_b64 v{3+i}, {vr(HR+2*n,2)} offset:{2048*j}")
    e("s_waitcnt lgkmcnt(0)")
    for q in range(4):
        e(f"ds_read_b128 {vr(PR+4*q,4)}, v7 offset:{1024*q}")
    for q in range(4):
        e(f"s_waitcnt lgkmcnt({3-q})")
        e(f"buffer_store_dwordx4 {vr(PR+4*q,4)}, v10, s[44:47], s{48+q} offen")
    if STAMP:
        e("s_waitcnt vmcnt(0)")
        k.dump_stamps(1, 20, 10)
    e("s_endpgm")

    k.lines.append("Lmlp_loader:")
    entry()
    e("v_mov_b32 v216, s98")
    e("v_mov_b32 v217, s99")
    e("s_sub_u32 s24, s10, 4")
    VH = 16; VW = 20
    e("s_lshl_b32 s47, s24, 16")
    e("s_lshl_b32 s26, s13, 8")
    e("s_add_u32 s47, s47, s26")
    e(f"s_add_u32 s47, s47, 0x{HT:x}")
    e(f"s_mul_i32 s48, s24, {16*7168}")
    e("s_mul_i32 s27, s14, 448")
    e("s_add_u32 s48, s48, s27")
    e("s_mov_b32 s36, s14")
    e("s_mov_b32 s49, 0")
    e("s_lshl_b32 s25, s36, 18")
    e("s_add_u32 s25, s25, s47")
    e(f"s_mul_i32 s26, s36, {64*7168}")
    e("s_add_u32 s26, s26, s48")
    e("s_lshl_b32 s27, s24, 12")
    e("s_mul_i32 s28, s24, 7168")
    e(f"s_add_u32 s28, s28, {WOFF}")
    e("v_bfe_u32 v9, v0, 1, 3")
    e("v_and_b32 v10, 1, v0")
    e("v_lshlrev_b32 v10, 4, v10")
    e("v_lshl_add_u32 v10, v2, 12, v10")
    e("v_xor_b32 v9, v9, v2")
    for pp in range(4):
        if pp == 2: e("v_xor_b32 v9, 4, v9")
        e(f"v_lshl_add_u32 v{VH+pp}, v9, 5, v10")
        if pp: e(f"v_add_u32 v{VH+pp}, {pp*(16384-1024)}, v{VH+pp}")
    def wpat(q):
        e(f"v_add_u32 v9, {64*q}, v0")
        e("v_mul_u32_u24 v10, 9363, v9")
        e("v_lshrrev_b32 v10, 18, v10")
        e("v_mul_u32_u24 v11, 28, v10")
        e("v_sub_u32 v11, v9, v11")
        e("v_lshrrev_b32 v12, 2, v10")
        e("v_and_b32 v12, 2, v12")
        e("v_xor_b32 v11, v11, v12")
        e("v_mul_u32_u24 v12, 7168, v10")
        e("v_lshl_add_u32 v12, v11, 4, v12")
        e(f"v_add_u32 v{VW+q}, {-1024*(q%4)}, v12")
    for q in range(7): wpat(q)
    e("s_waitcnt lgkmcnt(0)")
    k.srd(20, 8, 9, WS_BYTES)
    k.srd(16, 4, 5, 1024*3584*2)
    def advance():
        e("s_add_u32 s49, s49, 1")
        e("s_add_u32 s37, s36, 1")
        e("s_and_b32 s37, s37, 3")
        e("s_and_b32 s36, s36, 12")
        e("s_or_b32 s36, s36, s37")
        e("s_and_b32 s37, s49, 3")
        e("s_cmp_eq_u32 s37, 0")
        e("s_cselect_b32 s37, 4, 0")
        e("s_add_u32 s36, s36, s37")
        e("s_and_b32 s36, s36, 15")
        e("s_lshl_b32 s25, s36, 18")
        e("s_add_u32 s25, s25, s47")
        e(f"s_mul_i32 s26, s36, {64*7168}")
        e("s_add_u32 s26, s26, s48")
    def hpart(so, m0):
        e(m0); e("s_nop 0")
        for pp in range(4):
            e(f"buffer_load_dwordx4 v{VH+pp}, s[20:23], {so} offen offset:{1024*pp} sc1 lds")
    def wpart(buf):
        e(f"s_add_u32 m0, s28, {buf}"); e("s_nop 0")
        for q in range(7):
            if q == 4: e(f"s_add_u32 m0, s28, {buf+4096}"); e("s_nop 0")
            e(f"buffer_load_dwordx4 v{VW+q}, s[16:19], s26 offen offset:{1024*(q%4)} lds")
    e(f"v_mov_b32 v33, {FRONT_FLAG+48}")
    k.label("waitM")
    e("s_sleep 1")
    e("ds_read_b32 v34, v33")
    e("s_waitcnt lgkmcnt(0)")
    e("v_cmp_gt_u32 vcc, 4, v34")
    e(f"s_cbranch_vccnz {k.L('waitM')}")
    wpart(0)
    e("s_mov_b32 s50, s25")
    advance()
    wpart(STG1)
    e("s_mov_b32 s51, s25")
    advance()
    e(f"v_mov_b32 v33, {FRONT_FLAG+56}")
    e("s_cmp_eq_u32 s24, 0")
    e(f"s_cbranch_scc0 {k.L('frelay')}")
    e(f"v_mov_b32 v35, {FRONT_FLAG+52}")
    k.label("waitF")
    e("s_sleep 1")
    e("ds_read_b32 v34, v35")
    e("s_waitcnt lgkmcnt(0)")
    e("v_cmp_gt_u32 vcc, 8, v34")
    e(f"s_cbranch_vccnz {k.L('waitF')}")
    e("v_lshlrev_b32 v9, 7, v0")
    for q in range(4): e(f"s_mov_b32 s{43+q}, 0x{FHT + 8192*q:x}")
    e("s_mov_b32 s39, 0")
    k.label("fpoll")
    e(f"s_sleep {FSLEEP}")
    for q in range(4):
        e(f"buffer_load_dwordx2 {vr(40+2*q,2)}, v9, s[20:23], s{43+q} offen sc1")
    e("s_add_u32 s39, s39, 1")
    e("s_cmp_gt_u32 s39, 0x100000")
    e(f"s_cbranch_scc1 {k.L('fpolled')}")
    e("s_waitcnt vmcnt(0)")
    e("s_mov_b64 s[30:31], 0")
    for q in range(4):
        e(f"v_cmp_ne_u64 vcc, {vr(40+2*q,2)}, v[216:217]")
        e("s_or_b64 s[30:31], s[30:31], vcc")
    e("s_cmp_lg_u64 s[30:31], 0")
    e(f"s_cbranch_scc1 {k.L('fpoll')}")
    k.label("fpolled")
    if STAMP: e("s_mov_b32 s76, s39"); e("s_mov_b32 s77, 0"); e("s_mov_b32 s92, 1")
    e("v_mov_b32 v34, 1")
    e("ds_write_b32 v33, v34")
    e(f"s_branch {k.L('fgo')}")
    k.label("frelay")
    e("s_sleep 1")
    e("ds_read_b32 v34, v33")
    e("s_waitcnt lgkmcnt(0)")
    e("v_cmp_eq_u32 vcc, 0, v34")
    e(f"s_cbranch_vccnz {k.L('frelay')}")
    k.label("fgo")
    k.stamp(5)
    hpart("s50", "s_mov_b32 m0, s27")
    hpart("s51", f"s_add_u32 m0, s27, {STG1}")
    e(f"s_mov_b32 s29, {2*STG1}")
    def issue1():
        e("s_add_u32 m0, s27, s29")
        e("s_add_u32 s30, s28, s29")
        for pp in range(4):
            e(f"buffer_load_dwordx4 v{VH+pp}, s[20:23], s25 offen offset:{1024*pp} sc1 lds")
        e("s_mov_b32 m0, s30")
        e("s_nop 0")
        for q in range(4):
            e(f"buffer_load_dwordx4 v{VW+q}, s[16:19], s26 offen offset:{1024*q} lds")
        e("s_add_u32 m0, s30, 4096")
        e(f"s_add_u32 s29, s29, {STG1}")
        for q in range(4, 7):
            e(f"buffer_load_dwordx4 v{VW+q}, s[16:19], s26 offen offset:{1024*(q-4)} lds")
        e(f"s_cmp_eq_u32 s29, {NB1*STG1}")
        e("s_cselect_b32 s29, 0, s29")
        advance()
    e("s_waitcnt vmcnt(4)")
    e("s_barrier")
    k.stamp(1)
    CSR = 28
    e("s_mul_i32 s31, s14, 896")
    e("s_mul_i32 s32, s24, 224")
    e("s_add_u32 s31, s31, s32")
    e(f"s_add_u32 s31, s31, 0x{CS:x}")
    e("v_lshlrev_b32 v9, 2, v0")
    for p in range(NCS):
        e(f"s_add_u32 s32, s31, {p*3584*4}")
        e(f"buffer_load_dword v{CSR+p}, v9, s[20:23], s32 offen sc1")
    issue1()
    trcommon()
    e("s_lshl_b32 s31, s24, 1")
    e("v_xor_b32 v12, s31, v6")
    e("v_lshl_add_u32 v36, v12, 5, v8")
    e("v_xor_b32 v37, 32, v36")
    S = [40, 42]; Q = [44, 46]
    for r in range(40, 48): e(f"v_mov_b32 v{r}, 0")
    e("s_mov_b32 s33, 0xffff0000")
    D = 48; U = 64
    for t in range(2):
        for st in range(2):
            for h in range(2):
                e(f"ds_read_b64_tr_b16 {vr(D+8*t+4*st+2*h,2)}, v{36+t} offset:{8192*st+1024*h}")
    e("s_waitcnt lgkmcnt(0)")
    for j in range(8):
        for t in range(2):
            u = U + 2*t
            e(f"v_lshlrev_b32 v{u}, 16, v{D+8*t+j}")
            e(f"v_and_b32 v{u+1}, s33, v{D+8*t+j}")
        for t in range(2):
            u = U + 2*t
            for q in range(2):
                e(f"v_add_f32 v{S[t]+q}, v{S[t]+q}, v{u+q}")
                e(f"v_fmac_f32 v{Q[t]+q}, v{u+q}, v{u+q}")
    def greduce(regs):
        for op in ("v_permlane32_swap_b32", "v_permlane16_swap_b32"):
            for i, r in enumerate(regs): e(f"v_mov_b32 v{D+i}, v{r}")
            e("s_nop 1")
            for i, r in enumerate(regs): e(f"{op} v{r}, v{D+i}")
            e("s_nop 1")
            for i, r in enumerate(regs): e(f"v_add_f32 v{r}, v{r}, v{D+i}")
    for r in S + Q: e(f"v_add_f32 v{r}, v{r}, v{r+1}")
    greduce(S + Q)
    e("v_cmp_gt_u32 vcc, 16, v0")
    e("s_lshl_b32 s31, s13, 15")
    e("s_lshl_b32 s32, s24, 9")
    e("s_add_u32 s31, s31, s32")
    e(f"s_add_u32 s31, s31, 0x{SP2:x}")
    e("s_lshl_b32 s32, s14, 11")
    e("s_add_u32 s32, s32, s31")
    e(f"v_cndmask_b32 v214, v{S[1]}, v{S[0]}, vcc")
    e(f"v_cndmask_b32 v215, v{Q[1]}, v{Q[0]}, vcc")
    e("v_lshlrev_b32 v9, 4, v0")
    e("s_mov_b64 exec, 0xffffffff")
    e("buffer_store_dwordx4 v[214:217], v9, s[20:23], s32 offen sc1")
    e("s_mov_b64 exec, -1")
    e("s_mov_b32 s35, 0")
    k.label("l1loop")
    e("s_cmp_eq_u32 s35, 0")
    e(f"s_cbranch_scc1 {k.L('lw20')}")
    e("s_cmp_eq_u32 s35, 1")
    e(f"s_cbranch_scc1 {k.L('lw12')}")
    e("s_waitcnt vmcnt(11)")
    k.label("lw12")
    e("s_waitcnt vmcnt(12)")
    k.label("lw20")
    e(f"s_waitcnt vmcnt({12+NCS})")
    e("s_barrier")
    e("s_cmp_ge_u32 s35, 13")
    e(f"s_cbranch_scc1 {k.L('l1done')}")
    issue1()
    e("s_add_u32 s35, s35, 1")
    e(f"s_branch {k.L('l1loop')}")
    k.label("l1done")
    k.stamp(2)
    e("v_and_b32 v10, 31, v0")
    e("v_lshlrev_b32 v9, 4, v10")
    e("v_lshrrev_b32 v11, 5, v0")
    e("v_lshl_add_u32 v9, v11, 11, v9")
    e("v_and_b32 v11, 7, v0")
    e("v_lshlrev_b32 v11, 12, v11")
    e("s_and_b32 s34, s2, 31")
    e("s_lshl_b32 s34, s34, 7")
    e(f"s_add_u32 s50, s34, 0x{XID:x}")
    e(f"s_add_u32 s51, s34, 0x{HFL:x}")
    e("s_mov_b32 s39, 0")
    G = 68
    k.label("spoll")
    e("s_mov_b32 s32, s31")
    for q in range(8):
        e(f"buffer_load_dwordx4 {vr(G+4*q,4)}, v9, s[20:23], s32 offen sc1")
        e("s_add_u32 s32, s32, 4096")
    e("buffer_load_dwordx3 v[64:66], v11, s[20:23], s50 offen sc1")
    e("s_add_u32 s39, s39, 1")
    e("s_cmp_gt_u32 s39, 0x100000")
    e(f"s_cbranch_scc1 {k.L('spolled')}")
    e("s_waitcnt vmcnt(0)")
    e("v_cmp_ne_u64 s[44:45], v[64:65], v[216:217]")
    for q in range(8):
        e(f"v_cmp_ne_u64 vcc, {vr(G+4*q+2,2)}, v[216:217]")
        e("s_or_b64 s[44:45], s[44:45], vcc")
    e("s_cmp_lg_u64 s[44:45], 0")
    e(f"s_cbranch_scc1 {k.L('spoll')}")
    k.label("spolled")
    e("s_waitcnt vmcnt(0)")
    e("v_cmp_ne_u32 vcc, s55, v66")
    for q in range(1, 8):
        for j in range(2):
            e(f"v_add_f32 v{40+j}, v{G+j if q == 1 else 40+j}, v{G+4*q+j}")
    e("s_cmp_eq_u64 vcc, 0")
    e("s_cselect_b32 s54, 1, 2")
    if 'f' in X: e("s_mov_b32 s54, 2")
    for i in range(2): e(f"v_mov_b32 v{D+i}, v{40+i}")
    e("s_nop 1")
    for i in range(2): e(f"v_permlane32_swap_b32 v{40+i}, v{D+i}")
    e("s_nop 1")
    for i in range(2): e(f"v_add_f32 v{40+i}, v{40+i}, v{D+i}")
    ln_stats(k, [40], [41], [56], [57], [60])
    e("s_lshl_b32 s31, s24, 8")
    e(f"s_add_u32 s31, s31, {STATS}")
    e("v_lshl_add_u32 v9, v10, 3, s31")
    e("ds_write_b64 v9, v[56:57]")
    e(f"v_mov_b32 v9, {MISC}")
    e("v_mov_b32 v62, 0")
    e("v_mov_b32 v63, s54")
    e("ds_write_b64 v9, v[62:63]")
    for p in range(1, NCS):
        e(f"v_add_f32 v{CSR}, v{CSR}, v{CSR+p}")
    e("s_mul_i32 s31, s24, 224")
    e(f"s_add_u32 s31, s31, {CSL}")
    e("v_lshl_add_u32 v9, v0, 2, s31")
    e("v_cmp_gt_u32 vcc, 56, v0")
    e("s_and_saveexec_b64 s[36:37], vcc")
    e(f"ds_write_b32 v9, v{CSR}")
    e("s_mov_b64 exec, -1")
    e("s_waitcnt lgkmcnt(0)")
    e("s_barrier")
    VA = 16; VW2 = 18; VR = 22
    e(f"v_lshlrev_b32 v{VA}, 4, v0")
    e(f"v_add_u32 v{VA+1}, {112*1024-2048}, v{VA}")
    e("v_bfe_u32 v9, v0, 1, 3")
    e("v_and_b32 v10, 1, v0")
    e("v_lshlrev_b32 v10, 4, v10")
    e("v_lshl_add_u32 v10, v2, 11, v10")
    e("v_xor_b32 v9, v9, v2")
    e("v_xor_b32 v12, 4, v9")
    for pp in range(4):
        e(f"v_lshl_add_u32 v{VW2+pp}, v{9 if pp % 2 == 0 else 12}, 5, v10")
        if pp: e(f"v_add_u32 v{VW2+pp}, {pp*(8192-1024)}, v{VW2+pp}")
    e("v_bfe_u32 v9, v0, 1, 2")
    e("v_xor_b32 v9, v9, v2")
    e("v_and_b32 v10, 1, v0")
    e("v_lshlrev_b32 v10, 4, v10")
    e("v_lshl_add_u32 v10, v9, 5, v10")
    e("v_lshrrev_b32 v9, 3, v0")
    e(f"v_lshl_add_u32 v{VR}, v9, 12, v10")
    for pp in range(1, 4):
        e(f"v_add_u32 v{VR+pp}, {pp*(32768-1024)}, v{VR}")
    k.srd(40, 6, 7, 1024*3584*2)
    e("s_lshl_b32 s47, s13, 3")
    e("s_lshl_b32 s26, s24, 1")
    e("s_add_u32 s47, s47, s26")
    e("s_mul_i32 s47, s47, 112")
    e("s_mul_i32 s26, s15, 56")
    e("s_add_u32 s47, s47, s26")
    e("s_lshl_b32 s47, s47, 10")
    e(f"s_add_u32 s47, s47, 0x{HM:x}")
    e("s_mul_i32 s48, s15, 1792")
    e("s_lshl_b32 s27, s24, 4")
    e("s_add_u32 s48, s48, s27")
    e("s_lshl_b32 s48, s48, 11")
    e("s_lshl_b32 s27, s53, 8")
    e("s_add_u32 s48, s48, s27")
    e("s_add_u32 s36, s13, s53")
    e(f"s_and_b32 s36, s36, {RW-1}")
    e("s_lshl_b32 s27, s24, 12")
    e(f"s_add_u32 s28, s27, {WOFF}")
    assert RW == NB2 or RW == 1
    def st_of(n):
        e(f"s_add_u32 s37, s36, {n}")
        if RW > 1: e(f"s_and_b32 s37, s37, {RW-1}")
    e("s_barrier")
    k.stamp(3)
    for n in range(NB2):
        st_of(n)
        e("s_lshl_b32 s26, s37, 17")
        e("s_add_u32 s26, s26, s48")
        e(f"s_add_u32 m0, s28, {n*STG2}")
        e("s_nop 0")
        for pp in range(4):
            e(f"buffer_load_dwordx4 v{VW2+pp}, s[40:43], s26 offen offset:{1024*pp} lds")
    e("s_lshl_b32 s31, s53, 7")
    e("s_lshl_b32 s32, s24, 5")
    e("s_add_u32 s31, s31, s32")
    e("s_lshl_b32 s31, s31, 12")
    e("s_lshl_b32 s32, s13, 8")
    e("s_add_u32 s31, s31, s32")
    e("s_lshl_b32 s32, s15, 7")
    e("s_add_u32 s31, s31, s32")
    e(f"s_add_u32 s31, s31, 0x{HT:x}")
    e(f"s_add_u32 m0, s27, {RES}")
    e("s_nop 0")
    for pp in range(4):
        e(f"buffer_load_dwordx4 v{VR+pp}, s[20:23], s31 offen offset:{1024*pp} lds")
    e("s_mov_b32 s39, 0")
    k.label("hpoll")
    e("s_sleep 2")
    e("buffer_load_dwordx2 v[64:65], v11, s[20:23], s51 offen sc1")
    e("s_add_u32 s39, s39, 1")
    e("s_cmp_gt_u32 s39, 0x100000")
    e(f"s_cbranch_scc1 {k.L('hpolled')}")
    e("s_waitcnt vmcnt(0)")
    e("v_cmp_ne_u64 vcc, v[64:65], v[216:217]")
    e(f"s_cbranch_vccnz {k.L('hpoll')}")
    k.label("hpolled")
    k.stamp(4)
    for n in range(NB2):
        st_of(n)
        e("s_lshl_b32 s25, s37, 11")
        e("s_add_u32 s25, s25, s47")
        e(f"s_add_u32 m0, s27, {n*STG2}")
        e("s_nop 0")
        for pp in range(4):
            e(f"buffer_load_dwordx4 v{VA+pp//2}, s[20:23], s25 offen offset:{1024*pp} sc1 lds")
        if n == 1:
            e("s_waitcnt vmcnt(4)")
            e("s_barrier")
    e("s_mov_b32 s29, 0")
    e(f"s_mov_b32 s35, {NB2}")
    def issue2():
        e("s_add_u32 s37, s36, s35")
        if RW > 1:
            e(f"s_and_b32 s37, s37, {RW-1}")
            e(f"s_andn2_b32 s38, s35, {RW-1}")
            e("s_or_b32 s37, s37, s38")
        e("s_lshl_b32 s25, s37, 11")
        e("s_add_u32 s25, s25, s47")
        e("s_lshl_b32 s26, s37, 17")
        e("s_add_u32 m0, s27, s29")
        e("s_add_u32 s26, s26, s48")
        for pp in range(4):
            e(f"buffer_load_dwordx4 v{VA+pp//2}, s[20:23], s25 offen offset:{1024*pp} sc1 lds")
        e("s_add_u32 m0, s28, s29")
        e(f"s_add_u32 s29, s29, {STG2}")
        for pp in range(4):
            e(f"buffer_load_dwordx4 v{VW2+pp}, s[40:43], s26 offen offset:{1024*pp} lds")
        e(f"s_and_b32 s29, s29, {NB2*STG2-1}")
        e("s_add_u32 s35, s35, 1")
    e("s_waitcnt vmcnt(8)")
    e("s_barrier")
    issue2()
    e("s_waitcnt vmcnt(12)")
    e("s_barrier")
    issue2()
    k.label("l2loop")
    e("s_waitcnt vmcnt(16)")
    e("s_barrier")
    issue2()
    e(f"s_cmp_lt_u32 s35, {NST2}")
    e(f"s_cbranch_scc1 {k.L('l2loop')}")
    for i in range(NST2-NB2, NST2):
        left = max(NST2 - 1 - (i + 1), 0)
        e(f"s_waitcnt vmcnt({left*8})")
        e("s_barrier")
    k.dump_stamps(1, 20, 10)
    e("s_endpgm")
```

```python
import sys, os
from asmlib import *
import kf, km
NAME = "sequential_preLN__ssm_conv_h3__dense_activation_silu__prompt"
def main(out):
    k = Kern(NAME + "_kernel", 256, 512, kf.LDS_ALL, nvgpr=224)
    kf.emit_front(k)
    km.emit_mlp(k)
    k.lines.append('Lcode_end:')
    open(out, "w").write(build([k]))
if __name__ == "__main__":
    main(sys.argv[1] if len(sys.argv) > 1 else f"cdna_kernels/{NAME}.s")
```

```python
import os
STAMP = int(os.environ.get('STAMP', '0'))
TS = 200 << 20
DBG = int(os.environ.get('DBG', '0'))
WT = os.environ.get('WT', '')
WT = (' ' + WT) if WT else ''
class Kern:
    def __init__(self, name, grid, block, lds, nvgpr, nsgpr=102, accum=None, nagpr=0):
        self.name = name; self.grid = grid; self.block = block; self.lds = lds
        self.nvgpr = nvgpr; self.nsgpr = nsgpr; self.nagpr = nagpr
        self.accum = accum if accum is not None else (nvgpr + 3) // 4 * 4
        self.lines = []
        self.uid = 0
        self.pfx = ""
        self.role = "A"
        self.dbgmap = {("f_", "A", 2): 2, ("f_", "A", 4): 3, ("f_", "A", 5): 4, ("f_", "A", 6): 5, ("m_", "A", 0): 6, ("m_", "A", 1): 7,
                       ("m_", "A", 2): 8, ("m_", "A", 3): 9, ("m_", "A", 4): 10, ("m_", "A", 5): 11, ("m_", "A", 6): 12, ("m_", "A", 7): 13}
    def e(self, s):
        for ln in s.strip("\n").split("\n"):
            ln = ln.strip()
            if ln:
                self.lines.append("    " + ln)
    def c(self, s):
        self.lines.append("    ; " + s)
    def label(self, l):
        self.lines.append(f"{self.L(l)}:")
    def L(self, l):
        return f"L{self.name[:6]}_{self.pfx}{l}"
    def srd(self, d, lo, hi, nbytes):
        self.e(f"s_mov_b32 s{d}, s{lo}")
        self.e(f"s_and_b32 s{d+1}, s{hi}, 0xffff")
        self.e(f"s_mov_b32 s{d+2}, 0x{nbytes:x}")
        self.e(f"s_mov_b32 s{d+3}, 0x20000")
    def stamp(self, i):
        if DBG and self.dbgmap.get((self.pfx, self.role, i)) is not None:
            self.e("s_memrealtime s[96:97]")
            self.e("s_waitcnt lgkmcnt(0)")
            self.e(f"v_writelane_b32 v220, s96, {self.dbgmap[(self.pfx, self.role, i)]}")
        if not STAMP: return
        self.e(f"s_memrealtime s[{80+2*i}:{81+2*i}]")
        self.e(f"s_memtime s[{64+2*i}:{65+2*i}]")
        self.e("s_waitcnt lgkmcnt(0)")
    def dump_stamps(self, kid, srd, wave_sreg, n=8, keep=False):
        if not STAMP: return
        self.stamp(n - 1)
        self.e("s_mov_b64 exec, 1")
        self.e(f"s_add_u32 s100, s2, {kid*256}")
        self.e("s_lshl_b32 s100, s100, 3")
        self.e(f"s_add_u32 s100, s100, s{wave_sreg}")
        self.e("s_lshl_b32 s100, s100, 7")
        self.e(f"s_add_u32 s100, s100, 0x{TS:x}")
        self.e("v_mov_b32 v212, 0")
        for q in range(8):
            for j in range(4):
                self.e(f"v_mov_b32 v{208+j}, s{(80+4*q+j) if q < 4 else (64+4*(q-4)+j)}")
            self.e(f"buffer_store_dwordx4 v[208:211], v212, s[{srd}:{srd+3}], s100 offen offset:{16*q}")
            self.e("s_nop 1")
        if keep:
            self.e("s_mov_b64 exec, -1")
            self.clear_stamps()
    def dbg_out(self):
        if not DBG: return
        e = self.e
        e("s_waitcnt vmcnt(0)")
        self.stamp(7)
        e("s_cmp_eq_u32 s10, 0")
        e("s_cbranch_scc0 Ldbg_skip")
        e("s_load_dwordx2 s[60:61], s[0:1], 80")
        e("s_waitcnt lgkmcnt(0)")
        self.srd(60, 60, 61, 256)
        e("v_subrev_u32 v220, s98, v220")
        e("v_lshlrev_b32 v221, 2, v0")
        e("s_mov_b64 exec, 0x3ffc")
        e("buffer_atomic_add v220, v221, s[60:63], 0 offen sc1")
        e("s_mov_b64 exec, 0x2000")
        e("buffer_atomic_umax v220, v221, s[60:63], 0 offen offset:8 sc1")
        e("s_mov_b64 exec, 0x40")
        e("buffer_atomic_umax v220, v221, s[60:63], 0 offen offset:32 sc1")
        self.lines.append("Ldbg_skip:")
    def clear_stamps(self):
        if not STAMP: return
        for i in range(32): self.e(f"s_mov_b32 s{64+i}, 0")
        self.stamp(0)
    def text(self):
        out = [f".globl {self.name}", ".p2align 8", f".type {self.name},@function", f"{self.name}:"]
        out += self.lines
        return "\n".join(out) + "\n"
    def desc(self):
        nfv = self.accum + self.nagpr if self.nagpr else self.nvgpr
        return f""".amdhsa_kernel {self.name}
  .amdhsa_next_free_vgpr {nfv}
  .amdhsa_next_free_sgpr {self.nsgpr}
  .amdhsa_accum_offset {self.accum}
  .amdhsa_group_segment_fixed_size 0
  .amdhsa_kernarg_size 96
  .amdhsa_user_sgpr_count 2
  .amdhsa_user_sgpr_kernarg_segment_ptr 1
  .amdhsa_system_sgpr_workgroup_id_x 1
.end_amdhsa_kernel
"""

def vr(a, n):
    return f"v[{a}:{a+n-1}]" if n > 1 else f"v{a}"
def ar(a, n):
    return f"a[{a}:{a+n-1}]" if n > 1 else f"a{a}"
def sr(a, n):
    return f"s[{a}:{a+n-1}]" if n > 1 else f"s{a}"

HEADER = """; Kernarg layout (96 bytes, ptrs only, base s[0:1]):
"""

def build(kerns, order=None):
    order = order or kerns
    s = HEADER
    for k in order:
        kn = f"kernel={k.name} " if len(order) > 1 else ""
        s += f"; @launch {kn}grid=({k.grid},1,1) block=({k.block},1,1) lds={k.lds}\n"
    s += '.amdgcn_target "amdgcn-amd-amdhsa--gfx950"\n.text\n'
    for k in kerns:
        s += k.text()
    s += '.section .rodata,"a"\n'
    for k in kerns:
        s += ".p2align 6\n" + k.desc()
    return s
```

```python
from asmlib import *
from layout import *
from k0 import ln_stats
from kf import FLAG as FRONT_FLAG
import os
X = os.environ.get('MX', '')
FSLEEP = int(os.environ.get('FSLEEP', '4'))
RW = int(os.environ.get('K4RW', '4'))

STG1 = 45056; WOFF = 16384; NB1 = 3
STG2 = 32768; NB2 = 4; RES = NB2 * STG2; NST2 = 28
STATS = RES + 16384
CSL = STATS + 1024
MISC = CSL + 1024
NCS = 4

def weave(e, ms, fill, waits=None, mid=None, sched=None):
    fill = list(fill)
    for i, m in enumerate(ms):
        if mid and i == mid[0]:
            for t in mid[1]: e(t)
        if waits and i in waits: e(waits[i])
        e(m)
        for _ in range(sched[i] if i < len(sched) else 0):
            if fill: e(fill.pop(0))
    assert not fill, fill

def emit_mlp(k):
    e = k.e
    k.pfx = "m_"
    def entry():
        e("s_load_dwordx4 s[4:7], s[0:1], 56")
        e("s_load_dwordx2 s[8:9], s[0:1], 88")
        e("s_load_dwordx2 s[56:57], s[0:1], 72")
        e("s_mov_b32 s10, s60")
        e("s_mov_b32 s55, s38")
        e("s_and_b32 s11, s2, 7")
        e("s_lshr_b32 s12, s2, 3")
        e("s_lshr_b32 s13, s11, 1")
        e("s_lshl_b32 s13, s13, 2")
        e("s_and_b32 s14, s12, 3")
        e("s_add_u32 s13, s13, s14")
        e("s_and_b32 s15, s11, 1")
        e("s_lshr_b32 s53, s12, 2")
        e("s_lshl_b32 s14, s15, 3")
        e("s_add_u32 s14, s14, s53")
        e("v_lshrrev_b32 v2, 4, v0")
    k.lines.append("Lmlp_compute:")
    k.role = "A"
    if DBG: k.stamp(0)
    entry()
    def trcommon():
        e("v_bfe_u32 v3, v0, 2, 2")
        e("v_and_b32 v4, 3, v0")
        e("v_and_b32 v5, 1, v2")
        e("v_lshl_or_b32 v6, v5, 2, v3")
        e("v_lshl_add_u32 v7, v2, 3, v3")
        e("v_lshlrev_b32 v8, 8, v7")
        e("v_lshl_add_u32 v8, v4, 3, v8")

    trcommon()
    ACC = 16; FW = [128, 172]; FH = [156, 200]
    AH = [1, 2, 3, 4]; AW = [9, 10, 11]
    e("s_and_b32 s24, s10, 1")
    e("s_lshr_b32 s25, s10, 1")
    e("v_mul_u32_u24 v12, 448, v7")
    e("v_lshl_add_u32 v12, v4, 3, v12")
    e(f"v_add_u32 v12, {WOFF}, v12")
    e("v_lshl_add_u32 v13, v5, 5, v12")
    e("v_xor_b32 v14, 1, v5")
    e("v_lshl_add_u32 v14, v14, 5, v12")
    e("s_lshl_b32 s26, s25, 8")
    e("v_add_u32 v9, s26, v13")
    e("v_add_u32 v10, s26, v14")
    e("s_cmp_eq_u32 s25, 0")
    e("s_cselect_b64 vcc, -1, 0")
    e("v_cndmask_b32 v11, v14, v13, vcc")
    e("v_add_u32 v11, 192, v11")
    e("v_mov_b32 v15, v2")
    e("s_lshl_b32 s26, s24, 2")
    for j in range(4):
        e(f"s_add_u32 s27, s26, {j}")
        e(f"v_xor_b32 v12, s27, v6")
        e(f"v_lshl_add_u32 v{AH[j]}, v12, 5, v8")
    for i in range(112):
        e(f"v_mov_b32 v{ACC+i}, 0")
    e("s_waitcnt lgkmcnt(0)")
    k.srd(20, 8, 9, WS_BYTES)
    k.srd(44, 56, 57, 4*MB)
    def reads1(st, step):
        r = []
        for j in range(4):
            for h in range(2):
                r.append(f"ds_read_b64_tr_b16 {vr(FH[st]+4*j+2*h,2)}, v{AH[j]} offset:{8192*step+1024*h}")
        for i in range(7):
            a, o = (AW[i % 2], 64*(i//2)) if i < 6 else (AW[2], 0)
            for h in range(2):
                r.append(f"ds_read_b64_tr_b16 {vr(FW[st]+4*i+2*h,2)}, v{a} offset:{14336*step+1792*h+o}")
        return r
    def mfmas1(st):
        return [f"v_mfma_f32_16x16x32_bf16 {vr(ACC+4*(4*i+j),4)}, {vr(FW[st]+4*i,4)}, {vr(FH[st]+4*j,4)}, {vr(ACC+4*(4*i+j),4)}"
                for i in range(7) for j in range(4)]
    e("s_mov_b32 s28, 0")
    e("s_mov_b32 s29, 0")
    e("s_barrier")
    k.stamp(1)
    for r in reads1(0, 0): e(r)
    k.label("c1loop")
    sal = ["s_add_u32 s29, s29, 1", f"s_mov_b32 s30, {STG1}", "s_cmp_eq_u32 s29, 3", f"s_cselect_b32 s30, {-2*STG1}, s30",
           "s_cselect_b32 s29, 0, s29", "s_add_u32 s28, s28, 1"]
    weave(e, mfmas1(0), reads1(1, 1) + sal, waits={4*i: f"s_waitcnt lgkmcnt({min(15, 12+2*i)})" for i in range(7)}, sched=[1]*28)
    weave(e, mfmas1(1), [f"v_add_u32 v{a}, s30, v{a}" for a in AH + AW] + reads1(0, 0) + ["s_cmp_lt_u32 s28, 16"],
          waits={0: "s_waitcnt lgkmcnt(12)"}, mid=(4, ["s_waitcnt lgkmcnt(0)", "s_barrier"]), sched=[0]*4 + [2]*6 + [1]*18)
    e(f"s_cbranch_scc1 {k.L('c1loop')}")
    k.stamp(2)
    e("v_and_b32 v1, 15, v0")
    e("s_lshl_b32 s26, s24, 9")
    e(f"s_add_u32 s26, s26, {STATS}")
    e("v_lshl_add_u32 v1, v1, 3, s26")
    e("s_lshl_b32 s26, s25, 9")
    e(f"s_add_u32 s26, s26, {CSL}")
    e("v_lshl_add_u32 v2, v15, 4, s26")
    e("s_mul_i32 s26, s25, 64")
    e(f"s_add_u32 s26, s26, {CSL+384}")
    e("v_lshl_add_u32 v3, v15, 4, s26")
    e(f"v_mov_b32 v6, {MISC}")
    e("s_waitcnt lgkmcnt(0)")
    MR = 128; C2 = 136; CSV = 144
    e("ds_read_b32 v7, v6 offset:4")
    for j in range(4):
        e(f"ds_read_b64 {vr(MR+2*j,2)}, v1 offset:{128*j}")
    for i in range(7):
        e(f"ds_read_b128 {vr(CSV+4*i,4)}, v{2 if i < 6 else 3} offset:{64*i if i < 6 else 0}")
    e("s_lshl_b32 s26, s25, 12")
    e("v_lshl_add_u32 v4, v0, 4, s26")
    e("s_lshl_b32 s26, s25, 3")
    e("s_add_u32 s26, s26, 3072")
    e("v_lshl_add_u32 v5, v0, 4, s26")
    e("s_lshl_b32 s26, s13, 3")
    e("s_lshl_b32 s27, s24, 2")
    e("s_add_u32 s26, s26, s27")
    e("s_mul_i32 s26, s26, 112")
    e("s_mul_i32 s27, s14, 7")
    e("s_add_u32 s26, s26, s27")
    e("s_lshl_b32 s26, s26, 10")
    e(f"s_add_u32 s32, s26, 0x{HM:x}")
    for j in range(1, 4):
        e(f"s_add_u32 s{32+j}, s32, {112*1024*j}")
    e("s_waitcnt lgkmcnt(0)")
    e("v_readfirstlane_b32 s54, v7")
    for j in range(4):
        e(f"v_mul_f32 v{C2+2*j}, 0xbfb8aa3b, v{MR+2*j+1}")
    e("s_mov_b32 s58, 0xbfb8aa3b")
    e("s_mov_b32 s59, 0xbfb8aa3b")
    e("s_cmp_eq_u32 s54, 1")
    nsite = [0]
    def store2(ops):
        n = nsite[0]; nsite[0] += 1
        e(f"s_cbranch_scc1 {k.L(f'pl{n}')}")
        for o in ops: e(o + " sc1")
        e(f"s_branch {k.L(f'st{n}')}")
        k.label(f"pl{n}")
        for o in ops: e(o)
        k.label(f"st{n}")
    T = 172
    def elem8(tiles, out):
        P = T; Xr = T + 8
        def each(f):
            for n, (i, j) in enumerate(tiles):
                for h in range(2):
                    e(f(ACC + 4*(4*i+j) + 2*h, CSV + 4*i + 2*h, j, P + 4*n + 2*h, Xr + 4*n + 2*h))
        each(lambda a, c, j, p, x: f"v_pk_fma_f32 {vr(a,2)}, {vr(c,2)}, {vr(MR+2*j,2)}, {vr(a,2)} op_sel_hi:[1,0,1] neg_lo:[0,1,0] neg_hi:[0,1,0]")
        each(lambda a, c, j, p, x: f"v_pk_mul_f32 {vr(p,2)}, {vr(a,2)}, {vr(C2+2*j,2)} op_sel_hi:[1,0]")
        for q in range(8): e(f"v_exp_f32 v{Xr+q}, v{P+q}")
        each(lambda a, c, j, p, x: f"v_pk_fma_f32 {vr(x,2)}, {vr(x,2)}, s[58:59], s[58:59]")
        for q in range(8): e(f"v_rcp_f32 v{Xr+q}, v{Xr+q}")
        each(lambda a, c, j, p, x: f"v_pk_mul_f32 {vr(p,2)}, {vr(p,2)}, {vr(x,2)}")
        for q in range(4): e(f"v_cvt_pk_bf16_f32 v{out+q}, v{P+2*q}, v{P+2*q+1}")
    n = 0
    for j in range(4):
        for pr in range(3):
            o = 192 + 4*(n % 4); n += 1
            elem8([(2*pr, j), (2*pr+1, j)], o)
            store2([f"buffer_store_dwordx4 {vr(o,4)}, v4, s[20:23], s{32+j} offen offset:{1024*pr}"])
        if j % 2 == 1:
            o = 192 + 4*(n % 4); n += 1
            elem8([(6, j-1), (6, j)], o)
            store2([f"buffer_store_dwordx2 {vr(o,2)}, v5, s[20:23], s{32+j-1} offen",
                    f"buffer_store_dwordx2 {vr(o+2,2)}, v5, s[20:23], s{32+j} offen"])
    k.stamp(3)

    NS = 4
    F0 = ACC + 64
    GW = [F0, F0 + 32]; GH = [F0 + 16, F0 + 48]
    BW = [8, 9, 10, 11]; BH = 12
    e("v_mov_b32 v2, v15")
    e("v_bfe_u32 v3, v0, 2, 2")
    e("v_and_b32 v4, 3, v0")
    e("v_lshl_add_u32 v7, v2, 2, v3")
    e("v_and_b32 v5, 7, v7")
    e("v_lshlrev_b32 v13, 8, v7")
    e("v_lshl_add_u32 v13, v4, 3, v13")
    e(f"v_add_u32 v13, {WOFF}, v13")
    e("s_lshl_b32 s26, s25, 2")
    for i in range(4):
        e(f"s_add_u32 s27, s26, {i}")
        e(f"v_xor_b32 v14, s27, v5")
        e(f"v_lshl_add_u32 v{BW[i]}, v14, 5, v13")
    e("s_lshl_b32 s26, s24, 12")
    e(f"v_lshl_add_u32 v{BH}, v0, 4, s26")
    for i in range(64):
        e(f"v_mov_b32 v{ACC+i}, 0")
    e("v_mov_b32 v13, 1")
    e("s_lshl_b32 s26, s2, 7")
    e(f"s_add_u32 s26, s26, 0x{HFL:x}")
    e("v_mov_b32 v14, 0")
    e("v_mov_b32 v216, s98")
    e("v_mov_b32 v217, s99")
    e("s_waitcnt vmcnt(0)")
    e("s_mov_b64 exec, 1")
    e("ds_add_rtn_u32 v1, v6, v13")
    e("s_waitcnt lgkmcnt(0)")
    e("v_readfirstlane_b32 s27, v1")
    e("s_cmp_eq_u32 s27, 3")
    e(f"s_cbranch_scc0 {k.L('noflag')}")
    e("s_cmp_eq_u32 s54, 1")
    store2(["buffer_store_dwordx2 v[216:217], v14, s[20:23], s26 offen"])
    k.label("noflag")
    e("s_mov_b64 exec, -1")
    e("v_bfe_u32 v6, v7, 1, 2")
    def hoff(j): return 2048*(j % 2) + 8192*(j // 2)
    def reads2(st, step):
        r = []
        for j in range(NS):
            r.append(f"ds_read_b128 {vr(GH[st]+4*j,4)}, v{BH} offset:{hoff(j)+1024*step}")
        for i in range(4):
            for h in range(2):
                r.append(f"ds_read_b64_tr_b16 {vr(GW[st]+4*i+2*h,2)}, v{BW[i]} offset:{8192*step+4096*h}")
        return r
    def mfmas2(st):
        return [f"v_mfma_f32_16x16x32_bf16 {vr(ACC+4*(NS*i+j),4)}, {vr(GW[st]+4*i,4)}, {vr(GH[st]+4*j,4)}, {vr(ACC+4*(NS*i+j),4)}"
                for i in range(4) for j in range(NS)]
    e("s_mov_b32 s28, 0")
    e("s_mov_b32 s29, 0")
    e("s_barrier")
    k.stamp(4)
    for r in reads2(0, 0): e(r)
    k.label("c2loop")
    sal = ["s_add_u32 s29, s29, 1", f"s_mov_b32 s30, {STG2}", f"s_cmp_eq_u32 s29, {NB2}", f"s_cselect_b32 s30, {-(NB2-1)*STG2}, s30",
           "s_cselect_b32 s29, 0, s29", "s_add_u32 s28, s28, 1"]
    weave(e, mfmas2(0), reads2(1, 1) + sal,
          waits={0: "s_waitcnt lgkmcnt(6)", 4: "s_waitcnt lgkmcnt(12)", 8: "s_waitcnt lgkmcnt(14)", 12: "s_waitcnt lgkmcnt(12)"},
          sched=[2]*6 + [1]*6)
    weave(e, mfmas2(1), [f"v_add_u32 v{a}, s30, v{a}" for a in [BH] + BW] + reads2(0, 0) + [f"s_cmp_lt_u32 s28, {NST2}"],
          waits={0: "s_waitcnt lgkmcnt(6)"}, mid=(4, ["s_waitcnt lgkmcnt(0)", "s_barrier"]), sched=[0]*4 + [2]*6 + [1]*6)
    e(f"s_cbranch_scc1 {k.L('c2loop')}")
    k.stamp(5)
    T = F0
    e("s_lshl_b32 s26, s2, 2")
    e("s_add_u32 s26, s26, s10")
    e("s_xor_b32 s27, s26, 4")
    e("s_lshl_b32 s31, s26, 13")
    e(f"s_add_u32 s31, s31, 0x{PART:x}")
    e("s_lshl_b32 s32, s27, 13")
    e(f"s_add_u32 s32, s32, 0x{PART:x}")
    e("s_add_u32 s33, s31, 4096")
    e("s_add_u32 s34, s32, 4096")
    e("s_lshl_b32 s35, s26, 7")
    e(f"s_add_u32 s35, s35, 0x{FLG:x}")
    e("s_lshl_b32 s36, s27, 7")
    e(f"s_add_u32 s36, s36, 0x{FLG:x}")
    e("v_lshlrev_b32 v14, 4, v0")
    e("s_cmp_eq_u32 s15, 0")
    e(f"s_cbranch_scc1 {k.L('send_hi')}")
    for own in (1, 0):
        if own == 0: k.label("send_hi")
        for i in range(4):
            for jj in range(2):
                j = 2*(1-own) + jj
                n = 2*i + jj
                e(f"buffer_store_dwordx4 {vr(ACC+4*(NS*i+j),4)}, v14, s[20:23], s{31 if n < 4 else 33} offen offset:{1024*(n%4)} sc1")
        if own == 1:
            e("s_nop 1")
            for i in range(4):
                for q in range(8):
                    e(f"v_mov_b32 v{ACC+4*NS*i+q}, v{ACC+4*NS*i+8+q}")
            e(f"s_branch {k.L('sent')}")
    k.label("sent")
    e("v_lshlrev_b32 v13, 7, v7")
    e("v_lshl_add_u32 v13, v4, 3, v13")
    e("s_lshl_b32 s26, s25, 13")
    e(f"s_add_u32 s26, s26, {RES}")
    e("v_add_u32 v13, s26, v13")
    e("s_lshl_b32 s26, s24, 1")
    for j in range(2):
        e(f"s_add_u32 s27, s26, {j}")
        e(f"v_xor_b32 v15, s27, v6")
        e(f"v_lshl_add_u32 v{8+j}, v15, 5, v13")
    e("s_waitcnt lgkmcnt(0)")
    HR = T
    for i in range(4):
        for j in range(2):
            e(f"ds_read_b64_tr_b16 {vr(HR+2*(2*i+j),2)}, v{8+j} offset:{2048*i}")
    e("v_and_b32 v10, 15, v0")
    e("v_lshrrev_b32 v11, 1, v2")
    e("v_and_b32 v12, 7, v10")
    e("v_xor_b32 v11, v11, v12")
    e("v_lshlrev_b32 v11, 4, v11")
    e("v_lshl_add_u32 v11, v10, 7, v11")
    e("v_and_b32 v12, 1, v2")
    e("v_lshl_add_u32 v11, v12, 3, v11")
    e("s_lshl_b32 s26, s10, 12")
    e("v_add_u32 v3, s26, v11")
    e("v_xor_b32 v4, 32, v3")
    e("v_xor_b32 v5, 64, v3")
    e("v_xor_b32 v6, 96, v3")
    e("v_lshrrev_b32 v10, 3, v0")
    e("v_and_b32 v11, 7, v0")
    e("v_xor_b32 v12, v11, v10")
    e("v_lshlrev_b32 v12, 4, v12")
    e("v_lshl_add_u32 v12, v10, 7, v12")
    e("v_add_u32 v7, s26, v12")
    e("v_lshlrev_b32 v10, 11, v10")
    e("v_lshl_add_u32 v10, v11, 4, v10")
    e("s_lshl_b32 s26, s13, 7")
    e("s_lshl_b32 s27, s24, 5")
    e("s_add_u32 s26, s26, s27")
    e("s_lshl_b32 s27, s15, 6")
    e("s_add_u32 s26, s26, s27")
    e("s_lshl_b32 s26, s26, 11")
    e("s_lshl_b32 s27, s53, 8")
    e("s_add_u32 s26, s26, s27")
    e("s_lshl_b32 s27, s25, 7")
    e("s_add_u32 s48, s26, s27")
    for q in range(1, 4):
        e(f"s_add_u32 s{48+q}, s48, {q*8*2048}")
    PR = T + 16; U = PR + 32
    e("s_mov_b32 s37, 0xffff0000")
    e("s_waitcnt lgkmcnt(0)")
    for i in range(4):
        for j in range(2):
            n = 2*i + j; a = ACC + 4*(NS*i + j); u = U + 4*(n % 2)
            e(f"v_lshlrev_b32 v{u}, 16, v{HR+2*n}")
            e(f"v_and_b32 v{u+1}, s37, v{HR+2*n}")
            e(f"v_lshlrev_b32 v{u+2}, 16, v{HR+2*n+1}")
            e(f"v_and_b32 v{u+3}, s37, v{HR+2*n+1}")
            for h in range(2):
                e(f"v_pk_add_f32 {vr(a+2*h,2)}, {vr(a+2*h,2)}, {vr(u+2*h,2)}")
    e("v_mov_b32 v15, 0")
    e("s_waitcnt vmcnt(0)")
    e("s_mov_b64 exec, 1")
    e("buffer_store_dwordx2 v[216:217], v15, s[20:23], s35 offen sc1")
    e("s_mov_b32 s38, 0")
    k.label("poll")
    e("buffer_load_dwordx2 v[218:219], v15, s[20:23], s36 offen sc1")
    e("s_add_u32 s38, s38, 1")
    e("s_cmp_gt_u32 s38, 0x200000")
    e(f"s_cbranch_scc1 {k.L('polled')}")
    e("s_waitcnt vmcnt(0)")
    e("v_cmp_ne_u64 vcc, v[218:219], v[216:217]")
    e(f"s_cbranch_vccnz {k.L('poll')}")
    k.label("polled")
    k.stamp(6)
    e("s_mov_b64 exec, -1")
    for n in range(8):
        e(f"buffer_load_dwordx4 {vr(PR+4*n,4)}, v14, s[20:23], s{32 if n < 4 else 34} offen offset:{1024*(n%4)} sc1")
    for i in range(4):
        for j in range(2):
            n = 2*i + j; a = ACC + 4*(NS*i + j)
            e(f"s_waitcnt vmcnt({7-n})")
            for h in range(2):
                e(f"v_pk_add_f32 {vr(a+2*h,2)}, {vr(a+2*h,2)}, {vr(PR+4*n+2*h,2)}")
            e(f"v_cvt_pk_bf16_f32 v{HR+2*n}, v{a}, v{a+1}")
            e(f"v_cvt_pk_bf16_f32 v{HR+2*n+1}, v{a+2}, v{a+3}")
            e(f"ds_write_b64 v{3+i}, {vr(HR+2*n,2)} offset:{2048*j}")
    e("s_waitcnt lgkmcnt(0)")
    for q in range(4):
        e(f"ds_read_b128 {vr(PR+4*q,4)}, v7 offset:{1024*q}")
    for q in range(4):
        e(f"s_waitcnt lgkmcnt({3-q})")
        e(f"buffer_store_dwordx4 {vr(PR+4*q,4)}, v10, s[44:47], s{48+q} offen")
    if STAMP:
        e("s_waitcnt vmcnt(0)")
        k.dump_stamps(1, 20, 10)
    k.dbg_out()
    e("s_endpgm")

    k.lines.append("Lmlp_loader:")
    k.role = "B"
    entry()
    e("v_mov_b32 v216, s98")
    e("v_mov_b32 v217, s99")
    e("s_sub_u32 s24, s10, 4")
    VH = 16; VW = 20
    e("s_lshl_b32 s47, s24, 16")
    e("s_lshl_b32 s26, s13, 8")
    e("s_add_u32 s47, s47, s26")
    e(f"s_add_u32 s47, s47, 0x{HT:x}")
    e(f"s_mul_i32 s48, s24, {16*7168}")
    e("s_mul_i32 s27, s14, 448")
    e("s_add_u32 s48, s48, s27")
    e("s_mov_b32 s36, s14")
    e("s_mov_b32 s49, 0")
    e("s_lshl_b32 s25, s36, 18")
    e("s_add_u32 s25, s25, s47")
    e(f"s_mul_i32 s26, s36, {64*7168}")
    e("s_add_u32 s26, s26, s48")
    e("s_lshl_b32 s27, s24, 12")
    e("s_mul_i32 s28, s24, 7168")
    e(f"s_add_u32 s28, s28, {WOFF}")
    e("v_bfe_u32 v9, v0, 1, 3")
    e("v_and_b32 v10, 1, v0")
    e("v_lshlrev_b32 v10, 4, v10")
    e("v_lshl_add_u32 v10, v2, 12, v10")
    e("v_xor_b32 v9, v9, v2")
    for pp in range(4):
        if pp == 2: e("v_xor_b32 v9, 4, v9")
        e(f"v_lshl_add_u32 v{VH+pp}, v9, 5, v10")
        if pp: e(f"v_add_u32 v{VH+pp}, {pp*(16384-1024)}, v{VH+pp}")
    def wpat(q):
        e(f"v_add_u32 v9, {64*q}, v0")
        e("v_mul_u32_u24 v10, 9363, v9")
        e("v_lshrrev_b32 v10, 18, v10")
        e("v_mul_u32_u24 v11, 28, v10")
        e("v_sub_u32 v11, v9, v11")
        e("v_lshrrev_b32 v12, 2, v10")
        e("v_and_b32 v12, 2, v12")
        e("v_xor_b32 v11, v11, v12")
        e("v_mul_u32_u24 v12, 7168, v10")
        e("v_lshl_add_u32 v12, v11, 4, v12")
        e(f"v_add_u32 v{VW+q}, {-1024*(q%4)}, v12")
    for q in range(7): wpat(q)
    e("s_waitcnt lgkmcnt(0)")
    k.srd(20, 8, 9, WS_BYTES)
    k.srd(16, 4, 5, 1024*3584*2)
    def advance():
        e("s_add_u32 s49, s49, 1")
        e("s_add_u32 s37, s36, 1")
        e("s_and_b32 s37, s37, 3")
        e("s_and_b32 s36, s36, 12")
        e("s_or_b32 s36, s36, s37")
        e("s_and_b32 s37, s49, 3")
        e("s_cmp_eq_u32 s37, 0")
        e("s_cselect_b32 s37, 4, 0")
        e("s_add_u32 s36, s36, s37")
        e("s_and_b32 s36, s36, 15")
        e("s_lshl_b32 s25, s36, 18")
        e("s_add_u32 s25, s25, s47")
        e(f"s_mul_i32 s26, s36, {64*7168}")
        e("s_add_u32 s26, s26, s48")
    def hpart(so, m0):
        e(m0); e("s_nop 0")
        for pp in range(4):
            e(f"buffer_load_dwordx4 v{VH+pp}, s[20:23], {so} offen offset:{1024*pp} sc1 lds")
    def wpart(buf):
        e(f"s_add_u32 m0, s28, {buf}"); e("s_nop 0")
        for q in range(7):
            if q == 4: e(f"s_add_u32 m0, s28, {buf+4096}"); e("s_nop 0")
            e(f"buffer_load_dwordx4 v{VW+q}, s[16:19], s26 offen offset:{1024*(q%4)} lds")
    e(f"v_mov_b32 v33, {FRONT_FLAG+48}")
    k.label("waitM")
    e("s_sleep 1")
    e("ds_read_b32 v34, v33")
    e("s_waitcnt lgkmcnt(0)")
    e("v_cmp_gt_u32 vcc, 4, v34")
    e(f"s_cbranch_vccnz {k.L('waitM')}")
    wpart(0)
    e("s_mov_b32 s50, s25")
    advance()
    wpart(STG1)
    e("s_mov_b32 s51, s25")
    advance()
    e(f"v_mov_b32 v33, {FRONT_FLAG+56}")
    e("s_cmp_eq_u32 s24, 0")
    e(f"s_cbranch_scc0 {k.L('frelay')}")
    e(f"v_mov_b32 v35, {FRONT_FLAG+52}")
    k.label("waitF")
    e("s_sleep 1")
    e("ds_read_b32 v34, v35")
    e("s_waitcnt lgkmcnt(0)")
    e("v_cmp_gt_u32 vcc, 8, v34")
    e(f"s_cbranch_vccnz {k.L('waitF')}")
    e("v_lshlrev_b32 v9, 7, v0")
    for q in range(4): e(f"s_mov_b32 s{43+q}, 0x{FHT + 8192*q:x}")
    e("s_mov_b32 s39, 0")
    k.label("fpoll")
    e(f"s_sleep {FSLEEP}")
    for q in range(4):
        e(f"buffer_load_dwordx2 {vr(40+2*q,2)}, v9, s[20:23], s{43+q} offen sc1")
    e("s_add_u32 s39, s39, 1")
    e("s_cmp_gt_u32 s39, 0x100000")
    e(f"s_cbranch_scc1 {k.L('fpolled')}")
    e("s_waitcnt vmcnt(0)")
    e("s_mov_b64 s[30:31], 0")
    for q in range(4):
        e(f"v_cmp_ne_u64 vcc, {vr(40+2*q,2)}, v[216:217]")
        e("s_or_b64 s[30:31], s[30:31], vcc")
    e("s_cmp_lg_u64 s[30:31], 0")
    e(f"s_cbranch_scc1 {k.L('fpoll')}")
    k.label("fpolled")
    if STAMP: e("s_mov_b32 s76, s39"); e("s_mov_b32 s77, 0"); e("s_mov_b32 s92, 1")
    e("v_mov_b32 v34, 1")
    e("ds_write_b32 v33, v34")
    e(f"s_branch {k.L('fgo')}")
    k.label("frelay")
    e("s_sleep 1")
    e("ds_read_b32 v34, v33")
    e("s_waitcnt lgkmcnt(0)")
    e("v_cmp_eq_u32 vcc, 0, v34")
    e(f"s_cbranch_vccnz {k.L('frelay')}")
    k.label("fgo")
    k.stamp(5)
    hpart("s50", "s_mov_b32 m0, s27")
    hpart("s51", f"s_add_u32 m0, s27, {STG1}")
    e(f"s_mov_b32 s29, {2*STG1}")
    def issue1():
        e("s_add_u32 m0, s27, s29")
        e("s_add_u32 s30, s28, s29")
        for pp in range(4):
            e(f"buffer_load_dwordx4 v{VH+pp}, s[20:23], s25 offen offset:{1024*pp} sc1 lds")
        e("s_mov_b32 m0, s30")
        e("s_nop 0")
        for q in range(4):
            e(f"buffer_load_dwordx4 v{VW+q}, s[16:19], s26 offen offset:{1024*q} lds")
        e("s_add_u32 m0, s30, 4096")
        e(f"s_add_u32 s29, s29, {STG1}")
        for q in range(4, 7):
            e(f"buffer_load_dwordx4 v{VW+q}, s[16:19], s26 offen offset:{1024*(q-4)} lds")
        e(f"s_cmp_eq_u32 s29, {NB1*STG1}")
        e("s_cselect_b32 s29, 0, s29")
        advance()
    e("s_waitcnt vmcnt(4)")
    e("s_barrier")
    k.stamp(1)
    CSR = 28
    e("s_mul_i32 s31, s14, 896")
    e("s_mul_i32 s32, s24, 224")
    e("s_add_u32 s31, s31, s32")
    e(f"s_add_u32 s31, s31, 0x{CS:x}")
    e("v_lshlrev_b32 v9, 2, v0")
    for p in range(NCS):
        e(f"s_add_u32 s32, s31, {p*3584*4}")
        e(f"buffer_load_dword v{CSR+p}, v9, s[20:23], s32 offen sc1")
    issue1()
    trcommon()
    e("s_lshl_b32 s31, s24, 1")
    e("v_xor_b32 v12, s31, v6")
    e("v_lshl_add_u32 v36, v12, 5, v8")
    e("v_xor_b32 v37, 32, v36")
    S = [40, 42]; Q = [44, 46]
    for r in range(40, 48): e(f"v_mov_b32 v{r}, 0")
    e("s_mov_b32 s33, 0xffff0000")
    D = 48; U = 64
    for t in range(2):
        for st in range(2):
            for h in range(2):
                e(f"ds_read_b64_tr_b16 {vr(D+8*t+4*st+2*h,2)}, v{36+t} offset:{8192*st+1024*h}")
    e("s_waitcnt lgkmcnt(0)")
    for j in range(8):
        for t in range(2):
            u = U + 2*t
            e(f"v_lshlrev_b32 v{u}, 16, v{D+8*t+j}")
            e(f"v_and_b32 v{u+1}, s33, v{D+8*t+j}")
        for t in range(2):
            u = U + 2*t
            for q in range(2):
                e(f"v_add_f32 v{S[t]+q}, v{S[t]+q}, v{u+q}")
                e(f"v_fmac_f32 v{Q[t]+q}, v{u+q}, v{u+q}")
    def greduce(regs):
        for op in ("v_permlane32_swap_b32", "v_permlane16_swap_b32"):
            for i, r in enumerate(regs): e(f"v_mov_b32 v{D+i}, v{r}")
            e("s_nop 1")
            for i, r in enumerate(regs): e(f"{op} v{r}, v{D+i}")
            e("s_nop 1")
            for i, r in enumerate(regs): e(f"v_add_f32 v{r}, v{r}, v{D+i}")
    for r in S + Q: e(f"v_add_f32 v{r}, v{r}, v{r+1}")
    greduce(S + Q)
    e("v_cmp_gt_u32 vcc, 16, v0")
    e("s_lshl_b32 s31, s13, 15")
    e("s_lshl_b32 s32, s24, 9")
    e("s_add_u32 s31, s31, s32")
    e(f"s_add_u32 s31, s31, 0x{SP2:x}")
    e("s_lshl_b32 s32, s14, 11")
    e("s_add_u32 s32, s32, s31")
    e(f"v_cndmask_b32 v214, v{S[1]}, v{S[0]}, vcc")
    e(f"v_cndmask_b32 v215, v{Q[1]}, v{Q[0]}, vcc")
    e("v_lshlrev_b32 v9, 4, v0")
    e("s_mov_b64 exec, 0xffffffff")
    e("buffer_store_dwordx4 v[214:217], v9, s[20:23], s32 offen sc1")
    e("s_mov_b64 exec, -1")
    e("s_mov_b32 s35, 0")
    k.label("l1loop")
    e("s_cmp_eq_u32 s35, 0")
    e(f"s_cbranch_scc1 {k.L('lw20')}")
    e("s_cmp_eq_u32 s35, 1")
    e(f"s_cbranch_scc1 {k.L('lw12')}")
    e("s_waitcnt vmcnt(11)")
    k.label("lw12")
    e("s_waitcnt vmcnt(12)")
    k.label("lw20")
    e(f"s_waitcnt vmcnt({12+NCS})")
    e("s_barrier")
    e("s_cmp_ge_u32 s35, 13")
    e(f"s_cbranch_scc1 {k.L('l1done')}")
    issue1()
    e("s_add_u32 s35, s35, 1")
    e(f"s_branch {k.L('l1loop')}")
    k.label("l1done")
    k.stamp(2)
    e("v_and_b32 v10, 31, v0")
    e("v_lshlrev_b32 v9, 4, v10")
    e("v_lshrrev_b32 v11, 5, v0")
    e("v_lshl_add_u32 v9, v11, 11, v9")
    e("v_and_b32 v11, 7, v0")
    e("v_lshlrev_b32 v11, 12, v11")
    e("s_and_b32 s34, s2, 31")
    e("s_lshl_b32 s34, s34, 7")
    e(f"s_add_u32 s50, s34, 0x{XID:x}")
    e(f"s_add_u32 s51, s34, 0x{HFL:x}")
    e("s_mov_b32 s39, 0")
    G = 68
    k.label("spoll")
    e("s_mov_b32 s32, s31")
    for q in range(8):
        e(f"buffer_load_dwordx4 {vr(G+4*q,4)}, v9, s[20:23], s32 offen sc1")
        e("s_add_u32 s32, s32, 4096")
    e("buffer_load_dwordx3 v[64:66], v11, s[20:23], s50 offen sc1")
    e("s_add_u32 s39, s39, 1")
    e("s_cmp_gt_u32 s39, 0x100000")
    e(f"s_cbranch_scc1 {k.L('spolled')}")
    e("s_waitcnt vmcnt(0)")
    e("v_cmp_ne_u64 s[44:45], v[64:65], v[216:217]")
    for q in range(8):
        e(f"v_cmp_ne_u64 vcc, {vr(G+4*q+2,2)}, v[216:217]")
        e("s_or_b64 s[44:45], s[44:45], vcc")
    e("s_cmp_lg_u64 s[44:45], 0")
    e(f"s_cbranch_scc1 {k.L('spoll')}")
    k.label("spolled")
    e("s_waitcnt vmcnt(0)")
    e("v_cmp_ne_u32 vcc, s55, v66")
    for q in range(1, 8):
        for j in range(2):
            e(f"v_add_f32 v{40+j}, v{G+j if q == 1 else 40+j}, v{G+4*q+j}")
    e("s_cmp_eq_u64 vcc, 0")
    e("s_cselect_b32 s54, 1, 2")
    if 'f' in X: e("s_mov_b32 s54, 2")
    for i in range(2): e(f"v_mov_b32 v{D+i}, v{40+i}")
    e("s_nop 1")
    for i in range(2): e(f"v_permlane32_swap_b32 v{40+i}, v{D+i}")
    e("s_nop 1")
    for i in range(2): e(f"v_add_f32 v{40+i}, v{40+i}, v{D+i}")
    ln_stats(k, [40], [41], [56], [57], [60])
    e("s_lshl_b32 s31, s24, 8")
    e(f"s_add_u32 s31, s31, {STATS}")
    e("v_lshl_add_u32 v9, v10, 3, s31")
    e("ds_write_b64 v9, v[56:57]")
    e(f"v_mov_b32 v9, {MISC}")
    e("v_mov_b32 v62, 0")
    e("v_mov_b32 v63, s54")
    e("ds_write_b64 v9, v[62:63]")
    for p in range(1, NCS):
        e(f"v_add_f32 v{CSR}, v{CSR}, v{CSR+p}")
    e("s_mul_i32 s31, s24, 224")
    e(f"s_add_u32 s31, s31, {CSL}")
    e("v_lshl_add_u32 v9, v0, 2, s31")
    e("v_cmp_gt_u32 vcc, 56, v0")
    e("s_and_saveexec_b64 s[36:37], vcc")
    e(f"ds_write_b32 v9, v{CSR}")
    e("s_mov_b64 exec, -1")
    e("s_waitcnt lgkmcnt(0)")
    e("s_barrier")
    VA = 16; VW2 = 18; VR = 22
    e(f"v_lshlrev_b32 v{VA}, 4, v0")
    e(f"v_add_u32 v{VA+1}, {112*1024-2048}, v{VA}")
    e("v_bfe_u32 v9, v0, 1, 3")
    e("v_and_b32 v10, 1, v0")
    e("v_lshlrev_b32 v10, 4, v10")
    e("v_lshl_add_u32 v10, v2, 11, v10")
    e("v_xor_b32 v9, v9, v2")
    e("v_xor_b32 v12, 4, v9")
    for pp in range(4):
        e(f"v_lshl_add_u32 v{VW2+pp}, v{9 if pp % 2 == 0 else 12}, 5, v10")
        if pp: e(f"v_add_u32 v{VW2+pp}, {pp*(8192-1024)}, v{VW2+pp}")
    e("v_bfe_u32 v9, v0, 1, 2")
    e("v_xor_b32 v9, v9, v2")
    e("v_and_b32 v10, 1, v0")
    e("v_lshlrev_b32 v10, 4, v10")
    e("v_lshl_add_u32 v10, v9, 5, v10")
    e("v_lshrrev_b32 v9, 3, v0")
    e(f"v_lshl_add_u32 v{VR}, v9, 12, v10")
    for pp in range(1, 4):
        e(f"v_add_u32 v{VR+pp}, {pp*(32768-1024)}, v{VR}")
    k.srd(40, 6, 7, 1024*3584*2)
    e("s_lshl_b32 s47, s13, 3")
    e("s_lshl_b32 s26, s24, 1")
    e("s_add_u32 s47, s47, s26")
    e("s_mul_i32 s47, s47, 112")
    e("s_mul_i32 s26, s15, 56")
    e("s_add_u32 s47, s47, s26")
    e("s_lshl_b32 s47, s47, 10")
    e(f"s_add_u32 s47, s47, 0x{HM:x}")
    e("s_mul_i32 s48, s15, 1792")
    e("s_lshl_b32 s27, s24, 4")
    e("s_add_u32 s48, s48, s27")
    e("s_lshl_b32 s48, s48, 11")
    e("s_lshl_b32 s27, s53, 8")
    e("s_add_u32 s48, s48, s27")
    e("s_add_u32 s36, s13, s53")
    e(f"s_and_b32 s36, s36, {RW-1}")
    e("s_lshl_b32 s27, s24, 12")
    e(f"s_add_u32 s28, s27, {WOFF}")
    assert RW == NB2 or RW == 1
    def st_of(n):
        e(f"s_add_u32 s37, s36, {n}")
        if RW > 1: e(f"s_and_b32 s37, s37, {RW-1}")
    e("s_barrier")
    k.stamp(3)
    for n in range(NB2):
        st_of(n)
        e("s_lshl_b32 s26, s37, 17")
        e("s_add_u32 s26, s26, s48")
        e(f"s_add_u32 m0, s28, {n*STG2}")
        e("s_nop 0")
        for pp in range(4):
            e(f"buffer_load_dwordx4 v{VW2+pp}, s[40:43], s26 offen offset:{1024*pp} lds")
    e("s_lshl_b32 s31, s53, 7")
    e("s_lshl_b32 s32, s24, 5")
    e("s_add_u32 s31, s31, s32")
    e("s_lshl_b32 s31, s31, 12")
    e("s_lshl_b32 s32, s13, 8")
    e("s_add_u32 s31, s31, s32")
    e("s_lshl_b32 s32, s15, 7")
    e("s_add_u32 s31, s31, s32")
    e(f"s_add_u32 s31, s31, 0x{HT:x}")
    e(f"s_add_u32 m0, s27, {RES}")
    e("s_nop 0")
    for pp in range(4):
        e(f"buffer_load_dwordx4 v{VR+pp}, s[20:23], s31 offen offset:{1024*pp} lds")
    e("s_mov_b32 s39, 0")
    k.label("hpoll")
    e("s_sleep 2")
    e("buffer_load_dwordx2 v[64:65], v11, s[20:23], s51 offen sc1")
    e("s_add_u32 s39, s39, 1")
    e("s_cmp_gt_u32 s39, 0x100000")
    e(f"s_cbranch_scc1 {k.L('hpolled')}")
    e("s_waitcnt vmcnt(0)")
    e("v_cmp_ne_u64 vcc, v[64:65], v[216:217]")
    e(f"s_cbranch_vccnz {k.L('hpoll')}")
    k.label("hpolled")
    k.stamp(4)
    for n in range(NB2):
        st_of(n)
        e("s_lshl_b32 s25, s37, 11")
        e("s_add_u32 s25, s25, s47")
        e(f"s_add_u32 m0, s27, {n*STG2}")
        e("s_nop 0")
        for pp in range(4):
            e(f"buffer_load_dwordx4 v{VA+pp//2}, s[20:23], s25 offen offset:{1024*pp} sc1 lds")
        if n == 1:
            e("s_waitcnt vmcnt(4)")
            e("s_barrier")
    e("s_mov_b32 s29, 0")
    e(f"s_mov_b32 s35, {NB2}")
    def issue2():
        e("s_add_u32 s37, s36, s35")
        if RW > 1:
            e(f"s_and_b32 s37, s37, {RW-1}")
            e(f"s_andn2_b32 s38, s35, {RW-1}")
            e("s_or_b32 s37, s37, s38")
        e("s_lshl_b32 s25, s37, 11")
        e("s_add_u32 s25, s25, s47")
        e("s_lshl_b32 s26, s37, 17")
        e("s_add_u32 m0, s27, s29")
        e("s_add_u32 s26, s26, s48")
        for pp in range(4):
            e(f"buffer_load_dwordx4 v{VA+pp//2}, s[20:23], s25 offen offset:{1024*pp} sc1 lds")
        e("s_add_u32 m0, s28, s29")
        e(f"s_add_u32 s29, s29, {STG2}")
        for pp in range(4):
            e(f"buffer_load_dwordx4 v{VW2+pp}, s[40:43], s26 offen offset:{1024*pp} lds")
        e(f"s_and_b32 s29, s29, {NB2*STG2-1}")
        e("s_add_u32 s35, s35, 1")
    e("s_waitcnt vmcnt(8)")
    e("s_barrier")
    issue2()
    e("s_waitcnt vmcnt(12)")
    e("s_barrier")
    issue2()
    k.label("l2loop")
    e("s_waitcnt vmcnt(16)")
    e("s_barrier")
    issue2()
    e(f"s_cmp_lt_u32 s35, {NST2}")
    e(f"s_cbranch_scc1 {k.L('l2loop')}")
    for i in range(NST2-NB2, NST2):
        left = max(NST2 - 1 - (i + 1), 0)
        e(f"s_waitcnt vmcnt({left*8})")
        e("s_barrier")
    k.dump_stamps(1, 20, 10)
    e("s_endpgm")
```

```python
import os
STAMP = int(os.environ.get('STAMP', '0'))
TS = 200 << 20
DBG = int(os.environ.get('DBG', '0'))
WT = os.environ.get('WT', '')
WT = (' ' + WT) if WT else ''
class Kern:
    def __init__(self, name, grid, block, lds, nvgpr, nsgpr=102, accum=None, nagpr=0):
        self.name = name; self.grid = grid; self.block = block; self.lds = lds
        self.nvgpr = nvgpr; self.nsgpr = nsgpr; self.nagpr = nagpr
        self.accum = accum if accum is not None else (nvgpr + 3) // 4 * 4
        self.lines = []
        self.uid = 0
        self.pfx = ""
        self.role = "A"
        self.dbgmap = {("f_", "A", 2): 2, ("f_", "A", 4): 3, ("f_", "A", 5): 4, ("f_", "A", 6): 5, ("m_", "A", 0): 6, ("m_", "A", 1): 7,
                       ("m_", "A", 2): 8, ("m_", "A", 3): 9, ("m_", "A", 4): 10, ("m_", "A", 5): 11, ("m_", "A", 6): 12, ("m_", "A", 7): 13}
    def e(self, s):
        for ln in s.strip("\n").split("\n"):
            ln = ln.strip()
            if ln:
                self.lines.append("    " + ln)
    def c(self, s):
        self.lines.append("    ; " + s)
    def label(self, l):
        self.lines.append(f"{self.L(l)}:")
    def L(self, l):
        return f"L{self.name[:6]}_{self.pfx}{l}"
    def srd(self, d, lo, hi, nbytes):
        self.e(f"s_mov_b32 s{d}, s{lo}")
        self.e(f"s_and_b32 s{d+1}, s{hi}, 0xffff")
        self.e(f"s_mov_b32 s{d+2}, 0x{nbytes:x}")
        self.e(f"s_mov_b32 s{d+3}, 0x20000")
    def stamp(self, i):
        if DBG and self.dbgmap.get((self.pfx, self.role, i)) is not None:
            self.e("s_memrealtime s[96:97]")
            self.e("s_waitcnt lgkmcnt(0)")
            self.e(f"v_writelane_b32 v220, s96, {self.dbgmap[(self.pfx, self.role, i)]}")
        if not STAMP: return
        ln = i + (8 if self.pfx == "m_" else 0)
        self.e("s_memrealtime s[96:97]")
        self.e("s_memtime s[94:95]")
        self.e("s_waitcnt lgkmcnt(0)")
        self.e(f"v_writelane_b32 v220, s96, {ln}")
        self.e(f"v_writelane_b32 v221, s94, {ln}")
    def note(self, sreg, ln):
        if STAMP: self.e(f"v_writelane_b32 v220, {sreg}, {ln}")
    def dump_stamps(self, kid, srd, wave_sreg, n=8, keep=False):
        if not STAMP: return
        self.stamp(n - 1)
        if keep: return
        self.e("s_mov_b64 exec, 0xffffffff")
        self.e("s_lshl_b32 s100, s2, 3")
        self.e(f"s_add_u32 s100, s100, s{wave_sreg}")
        self.e("s_lshl_b32 s100, s100, 8")
        self.e(f"s_add_u32 s100, s100, 0x{TS:x}")
        self.e("v_lshlrev_b32 v222, 2, v0")
        self.e(f"buffer_store_dword v220, v222, s[{srd}:{srd+3}], s100 offen")
        self.e(f"buffer_store_dword v221, v222, s[{srd}:{srd+3}], s100 offen offset:128")
    def dbg_out(self):
        if not DBG: return
        e = self.e
        e("s_waitcnt vmcnt(0)")
        self.stamp(7)
        e("s_cmp_eq_u32 s10, 0")
        e("s_cbranch_scc0 Ldbg_skip")
        e("s_load_dwordx2 s[60:61], s[0:1], 80")
        e("s_waitcnt lgkmcnt(0)")
        self.srd(60, 60, 61, 256)
        e("v_subrev_u32 v220, s98, v220")
        e("v_lshlrev_b32 v221, 2, v0")
        e("s_mov_b64 exec, 0x3ffc")
        e("buffer_atomic_add v220, v221, s[60:63], 0 offen sc1")
        e("s_mov_b64 exec, 0x2000")
        e("buffer_atomic_umax v220, v221, s[60:63], 0 offen offset:8 sc1")
        e("s_mov_b64 exec, 0x40")
        e("buffer_atomic_umax v220, v221, s[60:63], 0 offen offset:32 sc1")
        self.lines.append("Ldbg_skip:")
    def clear_stamps(self):
        if not STAMP: return
        self.e("v_mov_b32 v220, 0")
        self.e("v_mov_b32 v221, 0")
        self.stamp(0)
    def text(self):
        out = [f".globl {self.name}", ".p2align 8", f".type {self.name},@function", f"{self.name}:"]
        out += self.lines
        return "\n".join(out) + "\n"
    def desc(self):
        nfv = self.accum + self.nagpr if self.nagpr else self.nvgpr
        return f""".amdhsa_kernel {self.name}
  .amdhsa_next_free_vgpr {nfv}
  .amdhsa_next_free_sgpr {self.nsgpr}
  .amdhsa_accum_offset {self.accum}
  .amdhsa_group_segment_fixed_size 0
  .amdhsa_kernarg_size 96
  .amdhsa_user_sgpr_count 2
  .amdhsa_user_sgpr_kernarg_segment_ptr 1
  .amdhsa_system_sgpr_workgroup_id_x 1
.end_amdhsa_kernel
"""

def vr(a, n):
    return f"v[{a}:{a+n-1}]" if n > 1 else f"v{a}"
def ar(a, n):
    return f"a[{a}:{a+n-1}]" if n > 1 else f"a{a}"
def sr(a, n):
    return f"s[{a}:{a+n-1}]" if n > 1 else f"s{a}"

HEADER = """; Kernarg layout (96 bytes, ptrs only, base s[0:1]):
;   0 A_q  8 A_k  16 A_v  24 A_shift_k  32 A_ssm_k  40 A_ssm_D  48 B_x  56 B_w1  64 B_w2  72 d_out  80 d_debug  88 d_ws
"""

def build(kerns, order=None):
    order = order or kerns
    s = HEADER
    for k in order:
        kn = f"kernel={k.name} " if len(order) > 1 else ""
        s += f"; @launch {kn}grid=({k.grid},1,1) block=({k.block},1,1) lds={k.lds}\n"
    s += '.amdgcn_target "amdgcn-amd-amdhsa--gfx950"\n.text\n'
    for k in kerns:
        s += k.text()
    s += '.section .rodata,"a"\n'
    for k in kerns:
        s += ".p2align 6\n" + k.desc()
    return s
```

```python
from asmlib import *
from layout import *
from k0 import ln_stats
import os
F = os.environ.get('K0X', 'w')

KCP = 4160
REG = 4*KCP + 512 + 4096
REG0 = 0
SKL = 4*REG
TILE = 90112
STAT = TILE + 32768
FLAG = 149632
LDS_ALL = FLAG + 128
TAG = 204

def emit_front(k):
    e = k.e
    k.pfx = "f_"
    e("s_cmp_ge_u32 s2, 256")
    e(f"s_cbranch_scc1 {k.L('end')}")
    k.clear_stamps()
    e("s_load_dwordx8 s[4:11], s[0:1], 0")
    e("s_load_dwordx4 s[52:55], s[0:1], 80")
    e("s_load_dwordx4 s[12:15], s[0:1], 32")
    e("s_load_dwordx4 s[56:59], s[0:1], 56")
    e("v_lshrrev_b32 v1, 6, v0")
    e("s_lshr_b32 s40, s2, 3")
    e("v_readfirstlane_b32 s60, v1")
    e("s_and_b32 s41, s2, 7")
    e("s_lshl_b32 s61, s41, 7")
    e("s_lshl_b32 s62, s40, 2")
    e("s_add_u32 s61, s61, s62")
    e("s_and_b32 s62, s60, 3")
    e("s_add_u32 s61, s61, s62")
    e(f"s_mul_i32 s63, s62, {REG}")
    e(f"s_add_u32 s63, s63, {REG0}")
    e("s_lshl_b32 s39, s41, 12")
    e("v_mov_b32 v207, 0")
    e("s_getreg_b32 s38, hwreg(HW_REG_XCC_ID, 0, 4)")
    if 'f' in F: e("s_add_u32 s38, s38, s40")
    e("v_mov_b32 v206, s38")
    e("s_cmp_ge_u32 s60, 4")
    e(f"s_cbranch_scc1 {k.L('bwave')}")
    e("s_barrier")

    def spin(off, cond, lab, sleep=0):
        if off is not None: e(f"v_mov_b32 v33, {off}")
        k.label(lab)
        if sleep: e(f"s_sleep {sleep}")
        e("ds_read_b32 v34, v33")
        e("s_waitcnt lgkmcnt(0)")
        e(cond)
        e(f"s_cbranch_vccnz {k.L(lab)}")
    def setflag(off):
        e(f"v_mov_b32 v200, {off}")
        e("v_mov_b32 v201, 1")
        e("ds_write_b32 v200, v201")
    def publish(cnt_off, base, lab, r=200):
        e(f"v_mov_b32 v{r}, {FLAG + cnt_off}")
        e(f"v_mov_b32 v{r+1}, 1")
        e("s_mov_b64 exec, 1")
        e(f"ds_add_rtn_u32 v{r+2}, v{r}, v{r+1}")
        e("s_waitcnt lgkmcnt(0)")
        e(f"v_readfirstlane_b32 s3, v{r+2}")
        e("s_cmp_eq_u32 s3, 3")
        e(f"s_cbranch_scc0 {k.L(lab)}")
        e("s_lshl_b32 s3, s40, 7")
        e(f"v_mov_b32 v{r}, s3")
        e(f"s_add_u32 s3, s39, 0x{base:x}")
        e(f"buffer_store_dwordx3 {vr(TAG,3)}, v{r}, s[32:35], s3 offen")
        e(f"s_add_u32 s3, s3, 0x{FB_:x}")
        e(f"buffer_store_dwordx3 {vr(TAG,3)}, v{r}, s[32:35], s3 offen sc1")
        k.label(lab)
        e("s_mov_b64 exec, -1")
    def poll(base, lab, dual=True):
        e("v_and_b32 v121, 31, v0")
        e("v_lshlrev_b32 v121, 7, v121")
        e(f"s_add_u32 s28, s39, 0x{base:x}")
        e(f"s_add_u32 s29, s39, 0x{base + FB_:x}")
        e("s_mov_b32 s3, 0")
        e("v_mov_b32 v122, 0")
        k.label(lab)
        e("buffer_load_dwordx3 v[116:118], v121, s[32:35], s28 offen sc1")
        e("s_add_u32 s3, s3, 1")
        if dual:
            e("s_and_b32 s26, s3, 3")
            e(f"s_cbranch_scc1 {k.L(lab + '_a')}")
            e("buffer_load_dwordx3 v[122:124], v121, s[32:35], s29 offen sc1")
            k.label(lab + "_a")
        e("s_cmp_gt_u32 s3, 0x100000")
        e(f"s_cbranch_scc1 {k.L(lab + '_x')}")
        e("s_waitcnt vmcnt(0)")
        e(f"v_cmp_ne_u64 vcc, v[116:117], {vr(TAG,2)}")
        if dual:
            e(f"v_cmp_ne_u64 s[24:25], v[122:123], {vr(TAG,2)}")
            e("s_nop 0")
            e("v_cndmask_b32 v118, v118, v124, vcc")
            e("s_and_b64 vcc, vcc, s[24:25]")
        e(f"s_cbranch_vccnz {k.L(lab)}")
        k.label(lab + "_x")
        e("s_waitcnt vmcnt(0)")
    def tagload():
        e(f"buffer_load_dwordx2 {vr(TAG,2)}, v207, s[44:47], 0 offen sc1")
    def tagcheck(lab):
        e("s_mov_b32 s3, 0")
        k.label(lab)
        e(f"v_cmp_eq_u32 vcc, 0, v{TAG}")
        e(f"s_cbranch_vccz {k.L(lab + '_x')}")
        tagload()
        e("s_waitcnt vmcnt(0)")
        e("s_add_u32 s3, s3, 1")
        e("s_cmp_lt_u32 s3, 0x100000")
        e(f"s_cbranch_scc1 {k.L(lab)}")
        k.label(lab + "_x")
        e(f"v_readfirstlane_b32 s98, v{TAG}")
        e(f"v_readfirstlane_b32 s99, v{TAG+1}")
    def finish(lab, target):
        fin_count(lab)
        e(f"s_branch {target}")
    def fin_count(lab):
        e("s_mov_b64 exec, -1")
        e(f"v_mov_b32 v200, {FLAG+52}")
        e("v_mov_b32 v201, 1")
        e("s_waitcnt vmcnt(0)")
        e("s_mov_b64 exec, 1")
        e("ds_add_rtn_u32 v202, v200, v201")
        e("s_waitcnt lgkmcnt(0)")
        e("v_readfirstlane_b32 s3, v202")
        e("s_cmp_eq_u32 s3, 7")
        e(f"s_cbranch_scc0 {k.L(lab)}")
        e("s_lshl_b32 s3, s2, 7")
        e(f"s_add_u32 s3, s3, 0x{FHT:x}")
        e(f"buffer_store_dwordx2 {vr(TAG,2)}, v207, s[32:35], s3 offen sc1")
        k.label(lab)
        e("s_mov_b64 exec, -1")

    e("v_and_b32 v6, 15, v0")
    e("v_lshrrev_b32 v7, 4, v0")
    e("s_lshl_b32 s42, s40, 17")
    e("s_lshl_b32 s43, s41, 8")
    e("s_add_u32 s42, s42, s43")
    e("v_lshlrev_b32 v1, 13, v7")
    e("v_lshl_add_u32 v1, v6, 4, v1")
    e("v_add_u32 v1, s42, v1")
    e("v_add_u32 v2, 0x1000, v1")
    e("v_add_u32 v3, 0xffffe800, v1")
    e("v_add_u32 v4, 0xfffff000, v1")
    e("v_add_u32 v5, 0xfffff800, v1")
    e("s_lshl_b32 s48, s41, 10")
    e("v_and_b32 v9, 63, v0")
    e("v_lshlrev_b32 v9, 4, v9")
    e(f"s_mov_b32 m0, {SKL}")
    e("s_waitcnt lgkmcnt(0)")
    k.srd(20, 6, 7, 4*MB)
    k.srd(24, 8, 9, 4*MB)
    k.srd(28, 10, 11, 8192)
    KR = 12; VR = 40; XR = 56; SK = 72
    e("buffer_load_dwordx4 v9, s[28:31], s48 offen lds")
    for i in range(4):
        e(f"buffer_load_dwordx4 {vr(KR+12+4*i,4)}, v{1+i//2}, s[20:23], 0 offen offset:{2048*(i%2)} nt")
    for i in range(4):
        e(f"buffer_load_dwordx4 {vr(VR+4*i,4)}, v{1+i//2}, s[24:27], 0 offen offset:{2048*(i%2)} nt")
    e(f"buffer_load_dwordx4 {vr(KR,4)}, v3, s[20:23], 0 offen nt")
    e(f"buffer_load_dwordx4 {vr(KR+4,4)}, v4, s[20:23], 0 offen nt")
    e(f"buffer_load_dwordx4 {vr(KR+8,4)}, v5, s[20:23], 0 offen nt")
    k.srd(16, 4, 5, 4*MB)
    for i in range(4):
        e(f"buffer_load_dwordx4 {vr(XR+4*i,4)}, v{1+i//2}, s[16:19], 0 offen offset:{2048*(i%2)} nt")
    k.srd(44, 52, 53, 256)
    tagload()
    k.srd(32, 54, 55, WS_BYTES)
    e("s_and_b32 s3, s61, -2")
    e("s_lshl_b32 s3, s3, 1")
    e("s_load_dword s51, s[14:15], s3")
    e("v_and_b32 v10, 14, v6")
    e("v_xor_b32 v11, v10, v7")
    e("v_xor_b32 v10, 1, v11")
    e("v_lshlrev_b32 v8, 10, v6")
    e("v_lshl_add_u32 v10, v10, 3, v8")
    e("v_lshl_add_u32 v11, v11, 3, v8")
    e(f"v_add_u32 v10, {TILE}, v10")
    e(f"v_add_u32 v11, {TILE}, v11")
    e(f"v_lshlrev_b32 v8, 6, v6")
    e(f"v_add_u32 v8, {SKL}, v8")
    e("s_mov_b32 s48, 0x05040100")
    e("s_mov_b32 s49, 0x07060302")
    e("s_mov_b32 s50, 0xffff0000")
    T = 104; KU = 112
    ACC = [2, 4, 8, 6]
    k.stamp(1)
    e("s_waitcnt vmcnt(16)")
    for q in range(4):
        e(f"ds_read_b128 {vr(SK+4*q,4)}, v8 offset:{16*q}")
    e("s_waitcnt vmcnt(5) lgkmcnt(0)")
    setflag(FLAG + 24)
    k.stamp(2)
    for jj in range(4):
        for c in range(2):
            d0 = SK + 4*jj + 2*c
            e(f"v_lshlrev_b32 v{T+0+c}, 16, v{d0}")
            e(f"v_and_b32 v{T+2+c}, s50, v{d0}")
            e(f"v_lshlrev_b32 v{T+4+c}, 16, v{d0+1}")
            e(f"v_and_b32 v{T+6+c}, s50, v{d0+1}")
        for r in range(7):
            e(f"v_lshlrev_b32 v{KU+2*r}, 16, v{KR+4*r+jj}")
            e(f"v_and_b32 v{KU+2*r+1}, s50, v{KR+4*r+jj}")
        for tap in (3, 2, 1, 0):
            for i in range(4):
                kk = KU + 2*(i+3-tap)
                if tap == 3:
                    e(f"v_pk_mul_f32 {vr(ACC[i],2)}, {vr(kk,2)}, {vr(T+2*tap,2)}")
                else:
                    e(f"v_pk_fma_f32 {vr(ACC[i],2)}, {vr(kk,2)}, {vr(T+2*tap,2)}, {vr(ACC[i],2)}")
        for i in range(4):
            e(f"v_lshlrev_b32 v{KU+2*i}, 16, v{VR+4*i+jj}")
            e(f"v_and_b32 v{KU+2*i+1}, s50, v{VR+4*i+jj}")
        for i in range(4):
            e(f"v_pk_mul_f32 {vr(ACC[i],2)}, {vr(ACC[i],2)}, {vr(KU+2*i,2)}")
        P = KU + 8
        for c in range(2):
            e(f"v_cvt_pk_bf16_f32 v{P+2*c}, v{ACC[3]+c}, v{ACC[2]+c}")
            e(f"v_cvt_pk_bf16_f32 v{P+2*c+1}, v{ACC[1]+c}, v{ACC[0]+c}")
        for c in range(2):
            e(f"ds_write_b64 v10, {vr(P+2*c,2)} offset:{128*(2*jj+c)}")
    e("s_waitcnt vmcnt(1)")
    for jj in range(4):
        for c in range(2):
            P = KR + 4*jj + 2*c
            sel = "s48" if c == 0 else "s49"
            e(f"v_perm_b32 v{P}, v{XR+4+jj}, v{XR+jj}, {sel}")
            e(f"v_perm_b32 v{P+1}, v{XR+12+jj}, v{XR+8+jj}, {sel}")
            e(f"ds_write_b64 v11, {vr(P,2)} offset:{16384+128*(2*jj+c)}")
    e("v_and_b32 v1, 7, v0")
    e("v_lshrrev_b32 v2, 7, v0")
    e("v_xor_b32 v2, v2, v1")
    e("v_lshrrev_b32 v3, 3, v0")
    e("v_lshlrev_b32 v4, 7, v3")
    e("v_lshl_add_u32 v4, v2, 4, v4")
    e(f"v_add_u32 v4, {TILE}, v4")
    e("v_xor_b32 v5, 32, v4")
    e("v_xor_b32 v6, 64, v4")
    e("v_xor_b32 v7, 96, v4")
    e("v_lshlrev_b32 v3, 12, v3")
    e("v_lshl_add_u32 v37, v1, 4, v3")
    e(f"v_mov_b32 v33, {FLAG+12}")
    e("v_mov_b32 v34, 1")
    e("s_waitcnt lgkmcnt(0)")
    e("s_mov_b64 exec, 1")
    e("ds_add_u32 v33, v34")
    e("s_mov_b64 exec, -1")
    e("s_lshl_b32 s4, s41, 19")
    e("s_lshl_b32 s5, s40, 7")
    e("s_add_u32 s4, s4, s5")
    for i in range(8):
        e(f"s_add_u32 s{16+i}, s4, 0x{(i%4)*131072 + (XT if i >= 4 else UT):x}")
    k.stamp(3)
    spin(None, "v_cmp_gt_u32 vcc, 4, v34", "waitT")
    R = 40
    for i in range(8):
        e(f"ds_read_b128 {vr(R+4*i,4)}, v{4+i%4} offset:{4096*(i%4) + (16384 if i >= 4 else 0)}")
    for i in range(4):
        e(f"s_waitcnt lgkmcnt({7-i})")
        e(f"buffer_store_dwordx4 {vr(R+4*i,4)}, v37, s[32:35], s{16+i} offen")
    e("v_and_b32 v0, 63, v0")
    e("v_and_b32 v5, 15, v0")
    e("v_lshrrev_b32 v6, 4, v0")
    e("s_lshl_b32 s12, s61, 12")
    e("v_lshlrev_b32 v7, 5, v5")
    e("v_lshl_add_u32 v7, v6, 3, v7")
    e(f"s_add_u32 s29, s12, 0x{HT:x}")
    e("v_sub_u32 v33, 7, v5")
    e("v_and_b32 v33, 3, v33")
    e(f"v_mul_u32_u24 v33, {KCP}, v33")
    e("v_lshrrev_b32 v34, 2, v5")
    e("v_lshl_add_u32 v33, v34, 3, v33")
    e("v_lshlrev_b32 v34, 4, v6")
    e("v_sub_u32 v33, v33, v34")
    e("s_add_u32 s30, s63, 24")
    e("v_add_u32 v1, s30, v33")
    e("v_lshlrev_b32 v33, 5, v5")
    e("v_add_u32 v33, v33, v34")
    e(f"s_add_u32 s30, s63, {4*KCP + 512 - 32*15}")
    e("v_add_u32 v3, s30, v33")
    AD = 192
    e("v_lshrrev_b32 v33, 3, v5")
    e("v_add_u32 v33, 2, v33")
    e("v_and_b32 v34, 7, v5")
    e("v_sub_u32 v34, 7, v34")
    e("v_cmp_eq_u32 vcc, v33, v6")
    e("v_lshrrev_b32 v35, 1, v34")
    e("v_and_b32 v34, 1, v34")
    e("v_cndmask_b32 v35, 9, v35, vcc")
    e("v_lshlrev_b32 v34, 4, v34")
    e("s_and_b32 s31, s61, 1")
    e("s_lshl_b32 s31, s31, 4")
    e("s_lshr_b32 s51, s51, s31")
    e("s_and_b32 s51, s51, 0xffff")
    e("v_mov_b32 v33, s51")
    e("v_lshlrev_b32 v34, v34, v33")
    for r in range(4):
        e(f"v_cmp_eq_u32 vcc, {r}, v35")
        e("s_nop 1")
        e(f"v_cndmask_b32 v{AD+r}, 0, v34, vcc")
    e("s_waitcnt vmcnt(0)")
    tagcheck("tagA")
    publish(0, FU, "pubU")
    k.stamp(4)
    for i in range(4, 8):
        e(f"buffer_store_dwordx4 {vr(R+4*i,4)}, v37, s[32:35], s{16+i} offen")
    FA = [64, 128]; FB = [96, 160]; AC = 8
    def reads(buf, ep):
        r = []
        for w in range(8):
            r.append(f"ds_read_b128 {vr(FB[buf]+4*w,4)}, v3 offset:{512*w + 32*(15-ep)}")
        for v in range(8):
            r.append(f"ds_read_b64 {vr(FA[buf]+4*v,2)}, v1 offset:{32*ep + 512*v}")
            r.append(f"ds_read_b64 {vr(FA[buf]+4*v+2,2)}, v1 offset:{32*ep + 512*v + 8}")
        return r
    def mfmas(buf):
        m = []
        for v in range(8):
            for w in range(8 - v):
                t = v + w
                m.append(f"v_mfma_f32_16x16x32_bf16 {vr(AC+4*t,4)}, {vr(FA[buf]+4*v,4)}, {vr(FB[buf]+4*w,4)}, {vr(AC+4*t,4)}")
        return m
    e("s_waitcnt vmcnt(0)")
    publish(4, FX, "pubX")
    e("s_lshl_b32 s3, s60, 2")
    e(f"s_add_u32 s3, s3, {FLAG+32}")
    e("v_mov_b32 v33, s3")
    spin(None, "v_cmp_eq_u32 vcc, 0, v34", "waitK")
    rd = reads(0, 1)
    for r in rd[8:]: e(r)
    spin(FLAG + 28, "v_cmp_eq_u32 vcc, 0, v34", "waitU")
    k.stamp(5)
    for r in rd[:8]: e(r)
    for t in range(8):
        e(f"s_waitcnt lgkmcnt({7-t})")
        e(f"v_mfma_f32_16x16x32_bf16 {vr(AC+4*t,4)}, {vr(AD,4)}, {vr(FB[0]+4*t,4)}, 0")
    e("s_mov_b32 s26, 0")
    k.label("loop")
    for buf, nxt in ((0, 3), (1, 5)):
        e("s_waitcnt lgkmcnt(0)")
        rd = reads(1 - buf, nxt)
        for i, m in enumerate(mfmas(buf)):
            e(m)
            if i < len(rd): e(rd[i])
    e("v_add_u32 v1, 128, v1")
    e("v_add_u32 v3, -128, v3")
    e("s_add_u32 s26, s26, 1")
    e("s_cmp_lt_u32 s26, 4")
    e(f"s_cbranch_scc1 {k.L('loop')}")
    e("v_lshlrev_b32 v1, 6, v5")
    e("v_lshl_add_u32 v1, v6, 4, v1")
    e(f"v_add_u32 v1, {STAT}, v1")
    e("s_lshl_b32 s26, s60, 12")
    e(f"s_add_u32 s26, s26, {TILE}")
    e("v_add_u32 v2, s26, v7")
    e(f"v_mov_b32 v3, {FLAG+16}")
    e("v_and_b32 v4, 1, v6")
    e("v_lshlrev_b32 v4, 9, v4")
    e("v_lshl_add_u32 v4, v5, 5, v4")
    e("v_lshrrev_b32 v200, 1, v6")
    e("v_lshl_add_u32 v4, v200, 4, v4")
    k.stamp(6)
    k.label("spoll")
    e("ds_read_b64 v[64:65], v3")
    e("s_waitcnt lgkmcnt(0)")
    e("v_and_b32 v64, v64, v65")
    e("v_cmp_eq_u32 vcc, 0, v64")
    e(f"s_cbranch_vccnz {k.L('spoll')}")
    MS = 64; RS = 96; XV = 176
    for t in range(8):
        e(f"ds_read_b64 {vr(XV+2*t,2)}, v2 offset:{512*t}")
    for t in range(3):
        e(f"ds_read_b128 {vr(MS+4*t,4)}, v1 offset:{1024*t}")
        e(f"ds_read_b128 {vr(RS+4*t,4)}, v1 offset:{1024*t+8192}")
    e("s_waitcnt lgkmcnt(6)")
    for t in range(8):
        if t + 3 < 8:
            e(f"ds_read_b128 {vr(MS+4*(t+3),4)}, v1 offset:{1024*(t+3)}")
            e(f"ds_read_b128 {vr(RS+4*(t+3),4)}, v1 offset:{1024*(t+3)+8192}")
        xu = 128 + 8*(t % 2); q = xu + 4
        e(f"v_lshlrev_b32 v{xu}, 16, v{XV+2*t}")
        e(f"v_and_b32 v{xu+1}, s50, v{XV+2*t}")
        e(f"v_lshlrev_b32 v{xu+2}, 16, v{XV+2*t+1}")
        e(f"v_and_b32 v{xu+3}, s50, v{XV+2*t+1}")
        e(f"s_waitcnt lgkmcnt({2*min(3, 7-t)})")
        for h in range(2):
            e(f"v_pk_add_f32 {vr(q+2*h,2)}, {vr(xu+2*h,2)}, {vr(MS+4*t+2*h,2)} neg_lo:[0,1] neg_hi:[0,1]")
        for h in range(2):
            e(f"v_pk_mul_f32 {vr(q+2*h,2)}, {vr(q+2*h,2)}, {vr(RS+4*t+2*h,2)}")
        for h in range(2):
            e(f"v_pk_fma_f32 {vr(q+2*h,2)}, {vr(q+2*h,2)}, {vr(AC+4*t+2*h,2)}, {vr(xu+2*h,2)}")
        e(f"v_cvt_pk_bf16_f32 v{XV+2*t}, v{q}, v{q+1}")
        e(f"v_cvt_pk_bf16_f32 v{XV+2*t+1}, v{q+2}, v{q+3}")
        if t % 2 == 1:
            e("s_nop 1")
            e(f"v_permlane16_swap_b32 v{XV+2*t-2}, v{XV+2*t}")
            e(f"v_permlane16_swap_b32 v{XV+2*t-1}, v{XV+2*t+1}")
            e(f"buffer_store_dwordx4 {vr(XV+2*t-2,4)}, v4, s[32:35], s29 offen offset:{512*(t-1)} sc1")
    e(f"v_mov_b32 v200, {FLAG+48}")
    e("v_mov_b32 v201, 1")
    e("s_waitcnt lgkmcnt(0)")
    e("s_mov_b64 exec, 1")
    e("ds_add_u32 v200, v201")
    e("s_mov_b64 exec, -1")
    if STAMP: k.dump_stamps(0, 32, 60, keep=True)
    finish("finA", "Lmlp_compute")

    k.label("bwave")
    k.role = "B"
    e("s_setprio 3")
    e("v_and_b32 v0, 63, v0")
    e("v_lshlrev_b32 v2, 4, v0")
    e("v_mov_b32 v36, 0"); e("v_mov_b32 v37, 0"); e("v_mov_b32 v38, 0"); e("v_mov_b32 v39, 0")
    e("v_min_u32 v33, 48, v2")
    e(f"v_add_u32 v33, {FLAG}, v33")
    e("ds_write_b128 v33, v[36:39]")
    e("s_memrealtime s[48:49]")
    e("s_waitcnt lgkmcnt(0)")
    e("s_barrier")
    k.srd(44, 52, 53, 256)
    e("s_or_b32 s48, s48, 1")
    e("s_add_u32 s3, s2, s62")
    e("s_cmp_eq_u32 s3, 0")
    e(f"s_cbranch_scc0 {k.L('notag')}")
    e("v_mov_b32 v40, s48"); e("v_mov_b32 v41, s49")
    e("s_mov_b64 exec, 1")
    e("buffer_store_dwordx2 v[40:41], v207, s[44:47], 0 offen sc1")
    e("s_mov_b64 exec, -1")
    k.label("notag")
    e("s_setprio 0")
    e("v_add_u32 v3, -8, v2")
    e("v_add_u32 v4, 1016, v2")
    e("s_lshl_b32 s42, s61, 12")
    e("s_add_u32 s20, s12, s42")
    e("s_addc_u32 s21, s13, 0")
    e("s_and_b32 s21, s21, 0xffff")
    e("s_mov_b32 s22, 4096")
    e("s_mov_b32 s23, 0x20000")
    k.srd(16, 4, 5, 4*MB)
    k.srd(32, 54, 55, WS_BYTES)
    e("s_lshl_b32 s43, s2, 14")
    e("s_lshl_b32 s3, s62, 12")
    e("s_add_u32 s43, s43, s3")
    e("v_bfe_u32 v32, v0, 1, 2")
    e(f"v_mul_u32_u24 v32, {KCP}, v32")
    e("v_and_b32 v33, 1, v0")
    e("v_lshl_add_u32 v32, v33, 4, v32")
    e(f"v_add_u32 v33, {4*KCP}, v2")
    e("v_cmp_gt_u32 vcc, 32, v0")
    e("s_nop 1")
    e("v_cndmask_b32 v32, v32, v33, vcc")
    e("v_add_u32 v32, s63, v32")
    e("ds_write_b128 v32, v[36:39]")
    if 'e' not in F:
        spin(FLAG + 24, "v_cmp_eq_u32 vcc, 0, v34", "waitL", sleep=1)
    k.stamp(1)
    Y = 8; W = 24; ST = 88
    for i in range(4):
        e(f"buffer_load_dwordx4 {vr(Y+4*i,4)}, v2, s[20:23], 0 offen offset:{1024*i} nt")
        if i == 0: e(f"buffer_load_dwordx2 {vr(W,2)}, v3, s[20:23], 0 offen nt")
        else:      e(f"buffer_load_dwordx2 {vr(W+2*i,2)}, v4, s[20:23], 0 offen offset:{1024*(i-1)} nt")
    for i in range(4):
        e(f"buffer_load_dwordx4 {vr(ST+4*i,4)}, v2, s[16:19], s43 offen offset:{1024*i} nt")
    tagload()
    if 'c' not in F:
        e("s_and_b32 s3, s40, 7")
        e(f"s_cbranch_scc1 {k.L('nocode')}")
        e("s_getpc_b64 s[48:49]")
        k.label("pc")
        e("s_lshl_b32 s3, s62, 13")
        e("v_lshl_add_u32 v32, v0, 7, s3")
        e(f"v_min_u32 v32, Lcode_end-{k.L('pc')}-4, v32")
        e("global_load_dword v210, v32, s[48:49]")
        k.label("nocode")
    e("s_add_u32 s30, s63, 32")
    e("v_add_u32 v4, s30, v2")
    for i in range(4):
        e(f"s_waitcnt vmcnt({5 + 2*(3-i)})")
        y = Y + 4*i; w = W + 2*i
        X = 44 + 12*(i % 2); P1 = X + 4; P3 = X + 8
        e(f"ds_write_b128 v4, {vr(y,4)} offset:{1024*i}")
        e(f"v_mov_b32 v{X}, v{w+1}")
        for j in range(3): e(f"v_mov_b32 v{X+1+j}, v{y+j}")
        e(f"ds_write_b128 v4, {vr(X,4)} offset:{1024*i + 2*KCP}")
        e(f"v_alignbit_b32 v{P1}, v{y}, v{w+1}, 16")
        for j in range(3): e(f"v_alignbit_b32 v{P1+1+j}, v{y+1+j}, v{y+j}, 16")
        e(f"ds_write_b128 v4, {vr(P1,4)} offset:{1024*i + KCP}")
        e(f"v_alignbit_b32 v{P3}, v{w+1}, v{w}, 16")
        for j in range(3): e(f"v_mov_b32 v{P3+1+j}, v{P1+j}")
        e(f"ds_write_b128 v4, {vr(P3,4)} offset:{1024*i + 3*KCP}")
    e("s_lshl_b32 s3, s62, 2")
    e(f"s_add_u32 s3, s3, {FLAG+32}")
    e("v_mov_b32 v33, s3")
    e("v_mov_b32 v34, 1")
    e("s_waitcnt lgkmcnt(0)")
    e("ds_write_b32 v33, v34")
    k.stamp(2)
    S = [104, 105]; Q = [106, 107]
    for r in S + Q: e(f"v_mov_b32 v{r}, 0")
    e("s_mov_b32 s48, 0x3f803f80")
    e("s_waitcnt vmcnt(0)")
    for j in range(8):
        for r in range(2):
            e(f"v_dot2c_f32_bf16 v{S[r]}, s48, v{ST+8*r+j}")
            e(f"v_dot2c_f32_bf16 v{Q[r]}, v{ST+8*r+j}, v{ST+8*r+j}")
    e("s_nop 2")
    for mode in ("quad_perm:[1,0,3,2] row_mask:0xf", "quad_perm:[2,3,0,1] row_mask:0xf", "row_half_mirror row_mask:0xf",
                 "row_mirror row_mask:0xf", "row_bcast:15 row_mask:0xa", "row_bcast:31 row_mask:0xc"):
        for r in S + Q:
            e(f"v_add_f32_dpp v{r}, v{r}, v{r} {mode} bank_mask:0xf")
    ln_stats(k, S, Q, [108, 109], None, [112, 113], recip=False)
    tagcheck("tagB")
    e("s_mov_b32 s48, 0x07060302")
    e(f"v_perm_b32 v{TAG-2}, v112, v108, s48")
    e(f"v_perm_b32 v{TAG-1}, v113, v109, s48")
    e("s_lshl_b32 s48, s2, 6")
    e("s_lshl_b32 s49, s62, 4")
    e("s_add_u32 s48, s48, s49")
    e(f"s_add_u32 s48, s48, 0x{SG:x}")
    e("s_mov_b32 exec_lo, 0")
    e("s_mov_b32 exec_hi, 0x80000000")
    e(f"buffer_store_dwordx4 {vr(TAG-2,4)}, v207, s[32:35], s48 offen sc1")
    e("s_mov_b64 exec, -1")
    k.stamp(3)
    e("s_cmp_eq_u32 s62, 3")
    e(f"s_cbranch_scc0 {k.L('notB3')}")
    poll(FU, "pollU")
    e("v_cmp_ne_u32 vcc, s38, v118")
    e(f"s_cbranch_vccz {k.L('oneXCD')}")
    spin(FLAG + 4, "v_cmp_gt_u32 vcc, 4, v34", "waitX")
    e("buffer_wbl2 sc1")
    e("s_waitcnt vmcnt(0)")
    e("s_lshl_b32 s3, s40, 7")
    e("v_mov_b32 v200, s3")
    e(f"s_add_u32 s3, s39, 0x{F2:x}")
    e("s_mov_b64 exec, 1")
    e(f"buffer_store_dwordx3 {vr(TAG,3)}, v200, s[32:35], s3 offen sc1")
    e("s_mov_b64 exec, -1")
    poll(F2, "poll2", dual=False)
    e("buffer_inv sc1")
    e("s_waitcnt vmcnt(0)")
    k.label("oneXCD")
    k.stamp(1)
    k.note("s3", 16)
    e("s_sub_u32 s13, s61, 3")
    e("s_lshl_b32 s13, s13, 12")
    for c in range(4):
        e(f"s_mov_b32 m0, {REG0 + c*REG + 4*KCP + 512}")
        e(f"s_add_u32 s14, s13, 0x{UT + 4096*c:x}")
        for p in range(4):
            e(f"buffer_load_dwordx4 v2, s[32:35], s14 offen offset:{1024*p} lds")
    setflag(FLAG + 8)
    e("s_waitcnt vmcnt(0)")
    setflag(FLAG + 28)
    k.stamp(2)
    k.label("notB3")
    e("s_cmp_eq_u32 s62, 1")
    e(f"s_cbranch_scc0 {k.L('notB1')}")
    e("s_lshl_b32 s3, s2, 7")
    e(f"s_add_u32 s3, s3, 0x{XID:x}")
    e("s_mov_b64 exec, 1")
    e(f"buffer_store_dwordx3 {vr(TAG,3)}, v207, s[32:35], s3 offen sc1")
    e("s_mov_b64 exec, -1")
    k.label("notB1")
    e("s_cmp_ge_u32 s62, 2")
    e(f"s_cbranch_scc1 {k.L('bfetch')}")
    fin_count("finB01")
    spin(FLAG + 56, "v_cmp_gt_u32 vcc, 2, v34", "waitG", sleep=2)
    k.stamp(4)
    for ch, ptr in (("n", 56), ("w", 58)):
        if ch in F: continue
        k.srd(16, ptr, ptr + 1, 1024*3584*2)
        e("s_lshl_b32 s30, s2, 1")
        e("s_add_u32 s30, s30, s62")
        e(f"s_mul_i32 s30, s30, {112*128}")
        e("v_lshlrev_b32 v6, 7, v0")
        e("v_add_u32 v7, 6144, v6")
        e("buffer_load_dword v210, v6, s[16:19], s30 offen")
        e("buffer_load_dword v211, v7, s[16:19], s30 offen")
    if STAMP: k.dump_stamps(0, 32, 60, keep=True)
    e("s_branch Lmlp_loader")
    k.label("bfetch")
    e("s_sub_u32 s11, s62, 2")
    e("s_lshl_b32 s12, s11, 13")
    spin(FLAG + 8, "v_cmp_eq_u32 vcc, 0, v34", "waitG2", sleep=1)
    poll(FX, "pollX")
    k.stamp(4)
    e("s_sub_u32 s13, s61, s62")
    e("s_lshl_b32 s13, s13, 12")
    e("s_add_u32 s13, s13, s12")
    for q in range(2):
        e(f"s_add_u32 m0, s12, {TILE + 4096*q}")
        e(f"s_add_u32 s14, s13, 0x{XT + 4096*q:x}")
        for p in range(4):
            e(f"buffer_load_dwordx4 v2, s[32:35], s14 offen offset:{1024*p} lds")
    e(f"s_add_u32 s13, s12, 0x{SG:x}")
    e("s_add_u32 s14, s13, 4096")
    e("s_mov_b32 s3, 0")
    for q in range(8):
        e(f"buffer_load_dwordx4 {vr(16+4*q,4)}, v2, s[32:35], s{13 + q//4} offen offset:{1024*(q%4)}")
    e(f"v_mov_b32 v200, {FLAG+56}")
    e("v_mov_b32 v201, 1")
    e("s_mov_b64 exec, 1")
    e("ds_add_u32 v200, v201")
    e("s_mov_b64 exec, -1")
    e(f"s_branch {k.L('pollS_c')}")
    k.label("pollS")
    for q in range(8):
        e(f"buffer_load_dwordx4 {vr(16+4*q,4)}, v2, s[32:35], s{13 + q//4} offen offset:{1024*(q%4)} sc1")
    k.label("pollS_c")
    e("s_add_u32 s3, s3, 1")
    e("s_cmp_gt_u32 s3, 0x40000")
    e(f"s_cbranch_scc1 {k.L('pollS_x')}")
    e("s_waitcnt vmcnt(0)")
    e("s_mov_b64 s[22:23], 0")
    for q in range(8):
        e(f"v_cmp_ne_u64 vcc, {vr(18+4*q,2)}, {vr(TAG,2)}")
        e("s_or_b64 s[22:23], s[22:23], vcc")
    e("s_cmp_lg_u64 s[22:23], 0")
    e(f"s_cbranch_scc0 {k.L('pollS_x')}")
    e("s_sleep 8")
    e(f"s_branch {k.L('pollS')}")
    k.label("pollS_x")
    e("s_waitcnt vmcnt(0)")
    k.stamp(6)
    e("s_lshl_b32 s13, s11, 12")
    e(f"s_add_u32 s13, s13, {STAT}")
    e("v_lshl_add_u32 v3, v0, 3, s13")
    e("s_mov_b32 s14, 0xffff0000")
    for q in range(8):
        g = 16 + 4*q
        e(f"v_and_b32 v{g+2}, s14, v{g}")
        e(f"v_and_b32 v{g+3}, s14, v{g+1}")
        e(f"v_lshlrev_b32 v{g}, 16, v{g}")
        e(f"v_lshlrev_b32 v{g+1}, 16, v{g+1}")
        e(f"v_rcp_f32 v{g+2}, v{g+2}")
        e(f"v_rcp_f32 v{g+3}, v{g+3}")
        e(f"ds_write_b64 v3, {vr(g,2)} offset:{512*q}")
        e(f"ds_write_b64 v3, {vr(g+2,2)} offset:{512*q+8192}")
    e("s_lshl_b32 s12, s11, 2")
    e(f"s_add_u32 s12, s12, {FLAG+16}")
    e("v_mov_b32 v4, s12")
    e("v_mov_b32 v5, 1")
    e("s_waitcnt vmcnt(0) lgkmcnt(0)")
    e("ds_write_b32 v4, v5")
    k.stamp(5)
    k.label("bdone")
    if STAMP: k.dump_stamps(0, 32, 60, keep=True)
    finish("finB", "Lmlp_loader")
    k.label("end")
    e("s_endpgm")
```

```python
from asmlib import *
from layout import *
from k0 import ln_stats
from kf import FLAG as FRONT_FLAG
import os
X = os.environ.get('MX', '')
FSLEEP = int(os.environ.get('FSLEEP', '4'))
RW = int(os.environ.get('K4RW', '4'))

STG1 = 45056; WOFF = 16384; NB1 = 3
STG2 = 32768; NB2 = 4; RES = NB2 * STG2; NST2 = 28
STATS = RES + 16384
CSL = STATS + 1024
MISC = CSL + 1024
NCS = 4

def weave(e, ms, fill, waits=None, mid=None, sched=None):
    fill = list(fill)
    for i, m in enumerate(ms):
        if mid and i == mid[0]:
            for t in mid[1]: e(t)
        if waits and i in waits: e(waits[i])
        e(m)
        for _ in range(sched[i] if i < len(sched) else 0):
            if fill: e(fill.pop(0))
    assert not fill, fill

def emit_mlp(k):
    e = k.e
    k.pfx = "m_"
    def entry():
        e("s_load_dwordx4 s[4:7], s[0:1], 56")
        e("s_load_dwordx2 s[8:9], s[0:1], 88")
        e("s_load_dwordx2 s[56:57], s[0:1], 72")
        e("s_mov_b32 s10, s60")
        e("s_mov_b32 s55, s38")
        e("s_and_b32 s11, s2, 7")
        e("s_lshr_b32 s12, s2, 3")
        e("s_lshr_b32 s13, s11, 1")
        e("s_lshl_b32 s13, s13, 2")
        e("s_and_b32 s14, s12, 3")
        e("s_add_u32 s13, s13, s14")
        e("s_and_b32 s15, s11, 1")
        e("s_lshr_b32 s53, s12, 2")
        e("s_lshl_b32 s14, s15, 3")
        e("s_add_u32 s14, s14, s53")
        e("v_lshrrev_b32 v2, 4, v0")
    k.lines.append("Lmlp_compute:")
    k.role = "A"
    k.stamp(0)
    entry()
    def trcommon():
        e("v_bfe_u32 v3, v0, 2, 2")
        e("v_and_b32 v4, 3, v0")
        e("v_and_b32 v5, 1, v2")
        e("v_lshl_or_b32 v6, v5, 2, v3")
        e("v_lshl_add_u32 v7, v2, 3, v3")
        e("v_lshlrev_b32 v8, 8, v7")
        e("v_lshl_add_u32 v8, v4, 3, v8")

    trcommon()
    ACC = 16; FW = [128, 172]; FH = [156, 200]
    AH = [1, 2, 3, 4]; AW = [9, 10, 11]
    e("s_and_b32 s24, s10, 1")
    e("s_lshr_b32 s25, s10, 1")
    e("v_mul_u32_u24 v12, 448, v7")
    e("v_lshl_add_u32 v12, v4, 3, v12")
    e(f"v_add_u32 v12, {WOFF}, v12")
    e("v_lshl_add_u32 v13, v5, 5, v12")
    e("v_xor_b32 v14, 1, v5")
    e("v_lshl_add_u32 v14, v14, 5, v12")
    e("s_lshl_b32 s26, s25, 8")
    e("v_add_u32 v9, s26, v13")
    e("v_add_u32 v10, s26, v14")
    e("s_cmp_eq_u32 s25, 0")
    e("s_cselect_b64 vcc, -1, 0")
    e("v_cndmask_b32 v11, v14, v13, vcc")
    e("v_add_u32 v11, 192, v11")
    e("v_mov_b32 v15, v2")
    e("s_lshl_b32 s26, s24, 2")
    for j in range(4):
        e(f"s_add_u32 s27, s26, {j}")
        e(f"v_xor_b32 v12, s27, v6")
        e(f"v_lshl_add_u32 v{AH[j]}, v12, 5, v8")
    for i in range(112):
        e(f"v_mov_b32 v{ACC+i}, 0")
    e("s_waitcnt lgkmcnt(0)")
    k.srd(20, 8, 9, WS_BYTES)
    k.srd(44, 56, 57, 4*MB)
    def reads1(st, step):
        r = []
        for j in range(4):
            for h in range(2):
                r.append(f"ds_read_b64_tr_b16 {vr(FH[st]+4*j+2*h,2)}, v{AH[j]} offset:{8192*step+1024*h}")
        for i in range(7):
            a, o = (AW[i % 2], 64*(i//2)) if i < 6 else (AW[2], 0)
            for h in range(2):
                r.append(f"ds_read_b64_tr_b16 {vr(FW[st]+4*i+2*h,2)}, v{a} offset:{14336*step+1792*h+o}")
        return r
    def mfmas1(st):
        return [f"v_mfma_f32_16x16x32_bf16 {vr(ACC+4*(4*i+j),4)}, {vr(FW[st]+4*i,4)}, {vr(FH[st]+4*j,4)}, {vr(ACC+4*(4*i+j),4)}"
                for i in range(7) for j in range(4)]
    e("s_mov_b32 s28, 0")
    e("s_mov_b32 s29, 0")
    e("s_barrier")
    k.stamp(1)
    for r in reads1(0, 0): e(r)
    k.label("c1loop")
    sal = ["s_add_u32 s29, s29, 1", f"s_mov_b32 s30, {STG1}", "s_cmp_eq_u32 s29, 3", f"s_cselect_b32 s30, {-2*STG1}, s30",
           "s_cselect_b32 s29, 0, s29", "s_add_u32 s28, s28, 1"]
    weave(e, mfmas1(0), reads1(1, 1) + sal, waits={4*i: f"s_waitcnt lgkmcnt({min(15, 12+2*i)})" for i in range(7)}, sched=[1]*28)
    weave(e, mfmas1(1), [f"v_add_u32 v{a}, s30, v{a}" for a in AH + AW] + reads1(0, 0) + ["s_cmp_lt_u32 s28, 16"],
          waits={0: "s_waitcnt lgkmcnt(12)"}, mid=(4, ["s_waitcnt lgkmcnt(0)", "s_barrier"]), sched=[0]*4 + [2]*6 + [1]*18)
    e(f"s_cbranch_scc1 {k.L('c1loop')}")
    k.stamp(2)
    e("v_and_b32 v1, 15, v0")
    e("s_lshl_b32 s26, s24, 9")
    e(f"s_add_u32 s26, s26, {STATS}")
    e("v_lshl_add_u32 v1, v1, 3, s26")
    e("s_lshl_b32 s26, s25, 9")
    e(f"s_add_u32 s26, s26, {CSL}")
    e("v_lshl_add_u32 v2, v15, 4, s26")
    e("s_mul_i32 s26, s25, 64")
    e(f"s_add_u32 s26, s26, {CSL+384}")
    e("v_lshl_add_u32 v3, v15, 4, s26")
    e(f"v_mov_b32 v6, {MISC}")
    e("s_waitcnt lgkmcnt(0)")
    MR = 128; C2 = 136; CSV = 144
    e("ds_read_b32 v7, v6 offset:4")
    for j in range(4):
        e(f"ds_read_b64 {vr(MR+2*j,2)}, v1 offset:{128*j}")
    for i in range(7):
        e(f"ds_read_b128 {vr(CSV+4*i,4)}, v{2 if i < 6 else 3} offset:{64*i if i < 6 else 0}")
    e("s_lshl_b32 s26, s25, 12")
    e("v_lshl_add_u32 v4, v0, 4, s26")
    e("s_lshl_b32 s26, s25, 3")
    e("s_add_u32 s26, s26, 3072")
    e("v_lshl_add_u32 v5, v0, 4, s26")
    e("s_lshl_b32 s26, s13, 3")
    e("s_lshl_b32 s27, s24, 2")
    e("s_add_u32 s26, s26, s27")
    e("s_mul_i32 s26, s26, 112")
    e("s_mul_i32 s27, s14, 7")
    e("s_add_u32 s26, s26, s27")
    e("s_lshl_b32 s26, s26, 10")
    e(f"s_add_u32 s32, s26, 0x{HM:x}")
    for j in range(1, 4):
        e(f"s_add_u32 s{32+j}, s32, {112*1024*j}")
    e("s_waitcnt lgkmcnt(0)")
    e("v_readfirstlane_b32 s54, v7")
    for j in range(4):
        e(f"v_mul_f32 v{C2+2*j}, 0xbfb8aa3b, v{MR+2*j+1}")
    e("s_mov_b32 s58, 0xbfb8aa3b")
    e("s_mov_b32 s59, 0xbfb8aa3b")
    e("s_cmp_eq_u32 s54, 1")
    nsite = [0]
    def store2(ops):
        n = nsite[0]; nsite[0] += 1
        e(f"s_cbranch_scc1 {k.L(f'pl{n}')}")
        for o in ops: e(o + " sc1")
        e(f"s_branch {k.L(f'st{n}')}")
        k.label(f"pl{n}")
        for o in ops: e(o)
        k.label(f"st{n}")
    T = 172
    def elem8(tiles, out):
        P = T; Xr = T + 8
        def each(f):
            for n, (i, j) in enumerate(tiles):
                for h in range(2):
                    e(f(ACC + 4*(4*i+j) + 2*h, CSV + 4*i + 2*h, j, P + 4*n + 2*h, Xr + 4*n + 2*h))
        each(lambda a, c, j, p, x: f"v_pk_fma_f32 {vr(a,2)}, {vr(c,2)}, {vr(MR+2*j,2)}, {vr(a,2)} op_sel_hi:[1,0,1] neg_lo:[0,1,0] neg_hi:[0,1,0]")
        each(lambda a, c, j, p, x: f"v_pk_mul_f32 {vr(p,2)}, {vr(a,2)}, {vr(C2+2*j,2)} op_sel_hi:[1,0]")
        for q in range(8): e(f"v_exp_f32 v{Xr+q}, v{P+q}")
        each(lambda a, c, j, p, x: f"v_pk_fma_f32 {vr(x,2)}, {vr(x,2)}, s[58:59], s[58:59]")
        for q in range(8): e(f"v_rcp_f32 v{Xr+q}, v{Xr+q}")
        each(lambda a, c, j, p, x: f"v_pk_mul_f32 {vr(p,2)}, {vr(p,2)}, {vr(x,2)}")
        for q in range(4): e(f"v_cvt_pk_bf16_f32 v{out+q}, v{P+2*q}, v{P+2*q+1}")
    n = 0
    for j in range(4):
        for pr in range(3):
            o = 192 + 4*(n % 4); n += 1
            elem8([(2*pr, j), (2*pr+1, j)], o)
            store2([f"buffer_store_dwordx4 {vr(o,4)}, v4, s[20:23], s{32+j} offen offset:{1024*pr}"])
        if j % 2 == 1:
            o = 192 + 4*(n % 4); n += 1
            elem8([(6, j-1), (6, j)], o)
            store2([f"buffer_store_dwordx2 {vr(o,2)}, v5, s[20:23], s{32+j-1} offen",
                    f"buffer_store_dwordx2 {vr(o+2,2)}, v5, s[20:23], s{32+j} offen"])
    k.stamp(3)

    NS = 4
    F0 = ACC + 64
    GW = [F0, F0 + 32]; GH = [F0 + 16, F0 + 48]
    BW = [8, 9, 10, 11]; BH = 12
    e("v_mov_b32 v2, v15")
    e("v_bfe_u32 v3, v0, 2, 2")
    e("v_and_b32 v4, 3, v0")
    e("v_lshl_add_u32 v7, v2, 2, v3")
    e("v_and_b32 v5, 7, v7")
    e("v_lshlrev_b32 v13, 8, v7")
    e("v_lshl_add_u32 v13, v4, 3, v13")
    e(f"v_add_u32 v13, {WOFF}, v13")
    e("s_lshl_b32 s26, s25, 2")
    for i in range(4):
        e(f"s_add_u32 s27, s26, {i}")
        e(f"v_xor_b32 v14, s27, v5")
        e(f"v_lshl_add_u32 v{BW[i]}, v14, 5, v13")
    e("s_lshl_b32 s26, s24, 12")
    e(f"v_lshl_add_u32 v{BH}, v0, 4, s26")
    for i in range(64):
        e(f"v_mov_b32 v{ACC+i}, 0")
    e("v_mov_b32 v13, 1")
    e("s_lshl_b32 s26, s2, 7")
    e(f"s_add_u32 s26, s26, 0x{HFL:x}")
    e("v_mov_b32 v14, 0")
    e("v_mov_b32 v216, s98")
    e("v_mov_b32 v217, s99")
    e("s_waitcnt vmcnt(0)")
    e("s_mov_b64 exec, 1")
    e("ds_add_rtn_u32 v1, v6, v13")
    e("s_waitcnt lgkmcnt(0)")
    e("v_readfirstlane_b32 s27, v1")
    e("s_cmp_eq_u32 s27, 3")
    e(f"s_cbranch_scc0 {k.L('noflag')}")
    e("s_cmp_eq_u32 s54, 1")
    store2(["buffer_store_dwordx2 v[216:217], v14, s[20:23], s26 offen"])
    k.label("noflag")
    e("s_mov_b64 exec, -1")
    e("v_bfe_u32 v6, v7, 1, 2")
    def hoff(j): return 2048*(j % 2) + 8192*(j // 2)
    def reads2(st, step):
        r = []
        for j in range(NS):
            r.append(f"ds_read_b128 {vr(GH[st]+4*j,4)}, v{BH} offset:{hoff(j)+1024*step}")
        for i in range(4):
            for h in range(2):
                r.append(f"ds_read_b64_tr_b16 {vr(GW[st]+4*i+2*h,2)}, v{BW[i]} offset:{8192*step+4096*h}")
        return r
    def mfmas2(st):
        return [f"v_mfma_f32_16x16x32_bf16 {vr(ACC+4*(NS*i+j),4)}, {vr(GW[st]+4*i,4)}, {vr(GH[st]+4*j,4)}, {vr(ACC+4*(NS*i+j),4)}"
                for i in range(4) for j in range(NS)]
    e("s_mov_b32 s28, 0")
    e("s_mov_b32 s29, 0")
    e("s_barrier")
    k.stamp(4)
    for r in reads2(0, 0): e(r)
    k.label("c2loop")
    sal = ["s_add_u32 s29, s29, 1", f"s_mov_b32 s30, {STG2}", f"s_cmp_eq_u32 s29, {NB2}", f"s_cselect_b32 s30, {-(NB2-1)*STG2}, s30",
           "s_cselect_b32 s29, 0, s29", "s_add_u32 s28, s28, 1"]
    weave(e, mfmas2(0), reads2(1, 1) + sal,
          waits={0: "s_waitcnt lgkmcnt(6)", 4: "s_waitcnt lgkmcnt(12)", 8: "s_waitcnt lgkmcnt(14)", 12: "s_waitcnt lgkmcnt(12)"},
          sched=[2]*6 + [1]*6)
    weave(e, mfmas2(1), [f"v_add_u32 v{a}, s30, v{a}" for a in [BH] + BW] + reads2(0, 0) + [f"s_cmp_lt_u32 s28, {NST2}"],
          waits={0: "s_waitcnt lgkmcnt(6)"}, mid=(4, ["s_waitcnt lgkmcnt(0)", "s_barrier"]), sched=[0]*4 + [2]*6 + [1]*6)
    e(f"s_cbranch_scc1 {k.L('c2loop')}")
    k.stamp(5)
    T = F0
    e("s_lshl_b32 s26, s2, 2")
    e("s_add_u32 s26, s26, s10")
    e("s_xor_b32 s27, s26, 4")
    e("s_lshl_b32 s31, s26, 12")
    e(f"s_add_u32 s31, s31, 0x{PART:x}")
    e("s_lshl_b32 s32, s27, 12")
    e(f"s_add_u32 s32, s32, 0x{PART:x}")
    e("s_lshl_b32 s35, s26, 7")
    e(f"s_add_u32 s35, s35, 0x{FLG:x}")
    e("s_lshl_b32 s36, s27, 7")
    e(f"s_add_u32 s36, s36, 0x{FLG:x}")
    e("v_lshlrev_b32 v14, 4, v0")
    e("s_cmp_eq_u32 s15, 0")
    e(f"s_cbranch_scc1 {k.L('send_hi')}")
    for own in (1, 0):
        if own == 0: k.label("send_hi")
        for i in range(4):
            a0 = ACC + 4*(NS*i + 2*(1-own)); o = T + 48 + 4*i
            for q in range(4):
                e(f"v_cvt_pk_bf16_f32 v{o+q}, v{a0+2*q}, v{a0+2*q+1}")
            e(f"buffer_store_dwordx4 {vr(o,4)}, v14, s[20:23], s31 offen offset:{1024*i} sc1")
        if own == 1:
            for i in range(4):
                for q in range(8):
                    e(f"v_mov_b32 v{ACC+4*NS*i+q}, v{ACC+4*NS*i+8+q}")
            e(f"s_branch {k.L('sent')}")
    k.label("sent")
    e("v_lshlrev_b32 v13, 7, v7")
    e("v_lshl_add_u32 v13, v4, 3, v13")
    e("s_lshl_b32 s26, s25, 13")
    e(f"s_add_u32 s26, s26, {RES}")
    e("v_add_u32 v13, s26, v13")
    e("s_lshl_b32 s26, s24, 1")
    for j in range(2):
        e(f"s_add_u32 s27, s26, {j}")
        e(f"v_xor_b32 v15, s27, v6")
        e(f"v_lshl_add_u32 v{8+j}, v15, 5, v13")
    e("s_waitcnt lgkmcnt(0)")
    HR = T
    for i in range(4):
        for j in range(2):
            e(f"ds_read_b64_tr_b16 {vr(HR+2*(2*i+j),2)}, v{8+j} offset:{2048*i}")
    e("v_and_b32 v10, 15, v0")
    e("v_lshrrev_b32 v11, 1, v2")
    e("v_and_b32 v12, 7, v10")
    e("v_xor_b32 v11, v11, v12")
    e("v_lshlrev_b32 v11, 4, v11")
    e("v_lshl_add_u32 v11, v10, 7, v11")
    e("v_and_b32 v12, 1, v2")
    e("v_lshl_add_u32 v11, v12, 3, v11")
    e("s_lshl_b32 s26, s10, 12")
    e("v_add_u32 v3, s26, v11")
    e("v_xor_b32 v4, 32, v3")
    e("v_xor_b32 v5, 64, v3")
    e("v_xor_b32 v6, 96, v3")
    e("v_lshrrev_b32 v10, 3, v0")
    e("v_and_b32 v11, 7, v0")
    e("v_xor_b32 v12, v11, v10")
    e("v_lshlrev_b32 v12, 4, v12")
    e("v_lshl_add_u32 v12, v10, 7, v12")
    e("v_add_u32 v7, s26, v12")
    e("v_lshlrev_b32 v10, 11, v10")
    e("v_lshl_add_u32 v10, v11, 4, v10")
    e("s_lshl_b32 s26, s13, 7")
    e("s_lshl_b32 s27, s24, 5")
    e("s_add_u32 s26, s26, s27")
    e("s_lshl_b32 s27, s15, 6")
    e("s_add_u32 s26, s26, s27")
    e("s_lshl_b32 s26, s26, 11")
    e("s_lshl_b32 s27, s53, 8")
    e("s_add_u32 s26, s26, s27")
    e("s_lshl_b32 s27, s25, 7")
    e("s_add_u32 s48, s26, s27")
    for q in range(1, 4):
        e(f"s_add_u32 s{48+q}, s48, {q*8*2048}")
    PR = T + 16; U = PR + 16
    e("s_mov_b32 s37, 0xffff0000")
    e("s_waitcnt lgkmcnt(0)")
    for i in range(4):
        for j in range(2):
            n = 2*i + j; a = ACC + 4*(NS*i + j); u = U + 4*(n % 2)
            e(f"v_lshlrev_b32 v{u}, 16, v{HR+2*n}")
            e(f"v_and_b32 v{u+1}, s37, v{HR+2*n}")
            e(f"v_lshlrev_b32 v{u+2}, 16, v{HR+2*n+1}")
            e(f"v_and_b32 v{u+3}, s37, v{HR+2*n+1}")
            for h in range(2):
                e(f"v_pk_add_f32 {vr(a+2*h,2)}, {vr(a+2*h,2)}, {vr(u+2*h,2)}")
    e("v_mov_b32 v15, 0")
    e("s_waitcnt vmcnt(0)")
    e("s_mov_b64 exec, 1")
    e("buffer_store_dwordx2 v[216:217], v15, s[20:23], s35 offen sc1")
    e("s_mov_b32 s38, 0")
    k.label("poll")
    e("buffer_load_dwordx2 v[218:219], v15, s[20:23], s36 offen sc1")
    e("s_add_u32 s38, s38, 1")
    e("s_cmp_gt_u32 s38, 0x200000")
    e(f"s_cbranch_scc1 {k.L('polled')}")
    e("s_waitcnt vmcnt(0)")
    e("v_cmp_ne_u64 vcc, v[218:219], v[216:217]")
    e(f"s_cbranch_vccnz {k.L('poll')}")
    k.label("polled")
    k.stamp(6)
    e("s_mov_b64 exec, -1")
    for i in range(4):
        e(f"buffer_load_dwordx4 {vr(PR+4*i,4)}, v14, s[20:23], s32 offen offset:{1024*i} sc1")
    for i in range(4):
        for j in range(2):
            n = 2*i + j; a = ACC + 4*(NS*i + j); u = U + 4*(n % 2)
            if j == 0: e(f"s_waitcnt vmcnt({3-i})")
            e(f"v_lshlrev_b32 v{u}, 16, v{PR+2*n}")
            e(f"v_and_b32 v{u+1}, s37, v{PR+2*n}")
            e(f"v_lshlrev_b32 v{u+2}, 16, v{PR+2*n+1}")
            e(f"v_and_b32 v{u+3}, s37, v{PR+2*n+1}")
            for h in range(2):
                e(f"v_pk_add_f32 {vr(a+2*h,2)}, {vr(a+2*h,2)}, {vr(u+2*h,2)}")
            e(f"v_cvt_pk_bf16_f32 v{HR+2*n}, v{a}, v{a+1}")
            e(f"v_cvt_pk_bf16_f32 v{HR+2*n+1}, v{a+2}, v{a+3}")
            e(f"ds_write_b64 v{3+i}, {vr(HR+2*n,2)} offset:{2048*j}")
    e("s_waitcnt lgkmcnt(0)")
    for q in range(4):
        e(f"ds_read_b128 {vr(PR+4*q,4)}, v7 offset:{1024*q}")
    for q in range(4):
        e(f"s_waitcnt lgkmcnt({3-q})")
        e(f"buffer_store_dwordx4 {vr(PR+4*q,4)}, v10, s[44:47], s{48+q} offen")
    if STAMP:
        e("s_waitcnt vmcnt(0)")
        k.dump_stamps(1, 20, 10)
    k.dbg_out()
    e("s_endpgm")

    k.lines.append("Lmlp_loader:")
    k.role = "B"
    k.stamp(0)
    entry()
    e("v_mov_b32 v216, s98")
    e("v_mov_b32 v217, s99")
    e("s_sub_u32 s24, s10, 4")
    VH = 16; VW = 20
    e("s_lshl_b32 s47, s24, 16")
    e("s_lshl_b32 s26, s13, 8")
    e("s_add_u32 s47, s47, s26")
    e(f"s_add_u32 s47, s47, 0x{HT:x}")
    e(f"s_mul_i32 s48, s24, {16*7168}")
    e("s_mul_i32 s27, s14, 448")
    e("s_add_u32 s48, s48, s27")
    e("s_add_u32 s36, s14, s13")
    e("s_and_b32 s36, s36, 15")
    e("s_mov_b32 s49, 0")
    e("s_lshl_b32 s25, s36, 18")
    e("s_add_u32 s25, s25, s47")
    e(f"s_mul_i32 s26, s36, {64*7168}")
    e("s_add_u32 s26, s26, s48")
    e("s_lshl_b32 s27, s24, 12")
    e("s_mul_i32 s28, s24, 7168")
    e(f"s_add_u32 s28, s28, {WOFF}")
    e("v_bfe_u32 v9, v0, 1, 3")
    e("v_and_b32 v10, 1, v0")
    e("v_lshlrev_b32 v10, 4, v10")
    e("v_lshl_add_u32 v10, v2, 12, v10")
    e("v_xor_b32 v9, v9, v2")
    for pp in range(4):
        if pp == 2: e("v_xor_b32 v9, 4, v9")
        e(f"v_lshl_add_u32 v{VH+pp}, v9, 5, v10")
        if pp: e(f"v_add_u32 v{VH+pp}, {pp*(16384-1024)}, v{VH+pp}")
    def wpat(q):
        e(f"v_add_u32 v9, {64*q}, v0")
        e("v_mul_u32_u24 v10, 9363, v9")
        e("v_lshrrev_b32 v10, 18, v10")
        e("v_mul_u32_u24 v11, 28, v10")
        e("v_sub_u32 v11, v9, v11")
        e("v_lshrrev_b32 v12, 2, v10")
        e("v_and_b32 v12, 2, v12")
        e("v_xor_b32 v11, v11, v12")
        e("v_mul_u32_u24 v12, 7168, v10")
        e("v_lshl_add_u32 v12, v11, 4, v12")
        e(f"v_add_u32 v{VW+q}, {-1024*(q%4)}, v12")
    for q in range(7): wpat(q)
    e("s_waitcnt lgkmcnt(0)")
    k.srd(20, 8, 9, WS_BYTES)
    k.srd(16, 4, 5, 1024*3584*2)
    def advance():
        e("s_add_u32 s49, s49, 1")
        e("s_add_u32 s37, s36, 1")
        e("s_and_b32 s37, s37, 3")
        e("s_and_b32 s36, s36, 12")
        e("s_or_b32 s36, s36, s37")
        e("s_and_b32 s37, s49, 3")
        e("s_cmp_eq_u32 s37, 0")
        e("s_cselect_b32 s37, 4, 0")
        e("s_add_u32 s36, s36, s37")
        e("s_and_b32 s36, s36, 15")
        e("s_lshl_b32 s25, s36, 18")
        e("s_add_u32 s25, s25, s47")
        e(f"s_mul_i32 s26, s36, {64*7168}")
        e("s_add_u32 s26, s26, s48")
    def hpart(so, m0):
        e(m0); e("s_nop 0")
        for pp in range(4):
            e(f"buffer_load_dwordx4 v{VH+pp}, s[20:23], {so} offen offset:{1024*pp} sc1 lds")
    def wpart(buf):
        e(f"s_add_u32 m0, s28, {buf}"); e("s_nop 0")
        for q in range(7):
            if q == 4: e(f"s_add_u32 m0, s28, {buf+4096}"); e("s_nop 0")
            e(f"buffer_load_dwordx4 v{VW+q}, s[16:19], s26 offen offset:{1024*(q%4)} lds")
    e(f"v_mov_b32 v33, {FRONT_FLAG+48}")
    k.label("waitM")
    e("s_sleep 1")
    e("ds_read_b32 v34, v33")
    e("s_waitcnt lgkmcnt(0)")
    e("v_cmp_gt_u32 vcc, 4, v34")
    e(f"s_cbranch_vccnz {k.L('waitM')}")
    wpart(0)
    e("s_mov_b32 s50, s25")
    e("s_mov_b32 s62, s36")
    advance()
    wpart(STG1)
    e("s_mov_b32 s51, s25")
    e("s_mov_b32 s63, s36")
    advance()
    e("v_lshrrev_b32 v9, 3, v0")
    e("v_lshlrev_b32 v9, 7, v9")
    e("v_bfe_u32 v10, v0, 2, 1")
    e("v_lshl_add_u32 v9, v10, 14, v9")
    e("v_and_b32 v10, 3, v0")
    e("v_lshl_add_u32 v38, v10, 10, v9")
    e(f"s_add_u32 s52, s27, 0x{FHT:x}")
    e("s_mov_b64 s[58:59], 0")
    e("s_mov_b32 s39, 0")
    e(f"v_mov_b32 v35, {FRONT_FLAG+52}")
    k.label("waitF")
    e("s_sleep 1")
    e("ds_read_b32 v34, v35")
    e("s_waitcnt lgkmcnt(0)")
    e("v_cmp_gt_u32 vcc, 8, v34")
    e(f"s_cbranch_vccnz {k.L('waitF')}")
    nneed = [0]
    def need(stage):
        n = nneed[0]; nneed[0] += 1
        k.label(f"need{n}")
        e(f"s_lshl_b32 s60, {stage}, 2")
        e("s_lshr_b64 s[60:61], s[58:59], s60")
        e("s_and_b32 s60, s60, 15")
        e("s_cmp_eq_u32 s60, 15")
        e(f"s_cbranch_scc1 {k.L(f'have{n}')}")
        e("buffer_load_dwordx2 v[100:101], v38, s[20:23], s52 offen sc1")
        e("s_add_u32 s39, s39, 1")
        e("s_cmp_gt_u32 s39, 0x100000")
        e(f"s_cbranch_scc1 {k.L(f'have{n}')}")
        e("s_waitcnt vmcnt(0)")
        e("v_cmp_eq_u64 s[58:59], v[100:101], v[216:217]")
        e(f"s_branch {k.L(f'need{n}')}")
        k.label(f"have{n}")
    need("s62")
    k.stamp(5)
    k.note("s39", 17)
    hpart("s50", "s_mov_b32 m0, s27")
    need("s63")
    hpart("s51", f"s_add_u32 m0, s27, {STG1}")
    e(f"s_mov_b32 s29, {2*STG1}")
    def issue1():
        need("s36")
        e("s_add_u32 m0, s27, s29")
        e("s_add_u32 s30, s28, s29")
        for pp in range(4):
            e(f"buffer_load_dwordx4 v{VH+pp}, s[20:23], s25 offen offset:{1024*pp} sc1 lds")
        e("s_mov_b32 m0, s30")
        e("s_nop 0")
        for q in range(4):
            e(f"buffer_load_dwordx4 v{VW+q}, s[16:19], s26 offen offset:{1024*q} lds")
        e("s_add_u32 m0, s30, 4096")
        e(f"s_add_u32 s29, s29, {STG1}")
        for q in range(4, 7):
            e(f"buffer_load_dwordx4 v{VW+q}, s[16:19], s26 offen offset:{1024*(q-4)} lds")
        e(f"s_cmp_eq_u32 s29, {NB1*STG1}")
        e("s_cselect_b32 s29, 0, s29")
        advance()
    e("s_waitcnt vmcnt(4)")
    e("s_barrier")
    k.stamp(1)
    issue1()
    trcommon()
    e("s_lshl_b32 s31, s24, 1")
    e("v_xor_b32 v12, s31, v6")
    e("v_lshl_add_u32 v36, v12, 5, v8")
    e("v_xor_b32 v37, 32, v36")
    S = [40, 42]; Q = [44, 46]
    for r in range(40, 48): e(f"v_mov_b32 v{r}, 0")
    e("s_mov_b32 s33, 0xffff0000")
    D = 48; U = 64
    for t in range(2):
        for st in range(2):
            for h in range(2):
                e(f"ds_read_b64_tr_b16 {vr(D+8*t+4*st+2*h,2)}, v{36+t} offset:{8192*st+1024*h}")
    e("s_waitcnt lgkmcnt(0)")
    for j in range(8):
        for t in range(2):
            u = U + 2*t
            e(f"v_lshlrev_b32 v{u}, 16, v{D+8*t+j}")
            e(f"v_and_b32 v{u+1}, s33, v{D+8*t+j}")
        for t in range(2):
            u = U + 2*t
            for q in range(2):
                e(f"v_add_f32 v{S[t]+q}, v{S[t]+q}, v{u+q}")
                e(f"v_fmac_f32 v{Q[t]+q}, v{u+q}, v{u+q}")
    def greduce(regs):
        for op in ("v_permlane32_swap_b32", "v_permlane16_swap_b32"):
            for i, r in enumerate(regs): e(f"v_mov_b32 v{D+i}, v{r}")
            e("s_nop 1")
            for i, r in enumerate(regs): e(f"{op} v{r}, v{D+i}")
            e("s_nop 1")
            for i, r in enumerate(regs): e(f"v_add_f32 v{r}, v{r}, v{D+i}")
    for r in S + Q: e(f"v_add_f32 v{r}, v{r}, v{r+1}")
    greduce(S + Q)
    e("v_cmp_gt_u32 vcc, 16, v0")
    e("s_lshl_b32 s31, s13, 15")
    e("s_lshl_b32 s32, s24, 9")
    e("s_add_u32 s31, s31, s32")
    e(f"s_add_u32 s31, s31, 0x{SP2:x}")
    e("s_lshl_b32 s32, s14, 11")
    e("s_add_u32 s32, s32, s31")
    e(f"v_cndmask_b32 v214, v{S[1]}, v{S[0]}, vcc")
    e(f"v_cndmask_b32 v215, v{Q[1]}, v{Q[0]}, vcc")
    e("v_lshlrev_b32 v9, 4, v0")
    e("s_mov_b64 exec, 0xffffffff")
    e("buffer_store_dwordx4 v[214:217], v9, s[20:23], s32 offen sc1")
    e("s_mov_b64 exec, -1")
    e("v_mul_u32_u24 v12, 448, v7")
    e("v_lshl_add_u32 v12, v4, 3, v12")
    e("s_lshl_b32 s32, s24, 7")
    e(f"s_add_u32 s32, s32, {WOFF}")
    e("v_add_u32 v12, s32, v12")
    e("v_lshl_add_u32 v13, v5, 5, v12")
    e("v_xor_b32 v14, 1, v5")
    e("v_lshl_add_u32 v14, v14, 5, v12")
    CW = 68
    for t in range(4):
        for st in range(2):
            for h in range(2):
                e(f"ds_read_b64_tr_b16 {vr(CW+8*t+4*st+2*h,2)}, v{13 + t%2} offset:{14336*st+1792*h+64*(t//2)}")
        if t == 2: e("s_waitcnt lgkmcnt(8)")
    for r in range(40, 48): e(f"v_mov_b32 v{r}, 0")
    e("s_waitcnt lgkmcnt(0)")
    for j in range(8):
        for t in range(4):
            e(f"v_lshlrev_b32 v{U}, 16, v{CW+8*t+j}")
            e(f"v_and_b32 v{U+1}, s33, v{CW+8*t+j}")
            e(f"v_add_f32 v{40+t}, v{40+t}, v{U}")
            e(f"v_add_f32 v{44+t}, v{44+t}, v{U+1}")
    for t in range(4): e(f"v_add_f32 v{40+t}, v{40+t}, v{44+t}")
    greduce([40, 41, 42, 43])
    e("v_cmp_gt_u32 vcc, 16, v0")
    e("s_lshl_b32 s32, s14, 4")
    e("s_add_u32 s32, s32, s13")
    e("s_lshl_b32 s32, s32, 11")
    e("s_lshl_b32 s34, s24, 9")
    e("s_add_u32 s32, s32, s34")
    e(f"s_add_u32 s32, s32, 0x{CP:x}")
    e("v_cndmask_b32 v214, v42, v40, vcc")
    e("v_cndmask_b32 v215, v43, v41, vcc")
    e("s_mov_b64 exec, 0xffffffff")
    e("buffer_store_dwordx4 v[214:217], v9, s[20:23], s32 offen sc1")
    e("s_mov_b64 exec, -1")
    e("s_mov_b32 s35, 0")
    k.label("l1loop")
    e("s_cmp_eq_u32 s35, 0")
    e(f"s_cbranch_scc1 {k.L('lw20')}")
    e("s_cmp_eq_u32 s35, 1")
    e(f"s_cbranch_scc1 {k.L('lw12')}")
    e("s_waitcnt vmcnt(11)")
    k.label("lw12")
    e("s_waitcnt vmcnt(13)")
    k.label("lw20")
    e("s_waitcnt vmcnt(13)")
    e("s_barrier")
    e("s_cmp_ge_u32 s35, 13")
    e(f"s_cbranch_scc1 {k.L('l1done')}")
    issue1()
    e("s_add_u32 s35, s35, 1")
    e(f"s_branch {k.L('l1loop')}")
    k.label("l1done")
    k.stamp(2)
    e("s_lshl_b32 s33, s14, 15")
    e("s_lshl_b32 s34, s24, 9")
    e("s_add_u32 s33, s33, s34")
    e(f"s_add_u32 s33, s33, 0x{CP:x}")
    e("v_and_b32 v10, 31, v0")
    e("v_lshlrev_b32 v9, 4, v10")
    e("v_lshrrev_b32 v11, 5, v0")
    e("v_lshl_add_u32 v9, v11, 11, v9")
    e("v_and_b32 v11, 7, v0")
    e("v_lshlrev_b32 v11, 12, v11")
    e("s_and_b32 s34, s2, 31")
    e("s_lshl_b32 s34, s34, 7")
    e(f"s_add_u32 s50, s34, 0x{XID:x}")
    e(f"s_add_u32 s51, s34, 0x{HFL:x}")
    e("s_mov_b32 s39, 0")
    G = 68
    k.label("spoll")
    e("s_mov_b32 s32, s31")
    for q in range(8):
        e(f"buffer_load_dwordx4 {vr(G+4*q,4)}, v9, s[20:23], s32 offen sc1")
        e("s_add_u32 s32, s32, 4096")
    e("s_mov_b32 s32, s33")
    for q in range(8):
        e(f"buffer_load_dwordx4 {vr(G+32+4*q,4)}, v9, s[20:23], s32 offen sc1")
        e("s_add_u32 s32, s32, 4096")
    e("buffer_load_dwordx3 v[64:66], v11, s[20:23], s50 offen sc1")
    e("s_add_u32 s39, s39, 1")
    e("s_cmp_gt_u32 s39, 0x100000")
    e(f"s_cbranch_scc1 {k.L('spolled')}")
    e("s_waitcnt vmcnt(0)")
    e("v_cmp_ne_u64 s[44:45], v[64:65], v[216:217]")
    for q in range(16):
        e(f"v_cmp_ne_u64 vcc, {vr(G+4*q+2,2)}, v[216:217]")
        e("s_or_b64 s[44:45], s[44:45], vcc")
    e("s_cmp_lg_u64 s[44:45], 0")
    e(f"s_cbranch_scc1 {k.L('spoll')}")
    k.label("spolled")
    e("s_waitcnt vmcnt(0)")
    e("v_cmp_ne_u32 vcc, s55, v66")
    for q in range(1, 8):
        for j in range(2):
            e(f"v_add_f32 v{40+j}, v{G+j if q == 1 else 40+j}, v{G+4*q+j}")
            e(f"v_add_f32 v{42+j}, v{G+32+j if q == 1 else 42+j}, v{G+32+4*q+j}")
    e("s_cmp_eq_u64 vcc, 0")
    e("s_cselect_b32 s54, 1, 2")
    if 'f' in X: e("s_mov_b32 s54, 2")
    for i in range(4): e(f"v_mov_b32 v{D+i}, v{40+i}")
    e("s_nop 1")
    for i in range(4): e(f"v_permlane32_swap_b32 v{40+i}, v{D+i}")
    e("s_nop 1")
    for i in range(4): e(f"v_add_f32 v{40+i}, v{40+i}, v{D+i}")
    ln_stats(k, [40], [41], [56], [57], [60])
    e("s_lshl_b32 s31, s24, 8")
    e(f"s_add_u32 s31, s31, {STATS}")
    e("v_lshl_add_u32 v9, v10, 3, s31")
    e("ds_write_b64 v9, v[56:57]")
    e(f"v_mov_b32 v9, {MISC}")
    e("v_mov_b32 v62, 0")
    e("v_mov_b32 v63, s54")
    e("ds_write_b64 v9, v[62:63]")
    e("v_and_b32 v9, 15, v0")
    e("v_and_b32 v12, 16, v0")
    e("v_lshl_add_u32 v9, v12, 1, v9")
    e("s_lshl_b32 s31, s24, 8")
    e(f"s_add_u32 s31, s31, {CSL}")
    e("v_lshl_add_u32 v9, v9, 2, s31")
    e("ds_write_b32 v9, v42")
    e("ds_write_b32 v9, v43 offset:64")
    k.srd(40, 6, 7, 1024*3584*2)
    if 'w' not in X:
        e("s_lshl_b32 s31, s2, 2")
        e("s_add_u32 s31, s31, s24")
        e(f"s_mul_i32 s31, s31, {56*128}")
        e("v_lshlrev_b32 v9, 7, v0")
        e("buffer_load_dword v210, v9, s[40:43], s31 offen")
    e("s_waitcnt lgkmcnt(0)")
    e("s_barrier")
    VA = 16; VW2 = 18; VR = 22
    e(f"v_lshlrev_b32 v{VA}, 4, v0")
    e(f"v_add_u32 v{VA+1}, {112*1024-2048}, v{VA}")
    e("v_bfe_u32 v9, v0, 1, 3")
    e("v_and_b32 v10, 1, v0")
    e("v_lshlrev_b32 v10, 4, v10")
    e("v_lshl_add_u32 v10, v2, 11, v10")
    e("v_xor_b32 v9, v9, v2")
    e("v_xor_b32 v12, 4, v9")
    for pp in range(4):
        e(f"v_lshl_add_u32 v{VW2+pp}, v{9 if pp % 2 == 0 else 12}, 5, v10")
        if pp: e(f"v_add_u32 v{VW2+pp}, {pp*(8192-1024)}, v{VW2+pp}")
    e("v_bfe_u32 v9, v0, 1, 2")
    e("v_xor_b32 v9, v9, v2")
    e("v_and_b32 v10, 1, v0")
    e("v_lshlrev_b32 v10, 4, v10")
    e("v_lshl_add_u32 v10, v9, 5, v10")
    e("v_lshrrev_b32 v9, 3, v0")
    e(f"v_lshl_add_u32 v{VR}, v9, 12, v10")
    for pp in range(1, 4):
        e(f"v_add_u32 v{VR+pp}, {pp*(32768-1024)}, v{VR}")
    e("s_lshl_b32 s47, s13, 3")
    e("s_lshl_b32 s26, s24, 1")
    e("s_add_u32 s47, s47, s26")
    e("s_mul_i32 s47, s47, 112")
    e("s_mul_i32 s26, s15, 56")
    e("s_add_u32 s47, s47, s26")
    e("s_lshl_b32 s47, s47, 10")
    e(f"s_add_u32 s47, s47, 0x{HM:x}")
    e("s_mul_i32 s48, s15, 1792")
    e("s_lshl_b32 s27, s24, 4")
    e("s_add_u32 s48, s48, s27")
    e("s_lshl_b32 s48, s48, 11")
    e("s_lshl_b32 s27, s53, 8")
    e("s_add_u32 s48, s48, s27")
    e("s_mul_i32 s36, s53, 7")
    e("s_add_u32 s36, s36, 1")
    e("s_lshr_b32 s36, s36, 1")
    e("s_lshl_b32 s27, s24, 12")
    e(f"s_add_u32 s28, s27, {WOFF}")
    def st_of(n):
        e(f"s_add_u32 s37, s36, {n}")
        e(f"s_cmp_ge_u32 s37, {NST2}")
        e(f"s_cselect_b32 s38, {NST2}, 0")
        e("s_sub_u32 s37, s37, s38")
    e("s_barrier")
    k.stamp(3)
    for n in range(NB2):
        st_of(n)
        e("s_lshl_b32 s26, s37, 17")
        e("s_add_u32 s26, s26, s48")
        e(f"s_add_u32 m0, s28, {n*STG2}")
        e("s_nop 0")
        for pp in range(4):
            e(f"buffer_load_dwordx4 v{VW2+pp}, s[40:43], s26 offen offset:{1024*pp} lds")
    e("s_lshl_b32 s31, s53, 7")
    e("s_lshl_b32 s32, s24, 5")
    e("s_add_u32 s31, s31, s32")
    e("s_lshl_b32 s31, s31, 12")
    e("s_lshl_b32 s32, s13, 8")
    e("s_add_u32 s31, s31, s32")
    e("s_lshl_b32 s32, s15, 7")
    e("s_add_u32 s31, s31, s32")
    e(f"s_add_u32 s31, s31, 0x{HT:x}")
    e(f"s_add_u32 m0, s27, {RES}")
    e("s_nop 0")
    for pp in range(4):
        e(f"buffer_load_dwordx4 v{VR+pp}, s[20:23], s31 offen offset:{1024*pp} lds")
    def hpart2(n):
        st_of(n)
        e("s_lshl_b32 s25, s37, 11")
        e("s_add_u32 s25, s25, s47")
        e(f"s_add_u32 m0, s27, {n*STG2}")
        e("s_nop 0")
        for pp in range(4):
            e(f"buffer_load_dwordx4 v{VA+pp//2}, s[20:23], s25 offen offset:{1024*pp} lds")
    e(f"v_mov_b32 v33, {MISC}")
    k.label("waitH")
    e("s_sleep 1")
    e("ds_read_b32 v34, v33")
    e("s_waitcnt lgkmcnt(0)")
    e("v_cmp_gt_u32 vcc, 4, v34")
    e(f"s_cbranch_vccnz {k.L('waitH')}")
    k.stamp(4)
    for n in range(3): hpart2(n)
    e("s_waitcnt vmcnt(8)")
    e("s_barrier")
    e("s_mov_b32 s39, 0")
    k.label("hpoll")
    e("buffer_load_dwordx2 v[64:65], v11, s[20:23], s51 offen sc1")
    e("s_add_u32 s39, s39, 1")
    e("s_cmp_gt_u32 s39, 0x100000")
    e(f"s_cbranch_scc1 {k.L('hpolled')}")
    e("s_waitcnt vmcnt(0)")
    e("v_cmp_ne_u64 vcc, v[64:65], v[216:217]")
    e(f"s_cbranch_vccnz {k.L('hpoll')}")
    k.label("hpolled")
    hpart2(3)
    e("s_mov_b32 s29, 0")
    e(f"s_mov_b32 s35, {NB2}")
    def issue2():
        e("s_add_u32 s37, s35, s13")
        e(f"s_and_b32 s37, s37, {RW-1}")
        e(f"s_andn2_b32 s38, s35, {RW-1}")
        e("s_or_b32 s37, s37, s38")
        st_of("s37")
        e("s_lshl_b32 s25, s37, 11")
        e("s_add_u32 s25, s25, s47")
        e("s_lshl_b32 s26, s37, 17")
        e("s_add_u32 m0, s27, s29")
        e("s_add_u32 s26, s26, s48")
        for pp in range(4):
            e(f"buffer_load_dwordx4 v{VA+pp//2}, s[20:23], s25 offen offset:{1024*pp} lds")
        e("s_add_u32 m0, s28, s29")
        e(f"s_add_u32 s29, s29, {STG2}")
        for pp in range(4):
            e(f"buffer_load_dwordx4 v{VW2+pp}, s[40:43], s26 offen offset:{1024*pp} lds")
        e(f"s_and_b32 s29, s29, {NB2*STG2-1}")
        e("s_add_u32 s35, s35, 1")
    e("s_barrier")
    issue2()
    e("s_waitcnt vmcnt(12)")
    e("s_barrier")
    issue2()
    k.label("l2loop")
    e("s_waitcnt vmcnt(16)")
    e("s_barrier")
    issue2()
    e(f"s_cmp_lt_u32 s35, {NST2}")
    e(f"s_cbranch_scc1 {k.L('l2loop')}")
    for i in range(NST2-NB2, NST2):
        left = max(NST2 - 1 - (i + 1), 0)
        e(f"s_waitcnt vmcnt({left*8})")
        e("s_barrier")
    k.dump_stamps(1, 20, 10)
    e("s_endpgm")
```

```python
from asmlib import *
from layout import *
from k0 import ln_stats
import os
F = os.environ.get('K0X', 'wn')

KCP = 4160
REG = 4*KCP + 512 + 4096
REG0 = 0
SKL = 4*REG
TILE = 90112
STAT = 135168
FLAG = 153664
LDS_ALL = FLAG + 128
TAG = 204

def emit_front(k):
    e = k.e
    k.pfx = "f_"
    e("s_cmp_ge_u32 s2, 256")
    e(f"s_cbranch_scc1 {k.L('end')}")
    k.clear_stamps()
    e("s_load_dwordx8 s[4:11], s[0:1], 0")
    e("s_load_dwordx4 s[52:55], s[0:1], 80")
    e("s_load_dwordx4 s[12:15], s[0:1], 32")
    e("s_load_dwordx4 s[56:59], s[0:1], 56")
    e("v_lshrrev_b32 v1, 6, v0")
    e("s_lshr_b32 s40, s2, 3")
    e("v_readfirstlane_b32 s60, v1")
    e("s_and_b32 s41, s2, 7")
    e("s_lshl_b32 s61, s41, 7")
    e("s_lshl_b32 s62, s40, 2")
    e("s_add_u32 s61, s61, s62")
    e("s_and_b32 s62, s60, 3")
    e("s_add_u32 s61, s61, s62")
    e(f"s_mul_i32 s63, s62, {REG}")
    e(f"s_add_u32 s63, s63, {REG0}")
    e("s_lshl_b32 s39, s41, 12")
    e("v_mov_b32 v207, 0")
    e("s_getreg_b32 s38, hwreg(HW_REG_XCC_ID, 0, 4)")
    if 'f' in F: e("s_add_u32 s38, s38, s40")
    e("v_mov_b32 v206, s38")
    e("s_cmp_ge_u32 s60, 4")
    e(f"s_cbranch_scc1 {k.L('bwave')}")
    e("s_barrier")

    def spin(off, cond, lab, sleep=0):
        if off is not None: e(f"v_mov_b32 v33, {off}")
        k.label(lab)
        if sleep: e(f"s_sleep {sleep}")
        e("ds_read_b32 v34, v33")
        e("s_waitcnt lgkmcnt(0)")
        e(cond)
        e(f"s_cbranch_vccnz {k.L(lab)}")
    def setflag(off):
        e(f"v_mov_b32 v200, {off}")
        e("v_mov_b32 v201, 1")
        e("ds_write_b32 v200, v201")
    def publish(cnt_off, base, lab, r=200):
        e(f"v_mov_b32 v{r}, {FLAG + cnt_off}")
        e(f"v_mov_b32 v{r+1}, 1")
        e("s_mov_b64 exec, 1")
        e(f"ds_add_rtn_u32 v{r+2}, v{r}, v{r+1}")
        e("s_waitcnt lgkmcnt(0)")
        e(f"v_readfirstlane_b32 s3, v{r+2}")
        e("s_cmp_eq_u32 s3, 3")
        e(f"s_cbranch_scc0 {k.L(lab)}")
        e("s_lshl_b32 s3, s40, 7")
        e(f"v_mov_b32 v{r}, s3")
        e(f"s_add_u32 s3, s39, 0x{base:x}")
        e(f"buffer_store_dwordx3 {vr(TAG,3)}, v{r}, s[32:35], s3 offen")
        e(f"s_add_u32 s3, s3, 0x{FB_:x}")
        e(f"buffer_store_dwordx3 {vr(TAG,3)}, v{r}, s[32:35], s3 offen sc1")
        k.label(lab)
        e("s_mov_b64 exec, -1")
    def poll(base, lab, dual=True):
        e("v_and_b32 v121, 31, v0")
        e("v_lshlrev_b32 v121, 7, v121")
        e(f"s_add_u32 s28, s39, 0x{base:x}")
        e(f"s_add_u32 s29, s39, 0x{base + FB_:x}")
        e("s_mov_b32 s3, 0")
        e("v_mov_b32 v122, 0")
        k.label(lab)
        e("buffer_load_dwordx3 v[116:118], v121, s[32:35], s28 offen sc1")
        e("s_add_u32 s3, s3, 1")
        if dual:
            e("s_and_b32 s26, s3, 3")
            e(f"s_cbranch_scc1 {k.L(lab + '_a')}")
            e("buffer_load_dwordx3 v[122:124], v121, s[32:35], s29 offen sc1")
            k.label(lab + "_a")
        e("s_cmp_gt_u32 s3, 0x100000")
        e(f"s_cbranch_scc1 {k.L(lab + '_x')}")
        e("s_waitcnt vmcnt(0)")
        e(f"v_cmp_ne_u64 vcc, v[116:117], {vr(TAG,2)}")
        if dual:
            e(f"v_cmp_ne_u64 s[24:25], v[122:123], {vr(TAG,2)}")
            e("s_nop 0")
            e("v_cndmask_b32 v118, v118, v124, vcc")
            e("s_and_b64 vcc, vcc, s[24:25]")
        e(f"s_cbranch_vccnz {k.L(lab)}")
        k.label(lab + "_x")
        e("s_waitcnt vmcnt(0)")
    def tagload():
        e(f"buffer_load_dwordx2 {vr(TAG,2)}, v207, s[44:47], 0 offen sc1")
    def tagcheck(lab):
        e("s_mov_b32 s3, 0")
        k.label(lab)
        e(f"v_cmp_eq_u32 vcc, 0, v{TAG}")
        e(f"s_cbranch_vccz {k.L(lab + '_x')}")
        tagload()
        e("s_waitcnt vmcnt(0)")
        e("s_add_u32 s3, s3, 1")
        e("s_cmp_lt_u32 s3, 0x100000")
        e(f"s_cbranch_scc1 {k.L(lab)}")
        k.label(lab + "_x")
        e(f"v_readfirstlane_b32 s98, v{TAG}")
        e(f"v_readfirstlane_b32 s99, v{TAG+1}")
    def finish(lab, target):
        fin_count(lab)
        e(f"s_branch {target}")
    def fin_count(lab):
        e("s_mov_b64 exec, -1")
        e(f"v_mov_b32 v200, {FLAG+52}")
        e("v_mov_b32 v201, 1")
        e("s_waitcnt vmcnt(0)")
        e("s_mov_b64 exec, 1")
        e("ds_add_rtn_u32 v202, v200, v201")
        e("s_waitcnt lgkmcnt(0)")
        e("v_readfirstlane_b32 s3, v202")
        e("s_cmp_eq_u32 s3, 7")
        e(f"s_cbranch_scc0 {k.L(lab)}")
        e("s_lshl_b32 s3, s2, 7")
        e(f"s_add_u32 s3, s3, 0x{FHT:x}")
        e(f"buffer_store_dwordx2 {vr(TAG,2)}, v207, s[32:35], s3 offen sc1")
        k.label(lab)
        e("s_mov_b64 exec, -1")

    e("v_and_b32 v6, 15, v0")
    e("v_lshrrev_b32 v7, 4, v0")
    e("s_lshl_b32 s42, s40, 17")
    e("s_lshl_b32 s43, s41, 8")
    e("s_add_u32 s42, s42, s43")
    e("v_lshlrev_b32 v1, 13, v7")
    e("v_lshl_add_u32 v1, v6, 4, v1")
    e("v_add_u32 v1, s42, v1")
    e("v_add_u32 v2, 0x1000, v1")
    e("v_add_u32 v3, 0xffffe800, v1")
    e("v_add_u32 v4, 0xfffff000, v1")
    e("v_add_u32 v5, 0xfffff800, v1")
    e("s_lshl_b32 s48, s41, 10")
    e("v_and_b32 v9, 63, v0")
    e("v_lshlrev_b32 v9, 4, v9")
    e(f"s_mov_b32 m0, {SKL}")
    e("s_waitcnt lgkmcnt(0)")
    k.srd(20, 6, 7, 4*MB)
    k.srd(24, 8, 9, 4*MB)
    k.srd(28, 10, 11, 8192)
    KR = 12; VR = 40; XR = 56; SK = 72
    e("buffer_load_dwordx4 v9, s[28:31], s48 offen lds")
    for i in range(4):
        e(f"buffer_load_dwordx4 {vr(KR+12+4*i,4)}, v{1+i//2}, s[20:23], 0 offen offset:{2048*(i%2)} nt")
    for i in range(4):
        e(f"buffer_load_dwordx4 {vr(VR+4*i,4)}, v{1+i//2}, s[24:27], 0 offen offset:{2048*(i%2)} nt")
    e(f"buffer_load_dwordx4 {vr(KR,4)}, v3, s[20:23], 0 offen nt")
    e(f"buffer_load_dwordx4 {vr(KR+4,4)}, v4, s[20:23], 0 offen nt")
    e(f"buffer_load_dwordx4 {vr(KR+8,4)}, v5, s[20:23], 0 offen nt")
    k.srd(16, 4, 5, 4*MB)
    for i in range(4):
        e(f"buffer_load_dwordx4 {vr(XR+4*i,4)}, v{1+i//2}, s[16:19], 0 offen offset:{2048*(i%2)} nt")
    k.srd(44, 52, 53, 256)
    tagload()
    k.srd(32, 54, 55, WS_BYTES)
    e("s_and_b32 s3, s61, -2")
    e("s_lshl_b32 s3, s3, 1")
    e("s_load_dword s51, s[14:15], s3")
    e("v_and_b32 v10, 14, v6")
    e("v_xor_b32 v11, v10, v7")
    e("v_xor_b32 v10, 1, v11")
    e("v_lshlrev_b32 v8, 10, v6")
    e("v_lshl_add_u32 v10, v10, 3, v8")
    e("v_lshl_add_u32 v11, v11, 3, v8")
    e(f"v_add_u32 v10, {TILE}, v10")
    e(f"v_add_u32 v11, {TILE}, v11")
    e(f"v_lshlrev_b32 v8, 6, v6")
    e(f"v_add_u32 v8, {SKL}, v8")
    e("s_mov_b32 s48, 0x05040100")
    e("s_mov_b32 s49, 0x07060302")
    e("s_mov_b32 s50, 0xffff0000")
    T = 104; KU = 112
    ACC = [2, 4, 8, 6]
    k.stamp(1)
    e("s_waitcnt vmcnt(16)")
    for q in range(4):
        e(f"ds_read_b128 {vr(SK+4*q,4)}, v8 offset:{16*q}")
    e("s_waitcnt vmcnt(5) lgkmcnt(0)")
    setflag(FLAG + 24)
    k.stamp(2)
    k.label("kv")
    for jj in range(4):
        for c in range(2):
            d0 = SK + 4*jj + 2*c
            e(f"v_lshlrev_b32 v{T+0+c}, 16, v{d0}")
            e(f"v_and_b32 v{T+2+c}, s50, v{d0}")
            e(f"v_lshlrev_b32 v{T+4+c}, 16, v{d0+1}")
            e(f"v_and_b32 v{T+6+c}, s50, v{d0+1}")
        for r in range(7):
            e(f"v_lshlrev_b32 v{KU+2*r}, 16, v{KR+4*r+jj}")
            e(f"v_and_b32 v{KU+2*r+1}, s50, v{KR+4*r+jj}")
        for tap in (3, 2, 1, 0):
            for i in range(4):
                kk = KU + 2*(i+3-tap)
                if tap == 3:
                    e(f"v_pk_mul_f32 {vr(ACC[i],2)}, {vr(kk,2)}, {vr(T+2*tap,2)}")
                else:
                    e(f"v_pk_fma_f32 {vr(ACC[i],2)}, {vr(kk,2)}, {vr(T+2*tap,2)}, {vr(ACC[i],2)}")
        for i in range(4):
            e(f"v_lshlrev_b32 v{KU+2*i}, 16, v{VR+4*i+jj}")
            e(f"v_and_b32 v{KU+2*i+1}, s50, v{VR+4*i+jj}")
        for i in range(4):
            e(f"v_pk_mul_f32 {vr(ACC[i],2)}, {vr(ACC[i],2)}, {vr(KU+2*i,2)}")
        P = KU + 8
        for c in range(2):
            e(f"v_cvt_pk_bf16_f32 v{P+2*c}, v{ACC[3]+c}, v{ACC[2]+c}")
            e(f"v_cvt_pk_bf16_f32 v{P+2*c+1}, v{ACC[1]+c}, v{ACC[0]+c}")
        for c in range(2):
            e(f"ds_write_b64 v10, {vr(P+2*c,2)} offset:{128*(2*jj+c)}")
    e("s_waitcnt vmcnt(1)")
    for jj in range(4):
        for c in range(2):
            P = KR + 4*jj + 2*c
            sel = "s48" if c == 0 else "s49"
            e(f"v_perm_b32 v{P}, v{XR+4+jj}, v{XR+jj}, {sel}")
            e(f"v_perm_b32 v{P+1}, v{XR+12+jj}, v{XR+8+jj}, {sel}")
            e(f"ds_write_b64 v11, {vr(P,2)} offset:{16384+128*(2*jj+c)}")
    e("v_and_b32 v1, 7, v0")
    e("v_lshrrev_b32 v2, 7, v0")
    e("v_xor_b32 v2, v2, v1")
    e("v_lshrrev_b32 v3, 3, v0")
    e("v_lshlrev_b32 v4, 7, v3")
    e("v_lshl_add_u32 v4, v2, 4, v4")
    e(f"v_add_u32 v4, {TILE}, v4")
    e("v_xor_b32 v5, 32, v4")
    e("v_xor_b32 v6, 64, v4")
    e("v_xor_b32 v7, 96, v4")
    e("v_lshlrev_b32 v3, 12, v3")
    e("v_lshl_add_u32 v37, v1, 4, v3")
    e(f"v_mov_b32 v33, {FLAG+12}")
    e("v_mov_b32 v34, 1")
    e("s_waitcnt lgkmcnt(0)")
    e(f"s_cbranch_execz {k.L('kvback')}")
    e("s_mov_b64 exec, 1")
    e("ds_add_u32 v33, v34")
    e("s_mov_b64 exec, -1")
    e("s_lshl_b32 s4, s41, 19")
    e("s_lshl_b32 s5, s40, 7")
    e("s_add_u32 s4, s4, s5")
    for i in range(8):
        e(f"s_add_u32 s{16+i}, s4, 0x{(i%4)*131072 + (XT if i >= 4 else UT):x}")
    k.stamp(3)
    spin(None, "v_cmp_gt_u32 vcc, 4, v34", "waitT")
    R = 40
    for i in range(8):
        e(f"ds_read_b128 {vr(R+4*i,4)}, v{4+i%4} offset:{4096*(i%4) + (16384 if i >= 4 else 0)}")
    for i in range(4):
        e(f"s_waitcnt lgkmcnt({7-i})")
        e(f"buffer_store_dwordx4 {vr(R+4*i,4)}, v37, s[32:35], s{16+i} offen")
    e("v_and_b32 v0, 63, v0")
    e("v_and_b32 v5, 15, v0")
    e("v_lshrrev_b32 v6, 4, v0")
    e("s_lshl_b32 s12, s61, 12")
    e("v_lshlrev_b32 v7, 5, v5")
    e("v_lshl_add_u32 v7, v6, 3, v7")
    e(f"s_add_u32 s29, s12, 0x{HT:x}")
    e("v_sub_u32 v33, 7, v5")
    e("v_and_b32 v33, 3, v33")
    e(f"v_mul_u32_u24 v33, {KCP}, v33")
    e("v_lshrrev_b32 v34, 2, v5")
    e("v_lshl_add_u32 v33, v34, 3, v33")
    e("v_lshlrev_b32 v34, 4, v6")
    e("v_sub_u32 v33, v33, v34")
    e("s_add_u32 s30, s63, 24")
    e("v_add_u32 v1, s30, v33")
    e("v_lshlrev_b32 v33, 5, v5")
    e("v_add_u32 v33, v33, v34")
    e(f"s_add_u32 s30, s63, {4*KCP + 512 - 32*15}")
    e("v_add_u32 v3, s30, v33")
    AD = 192
    e("v_lshrrev_b32 v33, 3, v5")
    e("v_add_u32 v33, 2, v33")
    e("v_and_b32 v34, 7, v5")
    e("v_sub_u32 v34, 7, v34")
    e("v_cmp_eq_u32 vcc, v33, v6")
    e("v_lshrrev_b32 v35, 1, v34")
    e("v_and_b32 v34, 1, v34")
    e("v_cndmask_b32 v35, 9, v35, vcc")
    e("v_lshlrev_b32 v34, 4, v34")
    e("s_and_b32 s31, s61, 1")
    e("s_lshl_b32 s31, s31, 4")
    e("s_lshr_b32 s51, s51, s31")
    e("s_and_b32 s51, s51, 0xffff")
    e("v_mov_b32 v33, s51")
    e("v_lshlrev_b32 v34, v34, v33")
    for r in range(4):
        e(f"v_cmp_eq_u32 vcc, {r}, v35")
        e("s_nop 1")
        e(f"v_cndmask_b32 v{AD+r}, 0, v34, vcc")
    e("s_waitcnt vmcnt(0)")
    tagcheck("tagA")
    publish(0, FU, "pubU")
    k.stamp(4)
    for i in range(4, 8):
        e(f"buffer_store_dwordx4 {vr(R+4*i,4)}, v37, s[32:35], s{16+i} offen")
    FA = [64, 128]; FB = [96, 160]; AC = 8
    def reads(buf, ep):
        r = []
        for w in range(8):
            r.append(f"ds_read_b128 {vr(FB[buf]+4*w,4)}, v3 offset:{512*w + 32*(15-ep)}")
        for v in range(8):
            r.append(f"ds_read_b64 {vr(FA[buf]+4*v,2)}, v1 offset:{32*ep + 512*v}")
            r.append(f"ds_read_b64 {vr(FA[buf]+4*v+2,2)}, v1 offset:{32*ep + 512*v + 8}")
        return r
    def mfmas(buf):
        m = []
        for v in range(8):
            for w in range(8 - v):
                t = v + w
                m.append(f"v_mfma_f32_16x16x32_bf16 {vr(AC+4*t,4)}, {vr(FA[buf]+4*v,4)}, {vr(FB[buf]+4*w,4)}, {vr(AC+4*t,4)}")
        return m
    e("s_waitcnt vmcnt(0)")
    publish(4, FX, "pubX")
    e("s_lshl_b32 s3, s60, 2")
    e(f"s_add_u32 s3, s3, {FLAG+32}")
    e("v_mov_b32 v33, s3")
    spin(None, "v_cmp_eq_u32 vcc, 0, v34", "waitK")
    rd = reads(0, 1)
    for r in rd[8:]: e(r)
    spin(None, "v_cmp_gt_u32 vcc, 2, v34", "waitU")
    k.stamp(5)
    for r in rd[:8]: e(r)
    for t in range(8):
        e(f"s_waitcnt lgkmcnt({7-t})")
        e(f"v_mfma_f32_16x16x32_bf16 {vr(AC+4*t,4)}, {vr(AD,4)}, {vr(FB[0]+4*t,4)}, 0")
    e("s_mov_b32 s26, 0")
    k.label("loop")
    for buf, nxt in ((0, 3), (1, 5)):
        e("s_waitcnt lgkmcnt(0)")
        rd = reads(1 - buf, nxt)
        for i, m in enumerate(mfmas(buf)):
            e(m)
            if i < len(rd): e(rd[i])
    e("v_add_u32 v1, 128, v1")
    e("v_add_u32 v3, -128, v3")
    e("s_add_u32 s26, s26, 1")
    e("s_cmp_lt_u32 s26, 4")
    e(f"s_cbranch_scc1 {k.L('loop')}")
    e("v_lshlrev_b32 v1, 6, v5")
    e("v_lshl_add_u32 v1, v6, 4, v1")
    e(f"v_add_u32 v1, {STAT}, v1")
    e("s_lshl_b32 s26, s60, 12")
    e(f"s_add_u32 s26, s26, {TILE}")
    e("v_add_u32 v2, s26, v7")
    e(f"v_mov_b32 v3, {FLAG+16}")
    e("v_and_b32 v4, 1, v6")
    e("v_lshlrev_b32 v4, 9, v4")
    e("v_lshl_add_u32 v4, v5, 5, v4")
    e("v_lshrrev_b32 v200, 1, v6")
    e("v_lshl_add_u32 v4, v200, 4, v4")
    k.stamp(6)
    k.label("spoll")
    e("ds_read_b64 v[64:65], v3")
    e("s_waitcnt lgkmcnt(0)")
    e("v_and_b32 v64, v64, v65")
    e("v_cmp_eq_u32 vcc, 0, v64")
    e(f"s_cbranch_vccnz {k.L('spoll')}")
    MS = 64; RS = 96; XV = 176
    for t in range(8):
        e(f"ds_read_b64 {vr(XV+2*t,2)}, v2 offset:{512*t}")
    for t in range(3):
        e(f"ds_read_b128 {vr(MS+4*t,4)}, v1 offset:{1024*t}")
        e(f"ds_read_b128 {vr(RS+4*t,4)}, v1 offset:{1024*t+8192}")
    e("s_waitcnt lgkmcnt(6)")
    for t in range(8):
        if t + 3 < 8:
            e(f"ds_read_b128 {vr(MS+4*(t+3),4)}, v1 offset:{1024*(t+3)}")
            e(f"ds_read_b128 {vr(RS+4*(t+3),4)}, v1 offset:{1024*(t+3)+8192}")
        xu = 128 + 8*(t % 2); q = xu + 4
        e(f"v_lshlrev_b32 v{xu}, 16, v{XV+2*t}")
        e(f"v_and_b32 v{xu+1}, s50, v{XV+2*t}")
        e(f"v_lshlrev_b32 v{xu+2}, 16, v{XV+2*t+1}")
        e(f"v_and_b32 v{xu+3}, s50, v{XV+2*t+1}")
        e(f"s_waitcnt lgkmcnt({2*min(3, 7-t)})")
        for h in range(2):
            e(f"v_pk_add_f32 {vr(q+2*h,2)}, {vr(xu+2*h,2)}, {vr(MS+4*t+2*h,2)} neg_lo:[0,1] neg_hi:[0,1]")
        for h in range(2):
            e(f"v_pk_mul_f32 {vr(q+2*h,2)}, {vr(q+2*h,2)}, {vr(RS+4*t+2*h,2)}")
        for h in range(2):
            e(f"v_pk_fma_f32 {vr(q+2*h,2)}, {vr(q+2*h,2)}, {vr(AC+4*t+2*h,2)}, {vr(xu+2*h,2)}")
        e(f"v_cvt_pk_bf16_f32 v{XV+2*t}, v{q}, v{q+1}")
        e(f"v_cvt_pk_bf16_f32 v{XV+2*t+1}, v{q+2}, v{q+3}")
        if t % 2 == 1:
            e("s_nop 1")
            e(f"v_permlane16_swap_b32 v{XV+2*t-2}, v{XV+2*t}")
            e(f"v_permlane16_swap_b32 v{XV+2*t-1}, v{XV+2*t+1}")
            e(f"buffer_store_dwordx4 {vr(XV+2*t-2,4)}, v4, s[32:35], s29 offen offset:{512*(t-1)} sc1")
    e(f"v_mov_b32 v200, {FLAG+48}")
    e("v_mov_b32 v201, 1")
    e("s_waitcnt lgkmcnt(0)")
    e("s_mov_b64 exec, 1")
    e("ds_add_u32 v200, v201")
    e("s_mov_b64 exec, -1")
    if STAMP: k.dump_stamps(0, 32, 60, keep=True)
    finish("finA", "Lmlp_compute")

    k.label("bwave")
    k.role = "B"
    e("s_setprio 3")
    e("v_and_b32 v0, 63, v0")
    e("v_lshlrev_b32 v2, 4, v0")
    e("v_mov_b32 v36, 0"); e("v_mov_b32 v37, 0"); e("v_mov_b32 v38, 0"); e("v_mov_b32 v39, 0")
    e("v_min_u32 v33, 48, v2")
    e(f"v_add_u32 v33, {FLAG}, v33")
    e("ds_write_b128 v33, v[36:39]")
    e("s_memrealtime s[48:49]")
    e("s_waitcnt lgkmcnt(0)")
    e("s_barrier")
    k.srd(44, 52, 53, 256)
    e("s_or_b32 s48, s48, 1")
    e("s_add_u32 s3, s2, s62")
    e("s_cmp_eq_u32 s3, 0")
    e(f"s_cbranch_scc0 {k.L('notag')}")
    e("v_mov_b32 v40, s48"); e("v_mov_b32 v41, s49")
    e("s_mov_b64 exec, 1")
    e("buffer_store_dwordx2 v[40:41], v207, s[44:47], 0 offen sc1")
    e("s_mov_b64 exec, -1")
    k.label("notag")
    e("s_setprio 0")
    e("v_add_u32 v3, -8, v2")
    e("v_add_u32 v4, 1016, v2")
    e("s_lshl_b32 s42, s61, 12")
    e("s_add_u32 s20, s12, s42")
    e("s_addc_u32 s21, s13, 0")
    e("s_and_b32 s21, s21, 0xffff")
    e("s_mov_b32 s22, 4096")
    e("s_mov_b32 s23, 0x20000")
    k.srd(16, 4, 5, 4*MB)
    k.srd(32, 54, 55, WS_BYTES)
    e("s_lshl_b32 s43, s2, 14")
    e("s_lshl_b32 s3, s62, 12")
    e("s_add_u32 s43, s43, s3")
    e("v_bfe_u32 v32, v0, 1, 2")
    e(f"v_mul_u32_u24 v32, {KCP}, v32")
    e("v_and_b32 v33, 1, v0")
    e("v_lshl_add_u32 v32, v33, 4, v32")
    e(f"v_add_u32 v33, {4*KCP}, v2")
    e("v_cmp_gt_u32 vcc, 32, v0")
    e("s_nop 1")
    e("v_cndmask_b32 v32, v32, v33, vcc")
    e("v_add_u32 v32, s63, v32")
    e("ds_write_b128 v32, v[36:39]")
    if 'd' not in F:
        e("s_mov_b64 exec, 0")
        e(f"s_branch {k.L('kv')}")
    k.label("kvback")
    e("s_mov_b64 exec, -1")
    if 'e' not in F:
        spin(FLAG + 24, "v_cmp_eq_u32 vcc, 0, v34", "waitL", sleep=1)
    k.stamp(1)
    Y = 8; W = 24; ST = 88
    for i in range(4):
        e(f"buffer_load_dwordx4 {vr(Y+4*i,4)}, v2, s[20:23], 0 offen offset:{1024*i} nt")
        if i == 0: e(f"buffer_load_dwordx2 {vr(W,2)}, v3, s[20:23], 0 offen nt")
        else:      e(f"buffer_load_dwordx2 {vr(W+2*i,2)}, v4, s[20:23], 0 offen offset:{1024*(i-1)} nt")
    for i in range(4):
        e(f"buffer_load_dwordx4 {vr(ST+4*i,4)}, v2, s[16:19], s43 offen offset:{1024*i} nt")
    tagload()
    if 'c' not in F:
        e("s_and_b32 s3, s40, 7")
        e(f"s_cbranch_scc1 {k.L('nocode')}")
        e("s_getpc_b64 s[48:49]")
        k.label("pc")
        e("s_lshl_b32 s3, s62, 13")
        e("v_lshl_add_u32 v32, v0, 7, s3")
        e(f"v_min_u32 v32, Lcode_end-{k.L('pc')}-4, v32")
        e("global_load_dword v210, v32, s[48:49]")
        k.label("nocode")
    e("s_add_u32 s30, s63, 32")
    e("v_add_u32 v4, s30, v2")
    for i in range(4):
        e(f"s_waitcnt vmcnt({5 + 2*(3-i)})")
        y = Y + 4*i; w = W + 2*i
        X = 44 + 12*(i % 2); P1 = X + 4; P3 = X + 8
        e(f"ds_write_b128 v4, {vr(y,4)} offset:{1024*i}")
        e(f"v_mov_b32 v{X}, v{w+1}")
        for j in range(3): e(f"v_mov_b32 v{X+1+j}, v{y+j}")
        e(f"ds_write_b128 v4, {vr(X,4)} offset:{1024*i + 2*KCP}")
        e(f"v_alignbit_b32 v{P1}, v{y}, v{w+1}, 16")
        for j in range(3): e(f"v_alignbit_b32 v{P1+1+j}, v{y+1+j}, v{y+j}, 16")
        e(f"ds_write_b128 v4, {vr(P1,4)} offset:{1024*i + KCP}")
        e(f"v_alignbit_b32 v{P3}, v{w+1}, v{w}, 16")
        for j in range(3): e(f"v_mov_b32 v{P3+1+j}, v{P1+j}")
        e(f"ds_write_b128 v4, {vr(P3,4)} offset:{1024*i + 3*KCP}")
    e("s_lshl_b32 s3, s62, 2")
    e(f"s_add_u32 s3, s3, {FLAG+32}")
    e("v_mov_b32 v33, s3")
    e("v_mov_b32 v34, 1")
    e("s_waitcnt lgkmcnt(0)")
    e("ds_write_b32 v33, v34")
    k.stamp(2)
    S = [104, 105]; Q = [106, 107]
    for r in S + Q: e(f"v_mov_b32 v{r}, 0")
    e("s_mov_b32 s48, 0x3f803f80")
    e("s_waitcnt vmcnt(0)")
    for j in range(8):
        for r in range(2):
            e(f"v_dot2c_f32_bf16 v{S[r]}, s48, v{ST+8*r+j}")
            e(f"v_dot2c_f32_bf16 v{Q[r]}, v{ST+8*r+j}, v{ST+8*r+j}")
    e("s_nop 2")
    for mode in ("quad_perm:[1,0,3,2] row_mask:0xf", "quad_perm:[2,3,0,1] row_mask:0xf", "row_half_mirror row_mask:0xf",
                 "row_mirror row_mask:0xf", "row_bcast:15 row_mask:0xa", "row_bcast:31 row_mask:0xc"):
        for r in S + Q:
            e(f"v_add_f32_dpp v{r}, v{r}, v{r} {mode} bank_mask:0xf")
    ln_stats(k, S, Q, [108, 109], None, [112, 113], recip=False)
    tagcheck("tagB")
    e("s_mov_b32 s48, 0x07060302")
    e(f"v_perm_b32 v{TAG-2}, v112, v108, s48")
    e(f"v_perm_b32 v{TAG-1}, v113, v109, s48")
    e("s_lshl_b32 s48, s2, 6")
    e("s_lshl_b32 s49, s62, 4")
    e("s_add_u32 s48, s48, s49")
    e(f"s_add_u32 s48, s48, 0x{SG:x}")
    e("s_mov_b32 exec_lo, 0")
    e("s_mov_b32 exec_hi, 0x80000000")
    e(f"buffer_store_dwordx4 {vr(TAG-2,4)}, v207, s[32:35], s48 offen sc1")
    e("s_mov_b64 exec, -1")
    k.stamp(3)
    e("s_cmp_eq_u32 s62, 3")
    e(f"s_cbranch_scc0 {k.L('notB3')}")
    poll(FU, "pollU")
    e("v_cmp_ne_u32 vcc, s38, v118")
    e(f"s_cbranch_vccz {k.L('oneXCD')}")
    spin(FLAG + 4, "v_cmp_gt_u32 vcc, 4, v34", "waitX")
    e("buffer_wbl2 sc1")
    e("s_waitcnt vmcnt(0)")
    e("s_lshl_b32 s3, s40, 7")
    e("v_mov_b32 v200, s3")
    e(f"s_add_u32 s3, s39, 0x{F2:x}")
    e("s_mov_b64 exec, 1")
    e(f"buffer_store_dwordx3 {vr(TAG,3)}, v200, s[32:35], s3 offen sc1")
    e("s_mov_b64 exec, -1")
    poll(F2, "poll2", dual=False)
    e("buffer_inv sc1")
    e("s_waitcnt vmcnt(0)")
    k.label("oneXCD")
    k.stamp(1)
    k.note("s3", 16)
    setflag(FLAG + 8)
    k.label("notB3")
    spin(FLAG + 8, "v_cmp_eq_u32 vcc, 0, v34", "waitGo")
    e(f"s_add_u32 m0, s63, {4*KCP + 512}")
    e(f"s_add_u32 s14, s42, 0x{UT:x}")
    for p in range(4):
        e(f"buffer_load_dwordx4 v2, s[32:35], s14 offen offset:{1024*p} lds")
    e("s_lshl_b32 s3, s62, 2")
    e(f"s_add_u32 s3, s3, {FLAG+32}")
    e("v_mov_b32 v33, s3")
    e("v_mov_b32 v34, 2")
    e("s_waitcnt vmcnt(0)")
    e("ds_write_b32 v33, v34")
    k.stamp(2)
    e("s_cmp_eq_u32 s62, 1")
    e(f"s_cbranch_scc0 {k.L('notB1')}")
    e("s_lshl_b32 s3, s2, 7")
    e(f"s_add_u32 s3, s3, 0x{XID:x}")
    e("s_mov_b64 exec, 1")
    e(f"buffer_store_dwordx3 {vr(TAG,3)}, v207, s[32:35], s3 offen sc1")
    e("s_mov_b64 exec, -1")
    k.label("notB1")
    e("s_cmp_ge_u32 s62, 2")
    e(f"s_cbranch_scc1 {k.L('bfetch')}")
    fin_count("finB01")
    spin(FLAG + 56, "v_cmp_gt_u32 vcc, 2, v34", "waitG", sleep=2)
    k.stamp(4)
    for ch, ptr in (("n", 56), ("w", 58)):
        if ch in F: continue
        k.srd(16, ptr, ptr + 1, 1024*3584*2)
        e("s_lshl_b32 s30, s2, 1")
        e("s_add_u32 s30, s30, s62")
        e(f"s_mul_i32 s30, s30, {112*128}")
        e("v_lshlrev_b32 v6, 7, v0")
        e("v_add_u32 v7, 6144, v6")
        e("buffer_load_dword v210, v6, s[16:19], s30 offen")
        e("buffer_load_dword v211, v7, s[16:19], s30 offen")
    if STAMP: k.dump_stamps(0, 32, 60, keep=True)
    e("s_branch Lmlp_loader")
    k.label("bfetch")
    e("s_sub_u32 s11, s62, 2")
    e("s_lshl_b32 s12, s11, 13")
    poll(FX, "pollX")
    k.stamp(4)
    e("s_sub_u32 s13, s61, s62")
    e("s_lshl_b32 s13, s13, 12")
    e("s_add_u32 s13, s13, s12")
    for q in range(2):
        e(f"s_add_u32 m0, s12, {TILE + 4096*q}")
        e(f"s_add_u32 s14, s13, 0x{XT + 4096*q:x}")
        for p in range(4):
            e(f"buffer_load_dwordx4 v2, s[32:35], s14 offen offset:{1024*p} lds")
    e(f"s_add_u32 s13, s12, 0x{SG:x}")
    e("s_add_u32 s14, s13, 4096")
    e("s_mov_b32 s3, 0")
    for q in range(8):
        e(f"buffer_load_dwordx4 {vr(16+4*q,4)}, v2, s[32:35], s{13 + q//4} offen offset:{1024*(q%4)}")
    e(f"v_mov_b32 v200, {FLAG+56}")
    e("v_mov_b32 v201, 1")
    e("s_mov_b64 exec, 1")
    e("ds_add_u32 v200, v201")
    e("s_mov_b64 exec, -1")
    e(f"s_branch {k.L('pollS_c')}")
    k.label("pollS")
    for q in range(8):
        e(f"buffer_load_dwordx4 {vr(16+4*q,4)}, v2, s[32:35], s{13 + q//4} offen offset:{1024*(q%4)} sc1")
    k.label("pollS_c")
    e("s_add_u32 s3, s3, 1")
    e("s_cmp_gt_u32 s3, 0x40000")
    e(f"s_cbranch_scc1 {k.L('pollS_x')}")
    e("s_waitcnt vmcnt(0)")
    e("s_mov_b64 s[22:23], 0")
    for q in range(8):
        e(f"v_cmp_ne_u64 vcc, {vr(18+4*q,2)}, {vr(TAG,2)}")
        e("s_or_b64 s[22:23], s[22:23], vcc")
    e("s_cmp_lg_u64 s[22:23], 0")
    e(f"s_cbranch_scc0 {k.L('pollS_x')}")
    e("s_sleep 8")
    e(f"s_branch {k.L('pollS')}")
    k.label("pollS_x")
    e("s_waitcnt vmcnt(0)")
    k.stamp(6)
    e("s_lshl_b32 s13, s11, 12")
    e(f"s_add_u32 s13, s13, {STAT}")
    e("v_lshl_add_u32 v3, v0, 3, s13")
    e("s_mov_b32 s14, 0xffff0000")
    for q in range(8):
        g = 16 + 4*q
        e(f"v_and_b32 v{g+2}, s14, v{g}")
        e(f"v_and_b32 v{g+3}, s14, v{g+1}")
        e(f"v_lshlrev_b32 v{g}, 16, v{g}")
        e(f"v_lshlrev_b32 v{g+1}, 16, v{g+1}")
        e(f"v_rcp_f32 v{g+2}, v{g+2}")
        e(f"v_rcp_f32 v{g+3}, v{g+3}")
        e(f"ds_write_b64 v3, {vr(g,2)} offset:{512*q}")
        e(f"ds_write_b64 v3, {vr(g+2,2)} offset:{512*q+8192}")
    e("s_lshl_b32 s12, s11, 2")
    e(f"s_add_u32 s12, s12, {FLAG+16}")
    e("v_mov_b32 v4, s12")
    e("v_mov_b32 v5, 1")
    e("s_waitcnt vmcnt(0) lgkmcnt(0)")
    e("ds_write_b32 v4, v5")
    k.stamp(5)
    k.label("bdone")
    if STAMP: k.dump_stamps(0, 32, 60, keep=True)
    finish("finB", "Lmlp_loader")
    k.label("end")
    e("s_endpgm")
```

```python
from asmlib import *
from layout import *
from k0 import ln_stats
from kf import FLAG as FRONT_FLAG
import os
X = os.environ.get('MX', 'w')
FSLEEP = int(os.environ.get('FSLEEP', '4'))
NT2 = ' nt' if 'n' in X else ''
TR = 1 if 't' in X else 0
HSC = '' if 's' in X else ' sc1'
RW = int(os.environ.get('K4RW', '4'))

STG1 = 45056; WOFF = 16384; NB1 = 3
STG2 = 32768; NB2 = 4; RES = NB2 * STG2; NST2 = 28
STATS = 151552
CSL = STATS + 1024
MISC = CSL + 1024
NCS = 4

def weave(e, ms, fill, waits=None, mid=None, sched=None):
    fill = list(fill)
    for i, m in enumerate(ms):
        if mid and i == mid[0]:
            for t in mid[1]: e(t)
        if waits and i in waits: e(waits[i])
        e(m)
        for _ in range(sched[i] if i < len(sched) else 0):
            if fill: e(fill.pop(0))
    assert not fill, fill

def emit_mlp(k):
    e = k.e
    k.pfx = "m_"
    def entry():
        e("s_load_dwordx4 s[4:7], s[0:1], 56")
        e("s_load_dwordx2 s[8:9], s[0:1], 88")
        e("s_load_dwordx2 s[56:57], s[0:1], 72")
        e("s_mov_b32 s10, s60")
        e("s_mov_b32 s55, s38")
        e("s_and_b32 s11, s2, 7")
        e("s_lshr_b32 s12, s2, 3")
        e("s_lshr_b32 s13, s11, 1")
        e("s_lshl_b32 s13, s13, 2")
        e("s_and_b32 s14, s12, 3")
        e("s_add_u32 s13, s13, s14")
        e("s_and_b32 s15, s11, 1")
        e("s_lshr_b32 s53, s12, 2")
        e("s_lshl_b32 s14, s15, 3")
        e("s_add_u32 s14, s14, s53")
        e("v_lshrrev_b32 v2, 4, v0")
    k.lines.append("Lmlp_compute:")
    k.role = "A"
    k.stamp(0)
    entry()
    def trcommon():
        e("v_bfe_u32 v3, v0, 2, 2")
        e("v_and_b32 v4, 3, v0")
        e("v_and_b32 v5, 1, v2")
        e("v_lshl_or_b32 v6, v5, 2, v3")
        e("v_lshl_add_u32 v7, v2, 3, v3")
        e("v_lshlrev_b32 v8, 8, v7")
        e("v_lshl_add_u32 v8, v4, 3, v8")

    trcommon()
    ACC = 16; FW = [128, 172]; FH = [156, 200]
    AH = [1, 2, 3, 4]; AW = [9, 10, 11]
    e("s_and_b32 s24, s10, 1")
    e("s_lshr_b32 s25, s10, 1")
    e("v_mul_u32_u24 v12, 448, v7")
    e("v_lshl_add_u32 v12, v4, 3, v12")
    e(f"v_add_u32 v12, {WOFF + 2*STG1}, v12")
    e(f"v_add_u32 v8, {2*STG1}, v8")
    e("v_lshl_add_u32 v13, v5, 5, v12")
    e("v_xor_b32 v14, 1, v5")
    e("v_lshl_add_u32 v14, v14, 5, v12")
    e("s_lshl_b32 s26, s25, 8")
    e("v_add_u32 v9, s26, v13")
    e("v_add_u32 v10, s26, v14")
    e("s_cmp_eq_u32 s25, 0")
    e("s_cselect_b64 vcc, -1, 0")
    e("v_cndmask_b32 v11, v14, v13, vcc")
    e("v_add_u32 v11, 192, v11")
    e("v_mov_b32 v15, v2")
    e("s_lshl_b32 s26, s24, 2")
    for j in range(4):
        e(f"s_add_u32 s27, s26, {j}")
        e(f"v_xor_b32 v12, s27, v6")
        e(f"v_lshl_add_u32 v{AH[j]}, v12, 5, v8")
    for i in range(112):
        e(f"v_mov_b32 v{ACC+i}, 0")
    e("s_waitcnt lgkmcnt(0)")
    k.srd(20, 8, 9, WS_BYTES)
    k.srd(44, 56, 57, 4*MB)
    def reads1(st, step):
        r = []
        for j in range(4):
            for h in range(2):
                r.append(f"ds_read_b64_tr_b16 {vr(FH[st]+4*j+2*h,2)}, v{AH[j]} offset:{8192*step+1024*h}")
        for i in range(7):
            a, o = (AW[i % 2], 64*(i//2)) if i < 6 else (AW[2], 0)
            for h in range(2):
                r.append(f"ds_read_b64_tr_b16 {vr(FW[st]+4*i+2*h,2)}, v{a} offset:{14336*step+1792*h+o}")
        return r
    def mfmas1(st):
        return [f"v_mfma_f32_16x16x32_bf16 {vr(ACC+4*(4*i+j),4)}, {vr(FW[st]+4*i,4)}, {vr(FH[st]+4*j,4)}, {vr(ACC+4*(4*i+j),4)}"
                for i in range(7) for j in range(4)]
    e("s_mov_b32 s28, 0")
    e("s_mov_b32 s29, 2")
    e("s_barrier")
    k.stamp(1)
    for r in reads1(0, 0): e(r)
    k.label("c1loop")
    sal = ["s_add_u32 s29, s29, 1", f"s_mov_b32 s30, {STG1}", "s_cmp_eq_u32 s29, 3", f"s_cselect_b32 s30, {-2*STG1}, s30",
           "s_cselect_b32 s29, 0, s29", "s_add_u32 s28, s28, 1"]
    weave(e, mfmas1(0), reads1(1, 1) + sal, waits={4*i: f"s_waitcnt lgkmcnt({min(15, 12+2*i)})" for i in range(7)}, sched=[1]*28)
    weave(e, mfmas1(1), [f"v_add_u32 v{a}, s30, v{a}" for a in AH + AW] + reads1(0, 0) + ["s_cmp_lt_u32 s28, 16"],
          waits={0: "s_waitcnt lgkmcnt(12)"}, mid=(4, ["s_waitcnt lgkmcnt(0)", "s_barrier"]), sched=[0]*4 + [2]*6 + [1]*18)
    e(f"s_cbranch_scc1 {k.L('c1loop')}")
    k.stamp(2)
    e("v_and_b32 v1, 15, v0")
    e("s_lshl_b32 s26, s24, 9")
    e(f"s_add_u32 s26, s26, {STATS}")
    e("v_lshl_add_u32 v1, v1, 3, s26")
    e("s_lshl_b32 s26, s25, 9")
    e(f"s_add_u32 s26, s26, {CSL}")
    e("v_lshl_add_u32 v2, v15, 4, s26")
    e("s_mul_i32 s26, s25, 64")
    e(f"s_add_u32 s26, s26, {CSL+384}")
    e("v_lshl_add_u32 v3, v15, 4, s26")
    e(f"v_mov_b32 v6, {MISC}")
    e("s_waitcnt lgkmcnt(0)")
    MR = 128; C2 = 136; CSV = 144
    e("ds_read_b32 v7, v6 offset:4")
    for j in range(4):
        e(f"ds_read_b64 {vr(MR+2*j,2)}, v1 offset:{128*j}")
    for i in range(7):
        e(f"ds_read_b128 {vr(CSV+4*i,4)}, v{2 if i < 6 else 3} offset:{64*i if i < 6 else 0}")
    e("s_lshl_b32 s26, s25, 12")
    e("v_lshl_add_u32 v4, v0, 4, s26")
    e("s_lshl_b32 s26, s25, 3")
    e("s_add_u32 s26, s26, 3072")
    e("v_lshl_add_u32 v5, v0, 4, s26")
    e("s_lshl_b32 s26, s13, 3")
    e("s_lshl_b32 s27, s24, 2")
    e("s_add_u32 s26, s26, s27")
    e("s_mul_i32 s26, s26, 112")
    e("s_mul_i32 s27, s14, 7")
    e("s_add_u32 s26, s26, s27")
    e("s_lshl_b32 s26, s26, 10")
    e(f"s_add_u32 s32, s26, 0x{HM:x}")
    for j in range(1, 4):
        e(f"s_add_u32 s{32+j}, s32, {112*1024*j}")
    e("s_waitcnt lgkmcnt(0)")
    e("v_readfirstlane_b32 s54, v7")
    for j in range(4):
        e(f"v_mul_f32 v{C2+2*j}, 0xbfb8aa3b, v{MR+2*j+1}")
    e("s_and_b32 s26, s53, 1")
    e("s_lshl_b32 s27, s25, 2")
    e("s_sub_u32 s27, s27, s26")
    for n in range(4):
        if n < 3: e(f"s_add_u32 s60, s27, {n}")
        else:     e("s_sub_u32 s60, 3, s26")
        e("s_lshr_b32 s61, s60, 1")
        e("s_lshl_b32 s61, s61, 15")
        e("s_and_b32 s62, s60, 1")
        e("s_lshl_b32 s62, s62, 10")
        e("s_add_u32 s61, s61, s62")
        e("s_cmp_lt_u32 s60, 6")
        e(f"s_cselect_b32 s61, s61, {3*STG2}")
        e("s_lshl_b32 s62, s24, 13")
        e("s_add_u32 s61, s61, s62")
        if n == 3:
            e("s_lshl_b32 s62, s25, 3")
            e("s_add_u32 s61, s61, s62")
        e(f"v_lshl_add_u32 v{8+n}, v0, 4, s61")
    e("s_mov_b32 s58, 0xbfb8aa3b")
    e("s_mov_b32 s59, 0xbfb8aa3b")
    e("s_cmp_eq_u32 s54, 1")
    nsite = [0]
    def store2(ops):
        n = nsite[0]; nsite[0] += 1
        e(f"s_cbranch_scc1 {k.L(f'pl{n}')}")
        for o in ops: e(o + " sc1")
        e(f"s_branch {k.L(f'st{n}')}")
        k.label(f"pl{n}")
        for o in ops: e(o)
        k.label(f"st{n}")
    T = 172
    def elem8(tiles, out):
        P = T; Xr = T + 8
        def each(f):
            for n, (i, j) in enumerate(tiles):
                for h in range(2):
                    e(f(ACC + 4*(4*i+j) + 2*h, CSV + 4*i + 2*h, j, P + 4*n + 2*h, Xr + 4*n + 2*h))
        each(lambda a, c, j, p, x: f"v_pk_fma_f32 {vr(a,2)}, {vr(c,2)}, {vr(MR+2*j,2)}, {vr(a,2)} op_sel_hi:[1,0,1] neg_lo:[0,1,0] neg_hi:[0,1,0]")
        each(lambda a, c, j, p, x: f"v_pk_mul_f32 {vr(p,2)}, {vr(a,2)}, {vr(C2+2*j,2)} op_sel_hi:[1,0]")
        for q in range(8): e(f"v_exp_f32 v{Xr+q}, v{P+q}")
        each(lambda a, c, j, p, x: f"v_pk_fma_f32 {vr(x,2)}, {vr(x,2)}, s[58:59], s[58:59]")
        for q in range(8): e(f"v_rcp_f32 v{Xr+q}, v{Xr+q}")
        each(lambda a, c, j, p, x: f"v_pk_mul_f32 {vr(p,2)}, {vr(p,2)}, {vr(x,2)}")
        for q in range(4): e(f"v_cvt_pk_bf16_f32 v{out+q}, v{P+2*q}, v{P+2*q+1}")
    n = 0
    for j in range(4):
        for pr in range(3):
            o = 192 + 4*(n % 4); n += 1
            elem8([(2*pr, j), (2*pr+1, j)], o)
            e(f"ds_write_b128 v{8+pr}, {vr(o,4)} offset:{2048*j}")
            store2([f"buffer_store_dwordx4 {vr(o,4)}, v4, s[20:23], s{32+j} offen offset:{1024*pr}"])
        if j % 2 == 1:
            o = 192 + 4*(n % 4); n += 1
            elem8([(6, j-1), (6, j)], o)
            e(f"ds_write_b64 v11, {vr(o,2)} offset:{2048*(j-1)}")
            e(f"ds_write_b64 v11, {vr(o+2,2)} offset:{2048*j}")
            store2([f"buffer_store_dwordx2 {vr(o,2)}, v5, s[20:23], s{32+j-1} offen",
                    f"buffer_store_dwordx2 {vr(o+2,2)}, v5, s[20:23], s{32+j} offen"])
    k.stamp(3)

    NS = 4
    F0 = ACC + 64
    GW = [F0, F0 + 32]; GH = [F0 + 16, F0 + 48]
    BW = [8, 9, 10, 11]; BH = 12
    e("v_mov_b32 v2, v15")
    e("v_bfe_u32 v3, v0, 2, 2")
    e("v_and_b32 v4, 3, v0")
    e("v_lshl_add_u32 v7, v2, 2, v3")
    e("v_and_b32 v5, 7, v7")
    e("v_lshlrev_b32 v13, 8, v7")
    e("v_lshl_add_u32 v13, v4, 3, v13")
    e(f"v_add_u32 v13, {WOFF}, v13")
    e("s_lshl_b32 s26, s25, 2")
    for i in range(4):
        e(f"s_add_u32 s27, s26, {i}")
        e(f"v_xor_b32 v14, s27, v5")
        e(f"v_lshl_add_u32 v{BW[i]}, v14, 5, v13")
    e("s_lshl_b32 s26, s24, 12")
    e(f"v_lshl_add_u32 v{BH}, v0, 4, s26")
    for i in range(64):
        e(f"v_mov_b32 v{ACC+i}, 0")
    e("v_mov_b32 v13, 1")
    e("s_lshl_b32 s26, s2, 7")
    e(f"s_add_u32 s26, s26, 0x{HFL:x}")
    e("v_mov_b32 v14, 0")
    e("v_mov_b32 v216, s98")
    e("v_mov_b32 v217, s99")
    e("s_waitcnt vmcnt(0)")
    e("s_mov_b64 exec, 1")
    e("ds_add_rtn_u32 v1, v6, v13")
    e("s_waitcnt lgkmcnt(0)")
    e("v_readfirstlane_b32 s27, v1")
    e("s_cmp_eq_u32 s27, 3")
    e(f"s_cbranch_scc0 {k.L('noflag')}")
    e("s_cmp_eq_u32 s54, 1")
    store2(["buffer_store_dwordx2 v[216:217], v14, s[20:23], s26 offen"])
    k.label("noflag")
    e("s_mov_b64 exec, -1")
    e("v_bfe_u32 v6, v7, 1, 2")
    def hoff(j): return 2048*(j % 2) + 8192*(j // 2)
    def reads2(st, step):
        r = []
        for j in range(NS):
            r.append(f"ds_read_b128 {vr(GH[st]+4*j,4)}, v{BH} offset:{hoff(j)+1024*step}")
        for i in range(4):
            for h in range(2):
                r.append(f"ds_read_b64_tr_b16 {vr(GW[st]+4*i+2*h,2)}, v{BW[i]} offset:{8192*step+4096*h}")
        return r
    def mfmas2(st):
        return [f"v_mfma_f32_16x16x32_bf16 {vr(ACC+4*(NS*i+j),4)}, {vr(GW[st]+4*i,4)}, {vr(GH[st]+4*j,4)}, {vr(ACC+4*(NS*i+j),4)}"
                for i in range(4) for j in range(NS)]
    e("s_mov_b32 s28, 0")
    e("s_mov_b32 s29, 0")
    e("s_barrier")
    k.stamp(4)
    for r in reads2(0, 0): e(r)
    k.label("c2loop")
    sal = ["s_add_u32 s29, s29, 1", f"s_mov_b32 s30, {STG2}", f"s_cmp_eq_u32 s29, {NB2}", f"s_cselect_b32 s30, {-(NB2-1)*STG2}, s30",
           "s_cselect_b32 s29, 0, s29", "s_add_u32 s28, s28, 1"]
    weave(e, mfmas2(0), reads2(1, 1) + sal,
          waits={0: "s_waitcnt lgkmcnt(6)", 4: "s_waitcnt lgkmcnt(12)", 8: "s_waitcnt lgkmcnt(14)", 12: "s_waitcnt lgkmcnt(12)"},
          sched=[2]*6 + [1]*6)
    weave(e, mfmas2(1), [f"v_add_u32 v{a}, s30, v{a}" for a in [BH] + BW] + reads2(0, 0) + [f"s_cmp_lt_u32 s28, {NST2}"],
          waits={0: "s_waitcnt lgkmcnt(6)"}, mid=(4, ["s_waitcnt lgkmcnt(0)", "s_barrier"]), sched=[0]*4 + [2]*6 + [1]*6)
    e(f"s_cbranch_scc1 {k.L('c2loop')}")
    k.stamp(5)
    T = F0
    e("s_lshl_b32 s26, s2, 2")
    e("s_add_u32 s26, s26, s10")
    e("s_xor_b32 s27, s26, 4")
    e("s_lshl_b32 s31, s26, 12")
    e(f"s_add_u32 s31, s31, 0x{PART:x}")
    e("s_lshl_b32 s32, s27, 12")
    e(f"s_add_u32 s32, s32, 0x{PART:x}")
    e("s_lshl_b32 s35, s26, 7")
    e(f"s_add_u32 s35, s35, 0x{FLG:x}")
    e("s_lshl_b32 s36, s27, 7")
    e(f"s_add_u32 s36, s36, 0x{FLG:x}")
    e("v_lshlrev_b32 v14, 4, v0")
    e("s_cmp_eq_u32 s15, 0")
    e(f"s_cbranch_scc1 {k.L('send_hi')}")
    for own in (1, 0):
        if own == 0: k.label("send_hi")
        for i in range(4):
            a0 = ACC + 4*(NS*i + 2*(1-own)); o = T + 48 + 4*i
            for q in range(4):
                e(f"v_cvt_pk_bf16_f32 v{o+q}, v{a0+2*q}, v{a0+2*q+1}")
            e(f"buffer_store_dwordx4 {vr(o,4)}, v14, s[20:23], s31 offen offset:{1024*i} sc1")
        if own == 1:
            for i in range(4):
                for q in range(8):
                    e(f"v_mov_b32 v{ACC+4*NS*i+q}, v{ACC+4*NS*i+8+q}")
            e(f"s_branch {k.L('sent')}")
    k.label("sent")
    e("v_lshlrev_b32 v13, 7, v7")
    e("v_lshl_add_u32 v13, v4, 3, v13")
    e("s_lshl_b32 s26, s25, 13")
    e(f"s_add_u32 s26, s26, {RES}")
    e("v_add_u32 v13, s26, v13")
    e("s_lshl_b32 s26, s24, 1")
    for j in range(2):
        e(f"s_add_u32 s27, s26, {j}")
        e(f"v_xor_b32 v15, s27, v6")
        e(f"v_lshl_add_u32 v{8+j}, v15, 5, v13")
    e("s_waitcnt lgkmcnt(0)")
    HR = T
    for i in range(4):
        for j in range(2):
            e(f"ds_read_b64_tr_b16 {vr(HR+2*(2*i+j),2)}, v{8+j} offset:{2048*i}")
    e("v_and_b32 v10, 15, v0")
    e("v_lshrrev_b32 v11, 1, v2")
    e("v_and_b32 v12, 7, v10")
    e("v_xor_b32 v11, v11, v12")
    e("v_lshlrev_b32 v11, 4, v11")
    e("v_lshl_add_u32 v11, v10, 7, v11")
    e("v_and_b32 v12, 1, v2")
    e("v_lshl_add_u32 v11, v12, 3, v11")
    e("s_lshl_b32 s26, s10, 12")
    e("v_add_u32 v3, s26, v11")
    e("v_xor_b32 v4, 32, v3")
    e("v_xor_b32 v5, 64, v3")
    e("v_xor_b32 v6, 96, v3")
    e("v_lshrrev_b32 v10, 3, v0")
    e("v_and_b32 v11, 7, v0")
    e("v_xor_b32 v12, v11, v10")
    e("v_lshlrev_b32 v12, 4, v12")
    e("v_lshl_add_u32 v12, v10, 7, v12")
    e("v_add_u32 v7, s26, v12")
    e("v_lshlrev_b32 v10, 11, v10")
    e("v_lshl_add_u32 v10, v11, 4, v10")
    e("s_lshl_b32 s26, s13, 7")
    e("s_lshl_b32 s27, s24, 5")
    e("s_add_u32 s26, s26, s27")
    e("s_lshl_b32 s27, s15, 6")
    e("s_add_u32 s26, s26, s27")
    e("s_lshl_b32 s26, s26, 11")
    e("s_lshl_b32 s27, s53, 8")
    e("s_add_u32 s26, s26, s27")
    e("s_lshl_b32 s27, s25, 7")
    e("s_add_u32 s48, s26, s27")
    for q in range(1, 4):
        e(f"s_add_u32 s{48+q}, s48, {q*8*2048}")
    PR = T + 16; U = PR + 16
    e("s_mov_b32 s37, 0xffff0000")
    e("s_waitcnt lgkmcnt(0)")
    for i in range(4):
        for j in range(2):
            n = 2*i + j; a = ACC + 4*(NS*i + j); u = U + 4*(n % 2)
            e(f"v_lshlrev_b32 v{u}, 16, v{HR+2*n}")
            e(f"v_and_b32 v{u+1}, s37, v{HR+2*n}")
            e(f"v_lshlrev_b32 v{u+2}, 16, v{HR+2*n+1}")
            e(f"v_and_b32 v{u+3}, s37, v{HR+2*n+1}")
            for h in range(2):
                e(f"v_pk_add_f32 {vr(a+2*h,2)}, {vr(a+2*h,2)}, {vr(u+2*h,2)}")
    e("v_mov_b32 v15, 0")
    e("s_waitcnt vmcnt(0)")
    e("s_mov_b64 exec, 1")
    e("buffer_store_dwordx2 v[216:217], v15, s[20:23], s35 offen sc1")
    e("s_mov_b32 s38, 0")
    k.label("poll")
    e("buffer_load_dwordx2 v[218:219], v15, s[20:23], s36 offen sc1")
    e("s_add_u32 s38, s38, 1")
    e("s_cmp_gt_u32 s38, 0x200000")
    e(f"s_cbranch_scc1 {k.L('polled')}")
    e("s_waitcnt vmcnt(0)")
    e("v_cmp_ne_u64 vcc, v[218:219], v[216:217]")
    e(f"s_cbranch_vccnz {k.L('poll')}")
    k.label("polled")
    k.stamp(6)
    e("s_mov_b64 exec, -1")
    for i in range(4):
        e(f"buffer_load_dwordx4 {vr(PR+4*i,4)}, v14, s[20:23], s32 offen offset:{1024*i} sc1")
    for i in range(4):
        for j in range(2):
            n = 2*i + j; a = ACC + 4*(NS*i + j); u = U + 4*(n % 2)
            if j == 0: e(f"s_waitcnt vmcnt({3-i})")
            e(f"v_lshlrev_b32 v{u}, 16, v{PR+2*n}")
            e(f"v_and_b32 v{u+1}, s37, v{PR+2*n}")
            e(f"v_lshlrev_b32 v{u+2}, 16, v{PR+2*n+1}")
            e(f"v_and_b32 v{u+3}, s37, v{PR+2*n+1}")
            for h in range(2):
                e(f"v_pk_add_f32 {vr(a+2*h,2)}, {vr(a+2*h,2)}, {vr(u+2*h,2)}")
            e(f"v_cvt_pk_bf16_f32 v{HR+2*n}, v{a}, v{a+1}")
            e(f"v_cvt_pk_bf16_f32 v{HR+2*n+1}, v{a+2}, v{a+3}")
            e(f"ds_write_b64 v{3+i}, {vr(HR+2*n,2)} offset:{2048*j}")
    e("s_waitcnt lgkmcnt(0)")
    for q in range(4):
        e(f"ds_read_b128 {vr(PR+4*q,4)}, v7 offset:{1024*q}")
    for q in range(4):
        e(f"s_waitcnt lgkmcnt({3-q})")
        e(f"buffer_store_dwordx4 {vr(PR+4*q,4)}, v10, s[44:47], s{48+q} offen")
    if STAMP:
        e("s_waitcnt vmcnt(0)")
        k.dump_stamps(1, 20, 10)
    k.dbg_out()
    e("s_endpgm")

    k.lines.append("Lmlp_loader:")
    k.role = "B"
    k.stamp(0)
    entry()
    e("v_mov_b32 v216, s98")
    e("v_mov_b32 v217, s99")
    e("s_sub_u32 s24, s10, 4")
    VH = 16; VW = 20
    e("s_lshl_b32 s47, s24, 16")
    e("s_lshl_b32 s26, s13, 8")
    e("s_add_u32 s47, s47, s26")
    e(f"s_add_u32 s47, s47, 0x{HT:x}")
    e(f"s_mul_i32 s48, s24, {16*7168}")
    e("s_mul_i32 s27, s14, 448")
    e("s_add_u32 s48, s48, s27")
    e("s_add_u32 s36, s14, s13")
    e("s_and_b32 s36, s36, 15")
    e("s_mov_b32 s49, 0")
    e("s_lshl_b32 s25, s36, 18")
    e("s_add_u32 s25, s25, s47")
    e(f"s_mul_i32 s26, s36, {64*7168}")
    e("s_add_u32 s26, s26, s48")
    e("s_lshl_b32 s27, s24, 12")
    e("s_mul_i32 s28, s24, 7168")
    e(f"s_add_u32 s28, s28, {WOFF}")
    e("v_bfe_u32 v9, v0, 1, 3")
    e("v_and_b32 v10, 1, v0")
    e("v_lshlrev_b32 v10, 4, v10")
    e("v_lshl_add_u32 v10, v2, 12, v10")
    e("v_xor_b32 v9, v9, v2")
    for pp in range(4):
        if pp == 2: e("v_xor_b32 v9, 4, v9")
        e(f"v_lshl_add_u32 v{VH+pp}, v9, 5, v10")
        if pp: e(f"v_add_u32 v{VH+pp}, {pp*(16384-1024)}, v{VH+pp}")
    def wpat(q):
        e(f"v_add_u32 v9, {64*q}, v0")
        e("v_mul_u32_u24 v10, 9363, v9")
        e("v_lshrrev_b32 v10, 18, v10")
        e("v_mul_u32_u24 v11, 28, v10")
        e("v_sub_u32 v11, v9, v11")
        e("v_lshrrev_b32 v12, 2, v10")
        e("v_and_b32 v12, 2, v12")
        e("v_xor_b32 v11, v11, v12")
        e("v_mul_u32_u24 v12, 7168, v10")
        e("v_lshl_add_u32 v12, v11, 4, v12")
        e(f"v_add_u32 v{VW+q}, {-1024*(q%4)}, v12")
    for q in range(7): wpat(q)
    e("s_waitcnt lgkmcnt(0)")
    k.srd(20, 8, 9, WS_BYTES)
    k.srd(16, 4, 5, 1024*3584*2)
    def advance():
        e("s_add_u32 s49, s49, 1")
        e("s_add_u32 s37, s36, 1")
        e("s_and_b32 s37, s37, 3")
        e("s_and_b32 s36, s36, 12")
        e("s_or_b32 s36, s36, s37")
        e("s_and_b32 s37, s49, 3")
        e("s_cmp_eq_u32 s37, 0")
        e("s_cselect_b32 s37, 4, 0")
        e("s_add_u32 s36, s36, s37")
        e("s_and_b32 s36, s36, 15")
        e("s_lshl_b32 s25, s36, 18")
        e("s_add_u32 s25, s25, s47")
        e(f"s_mul_i32 s26, s36, {64*7168}")
        e("s_add_u32 s26, s26, s48")
    def hpart(so, m0):
        e(m0); e("s_nop 0")
        for pp in range(4):
            e(f"buffer_load_dwordx4 v{VH+pp}, s[20:23], {so} offen offset:{1024*pp}{HSC} lds")
    def wpart(buf):
        e(f"s_add_u32 m0, s28, {buf}"); e("s_nop 0")
        for q in range(7):
            if q == 4: e(f"s_add_u32 m0, s28, {buf+4096}"); e("s_nop 0")
            e(f"buffer_load_dwordx4 v{VW+q}, s[16:19], s26 offen offset:{1024*(q%4)} lds")
    e("s_cmp_ge_u32 s24, 2")
    e(f"s_cbranch_scc1 {k.L('now0')}")
    wpart(2*STG1)
    e(f"s_add_u32 s26, s26, {32*7168}")
    wpart(2*STG1 + 2*7168)
    k.label("now0")
    e("s_mov_b32 s50, s25")
    e("s_mov_b32 s62, s36")
    advance()
    e("v_lshrrev_b32 v9, 3, v0")
    e("v_lshlrev_b32 v9, 7, v9")
    e("v_bfe_u32 v10, v0, 2, 1")
    e("v_lshl_add_u32 v9, v10, 14, v9")
    e("v_and_b32 v10, 3, v0")
    e("v_lshl_add_u32 v38, v10, 10, v9")
    e(f"s_add_u32 s52, s27, 0x{FHT:x}")
    e("s_mov_b64 s[58:59], 0")
    e("s_mov_b32 s39, 0")
    e(f"v_mov_b32 v35, {FRONT_FLAG+52}")
    k.label("waitF")
    e("s_sleep 1")
    e("ds_read_b32 v34, v35")
    e("s_waitcnt lgkmcnt(0)")
    e("v_cmp_gt_u32 vcc, 8, v34")
    e(f"s_cbranch_vccnz {k.L('waitF')}")
    nneed = [0]
    def need(stage):
        n = nneed[0]; nneed[0] += 1
        k.label(f"need{n}")
        e(f"s_lshl_b32 s60, {stage}, 2")
        e("s_lshr_b64 s[60:61], s[58:59], s60")
        e("s_and_b32 s60, s60, 15")
        e("s_cmp_eq_u32 s60, 15")
        e(f"s_cbranch_scc1 {k.L(f'have{n}')}")
        e("buffer_load_dwordx2 v[100:101], v38, s[20:23], s52 offen sc1")
        e("s_add_u32 s39, s39, 1")
        e("s_cmp_gt_u32 s39, 0x100000")
        e(f"s_cbranch_scc1 {k.L(f'have{n}')}")
        e("s_waitcnt vmcnt(0)")
        e("v_cmp_eq_u64 s[58:59], v[100:101], v[216:217]")
        e(f"s_branch {k.L(f'need{n}')}")
        k.label(f"have{n}")
    need("s62")
    k.stamp(5)
    k.note("s39", 17)
    hpart("s50", f"s_add_u32 m0, s27, {2*STG1}")
    wpart(0)
    e("s_waitcnt vmcnt(7)")
    e("s_barrier")
    need("s36")
    hpart("s25", "s_mov_b32 m0, s27")
    advance()
    e(f"s_mov_b32 s29, {STG1}")
    k.srd(40, 6, 7, 1024*3584*2)
    e("s_lshl_b32 s63, s2, 2")
    e("s_add_u32 s63, s63, s24")
    e(f"s_mul_i32 s63, s63, {56*128}")
    e("v_lshlrev_b32 v39, 7, v0")
    def issue1():
        need("s36")
        e("s_add_u32 m0, s27, s29")
        e("s_add_u32 s30, s28, s29")
        for pp in range(4):
            e(f"buffer_load_dwordx4 v{VH+pp}, s[20:23], s25 offen offset:{1024*pp}{HSC} lds")
        e("s_mov_b32 m0, s30")
        e("s_nop 0")
        for q in range(4):
            e(f"buffer_load_dwordx4 v{VW+q}, s[16:19], s26 offen offset:{1024*q} lds")
        e("s_add_u32 m0, s30, 4096")
        e(f"s_add_u32 s29, s29, {STG1}")
        for q in range(4, 7):
            e(f"buffer_load_dwordx4 v{VW+q}, s[16:19], s26 offen offset:{1024*(q-4)} lds")
        if TR:
            e("s_mov_b64 exec, 0x1f")
            e("buffer_load_dword v210, v39, s[40:43], s63 offen")
            e("s_mov_b64 exec, -1")
            e("s_add_u32 s63, s63, 640")
        e(f"s_cmp_eq_u32 s29, {NB1*STG1}")
        e("s_cselect_b32 s29, 0, s29")
        advance()
    k.stamp(1)
    issue1()
    trcommon()
    e("s_lshl_b32 s31, s24, 1")
    e("v_xor_b32 v12, s31, v6")
    e("v_lshl_add_u32 v36, v12, 5, v8")
    e(f"v_add_u32 v36, {2*STG1}, v36")
    e("v_xor_b32 v37, 32, v36")
    S = [40, 42]; Q = [44, 46]
    for r in range(40, 48): e(f"v_mov_b32 v{r}, 0")
    e("s_mov_b32 s33, 0xffff0000")
    D = 48; U = 64
    for t in range(2):
        for st in range(2):
            for h in range(2):
                e(f"ds_read_b64_tr_b16 {vr(D+8*t+4*st+2*h,2)}, v{36+t} offset:{8192*st+1024*h}")
    e("s_waitcnt lgkmcnt(0)")
    for j in range(8):
        for t in range(2):
            u = U + 2*t
            e(f"v_lshlrev_b32 v{u}, 16, v{D+8*t+j}")
            e(f"v_and_b32 v{u+1}, s33, v{D+8*t+j}")
        for t in range(2):
            u = U + 2*t
            for q in range(2):
                e(f"v_add_f32 v{S[t]+q}, v{S[t]+q}, v{u+q}")
                e(f"v_fmac_f32 v{Q[t]+q}, v{u+q}, v{u+q}")
    def greduce(regs):
        for op in ("v_permlane32_swap_b32", "v_permlane16_swap_b32"):
            for i, r in enumerate(regs): e(f"v_mov_b32 v{D+i}, v{r}")
            e("s_nop 1")
            for i, r in enumerate(regs): e(f"{op} v{r}, v{D+i}")
            e("s_nop 1")
            for i, r in enumerate(regs): e(f"v_add_f32 v{r}, v{r}, v{D+i}")
    for r in S + Q: e(f"v_add_f32 v{r}, v{r}, v{r+1}")
    greduce(S + Q)
    e("v_cmp_gt_u32 vcc, 16, v0")
    e("s_lshl_b32 s31, s13, 15")
    e("s_lshl_b32 s32, s24, 9")
    e("s_add_u32 s31, s31, s32")
    e(f"s_add_u32 s31, s31, 0x{SP2:x}")
    e("s_lshl_b32 s32, s14, 11")
    e("s_add_u32 s32, s32, s31")
    e(f"v_cndmask_b32 v214, v{S[1]}, v{S[0]}, vcc")
    e(f"v_cndmask_b32 v215, v{Q[1]}, v{Q[0]}, vcc")
    e("v_lshlrev_b32 v9, 4, v0")
    e("s_mov_b64 exec, 0xffffffff")
    e("buffer_store_dwordx4 v[214:217], v9, s[20:23], s32 offen sc1")
    e("s_mov_b64 exec, -1")
    e("v_mul_u32_u24 v12, 448, v7")
    e("v_lshl_add_u32 v12, v4, 3, v12")
    e("s_lshl_b32 s32, s24, 7")
    e(f"s_add_u32 s32, s32, {WOFF + 2*STG1}")
    e("v_add_u32 v12, s32, v12")
    e("v_lshl_add_u32 v13, v5, 5, v12")
    e("v_xor_b32 v14, 1, v5")
    e("v_lshl_add_u32 v14, v14, 5, v12")
    CW = 68
    for t in range(4):
        for st in range(2):
            for h in range(2):
                e(f"ds_read_b64_tr_b16 {vr(CW+8*t+4*st+2*h,2)}, v{13 + t%2} offset:{14336*st+1792*h+64*(t//2)}")
        if t == 2: e("s_waitcnt lgkmcnt(8)")
    for r in range(40, 48): e(f"v_mov_b32 v{r}, 0")
    e("s_waitcnt lgkmcnt(0)")
    for j in range(8):
        for t in range(4):
            e(f"v_lshlrev_b32 v{U}, 16, v{CW+8*t+j}")
            e(f"v_and_b32 v{U+1}, s33, v{CW+8*t+j}")
            e(f"v_add_f32 v{40+t}, v{40+t}, v{U}")
            e(f"v_add_f32 v{44+t}, v{44+t}, v{U+1}")
    for t in range(4): e(f"v_add_f32 v{40+t}, v{40+t}, v{44+t}")
    greduce([40, 41, 42, 43])
    e("v_cmp_gt_u32 vcc, 16, v0")
    e("s_lshl_b32 s32, s14, 4")
    e("s_add_u32 s32, s32, s13")
    e("s_lshl_b32 s32, s32, 11")
    e("s_lshl_b32 s34, s24, 9")
    e("s_add_u32 s32, s32, s34")
    e(f"s_add_u32 s32, s32, 0x{CP:x}")
    e("v_cndmask_b32 v214, v42, v40, vcc")
    e("v_cndmask_b32 v215, v43, v41, vcc")
    e("s_mov_b64 exec, 0xffffffff")
    e("buffer_store_dwordx4 v[214:217], v9, s[20:23], s32 offen sc1")
    e("s_mov_b64 exec, -1")
    e("s_mov_b32 s35, 0")
    k.label("l1loop")
    e("s_cmp_eq_u32 s35, 0")
    e(f"s_cbranch_scc1 {k.L('lw20')}")
    e("s_cmp_eq_u32 s35, 1")
    e(f"s_cbranch_scc1 {k.L('lw12')}")
    e(f"s_waitcnt vmcnt({11 + 2*TR})")
    k.label("lw12")
    e(f"s_waitcnt vmcnt({13 + 2*TR})")
    k.label("lw20")
    e(f"s_waitcnt vmcnt({13 + TR})")
    e("s_barrier")
    e("s_cmp_ge_u32 s35, 13")
    e(f"s_cbranch_scc1 {k.L('l1done')}")
    issue1()
    e("s_add_u32 s35, s35, 1")
    e(f"s_branch {k.L('l1loop')}")
    k.label("l1done")
    k.stamp(2)
    e("s_lshl_b32 s33, s14, 15")
    e("s_lshl_b32 s34, s24, 9")
    e("s_add_u32 s33, s33, s34")
    e(f"s_add_u32 s33, s33, 0x{CP:x}")
    e("v_and_b32 v10, 31, v0")
    e("v_lshlrev_b32 v9, 4, v10")
    e("v_lshrrev_b32 v11, 5, v0")
    e("v_lshl_add_u32 v9, v11, 11, v9")
    e("v_and_b32 v11, 7, v0")
    e("v_lshlrev_b32 v11, 12, v11")
    e("s_and_b32 s34, s2, 31")
    e("s_lshl_b32 s34, s34, 7")
    e(f"s_add_u32 s50, s34, 0x{XID:x}")
    e(f"s_add_u32 s51, s34, 0x{HFL:x}")
    e("s_mov_b32 s39, 0")
    G = 68
    k.label("spoll")
    e("s_mov_b32 s32, s31")
    for q in range(8):
        e(f"buffer_load_dwordx4 {vr(G+4*q,4)}, v9, s[20:23], s32 offen sc1")
        e("s_add_u32 s32, s32, 4096")
    e("s_mov_b32 s32, s33")
    for q in range(8):
        e(f"buffer_load_dwordx4 {vr(G+32+4*q,4)}, v9, s[20:23], s32 offen sc1")
        e("s_add_u32 s32, s32, 4096")
    e("buffer_load_dwordx3 v[64:66], v11, s[20:23], s50 offen sc1")
    e("s_add_u32 s39, s39, 1")
    e("s_cmp_gt_u32 s39, 0x100000")
    e(f"s_cbranch_scc1 {k.L('spolled')}")
    e("s_waitcnt vmcnt(0)")
    e("v_cmp_ne_u64 s[44:45], v[64:65], v[216:217]")
    for q in range(16):
        e(f"v_cmp_ne_u64 vcc, {vr(G+4*q+2,2)}, v[216:217]")
        e("s_or_b64 s[44:45], s[44:45], vcc")
    e("s_cmp_lg_u64 s[44:45], 0")
    e(f"s_cbranch_scc1 {k.L('spoll')}")
    k.label("spolled")
    e("s_waitcnt vmcnt(0)")
    e("v_cmp_ne_u32 vcc, s55, v66")
    for q in range(1, 8):
        for j in range(2):
            e(f"v_add_f32 v{40+j}, v{G+j if q == 1 else 40+j}, v{G+4*q+j}")
            e(f"v_add_f32 v{42+j}, v{G+32+j if q == 1 else 42+j}, v{G+32+4*q+j}")
    e("s_cmp_eq_u64 vcc, 0")
    e("s_cselect_b32 s54, 1, 2")
    if 'f' in X: e("s_mov_b32 s54, 2")
    for i in range(4): e(f"v_mov_b32 v{D+i}, v{40+i}")
    e("s_nop 1")
    for i in range(4): e(f"v_permlane32_swap_b32 v{40+i}, v{D+i}")
    e("s_nop 1")
    for i in range(4): e(f"v_add_f32 v{40+i}, v{40+i}, v{D+i}")
    ln_stats(k, [40], [41], [56], [57], [60])
    e("s_lshl_b32 s31, s24, 8")
    e(f"s_add_u32 s31, s31, {STATS}")
    e("v_lshl_add_u32 v9, v10, 3, s31")
    e("ds_write_b64 v9, v[56:57]")
    e(f"v_mov_b32 v9, {MISC}")
    e("v_mov_b32 v62, 0")
    e("v_mov_b32 v63, s54")
    e("ds_write_b64 v9, v[62:63]")
    e("v_and_b32 v9, 15, v0")
    e("v_and_b32 v12, 16, v0")
    e("v_lshl_add_u32 v9, v12, 1, v9")
    e("s_lshl_b32 s31, s24, 8")
    e(f"s_add_u32 s31, s31, {CSL}")
    e("v_lshl_add_u32 v9, v9, 2, s31")
    e("ds_write_b32 v9, v42")
    e("ds_write_b32 v9, v43 offset:64")
    if 'w' not in X:
        e("s_lshl_b32 s31, s2, 2")
        e("s_add_u32 s31, s31, s24")
        e(f"s_mul_i32 s31, s31, {56*128}")
        e("v_lshlrev_b32 v9, 7, v0")
        e("buffer_load_dword v210, v9, s[40:43], s31 offen")
    e("s_waitcnt lgkmcnt(0)")
    e("s_barrier")
    VA = 16; VW2 = 18; VR = 22
    e(f"v_lshlrev_b32 v{VA}, 4, v0")
    e(f"v_add_u32 v{VA+1}, {112*1024-2048}, v{VA}")
    e("v_bfe_u32 v9, v0, 1, 3")
    e("v_and_b32 v10, 1, v0")
    e("v_lshlrev_b32 v10, 4, v10")
    e("v_lshl_add_u32 v10, v2, 11, v10")
    e("v_xor_b32 v9, v9, v2")
    e("v_xor_b32 v12, 4, v9")
    for pp in range(4):
        e(f"v_lshl_add_u32 v{VW2+pp}, v{9 if pp % 2 == 0 else 12}, 5, v10")
        if pp: e(f"v_add_u32 v{VW2+pp}, {pp*(8192-1024)}, v{VW2+pp}")
    e("v_bfe_u32 v9, v0, 1, 2")
    e("v_xor_b32 v9, v9, v2")
    e("v_and_b32 v10, 1, v0")
    e("v_lshlrev_b32 v10, 4, v10")
    e("v_lshl_add_u32 v10, v9, 5, v10")
    e("v_lshrrev_b32 v9, 3, v0")
    e(f"v_lshl_add_u32 v{VR}, v9, 12, v10")
    for pp in range(1, 4):
        e(f"v_add_u32 v{VR+pp}, {pp*(32768-1024)}, v{VR}")
    e("s_lshl_b32 s47, s13, 3")
    e("s_lshl_b32 s26, s24, 1")
    e("s_add_u32 s47, s47, s26")
    e("s_mul_i32 s47, s47, 112")
    e("s_mul_i32 s26, s15, 56")
    e("s_add_u32 s47, s47, s26")
    e("s_lshl_b32 s47, s47, 10")
    e(f"s_add_u32 s47, s47, 0x{HM:x}")
    e("s_mul_i32 s48, s15, 1792")
    e("s_lshl_b32 s27, s24, 4")
    e("s_add_u32 s48, s48, s27")
    e("s_lshl_b32 s48, s48, 11")
    e("s_lshl_b32 s27, s53, 8")
    e("s_add_u32 s48, s48, s27")
    e("s_mul_i32 s36, s53, 7")
    e("s_add_u32 s36, s36, 1")
    e("s_lshr_b32 s36, s36, 1")
    e("s_lshl_b32 s27, s24, 12")
    e(f"s_add_u32 s28, s27, {WOFF}")
    e(f"s_min_u32 s52, s36, {NST2-4}")
    def st_of(n):
        e(f"s_add_u32 s37, s36, {n}")
        e(f"s_cmp_ge_u32 s37, {NST2}")
        e(f"s_cselect_b32 s38, {4 if 'F' not in X else NST2}, 0")
        e("s_sub_u32 s37, s37, s38")
    e("s_barrier")
    k.stamp(3)
    def wpart2(n):
        st_of(n)
        e("s_lshl_b32 s26, s37, 17")
        e("s_add_u32 s26, s26, s48")
        e(f"s_add_u32 m0, s28, {n*STG2}")
        e("s_nop 0")
        for pp in range(4):
            e(f"buffer_load_dwordx4 v{VW2+pp}, s[40:43], s26 offen offset:{1024*pp}{NT2} lds")
    wpart2(0); wpart2(1); wpart2(2)
    wpart2(3)
    e("s_lshl_b32 s31, s53, 7")
    e("s_lshl_b32 s32, s24, 5")
    e("s_add_u32 s31, s31, s32")
    e("s_lshl_b32 s31, s31, 12")
    e("s_lshl_b32 s32, s13, 8")
    e("s_add_u32 s31, s31, s32")
    e("s_lshl_b32 s32, s15, 7")
    e("s_add_u32 s31, s31, s32")
    e(f"s_add_u32 s31, s31, 0x{HT:x}")
    e(f"s_add_u32 m0, s27, {RES}")
    e("s_nop 0")
    for pp in range(4):
        e(f"buffer_load_dwordx4 v{VR+pp}, s[20:23], s31 offen offset:{1024*pp} lds")
    def hpart2(n):
        st_of(n)
        e("s_lshl_b32 s25, s37, 11")
        e("s_add_u32 s25, s25, s47")
        e(f"s_add_u32 m0, s27, {n*STG2}")
        e("s_nop 0")
        for pp in range(4):
            e(f"buffer_load_dwordx4 v{VA+pp//2}, s[20:23], s25 offen offset:{1024*pp} lds")
    e("s_waitcnt vmcnt(16)")
    k.stamp(4)
    e("s_barrier")
    e("s_mov_b32 s39, 0")
    k.label("hpoll")
    e("buffer_load_dwordx2 v[64:65], v11, s[20:23], s51 offen sc1")
    e("s_add_u32 s39, s39, 1")
    e("s_cmp_gt_u32 s39, 0x100000")
    e(f"s_cbranch_scc1 {k.L('hpolled')}")
    e("s_waitcnt vmcnt(0)")
    e("v_cmp_ne_u64 vcc, v[64:65], v[216:217]")
    e(f"s_cbranch_vccnz {k.L('hpoll')}")
    k.label("hpolled")
    hpart2(3)
    e("s_mov_b32 s29, 0")
    e(f"s_mov_b32 s35, {NB2}")
    def issue2():
        e("s_add_u32 s37, s35, s13")
        e(f"s_and_b32 s37, s37, {RW-1}")
        e(f"s_andn2_b32 s38, s35, {RW-1}")
        e("s_or_b32 s37, s37, s38")
        if 'F' in X:
            st_of("s37")
        else:
            e("s_sub_u32 s37, s37, 4")
            e("s_cmp_ge_u32 s37, s52")
            e("s_cselect_b32 s38, 4, 0")
            e("s_add_u32 s37, s37, s38")
        e("s_lshl_b32 s25, s37, 11")
        e("s_add_u32 s25, s25, s47")
        e("s_lshl_b32 s26, s37, 17")
        e("s_add_u32 m0, s27, s29")
        e("s_add_u32 s26, s26, s48")
        for pp in range(4):
            e(f"buffer_load_dwordx4 v{VA+pp//2}, s[20:23], s25 offen offset:{1024*pp} lds")
        e("s_add_u32 m0, s28, s29")
        e(f"s_add_u32 s29, s29, {STG2}")
        for pp in range(4):
            e(f"buffer_load_dwordx4 v{VW2+pp}, s[40:43], s26 offen offset:{1024*pp}{NT2} lds")
        e(f"s_and_b32 s29, s29, {NB2*STG2-1}")
        e("s_add_u32 s35, s35, 1")
    e("s_barrier")
    issue2()
    e("s_waitcnt vmcnt(12)")
    e("s_barrier")
    issue2()
    k.label("l2loop")
    e("s_waitcnt vmcnt(16)")
    e("s_barrier")
    issue2()
    e(f"s_cmp_lt_u32 s35, {NST2}")
    e(f"s_cbranch_scc1 {k.L('l2loop')}")
    for i in range(NST2-NB2, NST2):
        left = max(NST2 - 1 - (i + 1), 0)
        e(f"s_waitcnt vmcnt({left*8})")
        e("s_barrier")
    k.dump_stamps(1, 20, 10)
    e("s_endpgm")
```

```python
from asmlib import *
from layout import *
from k0 import ln_stats
import os
F = os.environ.get('K0X', 'wn')

KCP = 4160
REG = 4*KCP + 512 + 4096
REG0 = 0
SKL = 4*REG
TILE = 90112
STAT = 135168
FLAG = 153664
LDS_ALL = FLAG + 128
TAG = 204

def emit_front(k):
    e = k.e
    k.pfx = "f_"
    e("s_cmp_ge_u32 s2, 256")
    e(f"s_cbranch_scc1 {k.L('end')}")
    k.clear_stamps()
    e("s_load_dwordx8 s[4:11], s[0:1], 0")
    e("s_load_dwordx4 s[52:55], s[0:1], 80")
    e("s_load_dwordx4 s[12:15], s[0:1], 32")
    e("s_load_dwordx4 s[56:59], s[0:1], 56")
    e("v_lshrrev_b32 v1, 6, v0")
    e("s_lshr_b32 s40, s2, 3")
    e("v_readfirstlane_b32 s60, v1")
    e("s_and_b32 s41, s2, 7")
    e("s_lshl_b32 s61, s41, 7")
    e("s_lshl_b32 s62, s40, 2")
    e("s_add_u32 s61, s61, s62")
    e("s_and_b32 s62, s60, 3")
    e("s_add_u32 s61, s61, s62")
    e(f"s_mul_i32 s63, s62, {REG}")
    e(f"s_add_u32 s63, s63, {REG0}")
    e("s_lshl_b32 s39, s41, 11")
    e("v_mov_b32 v207, 0")
    e("s_getreg_b32 s38, hwreg(HW_REG_XCC_ID, 0, 4)")
    if 'f' in F: e("s_add_u32 s38, s38, s40")
    e("v_mov_b32 v206, s38")
    e("s_cmp_ge_u32 s60, 4")
    e(f"s_cbranch_scc1 {k.L('bwave')}")

    def spin(off, cond, lab, sleep=0):
        if off is not None: e(f"v_mov_b32 v33, {off}")
        k.label(lab)
        if sleep: e(f"s_sleep {sleep}")
        e("ds_read_b32 v34, v33")
        e("s_waitcnt lgkmcnt(0)")
        e(cond)
        e(f"s_cbranch_vccnz {k.L(lab)}")
    def setflag(off):
        e(f"v_mov_b32 v200, {off}")
        e("v_mov_b32 v201, 1")
        e("ds_write_b32 v200, v201")
    def publish(cnt_off, base, lab, r=200):
        e(f"v_mov_b32 v{r}, {FLAG + cnt_off}")
        e(f"v_mov_b32 v{r+1}, 1")
        e("s_mov_b64 exec, 1")
        e(f"ds_add_rtn_u32 v{r+2}, v{r}, v{r+1}")
        e("s_waitcnt lgkmcnt(0)")
        e(f"v_readfirstlane_b32 s3, v{r+2}")
        e("s_cmp_eq_u32 s3, 3")
        e(f"s_cbranch_scc0 {k.L(lab)}")
        e("s_lshl_b32 s3, s40, 14")
        e(f"v_mov_b32 v{r}, s3")
        e(f"s_add_u32 s3, s39, 0x{base:x}")
        e(f"buffer_store_dwordx3 {vr(TAG,3)}, v{r}, s[32:35], s3 offen")
        e(f"s_add_u32 s3, s3, 0x{FB_:x}")
        e(f"buffer_store_dwordx3 {vr(TAG,3)}, v{r}, s[32:35], s3 offen sc1")
        k.label(lab)
        e("s_mov_b64 exec, -1")
    def poll(base, lab, dual=True):
        e("v_and_b32 v121, 31, v0")
        e("v_lshlrev_b32 v121, 14, v121")
        e(f"s_add_u32 s28, s39, 0x{base:x}")
        e(f"s_add_u32 s29, s39, 0x{base + FB_:x}")
        e("s_mov_b32 s3, 0")
        e("v_mov_b32 v122, 0")
        k.label(lab)
        e("buffer_load_dwordx3 v[116:118], v121, s[32:35], s28 offen sc1")
        e("s_add_u32 s3, s3, 1")
        if dual:
            e("s_and_b32 s26, s3, 3")
            e(f"s_cbranch_scc1 {k.L(lab + '_a')}")
            e("buffer_load_dwordx3 v[122:124], v121, s[32:35], s29 offen sc1")
            k.label(lab + "_a")
        e("s_cmp_gt_u32 s3, 0x100000")
        e(f"s_cbranch_scc1 {k.L(lab + '_x')}")
        e("s_waitcnt vmcnt(0)")
        e(f"v_cmp_ne_u64 vcc, v[116:117], {vr(TAG,2)}")
        if dual:
            e(f"v_cmp_ne_u64 s[24:25], v[122:123], {vr(TAG,2)}")
            e("s_nop 0")
            e("v_cndmask_b32 v118, v118, v124, vcc")
            e("s_and_b64 vcc, vcc, s[24:25]")
        e(f"s_cbranch_vccnz {k.L(lab)}")
        k.label(lab + "_x")
        e("s_waitcnt vmcnt(0)")
    def tagload():
        e(f"buffer_load_dwordx2 {vr(TAG,2)}, v207, s[44:47], 0 offen sc1")
    def tagcheck(lab):
        e("s_mov_b32 s3, 0")
        k.label(lab)
        e(f"v_cmp_eq_u32 vcc, 0, v{TAG}")
        e(f"s_cbranch_vccz {k.L(lab + '_x')}")
        tagload()
        e("s_waitcnt vmcnt(0)")
        e("s_add_u32 s3, s3, 1")
        e("s_cmp_lt_u32 s3, 0x100000")
        e(f"s_cbranch_scc1 {k.L(lab)}")
        k.label(lab + "_x")
        e(f"v_readfirstlane_b32 s98, v{TAG}")
        e(f"v_readfirstlane_b32 s99, v{TAG+1}")
    def finish(lab, target):
        fin_count(lab)
        e(f"s_branch {target}")
    def fin_count(lab):
        e("s_mov_b64 exec, -1")
        e(f"v_mov_b32 v200, {FLAG+52}")
        e("v_mov_b32 v201, 1")
        e("s_waitcnt vmcnt(0)")
        e("s_mov_b64 exec, 1")
        e("ds_add_rtn_u32 v202, v200, v201")
        e("s_waitcnt lgkmcnt(0)")
        e("v_readfirstlane_b32 s3, v202")
        e("s_cmp_eq_u32 s3, 7")
        e(f"s_cbranch_scc0 {k.L(lab)}")
        e("s_lshl_b32 s3, s2, 11")
        e(f"s_add_u32 s3, s3, 0x{FHT:x}")
        e(f"buffer_store_dwordx2 {vr(TAG,2)}, v207, s[32:35], s3 offen sc1")
        k.label(lab)
        e("s_mov_b64 exec, -1")

    e("v_and_b32 v6, 15, v0")
    e("v_lshrrev_b32 v7, 4, v0")
    e("s_lshl_b32 s42, s40, 17")
    e("s_lshl_b32 s43, s41, 8")
    e("s_add_u32 s42, s42, s43")
    e("v_lshlrev_b32 v1, 13, v7")
    e("v_lshl_add_u32 v1, v6, 4, v1")
    e("v_add_u32 v1, s42, v1")
    e("v_add_u32 v2, 0x1000, v1")
    e("v_add_u32 v3, 0xffffe800, v1")
    e("v_add_u32 v4, 0xfffff000, v1")
    e("v_add_u32 v5, 0xfffff800, v1")
    e("s_lshl_b32 s48, s41, 10")
    e("v_and_b32 v9, 63, v0")
    e("v_lshlrev_b32 v9, 4, v9")
    e(f"s_mov_b32 m0, {SKL}")
    e("s_waitcnt lgkmcnt(0)")
    k.srd(20, 6, 7, 4*MB)
    k.srd(24, 8, 9, 4*MB)
    k.srd(28, 10, 11, 8192)
    KR = 12; VR = 40; XR = 56; SK = 72
    e("buffer_load_dwordx4 v9, s[28:31], s48 offen lds")
    for i in range(4):
        e(f"buffer_load_dwordx4 {vr(KR+12+4*i,4)}, v{1+i//2}, s[20:23], 0 offen offset:{2048*(i%2)} nt")
    for i in range(4):
        e(f"buffer_load_dwordx4 {vr(VR+4*i,4)}, v{1+i//2}, s[24:27], 0 offen offset:{2048*(i%2)} nt")
    e(f"buffer_load_dwordx4 {vr(KR,4)}, v3, s[20:23], 0 offen nt")
    e(f"buffer_load_dwordx4 {vr(KR+4,4)}, v4, s[20:23], 0 offen nt")
    e(f"buffer_load_dwordx4 {vr(KR+8,4)}, v5, s[20:23], 0 offen nt")
    k.srd(16, 4, 5, 4*MB)
    for i in range(4):
        e(f"buffer_load_dwordx4 {vr(XR+4*i,4)}, v{1+i//2}, s[16:19], 0 offen offset:{2048*(i%2)} nt")
    k.srd(44, 52, 53, 256)
    tagload()
    e("s_barrier")
    k.srd(32, 54, 55, WS_BYTES)
    e("s_and_b32 s3, s61, -2")
    e("s_lshl_b32 s3, s3, 1")
    e("s_load_dword s51, s[14:15], s3")
    e("v_and_b32 v10, 14, v6")
    e("v_xor_b32 v11, v10, v7")
    e("v_xor_b32 v10, 1, v11")
    e("v_lshlrev_b32 v8, 10, v6")
    e("v_lshl_add_u32 v10, v10, 3, v8")
    e("v_lshl_add_u32 v11, v11, 3, v8")
    e(f"v_add_u32 v10, {TILE}, v10")
    e(f"v_add_u32 v11, {TILE}, v11")
    e(f"v_lshlrev_b32 v8, 6, v6")
    e(f"v_add_u32 v8, {SKL}, v8")
    e("s_mov_b32 s48, 0x05040100")
    e("s_mov_b32 s49, 0x07060302")
    e("s_mov_b32 s50, 0xffff0000")
    T = 104; KU = 112
    ACC = [2, 4, 8, 6]
    k.stamp(1)
    e("s_waitcnt vmcnt(16)")
    for q in range(4):
        e(f"ds_read_b128 {vr(SK+4*q,4)}, v8 offset:{16*q}")
    e("s_waitcnt vmcnt(5) lgkmcnt(0)")
    setflag(FLAG + 24)
    k.stamp(2)
    k.label("kv")
    for jj in range(4):
        for c in range(2):
            d0 = SK + 4*jj + 2*c
            e(f"v_lshlrev_b32 v{T+0+c}, 16, v{d0}")
            e(f"v_and_b32 v{T+2+c}, s50, v{d0}")
            e(f"v_lshlrev_b32 v{T+4+c}, 16, v{d0+1}")
            e(f"v_and_b32 v{T+6+c}, s50, v{d0+1}")
        for r in range(7):
            e(f"v_lshlrev_b32 v{KU+2*r}, 16, v{KR+4*r+jj}")
            e(f"v_and_b32 v{KU+2*r+1}, s50, v{KR+4*r+jj}")
        for tap in (3, 2, 1, 0):
            for i in range(4):
                kk = KU + 2*(i+3-tap)
                if tap == 3:
                    e(f"v_pk_mul_f32 {vr(ACC[i],2)}, {vr(kk,2)}, {vr(T+2*tap,2)}")
                else:
                    e(f"v_pk_fma_f32 {vr(ACC[i],2)}, {vr(kk,2)}, {vr(T+2*tap,2)}, {vr(ACC[i],2)}")
        for i in range(4):
            e(f"v_lshlrev_b32 v{KU+2*i}, 16, v{VR+4*i+jj}")
            e(f"v_and_b32 v{KU+2*i+1}, s50, v{VR+4*i+jj}")
        for i in range(4):
            e(f"v_pk_mul_f32 {vr(ACC[i],2)}, {vr(ACC[i],2)}, {vr(KU+2*i,2)}")
        P = KU + 8
        for c in range(2):
            e(f"v_cvt_pk_bf16_f32 v{P+2*c}, v{ACC[3]+c}, v{ACC[2]+c}")
            e(f"v_cvt_pk_bf16_f32 v{P+2*c+1}, v{ACC[1]+c}, v{ACC[0]+c}")
        for c in range(2):
            e(f"ds_write_b64 v10, {vr(P+2*c,2)} offset:{128*(2*jj+c)}")
    e("s_waitcnt vmcnt(1)")
    for jj in range(4):
        for c in range(2):
            P = KR + 4*jj + 2*c
            sel = "s48" if c == 0 else "s49"
            e(f"v_perm_b32 v{P}, v{XR+4+jj}, v{XR+jj}, {sel}")
            e(f"v_perm_b32 v{P+1}, v{XR+12+jj}, v{XR+8+jj}, {sel}")
            e(f"ds_write_b64 v11, {vr(P,2)} offset:{16384+128*(2*jj+c)}")
    e("v_and_b32 v1, 7, v0")
    e("v_lshrrev_b32 v2, 7, v0")
    e("v_xor_b32 v2, v2, v1")
    e("v_lshrrev_b32 v3, 3, v0")
    e("v_lshlrev_b32 v4, 7, v3")
    e("v_lshl_add_u32 v4, v2, 4, v4")
    e(f"v_add_u32 v4, {TILE}, v4")
    e("v_xor_b32 v5, 32, v4")
    e("v_xor_b32 v6, 64, v4")
    e("v_xor_b32 v7, 96, v4")
    e("v_lshlrev_b32 v3, 12, v3")
    e("v_lshl_add_u32 v37, v1, 4, v3")
    e(f"v_mov_b32 v33, {FLAG+12}")
    e("v_mov_b32 v34, 1")
    e("s_waitcnt lgkmcnt(0)")
    e(f"s_cbranch_execz {k.L('kvback')}")
    e("s_mov_b64 exec, 1")
    e("ds_add_u32 v33, v34")
    e("s_mov_b64 exec, -1")
    e("s_lshl_b32 s4, s41, 19")
    e("s_lshl_b32 s5, s40, 7")
    e("s_add_u32 s4, s4, s5")
    for i in range(8):
        e(f"s_add_u32 s{16+i}, s4, 0x{(i%4)*131072 + (XT if i >= 4 else UT):x}")
    k.stamp(3)
    spin(None, "v_cmp_gt_u32 vcc, 4, v34", "waitT")
    R = 40
    for i in range(8):
        e(f"ds_read_b128 {vr(R+4*i,4)}, v{4+i%4} offset:{4096*(i%4) + (16384 if i >= 4 else 0)}")
    for i in range(4):
        e(f"s_waitcnt lgkmcnt({7-i})")
        e(f"buffer_store_dwordx4 {vr(R+4*i,4)}, v37, s[32:35], s{16+i} offen")
    e("v_and_b32 v0, 63, v0")
    e("v_and_b32 v5, 15, v0")
    e("v_lshrrev_b32 v6, 4, v0")
    e("s_lshl_b32 s12, s61, 12")
    e("v_lshlrev_b32 v7, 5, v5")
    e("v_lshl_add_u32 v7, v6, 3, v7")
    e(f"s_add_u32 s29, s12, 0x{HT:x}")
    e("v_sub_u32 v33, 7, v5")
    e("v_and_b32 v33, 3, v33")
    e(f"v_mul_u32_u24 v33, {KCP}, v33")
    e("v_lshrrev_b32 v34, 2, v5")
    e("v_lshl_add_u32 v33, v34, 3, v33")
    e("v_lshlrev_b32 v34, 4, v6")
    e("v_sub_u32 v33, v33, v34")
    e("s_add_u32 s30, s63, 24")
    e("v_add_u32 v1, s30, v33")
    e("v_lshlrev_b32 v33, 5, v5")
    e("v_add_u32 v33, v33, v34")
    e(f"s_add_u32 s30, s63, {4*KCP + 512 - 32*15}")
    e("v_add_u32 v3, s30, v33")
    AD = 192
    e("v_lshrrev_b32 v33, 3, v5")
    e("v_add_u32 v33, 2, v33")
    e("v_and_b32 v34, 7, v5")
    e("v_sub_u32 v34, 7, v34")
    e("v_cmp_eq_u32 vcc, v33, v6")
    e("v_lshrrev_b32 v35, 1, v34")
    e("v_and_b32 v34, 1, v34")
    e("v_cndmask_b32 v35, 9, v35, vcc")
    e("v_lshlrev_b32 v34, 4, v34")
    e("s_and_b32 s31, s61, 1")
    e("s_lshl_b32 s31, s31, 4")
    e("s_lshr_b32 s51, s51, s31")
    e("s_and_b32 s51, s51, 0xffff")
    e("v_mov_b32 v33, s51")
    e("v_lshlrev_b32 v34, v34, v33")
    for r in range(4):
        e(f"v_cmp_eq_u32 vcc, {r}, v35")
        e("s_nop 1")
        e(f"v_cndmask_b32 v{AD+r}, 0, v34, vcc")
    e("s_waitcnt vmcnt(0)")
    tagcheck("tagA")
    publish(0, FU, "pubU")
    k.stamp(4)
    for i in range(4, 8):
        e(f"buffer_store_dwordx4 {vr(R+4*i,4)}, v37, s[32:35], s{16+i} offen")
    FA = [64, 128]; FB = [96, 160]; AC = 8
    def reads(buf, ep):
        r = []
        for w in range(8):
            r.append(f"ds_read_b128 {vr(FB[buf]+4*w,4)}, v3 offset:{512*w + 32*(15-ep)}")
        for v in range(8):
            r.append(f"ds_read_b64 {vr(FA[buf]+4*v,2)}, v1 offset:{32*ep + 512*v}")
            r.append(f"ds_read_b64 {vr(FA[buf]+4*v+2,2)}, v1 offset:{32*ep + 512*v + 8}")
        return r
    def mfmas(buf):
        m = []
        for v in range(8):
            for w in range(8 - v):
                t = v + w
                m.append(f"v_mfma_f32_16x16x32_bf16 {vr(AC+4*t,4)}, {vr(FA[buf]+4*v,4)}, {vr(FB[buf]+4*w,4)}, {vr(AC+4*t,4)}")
        return m
    e("s_waitcnt vmcnt(0)")
    publish(4, FX, "pubX")
    e("s_lshl_b32 s3, s60, 2")
    e(f"s_add_u32 s3, s3, {FLAG+32}")
    e("v_mov_b32 v33, s3")
    spin(None, "v_cmp_eq_u32 vcc, 0, v34", "waitK")
    rd = reads(0, 1)
    for r in rd[8:]: e(r)
    spin(None, "v_cmp_gt_u32 vcc, 2, v34", "waitU")
    k.stamp(5)
    for r in rd[:8]: e(r)
    for t in range(8):
        e(f"s_waitcnt lgkmcnt({7-t})")
        e(f"v_mfma_f32_16x16x32_bf16 {vr(AC+4*t,4)}, {vr(AD,4)}, {vr(FB[0]+4*t,4)}, 0")
    e("s_mov_b32 s26, 0")
    k.label("loop")
    for buf, nxt in ((0, 3), (1, 5)):
        e("s_waitcnt lgkmcnt(0)")
        rd = reads(1 - buf, nxt)
        for i, m in enumerate(mfmas(buf)):
            e(m)
            if i < len(rd): e(rd[i])
    e("v_add_u32 v1, 128, v1")
    e("v_add_u32 v3, -128, v3")
    e("s_add_u32 s26, s26, 1")
    e("s_cmp_lt_u32 s26, 4")
    e(f"s_cbranch_scc1 {k.L('loop')}")
    e("v_lshlrev_b32 v1, 6, v5")
    e("v_lshl_add_u32 v1, v6, 4, v1")
    e(f"v_add_u32 v1, {STAT}, v1")
    e("s_lshl_b32 s26, s60, 12")
    e(f"s_add_u32 s26, s26, {TILE}")
    e("v_add_u32 v2, s26, v7")
    e(f"v_mov_b32 v3, {FLAG+16}")
    e("v_and_b32 v4, 1, v6")
    e("v_lshlrev_b32 v4, 9, v4")
    e("v_lshl_add_u32 v4, v5, 5, v4")
    e("v_lshrrev_b32 v200, 1, v6")
    e("v_lshl_add_u32 v4, v200, 4, v4")
    k.stamp(6)
    k.label("spoll")
    e("ds_read_b64 v[64:65], v3")
    e("s_waitcnt lgkmcnt(0)")
    e("v_and_b32 v64, v64, v65")
    e("v_cmp_eq_u32 vcc, 0, v64")
    e(f"s_cbranch_vccnz {k.L('spoll')}")
    MS = 64; RS = 96; XV = 176
    for t in range(8):
        e(f"ds_read_b64 {vr(XV+2*t,2)}, v2 offset:{512*t}")
    for t in range(3):
        e(f"ds_read_b128 {vr(MS+4*t,4)}, v1 offset:{1024*t}")
        e(f"ds_read_b128 {vr(RS+4*t,4)}, v1 offset:{1024*t+8192}")
    e("s_waitcnt lgkmcnt(6)")
    for t in range(8):
        if t + 3 < 8:
            e(f"ds_read_b128 {vr(MS+4*(t+3),4)}, v1 offset:{1024*(t+3)}")
            e(f"ds_read_b128 {vr(RS+4*(t+3),4)}, v1 offset:{1024*(t+3)+8192}")
        xu = 128 + 8*(t % 2); q = xu + 4
        e(f"v_lshlrev_b32 v{xu}, 16, v{XV+2*t}")
        e(f"v_and_b32 v{xu+1}, s50, v{XV+2*t}")
        e(f"v_lshlrev_b32 v{xu+2}, 16, v{XV+2*t+1}")
        e(f"v_and_b32 v{xu+3}, s50, v{XV+2*t+1}")
        e(f"s_waitcnt lgkmcnt({2*min(3, 7-t)})")
        for h in range(2):
            e(f"v_pk_add_f32 {vr(q+2*h,2)}, {vr(xu+2*h,2)}, {vr(MS+4*t+2*h,2)} neg_lo:[0,1] neg_hi:[0,1]")
        for h in range(2):
            e(f"v_pk_mul_f32 {vr(q+2*h,2)}, {vr(q+2*h,2)}, {vr(RS+4*t+2*h,2)}")
        for h in range(2):
            e(f"v_pk_fma_f32 {vr(q+2*h,2)}, {vr(q+2*h,2)}, {vr(AC+4*t+2*h,2)}, {vr(xu+2*h,2)}")
        e(f"v_cvt_pk_bf16_f32 v{XV+2*t}, v{q}, v{q+1}")
        e(f"v_cvt_pk_bf16_f32 v{XV+2*t+1}, v{q+2}, v{q+3}")
        if t % 2 == 1:
            e("s_nop 1")
            e(f"v_permlane16_swap_b32 v{XV+2*t-2}, v{XV+2*t}")
            e(f"v_permlane16_swap_b32 v{XV+2*t-1}, v{XV+2*t+1}")
            e(f"buffer_store_dwordx4 {vr(XV+2*t-2,4)}, v4, s[32:35], s29 offen offset:{512*(t-1)} sc1")
    e(f"v_mov_b32 v200, {FLAG+48}")
    e("v_mov_b32 v201, 1")
    e("s_waitcnt lgkmcnt(0)")
    e("s_mov_b64 exec, 1")
    e("ds_add_u32 v200, v201")
    e("s_mov_b64 exec, -1")
    if STAMP: k.dump_stamps(0, 32, 60, keep=True)
    finish("finA", "Lmlp_compute")

    k.label("bwave")
    k.role = "B"
    e("s_setprio 3")
    e("v_and_b32 v0, 63, v0")
    e("v_lshlrev_b32 v2, 4, v0")
    e("v_mov_b32 v36, 0"); e("v_mov_b32 v37, 0"); e("v_mov_b32 v38, 0"); e("v_mov_b32 v39, 0")
    e("v_min_u32 v33, 48, v2")
    e(f"v_add_u32 v33, {FLAG}, v33")
    e("ds_write_b128 v33, v[36:39]")
    e("s_memrealtime s[48:49]")
    e("s_waitcnt lgkmcnt(0)")
    k.srd(44, 52, 53, 256)
    e("s_or_b32 s48, s48, 1")
    e("s_add_u32 s3, s2, s62")
    e("s_cmp_eq_u32 s3, 0")
    e(f"s_cbranch_scc0 {k.L('notag')}")
    e("v_mov_b32 v40, s48"); e("v_mov_b32 v41, s49")
    e("s_mov_b64 exec, 1")
    e("buffer_store_dwordx2 v[40:41], v207, s[44:47], 0 offen sc1")
    e("s_mov_b64 exec, -1")
    k.label("notag")
    e("s_setprio 0")
    e("v_add_u32 v3, -8, v2")
    e("v_add_u32 v4, 1016, v2")
    e("s_lshl_b32 s42, s61, 12")
    e("s_add_u32 s20, s12, s42")
    e("s_addc_u32 s21, s13, 0")
    e("s_and_b32 s21, s21, 0xffff")
    e("s_mov_b32 s22, 4096")
    e("s_mov_b32 s23, 0x20000")
    k.srd(16, 4, 5, 4*MB)
    k.srd(32, 54, 55, WS_BYTES)
    e("s_lshl_b32 s43, s2, 14")
    e("s_lshl_b32 s3, s62, 12")
    e("s_add_u32 s43, s43, s3")
    e("v_bfe_u32 v32, v0, 1, 2")
    e(f"v_mul_u32_u24 v32, {KCP}, v32")
    e("v_and_b32 v33, 1, v0")
    e("v_lshl_add_u32 v32, v33, 4, v32")
    e(f"v_add_u32 v33, {4*KCP}, v2")
    e("v_cmp_gt_u32 vcc, 32, v0")
    e("s_nop 1")
    e("v_cndmask_b32 v32, v32, v33, vcc")
    e("v_add_u32 v32, s63, v32")
    e("ds_write_b128 v32, v[36:39]")
    if 'd' not in F:
        e("s_mov_b64 exec, 0")
        e(f"s_branch {k.L('kv')}")
    k.label("kvback")
    e("s_mov_b64 exec, -1")
    e("s_barrier")
    if 'p' not in F:
        e("s_lshl_b32 s3, s2, 11")
        e(f"s_add_u32 s3, s3, 0x{HO:x}")
        e("s_lshr_b32 s24, s41, 1")
        e("s_lshl_b32 s24, s24, 2")
        e("s_and_b32 s25, s40, 3")
        e("s_add_u32 s24, s24, s25")
        e("s_and_b32 s25, s41, 1")
        e("s_lshl_b32 s25, s25, 3")
        e("s_lshr_b32 s26, s40, 2")
        e("s_add_u32 s25, s25, s26")
        e("s_lshl_b32 s26, s24, 4")
        e("s_add_u32 s26, s26, s25")
        e("s_lshl_b32 s26, s26, 11")
        e(f"s_add_u32 s26, s26, 0x{SP2:x}")
        e("s_lshl_b32 s25, s25, 4")
        e("s_add_u32 s25, s25, s24")
        e("s_lshl_b32 s25, s25, 11")
        e(f"s_add_u32 s25, s25, 0x{CP:x}")
        e("s_lshl_b32 s24, s2, 6")
        e(f"s_add_u32 s24, s24, 0x{SG:x}")
        e("s_cmp_eq_u32 s62, 1")
        e("s_cselect_b32 s3, s26, s3")
        e("s_cmp_eq_u32 s62, 2")
        e("s_cselect_b32 s3, s25, s3")
        e("s_cmp_eq_u32 s62, 3")
        e("s_cselect_b32 s3, s24, s3")
        e("s_cselect_b64 exec, 1, 0xffff")
        e("v_lshlrev_b32 v32, 7, v0")
        e("buffer_load_dword v211, v32, s[32:35], s3 offen")
        e("s_mov_b64 exec, -1")
    if 'c' not in F:
        e("s_and_b32 s3, s40, 7")
        e(f"s_cbranch_scc1 {k.L('nocode')}")
        e("s_getpc_b64 s[48:49]")
        k.label("pc")
        e("s_lshl_b32 s3, s62, 13")
        e("v_lshl_add_u32 v32, v0, 7, s3")
        e(f"v_min_u32 v32, Lcode_end-{k.L('pc')}-4, v32")
        e("global_load_dword v210, v32, s[48:49]")
        k.label("nocode")
    XW = 1 if ('x' in F or 'y' in F) else 0
    if XW:
        k.srd(28, 58, 59, 1024*3584*2)
        e("s_lshl_b32 s3, s2, 2")
        e("s_add_u32 s3, s3, s62")
        e(f"s_mul_i32 s3, s3, {56*128}")
        e("v_lshlrev_b32 v32, 7, v0")
        e(f"s_mov_b64 exec, {'0xfffffff' if 'y' in F else '-1'}")
        e("buffer_load_dword v209, v32, s[28:31], s3 offen")
        e("s_mov_b64 exec, -1")
    if 'e' not in F:
        spin(FLAG + 24, "v_cmp_eq_u32 vcc, 0, v34", "waitL", sleep=1)
    k.stamp(1)
    Y = 8; W = 24; ST = 88
    for i in range(4):
        e(f"buffer_load_dwordx4 {vr(Y+4*i,4)}, v2, s[20:23], 0 offen offset:{1024*i} nt")
        if i == 0: e(f"buffer_load_dwordx2 {vr(W,2)}, v3, s[20:23], 0 offen nt")
        else:      e(f"buffer_load_dwordx2 {vr(W+2*i,2)}, v4, s[20:23], 0 offen offset:{1024*(i-1)} nt")
    for i in range(4):
        e(f"buffer_load_dwordx4 {vr(ST+4*i,4)}, v2, s[16:19], s43 offen offset:{1024*i} nt")
    tagload()
    e("s_add_u32 s30, s63, 32")
    e("v_add_u32 v4, s30, v2")
    for i in range(4):
        e(f"s_waitcnt vmcnt({5 + 2*(3-i)})")
        y = Y + 4*i; w = W + 2*i
        X = 44 + 12*(i % 2); P1 = X + 4; P3 = X + 8
        e(f"ds_write_b128 v4, {vr(y,4)} offset:{1024*i}")
        e(f"v_mov_b32 v{X}, v{w+1}")
        for j in range(3): e(f"v_mov_b32 v{X+1+j}, v{y+j}")
        e(f"ds_write_b128 v4, {vr(X,4)} offset:{1024*i + 2*KCP}")
        e(f"v_alignbit_b32 v{P1}, v{y}, v{w+1}, 16")
        for j in range(3): e(f"v_alignbit_b32 v{P1+1+j}, v{y+1+j}, v{y+j}, 16")
        e(f"ds_write_b128 v4, {vr(P1,4)} offset:{1024*i + KCP}")
        e(f"v_alignbit_b32 v{P3}, v{w+1}, v{w}, 16")
        for j in range(3): e(f"v_mov_b32 v{P3+1+j}, v{P1+j}")
        e(f"ds_write_b128 v4, {vr(P3,4)} offset:{1024*i + 3*KCP}")
    e("s_lshl_b32 s3, s62, 2")
    e(f"s_add_u32 s3, s3, {FLAG+32}")
    e("v_mov_b32 v33, s3")
    e("v_mov_b32 v34, 1")
    e("s_waitcnt lgkmcnt(0)")
    e("ds_write_b32 v33, v34")
    k.stamp(2)
    S = [104, 105]; Q = [106, 107]
    for r in S + Q: e(f"v_mov_b32 v{r}, 0")
    e("s_mov_b32 s48, 0x3f803f80")
    e("s_waitcnt vmcnt(0)")
    for j in range(8):
        for r in range(2):
            e(f"v_dot2c_f32_bf16 v{S[r]}, s48, v{ST+8*r+j}")
            e(f"v_dot2c_f32_bf16 v{Q[r]}, v{ST+8*r+j}, v{ST+8*r+j}")
    e("s_nop 2")
    for mode in ("quad_perm:[1,0,3,2] row_mask:0xf", "quad_perm:[2,3,0,1] row_mask:0xf", "row_half_mirror row_mask:0xf",
                 "row_mirror row_mask:0xf", "row_bcast:15 row_mask:0xa", "row_bcast:31 row_mask:0xc"):
        for r in S + Q:
            e(f"v_add_f32_dpp v{r}, v{r}, v{r} {mode} bank_mask:0xf")
    ln_stats(k, S, Q, [108, 109], None, [112, 113], recip=False)
    tagcheck("tagB")
    e("s_mov_b32 s48, 0x07060302")
    e(f"v_perm_b32 v{TAG-2}, v112, v108, s48")
    e(f"v_perm_b32 v{TAG-1}, v113, v109, s48")
    e("s_lshl_b32 s48, s2, 6")
    e("s_lshl_b32 s49, s62, 4")
    e("s_add_u32 s48, s48, s49")
    e(f"s_add_u32 s48, s48, 0x{SG:x}")
    e("s_mov_b32 exec_lo, 0")
    e("s_mov_b32 exec_hi, 0x80000000")
    e(f"buffer_store_dwordx4 {vr(TAG-2,4)}, v207, s[32:35], s48 offen sc1")
    e("s_mov_b64 exec, -1")
    k.stamp(3)
    e("s_cmp_eq_u32 s62, 3")
    e(f"s_cbranch_scc0 {k.L('notB3')}")
    poll(FU, "pollU")
    e("v_cmp_ne_u32 vcc, s38, v118")
    e(f"s_cbranch_vccz {k.L('oneXCD')}")
    spin(FLAG + 4, "v_cmp_gt_u32 vcc, 4, v34", "waitX")
    e("buffer_wbl2 sc1")
    e("s_waitcnt vmcnt(0)")
    e("s_lshl_b32 s3, s40, 14")
    e("v_mov_b32 v200, s3")
    e(f"s_add_u32 s3, s39, 0x{F2:x}")
    e("s_mov_b64 exec, 1")
    e(f"buffer_store_dwordx3 {vr(TAG,3)}, v200, s[32:35], s3 offen sc1")
    e("s_mov_b64 exec, -1")
    poll(F2, "poll2", dual=False)
    e("buffer_inv sc1")
    e("s_waitcnt vmcnt(0)")
    k.label("oneXCD")
    k.stamp(1)
    k.note("s3", 16)
    setflag(FLAG + 8)
    k.label("notB3")
    spin(FLAG + 8, "v_cmp_eq_u32 vcc, 0, v34", "waitGo")
    e(f"s_add_u32 m0, s63, {4*KCP + 512}")
    e(f"s_add_u32 s14, s42, 0x{UT:x}")
    for p in range(4):
        e(f"buffer_load_dwordx4 v2, s[32:35], s14 offen offset:{1024*p} lds")
    e("s_lshl_b32 s3, s62, 2")
    e(f"s_add_u32 s3, s3, {FLAG+32}")
    e("v_mov_b32 v33, s3")
    e("v_mov_b32 v34, 2")
    e("s_waitcnt vmcnt(0)")
    e("ds_write_b32 v33, v34")
    k.stamp(2)
    if 'z' in F:
        k.srd(28, 58, 59, 1024*3584*2)
        e("s_lshl_b32 s3, s2, 2")
        e("s_add_u32 s3, s3, s62")
        e(f"s_mul_i32 s3, s3, {56*128}")
        e("v_lshlrev_b32 v32, 7, v0")
        e("buffer_load_dword v209, v32, s[28:31], s3 offen")
    e("s_cmp_eq_u32 s62, 1")
    e(f"s_cbranch_scc0 {k.L('notB1')}")
    e("s_lshl_b32 s3, s2, 11")
    e(f"s_add_u32 s3, s3, 0x{XID:x}")
    e("s_mov_b64 exec, 1")
    e(f"buffer_store_dwordx3 {vr(TAG,3)}, v207, s[32:35], s3 offen sc1")
    e("s_mov_b64 exec, -1")
    k.label("notB1")
    e("s_cmp_ge_u32 s62, 2")
    e(f"s_cbranch_scc1 {k.L('bfetch')}")
    fin_count("finB01")
    spin(FLAG + 56, "v_cmp_gt_u32 vcc, 2, v34", "waitG", sleep=2)
    k.stamp(4)
    for ch, ptr in (("n", 56), ("w", 58)):
        if ch in F: continue
        k.srd(16, ptr, ptr + 1, 1024*3584*2)
        e("s_lshl_b32 s30, s2, 1")
        e("s_add_u32 s30, s30, s62")
        e(f"s_mul_i32 s30, s30, {112*128}")
        e("v_lshlrev_b32 v6, 7, v0")
        e("v_add_u32 v7, 6144, v6")
        e("buffer_load_dword v210, v6, s[16:19], s30 offen")
        e("buffer_load_dword v211, v7, s[16:19], s30 offen")
    if STAMP: k.dump_stamps(0, 32, 60, keep=True)
    e("s_branch Lmlp_loader")
    k.label("bfetch")
    e("s_sub_u32 s11, s62, 2")
    e("s_lshl_b32 s12, s11, 13")
    poll(FX, "pollX")
    k.stamp(4)
    e("s_sub_u32 s13, s61, s62")
    e("s_lshl_b32 s13, s13, 12")
    e("s_add_u32 s13, s13, s12")
    for q in range(2):
        e(f"s_add_u32 m0, s12, {TILE + 4096*q}")
        e(f"s_add_u32 s14, s13, 0x{XT + 4096*q:x}")
        for p in range(4):
            e(f"buffer_load_dwordx4 v2, s[32:35], s14 offen offset:{1024*p} lds")
    e(f"s_add_u32 s13, s12, 0x{SG:x}")
    e("s_add_u32 s14, s13, 4096")
    e("s_mov_b32 s3, 0")
    for q in range(8):
        e(f"buffer_load_dwordx4 {vr(16+4*q,4)}, v2, s[32:35], s{13 + q//4} offen offset:{1024*(q%4)}")
    e(f"v_mov_b32 v200, {FLAG+56}")
    e("v_mov_b32 v201, 1")
    e("s_mov_b64 exec, 1")
    e("ds_add_u32 v200, v201")
    e("s_mov_b64 exec, -1")
    e(f"s_branch {k.L('pollS_c')}")
    k.label("pollS")
    for q in range(8):
        e(f"buffer_load_dwordx4 {vr(16+4*q,4)}, v2, s[32:35], s{13 + q//4} offen offset:{1024*(q%4)} sc1")
    k.label("pollS_c")
    e("s_add_u32 s3, s3, 1")
    e("s_cmp_gt_u32 s3, 0x40000")
    e(f"s_cbranch_scc1 {k.L('pollS_x')}")
    e("s_waitcnt vmcnt(0)")
    e("s_mov_b64 s[22:23], 0")
    for q in range(8):
        e(f"v_cmp_ne_u64 vcc, {vr(18+4*q,2)}, {vr(TAG,2)}")
        e("s_or_b64 s[22:23], s[22:23], vcc")
    e("s_cmp_lg_u64 s[22:23], 0")
    e(f"s_cbranch_scc0 {k.L('pollS_x')}")
    e("s_sleep 8")
    e(f"s_branch {k.L('pollS')}")
    k.label("pollS_x")
    e("s_waitcnt vmcnt(0)")
    k.stamp(6)
    e("s_lshl_b32 s13, s11, 12")
    e(f"s_add_u32 s13, s13, {STAT}")
    e("v_lshl_add_u32 v3, v0, 3, s13")
    e("s_mov_b32 s14, 0xffff0000")
    for q in range(8):
        g = 16 + 4*q
        e(f"v_and_b32 v{g+2}, s14, v{g}")
        e(f"v_and_b32 v{g+3}, s14, v{g+1}")
        e(f"v_lshlrev_b32 v{g}, 16, v{g}")
        e(f"v_lshlrev_b32 v{g+1}, 16, v{g+1}")
        e(f"v_rcp_f32 v{g+2}, v{g+2}")
        e(f"v_rcp_f32 v{g+3}, v{g+3}")
        e(f"ds_write_b64 v3, {vr(g,2)} offset:{512*q}")
        e(f"ds_write_b64 v3, {vr(g+2,2)} offset:{512*q+8192}")
    e("s_lshl_b32 s12, s11, 2")
    e(f"s_add_u32 s12, s12, {FLAG+16}")
    e("v_mov_b32 v4, s12")
    e("v_mov_b32 v5, 1")
    e("s_waitcnt vmcnt(0) lgkmcnt(0)")
    e("ds_write_b32 v4, v5")
    k.stamp(5)
    k.label("bdone")
    if STAMP: k.dump_stamps(0, 32, 60, keep=True)
    finish("finB", "Lmlp_loader")
    k.label("end")
    e("s_endpgm")
```

```python
from asmlib import *
from layout import *
from k0 import ln_stats
from kf import FLAG as FRONT_FLAG
import os
X = os.environ.get('MX', 'wt')
FSLEEP = int(os.environ.get('FSLEEP', '4'))
NT2 = ' nt' if 'n' in X else ''
TR = 1 if 't' in X else 0
HSC = '' if 's' in X else ' sc1'
WBAT = int(os.environ.get('WBAT', '16'))
RW = int(os.environ.get('K4RW', '4'))

STG1 = 45056; WOFF = 16384; NB1 = 3
STG2 = 32768; NB2 = 4; RES = NB2 * STG2; NST2 = 28
STATS = 151552
CSL = STATS + 1024
MISC = CSL + 1024
NCS = 4

def weave(e, ms, fill, waits=None, mid=None, sched=None):
    fill = list(fill)
    for i, m in enumerate(ms):
        if mid and i == mid[0]:
            for t in mid[1]: e(t)
        if waits and i in waits: e(waits[i])
        e(m)
        for _ in range(sched[i] if i < len(sched) else 0):
            if fill: e(fill.pop(0))
    assert not fill, fill

def emit_mlp(k):
    e = k.e
    k.pfx = "m_"
    def entry():
        e("s_load_dwordx4 s[4:7], s[0:1], 56")
        e("s_load_dwordx2 s[8:9], s[0:1], 88")
        e("s_load_dwordx2 s[56:57], s[0:1], 72")
        e("s_mov_b32 s10, s60")
        e("s_mov_b32 s55, s38")
        e("s_and_b32 s11, s2, 7")
        e("s_lshr_b32 s12, s2, 3")
        e("s_lshr_b32 s13, s11, 1")
        e("s_lshl_b32 s13, s13, 2")
        e("s_and_b32 s14, s12, 3")
        e("s_add_u32 s13, s13, s14")
        e("s_and_b32 s15, s11, 1")
        e("s_lshr_b32 s53, s12, 2")
        e("s_lshl_b32 s14, s15, 3")
        e("s_add_u32 s14, s14, s53")
        e("v_lshrrev_b32 v2, 4, v0")
    k.lines.append("Lmlp_compute:")
    k.role = "A"
    k.stamp(0)
    entry()
    def trcommon():
        e("v_bfe_u32 v3, v0, 2, 2")
        e("v_and_b32 v4, 3, v0")
        e("v_and_b32 v5, 1, v2")
        e("v_lshl_or_b32 v6, v5, 2, v3")
        e("v_lshl_add_u32 v7, v2, 3, v3")
        e("v_lshlrev_b32 v8, 8, v7")
        e("v_lshl_add_u32 v8, v4, 3, v8")

    trcommon()
    ACC = 16; FW = [128, 172]; FH = [156, 200]
    AH = [1, 2, 3, 4]; AW = [9, 10, 11]
    e("s_and_b32 s24, s10, 1")
    e("s_lshr_b32 s25, s10, 1")
    e("v_mul_u32_u24 v12, 448, v7")
    e("v_lshl_add_u32 v12, v4, 3, v12")
    e(f"v_add_u32 v12, {WOFF + 2*STG1}, v12")
    e(f"v_add_u32 v8, {2*STG1}, v8")
    e("v_lshl_add_u32 v13, v5, 5, v12")
    e("v_xor_b32 v14, 1, v5")
    e("v_lshl_add_u32 v14, v14, 5, v12")
    e("s_lshl_b32 s26, s25, 8")
    e("v_add_u32 v9, s26, v13")
    e("v_add_u32 v10, s26, v14")
    e("s_cmp_eq_u32 s25, 0")
    e("s_cselect_b64 vcc, -1, 0")
    e("v_cndmask_b32 v11, v14, v13, vcc")
    e("v_add_u32 v11, 192, v11")
    e("v_mov_b32 v15, v2")
    e("s_lshl_b32 s26, s24, 2")
    for j in range(4):
        e(f"s_add_u32 s27, s26, {j}")
        e(f"v_xor_b32 v12, s27, v6")
        e(f"v_lshl_add_u32 v{AH[j]}, v12, 5, v8")
    for i in range(112):
        e(f"v_mov_b32 v{ACC+i}, 0")
    e("s_waitcnt lgkmcnt(0)")
    k.srd(20, 8, 9, WS_BYTES)
    k.srd(44, 56, 57, 4*MB)
    def reads1(st, step):
        r = []
        for j in range(4):
            for h in range(2):
                r.append(f"ds_read_b64_tr_b16 {vr(FH[st]+4*j+2*h,2)}, v{AH[j]} offset:{8192*step+1024*h}")
        for i in range(7):
            a, o = (AW[i % 2], 64*(i//2)) if i < 6 else (AW[2], 0)
            for h in range(2):
                r.append(f"ds_read_b64_tr_b16 {vr(FW[st]+4*i+2*h,2)}, v{a} offset:{14336*step+1792*h+o}")
        return r
    def mfmas1(st):
        return [f"v_mfma_f32_16x16x32_bf16 {vr(ACC+4*(4*i+j),4)}, {vr(FW[st]+4*i,4)}, {vr(FH[st]+4*j,4)}, {vr(ACC+4*(4*i+j),4)}"
                for i in range(7) for j in range(4)]
    e("s_mov_b32 s28, 0")
    e("s_mov_b32 s29, 2")
    e("s_barrier")
    k.stamp(1)
    for r in reads1(0, 0): e(r)
    k.label("c1loop")
    sal = ["s_add_u32 s29, s29, 1", f"s_mov_b32 s30, {STG1}", "s_cmp_eq_u32 s29, 3", f"s_cselect_b32 s30, {-2*STG1}, s30",
           "s_cselect_b32 s29, 0, s29", "s_add_u32 s28, s28, 1"]
    weave(e, mfmas1(0), reads1(1, 1) + sal, waits={4*i: f"s_waitcnt lgkmcnt({min(15, 12+2*i)})" for i in range(7)}, sched=[1]*28)
    weave(e, mfmas1(1), [f"v_add_u32 v{a}, s30, v{a}" for a in AH + AW] + reads1(0, 0) + ["s_cmp_lt_u32 s28, 16"],
          waits={0: "s_waitcnt lgkmcnt(12)"}, mid=(4, ["s_waitcnt lgkmcnt(0)", "s_barrier"]), sched=[0]*4 + [2]*6 + [1]*18)
    e(f"s_cbranch_scc1 {k.L('c1loop')}")
    k.stamp(2)
    e("v_and_b32 v1, 15, v0")
    e("s_lshl_b32 s26, s24, 9")
    e(f"s_add_u32 s26, s26, {STATS}")
    e("v_lshl_add_u32 v1, v1, 3, s26")
    e("s_lshl_b32 s26, s25, 9")
    e(f"s_add_u32 s26, s26, {CSL}")
    e("v_lshl_add_u32 v2, v15, 4, s26")
    e("s_mul_i32 s26, s25, 64")
    e(f"s_add_u32 s26, s26, {CSL+384}")
    e("v_lshl_add_u32 v3, v15, 4, s26")
    e(f"v_mov_b32 v6, {MISC}")
    e("s_waitcnt lgkmcnt(0)")
    MR = 128; C2 = 136; CSV = 144
    e("ds_read_b32 v7, v6 offset:4")
    for j in range(4):
        e(f"ds_read_b64 {vr(MR+2*j,2)}, v1 offset:{128*j}")
    for i in range(7):
        e(f"ds_read_b128 {vr(CSV+4*i,4)}, v{2 if i < 6 else 3} offset:{64*i if i < 6 else 0}")
    e("s_lshl_b32 s26, s25, 12")
    e("v_lshl_add_u32 v4, v0, 4, s26")
    e("s_lshl_b32 s26, s25, 3")
    e("s_add_u32 s26, s26, 3072")
    e("v_lshl_add_u32 v5, v0, 4, s26")
    e("s_lshl_b32 s26, s13, 3")
    e("s_lshl_b32 s27, s24, 2")
    e("s_add_u32 s26, s26, s27")
    e("s_mul_i32 s26, s26, 112")
    e("s_mul_i32 s27, s14, 7")
    e("s_add_u32 s26, s26, s27")
    e("s_lshl_b32 s26, s26, 10")
    e(f"s_add_u32 s32, s26, 0x{HM:x}")
    for j in range(1, 4):
        e(f"s_add_u32 s{32+j}, s32, {112*1024*j}")
    e("s_waitcnt lgkmcnt(0)")
    e("v_readfirstlane_b32 s54, v7")
    for j in range(4):
        e(f"v_mul_f32 v{C2+2*j}, 0xbfb8aa3b, v{MR+2*j+1}")
    e("s_and_b32 s26, s53, 1")
    e("s_lshl_b32 s27, s25, 2")
    e("s_sub_u32 s27, s27, s26")
    for n in range(4):
        if n < 3: e(f"s_add_u32 s60, s27, {n}")
        else:     e("s_sub_u32 s60, 3, s26")
        e("s_lshr_b32 s61, s60, 1")
        e("s_lshl_b32 s61, s61, 15")
        e("s_and_b32 s62, s60, 1")
        e("s_lshl_b32 s62, s62, 10")
        e("s_add_u32 s61, s61, s62")
        e("s_cmp_lt_u32 s60, 6")
        e(f"s_cselect_b32 s61, s61, {3*STG2}")
        e("s_lshl_b32 s62, s24, 13")
        e("s_add_u32 s61, s61, s62")
        if n == 3:
            e("s_lshl_b32 s62, s25, 3")
            e("s_add_u32 s61, s61, s62")
        e(f"v_lshl_add_u32 v{8+n}, v0, 4, s61")
    e("s_mov_b32 s58, 0xbfb8aa3b")
    e("s_mov_b32 s59, 0xbfb8aa3b")
    e("s_cmp_eq_u32 s54, 1")
    nsite = [0]
    def store2(ops):
        n = nsite[0]; nsite[0] += 1
        e(f"s_cbranch_scc1 {k.L(f'pl{n}')}")
        for o in ops: e(o + " sc1")
        e(f"s_branch {k.L(f'st{n}')}")
        k.label(f"pl{n}")
        for o in ops: e(o)
        k.label(f"st{n}")
    T = 172
    def elem8(tiles, out):
        P = T; Xr = T + 8
        def each(f):
            for n, (i, j) in enumerate(tiles):
                for h in range(2):
                    e(f(ACC + 4*(4*i+j) + 2*h, CSV + 4*i + 2*h, j, P + 4*n + 2*h, Xr + 4*n + 2*h))
        each(lambda a, c, j, p, x: f"v_pk_fma_f32 {vr(a,2)}, {vr(c,2)}, {vr(MR+2*j,2)}, {vr(a,2)} op_sel_hi:[1,0,1] neg_lo:[0,1,0] neg_hi:[0,1,0]")
        each(lambda a, c, j, p, x: f"v_pk_mul_f32 {vr(p,2)}, {vr(a,2)}, {vr(C2+2*j,2)} op_sel_hi:[1,0]")
        for q in range(8): e(f"v_exp_f32 v{Xr+q}, v{P+q}")
        each(lambda a, c, j, p, x: f"v_pk_fma_f32 {vr(x,2)}, {vr(x,2)}, s[58:59], s[58:59]")
        for q in range(8): e(f"v_rcp_f32 v{Xr+q}, v{Xr+q}")
        each(lambda a, c, j, p, x: f"v_pk_mul_f32 {vr(p,2)}, {vr(p,2)}, {vr(x,2)}")
        for q in range(4): e(f"v_cvt_pk_bf16_f32 v{out+q}, v{P+2*q}, v{P+2*q+1}")
    n = 0
    for j in range(4):
        for pr in range(3):
            o = 192 + 4*(n % 4); n += 1
            elem8([(2*pr, j), (2*pr+1, j)], o)
            e(f"ds_write_b128 v{8+pr}, {vr(o,4)} offset:{2048*j}")
            store2([f"buffer_store_dwordx4 {vr(o,4)}, v4, s[20:23], s{32+j} offen offset:{1024*pr}"])
        if j % 2 == 1:
            o = 192 + 4*(n % 4); n += 1
            elem8([(6, j-1), (6, j)], o)
            e(f"ds_write_b64 v11, {vr(o,2)} offset:{2048*(j-1)}")
            e(f"ds_write_b64 v11, {vr(o+2,2)} offset:{2048*j}")
            store2([f"buffer_store_dwordx2 {vr(o,2)}, v5, s[20:23], s{32+j-1} offen",
                    f"buffer_store_dwordx2 {vr(o+2,2)}, v5, s[20:23], s{32+j} offen"])
    k.stamp(3)

    NS = 4
    F0 = ACC + 64
    GW = [F0, F0 + 32]; GH = [F0 + 16, F0 + 48]
    BW = [8, 9, 10, 11]; BH = 12
    e("v_mov_b32 v2, v15")
    e("v_bfe_u32 v3, v0, 2, 2")
    e("v_and_b32 v4, 3, v0")
    e("v_lshl_add_u32 v7, v2, 2, v3")
    e("v_and_b32 v5, 7, v7")
    e("v_lshlrev_b32 v13, 8, v7")
    e("v_lshl_add_u32 v13, v4, 3, v13")
    e(f"v_add_u32 v13, {WOFF}, v13")
    e("s_lshl_b32 s26, s25, 2")
    for i in range(4):
        e(f"s_add_u32 s27, s26, {i}")
        e(f"v_xor_b32 v14, s27, v5")
        e(f"v_lshl_add_u32 v{BW[i]}, v14, 5, v13")
    e("s_lshl_b32 s26, s24, 12")
    e(f"v_lshl_add_u32 v{BH}, v0, 4, s26")
    for i in range(64):
        e(f"v_mov_b32 v{ACC+i}, 0")
    e("v_mov_b32 v13, 1")
    e("s_lshl_b32 s26, s2, 11")
    e(f"s_add_u32 s26, s26, 0x{HFL:x}")
    e("v_mov_b32 v14, 0")
    e("v_mov_b32 v216, s98")
    e("v_mov_b32 v217, s99")
    e("s_waitcnt vmcnt(0)")
    e("s_mov_b64 exec, 1")
    e("ds_add_rtn_u32 v1, v6, v13")
    e("s_waitcnt lgkmcnt(0)")
    e("v_readfirstlane_b32 s27, v1")
    e("s_cmp_eq_u32 s27, 3")
    e(f"s_cbranch_scc0 {k.L('noflag')}")
    e("s_cmp_eq_u32 s54, 1")
    store2(["buffer_store_dwordx2 v[216:217], v14, s[20:23], s26 offen"])
    k.label("noflag")
    e("s_mov_b64 exec, -1")
    e("v_bfe_u32 v6, v7, 1, 2")
    def hoff(j): return 2048*(j % 2) + 8192*(j // 2)
    def reads2(st, step):
        r = []
        for j in range(NS):
            r.append(f"ds_read_b128 {vr(GH[st]+4*j,4)}, v{BH} offset:{hoff(j)+1024*step}")
        for i in range(4):
            for h in range(2):
                r.append(f"ds_read_b64_tr_b16 {vr(GW[st]+4*i+2*h,2)}, v{BW[i]} offset:{8192*step+4096*h}")
        return r
    def mfmas2(st):
        return [f"v_mfma_f32_16x16x32_bf16 {vr(ACC+4*(NS*i+j),4)}, {vr(GW[st]+4*i,4)}, {vr(GH[st]+4*j,4)}, {vr(ACC+4*(NS*i+j),4)}"
                for i in range(4) for j in range(NS)]
    e("s_mov_b32 s28, 0")
    e("s_mov_b32 s29, 0")
    e("s_add_u32 s61, s12, s10")
    e("s_cmp_eq_u32 s61, 0")
    e(f"s_cselect_b32 s61, {WBAT}, 99")
    e("s_barrier")
    k.stamp(4)
    for r in reads2(0, 0): e(r)
    k.label("c2loop")
    sal = ["s_add_u32 s29, s29, 1", f"s_mov_b32 s30, {STG2}", f"s_cmp_eq_u32 s29, {NB2}", f"s_cselect_b32 s30, {-(NB2-1)*STG2}, s30",
           "s_cselect_b32 s29, 0, s29", "s_add_u32 s28, s28, 1"]
    weave(e, mfmas2(0), reads2(1, 1) + sal,
          waits={0: "s_waitcnt lgkmcnt(6)", 4: "s_waitcnt lgkmcnt(12)", 8: "s_waitcnt lgkmcnt(14)", 12: "s_waitcnt lgkmcnt(12)"},
          sched=[2]*6 + [1]*6)
    weave(e, mfmas2(1), [f"v_add_u32 v{a}, s30, v{a}" for a in [BH] + BW] + reads2(0, 0) + [f"s_cmp_lt_u32 s28, {NST2}"],
          waits={0: "s_waitcnt lgkmcnt(6)"}, mid=(4, ["s_waitcnt lgkmcnt(0)", "s_barrier"]), sched=[0]*4 + [2]*6 + [1]*6)
    if 'b' in X:
        e(f"s_cbranch_scc0 {k.L('c2done')}")
        e(f"s_cmp_eq_u32 s28, s61")
        e(f"s_cbranch_scc0 {k.L('c2loop')}")
        e("buffer_wbl2 sc1")
        e(f"s_branch {k.L('c2loop')}")
        k.label("c2done")
    else:
        e(f"s_cbranch_scc1 {k.L('c2loop')}")
    k.stamp(5)
    T = F0
    e("s_lshl_b32 s26, s2, 2")
    e("s_add_u32 s26, s26, s10")
    e("s_xor_b32 s27, s26, 4")
    e("s_lshl_b32 s31, s26, 12")
    e(f"s_add_u32 s31, s31, 0x{PART:x}")
    e("s_lshl_b32 s32, s27, 12")
    e(f"s_add_u32 s32, s32, 0x{PART:x}")
    e("s_lshl_b32 s35, s2, 11")
    e("s_lshl_b32 s36, s10, 7")
    e("s_add_u32 s35, s35, s36")
    e(f"s_add_u32 s35, s35, 0x{FLG:x}")
    e("s_xor_b32 s36, s35, 0x800")
    e("v_lshlrev_b32 v14, 4, v0")
    e("s_cmp_eq_u32 s15, 0")
    e(f"s_cbranch_scc1 {k.L('send_hi')}")
    for own in (1, 0):
        if own == 0: k.label("send_hi")
        for i in range(4):
            a0 = ACC + 4*(NS*i + 2*(1-own)); o = T + 48 + 4*i
            for q in range(4):
                e(f"v_cvt_pk_bf16_f32 v{o+q}, v{a0+2*q}, v{a0+2*q+1}")
            e(f"buffer_store_dwordx4 {vr(o,4)}, v14, s[20:23], s31 offen offset:{1024*i} sc1")
        if own == 1:
            for i in range(4):
                for q in range(8):
                    e(f"v_mov_b32 v{ACC+4*NS*i+q}, v{ACC+4*NS*i+8+q}")
            e(f"s_branch {k.L('sent')}")
    k.label("sent")
    e("v_lshlrev_b32 v13, 7, v7")
    e("v_lshl_add_u32 v13, v4, 3, v13")
    e("s_lshl_b32 s26, s25, 13")
    e(f"s_add_u32 s26, s26, {RES}")
    e("v_add_u32 v13, s26, v13")
    e("s_lshl_b32 s26, s24, 1")
    for j in range(2):
        e(f"s_add_u32 s27, s26, {j}")
        e(f"v_xor_b32 v15, s27, v6")
        e(f"v_lshl_add_u32 v{8+j}, v15, 5, v13")
    e("s_waitcnt lgkmcnt(0)")
    HR = T
    for i in range(4):
        for j in range(2):
            e(f"ds_read_b64_tr_b16 {vr(HR+2*(2*i+j),2)}, v{8+j} offset:{2048*i}")
    e("v_and_b32 v10, 15, v0")
    e("v_lshrrev_b32 v11, 1, v2")
    e("v_and_b32 v12, 7, v10")
    e("v_xor_b32 v11, v11, v12")
    e("v_lshlrev_b32 v11, 4, v11")
    e("v_lshl_add_u32 v11, v10, 7, v11")
    e("v_and_b32 v12, 1, v2")
    e("v_lshl_add_u32 v11, v12, 3, v11")
    e("s_lshl_b32 s26, s10, 12")
    e("v_add_u32 v3, s26, v11")
    e("v_xor_b32 v4, 32, v3")
    e("v_xor_b32 v5, 64, v3")
    e("v_xor_b32 v6, 96, v3")
    e("v_lshrrev_b32 v10, 3, v0")
    e("v_and_b32 v11, 7, v0")
    e("v_xor_b32 v12, v11, v10")
    e("v_lshlrev_b32 v12, 4, v12")
    e("v_lshl_add_u32 v12, v10, 7, v12")
    e("v_add_u32 v7, s26, v12")
    e("v_lshlrev_b32 v10, 11, v10")
    e("v_lshl_add_u32 v10, v11, 4, v10")
    e("s_lshl_b32 s26, s13, 7")
    e("s_lshl_b32 s27, s24, 5")
    e("s_add_u32 s26, s26, s27")
    e("s_lshl_b32 s27, s15, 6")
    e("s_add_u32 s26, s26, s27")
    e("s_lshl_b32 s26, s26, 11")
    e("s_lshl_b32 s27, s53, 8")
    e("s_add_u32 s26, s26, s27")
    e("s_lshl_b32 s27, s25, 7")
    e("s_add_u32 s48, s26, s27")
    for q in range(1, 4):
        e(f"s_add_u32 s{48+q}, s48, {q*8*2048}")
    PR = T + 16; U = PR + 16
    e("s_mov_b32 s37, 0xffff0000")
    e("s_waitcnt lgkmcnt(0)")
    for i in range(4):
        for j in range(2):
            n = 2*i + j; a = ACC + 4*(NS*i + j); u = U + 4*(n % 2)
            e(f"v_lshlrev_b32 v{u}, 16, v{HR+2*n}")
            e(f"v_and_b32 v{u+1}, s37, v{HR+2*n}")
            e(f"v_lshlrev_b32 v{u+2}, 16, v{HR+2*n+1}")
            e(f"v_and_b32 v{u+3}, s37, v{HR+2*n+1}")
            for h in range(2):
                e(f"v_pk_add_f32 {vr(a+2*h,2)}, {vr(a+2*h,2)}, {vr(u+2*h,2)}")
    e("v_mov_b32 v15, 0")
    e("s_waitcnt vmcnt(0)")
    e("s_mov_b64 exec, 1")
    e("buffer_store_dwordx2 v[216:217], v15, s[20:23], s35 offen sc1")
    e("s_mov_b32 s38, 0")
    k.label("poll")
    e("buffer_load_dwordx2 v[218:219], v15, s[20:23], s36 offen sc1")
    e("s_add_u32 s38, s38, 1")
    e("s_cmp_gt_u32 s38, 0x200000")
    e(f"s_cbranch_scc1 {k.L('polled')}")
    e("s_waitcnt vmcnt(0)")
    e("v_cmp_ne_u64 vcc, v[218:219], v[216:217]")
    e(f"s_cbranch_vccnz {k.L('poll')}")
    k.label("polled")
    k.stamp(6)
    e("s_mov_b64 exec, -1")
    for i in range(4):
        e(f"buffer_load_dwordx4 {vr(PR+4*i,4)}, v14, s[20:23], s32 offen offset:{1024*i} sc1")
    for i in range(4):
        for j in range(2):
            n = 2*i + j; a = ACC + 4*(NS*i + j); u = U + 4*(n % 2)
            if j == 0: e(f"s_waitcnt vmcnt({3-i})")
            e(f"v_lshlrev_b32 v{u}, 16, v{PR+2*n}")
            e(f"v_and_b32 v{u+1}, s37, v{PR+2*n}")
            e(f"v_lshlrev_b32 v{u+2}, 16, v{PR+2*n+1}")
            e(f"v_and_b32 v{u+3}, s37, v{PR+2*n+1}")
            for h in range(2):
                e(f"v_pk_add_f32 {vr(a+2*h,2)}, {vr(a+2*h,2)}, {vr(u+2*h,2)}")
            e(f"v_cvt_pk_bf16_f32 v{HR+2*n}, v{a}, v{a+1}")
            e(f"v_cvt_pk_bf16_f32 v{HR+2*n+1}, v{a+2}, v{a+3}")
            e(f"ds_write_b64 v{3+i}, {vr(HR+2*n,2)} offset:{2048*j}")
    e("s_waitcnt lgkmcnt(0)")
    for q in range(4):
        e(f"ds_read_b128 {vr(PR+4*q,4)}, v7 offset:{1024*q}")
    for q in range(4):
        e(f"s_waitcnt lgkmcnt({3-q})")
        e(f"buffer_store_dwordx4 {vr(PR+4*q,4)}, v10, s[44:47], s{48+q} offen")
    if STAMP:
        e("s_waitcnt vmcnt(0)")
        k.dump_stamps(1, 20, 10)
    k.dbg_out()
    e("s_endpgm")

    k.lines.append("Lmlp_loader:")
    k.role = "B"
    k.stamp(0)
    entry()
    e("v_mov_b32 v216, s98")
    e("v_mov_b32 v217, s99")
    e("s_sub_u32 s24, s10, 4")
    VH = 16; VW = 20
    e("s_lshl_b32 s47, s24, 16")
    e("s_lshl_b32 s26, s13, 8")
    e("s_add_u32 s47, s47, s26")
    e(f"s_add_u32 s47, s47, 0x{HT:x}")
    e(f"s_mul_i32 s48, s24, {16*7168}")
    e("s_mul_i32 s27, s14, 448")
    e("s_add_u32 s48, s48, s27")
    e("s_add_u32 s36, s14, s13")
    e("s_and_b32 s36, s36, 15")
    e("s_mov_b32 s49, 0")
    e("s_lshl_b32 s25, s36, 18")
    e("s_add_u32 s25, s25, s47")
    e(f"s_mul_i32 s26, s36, {64*7168}")
    e("s_add_u32 s26, s26, s48")
    e("s_lshl_b32 s27, s24, 12")
    e("s_mul_i32 s28, s24, 7168")
    e(f"s_add_u32 s28, s28, {WOFF}")
    e("v_bfe_u32 v9, v0, 1, 3")
    e("v_and_b32 v10, 1, v0")
    e("v_lshlrev_b32 v10, 4, v10")
    e("v_lshl_add_u32 v10, v2, 12, v10")
    e("v_xor_b32 v9, v9, v2")
    for pp in range(4):
        if pp == 2: e("v_xor_b32 v9, 4, v9")
        e(f"v_lshl_add_u32 v{VH+pp}, v9, 5, v10")
        if pp: e(f"v_add_u32 v{VH+pp}, {pp*(16384-1024)}, v{VH+pp}")
    def wpat(q):
        e(f"v_add_u32 v9, {64*q}, v0")
        e("v_mul_u32_u24 v10, 9363, v9")
        e("v_lshrrev_b32 v10, 18, v10")
        e("v_mul_u32_u24 v11, 28, v10")
        e("v_sub_u32 v11, v9, v11")
        e("v_lshrrev_b32 v12, 2, v10")
        e("v_and_b32 v12, 2, v12")
        e("v_xor_b32 v11, v11, v12")
        e("v_mul_u32_u24 v12, 7168, v10")
        e("v_lshl_add_u32 v12, v11, 4, v12")
        e(f"v_add_u32 v{VW+q}, {-1024*(q%4)}, v12")
    for q in range(7): wpat(q)
    e("s_waitcnt lgkmcnt(0)")
    k.srd(20, 8, 9, WS_BYTES)
    k.srd(16, 4, 5, 1024*3584*2)
    def advance():
        e("s_add_u32 s49, s49, 1")
        e("s_add_u32 s37, s36, 1")
        e("s_and_b32 s37, s37, 3")
        e("s_and_b32 s36, s36, 12")
        e("s_or_b32 s36, s36, s37")
        e("s_and_b32 s37, s49, 3")
        e("s_cmp_eq_u32 s37, 0")
        e("s_cselect_b32 s37, 4, 0")
        e("s_add_u32 s36, s36, s37")
        e("s_and_b32 s36, s36, 15")
        e("s_lshl_b32 s25, s36, 18")
        e("s_add_u32 s25, s25, s47")
        e(f"s_mul_i32 s26, s36, {64*7168}")
        e("s_add_u32 s26, s26, s48")
    def hpart(so, m0):
        e(m0); e("s_nop 0")
        for pp in range(4):
            e(f"buffer_load_dwordx4 v{VH+pp}, s[20:23], {so} offen offset:{1024*pp}{HSC} lds")
    def wpart(buf, pol=""):
        e(f"s_add_u32 m0, s28, {buf}"); e("s_nop 0")
        for q in range(7):
            if q == 4: e(f"s_add_u32 m0, s28, {buf+4096}"); e("s_nop 0")
            e(f"buffer_load_dwordx4 v{VW+q}, s[16:19], s26 offen offset:{1024*(q%4)}{pol} lds")
    e("s_cmp_ge_u32 s24, 2")
    e(f"s_cbranch_scc1 {k.L('now0')}")
    wpart(2*STG1, " nt" if 'N' in X else "")
    e(f"s_add_u32 s26, s26, {32*7168}")
    wpart(2*STG1 + 2*7168, " nt" if 'N' in X else "")
    k.label("now0")
    e("s_mov_b32 s50, s25")
    e("s_mov_b32 s62, s36")
    advance()
    e("v_lshrrev_b32 v9, 3, v0")
    e("v_lshlrev_b32 v9, 11, v9")
    e("v_bfe_u32 v10, v0, 2, 1")
    e("v_lshl_add_u32 v9, v10, 18, v9")
    e("v_and_b32 v10, 3, v0")
    e("v_lshl_add_u32 v38, v10, 14, v9")
    e("s_lshl_b32 s52, s24, 16")
    e(f"s_add_u32 s52, s52, 0x{FHT:x}")
    e("s_mov_b64 s[58:59], 0")
    e("s_mov_b32 s39, 0")
    e(f"v_mov_b32 v35, {FRONT_FLAG+52}")
    k.label("waitF")
    e("s_sleep 1")
    e("ds_read_b32 v34, v35")
    e("s_waitcnt lgkmcnt(0)")
    e("v_cmp_gt_u32 vcc, 8, v34")
    e(f"s_cbranch_vccnz {k.L('waitF')}")
    nneed = [0]
    def need(stage):
        n = nneed[0]; nneed[0] += 1
        k.label(f"need{n}")
        e(f"s_lshl_b32 s60, {stage}, 2")
        e("s_lshr_b64 s[60:61], s[58:59], s60")
        e("s_and_b32 s60, s60, 15")
        e("s_cmp_eq_u32 s60, 15")
        e(f"s_cbranch_scc1 {k.L(f'have{n}')}")
        e("buffer_load_dwordx2 v[100:101], v38, s[20:23], s52 offen sc1")
        e("s_add_u32 s39, s39, 1")
        e("s_cmp_gt_u32 s39, 0x100000")
        e(f"s_cbranch_scc1 {k.L(f'have{n}')}")
        e("s_waitcnt vmcnt(0)")
        e("v_cmp_eq_u64 s[58:59], v[100:101], v[216:217]")
        e(f"s_branch {k.L(f'need{n}')}")
        k.label(f"have{n}")
    need("s62")
    k.stamp(5)
    k.note("s39", 17)
    hpart("s50", f"s_add_u32 m0, s27, {2*STG1}")
    wpart(0, " nt" if 'M' in X else "")
    e("s_waitcnt vmcnt(7)")
    e("s_barrier")
    need("s36")
    hpart("s25", "s_mov_b32 m0, s27")
    advance()
    e(f"s_mov_b32 s29, {STG1}")
    k.srd(40, 6, 7, 1024*3584*2)
    e("s_lshl_b32 s63, s2, 2")
    e("s_add_u32 s63, s63, s24")
    e(f"s_mul_i32 s63, s63, {56*128}")
    if 'h' in X: e(f"s_add_u32 s63, s63, {28*128}")
    e("v_lshlrev_b32 v39, 7, v0")
    if 'S' in X:
        e(f"s_min_u32 s63, s63, {1024*3584*2 - 13*576}")
        e("s_add_u32 s64, s6, s63")
        e("s_addc_u32 s65, s7, 0")
    def issue1():
        need("s36")
        e("s_add_u32 m0, s27, s29")
        e("s_add_u32 s30, s28, s29")
        for pp in range(4):
            e(f"buffer_load_dwordx4 v{VH+pp}, s[20:23], s25 offen offset:{1024*pp}{HSC} lds")
        e("s_mov_b32 m0, s30")
        e("s_nop 0")
        for q in range(4):
            e(f"buffer_load_dwordx4 v{VW+q}, s[16:19], s26 offen offset:{1024*q} lds")
        e("s_add_u32 m0, s30, 4096")
        e(f"s_add_u32 s29, s29, {STG1}")
        for q in range(4, 7):
            e(f"buffer_load_dwordx4 v{VW+q}, s[16:19], s26 offen offset:{1024*(q-4)} lds")
        if TR:
            e(f"s_mov_b64 exec, {'0x7' if 'h' in X else '0x1f'}")
            e("buffer_load_dword v210, v39, s[40:43], s63 offen")
            e("s_mov_b64 exec, -1")
            e(f"s_add_u32 s63, s63, {384 if 'h' in X else 640}")
        e(f"s_cmp_eq_u32 s29, {NB1*STG1}")
        e("s_cselect_b32 s29, 0, s29")
        advance()
        if 'S' in X:
            for q in range(9):
                e(f"s_load_dword s3, s[64:65], {64*q}")
            e("s_add_u32 s64, s64, 576")
            e("s_addc_u32 s65, s65, 0")
    k.stamp(1)
    issue1()
    trcommon()
    e("s_lshl_b32 s31, s24, 1")
    e("v_xor_b32 v12, s31, v6")
    e("v_lshl_add_u32 v36, v12, 5, v8")
    e(f"v_add_u32 v36, {2*STG1}, v36")
    e("v_xor_b32 v37, 32, v36")
    S = [40, 42]; Q = [44, 46]
    for r in range(40, 48): e(f"v_mov_b32 v{r}, 0")
    e("s_mov_b32 s33, 0xffff0000")
    D = 48; U = 64
    for t in range(2):
        for st in range(2):
            for h in range(2):
                e(f"ds_read_b64_tr_b16 {vr(D+8*t+4*st+2*h,2)}, v{36+t} offset:{8192*st+1024*h}")
    e("s_waitcnt lgkmcnt(0)")
    for j in range(8):
        for t in range(2):
            u = U + 2*t
            e(f"v_lshlrev_b32 v{u}, 16, v{D+8*t+j}")
            e(f"v_and_b32 v{u+1}, s33, v{D+8*t+j}")
        for t in range(2):
            u = U + 2*t
            for q in range(2):
                e(f"v_add_f32 v{S[t]+q}, v{S[t]+q}, v{u+q}")
                e(f"v_fmac_f32 v{Q[t]+q}, v{u+q}, v{u+q}")
    def greduce(regs):
        for op in ("v_permlane32_swap_b32", "v_permlane16_swap_b32"):
            for i, r in enumerate(regs): e(f"v_mov_b32 v{D+i}, v{r}")
            e("s_nop 1")
            for i, r in enumerate(regs): e(f"{op} v{r}, v{D+i}")
            e("s_nop 1")
            for i, r in enumerate(regs): e(f"v_add_f32 v{r}, v{r}, v{D+i}")
    for r in S + Q: e(f"v_add_f32 v{r}, v{r}, v{r+1}")
    greduce(S + Q)
    e("v_cmp_gt_u32 vcc, 16, v0")
    e("s_lshl_b32 s31, s13, 15")
    e("s_lshl_b32 s32, s24, 9")
    e("s_add_u32 s31, s31, s32")
    e(f"s_add_u32 s31, s31, 0x{SP2:x}")
    e("s_lshl_b32 s32, s14, 11")
    e("s_add_u32 s32, s32, s31")
    e(f"v_cndmask_b32 v214, v{S[1]}, v{S[0]}, vcc")
    e(f"v_cndmask_b32 v215, v{Q[1]}, v{Q[0]}, vcc")
    e("v_lshlrev_b32 v9, 4, v0")
    e("s_mov_b64 exec, 0xffffffff")
    e("buffer_store_dwordx4 v[214:217], v9, s[20:23], s32 offen sc1")
    e("s_mov_b64 exec, -1")
    e("v_mul_u32_u24 v12, 448, v7")
    e("v_lshl_add_u32 v12, v4, 3, v12")
    e("s_lshl_b32 s32, s24, 7")
    e(f"s_add_u32 s32, s32, {WOFF + 2*STG1}")
    e("v_add_u32 v12, s32, v12")
    e("v_lshl_add_u32 v13, v5, 5, v12")
    e("v_xor_b32 v14, 1, v5")
    e("v_lshl_add_u32 v14, v14, 5, v12")
    CW = 68
    for t in range(4):
        for st in range(2):
            for h in range(2):
                e(f"ds_read_b64_tr_b16 {vr(CW+8*t+4*st+2*h,2)}, v{13 + t%2} offset:{14336*st+1792*h+64*(t//2)}")
        if t == 2: e("s_waitcnt lgkmcnt(8)")
    for r in range(40, 48): e(f"v_mov_b32 v{r}, 0")
    e("s_waitcnt lgkmcnt(0)")
    for j in range(8):
        for t in range(4):
            e(f"v_lshlrev_b32 v{U}, 16, v{CW+8*t+j}")
            e(f"v_and_b32 v{U+1}, s33, v{CW+8*t+j}")
            e(f"v_add_f32 v{40+t}, v{40+t}, v{U}")
            e(f"v_add_f32 v{44+t}, v{44+t}, v{U+1}")
    for t in range(4): e(f"v_add_f32 v{40+t}, v{40+t}, v{44+t}")
    greduce([40, 41, 42, 43])
    e("v_cmp_gt_u32 vcc, 16, v0")
    e("s_lshl_b32 s32, s14, 4")
    e("s_add_u32 s32, s32, s13")
    e("s_lshl_b32 s32, s32, 11")
    e("s_lshl_b32 s34, s24, 9")
    e("s_add_u32 s32, s32, s34")
    e(f"s_add_u32 s32, s32, 0x{CP:x}")
    e("v_cndmask_b32 v214, v42, v40, vcc")
    e("v_cndmask_b32 v215, v43, v41, vcc")
    e("s_mov_b64 exec, 0xffffffff")
    e("buffer_store_dwordx4 v[214:217], v9, s[20:23], s32 offen sc1")
    e("s_mov_b64 exec, -1")
    e("s_mov_b32 s35, 0")
    k.label("l1loop")
    e("s_cmp_eq_u32 s35, 0")
    e(f"s_cbranch_scc1 {k.L('lw20')}")
    e("s_cmp_eq_u32 s35, 1")
    e(f"s_cbranch_scc1 {k.L('lw12')}")
    e(f"s_waitcnt vmcnt({11 + 2*TR})")
    k.label("lw12")
    e(f"s_waitcnt vmcnt({13 + 2*TR})")
    k.label("lw20")
    e(f"s_waitcnt vmcnt({13 + TR})")
    e("s_barrier")
    e("s_cmp_ge_u32 s35, 13")
    e(f"s_cbranch_scc1 {k.L('l1done')}")
    issue1()
    e("s_add_u32 s35, s35, 1")
    e(f"s_branch {k.L('l1loop')}")
    k.label("l1done")
    k.stamp(2)
    e("s_lshl_b32 s33, s14, 15")
    e("s_lshl_b32 s34, s24, 9")
    e("s_add_u32 s33, s33, s34")
    e(f"s_add_u32 s33, s33, 0x{CP:x}")
    e("v_and_b32 v10, 31, v0")
    e("v_lshlrev_b32 v9, 4, v10")
    e("v_lshrrev_b32 v11, 5, v0")
    e("v_lshl_add_u32 v9, v11, 11, v9")
    e("v_and_b32 v11, 7, v0")
    e("v_lshlrev_b32 v11, 16, v11")
    e("s_and_b32 s34, s2, 31")
    e("s_lshl_b32 s34, s34, 11")
    e(f"s_add_u32 s50, s34, 0x{XID:x}")
    e(f"s_add_u32 s51, s34, 0x{HFL:x}")
    e("s_mov_b32 s39, 0")
    G = 68
    k.label("spoll")
    e("s_mov_b32 s32, s31")
    for q in range(8):
        e(f"buffer_load_dwordx4 {vr(G+4*q,4)}, v9, s[20:23], s32 offen sc1")
        e("s_add_u32 s32, s32, 4096")
    e("s_mov_b32 s32, s33")
    for q in range(8):
        e(f"buffer_load_dwordx4 {vr(G+32+4*q,4)}, v9, s[20:23], s32 offen sc1")
        e("s_add_u32 s32, s32, 4096")
    e("buffer_load_dwordx3 v[64:66], v11, s[20:23], s50 offen sc1")
    e("s_add_u32 s39, s39, 1")
    e("s_cmp_gt_u32 s39, 0x100000")
    e(f"s_cbranch_scc1 {k.L('spolled')}")
    e("s_waitcnt vmcnt(0)")
    e("v_cmp_ne_u64 s[44:45], v[64:65], v[216:217]")
    for q in range(16):
        e(f"v_cmp_ne_u64 vcc, {vr(G+4*q+2,2)}, v[216:217]")
        e("s_or_b64 s[44:45], s[44:45], vcc")
    e("s_cmp_lg_u64 s[44:45], 0")
    e(f"s_cbranch_scc1 {k.L('spoll')}")
    k.label("spolled")
    e("s_waitcnt vmcnt(0)")
    e("v_cmp_ne_u32 vcc, s55, v66")
    for q in range(1, 8):
        for j in range(2):
            e(f"v_add_f32 v{40+j}, v{G+j if q == 1 else 40+j}, v{G+4*q+j}")
            e(f"v_add_f32 v{42+j}, v{G+32+j if q == 1 else 42+j}, v{G+32+4*q+j}")
    e("s_cmp_eq_u64 vcc, 0")
    e("s_cselect_b32 s54, 1, 2")
    if 'f' in X: e("s_mov_b32 s54, 2")
    for i in range(4): e(f"v_mov_b32 v{D+i}, v{40+i}")
    e("s_nop 1")
    for i in range(4): e(f"v_permlane32_swap_b32 v{40+i}, v{D+i}")
    e("s_nop 1")
    for i in range(4): e(f"v_add_f32 v{40+i}, v{40+i}, v{D+i}")
    ln_stats(k, [40], [41], [56], [57], [60])
    e("s_lshl_b32 s31, s24, 8")
    e(f"s_add_u32 s31, s31, {STATS}")
    e("v_lshl_add_u32 v9, v10, 3, s31")
    e("ds_write_b64 v9, v[56:57]")
    e(f"v_mov_b32 v9, {MISC}")
    e("v_mov_b32 v62, 0")
    e("v_mov_b32 v63, s54")
    e("ds_write_b64 v9, v[62:63]")
    e("v_and_b32 v9, 15, v0")
    e("v_and_b32 v12, 16, v0")
    e("v_lshl_add_u32 v9, v12, 1, v9")
    e("s_lshl_b32 s31, s24, 8")
    e(f"s_add_u32 s31, s31, {CSL}")
    e("v_lshl_add_u32 v9, v9, 2, s31")
    e("ds_write_b32 v9, v42")
    e("ds_write_b32 v9, v43 offset:64")
    if 'w' not in X:
        e("s_lshl_b32 s31, s2, 2")
        e("s_add_u32 s31, s31, s24")
        e(f"s_mul_i32 s31, s31, {56*128}")
        e("v_lshlrev_b32 v9, 7, v0")
        e("buffer_load_dword v210, v9, s[40:43], s31 offen")
    e("s_waitcnt lgkmcnt(0)")
    e("s_barrier")
    VA = 16; VW2 = 18; VR = 22
    e(f"v_lshlrev_b32 v{VA}, 4, v0")
    e(f"v_add_u32 v{VA+1}, {112*1024-2048}, v{VA}")
    e("v_bfe_u32 v9, v0, 1, 3")
    e("v_and_b32 v10, 1, v0")
    e("v_lshlrev_b32 v10, 4, v10")
    e("v_lshl_add_u32 v10, v2, 11, v10")
    e("v_xor_b32 v9, v9, v2")
    e("v_xor_b32 v12, 4, v9")
    for pp in range(4):
        e(f"v_lshl_add_u32 v{VW2+pp}, v{9 if pp % 2 == 0 else 12}, 5, v10")
        if pp: e(f"v_add_u32 v{VW2+pp}, {pp*(8192-1024)}, v{VW2+pp}")
    e("v_bfe_u32 v9, v0, 1, 2")
    e("v_xor_b32 v9, v9, v2")
    e("v_and_b32 v10, 1, v0")
    e("v_lshlrev_b32 v10, 4, v10")
    e("v_lshl_add_u32 v10, v9, 5, v10")
    e("v_lshrrev_b32 v9, 3, v0")
    e(f"v_lshl_add_u32 v{VR}, v9, 12, v10")
    for pp in range(1, 4):
        e(f"v_add_u32 v{VR+pp}, {pp*(32768-1024)}, v{VR}")
    e("s_lshl_b32 s47, s13, 3")
    e("s_lshl_b32 s26, s24, 1")
    e("s_add_u32 s47, s47, s26")
    e("s_mul_i32 s47, s47, 112")
    e("s_mul_i32 s26, s15, 56")
    e("s_add_u32 s47, s47, s26")
    e("s_lshl_b32 s47, s47, 10")
    e(f"s_add_u32 s47, s47, 0x{HM:x}")
    e("s_mul_i32 s48, s15, 1792")
    e("s_lshl_b32 s27, s24, 4")
    e("s_add_u32 s48, s48, s27")
    e("s_lshl_b32 s48, s48, 11")
    e("s_lshl_b32 s27, s53, 8")
    e("s_add_u32 s48, s48, s27")
    e("s_mul_i32 s36, s53, 7")
    e("s_add_u32 s36, s36, 1")
    e("s_lshr_b32 s36, s36, 1")
    e("s_lshl_b32 s27, s24, 12")
    e(f"s_add_u32 s28, s27, {WOFF}")
    e(f"s_min_u32 s52, s36, {NST2-4}")
    def st_of(n):
        e(f"s_add_u32 s37, s36, {n}")
        e(f"s_cmp_ge_u32 s37, {NST2}")
        e(f"s_cselect_b32 s38, {4 if 'F' not in X else NST2}, 0")
        e("s_sub_u32 s37, s37, s38")
    e("s_barrier")
    k.stamp(3)
    def wpart2(n):
        st_of(n)
        e("s_lshl_b32 s26, s37, 17")
        e("s_add_u32 s26, s26, s48")
        e(f"s_add_u32 m0, s28, {n*STG2}")
        e("s_nop 0")
        for pp in range(4):
            e(f"buffer_load_dwordx4 v{VW2+pp}, s[40:43], s26 offen offset:{1024*pp}{NT2} lds")
    wpart2(0); wpart2(1); wpart2(2)
    wpart2(3)
    e("s_lshl_b32 s31, s53, 7")
    e("s_lshl_b32 s32, s24, 5")
    e("s_add_u32 s31, s31, s32")
    e("s_lshl_b32 s31, s31, 12")
    e("s_lshl_b32 s32, s13, 8")
    e("s_add_u32 s31, s31, s32")
    e("s_lshl_b32 s32, s15, 7")
    e("s_add_u32 s31, s31, s32")
    e(f"s_add_u32 s31, s31, 0x{HT:x}")
    e(f"s_add_u32 m0, s27, {RES}")
    e("s_nop 0")
    for pp in range(4):
        e(f"buffer_load_dwordx4 v{VR+pp}, s[20:23], s31 offen offset:{1024*pp} lds")
    def hpart2(n):
        st_of(n)
        e("s_lshl_b32 s25, s37, 11")
        e("s_add_u32 s25, s25, s47")
        e(f"s_add_u32 m0, s27, {n*STG2}")
        e("s_nop 0")
        for pp in range(4):
            e(f"buffer_load_dwordx4 v{VA+pp//2}, s[20:23], s25 offen offset:{1024*pp} lds")
    e("s_waitcnt vmcnt(16)")
    k.stamp(4)
    e("s_barrier")
    e("s_mov_b32 s39, 0")
    k.label("hpoll")
    e("buffer_load_dwordx2 v[64:65], v11, s[20:23], s51 offen sc1")
    e("s_add_u32 s39, s39, 1")
    e("s_cmp_gt_u32 s39, 0x100000")
    e(f"s_cbranch_scc1 {k.L('hpolled')}")
    e("s_waitcnt vmcnt(0)")
    e("v_cmp_ne_u64 vcc, v[64:65], v[216:217]")
    e(f"s_cbranch_vccnz {k.L('hpoll')}")
    k.label("hpolled")
    hpart2(3)
    e("s_mov_b32 s29, 0")
    e(f"s_mov_b32 s35, {NB2}")
    def issue2():
        e("s_add_u32 s37, s35, s13")
        e(f"s_and_b32 s37, s37, {RW-1}")
        e(f"s_andn2_b32 s38, s35, {RW-1}")
        e("s_or_b32 s37, s37, s38")
        if 'F' in X:
            st_of("s37")
        else:
            e("s_sub_u32 s37, s37, 4")
            e("s_cmp_ge_u32 s37, s52")
            e("s_cselect_b32 s38, 4, 0")
            e("s_add_u32 s37, s37, s38")
        e("s_lshl_b32 s25, s37, 11")
        e("s_add_u32 s25, s25, s47")
        e("s_lshl_b32 s26, s37, 17")
        e("s_add_u32 m0, s27, s29")
        e("s_add_u32 s26, s26, s48")
        for pp in range(4):
            e(f"buffer_load_dwordx4 v{VA+pp//2}, s[20:23], s25 offen offset:{1024*pp} lds")
        e("s_add_u32 m0, s28, s29")
        e(f"s_add_u32 s29, s29, {STG2}")
        for pp in range(4):
            e(f"buffer_load_dwordx4 v{VW2+pp}, s[40:43], s26 offen offset:{1024*pp}{NT2} lds")
        e(f"s_and_b32 s29, s29, {NB2*STG2-1}")
        e("s_add_u32 s35, s35, 1")
    e("s_barrier")
    issue2()
    e("s_waitcnt vmcnt(12)")
    e("s_barrier")
    issue2()
    k.label("l2loop")
    e("s_waitcnt vmcnt(16)")
    e("s_barrier")
    issue2()
    e(f"s_cmp_lt_u32 s35, {NST2}")
    e(f"s_cbranch_scc1 {k.L('l2loop')}")
    for i in range(NST2-NB2, NST2):
        left = max(NST2 - 1 - (i + 1), 0)
        e(f"s_waitcnt vmcnt({left*8})")
        e("s_barrier")
    k.dump_stamps(1, 20, 10)
    e("s_endpgm")
```

```python
MB = 1 << 20
WS_BYTES = 256 * MB
UT = 0
XT = 4 * MB
HT = 8 * MB
HO = 13 * MB
FU = HO
FX = HO + 256
FB_ = 128
F2 = HO + 512
FHT = HO + 640
HFL = HO + 768
XID = HO + 896
FLG = HO + 1024
SP2 = 14 * MB
CP = 14 * MB + 0x80000
SG = 15 * MB
HM = 16 * MB
PART = 32 * MB
```

```python
from asmlib import *
from layout import *
from k0 import ln_stats
import os
F = os.environ.get('K0X', 'wn')

KCP = 4160
REG = 4*KCP + 512 + 4096
REG0 = 0
SKL = 4*REG
TILE = 90112
STAT = 135168
FLAG = 153664
LDS_ALL = FLAG + 128
TAG = 204

def emit_front(k):
    e = k.e
    k.pfx = "f_"
    e("s_cmp_ge_u32 s2, 256")
    e(f"s_cbranch_scc1 {k.L('end')}")
    k.clear_stamps()
    e("s_load_dwordx8 s[4:11], s[0:1], 0")
    e("s_load_dwordx4 s[52:55], s[0:1], 80")
    e("s_load_dwordx4 s[12:15], s[0:1], 32")
    e("s_load_dwordx4 s[56:59], s[0:1], 56")
    e("v_lshrrev_b32 v1, 6, v0")
    e("s_lshr_b32 s40, s2, 3")
    e("v_readfirstlane_b32 s60, v1")
    e("s_and_b32 s41, s2, 7")
    e("s_lshl_b32 s61, s41, 7")
    e("s_lshl_b32 s62, s40, 2")
    e("s_add_u32 s61, s61, s62")
    e("s_and_b32 s62, s60, 3")
    e("s_add_u32 s61, s61, s62")
    e(f"s_mul_i32 s63, s62, {REG}")
    e(f"s_add_u32 s63, s63, {REG0}")
    e("s_lshl_b32 s39, s41, 11")
    e("v_mov_b32 v207, 0")
    e("s_getreg_b32 s38, hwreg(HW_REG_XCC_ID, 0, 4)")
    if 'f' in F: e("s_add_u32 s38, s38, s40")
    e("v_mov_b32 v206, s38")
    e("s_cmp_ge_u32 s60, 4")
    e(f"s_cbranch_scc1 {k.L('bwave')}")

    def spin(off, cond, lab, sleep=0):
        if off is not None: e(f"v_mov_b32 v33, {off}")
        k.label(lab)
        if sleep: e(f"s_sleep {sleep}")
        e("ds_read_b32 v34, v33")
        e("s_waitcnt lgkmcnt(0)")
        e(cond)
        e(f"s_cbranch_vccnz {k.L(lab)}")
    def setflag(off):
        e(f"v_mov_b32 v200, {off}")
        e("v_mov_b32 v201, 1")
        e("ds_write_b32 v200, v201")
    def publish(cnt_off, base, lab, r=200):
        e(f"v_mov_b32 v{r}, {FLAG + cnt_off}")
        e(f"v_mov_b32 v{r+1}, 1")
        e("s_mov_b64 exec, 1")
        e(f"ds_add_rtn_u32 v{r+2}, v{r}, v{r+1}")
        e("s_waitcnt lgkmcnt(0)")
        e(f"v_readfirstlane_b32 s3, v{r+2}")
        e("s_cmp_eq_u32 s3, 3")
        e(f"s_cbranch_scc0 {k.L(lab)}")
        e("s_lshl_b32 s3, s40, 14")
        e(f"v_mov_b32 v{r}, s3")
        e(f"s_add_u32 s3, s39, 0x{base:x}")
        e(f"buffer_store_dwordx3 {vr(TAG,3)}, v{r}, s[32:35], s3 offen")
        e(f"s_add_u32 s3, s3, 0x{FB_:x}")
        e(f"buffer_store_dwordx3 {vr(TAG,3)}, v{r}, s[32:35], s3 offen sc1")
        k.label(lab)
        e("s_mov_b64 exec, -1")
    def poll(base, lab, dual=True):
        e("v_and_b32 v121, 31, v0")
        e("v_lshlrev_b32 v121, 14, v121")
        e(f"s_add_u32 s28, s39, 0x{base:x}")
        e(f"s_add_u32 s29, s39, 0x{base + FB_:x}")
        e("s_mov_b32 s3, 0")
        e("v_mov_b32 v122, 0")
        k.label(lab)
        e("buffer_load_dwordx3 v[116:118], v121, s[32:35], s28 offen sc1")
        e("s_add_u32 s3, s3, 1")
        if dual:
            e("s_and_b32 s26, s3, 3")
            e(f"s_cbranch_scc1 {k.L(lab + '_a')}")
            e("buffer_load_dwordx3 v[122:124], v121, s[32:35], s29 offen sc1")
            k.label(lab + "_a")
        e("s_cmp_gt_u32 s3, 0x100000")
        e(f"s_cbranch_scc1 {k.L(lab + '_x')}")
        e("s_waitcnt vmcnt(0)")
        e(f"v_cmp_ne_u64 vcc, v[116:117], {vr(TAG,2)}")
        if dual:
            e(f"v_cmp_ne_u64 s[24:25], v[122:123], {vr(TAG,2)}")
            e("s_nop 0")
            e("v_cndmask_b32 v118, v118, v124, vcc")
            e("s_and_b64 vcc, vcc, s[24:25]")
        e(f"s_cbranch_vccnz {k.L(lab)}")
        k.label(lab + "_x")
        e("s_waitcnt vmcnt(0)")
    def tagload():
        e(f"buffer_load_dwordx2 {vr(TAG,2)}, v207, s[44:47], 0 offen sc1")
    def tagcheck(lab):
        e("s_mov_b32 s3, 0")
        k.label(lab)
        e(f"v_cmp_eq_u32 vcc, 0, v{TAG}")
        e(f"s_cbranch_vccz {k.L(lab + '_x')}")
        tagload()
        e("s_waitcnt vmcnt(0)")
        e("s_add_u32 s3, s3, 1")
        e("s_cmp_lt_u32 s3, 0x100000")
        e(f"s_cbranch_scc1 {k.L(lab)}")
        k.label(lab + "_x")
        e(f"v_readfirstlane_b32 s98, v{TAG}")
        e(f"v_readfirstlane_b32 s99, v{TAG+1}")
    def finish(lab, target):
        fin_count(lab)
        e(f"s_branch {target}")
    def fin_count(lab):
        e("s_mov_b64 exec, -1")
        e(f"v_mov_b32 v200, {FLAG+52}")
        e("v_mov_b32 v201, 1")
        e("s_waitcnt vmcnt(0)")
        e("s_mov_b64 exec, 1")
        e("ds_add_rtn_u32 v202, v200, v201")
        e("s_waitcnt lgkmcnt(0)")
        e("v_readfirstlane_b32 s3, v202")
        e("s_cmp_eq_u32 s3, 7")
        e(f"s_cbranch_scc0 {k.L(lab)}")
        e("s_lshl_b32 s3, s2, 11")
        e(f"s_add_u32 s3, s3, 0x{FHT:x}")
        e(f"buffer_store_dwordx2 {vr(TAG,2)}, v207, s[32:35], s3 offen sc1")
        k.label(lab)
        e("s_mov_b64 exec, -1")

    e("v_and_b32 v6, 15, v0")
    e("v_lshrrev_b32 v7, 4, v0")
    e("s_lshl_b32 s42, s40, 17")
    e("s_lshl_b32 s43, s41, 8")
    e("s_add_u32 s42, s42, s43")
    e("v_lshlrev_b32 v1, 13, v7")
    e("v_lshl_add_u32 v1, v6, 4, v1")
    e("v_add_u32 v1, s42, v1")
    e("v_add_u32 v2, 0x1000, v1")
    e("v_add_u32 v3, 0xffffe800, v1")
    e("v_add_u32 v4, 0xfffff000, v1")
    e("v_add_u32 v5, 0xfffff800, v1")
    e("s_lshl_b32 s48, s41, 10")
    e("v_and_b32 v9, 63, v0")
    e("v_lshlrev_b32 v9, 4, v9")
    e(f"s_mov_b32 m0, {SKL}")
    e("s_waitcnt lgkmcnt(0)")
    k.srd(20, 6, 7, 4*MB)
    k.srd(24, 8, 9, 4*MB)
    k.srd(28, 10, 11, 8192)
    KR = 12; VR = 40; XR = 56; SK = 72
    e("buffer_load_dwordx4 v9, s[28:31], s48 offen lds")
    for i in range(4):
        e(f"buffer_load_dwordx4 {vr(KR+12+4*i,4)}, v{1+i//2}, s[20:23], 0 offen offset:{2048*(i%2)} nt")
    for i in range(4):
        e(f"buffer_load_dwordx4 {vr(VR+4*i,4)}, v{1+i//2}, s[24:27], 0 offen offset:{2048*(i%2)} nt")
    e(f"buffer_load_dwordx4 {vr(KR,4)}, v3, s[20:23], 0 offen nt")
    e(f"buffer_load_dwordx4 {vr(KR+4,4)}, v4, s[20:23], 0 offen nt")
    e(f"buffer_load_dwordx4 {vr(KR+8,4)}, v5, s[20:23], 0 offen nt")
    k.srd(16, 4, 5, 4*MB)
    for i in range(4):
        e(f"buffer_load_dwordx4 {vr(XR+4*i,4)}, v{1+i//2}, s[16:19], 0 offen offset:{2048*(i%2)} nt")
    k.srd(44, 52, 53, 256)
    tagload()
    e("s_barrier")
    k.srd(32, 54, 55, WS_BYTES)
    e("s_and_b32 s3, s61, -2")
    e("s_lshl_b32 s3, s3, 1")
    e("s_load_dword s51, s[14:15], s3")
    e("v_and_b32 v10, 14, v6")
    e("v_xor_b32 v11, v10, v7")
    e("v_xor_b32 v10, 1, v11")
    e("v_lshlrev_b32 v8, 10, v6")
    e("v_lshl_add_u32 v10, v10, 3, v8")
    e("v_lshl_add_u32 v11, v11, 3, v8")
    e(f"v_add_u32 v10, {TILE}, v10")
    e(f"v_add_u32 v11, {TILE}, v11")
    e(f"v_lshlrev_b32 v8, 6, v6")
    e(f"v_add_u32 v8, {SKL}, v8")
    e("s_mov_b32 s48, 0x05040100")
    e("s_mov_b32 s49, 0x07060302")
    e("s_mov_b32 s50, 0xffff0000")
    T = 104; KU = 112
    ACC = [2, 4, 8, 6]
    k.stamp(1)
    e("s_waitcnt vmcnt(16)")
    for q in range(4):
        e(f"ds_read_b128 {vr(SK+4*q,4)}, v8 offset:{16*q}")
    e("s_waitcnt vmcnt(5) lgkmcnt(0)")
    setflag(FLAG + 24)
    k.stamp(2)
    k.label("kv")
    for jj in range(4):
        for c in range(2):
            d0 = SK + 4*jj + 2*c
            e(f"v_lshlrev_b32 v{T+0+c}, 16, v{d0}")
            e(f"v_and_b32 v{T+2+c}, s50, v{d0}")
            e(f"v_lshlrev_b32 v{T+4+c}, 16, v{d0+1}")
            e(f"v_and_b32 v{T+6+c}, s50, v{d0+1}")
        for r in range(7):
            e(f"v_lshlrev_b32 v{KU+2*r}, 16, v{KR+4*r+jj}")
            e(f"v_and_b32 v{KU+2*r+1}, s50, v{KR+4*r+jj}")
        for tap in (3, 2, 1, 0):
            for i in range(4):
                kk = KU + 2*(i+3-tap)
                if tap == 3:
                    e(f"v_pk_mul_f32 {vr(ACC[i],2)}, {vr(kk,2)}, {vr(T+2*tap,2)}")
                else:
                    e(f"v_pk_fma_f32 {vr(ACC[i],2)}, {vr(kk,2)}, {vr(T+2*tap,2)}, {vr(ACC[i],2)}")
        for i in range(4):
            e(f"v_lshlrev_b32 v{KU+2*i}, 16, v{VR+4*i+jj}")
            e(f"v_and_b32 v{KU+2*i+1}, s50, v{VR+4*i+jj}")
        for i in range(4):
            e(f"v_pk_mul_f32 {vr(ACC[i],2)}, {vr(ACC[i],2)}, {vr(KU+2*i,2)}")
        P = KU + 8
        for c in range(2):
            e(f"v_cvt_pk_bf16_f32 v{P+2*c}, v{ACC[3]+c}, v{ACC[2]+c}")
            e(f"v_cvt_pk_bf16_f32 v{P+2*c+1}, v{ACC[1]+c}, v{ACC[0]+c}")
        for c in range(2):
            e(f"ds_write_b64 v10, {vr(P+2*c,2)} offset:{128*(2*jj+c)}")
    e("s_waitcnt vmcnt(1)")
    for jj in range(4):
        for c in range(2):
            P = KR + 4*jj + 2*c
            sel = "s48" if c == 0 else "s49"
            e(f"v_perm_b32 v{P}, v{XR+4+jj}, v{XR+jj}, {sel}")
            e(f"v_perm_b32 v{P+1}, v{XR+12+jj}, v{XR+8+jj}, {sel}")
            e(f"ds_write_b64 v11, {vr(P,2)} offset:{16384+128*(2*jj+c)}")
    e("v_and_b32 v1, 7, v0")
    e("v_lshrrev_b32 v2, 7, v0")
    e("v_xor_b32 v2, v2, v1")
    e("v_lshrrev_b32 v3, 3, v0")
    e("v_lshlrev_b32 v4, 7, v3")
    e("v_lshl_add_u32 v4, v2, 4, v4")
    e(f"v_add_u32 v4, {TILE}, v4")
    e("v_xor_b32 v5, 32, v4")
    e("v_xor_b32 v6, 64, v4")
    e("v_xor_b32 v7, 96, v4")
    e("v_lshlrev_b32 v3, 12, v3")
    e("v_lshl_add_u32 v37, v1, 4, v3")
    e(f"v_mov_b32 v33, {FLAG+12}")
    e("v_mov_b32 v34, 1")
    e("s_waitcnt lgkmcnt(0)")
    e(f"s_cbranch_execz {k.L('kvback')}")
    e("s_mov_b64 exec, 1")
    e("ds_add_u32 v33, v34")
    e("s_mov_b64 exec, -1")
    e("s_lshl_b32 s4, s41, 19")
    e("s_lshl_b32 s5, s40, 7")
    e("s_add_u32 s4, s4, s5")
    for i in range(8):
        e(f"s_add_u32 s{16+i}, s4, 0x{(i%4)*131072 + (XT if i >= 4 else UT):x}")
    k.stamp(3)
    spin(None, "v_cmp_gt_u32 vcc, 4, v34", "waitT")
    R = 40
    for i in range(8):
        e(f"ds_read_b128 {vr(R+4*i,4)}, v{4+i%4} offset:{4096*(i%4) + (16384 if i >= 4 else 0)}")
    for i in range(4):
        e(f"s_waitcnt lgkmcnt({7-i})")
        e(f"buffer_store_dwordx4 {vr(R+4*i,4)}, v37, s[32:35], s{16+i} offen")
    e("v_and_b32 v0, 63, v0")
    e("v_and_b32 v5, 15, v0")
    e("v_lshrrev_b32 v6, 4, v0")
    e("s_lshl_b32 s12, s61, 12")
    e("v_lshlrev_b32 v7, 5, v5")
    e("v_lshl_add_u32 v7, v6, 3, v7")
    e(f"s_add_u32 s29, s12, 0x{HT:x}")
    e("v_sub_u32 v33, 7, v5")
    e("v_and_b32 v33, 3, v33")
    e(f"v_mul_u32_u24 v33, {KCP}, v33")
    e("v_lshrrev_b32 v34, 2, v5")
    e("v_lshl_add_u32 v33, v34, 3, v33")
    e("v_lshlrev_b32 v34, 4, v6")
    e("v_sub_u32 v33, v33, v34")
    e("s_add_u32 s30, s63, 24")
    e("v_add_u32 v1, s30, v33")
    e("v_lshlrev_b32 v33, 5, v5")
    e("v_add_u32 v33, v33, v34")
    e(f"s_add_u32 s30, s63, {4*KCP + 512 - 32*15}")
    e("v_add_u32 v3, s30, v33")
    AD = 192
    e("v_lshrrev_b32 v33, 3, v5")
    e("v_add_u32 v33, 2, v33")
    e("v_and_b32 v34, 7, v5")
    e("v_sub_u32 v34, 7, v34")
    e("v_cmp_eq_u32 vcc, v33, v6")
    e("v_lshrrev_b32 v35, 1, v34")
    e("v_and_b32 v34, 1, v34")
    e("v_cndmask_b32 v35, 9, v35, vcc")
    e("v_lshlrev_b32 v34, 4, v34")
    e("s_and_b32 s31, s61, 1")
    e("s_lshl_b32 s31, s31, 4")
    e("s_lshr_b32 s51, s51, s31")
    e("s_and_b32 s51, s51, 0xffff")
    e("v_mov_b32 v33, s51")
    e("v_lshlrev_b32 v34, v34, v33")
    for r in range(4):
        e(f"v_cmp_eq_u32 vcc, {r}, v35")
        e("s_nop 1")
        e(f"v_cndmask_b32 v{AD+r}, 0, v34, vcc")
    e("s_waitcnt vmcnt(0)")
    tagcheck("tagA")
    publish(0, FU, "pubU")
    k.stamp(4)
    for i in range(4, 8):
        e(f"buffer_store_dwordx4 {vr(R+4*i,4)}, v37, s[32:35], s{16+i} offen")
    FA = [64, 128]; FB = [96, 160]; AC = 8
    def reads(buf, ep):
        r = []
        for w in range(8):
            r.append(f"ds_read_b128 {vr(FB[buf]+4*w,4)}, v3 offset:{512*w + 32*(15-ep)}")
        for v in range(8):
            r.append(f"ds_read_b64 {vr(FA[buf]+4*v,2)}, v1 offset:{32*ep + 512*v}")
            r.append(f"ds_read_b64 {vr(FA[buf]+4*v+2,2)}, v1 offset:{32*ep + 512*v + 8}")
        return r
    def mfmas(buf):
        m = []
        for v in range(8):
            for w in range(8 - v):
                t = v + w
                m.append(f"v_mfma_f32_16x16x32_bf16 {vr(AC+4*t,4)}, {vr(FA[buf]+4*v,4)}, {vr(FB[buf]+4*w,4)}, {vr(AC+4*t,4)}")
        return m
    e("s_waitcnt vmcnt(0)")
    publish(4, FX, "pubX")
    e("s_lshl_b32 s3, s60, 2")
    e(f"s_add_u32 s3, s3, {FLAG+32}")
    e("v_mov_b32 v33, s3")
    spin(None, "v_cmp_eq_u32 vcc, 0, v34", "waitK")
    rd = reads(0, 1)
    for r in rd[8:]: e(r)
    spin(None, "v_cmp_gt_u32 vcc, 2, v34", "waitU")
    k.stamp(5)
    for r in rd[:8]: e(r)
    for t in range(8):
        e(f"s_waitcnt lgkmcnt({7-t})")
        e(f"v_mfma_f32_16x16x32_bf16 {vr(AC+4*t,4)}, {vr(AD,4)}, {vr(FB[0]+4*t,4)}, 0")
    e("s_mov_b32 s26, 0")
    k.label("loop")
    for buf, nxt in ((0, 3), (1, 5)):
        e("s_waitcnt lgkmcnt(0)")
        rd = reads(1 - buf, nxt)
        for i, m in enumerate(mfmas(buf)):
            e(m)
            if i < len(rd): e(rd[i])
    e("v_add_u32 v1, 128, v1")
    e("v_add_u32 v3, -128, v3")
    e("s_add_u32 s26, s26, 1")
    e("s_cmp_lt_u32 s26, 4")
    e(f"s_cbranch_scc1 {k.L('loop')}")
    e("v_lshlrev_b32 v1, 6, v5")
    e("v_lshl_add_u32 v1, v6, 4, v1")
    e(f"v_add_u32 v1, {STAT}, v1")
    e("s_lshl_b32 s26, s60, 12")
    e(f"s_add_u32 s26, s26, {TILE}")
    e("v_add_u32 v2, s26, v7")
    e(f"v_mov_b32 v3, {FLAG+16}")
    e("v_and_b32 v4, 1, v6")
    e("v_lshlrev_b32 v4, 9, v4")
    e("v_lshl_add_u32 v4, v5, 5, v4")
    e("v_lshrrev_b32 v200, 1, v6")
    e("v_lshl_add_u32 v4, v200, 4, v4")
    k.stamp(6)
    k.label("spoll")
    e("ds_read_b64 v[64:65], v3")
    e("s_waitcnt lgkmcnt(0)")
    e("v_and_b32 v64, v64, v65")
    e("v_cmp_eq_u32 vcc, 0, v64")
    e(f"s_cbranch_vccnz {k.L('spoll')}")
    MS = 64; RS = 96; XV = 176
    for t in range(8):
        e(f"ds_read_b64 {vr(XV+2*t,2)}, v2 offset:{512*t}")
    for t in range(3):
        e(f"ds_read_b128 {vr(MS+4*t,4)}, v1 offset:{1024*t}")
        e(f"ds_read_b128 {vr(RS+4*t,4)}, v1 offset:{1024*t+8192}")
    e("s_waitcnt lgkmcnt(6)")
    for t in range(8):
        if t + 3 < 8:
            e(f"ds_read_b128 {vr(MS+4*(t+3),4)}, v1 offset:{1024*(t+3)}")
            e(f"ds_read_b128 {vr(RS+4*(t+3),4)}, v1 offset:{1024*(t+3)+8192}")
        xu = 128 + 8*(t % 2); q = xu + 4
        e(f"v_lshlrev_b32 v{xu}, 16, v{XV+2*t}")
        e(f"v_and_b32 v{xu+1}, s50, v{XV+2*t}")
        e(f"v_lshlrev_b32 v{xu+2}, 16, v{XV+2*t+1}")
        e(f"v_and_b32 v{xu+3}, s50, v{XV+2*t+1}")
        e(f"s_waitcnt lgkmcnt({2*min(3, 7-t)})")
        for h in range(2):
            e(f"v_pk_add_f32 {vr(q+2*h,2)}, {vr(xu+2*h,2)}, {vr(MS+4*t+2*h,2)} neg_lo:[0,1] neg_hi:[0,1]")
        for h in range(2):
            e(f"v_pk_mul_f32 {vr(q+2*h,2)}, {vr(q+2*h,2)}, {vr(RS+4*t+2*h,2)}")
        for h in range(2):
            e(f"v_pk_fma_f32 {vr(q+2*h,2)}, {vr(q+2*h,2)}, {vr(AC+4*t+2*h,2)}, {vr(xu+2*h,2)}")
        e(f"v_cvt_pk_bf16_f32 v{XV+2*t}, v{q}, v{q+1}")
        e(f"v_cvt_pk_bf16_f32 v{XV+2*t+1}, v{q+2}, v{q+3}")
        if t % 2 == 1:
            e("s_nop 1")
            e(f"v_permlane16_swap_b32 v{XV+2*t-2}, v{XV+2*t}")
            e(f"v_permlane16_swap_b32 v{XV+2*t-1}, v{XV+2*t+1}")
            e(f"buffer_store_dwordx4 {vr(XV+2*t-2,4)}, v4, s[32:35], s29 offen offset:{512*(t-1)} sc1")
    e(f"v_mov_b32 v200, {FLAG+48}")
    e("v_mov_b32 v201, 1")
    e("s_waitcnt lgkmcnt(0)")
    e("s_mov_b64 exec, 1")
    e("ds_add_u32 v200, v201")
    e("s_mov_b64 exec, -1")
    if STAMP: k.dump_stamps(0, 32, 60, keep=True)
    finish("finA", "Lmlp_compute")

    k.label("bwave")
    k.role = "B"
    e("s_setprio 3")
    e("v_and_b32 v0, 63, v0")
    e("v_lshlrev_b32 v2, 4, v0")
    e("v_mov_b32 v36, 0"); e("v_mov_b32 v37, 0"); e("v_mov_b32 v38, 0"); e("v_mov_b32 v39, 0")
    e("v_min_u32 v33, 48, v2")
    e(f"v_add_u32 v33, {FLAG}, v33")
    e("ds_write_b128 v33, v[36:39]")
    e("s_memrealtime s[48:49]")
    e("s_waitcnt lgkmcnt(0)")
    k.srd(44, 52, 53, 256)
    e("s_or_b32 s48, s48, 1")
    e("s_add_u32 s3, s2, s62")
    e("s_cmp_eq_u32 s3, 0")
    e(f"s_cbranch_scc0 {k.L('notag')}")
    e("v_mov_b32 v40, s48"); e("v_mov_b32 v41, s49")
    e("s_mov_b64 exec, 1")
    e("buffer_store_dwordx2 v[40:41], v207, s[44:47], 0 offen sc1")
    e("s_mov_b64 exec, -1")
    k.label("notag")
    e("s_setprio 0")
    e("v_add_u32 v3, -8, v2")
    e("v_add_u32 v4, 1016, v2")
    e("s_lshl_b32 s42, s61, 12")
    e("s_add_u32 s20, s12, s42")
    e("s_addc_u32 s21, s13, 0")
    e("s_and_b32 s21, s21, 0xffff")
    e("s_mov_b32 s22, 4096")
    e("s_mov_b32 s23, 0x20000")
    k.srd(16, 4, 5, 4*MB)
    k.srd(32, 54, 55, WS_BYTES)
    e("s_lshl_b32 s43, s2, 14")
    e("s_lshl_b32 s3, s62, 12")
    e("s_add_u32 s43, s43, s3")
    e("v_bfe_u32 v32, v0, 1, 2")
    e(f"v_mul_u32_u24 v32, {KCP}, v32")
    e("v_and_b32 v33, 1, v0")
    e("v_lshl_add_u32 v32, v33, 4, v32")
    e(f"v_add_u32 v33, {4*KCP}, v2")
    e("v_cmp_gt_u32 vcc, 32, v0")
    e("s_nop 1")
    e("v_cndmask_b32 v32, v32, v33, vcc")
    e("v_add_u32 v32, s63, v32")
    e("ds_write_b128 v32, v[36:39]")
    if 'd' not in F:
        e("s_mov_b64 exec, 0")
        e(f"s_branch {k.L('kv')}")
    k.label("kvback")
    e("s_mov_b64 exec, -1")
    e("s_barrier")
    if 'p' not in F:
        e("s_lshl_b32 s3, s2, 11")
        e(f"s_add_u32 s3, s3, 0x{HO:x}")
        e("s_lshr_b32 s24, s41, 1")
        e("s_lshl_b32 s24, s24, 2")
        e("s_and_b32 s25, s40, 3")
        e("s_add_u32 s24, s24, s25")
        e("s_and_b32 s25, s41, 1")
        e("s_lshl_b32 s25, s25, 3")
        e("s_lshr_b32 s26, s40, 2")
        e("s_add_u32 s25, s25, s26")
        e("s_lshl_b32 s26, s24, 4")
        e("s_add_u32 s26, s26, s25")
        e("s_lshl_b32 s26, s26, 11")
        e(f"s_add_u32 s26, s26, 0x{SP2:x}")
        e("s_lshl_b32 s25, s25, 4")
        e("s_add_u32 s25, s25, s24")
        e("s_lshl_b32 s25, s25, 11")
        e(f"s_add_u32 s25, s25, 0x{CP:x}")
        e("s_lshl_b32 s24, s2, 6")
        e(f"s_add_u32 s24, s24, 0x{SG:x}")
        e("s_cmp_eq_u32 s62, 1")
        e("s_cselect_b32 s3, s26, s3")
        e("s_cmp_eq_u32 s62, 2")
        e("s_cselect_b32 s3, s25, s3")
        e("s_cmp_eq_u32 s62, 3")
        e("s_cselect_b32 s3, s24, s3")
        e("s_cselect_b64 exec, 1, 0xffff")
        e("v_lshlrev_b32 v32, 7, v0")
        e("buffer_load_dword v211, v32, s[32:35], s3 offen")
        e("s_mov_b64 exec, -1")
    if 'c' not in F:
        e("s_and_b32 s3, s40, 7")
        e(f"s_cbranch_scc1 {k.L('nocode')}")
        e("s_getpc_b64 s[48:49]")
        k.label("pc")
        e("s_lshl_b32 s3, s62, 13")
        e("v_lshl_add_u32 v32, v0, 7, s3")
        e(f"v_min_u32 v32, Lcode_end-{k.L('pc')}-4, v32")
        e("global_load_dword v210, v32, s[48:49]")
        k.label("nocode")
    XW = 1 if ('x' in F or 'y' in F) else 0
    if XW:
        k.srd(28, 58, 59, 1024*3584*2)
        e("s_lshl_b32 s3, s2, 2")
        e("s_add_u32 s3, s3, s62")
        e(f"s_mul_i32 s3, s3, {56*128}")
        e("v_lshlrev_b32 v32, 7, v0")
        e(f"s_mov_b64 exec, {'0xfffffff' if 'y' in F else '-1'}")
        e("buffer_load_dword v209, v32, s[28:31], s3 offen")
        e("s_mov_b64 exec, -1")
    if 'e' not in F:
        spin(FLAG + 24, "v_cmp_eq_u32 vcc, 0, v34", "waitL", sleep=1)
    k.stamp(1)
    Y = 8; W = 24; ST = 88
    for i in range(4):
        e(f"buffer_load_dwordx4 {vr(Y+4*i,4)}, v2, s[20:23], 0 offen offset:{1024*i} nt")
        if i == 0: e(f"buffer_load_dwordx2 {vr(W,2)}, v3, s[20:23], 0 offen nt")
        else:      e(f"buffer_load_dwordx2 {vr(W+2*i,2)}, v4, s[20:23], 0 offen offset:{1024*(i-1)} nt")
    for i in range(4):
        e(f"buffer_load_dwordx4 {vr(ST+4*i,4)}, v2, s[16:19], s43 offen offset:{1024*i} nt")
    tagload()
    e("s_add_u32 s30, s63, 32")
    e("v_add_u32 v4, s30, v2")
    for i in range(4):
        e(f"s_waitcnt vmcnt({5 + 2*(3-i)})")
        y = Y + 4*i; w = W + 2*i
        X = 44 + 12*(i % 2); P1 = X + 4; P3 = X + 8
        e(f"ds_write_b128 v4, {vr(y,4)} offset:{1024*i}")
        e(f"v_mov_b32 v{X}, v{w+1}")
        for j in range(3): e(f"v_mov_b32 v{X+1+j}, v{y+j}")
        e(f"ds_write_b128 v4, {vr(X,4)} offset:{1024*i + 2*KCP}")
        e(f"v_alignbit_b32 v{P1}, v{y}, v{w+1}, 16")
        for j in range(3): e(f"v_alignbit_b32 v{P1+1+j}, v{y+1+j}, v{y+j}, 16")
        e(f"ds_write_b128 v4, {vr(P1,4)} offset:{1024*i + KCP}")
        e(f"v_alignbit_b32 v{P3}, v{w+1}, v{w}, 16")
        for j in range(3): e(f"v_mov_b32 v{P3+1+j}, v{P1+j}")
        e(f"ds_write_b128 v4, {vr(P3,4)} offset:{1024*i + 3*KCP}")
    e("s_lshl_b32 s3, s62, 2")
    e(f"s_add_u32 s3, s3, {FLAG+32}")
    e("v_mov_b32 v33, s3")
    e("v_mov_b32 v34, 1")
    e("s_waitcnt lgkmcnt(0)")
    e("ds_write_b32 v33, v34")
    k.stamp(2)
    S = [104, 105]; Q = [106, 107]
    for r in S + Q: e(f"v_mov_b32 v{r}, 0")
    e("s_mov_b32 s48, 0x3f803f80")
    e("s_waitcnt vmcnt(0)")
    for j in range(8):
        for r in range(2):
            e(f"v_dot2c_f32_bf16 v{S[r]}, s48, v{ST+8*r+j}")
            e(f"v_dot2c_f32_bf16 v{Q[r]}, v{ST+8*r+j}, v{ST+8*r+j}")
    e("s_nop 2")
    for mode in ("quad_perm:[1,0,3,2] row_mask:0xf", "quad_perm:[2,3,0,1] row_mask:0xf", "row_half_mirror row_mask:0xf",
                 "row_mirror row_mask:0xf", "row_bcast:15 row_mask:0xa", "row_bcast:31 row_mask:0xc"):
        for r in S + Q:
            e(f"v_add_f32_dpp v{r}, v{r}, v{r} {mode} bank_mask:0xf")
    ln_stats(k, S, Q, [108, 109], None, [112, 113], recip=False)
    tagcheck("tagB")
    e("s_mov_b32 s48, 0x07060302")
    e(f"v_perm_b32 v{TAG-2}, v112, v108, s48")
    e(f"v_perm_b32 v{TAG-1}, v113, v109, s48")
    e("s_lshl_b32 s48, s2, 6")
    e("s_lshl_b32 s49, s62, 4")
    e("s_add_u32 s48, s48, s49")
    e(f"s_add_u32 s48, s48, 0x{SG:x}")
    e("s_mov_b32 exec_lo, 0")
    e("s_mov_b32 exec_hi, 0x80000000")
    e(f"buffer_store_dwordx4 {vr(TAG-2,4)}, v207, s[32:35], s48 offen sc1")
    e("s_mov_b64 exec, -1")
    k.stamp(3)
    e("s_cmp_eq_u32 s62, 3")
    e(f"s_cbranch_scc0 {k.L('notB3')}")
    poll(FU, "pollU")
    e("v_cmp_ne_u32 vcc, s38, v118")
    e(f"s_cbranch_vccz {k.L('oneXCD')}")
    spin(FLAG + 4, "v_cmp_gt_u32 vcc, 4, v34", "waitX")
    e("buffer_wbl2 sc1")
    e("s_waitcnt vmcnt(0)")
    e("s_lshl_b32 s3, s40, 14")
    e("v_mov_b32 v200, s3")
    e(f"s_add_u32 s3, s39, 0x{F2:x}")
    e("s_mov_b64 exec, 1")
    e(f"buffer_store_dwordx3 {vr(TAG,3)}, v200, s[32:35], s3 offen sc1")
    e("s_mov_b64 exec, -1")
    poll(F2, "poll2", dual=False)
    e("buffer_inv sc1")
    e("s_waitcnt vmcnt(0)")
    k.label("oneXCD")
    k.stamp(1)
    k.note("s3", 16)
    setflag(FLAG + 8)
    k.label("notB3")
    spin(FLAG + 8, "v_cmp_eq_u32 vcc, 0, v34", "waitGo")
    e(f"s_add_u32 m0, s63, {4*KCP + 512}")
    e(f"s_add_u32 s14, s42, 0x{UT:x}")
    for p in range(4):
        e(f"buffer_load_dwordx4 v2, s[32:35], s14 offen offset:{1024*p} lds")
    e("s_lshl_b32 s3, s62, 2")
    e(f"s_add_u32 s3, s3, {FLAG+32}")
    e("v_mov_b32 v33, s3")
    e("v_mov_b32 v34, 2")
    e("s_waitcnt vmcnt(0)")
    e("ds_write_b32 v33, v34")
    k.stamp(2)
    if 'z' in F:
        k.srd(28, 58, 59, 1024*3584*2)
        e("s_lshl_b32 s3, s2, 2")
        e("s_add_u32 s3, s3, s62")
        e(f"s_mul_i32 s3, s3, {56*128}")
        e("v_lshlrev_b32 v32, 7, v0")
        e("buffer_load_dword v209, v32, s[28:31], s3 offen")
    e("s_cmp_eq_u32 s62, 1")
    e(f"s_cbranch_scc0 {k.L('notB1')}")
    e("s_lshl_b32 s3, s2, 11")
    e(f"s_add_u32 s3, s3, 0x{XID:x}")
    e("s_mov_b64 exec, 1")
    e(f"buffer_store_dwordx3 {vr(TAG,3)}, v207, s[32:35], s3 offen sc1")
    e("s_mov_b64 exec, -1")
    k.label("notB1")
    e("s_cmp_ge_u32 s62, 2")
    e(f"s_cbranch_scc1 {k.L('bfetch')}")
    fin_count("finB01")
    spin(FLAG + 56, "v_cmp_gt_u32 vcc, 2, v34", "waitG", sleep=2)
    k.stamp(4)
    if 'H' in F:
        e("s_sub_u32 s30, s61, s62")
        e("s_lshl_b32 s30, s30, 12")
        e("s_lshl_b32 s3, s62, 13")
        e("s_add_u32 s30, s30, s3")
        e(f"s_add_u32 s30, s30, 0x{HT:x}")
        e("v_lshlrev_b32 v6, 7, v0")
        e("buffer_load_dword v210, v6, s[32:35], s30 offen sc1")
    for ch, ptr in (("n", 56), ("w", 58)):
        if ch in F: continue
        k.srd(16, ptr, ptr + 1, 1024*3584*2)
        e("s_lshl_b32 s30, s2, 1")
        e("s_add_u32 s30, s30, s62")
        e(f"s_mul_i32 s30, s30, {112*128}")
        e("v_lshlrev_b32 v6, 7, v0")
        e("v_add_u32 v7, 6144, v6")
        e("buffer_load_dword v210, v6, s[16:19], s30 offen")
        e("buffer_load_dword v211, v7, s[16:19], s30 offen")
    if STAMP: k.dump_stamps(0, 32, 60, keep=True)
    e("s_branch Lmlp_loader")
    k.label("bfetch")
    e("s_sub_u32 s11, s62, 2")
    e("s_lshl_b32 s12, s11, 13")
    poll(FX, "pollX")
    k.stamp(4)
    e("s_sub_u32 s13, s61, s62")
    e("s_lshl_b32 s13, s13, 12")
    e("s_add_u32 s13, s13, s12")
    for q in range(2):
        e(f"s_add_u32 m0, s12, {TILE + 4096*q}")
        e(f"s_add_u32 s14, s13, 0x{XT + 4096*q:x}")
        for p in range(4):
            e(f"buffer_load_dwordx4 v2, s[32:35], s14 offen offset:{1024*p} lds")
    e(f"s_add_u32 s13, s12, 0x{SG:x}")
    e("s_add_u32 s14, s13, 4096")
    e("s_mov_b32 s3, 0")
    for q in range(8):
        e(f"buffer_load_dwordx4 {vr(16+4*q,4)}, v2, s[32:35], s{13 + q//4} offen offset:{1024*(q%4)}")
    e(f"v_mov_b32 v200, {FLAG+56}")
    e("v_mov_b32 v201, 1")
    e("s_mov_b64 exec, 1")
    e("ds_add_u32 v200, v201")
    e("s_mov_b64 exec, -1")
    e(f"s_branch {k.L('pollS_c')}")
    k.label("pollS")
    for q in range(8):
        e(f"buffer_load_dwordx4 {vr(16+4*q,4)}, v2, s[32:35], s{13 + q//4} offen offset:{1024*(q%4)} sc1")
    k.label("pollS_c")
    e("s_add_u32 s3, s3, 1")
    e("s_cmp_gt_u32 s3, 0x40000")
    e(f"s_cbranch_scc1 {k.L('pollS_x')}")
    e("s_waitcnt vmcnt(0)")
    e("s_mov_b64 s[22:23], 0")
    for q in range(8):
        e(f"v_cmp_ne_u64 vcc, {vr(18+4*q,2)}, {vr(TAG,2)}")
        e("s_or_b64 s[22:23], s[22:23], vcc")
    e("s_cmp_lg_u64 s[22:23], 0")
    e(f"s_cbranch_scc0 {k.L('pollS_x')}")
    e("s_sleep 8")
    e(f"s_branch {k.L('pollS')}")
    k.label("pollS_x")
    e("s_waitcnt vmcnt(0)")
    k.stamp(6)
    e("s_lshl_b32 s13, s11, 12")
    e(f"s_add_u32 s13, s13, {STAT}")
    e("v_lshl_add_u32 v3, v0, 3, s13")
    e("s_mov_b32 s14, 0xffff0000")
    for q in range(8):
        g = 16 + 4*q
        e(f"v_and_b32 v{g+2}, s14, v{g}")
        e(f"v_and_b32 v{g+3}, s14, v{g+1}")
        e(f"v_lshlrev_b32 v{g}, 16, v{g}")
        e(f"v_lshlrev_b32 v{g+1}, 16, v{g+1}")
        e(f"v_rcp_f32 v{g+2}, v{g+2}")
        e(f"v_rcp_f32 v{g+3}, v{g+3}")
        e(f"ds_write_b64 v3, {vr(g,2)} offset:{512*q}")
        e(f"ds_write_b64 v3, {vr(g+2,2)} offset:{512*q+8192}")
    e("s_lshl_b32 s12, s11, 2")
    e(f"s_add_u32 s12, s12, {FLAG+16}")
    e("v_mov_b32 v4, s12")
    e("v_mov_b32 v5, 1")
    e("s_waitcnt vmcnt(0) lgkmcnt(0)")
    e("ds_write_b32 v4, v5")
    k.stamp(5)
    k.label("bdone")
    if STAMP: k.dump_stamps(0, 32, 60, keep=True)
    finish("finB", "Lmlp_loader")
    k.label("end")
    e("s_endpgm")
```

```python
from asmlib import *
from layout import *
from k0 import ln_stats
from kf import FLAG as FRONT_FLAG
import os
X = os.environ.get('MX', 'wt')
FSLEEP = int(os.environ.get('FSLEEP', '4'))
NT2 = ' nt' if 'n' in X else ''
TR = 1 if 't' in X else 0
HSC = '' if 's' in X else ' sc1'
WBAT = int(os.environ.get('WBAT', '16'))
RW = int(os.environ.get('K4RW', '4'))

STG1 = 45056; WOFF = 16384; NB1 = 3
STG2 = 32768; NB2 = 4; RES = NB2 * STG2; NST2 = 28
STATS = 151552
CSL = STATS + 1024
MISC = CSL + 1024
NCS = 4

def weave(e, ms, fill, waits=None, mid=None, sched=None):
    fill = list(fill)
    for i, m in enumerate(ms):
        if mid and i == mid[0]:
            for t in mid[1]: e(t)
        if waits and i in waits: e(waits[i])
        e(m)
        for _ in range(sched[i] if i < len(sched) else 0):
            if fill: e(fill.pop(0))
    assert not fill, fill

def emit_mlp(k):
    e = k.e
    k.pfx = "m_"
    def entry():
        e("s_load_dwordx4 s[4:7], s[0:1], 56")
        e("s_load_dwordx2 s[8:9], s[0:1], 88")
        e("s_load_dwordx2 s[56:57], s[0:1], 72")
        e("s_mov_b32 s10, s60")
        e("s_mov_b32 s55, s38")
        e("s_and_b32 s11, s2, 7")
        e("s_lshr_b32 s12, s2, 3")
        e("s_lshr_b32 s13, s11, 1")
        e("s_lshl_b32 s13, s13, 2")
        e("s_and_b32 s14, s12, 3")
        e("s_add_u32 s13, s13, s14")
        e("s_and_b32 s15, s11, 1")
        e("s_lshr_b32 s53, s12, 2")
        e("s_lshl_b32 s14, s15, 3")
        e("s_add_u32 s14, s14, s53")
        e("v_lshrrev_b32 v2, 4, v0")
    k.lines.append("Lmlp_compute:")
    k.role = "A"
    k.stamp(0)
    entry()
    def trcommon():
        e("v_bfe_u32 v3, v0, 2, 2")
        e("v_and_b32 v4, 3, v0")
        e("v_and_b32 v5, 1, v2")
        e("v_lshl_or_b32 v6, v5, 2, v3")
        e("v_lshl_add_u32 v7, v2, 3, v3")
        e("v_lshlrev_b32 v8, 8, v7")
        e("v_lshl_add_u32 v8, v4, 3, v8")

    trcommon()
    ACC = 16; FW = [128, 172]; FH = [156, 200]
    AH = [1, 2, 3, 4]; AW = [9, 10, 11]
    e("s_and_b32 s24, s10, 1")
    e("s_lshr_b32 s25, s10, 1")
    e("v_mul_u32_u24 v12, 448, v7")
    e("v_lshl_add_u32 v12, v4, 3, v12")
    e(f"v_add_u32 v12, {WOFF + 2*STG1}, v12")
    e(f"v_add_u32 v8, {2*STG1}, v8")
    e("v_lshl_add_u32 v13, v5, 5, v12")
    e("v_xor_b32 v14, 1, v5")
    e("v_lshl_add_u32 v14, v14, 5, v12")
    e("s_lshl_b32 s26, s25, 8")
    e("v_add_u32 v9, s26, v13")
    e("v_add_u32 v10, s26, v14")
    e("s_cmp_eq_u32 s25, 0")
    e("s_cselect_b64 vcc, -1, 0")
    e("v_cndmask_b32 v11, v14, v13, vcc")
    e("v_add_u32 v11, 192, v11")
    e("v_mov_b32 v15, v2")
    e("s_lshl_b32 s26, s24, 2")
    for j in range(4):
        e(f"s_add_u32 s27, s26, {j}")
        e(f"v_xor_b32 v12, s27, v6")
        e(f"v_lshl_add_u32 v{AH[j]}, v12, 5, v8")
    for i in range(112):
        e(f"v_mov_b32 v{ACC+i}, 0")
    e("s_waitcnt lgkmcnt(0)")
    k.srd(20, 8, 9, WS_BYTES)
    k.srd(44, 56, 57, 4*MB)
    def reads1(st, step):
        r = []
        for j in range(4):
            for h in range(2):
                r.append(f"ds_read_b64_tr_b16 {vr(FH[st]+4*j+2*h,2)}, v{AH[j]} offset:{8192*step+1024*h}")
        for i in range(7):
            a, o = (AW[i % 2], 64*(i//2)) if i < 6 else (AW[2], 0)
            for h in range(2):
                r.append(f"ds_read_b64_tr_b16 {vr(FW[st]+4*i+2*h,2)}, v{a} offset:{14336*step+1792*h+o}")
        return r
    def mfmas1(st):
        return [f"v_mfma_f32_16x16x32_bf16 {vr(ACC+4*(4*i+j),4)}, {vr(FW[st]+4*i,4)}, {vr(FH[st]+4*j,4)}, {vr(ACC+4*(4*i+j),4)}"
                for i in range(7) for j in range(4)]
    e("s_mov_b32 s28, 0")
    e("s_mov_b32 s29, 2")
    e("s_barrier")
    k.stamp(1)
    for r in reads1(0, 0): e(r)
    k.label("c1loop")
    sal = ["s_add_u32 s29, s29, 1", f"s_mov_b32 s30, {STG1}", "s_cmp_eq_u32 s29, 3", f"s_cselect_b32 s30, {-2*STG1}, s30",
           "s_cselect_b32 s29, 0, s29", "s_add_u32 s28, s28, 1"]
    weave(e, mfmas1(0), reads1(1, 1) + sal, waits={4*i: f"s_waitcnt lgkmcnt({min(15, 12+2*i)})" for i in range(7)}, sched=[1]*28)
    weave(e, mfmas1(1), [f"v_add_u32 v{a}, s30, v{a}" for a in AH + AW] + reads1(0, 0) + ["s_cmp_lt_u32 s28, 16"],
          waits={0: "s_waitcnt lgkmcnt(12)"}, mid=(4, ["s_waitcnt lgkmcnt(0)", "s_barrier"]), sched=[0]*4 + [2]*6 + [1]*18)
    e(f"s_cbranch_scc1 {k.L('c1loop')}")
    k.stamp(2)
    e("v_and_b32 v1, 15, v0")
    e("s_lshl_b32 s26, s24, 9")
    e(f"s_add_u32 s26, s26, {STATS}")
    e("v_lshl_add_u32 v1, v1, 3, s26")
    e("s_lshl_b32 s26, s25, 9")
    e(f"s_add_u32 s26, s26, {CSL}")
    e("v_lshl_add_u32 v2, v15, 4, s26")
    e("s_mul_i32 s26, s25, 64")
    e(f"s_add_u32 s26, s26, {CSL+384}")
    e("v_lshl_add_u32 v3, v15, 4, s26")
    e(f"v_mov_b32 v6, {MISC}")
    e("s_waitcnt lgkmcnt(0)")
    MR = 128; C2 = 136; CSV = 144
    e("ds_read_b32 v7, v6 offset:4")
    for j in range(4):
        e(f"ds_read_b64 {vr(MR+2*j,2)}, v1 offset:{128*j}")
    for i in range(7):
        e(f"ds_read_b128 {vr(CSV+4*i,4)}, v{2 if i < 6 else 3} offset:{64*i if i < 6 else 0}")
    e("s_lshl_b32 s26, s25, 12")
    e("v_lshl_add_u32 v4, v0, 4, s26")
    e("s_lshl_b32 s26, s25, 3")
    e("s_add_u32 s26, s26, 3072")
    e("v_lshl_add_u32 v5, v0, 4, s26")
    e("s_lshl_b32 s26, s13, 3")
    e("s_lshl_b32 s27, s24, 2")
    e("s_add_u32 s26, s26, s27")
    e("s_mul_i32 s26, s26, 112")
    e("s_mul_i32 s27, s14, 7")
    e("s_add_u32 s26, s26, s27")
    e("s_lshl_b32 s26, s26, 10")
    e(f"s_add_u32 s32, s26, 0x{HM:x}")
    for j in range(1, 4):
        e(f"s_add_u32 s{32+j}, s32, {112*1024*j}")
    e("s_waitcnt lgkmcnt(0)")
    e("v_readfirstlane_b32 s54, v7")
    for j in range(4):
        e(f"v_mul_f32 v{C2+2*j}, 0xbfb8aa3b, v{MR+2*j+1}")
    e("s_and_b32 s26, s53, 1")
    e("s_lshl_b32 s27, s25, 2")
    e("s_sub_u32 s27, s27, s26")
    for n in range(4):
        if n < 3: e(f"s_add_u32 s60, s27, {n}")
        else:     e("s_sub_u32 s60, 3, s26")
        e("s_lshr_b32 s61, s60, 1")
        e("s_lshl_b32 s61, s61, 15")
        e("s_and_b32 s62, s60, 1")
        e("s_lshl_b32 s62, s62, 10")
        e("s_add_u32 s61, s61, s62")
        e("s_cmp_lt_u32 s60, 6")
        e(f"s_cselect_b32 s61, s61, {3*STG2}")
        e("s_lshl_b32 s62, s24, 13")
        e("s_add_u32 s61, s61, s62")
        if n == 3:
            e("s_lshl_b32 s62, s25, 3")
            e("s_add_u32 s61, s61, s62")
        e(f"v_lshl_add_u32 v{8+n}, v0, 4, s61")
    e("s_mov_b32 s58, 0xbfb8aa3b")
    e("s_mov_b32 s59, 0xbfb8aa3b")
    e("s_cmp_eq_u32 s54, 1")
    nsite = [0]
    def store2(ops):
        n = nsite[0]; nsite[0] += 1
        e(f"s_cbranch_scc1 {k.L(f'pl{n}')}")
        for o in ops: e(o + " sc1")
        e(f"s_branch {k.L(f'st{n}')}")
        k.label(f"pl{n}")
        for o in ops: e(o)
        k.label(f"st{n}")
    T = 172
    def elem8(tiles, out):
        P = T; Xr = T + 8
        def each(f):
            for n, (i, j) in enumerate(tiles):
                for h in range(2):
                    e(f(ACC + 4*(4*i+j) + 2*h, CSV + 4*i + 2*h, j, P + 4*n + 2*h, Xr + 4*n + 2*h))
        each(lambda a, c, j, p, x: f"v_pk_fma_f32 {vr(a,2)}, {vr(c,2)}, {vr(MR+2*j,2)}, {vr(a,2)} op_sel_hi:[1,0,1] neg_lo:[0,1,0] neg_hi:[0,1,0]")
        each(lambda a, c, j, p, x: f"v_pk_mul_f32 {vr(p,2)}, {vr(a,2)}, {vr(C2+2*j,2)} op_sel_hi:[1,0]")
        for q in range(8): e(f"v_exp_f32 v{Xr+q}, v{P+q}")
        each(lambda a, c, j, p, x: f"v_pk_fma_f32 {vr(x,2)}, {vr(x,2)}, s[58:59], s[58:59]")
        for q in range(8): e(f"v_rcp_f32 v{Xr+q}, v{Xr+q}")
        each(lambda a, c, j, p, x: f"v_pk_mul_f32 {vr(p,2)}, {vr(p,2)}, {vr(x,2)}")
        for q in range(4): e(f"v_cvt_pk_bf16_f32 v{out+q}, v{P+2*q}, v{P+2*q+1}")
    n = 0
    for j in range(4):
        for pr in range(3):
            o = 192 + 4*(n % 4); n += 1
            elem8([(2*pr, j), (2*pr+1, j)], o)
            e(f"ds_write_b128 v{8+pr}, {vr(o,4)} offset:{2048*j}")
            store2([f"buffer_store_dwordx4 {vr(o,4)}, v4, s[20:23], s{32+j} offen offset:{1024*pr}"])
        if j % 2 == 1:
            o = 192 + 4*(n % 4); n += 1
            elem8([(6, j-1), (6, j)], o)
            e(f"ds_write_b64 v11, {vr(o,2)} offset:{2048*(j-1)}")
            e(f"ds_write_b64 v11, {vr(o+2,2)} offset:{2048*j}")
            store2([f"buffer_store_dwordx2 {vr(o,2)}, v5, s[20:23], s{32+j-1} offen",
                    f"buffer_store_dwordx2 {vr(o+2,2)}, v5, s[20:23], s{32+j} offen"])
    k.stamp(3)

    NS = 4
    F0 = ACC + 64
    GW = [F0, F0 + 32]; GH = [F0 + 16, F0 + 48]
    BW = [8, 9, 10, 11]; BH = 12
    e("v_mov_b32 v2, v15")
    e("v_bfe_u32 v3, v0, 2, 2")
    e("v_and_b32 v4, 3, v0")
    e("v_lshl_add_u32 v7, v2, 2, v3")
    e("v_and_b32 v5, 7, v7")
    e("v_lshlrev_b32 v13, 8, v7")
    e("v_lshl_add_u32 v13, v4, 3, v13")
    e(f"v_add_u32 v13, {WOFF}, v13")
    e("s_lshl_b32 s26, s25, 2")
    for i in range(4):
        e(f"s_add_u32 s27, s26, {i}")
        e(f"v_xor_b32 v14, s27, v5")
        e(f"v_lshl_add_u32 v{BW[i]}, v14, 5, v13")
    e("s_lshl_b32 s26, s24, 12")
    e(f"v_lshl_add_u32 v{BH}, v0, 4, s26")
    for i in range(64):
        e(f"v_mov_b32 v{ACC+i}, 0")
    e("v_mov_b32 v13, 1")
    e("s_lshl_b32 s26, s2, 11")
    e(f"s_add_u32 s26, s26, 0x{HFL:x}")
    e("v_mov_b32 v14, 0")
    e("v_mov_b32 v216, s98")
    e("v_mov_b32 v217, s99")
    e("s_waitcnt vmcnt(0)")
    e("s_mov_b64 exec, 1")
    e("ds_add_rtn_u32 v1, v6, v13")
    e("s_waitcnt lgkmcnt(0)")
    e("v_readfirstlane_b32 s27, v1")
    e("s_cmp_eq_u32 s27, 3")
    e(f"s_cbranch_scc0 {k.L('noflag')}")
    e("s_cmp_eq_u32 s54, 1")
    store2(["buffer_store_dwordx2 v[216:217], v14, s[20:23], s26 offen"])
    k.label("noflag")
    e("s_mov_b64 exec, -1")
    e("v_bfe_u32 v6, v7, 1, 2")
    def hoff(j): return 2048*(j % 2) + 8192*(j // 2)
    def reads2(st, step):
        r = []
        for j in range(NS):
            r.append(f"ds_read_b128 {vr(GH[st]+4*j,4)}, v{BH} offset:{hoff(j)+1024*step}")
        for i in range(4):
            for h in range(2):
                r.append(f"ds_read_b64_tr_b16 {vr(GW[st]+4*i+2*h,2)}, v{BW[i]} offset:{8192*step+4096*h}")
        return r
    def mfmas2(st):
        return [f"v_mfma_f32_16x16x32_bf16 {vr(ACC+4*(NS*i+j),4)}, {vr(GW[st]+4*i,4)}, {vr(GH[st]+4*j,4)}, {vr(ACC+4*(NS*i+j),4)}"
                for i in range(4) for j in range(NS)]
    e("s_mov_b32 s28, 0")
    e("s_mov_b32 s29, 0")
    e("s_add_u32 s61, s12, s10")
    e("s_cmp_eq_u32 s61, 0")
    e(f"s_cselect_b32 s61, {WBAT}, 99")
    e("s_barrier")
    k.stamp(4)
    for r in reads2(0, 0): e(r)
    k.label("c2loop")
    sal = ["s_add_u32 s29, s29, 1", f"s_mov_b32 s30, {STG2}", f"s_cmp_eq_u32 s29, {NB2}", f"s_cselect_b32 s30, {-(NB2-1)*STG2}, s30",
           "s_cselect_b32 s29, 0, s29", "s_add_u32 s28, s28, 1"]
    weave(e, mfmas2(0), reads2(1, 1) + sal,
          waits={0: "s_waitcnt lgkmcnt(6)", 4: "s_waitcnt lgkmcnt(12)", 8: "s_waitcnt lgkmcnt(14)", 12: "s_waitcnt lgkmcnt(12)"},
          sched=[2]*6 + [1]*6)
    weave(e, mfmas2(1), [f"v_add_u32 v{a}, s30, v{a}" for a in [BH] + BW] + reads2(0, 0) + [f"s_cmp_lt_u32 s28, {NST2}"],
          waits={0: "s_waitcnt lgkmcnt(6)"}, mid=(4, ["s_waitcnt lgkmcnt(0)", "s_barrier"]), sched=[0]*4 + [2]*6 + [1]*6)
    if 'b' in X:
        e(f"s_cbranch_scc0 {k.L('c2done')}")
        e(f"s_cmp_eq_u32 s28, s61")
        e(f"s_cbranch_scc0 {k.L('c2loop')}")
        e("buffer_wbl2 sc1")
        e(f"s_branch {k.L('c2loop')}")
        k.label("c2done")
    else:
        e(f"s_cbranch_scc1 {k.L('c2loop')}")
    k.stamp(5)
    T = F0
    e("s_lshl_b32 s26, s2, 2")
    e("s_add_u32 s26, s26, s10")
    e("s_xor_b32 s27, s26, 4")
    e("s_lshl_b32 s31, s26, 12")
    e(f"s_add_u32 s31, s31, 0x{PART:x}")
    e("s_lshl_b32 s32, s27, 12")
    e(f"s_add_u32 s32, s32, 0x{PART:x}")
    e("s_lshl_b32 s35, s2, 11")
    e("s_lshl_b32 s36, s10, 7")
    e("s_add_u32 s35, s35, s36")
    e(f"s_add_u32 s35, s35, 0x{FLG:x}")
    e("s_xor_b32 s36, s35, 0x800")
    e("v_lshlrev_b32 v14, 4, v0")
    e("s_cmp_eq_u32 s15, 0")
    e(f"s_cbranch_scc1 {k.L('send_hi')}")
    for own in (1, 0):
        if own == 0: k.label("send_hi")
        for i in range(4):
            a0 = ACC + 4*(NS*i + 2*(1-own)); o = T + 48 + 4*i
            for q in range(4):
                e(f"v_cvt_pk_bf16_f32 v{o+q}, v{a0+2*q}, v{a0+2*q+1}")
            e(f"buffer_store_dwordx4 {vr(o,4)}, v14, s[20:23], s31 offen offset:{1024*i} sc1")
        if own == 1:
            for i in range(4):
                for q in range(8):
                    e(f"v_mov_b32 v{ACC+4*NS*i+q}, v{ACC+4*NS*i+8+q}")
            e(f"s_branch {k.L('sent')}")
    k.label("sent")
    e("v_lshlrev_b32 v13, 7, v7")
    e("v_lshl_add_u32 v13, v4, 3, v13")
    e("s_lshl_b32 s26, s25, 13")
    e(f"s_add_u32 s26, s26, {RES}")
    e("v_add_u32 v13, s26, v13")
    e("s_lshl_b32 s26, s24, 1")
    for j in range(2):
        e(f"s_add_u32 s27, s26, {j}")
        e(f"v_xor_b32 v15, s27, v6")
        e(f"v_lshl_add_u32 v{8+j}, v15, 5, v13")
    e("s_waitcnt lgkmcnt(0)")
    HR = T
    for i in range(4):
        for j in range(2):
            e(f"ds_read_b64_tr_b16 {vr(HR+2*(2*i+j),2)}, v{8+j} offset:{2048*i}")
    e("v_and_b32 v10, 15, v0")
    e("v_lshrrev_b32 v11, 1, v2")
    e("v_and_b32 v12, 7, v10")
    e("v_xor_b32 v11, v11, v12")
    e("v_lshlrev_b32 v11, 4, v11")
    e("v_lshl_add_u32 v11, v10, 7, v11")
    e("v_and_b32 v12, 1, v2")
    e("v_lshl_add_u32 v11, v12, 3, v11")
    e("s_lshl_b32 s26, s10, 12")
    e("v_add_u32 v3, s26, v11")
    e("v_xor_b32 v4, 32, v3")
    e("v_xor_b32 v5, 64, v3")
    e("v_xor_b32 v6, 96, v3")
    e("v_lshrrev_b32 v10, 3, v0")
    e("v_and_b32 v11, 7, v0")
    e("v_xor_b32 v12, v11, v10")
    e("v_lshlrev_b32 v12, 4, v12")
    e("v_lshl_add_u32 v12, v10, 7, v12")
    e("v_add_u32 v7, s26, v12")
    e("v_lshlrev_b32 v10, 11, v10")
    e("v_lshl_add_u32 v10, v11, 4, v10")
    e("s_lshl_b32 s26, s13, 7")
    e("s_lshl_b32 s27, s24, 5")
    e("s_add_u32 s26, s26, s27")
    e("s_lshl_b32 s27, s15, 6")
    e("s_add_u32 s26, s26, s27")
    e("s_lshl_b32 s26, s26, 11")
    e("s_lshl_b32 s27, s53, 8")
    e("s_add_u32 s26, s26, s27")
    e("s_lshl_b32 s27, s25, 7")
    e("s_add_u32 s48, s26, s27")
    for q in range(1, 4):
        e(f"s_add_u32 s{48+q}, s48, {q*8*2048}")
    PR = T + 16; U = PR + 16
    e("s_mov_b32 s37, 0xffff0000")
    e("s_waitcnt lgkmcnt(0)")
    for i in range(4):
        for j in range(2):
            n = 2*i + j; a = ACC + 4*(NS*i + j); u = U + 4*(n % 2)
            e(f"v_lshlrev_b32 v{u}, 16, v{HR+2*n}")
            e(f"v_and_b32 v{u+1}, s37, v{HR+2*n}")
            e(f"v_lshlrev_b32 v{u+2}, 16, v{HR+2*n+1}")
            e(f"v_and_b32 v{u+3}, s37, v{HR+2*n+1}")
            for h in range(2):
                e(f"v_pk_add_f32 {vr(a+2*h,2)}, {vr(a+2*h,2)}, {vr(u+2*h,2)}")
    e("v_mov_b32 v15, 0")
    e("s_waitcnt vmcnt(0)")
    e("s_mov_b64 exec, 1")
    e("buffer_store_dwordx2 v[216:217], v15, s[20:23], s35 offen sc1")
    e("s_mov_b32 s38, 0")
    k.label("poll")
    e("buffer_load_dwordx2 v[218:219], v15, s[20:23], s36 offen sc1")
    e("s_add_u32 s38, s38, 1")
    e("s_cmp_gt_u32 s38, 0x200000")
    e(f"s_cbranch_scc1 {k.L('polled')}")
    e("s_waitcnt vmcnt(0)")
    e("v_cmp_ne_u64 vcc, v[218:219], v[216:217]")
    e(f"s_cbranch_vccnz {k.L('poll')}")
    k.label("polled")
    k.stamp(6)
    e("s_mov_b64 exec, -1")
    for i in range(4):
        e(f"buffer_load_dwordx4 {vr(PR+4*i,4)}, v14, s[20:23], s32 offen offset:{1024*i} sc1")
    for i in range(4):
        for j in range(2):
            n = 2*i + j; a = ACC + 4*(NS*i + j); u = U + 4*(n % 2)
            if j == 0: e(f"s_waitcnt vmcnt({3-i})")
            e(f"v_lshlrev_b32 v{u}, 16, v{PR+2*n}")
            e(f"v_and_b32 v{u+1}, s37, v{PR+2*n}")
            e(f"v_lshlrev_b32 v{u+2}, 16, v{PR+2*n+1}")
            e(f"v_and_b32 v{u+3}, s37, v{PR+2*n+1}")
            for h in range(2):
                e(f"v_pk_add_f32 {vr(a+2*h,2)}, {vr(a+2*h,2)}, {vr(u+2*h,2)}")
            e(f"v_cvt_pk_bf16_f32 v{HR+2*n}, v{a}, v{a+1}")
            e(f"v_cvt_pk_bf16_f32 v{HR+2*n+1}, v{a+2}, v{a+3}")
            e(f"ds_write_b64 v{3+i}, {vr(HR+2*n,2)} offset:{2048*j}")
    e("s_waitcnt lgkmcnt(0)")
    for q in range(4):
        e(f"ds_read_b128 {vr(PR+4*q,4)}, v7 offset:{1024*q}")
    for q in range(4):
        e(f"s_waitcnt lgkmcnt({3-q})")
        e(f"buffer_store_dwordx4 {vr(PR+4*q,4)}, v10, s[44:47], s{48+q} offen")
    if STAMP:
        e("s_waitcnt vmcnt(0)")
        k.dump_stamps(1, 20, 10)
    k.dbg_out()
    e("s_add_u32 s26, s2, s10")
    e("s_cmp_eq_u32 s26, 0")
    e(f"s_cbranch_scc0 {k.L('fin')}")
    e("s_load_dwordx2 s[60:61], s[0:1], 80")
    e("v_mov_b32 v2, 0")
    e("v_mov_b32 v3, 0")
    e("s_waitcnt lgkmcnt(0)")
    k.srd(60, 60, 61, 256)
    e("s_mov_b64 exec, 1")
    e("buffer_store_dwordx2 v[2:3], v2, s[60:63], 0 offen sc1")
    k.label("fin")
    e("s_endpgm")

    k.lines.append("Lmlp_loader:")
    k.role = "B"
    k.stamp(0)
    entry()
    e("v_mov_b32 v216, s98")
    e("v_mov_b32 v217, s99")
    e("s_sub_u32 s24, s10, 4")
    VH = 16; VW = 20
    e("s_lshl_b32 s47, s24, 16")
    e("s_lshl_b32 s26, s13, 8")
    e("s_add_u32 s47, s47, s26")
    e(f"s_add_u32 s47, s47, 0x{HT:x}")
    e(f"s_mul_i32 s48, s24, {16*7168}")
    e("s_mul_i32 s27, s14, 448")
    e("s_add_u32 s48, s48, s27")
    e("s_add_u32 s36, s14, s13")
    e("s_and_b32 s36, s36, 15")
    e("s_mov_b32 s49, 0")
    e("s_lshl_b32 s25, s36, 18")
    e("s_add_u32 s25, s25, s47")
    e(f"s_mul_i32 s26, s36, {64*7168}")
    e("s_add_u32 s26, s26, s48")
    e("s_lshl_b32 s27, s24, 12")
    e("s_mul_i32 s28, s24, 7168")
    e(f"s_add_u32 s28, s28, {WOFF}")
    e("v_bfe_u32 v9, v0, 1, 3")
    e("v_and_b32 v10, 1, v0")
    e("v_lshlrev_b32 v10, 4, v10")
    e("v_lshl_add_u32 v10, v2, 12, v10")
    e("v_xor_b32 v9, v9, v2")
    for pp in range(4):
        if pp == 2: e("v_xor_b32 v9, 4, v9")
        e(f"v_lshl_add_u32 v{VH+pp}, v9, 5, v10")
        if pp: e(f"v_add_u32 v{VH+pp}, {pp*(16384-1024)}, v{VH+pp}")
    def wpat(q):
        e(f"v_add_u32 v9, {64*q}, v0")
        e("v_mul_u32_u24 v10, 9363, v9")
        e("v_lshrrev_b32 v10, 18, v10")
        e("v_mul_u32_u24 v11, 28, v10")
        e("v_sub_u32 v11, v9, v11")
        e("v_lshrrev_b32 v12, 2, v10")
        e("v_and_b32 v12, 2, v12")
        e("v_xor_b32 v11, v11, v12")
        e("v_mul_u32_u24 v12, 7168, v10")
        e("v_lshl_add_u32 v12, v11, 4, v12")
        e(f"v_add_u32 v{VW+q}, {-1024*(q%4)}, v12")
    for q in range(7): wpat(q)
    e("s_waitcnt lgkmcnt(0)")
    k.srd(20, 8, 9, WS_BYTES)
    k.srd(16, 4, 5, 1024*3584*2)
    def advance():
        e("s_add_u32 s49, s49, 1")
        e("s_add_u32 s37, s36, 1")
        e("s_and_b32 s37, s37, 3")
        e("s_and_b32 s36, s36, 12")
        e("s_or_b32 s36, s36, s37")
        e("s_and_b32 s37, s49, 3")
        e("s_cmp_eq_u32 s37, 0")
        e("s_cselect_b32 s37, 4, 0")
        e("s_add_u32 s36, s36, s37")
        e("s_and_b32 s36, s36, 15")
        e("s_lshl_b32 s25, s36, 18")
        e("s_add_u32 s25, s25, s47")
        e(f"s_mul_i32 s26, s36, {64*7168}")
        e("s_add_u32 s26, s26, s48")
    def hpart(so, m0):
        e(m0); e("s_nop 0")
        for pp in range(4):
            e(f"buffer_load_dwordx4 v{VH+pp}, s[20:23], {so} offen offset:{1024*pp}{HSC} lds")
    def wpart(buf, pol=""):
        e(f"s_add_u32 m0, s28, {buf}"); e("s_nop 0")
        for q in range(7):
            if q == 4: e(f"s_add_u32 m0, s28, {buf+4096}"); e("s_nop 0")
            e(f"buffer_load_dwordx4 v{VW+q}, s[16:19], s26 offen offset:{1024*(q%4)}{pol} lds")
    e("s_cmp_ge_u32 s24, 2")
    e(f"s_cbranch_scc1 {k.L('now0')}")
    wpart(2*STG1, " nt" if 'N' in X else "")
    e(f"s_add_u32 s26, s26, {32*7168}")
    wpart(2*STG1 + 2*7168, " nt" if 'N' in X else "")
    k.label("now0")
    e("s_mov_b32 s50, s25")
    e("s_mov_b32 s62, s36")
    advance()
    e("v_lshrrev_b32 v9, 3, v0")
    e("v_lshlrev_b32 v9, 11, v9")
    e("v_bfe_u32 v10, v0, 2, 1")
    e("v_lshl_add_u32 v9, v10, 18, v9")
    e("v_and_b32 v10, 3, v0")
    e("v_lshl_add_u32 v38, v10, 14, v9")
    e("s_lshl_b32 s52, s24, 16")
    e(f"s_add_u32 s52, s52, 0x{FHT:x}")
    e("s_mov_b64 s[58:59], 0")
    e("s_mov_b32 s39, 0")
    e(f"v_mov_b32 v35, {FRONT_FLAG+52}")
    k.label("waitF")
    e("s_sleep 1")
    e("ds_read_b32 v34, v35")
    e("s_waitcnt lgkmcnt(0)")
    e("v_cmp_gt_u32 vcc, 8, v34")
    e(f"s_cbranch_vccnz {k.L('waitF')}")
    nneed = [0]
    def need(stage):
        n = nneed[0]; nneed[0] += 1
        k.label(f"need{n}")
        e(f"s_lshl_b32 s60, {stage}, 2")
        e("s_lshr_b64 s[60:61], s[58:59], s60")
        e("s_and_b32 s60, s60, 15")
        e("s_cmp_eq_u32 s60, 15")
        e(f"s_cbranch_scc1 {k.L(f'have{n}')}")
        e("buffer_load_dwordx2 v[100:101], v38, s[20:23], s52 offen sc1")
        e("s_add_u32 s39, s39, 1")
        e("s_cmp_gt_u32 s39, 0x100000")
        e(f"s_cbranch_scc1 {k.L(f'have{n}')}")
        e("s_waitcnt vmcnt(0)")
        e("v_cmp_eq_u64 s[58:59], v[100:101], v[216:217]")
        e(f"s_branch {k.L(f'need{n}')}")
        k.label(f"have{n}")
    need("s62")
    k.stamp(5)
    k.note("s39", 17)
    hpart("s50", f"s_add_u32 m0, s27, {2*STG1}")
    wpart(0, " nt" if 'M' in X else "")
    e("s_waitcnt vmcnt(7)")
    e("s_barrier")
    need("s36")
    hpart("s25", "s_mov_b32 m0, s27")
    advance()
    e(f"s_mov_b32 s29, {STG1}")
    k.srd(40, 6, 7, 1024*3584*2)
    e("s_lshl_b32 s63, s2, 2")
    e("s_add_u32 s63, s63, s24")
    e(f"s_mul_i32 s63, s63, {56*128}")
    if 'h' in X: e(f"s_add_u32 s63, s63, {28*128}")
    e("v_lshlrev_b32 v39, 7, v0")
    def issue1():
        need("s36")
        e("s_add_u32 m0, s27, s29")
        e("s_add_u32 s30, s28, s29")
        for pp in range(4):
            e(f"buffer_load_dwordx4 v{VH+pp}, s[20:23], s25 offen offset:{1024*pp}{HSC} lds")
        e("s_mov_b32 m0, s30")
        e("s_nop 0")
        for q in range(4):
            e(f"buffer_load_dwordx4 v{VW+q}, s[16:19], s26 offen offset:{1024*q} lds")
        e("s_add_u32 m0, s30, 4096")
        e(f"s_add_u32 s29, s29, {STG1}")
        for q in range(4, 7):
            e(f"buffer_load_dwordx4 v{VW+q}, s[16:19], s26 offen offset:{1024*(q-4)} lds")
        if TR:
            e(f"s_mov_b64 exec, {'0x7' if 'h' in X else '0x1f'}")
            e("buffer_load_dword v210, v39, s[40:43], s63 offen")
            e("s_mov_b64 exec, -1")
            e(f"s_add_u32 s63, s63, {384 if 'h' in X else 640}")
        e(f"s_cmp_eq_u32 s29, {NB1*STG1}")
        e("s_cselect_b32 s29, 0, s29")
        advance()
    k.stamp(1)
    issue1()
    trcommon()
    e("s_lshl_b32 s31, s24, 1")
    e("v_xor_b32 v12, s31, v6")
    e("v_lshl_add_u32 v36, v12, 5, v8")
    e(f"v_add_u32 v36, {2*STG1}, v36")
    e("v_xor_b32 v37, 32, v36")
    S = [40, 42]; Q = [44, 46]
    for r in range(40, 48): e(f"v_mov_b32 v{r}, 0")
    e("s_mov_b32 s33, 0xffff0000")
    D = 48; U = 64
    for t in range(2):
        for st in range(2):
            for h in range(2):
                e(f"ds_read_b64_tr_b16 {vr(D+8*t+4*st+2*h,2)}, v{36+t} offset:{8192*st+1024*h}")
    e("s_waitcnt lgkmcnt(0)")
    for j in range(8):
        for t in range(2):
            u = U + 2*t
            e(f"v_lshlrev_b32 v{u}, 16, v{D+8*t+j}")
            e(f"v_and_b32 v{u+1}, s33, v{D+8*t+j}")
        for t in range(2):
            u = U + 2*t
            for q in range(2):
                e(f"v_add_f32 v{S[t]+q}, v{S[t]+q}, v{u+q}")
                e(f"v_fmac_f32 v{Q[t]+q}, v{u+q}, v{u+q}")
    def greduce(regs):
        for op in ("v_permlane32_swap_b32", "v_permlane16_swap_b32"):
            for i, r in enumerate(regs): e(f"v_mov_b32 v{D+i}, v{r}")
            e("s_nop 1")
            for i, r in enumerate(regs): e(f"{op} v{r}, v{D+i}")
            e("s_nop 1")
            for i, r in enumerate(regs): e(f"v_add_f32 v{r}, v{r}, v{D+i}")
    for r in S + Q: e(f"v_add_f32 v{r}, v{r}, v{r+1}")
    greduce(S + Q)
    e("v_cmp_gt_u32 vcc, 16, v0")
    e("s_lshl_b32 s31, s13, 15")
    e("s_lshl_b32 s32, s24, 9")
    e("s_add_u32 s31, s31, s32")
    e(f"s_add_u32 s31, s31, 0x{SP2:x}")
    e("s_lshl_b32 s32, s14, 11")
    e("s_add_u32 s32, s32, s31")
    e(f"v_cndmask_b32 v214, v{S[1]}, v{S[0]}, vcc")
    e(f"v_cndmask_b32 v215, v{Q[1]}, v{Q[0]}, vcc")
    e("v_lshlrev_b32 v9, 4, v0")
    e("s_mov_b64 exec, 0xffffffff")
    e("buffer_store_dwordx4 v[214:217], v9, s[20:23], s32 offen sc1")
    e("s_mov_b64 exec, -1")
    e("v_mul_u32_u24 v12, 448, v7")
    e("v_lshl_add_u32 v12, v4, 3, v12")
    e("s_lshl_b32 s32, s24, 7")
    e(f"s_add_u32 s32, s32, {WOFF + 2*STG1}")
    e("v_add_u32 v12, s32, v12")
    e("v_lshl_add_u32 v13, v5, 5, v12")
    e("v_xor_b32 v14, 1, v5")
    e("v_lshl_add_u32 v14, v14, 5, v12")
    CW = 68
    for t in range(4):
        for st in range(2):
            for h in range(2):
                e(f"ds_read_b64_tr_b16 {vr(CW+8*t+4*st+2*h,2)}, v{13 + t%2} offset:{14336*st+1792*h+64*(t//2)}")
        if t == 2: e("s_waitcnt lgkmcnt(8)")
    for r in range(40, 48): e(f"v_mov_b32 v{r}, 0")
    e("s_waitcnt lgkmcnt(0)")
    for j in range(8):
        for t in range(4):
            e(f"v_lshlrev_b32 v{U}, 16, v{CW+8*t+j}")
            e(f"v_and_b32 v{U+1}, s33, v{CW+8*t+j}")
            e(f"v_add_f32 v{40+t}, v{40+t}, v{U}")
            e(f"v_add_f32 v{44+t}, v{44+t}, v{U+1}")
    for t in range(4): e(f"v_add_f32 v{40+t}, v{40+t}, v{44+t}")
    greduce([40, 41, 42, 43])
    e("v_cmp_gt_u32 vcc, 16, v0")
    e("s_lshl_b32 s32, s14, 4")
    e("s_add_u32 s32, s32, s13")
    e("s_lshl_b32 s32, s32, 11")
    e("s_lshl_b32 s34, s24, 9")
    e("s_add_u32 s32, s32, s34")
    e(f"s_add_u32 s32, s32, 0x{CP:x}")
    e("v_cndmask_b32 v214, v42, v40, vcc")
    e("v_cndmask_b32 v215, v43, v41, vcc")
    e("s_mov_b64 exec, 0xffffffff")
    e("buffer_store_dwordx4 v[214:217], v9, s[20:23], s32 offen sc1")
    e("s_mov_b64 exec, -1")
    e("s_mov_b32 s35, 0")
    k.label("l1loop")
    e("s_cmp_eq_u32 s35, 0")
    e(f"s_cbranch_scc1 {k.L('lw20')}")
    e("s_cmp_eq_u32 s35, 1")
    e(f"s_cbranch_scc1 {k.L('lw12')}")
    e(f"s_waitcnt vmcnt({11 + 2*TR})")
    k.label("lw12")
    e(f"s_waitcnt vmcnt({13 + 2*TR})")
    k.label("lw20")
    e(f"s_waitcnt vmcnt({13 + TR})")
    e("s_barrier")
    e("s_cmp_ge_u32 s35, 13")
    e(f"s_cbranch_scc1 {k.L('l1done')}")
    issue1()
    e("s_add_u32 s35, s35, 1")
    e(f"s_branch {k.L('l1loop')}")
    k.label("l1done")
    k.stamp(2)
    e("s_lshl_b32 s33, s14, 15")
    e("s_lshl_b32 s34, s24, 9")
    e("s_add_u32 s33, s33, s34")
    e(f"s_add_u32 s33, s33, 0x{CP:x}")
    e("v_and_b32 v10, 31, v0")
    e("v_lshlrev_b32 v9, 4, v10")
    e("v_lshrrev_b32 v11, 5, v0")
    e("v_lshl_add_u32 v9, v11, 11, v9")
    e("v_and_b32 v11, 7, v0")
    e("v_lshlrev_b32 v11, 16, v11")
    e("s_and_b32 s34, s2, 31")
    e("s_lshl_b32 s34, s34, 11")
    e(f"s_add_u32 s50, s34, 0x{XID:x}")
    e(f"s_add_u32 s51, s34, 0x{HFL:x}")
    e("s_mov_b32 s39, 0")
    G = 68
    k.label("spoll")
    e("s_mov_b32 s32, s31")
    for q in range(8):
        e(f"buffer_load_dwordx4 {vr(G+4*q,4)}, v9, s[20:23], s32 offen sc1")
        e("s_add_u32 s32, s32, 4096")
    e("s_mov_b32 s32, s33")
    for q in range(8):
        e(f"buffer_load_dwordx4 {vr(G+32+4*q,4)}, v9, s[20:23], s32 offen sc1")
        e("s_add_u32 s32, s32, 4096")
    e("buffer_load_dwordx3 v[64:66], v11, s[20:23], s50 offen sc1")
    e("s_add_u32 s39, s39, 1")
    e("s_cmp_gt_u32 s39, 0x100000")
    e(f"s_cbranch_scc1 {k.L('spolled')}")
    e("s_waitcnt vmcnt(0)")
    e("v_cmp_ne_u64 s[44:45], v[64:65], v[216:217]")
    for q in range(16):
        e(f"v_cmp_ne_u64 vcc, {vr(G+4*q+2,2)}, v[216:217]")
        e("s_or_b64 s[44:45], s[44:45], vcc")
    e("s_cmp_lg_u64 s[44:45], 0")
    e(f"s_cbranch_scc1 {k.L('spoll')}")
    k.label("spolled")
    e("s_waitcnt vmcnt(0)")
    e("v_cmp_ne_u32 vcc, s55, v66")
    for q in range(1, 8):
        for j in range(2):
            e(f"v_add_f32 v{40+j}, v{G+j if q == 1 else 40+j}, v{G+4*q+j}")
            e(f"v_add_f32 v{42+j}, v{G+32+j if q == 1 else 42+j}, v{G+32+4*q+j}")
    e("s_cmp_eq_u64 vcc, 0")
    e("s_cselect_b32 s54, 1, 2")
    if 'f' in X: e("s_mov_b32 s54, 2")
    for i in range(4): e(f"v_mov_b32 v{D+i}, v{40+i}")
    e("s_nop 1")
    for i in range(4): e(f"v_permlane32_swap_b32 v{40+i}, v{D+i}")
    e("s_nop 1")
    for i in range(4): e(f"v_add_f32 v{40+i}, v{40+i}, v{D+i}")
    ln_stats(k, [40], [41], [56], [57], [60])
    e("s_lshl_b32 s31, s24, 8")
    e(f"s_add_u32 s31, s31, {STATS}")
    e("v_lshl_add_u32 v9, v10, 3, s31")
    e("ds_write_b64 v9, v[56:57]")
    e(f"v_mov_b32 v9, {MISC}")
    e("v_mov_b32 v62, 0")
    e("v_mov_b32 v63, s54")
    e("ds_write_b64 v9, v[62:63]")
    e("v_and_b32 v9, 15, v0")
    e("v_and_b32 v12, 16, v0")
    e("v_lshl_add_u32 v9, v12, 1, v9")
    e("s_lshl_b32 s31, s24, 8")
    e(f"s_add_u32 s31, s31, {CSL}")
    e("v_lshl_add_u32 v9, v9, 2, s31")
    e("ds_write_b32 v9, v42")
    e("ds_write_b32 v9, v43 offset:64")
    if 'w' not in X:
        e("s_lshl_b32 s31, s2, 2")
        e("s_add_u32 s31, s31, s24")
        e(f"s_mul_i32 s31, s31, {56*128}")
        e("v_lshlrev_b32 v9, 7, v0")
        e("buffer_load_dword v210, v9, s[40:43], s31 offen")
    e("s_waitcnt lgkmcnt(0)")
    e("s_barrier")
    VA = 16; VW2 = 18; VR = 22
    e(f"v_lshlrev_b32 v{VA}, 4, v0")
    e(f"v_add_u32 v{VA+1}, {112*1024-2048}, v{VA}")
    e("v_bfe_u32 v9, v0, 1, 3")
    e("v_and_b32 v10, 1, v0")
    e("v_lshlrev_b32 v10, 4, v10")
    e("v_lshl_add_u32 v10, v2, 11, v10")
    e("v_xor_b32 v9, v9, v2")
    e("v_xor_b32 v12, 4, v9")
    for pp in range(4):
        e(f"v_lshl_add_u32 v{VW2+pp}, v{9 if pp % 2 == 0 else 12}, 5, v10")
        if pp: e(f"v_add_u32 v{VW2+pp}, {pp*(8192-1024)}, v{VW2+pp}")
    e("v_bfe_u32 v9, v0, 1, 2")
    e("v_xor_b32 v9, v9, v2")
    e("v_and_b32 v10, 1, v0")
    e("v_lshlrev_b32 v10, 4, v10")
    e("v_lshl_add_u32 v10, v9, 5, v10")
    e("v_lshrrev_b32 v9, 3, v0")
    e(f"v_lshl_add_u32 v{VR}, v9, 12, v10")
    for pp in range(1, 4):
        e(f"v_add_u32 v{VR+pp}, {pp*(32768-1024)}, v{VR}")
    e("s_lshl_b32 s47, s13, 3")
    e("s_lshl_b32 s26, s24, 1")
    e("s_add_u32 s47, s47, s26")
    e("s_mul_i32 s47, s47, 112")
    e("s_mul_i32 s26, s15, 56")
    e("s_add_u32 s47, s47, s26")
    e("s_lshl_b32 s47, s47, 10")
    e(f"s_add_u32 s47, s47, 0x{HM:x}")
    e("s_mul_i32 s48, s15, 1792")
    e("s_lshl_b32 s27, s24, 4")
    e("s_add_u32 s48, s48, s27")
    e("s_lshl_b32 s48, s48, 11")
    e("s_lshl_b32 s27, s53, 8")
    e("s_add_u32 s48, s48, s27")
    e("s_mul_i32 s36, s53, 7")
    e("s_add_u32 s36, s36, 1")
    e("s_lshr_b32 s36, s36, 1")
    e("s_lshl_b32 s27, s24, 12")
    e(f"s_add_u32 s28, s27, {WOFF}")
    e("s_lshr_b32 s62, s11, 1")
    e("s_mul_i32 s62, s62, 3")
    e("s_lshr_b32 s62, s62, 1")
    e("s_lshl_b32 s62, s62, 2")
    e(f"s_min_u32 s52, s36, {NST2-4}")
    def st_of(n):
        e(f"s_add_u32 s37, s36, {n}")
        e(f"s_cmp_ge_u32 s37, {NST2}")
        e(f"s_cselect_b32 s38, {4 if 'F' not in X else NST2}, 0")
        e("s_sub_u32 s37, s37, s38")
    e("s_barrier")
    k.stamp(3)
    def wpart2(n):
        st_of(n)
        e("s_lshl_b32 s26, s37, 17")
        e("s_add_u32 s26, s26, s48")
        e(f"s_add_u32 m0, s28, {n*STG2}")
        e("s_nop 0")
        for pp in range(4):
            e(f"buffer_load_dwordx4 v{VW2+pp}, s[40:43], s26 offen offset:{1024*pp}{NT2} lds")
    wpart2(0); wpart2(1); wpart2(2)
    if 'P' in X:
        e("s_lshl_b32 s31, s2, 2")
        e("s_add_u32 s31, s31, s24")
        e("s_lshl_b32 s31, s31, 12")
        e(f"s_add_u32 s31, s31, 0x{PART:x}")
        e("v_lshlrev_b32 v9, 6, v0")
        e("buffer_load_dword v210, v9, s[20:23], s31 offen sc1")
    wpart2(3)
    e("s_lshl_b32 s31, s53, 7")
    e("s_lshl_b32 s32, s24, 5")
    e("s_add_u32 s31, s31, s32")
    e("s_lshl_b32 s31, s31, 12")
    e("s_lshl_b32 s32, s13, 8")
    e("s_add_u32 s31, s31, s32")
    e("s_lshl_b32 s32, s15, 7")
    e("s_add_u32 s31, s31, s32")
    e(f"s_add_u32 s31, s31, 0x{HT:x}")
    e(f"s_add_u32 m0, s27, {RES}")
    e("s_nop 0")
    for pp in range(4):
        e(f"buffer_load_dwordx4 v{VR+pp}, s[20:23], s31 offen offset:{1024*pp} lds")
    def hpart2(n):
        st_of(n)
        e("s_lshl_b32 s25, s37, 11")
        e("s_add_u32 s25, s25, s47")
        e(f"s_add_u32 m0, s27, {n*STG2}")
        e("s_nop 0")
        for pp in range(4):
            e(f"buffer_load_dwordx4 v{VA+pp//2}, s[20:23], s25 offen offset:{1024*pp} lds")
    e(f"s_waitcnt vmcnt({17 if 'P' in X else 16})")
    k.stamp(4)
    e("s_barrier")
    e("s_mov_b32 s39, 0")
    k.label("hpoll")
    e("buffer_load_dwordx2 v[64:65], v11, s[20:23], s51 offen sc1")
    e("s_add_u32 s39, s39, 1")
    e("s_cmp_gt_u32 s39, 0x100000")
    e(f"s_cbranch_scc1 {k.L('hpolled')}")
    e("s_waitcnt vmcnt(0)")
    e("v_cmp_ne_u64 vcc, v[64:65], v[216:217]")
    e(f"s_cbranch_vccnz {k.L('hpoll')}")
    k.label("hpolled")
    hpart2(3)
    e("s_mov_b32 s29, 0")
    e(f"s_mov_b32 s35, {NB2}")
    def issue2():
        e("s_add_u32 s37, s35, s13")
        e(f"s_and_b32 s37, s37, {RW-1}")
        e(f"s_andn2_b32 s38, s35, {RW-1}")
        e("s_or_b32 s37, s37, s38")
        if 'F' in X:
            st_of("s37")
        else:
            e("s_sub_u32 s37, s37, 4")
            if 'g' not in X:
                e("s_add_u32 s37, s37, s62")
                e(f"s_cmp_ge_u32 s37, {NST2-4}")
                e(f"s_cselect_b32 s38, {NST2-4}, 0")
                e("s_sub_u32 s37, s37, s38")
            e("s_cmp_ge_u32 s37, s52")
            e("s_cselect_b32 s38, 4, 0")
            e("s_add_u32 s37, s37, s38")
        e("s_lshl_b32 s25, s37, 11")
        e("s_add_u32 s25, s25, s47")
        e("s_lshl_b32 s26, s37, 17")
        e("s_add_u32 m0, s27, s29")
        e("s_add_u32 s26, s26, s48")
        for pp in range(4):
            e(f"buffer_load_dwordx4 v{VA+pp//2}, s[20:23], s25 offen offset:{1024*pp} lds")
        e("s_add_u32 m0, s28, s29")
        e(f"s_add_u32 s29, s29, {STG2}")
        for pp in range(4):
            e(f"buffer_load_dwordx4 v{VW2+pp}, s[40:43], s26 offen offset:{1024*pp}{NT2} lds")
        e(f"s_and_b32 s29, s29, {NB2*STG2-1}")
        e("s_add_u32 s35, s35, 1")
    e("s_barrier")
    issue2()
    e("s_waitcnt vmcnt(12)")
    e("s_barrier")
    issue2()
    k.label("l2loop")
    e("s_waitcnt vmcnt(16)")
    e("s_barrier")
    issue2()
    e(f"s_cmp_lt_u32 s35, {NST2}")
    e(f"s_cbranch_scc1 {k.L('l2loop')}")
    for i in range(NST2-NB2, NST2):
        left = max(NST2 - 1 - (i + 1), 0)
        e(f"s_waitcnt vmcnt({left*8})")
        e("s_barrier")
    k.dump_stamps(1, 20, 10)
    e("s_endpgm")
```

```python
from asmlib import *
from layout import *
from k0 import ln_stats
import os
F = os.environ.get('K0X', 'wncd')

KCP = 4160
REG = 4*KCP + 512 + 4096
REG0 = 0
SKL = 4*REG
TILE = 90112
STAT = 135168
FLAG = 153664
LDS_ALL = FLAG + 128
TAG = 204

def emit_front(k):
    e = k.e
    k.pfx = "f_"
    e("s_cmp_ge_u32 s2, 256")
    e(f"s_cbranch_scc1 {k.L('end')}")
    k.clear_stamps()
    e("s_load_dwordx8 s[4:11], s[0:1], 0")
    e("s_load_dwordx4 s[52:55], s[0:1], 80")
    e("s_load_dwordx4 s[12:15], s[0:1], 32")
    e("s_load_dwordx4 s[56:59], s[0:1], 56")
    e("v_lshrrev_b32 v1, 6, v0")
    e("s_lshr_b32 s40, s2, 3")
    e("v_readfirstlane_b32 s60, v1")
    e("s_and_b32 s41, s2, 7")
    e("s_lshl_b32 s61, s41, 7")
    e("s_lshl_b32 s62, s40, 2")
    e("s_add_u32 s61, s61, s62")
    e("s_and_b32 s62, s60, 3")
    e("s_add_u32 s61, s61, s62")
    e(f"s_mul_i32 s63, s62, {REG}")
    e(f"s_add_u32 s63, s63, {REG0}")
    e("s_lshl_b32 s39, s41, 11")
    e("v_mov_b32 v207, 0")
    e("s_getreg_b32 s38, hwreg(HW_REG_XCC_ID, 0, 4)")
    if 'f' in F: e("s_add_u32 s38, s38, s40")
    e("v_mov_b32 v206, s38")
    e("s_cmp_ge_u32 s60, 4")
    e(f"s_cbranch_scc1 {k.L('bwave')}")

    def spin(off, cond, lab, sleep=0):
        if off is not None: e(f"v_mov_b32 v33, {off}")
        k.label(lab)
        if sleep: e(f"s_sleep {sleep}")
        e("ds_read_b32 v34, v33")
        e("s_waitcnt lgkmcnt(0)")
        e(cond)
        e(f"s_cbranch_vccnz {k.L(lab)}")
    def setflag(off):
        e(f"v_mov_b32 v200, {off}")
        e("v_mov_b32 v201, 1")
        e("ds_write_b32 v200, v201")
    def publish(cnt_off, base, lab, r=200):
        e(f"v_mov_b32 v{r}, {FLAG + cnt_off}")
        e(f"v_mov_b32 v{r+1}, 1")
        e("s_mov_b64 exec, 1")
        e(f"ds_add_rtn_u32 v{r+2}, v{r}, v{r+1}")
        e("s_waitcnt lgkmcnt(0)")
        e(f"v_readfirstlane_b32 s3, v{r+2}")
        e("s_cmp_eq_u32 s3, 3")
        e(f"s_cbranch_scc0 {k.L(lab)}")
        e("s_lshl_b32 s3, s40, 14")
        e(f"v_mov_b32 v{r}, s3")
        e(f"s_add_u32 s3, s39, 0x{base:x}")
        e(f"buffer_store_dwordx3 {vr(TAG,3)}, v{r}, s[32:35], s3 offen")
        e(f"s_add_u32 s3, s3, 0x{FB_:x}")
        e(f"buffer_store_dwordx3 {vr(TAG,3)}, v{r}, s[32:35], s3 offen sc1")
        k.label(lab)
        e("s_mov_b64 exec, -1")
    def poll(base, lab, dual=True):
        e("v_and_b32 v121, 31, v0")
        e("v_lshlrev_b32 v121, 14, v121")
        e(f"s_add_u32 s28, s39, 0x{base:x}")
        e(f"s_add_u32 s29, s39, 0x{base + FB_:x}")
        e("s_mov_b32 s3, 0")
        e("v_mov_b32 v122, 0")
        e("s_mov_b64 exec, 0xffffffff")
        k.label(lab)
        e("buffer_load_dwordx3 v[116:118], v121, s[32:35], s28 offen sc1")
        e("s_add_u32 s3, s3, 1")
        if dual:
            e("s_and_b32 s26, s3, 3")
            e(f"s_cbranch_scc1 {k.L(lab + '_a')}")
            e("buffer_load_dwordx3 v[122:124], v121, s[32:35], s29 offen sc1")
            k.label(lab + "_a")
        e("s_cmp_gt_u32 s3, 0x100000")
        e(f"s_cbranch_scc1 {k.L(lab + '_x')}")
        e("s_waitcnt vmcnt(0)")
        e(f"v_cmp_ne_u64 vcc, v[116:117], {vr(TAG,2)}")
        if dual:
            e(f"v_cmp_ne_u64 s[24:25], v[122:123], {vr(TAG,2)}")
            e("s_nop 0")
            e("v_cndmask_b32 v118, v118, v124, vcc")
            e("s_and_b64 vcc, vcc, s[24:25]")
        e(f"s_cbranch_vccnz {k.L(lab)}")
        k.label(lab + "_x")
        e("s_waitcnt vmcnt(0)")
        e("v_cmp_ne_u32 vcc, s38, v118")
        e("s_mov_b64 exec, -1")
    def tagload():
        e(f"buffer_load_dwordx2 {vr(TAG,2)}, v207, s[44:47], 0 offen sc1")
    def tagcheck(lab):
        e("s_mov_b32 s3, 0")
        k.label(lab)
        e(f"v_cmp_eq_u32 vcc, 0, v{TAG}")
        e(f"s_cbranch_vccz {k.L(lab + '_x')}")
        tagload()
        e("s_waitcnt vmcnt(0)")
        e("s_add_u32 s3, s3, 1")
        e("s_cmp_lt_u32 s3, 0x100000")
        e(f"s_cbranch_scc1 {k.L(lab)}")
        k.label(lab + "_x")
        e(f"v_readfirstlane_b32 s98, v{TAG}")
        e(f"v_readfirstlane_b32 s99, v{TAG+1}")
    def finish(lab, target):
        fin_count(lab)
        e(f"s_branch {target}")
    def fin_count(lab):
        e("s_mov_b64 exec, -1")
        e(f"v_mov_b32 v200, {FLAG+52}")
        e("v_mov_b32 v201, 1")
        e("s_waitcnt vmcnt(0)")
        e("s_mov_b64 exec, 1")
        e("ds_add_rtn_u32 v202, v200, v201")
        e("s_waitcnt lgkmcnt(0)")
        e("v_readfirstlane_b32 s3, v202")
        e("s_cmp_eq_u32 s3, 7")
        e(f"s_cbranch_scc0 {k.L(lab)}")
        e("s_lshl_b32 s3, s2, 11")
        e(f"s_add_u32 s3, s3, 0x{FHT:x}")
        e(f"buffer_store_dwordx2 {vr(TAG,2)}, v207, s[32:35], s3 offen sc1")
        k.label(lab)
        e("s_mov_b64 exec, -1")

    e("v_and_b32 v6, 15, v0")
    e("v_lshrrev_b32 v7, 4, v0")
    e("s_lshl_b32 s42, s40, 17")
    e("s_lshl_b32 s43, s41, 8")
    e("s_add_u32 s42, s42, s43")
    e("v_lshlrev_b32 v1, 13, v7")
    e("v_lshl_add_u32 v1, v6, 4, v1")
    e("v_add_u32 v1, s42, v1")
    e("v_add_u32 v2, 0x1000, v1")
    e("v_add_u32 v3, 0xffffe800, v1")
    e("v_add_u32 v4, 0xfffff000, v1")
    e("v_add_u32 v5, 0xfffff800, v1")
    e("s_lshl_b32 s48, s41, 10")
    e("v_and_b32 v9, 63, v0")
    e("v_lshlrev_b32 v9, 4, v9")
    e(f"s_mov_b32 m0, {SKL}")
    e("s_waitcnt lgkmcnt(0)")
    k.srd(20, 6, 7, 4*MB)
    k.srd(24, 8, 9, 4*MB)
    k.srd(28, 10, 11, 8192)
    KR = 12; VR = 40; XR = 56; SK = 72
    e("buffer_load_dwordx4 v9, s[28:31], s48 offen lds")
    for i in range(4):
        e(f"buffer_load_dwordx4 {vr(KR+12+4*i,4)}, v{1+i//2}, s[20:23], 0 offen offset:{2048*(i%2)} nt")
    for i in range(4):
        e(f"buffer_load_dwordx4 {vr(VR+4*i,4)}, v{1+i//2}, s[24:27], 0 offen offset:{2048*(i%2)} nt")
    e(f"buffer_load_dwordx4 {vr(KR,4)}, v3, s[20:23], 0 offen nt")
    e(f"buffer_load_dwordx4 {vr(KR+4,4)}, v4, s[20:23], 0 offen nt")
    e(f"buffer_load_dwordx4 {vr(KR+8,4)}, v5, s[20:23], 0 offen nt")
    k.srd(16, 4, 5, 4*MB)
    for i in range(4):
        e(f"buffer_load_dwordx4 {vr(XR+4*i,4)}, v{1+i//2}, s[16:19], 0 offen offset:{2048*(i%2)} nt")
    k.srd(44, 52, 53, 256)
    tagload()
    e("s_barrier")
    k.srd(32, 54, 55, WS_BYTES)
    e("s_and_b32 s3, s61, -2")
    e("s_lshl_b32 s3, s3, 1")
    e("s_load_dword s51, s[14:15], s3")
    e("v_and_b32 v10, 14, v6")
    e("v_xor_b32 v11, v10, v7")
    e("v_xor_b32 v10, 1, v11")
    e("v_lshlrev_b32 v8, 10, v6")
    e("v_lshl_add_u32 v10, v10, 3, v8")
    e("v_lshl_add_u32 v11, v11, 3, v8")
    e(f"v_add_u32 v10, {TILE}, v10")
    e(f"v_add_u32 v11, {TILE}, v11")
    e(f"v_lshlrev_b32 v8, 6, v6")
    e(f"v_add_u32 v8, {SKL}, v8")
    e("s_mov_b32 s48, 0x05040100")
    e("s_mov_b32 s49, 0x07060302")
    e("s_mov_b32 s50, 0xffff0000")
    T = 104; KU = 112
    ACC = [2, 4, 8, 6]
    k.stamp(1)
    e("s_waitcnt vmcnt(16)")
    for q in range(4):
        e(f"ds_read_b128 {vr(SK+4*q,4)}, v8 offset:{16*q}")
    e("s_waitcnt vmcnt(5) lgkmcnt(0)")
    setflag(FLAG + 24)
    k.stamp(2)
    k.label("kv")
    for jj in range(4):
        for c in range(2):
            d0 = SK + 4*jj + 2*c
            e(f"v_lshlrev_b32 v{T+0+c}, 16, v{d0}")
            e(f"v_and_b32 v{T+2+c}, s50, v{d0}")
            e(f"v_lshlrev_b32 v{T+4+c}, 16, v{d0+1}")
            e(f"v_and_b32 v{T+6+c}, s50, v{d0+1}")
        for r in range(7):
            e(f"v_lshlrev_b32 v{KU+2*r}, 16, v{KR+4*r+jj}")
            e(f"v_and_b32 v{KU+2*r+1}, s50, v{KR+4*r+jj}")
        for tap in (3, 2, 1, 0):
            for i in range(4):
                kk = KU + 2*(i+3-tap)
                if tap == 3:
                    e(f"v_pk_mul_f32 {vr(ACC[i],2)}, {vr(kk,2)}, {vr(T+2*tap,2)}")
                else:
                    e(f"v_pk_fma_f32 {vr(ACC[i],2)}, {vr(kk,2)}, {vr(T+2*tap,2)}, {vr(ACC[i],2)}")
        for i in range(4):
            e(f"v_lshlrev_b32 v{KU+2*i}, 16, v{VR+4*i+jj}")
            e(f"v_and_b32 v{KU+2*i+1}, s50, v{VR+4*i+jj}")
        for i in range(4):
            e(f"v_pk_mul_f32 {vr(ACC[i],2)}, {vr(ACC[i],2)}, {vr(KU+2*i,2)}")
        P = KU + 8
        for c in range(2):
            e(f"v_cvt_pk_bf16_f32 v{P+2*c}, v{ACC[3]+c}, v{ACC[2]+c}")
            e(f"v_cvt_pk_bf16_f32 v{P+2*c+1}, v{ACC[1]+c}, v{ACC[0]+c}")
        for c in range(2):
            e(f"ds_write_b64 v10, {vr(P+2*c,2)} offset:{128*(2*jj+c)}")
    e("s_waitcnt vmcnt(1)")
    for jj in range(4):
        for c in range(2):
            P = KR + 4*jj + 2*c
            sel = "s48" if c == 0 else "s49"
            e(f"v_perm_b32 v{P}, v{XR+4+jj}, v{XR+jj}, {sel}")
            e(f"v_perm_b32 v{P+1}, v{XR+12+jj}, v{XR+8+jj}, {sel}")
            e(f"ds_write_b64 v11, {vr(P,2)} offset:{16384+128*(2*jj+c)}")
    e("v_and_b32 v1, 7, v0")
    e("v_lshrrev_b32 v2, 7, v0")
    e("v_xor_b32 v2, v2, v1")
    e("v_lshrrev_b32 v3, 3, v0")
    e("v_lshlrev_b32 v4, 7, v3")
    e("v_lshl_add_u32 v4, v2, 4, v4")
    e(f"v_add_u32 v4, {TILE}, v4")
    e("v_xor_b32 v5, 32, v4")
    e("v_xor_b32 v6, 64, v4")
    e("v_xor_b32 v7, 96, v4")
    e("v_lshlrev_b32 v3, 12, v3")
    e("v_lshl_add_u32 v37, v1, 4, v3")
    e(f"v_mov_b32 v33, {FLAG+12}")
    e("v_mov_b32 v34, 1")
    e("s_waitcnt lgkmcnt(0)")
    e(f"s_cbranch_execz {k.L('kvback')}")
    e("s_mov_b64 exec, 1")
    e("ds_add_u32 v33, v34")
    e("s_mov_b64 exec, -1")
    e("s_lshl_b32 s4, s41, 19")
    e("s_lshl_b32 s5, s40, 7")
    e("s_add_u32 s4, s4, s5")
    for i in range(8):
        e(f"s_add_u32 s{16+i}, s4, 0x{(i%4)*131072 + (XT if i >= 4 else UT):x}")
    k.stamp(3)
    spin(None, "v_cmp_gt_u32 vcc, 4, v34", "waitT")
    R = 40
    for i in range(8):
        e(f"ds_read_b128 {vr(R+4*i,4)}, v{4+i%4} offset:{4096*(i%4) + (16384 if i >= 4 else 0)}")
    for i in range(4):
        e(f"s_waitcnt lgkmcnt({7-i})")
        e(f"buffer_store_dwordx4 {vr(R+4*i,4)}, v37, s[32:35], s{16+i} offen")
    e("v_and_b32 v0, 63, v0")
    e("v_and_b32 v5, 15, v0")
    e("v_lshrrev_b32 v6, 4, v0")
    e("s_lshl_b32 s12, s61, 12")
    e("v_lshlrev_b32 v7, 5, v5")
    e("v_lshl_add_u32 v7, v6, 3, v7")
    e(f"s_add_u32 s29, s12, 0x{HT:x}")
    e("v_sub_u32 v33, 7, v5")
    e("v_and_b32 v33, 3, v33")
    e(f"v_mul_u32_u24 v33, {KCP}, v33")
    e("v_lshrrev_b32 v34, 2, v5")
    e("v_lshl_add_u32 v33, v34, 3, v33")
    e("v_lshlrev_b32 v34, 4, v6")
    e("v_sub_u32 v33, v33, v34")
    e("s_add_u32 s30, s63, 24")
    e("v_add_u32 v1, s30, v33")
    e("v_lshlrev_b32 v33, 5, v5")
    e("v_add_u32 v33, v33, v34")
    e(f"s_add_u32 s30, s63, {4*KCP + 512 - 32*15}")
    e("v_add_u32 v3, s30, v33")
    AD = 192
    e("v_lshrrev_b32 v33, 3, v5")
    e("v_add_u32 v33, 2, v33")
    e("v_and_b32 v34, 7, v5")
    e("v_sub_u32 v34, 7, v34")
    e("v_cmp_eq_u32 vcc, v33, v6")
    e("v_lshrrev_b32 v35, 1, v34")
    e("v_and_b32 v34, 1, v34")
    e("v_cndmask_b32 v35, 9, v35, vcc")
    e("v_lshlrev_b32 v34, 4, v34")
    e("s_and_b32 s31, s61, 1")
    e("s_lshl_b32 s31, s31, 4")
    e("s_lshr_b32 s51, s51, s31")
    e("s_and_b32 s51, s51, 0xffff")
    e("v_mov_b32 v33, s51")
    e("v_lshlrev_b32 v34, v34, v33")
    for r in range(4):
        e(f"v_cmp_eq_u32 vcc, {r}, v35")
        e("s_nop 1")
        e(f"v_cndmask_b32 v{AD+r}, 0, v34, vcc")
    e("s_waitcnt vmcnt(0)")
    tagcheck("tagA")
    publish(0, FU, "pubU")
    k.stamp(4)
    for i in range(4, 8):
        e(f"buffer_store_dwordx4 {vr(R+4*i,4)}, v37, s[32:35], s{16+i} offen")
    FA = [64, 128]; FB = [96, 160]; AC = 8
    def reads(buf, ep):
        r = []
        for w in range(8):
            r.append(f"ds_read_b128 {vr(FB[buf]+4*w,4)}, v3 offset:{512*w + 32*(15-ep)}")
        for v in range(8):
            r.append(f"ds_read_b64 {vr(FA[buf]+4*v,2)}, v1 offset:{32*ep + 512*v}")
            r.append(f"ds_read_b64 {vr(FA[buf]+4*v+2,2)}, v1 offset:{32*ep + 512*v + 8}")
        return r
    def mfmas(buf):
        m = []
        for v in range(8):
            for w in range(8 - v):
                t = v + w
                m.append(f"v_mfma_f32_16x16x32_bf16 {vr(AC+4*t,4)}, {vr(FA[buf]+4*v,4)}, {vr(FB[buf]+4*w,4)}, {vr(AC+4*t,4)}")
        return m
    e("s_waitcnt vmcnt(0)")
    publish(4, FX, "pubX")
    e("s_lshl_b32 s3, s60, 2")
    e(f"s_add_u32 s3, s3, {FLAG+32}")
    e("v_mov_b32 v33, s3")
    spin(None, "v_cmp_eq_u32 vcc, 0, v34", "waitK")
    rd = reads(0, 1)
    for r in rd[8:]: e(r)
    spin(None, "v_cmp_gt_u32 vcc, 2, v34", "waitU")
    k.stamp(5)
    for r in rd[:8]: e(r)
    for t in range(8):
        e(f"s_waitcnt lgkmcnt({7-t})")
        e(f"v_mfma_f32_16x16x32_bf16 {vr(AC+4*t,4)}, {vr(AD,4)}, {vr(FB[0]+4*t,4)}, 0")
    e("s_mov_b32 s26, 0")
    k.label("loop")
    for buf, nxt in ((0, 3), (1, 5)):
        e("s_waitcnt lgkmcnt(0)")
        rd = reads(1 - buf, nxt)
        for i, m in enumerate(mfmas(buf)):
            e(m)
            if i < len(rd): e(rd[i])
    e("v_add_u32 v1, 128, v1")
    e("v_add_u32 v3, -128, v3")
    e("s_add_u32 s26, s26, 1")
    e("s_cmp_lt_u32 s26, 4")
    e(f"s_cbranch_scc1 {k.L('loop')}")
    e("v_lshlrev_b32 v1, 6, v5")
    e("v_lshl_add_u32 v1, v6, 4, v1")
    e(f"v_add_u32 v1, {STAT}, v1")
    e("s_lshl_b32 s26, s60, 12")
    e(f"s_add_u32 s26, s26, {TILE}")
    e("v_add_u32 v2, s26, v7")
    e(f"v_mov_b32 v3, {FLAG+16}")
    e("v_and_b32 v4, 1, v6")
    e("v_lshlrev_b32 v4, 9, v4")
    e("v_lshl_add_u32 v4, v5, 5, v4")
    e("v_lshrrev_b32 v200, 1, v6")
    e("v_lshl_add_u32 v4, v200, 4, v4")
    k.stamp(6)
    k.label("spoll")
    e("ds_read_b64 v[64:65], v3")
    e("s_waitcnt lgkmcnt(0)")
    e("v_and_b32 v64, v64, v65")
    e("v_cmp_eq_u32 vcc, 0, v64")
    e(f"s_cbranch_vccnz {k.L('spoll')}")
    MS = 64; RS = 96; XV = 176
    for t in range(8):
        e(f"ds_read_b64 {vr(XV+2*t,2)}, v2 offset:{512*t}")
    for t in range(3):
        e(f"ds_read_b128 {vr(MS+4*t,4)}, v1 offset:{1024*t}")
        e(f"ds_read_b128 {vr(RS+4*t,4)}, v1 offset:{1024*t+8192}")
    e("s_waitcnt lgkmcnt(6)")
    for t in range(8):
        if t + 3 < 8:
            e(f"ds_read_b128 {vr(MS+4*(t+3),4)}, v1 offset:{1024*(t+3)}")
            e(f"ds_read_b128 {vr(RS+4*(t+3),4)}, v1 offset:{1024*(t+3)+8192}")
        xu = 128 + 8*(t % 2); q = xu + 4
        e(f"v_lshlrev_b32 v{xu}, 16, v{XV+2*t}")
        e(f"v_and_b32 v{xu+1}, s50, v{XV+2*t}")
        e(f"v_lshlrev_b32 v{xu+2}, 16, v{XV+2*t+1}")
        e(f"v_and_b32 v{xu+3}, s50, v{XV+2*t+1}")
        e(f"s_waitcnt lgkmcnt({2*min(3, 7-t)})")
        for h in range(2):
            e(f"v_pk_add_f32 {vr(q+2*h,2)}, {vr(xu+2*h,2)}, {vr(MS+4*t+2*h,2)} neg_lo:[0,1] neg_hi:[0,1]")
        for h in range(2):
            e(f"v_pk_mul_f32 {vr(q+2*h,2)}, {vr(q+2*h,2)}, {vr(RS+4*t+2*h,2)}")
        for h in range(2):
            e(f"v_pk_fma_f32 {vr(q+2*h,2)}, {vr(q+2*h,2)}, {vr(AC+4*t+2*h,2)}, {vr(xu+2*h,2)}")
        e(f"v_cvt_pk_bf16_f32 v{XV+2*t}, v{q}, v{q+1}")
        e(f"v_cvt_pk_bf16_f32 v{XV+2*t+1}, v{q+2}, v{q+3}")
        if t % 2 == 1:
            e("s_nop 1")
            e(f"v_permlane16_swap_b32 v{XV+2*t-2}, v{XV+2*t}")
            e(f"v_permlane16_swap_b32 v{XV+2*t-1}, v{XV+2*t+1}")
            e(f"buffer_store_dwordx4 {vr(XV+2*t-2,4)}, v4, s[32:35], s29 offen offset:{512*(t-1)} sc1")
    e(f"v_mov_b32 v200, {FLAG+48}")
    e("v_mov_b32 v201, 1")
    e("s_waitcnt lgkmcnt(0)")
    e("s_mov_b64 exec, 1")
    e("ds_add_u32 v200, v201")
    e("s_mov_b64 exec, -1")
    if STAMP: k.dump_stamps(0, 32, 60, keep=True)
    finish("finA", "Lmlp_compute")

    k.label("bwave")
    k.role = "B"
    e("s_setprio 3")
    e("v_and_b32 v0, 63, v0")
    e("v_lshlrev_b32 v2, 4, v0")
    e("v_mov_b32 v36, 0"); e("v_mov_b32 v37, 0"); e("v_mov_b32 v38, 0"); e("v_mov_b32 v39, 0")
    e("v_min_u32 v33, 48, v2")
    e(f"v_add_u32 v33, {FLAG}, v33")
    e("ds_write_b128 v33, v[36:39]")
    e("s_memrealtime s[48:49]")
    e("s_waitcnt lgkmcnt(0)")
    k.srd(44, 52, 53, 256)
    e("s_or_b32 s48, s48, 1")
    e("s_add_u32 s3, s2, s62")
    e("s_cmp_eq_u32 s3, 0")
    e(f"s_cbranch_scc0 {k.L('notag')}")
    e("v_mov_b32 v40, s48"); e("v_mov_b32 v41, s49")
    e("s_mov_b64 exec, 1")
    e("buffer_store_dwordx2 v[40:41], v207, s[44:47], 0 offen sc1")
    e("s_mov_b64 exec, -1")
    k.label("notag")
    e("s_setprio 0")
    e("v_add_u32 v3, -8, v2")
    e("v_add_u32 v4, 1016, v2")
    e("s_lshl_b32 s42, s61, 12")
    e("s_add_u32 s20, s12, s42")
    e("s_addc_u32 s21, s13, 0")
    e("s_and_b32 s21, s21, 0xffff")
    e("s_mov_b32 s22, 4096")
    e("s_mov_b32 s23, 0x20000")
    k.srd(16, 4, 5, 4*MB)
    k.srd(32, 54, 55, WS_BYTES)
    e("s_lshl_b32 s43, s2, 14")
    e("s_lshl_b32 s3, s62, 12")
    e("s_add_u32 s43, s43, s3")
    e("v_bfe_u32 v32, v0, 1, 2")
    e(f"v_mul_u32_u24 v32, {KCP}, v32")
    e("v_and_b32 v33, 1, v0")
    e("v_lshl_add_u32 v32, v33, 4, v32")
    e(f"v_add_u32 v33, {4*KCP}, v2")
    e("v_cmp_gt_u32 vcc, 32, v0")
    e("s_nop 1")
    e("v_cndmask_b32 v32, v32, v33, vcc")
    e("v_add_u32 v32, s63, v32")
    e("ds_write_b128 v32, v[36:39]")
    if 'd' not in F:
        e("s_mov_b64 exec, 0")
        e(f"s_branch {k.L('kv')}")
    k.label("kvback")
    e("s_mov_b64 exec, -1")
    e("s_barrier")
    if 'p' not in F:
        e("s_lshl_b32 s3, s2, 11")
        e(f"s_add_u32 s3, s3, 0x{HO:x}")
        e("s_lshr_b32 s24, s41, 1")
        e("s_lshl_b32 s24, s24, 2")
        e("s_and_b32 s25, s40, 3")
        e("s_add_u32 s24, s24, s25")
        e("s_and_b32 s25, s41, 1")
        e("s_lshl_b32 s25, s25, 3")
        e("s_lshr_b32 s26, s40, 2")
        e("s_add_u32 s25, s25, s26")
        e("s_lshl_b32 s26, s24, 4")
        e("s_add_u32 s26, s26, s25")
        e("s_lshl_b32 s26, s26, 11")
        e(f"s_add_u32 s26, s26, 0x{SP2:x}")
        e("s_lshl_b32 s25, s25, 4")
        e("s_add_u32 s25, s25, s24")
        e("s_lshl_b32 s25, s25, 11")
        e(f"s_add_u32 s25, s25, 0x{CP:x}")
        e("s_lshl_b32 s24, s2, 6")
        e(f"s_add_u32 s24, s24, 0x{SG:x}")
        e("s_cmp_eq_u32 s62, 1")
        e("s_cselect_b32 s3, s26, s3")
        e("s_cmp_eq_u32 s62, 2")
        e("s_cselect_b32 s3, s25, s3")
        e("s_cmp_eq_u32 s62, 3")
        e("s_cselect_b32 s3, s24, s3")
        e("s_cselect_b64 exec, 1, 0xffff")
        e("v_lshlrev_b32 v32, 7, v0")
        e("buffer_load_dword v211, v32, s[32:35], s3 offen")
        e("s_mov_b64 exec, -1")
    if 'c' not in F:
        e("s_and_b32 s3, s40, 7")
        e(f"s_cbranch_scc1 {k.L('nocode')}")
        e("s_getpc_b64 s[48:49]")
        k.label("pc")
        e("s_lshl_b32 s3, s62, 13")
        e("v_lshl_add_u32 v32, v0, 7, s3")
        e(f"v_min_u32 v32, Lcode_end-{k.L('pc')}-4, v32")
        e("global_load_dword v210, v32, s[48:49]")
        k.label("nocode")
    XW = 1 if ('x' in F or 'y' in F) else 0
    if XW:
        k.srd(28, 58, 59, 1024*3584*2)
        e("s_lshl_b32 s3, s2, 2")
        e("s_add_u32 s3, s3, s62")
        e(f"s_mul_i32 s3, s3, {56*128}")
        e("v_lshlrev_b32 v32, 7, v0")
        e(f"s_mov_b64 exec, {'0xfffffff' if 'y' in F else '-1'}")
        e("buffer_load_dword v209, v32, s[28:31], s3 offen")
        e("s_mov_b64 exec, -1")
    if 'e' not in F:
        spin(FLAG + 24, "v_cmp_eq_u32 vcc, 0, v34", "waitL", sleep=1)
    k.stamp(1)
    Y = 8; W = 24; ST = 88
    for i in range(4):
        e(f"buffer_load_dwordx4 {vr(Y+4*i,4)}, v2, s[20:23], 0 offen offset:{1024*i} nt")
        if i == 0: e(f"buffer_load_dwordx2 {vr(W,2)}, v3, s[20:23], 0 offen nt")
        else:      e(f"buffer_load_dwordx2 {vr(W+2*i,2)}, v4, s[20:23], 0 offen offset:{1024*(i-1)} nt")
    for i in range(4):
        e(f"buffer_load_dwordx4 {vr(ST+4*i,4)}, v2, s[16:19], s43 offen offset:{1024*i} nt")
    tagload()
    e("s_add_u32 s30, s63, 32")
    e("v_add_u32 v4, s30, v2")
    for i in range(4):
        e(f"s_waitcnt vmcnt({5 + 2*(3-i)})")
        y = Y + 4*i; w = W + 2*i
        X = 44 + 12*(i % 2); P1 = X + 4; P3 = X + 8
        e(f"ds_write_b128 v4, {vr(y,4)} offset:{1024*i}")
        e(f"v_mov_b32 v{X}, v{w+1}")
        for j in range(3): e(f"v_mov_b32 v{X+1+j}, v{y+j}")
        e(f"ds_write_b128 v4, {vr(X,4)} offset:{1024*i + 2*KCP}")
        e(f"v_alignbit_b32 v{P1}, v{y}, v{w+1}, 16")
        for j in range(3): e(f"v_alignbit_b32 v{P1+1+j}, v{y+1+j}, v{y+j}, 16")
        e(f"ds_write_b128 v4, {vr(P1,4)} offset:{1024*i + KCP}")
        e(f"v_alignbit_b32 v{P3}, v{w+1}, v{w}, 16")
        for j in range(3): e(f"v_mov_b32 v{P3+1+j}, v{P1+j}")
        e(f"ds_write_b128 v4, {vr(P3,4)} offset:{1024*i + 3*KCP}")
    e("s_lshl_b32 s3, s62, 2")
    e(f"s_add_u32 s3, s3, {FLAG+32}")
    e("v_mov_b32 v33, s3")
    e("v_mov_b32 v34, 1")
    e("s_waitcnt lgkmcnt(0)")
    e("ds_write_b32 v33, v34")
    k.stamp(2)
    S = [104, 105]; Q = [106, 107]
    for r in S + Q: e(f"v_mov_b32 v{r}, 0")
    e("s_mov_b32 s48, 0x3f803f80")
    e("s_waitcnt vmcnt(0)")
    for j in range(8):
        for r in range(2):
            e(f"v_dot2c_f32_bf16 v{S[r]}, s48, v{ST+8*r+j}")
            e(f"v_dot2c_f32_bf16 v{Q[r]}, v{ST+8*r+j}, v{ST+8*r+j}")
    e("s_nop 2")
    for mode in ("quad_perm:[1,0,3,2] row_mask:0xf", "quad_perm:[2,3,0,1] row_mask:0xf", "row_half_mirror row_mask:0xf",
                 "row_mirror row_mask:0xf", "row_bcast:15 row_mask:0xa", "row_bcast:31 row_mask:0xc"):
        for r in S + Q:
            e(f"v_add_f32_dpp v{r}, v{r}, v{r} {mode} bank_mask:0xf")
    ln_stats(k, S, Q, [108, 109], None, [112, 113], recip=False)
    tagcheck("tagB")
    e("s_mov_b32 s48, 0x07060302")
    e(f"v_perm_b32 v{TAG-2}, v112, v108, s48")
    e(f"v_perm_b32 v{TAG-1}, v113, v109, s48")
    e("s_lshl_b32 s48, s2, 6")
    e("s_lshl_b32 s49, s62, 4")
    e("s_add_u32 s48, s48, s49")
    e(f"s_add_u32 s48, s48, 0x{SG:x}")
    e("s_mov_b32 exec_lo, 0")
    e("s_mov_b32 exec_hi, 0x80000000")
    e(f"buffer_store_dwordx4 {vr(TAG-2,4)}, v207, s[32:35], s48 offen sc1")
    e("s_mov_b64 exec, -1")
    k.stamp(3)
    e("s_cmp_eq_u32 s62, 3")
    e(f"s_cbranch_scc0 {k.L('notB3')}")
    poll(FU, "pollU")
    e(f"s_cbranch_vccz {k.L('oneXCD')}")
    spin(FLAG + 4, "v_cmp_gt_u32 vcc, 4, v34", "waitX")
    e("buffer_wbl2 sc1")
    e("s_waitcnt vmcnt(0)")
    e("s_lshl_b32 s3, s40, 14")
    e("v_mov_b32 v200, s3")
    e(f"s_add_u32 s3, s39, 0x{F2:x}")
    e("s_mov_b64 exec, 1")
    e(f"buffer_store_dwordx3 {vr(TAG,3)}, v200, s[32:35], s3 offen sc1")
    e("s_mov_b64 exec, -1")
    poll(F2, "poll2", dual=False)
    e("buffer_inv sc1")
    e("s_waitcnt vmcnt(0)")
    k.label("oneXCD")
    k.stamp(1)
    k.note("s3", 16)
    setflag(FLAG + 8)
    k.label("notB3")
    spin(FLAG + 8, "v_cmp_eq_u32 vcc, 0, v34", "waitGo")
    e(f"s_add_u32 m0, s63, {4*KCP + 512}")
    e(f"s_add_u32 s14, s42, 0x{UT:x}")
    for p in range(4):
        e(f"buffer_load_dwordx4 v2, s[32:35], s14 offen offset:{1024*p} lds")
    e("s_lshl_b32 s3, s62, 2")
    e(f"s_add_u32 s3, s3, {FLAG+32}")
    e("v_mov_b32 v33, s3")
    e("v_mov_b32 v34, 2")
    e("s_waitcnt vmcnt(0)")
    e("ds_write_b32 v33, v34")
    k.stamp(2)
    if 'z' in F:
        k.srd(28, 58, 59, 1024*3584*2)
        e("s_lshl_b32 s3, s2, 2")
        e("s_add_u32 s3, s3, s62")
        e(f"s_mul_i32 s3, s3, {56*128}")
        e("v_lshlrev_b32 v32, 7, v0")
        e("buffer_load_dword v209, v32, s[28:31], s3 offen")
    e("s_cmp_eq_u32 s62, 1")
    e(f"s_cbranch_scc0 {k.L('notB1')}")
    e("s_lshl_b32 s3, s2, 11")
    e(f"s_add_u32 s3, s3, 0x{XID:x}")
    e("s_mov_b64 exec, 1")
    e(f"buffer_store_dwordx3 {vr(TAG,3)}, v207, s[32:35], s3 offen sc1")
    e("s_mov_b64 exec, -1")
    k.label("notB1")
    e("s_cmp_ge_u32 s62, 2")
    e(f"s_cbranch_scc1 {k.L('bfetch')}")
    fin_count("finB01")
    spin(FLAG + 56, "v_cmp_gt_u32 vcc, 2, v34", "waitG", sleep=2)
    k.stamp(4)
    for ch, ptr in (("n", 56), ("w", 58)):
        if ch in F: continue
        k.srd(16, ptr, ptr + 1, 1024*3584*2)
        e("s_lshl_b32 s30, s2, 1")
        e("s_add_u32 s30, s30, s62")
        e(f"s_mul_i32 s30, s30, {112*128}")
        e("v_lshlrev_b32 v6, 7, v0")
        e("v_add_u32 v7, 6144, v6")
        e("buffer_load_dword v210, v6, s[16:19], s30 offen")
        e("buffer_load_dword v211, v7, s[16:19], s30 offen")
    if STAMP: k.dump_stamps(0, 32, 60, keep=True)
    e("s_branch Lmlp_loader")
    k.label("bfetch")
    e("s_sub_u32 s11, s62, 2")
    e("s_lshl_b32 s12, s11, 13")
    poll(FX, "pollX")
    k.stamp(4)
    e("s_sub_u32 s13, s61, s62")
    e("s_lshl_b32 s13, s13, 12")
    e("s_add_u32 s13, s13, s12")
    for q in range(2):
        e(f"s_add_u32 m0, s12, {TILE + 4096*q}")
        e(f"s_add_u32 s14, s13, 0x{XT + 4096*q:x}")
        for p in range(4):
            e(f"buffer_load_dwordx4 v2, s[32:35], s14 offen offset:{1024*p} lds")
    e(f"s_add_u32 s13, s12, 0x{SG:x}")
    e("s_add_u32 s14, s13, 4096")
    e("s_mov_b32 s3, 0")
    for q in range(8):
        e(f"buffer_load_dwordx4 {vr(16+4*q,4)}, v2, s[32:35], s{13 + q//4} offen offset:{1024*(q%4)}")
    e(f"v_mov_b32 v200, {FLAG+56}")
    e("v_mov_b32 v201, 1")
    e("s_mov_b64 exec, 1")
    e("ds_add_u32 v200, v201")
    e("s_mov_b64 exec, -1")
    e(f"s_branch {k.L('pollS_c')}")
    k.label("pollS")
    for q in range(8):
        e(f"buffer_load_dwordx4 {vr(16+4*q,4)}, v2, s[32:35], s{13 + q//4} offen offset:{1024*(q%4)} sc1")
    k.label("pollS_c")
    e("s_add_u32 s3, s3, 1")
    e("s_cmp_gt_u32 s3, 0x40000")
    e(f"s_cbranch_scc1 {k.L('pollS_x')}")
    e("s_waitcnt vmcnt(0)")
    e("s_mov_b64 s[22:23], 0")
    for q in range(8):
        e(f"v_cmp_ne_u64 vcc, {vr(18+4*q,2)}, {vr(TAG,2)}")
        e("s_or_b64 s[22:23], s[22:23], vcc")
    e("s_cmp_lg_u64 s[22:23], 0")
    e(f"s_cbranch_scc0 {k.L('pollS_x')}")
    e("s_sleep 8")
    e(f"s_branch {k.L('pollS')}")
    k.label("pollS_x")
    e("s_waitcnt vmcnt(0)")
    k.stamp(6)
    e("s_lshl_b32 s13, s11, 12")
    e(f"s_add_u32 s13, s13, {STAT}")
    e("v_lshl_add_u32 v3, v0, 3, s13")
    e("s_mov_b32 s14, 0xffff0000")
    for q in range(8):
        g = 16 + 4*q
        e(f"v_and_b32 v{g+2}, s14, v{g}")
        e(f"v_and_b32 v{g+3}, s14, v{g+1}")
        e(f"v_lshlrev_b32 v{g}, 16, v{g}")
        e(f"v_lshlrev_b32 v{g+1}, 16, v{g+1}")
        e(f"v_rcp_f32 v{g+2}, v{g+2}")
        e(f"v_rcp_f32 v{g+3}, v{g+3}")
        e(f"ds_write_b64 v3, {vr(g,2)} offset:{512*q}")
        e(f"ds_write_b64 v3, {vr(g+2,2)} offset:{512*q+8192}")
    e("s_lshl_b32 s12, s11, 2")
    e(f"s_add_u32 s12, s12, {FLAG+16}")
    e("v_mov_b32 v4, s12")
    e("v_mov_b32 v5, 1")
    e("s_waitcnt vmcnt(0) lgkmcnt(0)")
    e("ds_write_b32 v4, v5")
    k.stamp(5)
    k.label("bdone")
    if STAMP: k.dump_stamps(0, 32, 60, keep=True)
    finish("finB", "Lmlp_loader")
    k.label("end")
    e("s_endpgm")
```

```python
from asmlib import *
from layout import *
from k0 import ln_stats
from kf import FLAG as FRONT_FLAG
import os
X = os.environ.get('MX', 'wER')
FSLEEP = int(os.environ.get('FSLEEP', '4'))
NT2 = ' nt' if 'n' in X else ''
TR = 1 if 't' in X else 0
HSC = '' if 's' in X else ' sc1'
WBAT = int(os.environ.get('WBAT', '16'))
RW = int(os.environ.get('K4RW', '4'))

STG1 = 45056; WOFF = 16384; NB1 = 3
STG2 = 32768; NB2 = 4; RES = NB2 * STG2; NST2 = 28
STATS = 151552
CSL = STATS + 1024
MISC = CSL + 1024
NCS = 4

def weave(e, ms, fill, waits=None, mid=None, sched=None):
    fill = list(fill)
    for i, m in enumerate(ms):
        if mid and i == mid[0]:
            for t in mid[1]: e(t)
        if waits and i in waits: e(waits[i])
        e(m)
        for _ in range(sched[i] if i < len(sched) else 0):
            if fill: e(fill.pop(0))
    assert not fill, fill

def emit_mlp(k):
    e = k.e
    k.pfx = "m_"
    def entry():
        e("s_load_dwordx4 s[4:7], s[0:1], 56")
        e("s_load_dwordx2 s[8:9], s[0:1], 88")
        e("s_load_dwordx2 s[56:57], s[0:1], 72")
        e("s_mov_b32 s10, s60")
        e("s_mov_b32 s55, s38")
        e("s_and_b32 s11, s2, 7")
        e("s_lshr_b32 s12, s2, 3")
        e("s_lshr_b32 s13, s11, 1")
        e("s_lshl_b32 s13, s13, 2")
        e("s_and_b32 s14, s12, 3")
        e("s_add_u32 s13, s13, s14")
        e("s_and_b32 s15, s11, 1")
        e("s_lshr_b32 s53, s12, 2")
        e("s_lshl_b32 s14, s15, 3")
        e("s_add_u32 s14, s14, s53")
        e("v_lshrrev_b32 v2, 4, v0")
    k.lines.append("Lmlp_compute:")
    k.role = "A"
    k.stamp(0)
    entry()
    def trcommon():
        e("v_bfe_u32 v3, v0, 2, 2")
        e("v_and_b32 v4, 3, v0")
        e("v_and_b32 v5, 1, v2")
        e("v_lshl_or_b32 v6, v5, 2, v3")
        e("v_lshl_add_u32 v7, v2, 3, v3")
        e("v_lshlrev_b32 v8, 8, v7")
        e("v_lshl_add_u32 v8, v4, 3, v8")

    trcommon()
    ACC = 16; FW = [128, 172]; FH = [156, 200]
    AH = [1, 2, 3, 4]; AW = [9, 10, 11]
    e("s_and_b32 s24, s10, 1")
    e("s_lshr_b32 s25, s10, 1")
    e("v_mul_u32_u24 v12, 448, v7")
    e("v_lshl_add_u32 v12, v4, 3, v12")
    e(f"v_add_u32 v12, {WOFF + 2*STG1}, v12")
    e(f"v_add_u32 v8, {2*STG1}, v8")
    e("v_lshl_add_u32 v13, v5, 5, v12")
    e("v_xor_b32 v14, 1, v5")
    e("v_lshl_add_u32 v14, v14, 5, v12")
    e("s_lshl_b32 s26, s25, 8")
    e("v_add_u32 v9, s26, v13")
    e("v_add_u32 v10, s26, v14")
    e("s_cmp_eq_u32 s25, 0")
    e("s_cselect_b64 vcc, -1, 0")
    e("v_cndmask_b32 v11, v14, v13, vcc")
    e("v_add_u32 v11, 192, v11")
    e("v_mov_b32 v15, v2")
    e("s_lshl_b32 s26, s24, 2")
    for j in range(4):
        e(f"s_add_u32 s27, s26, {j}")
        e(f"v_xor_b32 v12, s27, v6")
        e(f"v_lshl_add_u32 v{AH[j]}, v12, 5, v8")
    for i in range(112):
        e(f"v_mov_b32 v{ACC+i}, 0")
    e("s_waitcnt lgkmcnt(0)")
    k.srd(20, 8, 9, WS_BYTES)
    k.srd(44, 56, 57, 4*MB)
    def reads1(st, step):
        r = []
        for j in range(4):
            for h in range(2):
                r.append(f"ds_read_b64_tr_b16 {vr(FH[st]+4*j+2*h,2)}, v{AH[j]} offset:{8192*step+1024*h}")
        for i in range(7):
            a, o = (AW[i % 2], 64*(i//2)) if i < 6 else (AW[2], 0)
            for h in range(2):
                r.append(f"ds_read_b64_tr_b16 {vr(FW[st]+4*i+2*h,2)}, v{a} offset:{14336*step+1792*h+o}")
        return r
    def mfmas1(st):
        return [f"v_mfma_f32_16x16x32_bf16 {vr(ACC+4*(4*i+j),4)}, {vr(FW[st]+4*i,4)}, {vr(FH[st]+4*j,4)}, {vr(ACC+4*(4*i+j),4)}"
                for i in range(7) for j in range(4)]
    e("s_mov_b32 s28, 0")
    e("s_mov_b32 s29, 2")
    e("s_barrier")
    k.stamp(1)
    for r in reads1(0, 0): e(r)
    k.label("c1loop")
    sal = ["s_add_u32 s29, s29, 1", f"s_mov_b32 s30, {STG1}", "s_cmp_eq_u32 s29, 3", f"s_cselect_b32 s30, {-2*STG1}, s30",
           "s_cselect_b32 s29, 0, s29", "s_add_u32 s28, s28, 1"]
    weave(e, mfmas1(0), reads1(1, 1) + sal, waits={4*i: f"s_waitcnt lgkmcnt({min(15, 12+2*i)})" for i in range(7)}, sched=[1]*28)
    weave(e, mfmas1(1), [f"v_add_u32 v{a}, s30, v{a}" for a in AH + AW] + reads1(0, 0) + ["s_cmp_lt_u32 s28, 16"],
          waits={0: "s_waitcnt lgkmcnt(12)"}, mid=(4, ["s_waitcnt lgkmcnt(0)", "s_barrier"]), sched=[0]*4 + [2]*6 + [1]*18)
    e(f"s_cbranch_scc1 {k.L('c1loop')}")
    k.stamp(2)
    e("v_and_b32 v1, 15, v0")
    e("s_lshl_b32 s26, s24, 9")
    e(f"s_add_u32 s26, s26, {STATS}")
    e("v_lshl_add_u32 v1, v1, 3, s26")
    e("s_lshl_b32 s26, s25, 9")
    e(f"s_add_u32 s26, s26, {CSL}")
    e("v_lshl_add_u32 v2, v15, 4, s26")
    e("s_mul_i32 s26, s25, 64")
    e(f"s_add_u32 s26, s26, {CSL+384}")
    e("v_lshl_add_u32 v3, v15, 4, s26")
    e(f"v_mov_b32 v6, {MISC}")
    e("s_waitcnt lgkmcnt(0)")
    MR = 128; C2 = 136; CSV = 144
    e("ds_read_b32 v7, v6 offset:4")
    for j in range(4):
        e(f"ds_read_b64 {vr(MR+2*j,2)}, v1 offset:{128*j}")
    for i in range(7):
        e(f"ds_read_b128 {vr(CSV+4*i,4)}, v{2 if i < 6 else 3} offset:{64*i if i < 6 else 0}")
    e("s_lshl_b32 s26, s25, 12")
    e("v_lshl_add_u32 v4, v0, 4, s26")
    e("s_lshl_b32 s26, s25, 3")
    e("s_add_u32 s26, s26, 3072")
    e("v_lshl_add_u32 v5, v0, 4, s26")
    e("s_lshl_b32 s26, s13, 3")
    e("s_lshl_b32 s27, s24, 2")
    e("s_add_u32 s26, s26, s27")
    e("s_mul_i32 s26, s26, 112")
    e("s_mul_i32 s27, s14, 7")
    e("s_add_u32 s26, s26, s27")
    e("s_lshl_b32 s26, s26, 10")
    e(f"s_add_u32 s32, s26, 0x{HM:x}")
    for j in range(1, 4):
        e(f"s_add_u32 s{32+j}, s32, {112*1024*j}")
    e("s_waitcnt lgkmcnt(0)")
    e("v_readfirstlane_b32 s54, v7")
    for j in range(4):
        e(f"v_mul_f32 v{C2+2*j}, 0xbfb8aa3b, v{MR+2*j+1}")
    e("s_and_b32 s26, s53, 1")
    e("s_lshl_b32 s27, s25, 2")
    e("s_sub_u32 s27, s27, s26")
    for n in range(4):
        if n < 3: e(f"s_add_u32 s60, s27, {n}")
        else:     e("s_sub_u32 s60, 3, s26")
        e("s_lshr_b32 s61, s60, 1")
        e("s_lshl_b32 s61, s61, 15")
        e("s_and_b32 s62, s60, 1")
        e("s_lshl_b32 s62, s62, 10")
        e("s_add_u32 s61, s61, s62")
        e("s_cmp_lt_u32 s60, 6")
        e(f"s_cselect_b32 s61, s61, {3*STG2}")
        e("s_lshl_b32 s62, s24, 13")
        e("s_add_u32 s61, s61, s62")
        if n == 3:
            e("s_lshl_b32 s62, s25, 3")
            e("s_add_u32 s61, s61, s62")
        e(f"v_lshl_add_u32 v{8+n}, v0, 4, s61")
    e("s_mov_b32 s58, 0xbfb8aa3b")
    e("s_mov_b32 s59, 0xbfb8aa3b")
    e("s_cmp_eq_u32 s54, 1")
    nsite = [0]
    def store2(ops):
        n = nsite[0]; nsite[0] += 1
        e(f"s_cbranch_scc1 {k.L(f'pl{n}')}")
        for o in ops: e(o + " sc1")
        e(f"s_branch {k.L(f'st{n}')}")
        k.label(f"pl{n}")
        for o in ops: e(o)
        k.label(f"st{n}")
    T = 172
    def elem8(tiles, out):
        P = T; Xr = T + 8
        def each(f):
            for n, (i, j) in enumerate(tiles):
                for h in range(2):
                    e(f(ACC + 4*(4*i+j) + 2*h, CSV + 4*i + 2*h, j, P + 4*n + 2*h, Xr + 4*n + 2*h))
        each(lambda a, c, j, p, x: f"v_pk_fma_f32 {vr(a,2)}, {vr(c,2)}, {vr(MR+2*j,2)}, {vr(a,2)} op_sel_hi:[1,0,1] neg_lo:[0,1,0] neg_hi:[0,1,0]")
        each(lambda a, c, j, p, x: f"v_pk_mul_f32 {vr(p,2)}, {vr(a,2)}, {vr(C2+2*j,2)} op_sel_hi:[1,0]")
        for q in range(8): e(f"v_exp_f32 v{Xr+q}, v{P+q}")
        each(lambda a, c, j, p, x: f"v_pk_fma_f32 {vr(x,2)}, {vr(x,2)}, s[58:59], s[58:59]")
        for q in range(8): e(f"v_rcp_f32 v{Xr+q}, v{Xr+q}")
        each(lambda a, c, j, p, x: f"v_pk_mul_f32 {vr(p,2)}, {vr(p,2)}, {vr(x,2)}")
        for q in range(4): e(f"v_cvt_pk_bf16_f32 v{out+q}, v{P+2*q}, v{P+2*q+1}")
    n = 0
    for j in range(4):
        for pr in range(3):
            o = 192 + 4*(n % 4); n += 1
            elem8([(2*pr, j), (2*pr+1, j)], o)
            e(f"ds_write_b128 v{8+pr}, {vr(o,4)} offset:{2048*j}")
            store2([f"buffer_store_dwordx4 {vr(o,4)}, v4, s[20:23], s{32+j} offen offset:{1024*pr}"])
        if j % 2 == 1:
            o = 192 + 4*(n % 4); n += 1
            elem8([(6, j-1), (6, j)], o)
            e(f"ds_write_b64 v11, {vr(o,2)} offset:{2048*(j-1)}")
            e(f"ds_write_b64 v11, {vr(o+2,2)} offset:{2048*j}")
            store2([f"buffer_store_dwordx2 {vr(o,2)}, v5, s[20:23], s{32+j-1} offen",
                    f"buffer_store_dwordx2 {vr(o+2,2)}, v5, s[20:23], s{32+j} offen"])
    k.stamp(3)

    NS = 4
    F0 = ACC + 64
    GW = [F0, F0 + 32]; GH = [F0 + 16, F0 + 48]
    BW = [8, 9, 10, 11]; BH = 12
    e("v_mov_b32 v2, v15")
    e("v_bfe_u32 v3, v0, 2, 2")
    e("v_and_b32 v4, 3, v0")
    e("v_lshl_add_u32 v7, v2, 2, v3")
    e("v_and_b32 v5, 7, v7")
    e("v_lshlrev_b32 v13, 8, v7")
    e("v_lshl_add_u32 v13, v4, 3, v13")
    e(f"v_add_u32 v13, {WOFF}, v13")
    e("s_lshl_b32 s26, s25, 2")
    for i in range(4):
        e(f"s_add_u32 s27, s26, {i}")
        e(f"v_xor_b32 v14, s27, v5")
        e(f"v_lshl_add_u32 v{BW[i]}, v14, 5, v13")
    e("s_lshl_b32 s26, s24, 12")
    e(f"v_lshl_add_u32 v{BH}, v0, 4, s26")
    for i in range(64):
        e(f"v_mov_b32 v{ACC+i}, 0")
    e("v_mov_b32 v13, 1")
    e("s_lshl_b32 s26, s2, 11")
    e(f"s_add_u32 s26, s26, 0x{HFL:x}")
    e("v_mov_b32 v14, 0")
    e("v_mov_b32 v216, s98")
    e("v_mov_b32 v217, s99")
    e("s_waitcnt vmcnt(0)")
    e("s_mov_b64 exec, 1")
    e("ds_add_rtn_u32 v1, v6, v13")
    e("s_waitcnt lgkmcnt(0)")
    e("v_readfirstlane_b32 s27, v1")
    e("s_cmp_eq_u32 s27, 3")
    e(f"s_cbranch_scc0 {k.L('noflag')}")
    e("s_cmp_eq_u32 s54, 1")
    store2(["buffer_store_dwordx2 v[216:217], v14, s[20:23], s26 offen"])
    k.label("noflag")
    e("s_mov_b64 exec, -1")
    e("v_bfe_u32 v6, v7, 1, 2")
    def hoff(j): return 2048*(j % 2) + 8192*(j // 2)
    def reads2(st, step):
        r = []
        for j in range(NS):
            r.append(f"ds_read_b128 {vr(GH[st]+4*j,4)}, v{BH} offset:{hoff(j)+1024*step}")
        for i in range(4):
            for h in range(2):
                r.append(f"ds_read_b64_tr_b16 {vr(GW[st]+4*i+2*h,2)}, v{BW[i]} offset:{8192*step+4096*h}")
        return r
    def mfmas2(st):
        return [f"v_mfma_f32_16x16x32_bf16 {vr(ACC+4*(NS*i+j),4)}, {vr(GW[st]+4*i,4)}, {vr(GH[st]+4*j,4)}, {vr(ACC+4*(NS*i+j),4)}"
                for i in range(4) for j in range(NS)]
    e("s_mov_b32 s28, 0")
    e("s_mov_b32 s29, 0")
    e("s_add_u32 s61, s12, s10")
    e("s_cmp_eq_u32 s61, 0")
    e(f"s_cselect_b32 s61, {WBAT}, 99")
    e("s_barrier")
    k.stamp(4)
    for r in reads2(0, 0): e(r)
    k.label("c2loop")
    sal = ["s_add_u32 s29, s29, 1", f"s_mov_b32 s30, {STG2}", f"s_cmp_eq_u32 s29, {NB2}", f"s_cselect_b32 s30, {-(NB2-1)*STG2}, s30",
           "s_cselect_b32 s29, 0, s29", "s_add_u32 s28, s28, 1"]
    weave(e, mfmas2(0), reads2(1, 1) + sal,
          waits={0: "s_waitcnt lgkmcnt(6)", 4: "s_waitcnt lgkmcnt(12)", 8: "s_waitcnt lgkmcnt(14)", 12: "s_waitcnt lgkmcnt(12)"},
          sched=[2]*6 + [1]*6)
    weave(e, mfmas2(1), [f"v_add_u32 v{a}, s30, v{a}" for a in [BH] + BW] + reads2(0, 0) + [f"s_cmp_lt_u32 s28, {NST2}"],
          waits={0: "s_waitcnt lgkmcnt(6)"}, mid=(4, ["s_waitcnt lgkmcnt(0)", "s_barrier"]), sched=[0]*4 + [2]*6 + [1]*6)
    if 'b' in X:
        e(f"s_cbranch_scc0 {k.L('c2done')}")
        e(f"s_cmp_eq_u32 s28, s61")
        e(f"s_cbranch_scc0 {k.L('c2loop')}")
        e("buffer_wbl2 sc1")
        e(f"s_branch {k.L('c2loop')}")
        k.label("c2done")
    else:
        e(f"s_cbranch_scc1 {k.L('c2loop')}")
    k.stamp(5)
    T = F0
    e("s_lshl_b32 s26, s2, 2")
    e("s_add_u32 s26, s26, s10")
    e("s_xor_b32 s27, s26, 4")
    e("s_lshl_b32 s31, s26, 12")
    e(f"s_add_u32 s31, s31, 0x{PART:x}")
    e("s_lshl_b32 s32, s27, 12")
    e(f"s_add_u32 s32, s32, 0x{PART:x}")
    e("s_lshl_b32 s35, s2, 11")
    e("s_lshl_b32 s36, s10, 7")
    e("s_add_u32 s35, s35, s36")
    e(f"s_add_u32 s35, s35, 0x{FLG:x}")
    e("s_xor_b32 s36, s35, 0x800")
    e("v_lshlrev_b32 v14, 4, v0")
    e("s_cmp_eq_u32 s15, 0")
    e(f"s_cbranch_scc1 {k.L('send_hi')}")
    for own in (1, 0):
        if own == 0: k.label("send_hi")
        for i in range(4):
            a0 = ACC + 4*(NS*i + 2*(1-own)); o = T + 48 + 4*i
            for q in range(4):
                e(f"v_cvt_pk_bf16_f32 v{o+q}, v{a0+2*q}, v{a0+2*q+1}")
            e(f"buffer_store_dwordx4 {vr(o,4)}, v14, s[20:23], s31 offen offset:{1024*i} sc1")
        if own == 1:
            for i in range(4):
                for q in range(8):
                    e(f"v_mov_b32 v{ACC+4*NS*i+q}, v{ACC+4*NS*i+8+q}")
            e(f"s_branch {k.L('sent')}")
    k.label("sent")
    e("v_lshlrev_b32 v13, 7, v7")
    e("v_lshl_add_u32 v13, v4, 3, v13")
    e("s_lshl_b32 s26, s25, 13")
    e(f"s_add_u32 s26, s26, {RES}")
    e("v_add_u32 v13, s26, v13")
    e("s_lshl_b32 s26, s24, 1")
    for j in range(2):
        e(f"s_add_u32 s27, s26, {j}")
        e(f"v_xor_b32 v15, s27, v6")
        e(f"v_lshl_add_u32 v{8+j}, v15, 5, v13")
    e("s_waitcnt lgkmcnt(0)")
    HR = T
    for i in range(4):
        for j in range(2):
            e(f"ds_read_b64_tr_b16 {vr(HR+2*(2*i+j),2)}, v{8+j} offset:{2048*i}")
    e("v_and_b32 v10, 15, v0")
    e("v_lshrrev_b32 v11, 1, v2")
    e("v_and_b32 v12, 7, v10")
    e("v_xor_b32 v11, v11, v12")
    e("v_lshlrev_b32 v11, 4, v11")
    e("v_lshl_add_u32 v11, v10, 7, v11")
    e("v_and_b32 v12, 1, v2")
    e("v_lshl_add_u32 v11, v12, 3, v11")
    e("s_lshl_b32 s26, s10, 12")
    e("v_add_u32 v3, s26, v11")
    e("v_xor_b32 v4, 32, v3")
    e("v_xor_b32 v5, 64, v3")
    e("v_xor_b32 v6, 96, v3")
    e("v_lshrrev_b32 v10, 3, v0")
    e("v_and_b32 v11, 7, v0")
    e("v_xor_b32 v12, v11, v10")
    e("v_lshlrev_b32 v12, 4, v12")
    e("v_lshl_add_u32 v12, v10, 7, v12")
    e("v_add_u32 v7, s26, v12")
    e("v_lshlrev_b32 v10, 11, v10")
    e("v_lshl_add_u32 v10, v11, 4, v10")
    e("s_lshl_b32 s26, s13, 7")
    e("s_lshl_b32 s27, s24, 5")
    e("s_add_u32 s26, s26, s27")
    e("s_lshl_b32 s27, s15, 6")
    e("s_add_u32 s26, s26, s27")
    e("s_lshl_b32 s26, s26, 11")
    e("s_lshl_b32 s27, s53, 8")
    e("s_add_u32 s26, s26, s27")
    e("s_lshl_b32 s27, s25, 7")
    e("s_add_u32 s48, s26, s27")
    for q in range(1, 4):
        e(f"s_add_u32 s{48+q}, s48, {q*8*2048}")
    PR = T + 16; U = PR + 16
    e("s_mov_b32 s37, 0xffff0000")
    e("s_waitcnt lgkmcnt(0)")
    for i in range(4):
        for j in range(2):
            n = 2*i + j; a = ACC + 4*(NS*i + j); u = U + 4*(n % 2)
            e(f"v_lshlrev_b32 v{u}, 16, v{HR+2*n}")
            e(f"v_and_b32 v{u+1}, s37, v{HR+2*n}")
            e(f"v_lshlrev_b32 v{u+2}, 16, v{HR+2*n+1}")
            e(f"v_and_b32 v{u+3}, s37, v{HR+2*n+1}")
            for h in range(2):
                e(f"v_pk_add_f32 {vr(a+2*h,2)}, {vr(a+2*h,2)}, {vr(u+2*h,2)}")
    e("v_mov_b32 v15, 0")
    e("s_waitcnt vmcnt(0)")
    e("s_mov_b64 exec, 1")
    e("buffer_store_dwordx2 v[216:217], v15, s[20:23], s35 offen sc1")
    e("s_mov_b32 s38, 0")
    k.label("poll")
    e("buffer_load_dwordx2 v[218:219], v15, s[20:23], s36 offen sc1")
    e("s_add_u32 s38, s38, 1")
    e("s_cmp_gt_u32 s38, 0x200000")
    e(f"s_cbranch_scc1 {k.L('polled')}")
    e("s_waitcnt vmcnt(0)")
    e("v_cmp_ne_u64 vcc, v[218:219], v[216:217]")
    e(f"s_cbranch_vccnz {k.L('poll')}")
    k.label("polled")
    k.stamp(6)
    e("s_mov_b64 exec, -1")
    for i in range(4):
        e(f"buffer_load_dwordx4 {vr(PR+4*i,4)}, v14, s[20:23], s32 offen offset:{1024*i} sc1")
    for i in range(4):
        for j in range(2):
            n = 2*i + j; a = ACC + 4*(NS*i + j); u = U + 4*(n % 2)
            if j == 0: e(f"s_waitcnt vmcnt({3-i})")
            e(f"v_lshlrev_b32 v{u}, 16, v{PR+2*n}")
            e(f"v_and_b32 v{u+1}, s37, v{PR+2*n}")
            e(f"v_lshlrev_b32 v{u+2}, 16, v{PR+2*n+1}")
            e(f"v_and_b32 v{u+3}, s37, v{PR+2*n+1}")
            for h in range(2):
                e(f"v_pk_add_f32 {vr(a+2*h,2)}, {vr(a+2*h,2)}, {vr(u+2*h,2)}")
            e(f"v_cvt_pk_bf16_f32 v{HR+2*n}, v{a}, v{a+1}")
            e(f"v_cvt_pk_bf16_f32 v{HR+2*n+1}, v{a+2}, v{a+3}")
            e(f"ds_write_b64 v{3+i}, {vr(HR+2*n,2)} offset:{2048*j}")
    e("s_waitcnt lgkmcnt(0)")
    for q in range(4):
        e(f"ds_read_b128 {vr(PR+4*q,4)}, v7 offset:{1024*q}")
    for q in range(4):
        e(f"s_waitcnt lgkmcnt({3-q})")
        e(f"buffer_store_dwordx4 {vr(PR+4*q,4)}, v10, s[44:47], s{48+q} offen")
    if STAMP:
        e("s_waitcnt vmcnt(0)")
        k.dump_stamps(1, 20, 10)
    k.dbg_out()
    e("s_add_u32 s26, s2, s10")
    e("s_cmp_eq_u32 s26, 0")
    e(f"s_cbranch_scc0 {k.L('fin')}")
    e("s_load_dwordx2 s[60:61], s[0:1], 80")
    e("v_mov_b32 v2, 0")
    e("v_mov_b32 v3, 0")
    e("s_waitcnt lgkmcnt(0)")
    k.srd(60, 60, 61, 256)
    e("s_mov_b64 exec, 1")
    e("buffer_store_dwordx2 v[2:3], v2, s[60:63], 0 offen sc1")
    k.label("fin")
    e("s_endpgm")

    k.lines.append("Lmlp_loader:")
    k.role = "B"
    k.stamp(0)
    entry()
    e("v_mov_b32 v216, s98")
    e("v_mov_b32 v217, s99")
    e("s_sub_u32 s24, s10, 4")
    VH = 16; VW = 20
    e("s_lshl_b32 s47, s24, 16")
    e("s_lshl_b32 s26, s13, 8")
    e("s_add_u32 s47, s47, s26")
    e(f"s_add_u32 s47, s47, 0x{HT:x}")
    e(f"s_mul_i32 s48, s24, {16*7168}")
    e("s_mul_i32 s27, s14, 448")
    e("s_add_u32 s48, s48, s27")
    e("s_add_u32 s36, s14, s13")
    e("s_and_b32 s36, s36, 15")
    e("s_mov_b32 s49, 0")
    e("s_lshl_b32 s25, s36, 18")
    e("s_add_u32 s25, s25, s47")
    e(f"s_mul_i32 s26, s36, {64*7168}")
    e("s_add_u32 s26, s26, s48")
    e("s_lshl_b32 s27, s24, 12")
    e("s_mul_i32 s28, s24, 7168")
    e(f"s_add_u32 s28, s28, {WOFF}")
    e("v_bfe_u32 v9, v0, 1, 3")
    e("v_and_b32 v10, 1, v0")
    e("v_lshlrev_b32 v10, 4, v10")
    e("v_lshl_add_u32 v10, v2, 12, v10")
    e("v_xor_b32 v9, v9, v2")
    for pp in range(4):
        if pp == 2: e("v_xor_b32 v9, 4, v9")
        e(f"v_lshl_add_u32 v{VH+pp}, v9, 5, v10")
        if pp: e(f"v_add_u32 v{VH+pp}, {pp*(16384-1024)}, v{VH+pp}")
    def wpat(q):
        e(f"v_add_u32 v9, {64*q}, v0")
        e("v_mul_u32_u24 v10, 9363, v9")
        e("v_lshrrev_b32 v10, 18, v10")
        e("v_mul_u32_u24 v11, 28, v10")
        e("v_sub_u32 v11, v9, v11")
        e("v_lshrrev_b32 v12, 2, v10")
        e("v_and_b32 v12, 2, v12")
        e("v_xor_b32 v11, v11, v12")
        e("v_mul_u32_u24 v12, 7168, v10")
        e("v_lshl_add_u32 v12, v11, 4, v12")
        e(f"v_add_u32 v{VW+q}, {-1024*(q%4)}, v12")
    for q in range(7): wpat(q)
    e("s_waitcnt lgkmcnt(0)")
    k.srd(20, 8, 9, WS_BYTES)
    k.srd(16, 4, 5, 1024*3584*2)
    def advance():
        e("s_add_u32 s49, s49, 1")
        e("s_add_u32 s37, s36, 1")
        e("s_and_b32 s37, s37, 3")
        e("s_and_b32 s36, s36, 12")
        e("s_or_b32 s36, s36, s37")
        e("s_and_b32 s37, s49, 3")
        e("s_cmp_eq_u32 s37, 0")
        e("s_cselect_b32 s37, 4, 0")
        e("s_add_u32 s36, s36, s37")
        e("s_and_b32 s36, s36, 15")
        e("s_lshl_b32 s25, s36, 18")
        e("s_add_u32 s25, s25, s47")
        e(f"s_mul_i32 s26, s36, {64*7168}")
        e("s_add_u32 s26, s26, s48")
    def hpart(so, m0):
        e(m0); e("s_nop 0")
        for pp in range(4):
            e(f"buffer_load_dwordx4 v{VH+pp}, s[20:23], {so} offen offset:{1024*pp}{HSC} lds")
    def wpart(buf, pol=""):
        e(f"s_add_u32 m0, s28, {buf}"); e("s_nop 0")
        for q in range(7):
            if q == 4: e(f"s_add_u32 m0, s28, {buf+4096}"); e("s_nop 0")
            e(f"buffer_load_dwordx4 v{VW+q}, s[16:19], s26 offen offset:{1024*(q%4)}{pol} lds")
    e("s_cmp_ge_u32 s24, 2")
    e(f"s_cbranch_scc1 {k.L('now0')}")
    wpart(2*STG1, " nt" if 'N' in X else "")
    e(f"s_add_u32 s26, s26, {32*7168}")
    wpart(2*STG1 + 2*7168, " nt" if 'N' in X else "")
    k.label("now0")
    e("s_mov_b32 s50, s25")
    e("s_mov_b32 s62, s36")
    advance()
    e("v_lshrrev_b32 v9, 3, v0")
    e("v_lshlrev_b32 v9, 11, v9")
    e("v_bfe_u32 v10, v0, 2, 1")
    e("v_lshl_add_u32 v9, v10, 18, v9")
    e("v_and_b32 v10, 3, v0")
    e("v_lshl_add_u32 v38, v10, 14, v9")
    e("s_lshl_b32 s52, s24, 16")
    e(f"s_add_u32 s52, s52, 0x{FHT:x}")
    e("s_mov_b64 s[58:59], 0")
    e("s_mov_b32 s39, 0")
    e(f"v_mov_b32 v35, {FRONT_FLAG+(52 if 'E' not in X else 48)}")
    k.label("waitF")
    e("s_sleep 1")
    e("ds_read_b32 v34, v35")
    e("s_waitcnt lgkmcnt(0)")
    e(f"v_cmp_gt_u32 vcc, {8 if 'E' not in X else 4}, v34")
    e(f"s_cbranch_vccnz {k.L('waitF')}")
    nneed = [0]
    def need(stage, narrow=False):
        n = nneed[0]; nneed[0] += 1
        if narrow:
            e(f"s_lshl_b32 s60, {stage}, 2")
            e("s_lshl_b64 s[66:67], 15, s60")
        k.label(f"need{n}")
        e(f"s_lshl_b32 s60, {stage}, 2")
        e("s_lshr_b64 s[60:61], s[58:59], s60")
        e("s_and_b32 s60, s60, 15")
        e("s_cmp_eq_u32 s60, 15")
        e(f"s_cbranch_scc1 {k.L(f'have{n}')}")
        if narrow: e("s_mov_b64 exec, s[66:67]")
        e("buffer_load_dwordx2 v[100:101], v38, s[20:23], s52 offen sc1")
        if narrow: e("s_mov_b64 exec, -1")
        e("s_add_u32 s39, s39, 1")
        e("s_cmp_gt_u32 s39, 0x100000")
        e(f"s_cbranch_scc1 {k.L(f'have{n}')}")
        e("s_waitcnt vmcnt(0)")
        e("v_cmp_eq_u64 s[58:59], v[100:101], v[216:217]")
        e(f"s_branch {k.L(f'need{n}')}")
        k.label(f"have{n}")
    e("v_mov_b32 v100, 0")
    need("s62", narrow='R' in X)
    k.stamp(5)
    k.note("s39", 17)
    hpart("s50", f"s_add_u32 m0, s27, {2*STG1}")
    wpart(0, " nt" if 'M' in X else "")
    e("s_waitcnt vmcnt(7)")
    e("s_barrier")
    need("s36", narrow='R' in X)
    hpart("s25", "s_mov_b32 m0, s27")
    advance()
    e(f"s_mov_b32 s29, {STG1}")
    k.srd(40, 6, 7, 1024*3584*2)
    e("s_lshl_b32 s63, s2, 2")
    e("s_add_u32 s63, s63, s24")
    e(f"s_mul_i32 s63, s63, {56*128}")
    if 'h' in X: e(f"s_add_u32 s63, s63, {28*128}")
    e("v_lshlrev_b32 v39, 7, v0")
    def issue1():
        need("s36", narrow='Q' in X)
        e("s_add_u32 m0, s27, s29")
        e("s_add_u32 s30, s28, s29")
        for pp in range(4):
            e(f"buffer_load_dwordx4 v{VH+pp}, s[20:23], s25 offen offset:{1024*pp}{HSC} lds")
        e("s_mov_b32 m0, s30")
        e("s_nop 0")
        for q in range(4):
            e(f"buffer_load_dwordx4 v{VW+q}, s[16:19], s26 offen offset:{1024*q} lds")
        e("s_add_u32 m0, s30, 4096")
        e(f"s_add_u32 s29, s29, {STG1}")
        for q in range(4, 7):
            e(f"buffer_load_dwordx4 v{VW+q}, s[16:19], s26 offen offset:{1024*(q-4)} lds")
        if TR:
            e(f"s_mov_b64 exec, {'0x7' if 'h' in X else '0x1f'}")
            e("buffer_load_dword v210, v39, s[40:43], s63 offen")
            e("s_mov_b64 exec, -1")
            e(f"s_add_u32 s63, s63, {384 if 'h' in X else 640}")
        e(f"s_cmp_eq_u32 s29, {NB1*STG1}")
        e("s_cselect_b32 s29, 0, s29")
        advance()
    k.stamp(1)
    issue1()
    trcommon()
    e("s_lshl_b32 s31, s24, 1")
    e("v_xor_b32 v12, s31, v6")
    e("v_lshl_add_u32 v36, v12, 5, v8")
    e(f"v_add_u32 v36, {2*STG1}, v36")
    e("v_xor_b32 v37, 32, v36")
    S = [40, 42]; Q = [44, 46]
    for r in range(40, 48): e(f"v_mov_b32 v{r}, 0")
    e("s_mov_b32 s33, 0xffff0000")
    D = 48; U = 64
    for t in range(2):
        for st in range(2):
            for h in range(2):
                e(f"ds_read_b64_tr_b16 {vr(D+8*t+4*st+2*h,2)}, v{36+t} offset:{8192*st+1024*h}")
    e("s_waitcnt lgkmcnt(0)")
    for j in range(8):
        for t in range(2):
            u = U + 2*t
            e(f"v_lshlrev_b32 v{u}, 16, v{D+8*t+j}")
            e(f"v_and_b32 v{u+1}, s33, v{D+8*t+j}")
        for t in range(2):
            u = U + 2*t
            for q in range(2):
                e(f"v_add_f32 v{S[t]+q}, v{S[t]+q}, v{u+q}")
                e(f"v_fmac_f32 v{Q[t]+q}, v{u+q}, v{u+q}")
    def greduce(regs):
        for op in ("v_permlane32_swap_b32", "v_permlane16_swap_b32"):
            for i, r in enumerate(regs): e(f"v_mov_b32 v{D+i}, v{r}")
            e("s_nop 1")
            for i, r in enumerate(regs): e(f"{op} v{r}, v{D+i}")
            e("s_nop 1")
            for i, r in enumerate(regs): e(f"v_add_f32 v{r}, v{r}, v{D+i}")
    for r in S + Q: e(f"v_add_f32 v{r}, v{r}, v{r+1}")
    greduce(S + Q)
    e("v_cmp_gt_u32 vcc, 16, v0")
    e("s_lshl_b32 s31, s13, 15")
    e("s_lshl_b32 s32, s24, 9")
    e("s_add_u32 s31, s31, s32")
    e(f"s_add_u32 s31, s31, 0x{SP2:x}")
    e("s_lshl_b32 s32, s14, 11")
    e("s_add_u32 s32, s32, s31")
    e(f"v_cndmask_b32 v214, v{S[1]}, v{S[0]}, vcc")
    e(f"v_cndmask_b32 v215, v{Q[1]}, v{Q[0]}, vcc")
    e("v_lshlrev_b32 v9, 4, v0")
    e("s_mov_b64 exec, 0xffffffff")
    e("buffer_store_dwordx4 v[214:217], v9, s[20:23], s32 offen sc1")
    e("s_mov_b64 exec, -1")
    e("v_mul_u32_u24 v12, 448, v7")
    e("v_lshl_add_u32 v12, v4, 3, v12")
    e("s_lshl_b32 s32, s24, 7")
    e(f"s_add_u32 s32, s32, {WOFF + 2*STG1}")
    e("v_add_u32 v12, s32, v12")
    e("v_lshl_add_u32 v13, v5, 5, v12")
    e("v_xor_b32 v14, 1, v5")
    e("v_lshl_add_u32 v14, v14, 5, v12")
    CW = 68
    for t in range(4):
        for st in range(2):
            for h in range(2):
                e(f"ds_read_b64_tr_b16 {vr(CW+8*t+4*st+2*h,2)}, v{13 + t%2} offset:{14336*st+1792*h+64*(t//2)}")
        if t == 2: e("s_waitcnt lgkmcnt(8)")
    for r in range(40, 48): e(f"v_mov_b32 v{r}, 0")
    e("s_waitcnt lgkmcnt(0)")
    for j in range(8):
        for t in range(4):
            e(f"v_lshlrev_b32 v{U}, 16, v{CW+8*t+j}")
            e(f"v_and_b32 v{U+1}, s33, v{CW+8*t+j}")
            e(f"v_add_f32 v{40+t}, v{40+t}, v{U}")
            e(f"v_add_f32 v{44+t}, v{44+t}, v{U+1}")
    for t in range(4): e(f"v_add_f32 v{40+t}, v{40+t}, v{44+t}")
    greduce([40, 41, 42, 43])
    e("v_cmp_gt_u32 vcc, 16, v0")
    e("s_lshl_b32 s32, s14, 4")
    e("s_add_u32 s32, s32, s13")
    e("s_lshl_b32 s32, s32, 11")
    e("s_lshl_b32 s34, s24, 9")
    e("s_add_u32 s32, s32, s34")
    e(f"s_add_u32 s32, s32, 0x{CP:x}")
    e("v_cndmask_b32 v214, v42, v40, vcc")
    e("v_cndmask_b32 v215, v43, v41, vcc")
    e("s_mov_b64 exec, 0xffffffff")
    e("buffer_store_dwordx4 v[214:217], v9, s[20:23], s32 offen sc1")
    e("s_mov_b64 exec, -1")
    e("s_mov_b32 s35, 0")
    k.label("l1loop")
    e("s_cmp_eq_u32 s35, 0")
    e(f"s_cbranch_scc1 {k.L('lw20')}")
    e("s_cmp_eq_u32 s35, 1")
    e(f"s_cbranch_scc1 {k.L('lw12')}")
    e(f"s_waitcnt vmcnt({11 + 2*TR})")
    k.label("lw12")
    e(f"s_waitcnt vmcnt({13 + 2*TR})")
    k.label("lw20")
    e(f"s_waitcnt vmcnt({13 + TR})")
    e("s_barrier")
    e("s_cmp_ge_u32 s35, 13")
    e(f"s_cbranch_scc1 {k.L('l1done')}")
    issue1()
    e("s_add_u32 s35, s35, 1")
    e(f"s_branch {k.L('l1loop')}")
    k.label("l1done")
    k.stamp(2)
    e("s_lshl_b32 s33, s14, 15")
    e("s_lshl_b32 s34, s24, 9")
    e("s_add_u32 s33, s33, s34")
    e(f"s_add_u32 s33, s33, 0x{CP:x}")
    e("v_and_b32 v10, 31, v0")
    e("v_lshlrev_b32 v9, 4, v10")
    e("v_lshrrev_b32 v11, 5, v0")
    e("v_lshl_add_u32 v9, v11, 11, v9")
    e("v_and_b32 v11, 7, v0")
    e("v_lshlrev_b32 v11, 16, v11")
    e("s_and_b32 s34, s2, 31")
    e("s_lshl_b32 s34, s34, 11")
    e(f"s_add_u32 s50, s34, 0x{XID:x}")
    e(f"s_add_u32 s51, s34, 0x{HFL:x}")
    e("s_mov_b32 s39, 0")
    G = 68
    k.label("spoll")
    e("s_mov_b32 s32, s31")
    for q in range(8):
        e(f"buffer_load_dwordx4 {vr(G+4*q,4)}, v9, s[20:23], s32 offen sc1")
        e("s_add_u32 s32, s32, 4096")
    e("s_mov_b32 s32, s33")
    for q in range(8):
        e(f"buffer_load_dwordx4 {vr(G+32+4*q,4)}, v9, s[20:23], s32 offen sc1")
        e("s_add_u32 s32, s32, 4096")
    e("buffer_load_dwordx3 v[64:66], v11, s[20:23], s50 offen sc1")
    e("s_add_u32 s39, s39, 1")
    e("s_cmp_gt_u32 s39, 0x100000")
    e(f"s_cbranch_scc1 {k.L('spolled')}")
    e("s_waitcnt vmcnt(0)")
    e("v_cmp_ne_u64 s[44:45], v[64:65], v[216:217]")
    for q in range(16):
        e(f"v_cmp_ne_u64 vcc, {vr(G+4*q+2,2)}, v[216:217]")
        e("s_or_b64 s[44:45], s[44:45], vcc")
    e("s_cmp_lg_u64 s[44:45], 0")
    e(f"s_cbranch_scc1 {k.L('spoll')}")
    k.label("spolled")
    e("s_waitcnt vmcnt(0)")
    e("v_cmp_ne_u32 vcc, s55, v66")
    for q in range(1, 8):
        for j in range(2):
            e(f"v_add_f32 v{40+j}, v{G+j if q == 1 else 40+j}, v{G+4*q+j}")
            e(f"v_add_f32 v{42+j}, v{G+32+j if q == 1 else 42+j}, v{G+32+4*q+j}")
    e("s_cmp_eq_u64 vcc, 0")
    e("s_cselect_b32 s54, 1, 2")
    if 'f' in X: e("s_mov_b32 s54, 2")
    for i in range(4): e(f"v_mov_b32 v{D+i}, v{40+i}")
    e("s_nop 1")
    for i in range(4): e(f"v_permlane32_swap_b32 v{40+i}, v{D+i}")
    e("s_nop 1")
    for i in range(4): e(f"v_add_f32 v{40+i}, v{40+i}, v{D+i}")
    ln_stats(k, [40], [41], [56], [57], [60])
    e("s_lshl_b32 s31, s24, 8")
    e(f"s_add_u32 s31, s31, {STATS}")
    e("v_lshl_add_u32 v9, v10, 3, s31")
    e("ds_write_b64 v9, v[56:57]")
    e(f"v_mov_b32 v9, {MISC}")
    e("v_mov_b32 v62, 0")
    e("v_mov_b32 v63, s54")
    e("ds_write_b64 v9, v[62:63]")
    e("v_and_b32 v9, 15, v0")
    e("v_and_b32 v12, 16, v0")
    e("v_lshl_add_u32 v9, v12, 1, v9")
    e("s_lshl_b32 s31, s24, 8")
    e(f"s_add_u32 s31, s31, {CSL}")
    e("v_lshl_add_u32 v9, v9, 2, s31")
    e("ds_write_b32 v9, v42")
    e("ds_write_b32 v9, v43 offset:64")
    if 'w' not in X:
        e("s_lshl_b32 s31, s2, 2")
        e("s_add_u32 s31, s31, s24")
        e(f"s_mul_i32 s31, s31, {56*128}")
        e("v_lshlrev_b32 v9, 7, v0")
        e("buffer_load_dword v210, v9, s[40:43], s31 offen")
    e("s_waitcnt lgkmcnt(0)")
    e("s_barrier")
    VA = 16; VW2 = 18; VR = 22
    e(f"v_lshlrev_b32 v{VA}, 4, v0")
    e(f"v_add_u32 v{VA+1}, {112*1024-2048}, v{VA}")
    e("v_bfe_u32 v9, v0, 1, 3")
    e("v_and_b32 v10, 1, v0")
    e("v_lshlrev_b32 v10, 4, v10")
    e("v_lshl_add_u32 v10, v2, 11, v10")
    e("v_xor_b32 v9, v9, v2")
    e("v_xor_b32 v12, 4, v9")
    for pp in range(4):
        e(f"v_lshl_add_u32 v{VW2+pp}, v{9 if pp % 2 == 0 else 12}, 5, v10")
        if pp: e(f"v_add_u32 v{VW2+pp}, {pp*(8192-1024)}, v{VW2+pp}")
    e("v_bfe_u32 v9, v0, 1, 2")
    e("v_xor_b32 v9, v9, v2")
    e("v_and_b32 v10, 1, v0")
    e("v_lshlrev_b32 v10, 4, v10")
    e("v_lshl_add_u32 v10, v9, 5, v10")
    e("v_lshrrev_b32 v9, 3, v0")
    e(f"v_lshl_add_u32 v{VR}, v9, 12, v10")
    for pp in range(1, 4):
        e(f"v_add_u32 v{VR+pp}, {pp*(32768-1024)}, v{VR}")
    e("s_lshl_b32 s47, s13, 3")
    e("s_lshl_b32 s26, s24, 1")
    e("s_add_u32 s47, s47, s26")
    e("s_mul_i32 s47, s47, 112")
    e("s_mul_i32 s26, s15, 56")
    e("s_add_u32 s47, s47, s26")
    e("s_lshl_b32 s47, s47, 10")
    e(f"s_add_u32 s47, s47, 0x{HM:x}")
    e("s_mul_i32 s48, s15, 1792")
    e("s_lshl_b32 s27, s24, 4")
    e("s_add_u32 s48, s48, s27")
    e("s_lshl_b32 s48, s48, 11")
    e("s_lshl_b32 s27, s53, 8")
    e("s_add_u32 s48, s48, s27")
    e("s_mul_i32 s36, s53, 7")
    e("s_add_u32 s36, s36, 1")
    e("s_lshr_b32 s36, s36, 1")
    e("s_lshl_b32 s27, s24, 12")
    e(f"s_add_u32 s28, s27, {WOFF}")
    e("s_lshr_b32 s62, s11, 1")
    e("s_mul_i32 s62, s62, 3")
    e("s_lshr_b32 s62, s62, 1")
    e("s_lshl_b32 s62, s62, 2")
    e(f"s_min_u32 s52, s36, {NST2-4}")
    def st_of(n):
        e(f"s_add_u32 s37, s36, {n}")
        e(f"s_cmp_ge_u32 s37, {NST2}")
        e(f"s_cselect_b32 s38, {4 if 'F' not in X else NST2}, 0")
        e("s_sub_u32 s37, s37, s38")
    e("s_barrier")
    k.stamp(3)
    def wpart2(n):
        st_of(n)
        e("s_lshl_b32 s26, s37, 17")
        e("s_add_u32 s26, s26, s48")
        e(f"s_add_u32 m0, s28, {n*STG2}")
        e("s_nop 0")
        for pp in range(4):
            e(f"buffer_load_dwordx4 v{VW2+pp}, s[40:43], s26 offen offset:{1024*pp}{NT2} lds")
    wpart2(0); wpart2(1); wpart2(2)
    if 'P' in X:
        e("s_lshl_b32 s31, s2, 2")
        e("s_add_u32 s31, s31, s24")
        e("s_lshl_b32 s31, s31, 12")
        e(f"s_add_u32 s31, s31, 0x{PART:x}")
        e("v_lshlrev_b32 v9, 6, v0")
        e("buffer_load_dword v210, v9, s[20:23], s31 offen sc1")
    wpart2(3)
    e("s_lshl_b32 s31, s53, 7")
    e("s_lshl_b32 s32, s24, 5")
    e("s_add_u32 s31, s31, s32")
    e("s_lshl_b32 s31, s31, 12")
    e("s_lshl_b32 s32, s13, 8")
    e("s_add_u32 s31, s31, s32")
    e("s_lshl_b32 s32, s15, 7")
    e("s_add_u32 s31, s31, s32")
    e(f"s_add_u32 s31, s31, 0x{HT:x}")
    e(f"s_add_u32 m0, s27, {RES}")
    e("s_nop 0")
    for pp in range(4):
        e(f"buffer_load_dwordx4 v{VR+pp}, s[20:23], s31 offen offset:{1024*pp} lds")
    def hpart2(n):
        st_of(n)
        e("s_lshl_b32 s25, s37, 11")
        e("s_add_u32 s25, s25, s47")
        e(f"s_add_u32 m0, s27, {n*STG2}")
        e("s_nop 0")
        for pp in range(4):
            e(f"buffer_load_dwordx4 v{VA+pp//2}, s[20:23], s25 offen offset:{1024*pp} lds")
    e(f"s_waitcnt vmcnt({17 if 'P' in X else 16})")
    k.stamp(4)
    e("s_barrier")
    e("s_mov_b32 s39, 0")
    e("s_mov_b64 exec, 0xff")
    k.label("hpoll")
    e("buffer_load_dwordx2 v[64:65], v11, s[20:23], s51 offen sc1")
    e("s_add_u32 s39, s39, 1")
    e("s_cmp_gt_u32 s39, 0x100000")
    e(f"s_cbranch_scc1 {k.L('hpolled')}")
    e("s_waitcnt vmcnt(0)")
    e("v_cmp_ne_u64 vcc, v[64:65], v[216:217]")
    e(f"s_cbranch_vccnz {k.L('hpoll')}")
    k.label("hpolled")
    e("s_mov_b64 exec, -1")
    hpart2(3)
    e("s_mov_b32 s29, 0")
    e(f"s_mov_b32 s35, {NB2}")
    def issue2():
        e("s_add_u32 s37, s35, s13")
        e(f"s_and_b32 s37, s37, {RW-1}")
        e(f"s_andn2_b32 s38, s35, {RW-1}")
        e("s_or_b32 s37, s37, s38")
        if 'F' in X:
            st_of("s37")
        else:
            e("s_sub_u32 s37, s37, 4")
            if 'g' not in X:
                e("s_add_u32 s37, s37, s62")
                e(f"s_cmp_ge_u32 s37, {NST2-4}")
                e(f"s_cselect_b32 s38, {NST2-4}, 0")
                e("s_sub_u32 s37, s37, s38")
            e("s_cmp_ge_u32 s37, s52")
            e("s_cselect_b32 s38, 4, 0")
            e("s_add_u32 s37, s37, s38")
        e("s_lshl_b32 s25, s37, 11")
        e("s_add_u32 s25, s25, s47")
        e("s_lshl_b32 s26, s37, 17")
        e("s_add_u32 m0, s27, s29")
        e("s_add_u32 s26, s26, s48")
        for pp in range(4):
            e(f"buffer_load_dwordx4 v{VA+pp//2}, s[20:23], s25 offen offset:{1024*pp} lds")
        e("s_add_u32 m0, s28, s29")
        e(f"s_add_u32 s29, s29, {STG2}")
        for pp in range(4):
            e(f"buffer_load_dwordx4 v{VW2+pp}, s[40:43], s26 offen offset:{1024*pp}{NT2} lds")
        e(f"s_and_b32 s29, s29, {NB2*STG2-1}")
        e("s_add_u32 s35, s35, 1")
    e("s_barrier")
    issue2()
    e("s_waitcnt vmcnt(12)")
    e("s_barrier")
    issue2()
    k.label("l2loop")
    e("s_waitcnt vmcnt(16)")
    e("s_barrier")
    issue2()
    e(f"s_cmp_lt_u32 s35, {NST2}")
    e(f"s_cbranch_scc1 {k.L('l2loop')}")
    for i in range(NST2-NB2, NST2):
        left = max(NST2 - 1 - (i + 1), 0)
        e(f"s_waitcnt vmcnt({left*8})")
        e("s_barrier")
    k.dump_stamps(1, 20, 10)
    e("s_endpgm")
```

```python
from asmlib import *
from layout import *
from k0 import ln_stats
from kf import FLAG as FRONT_FLAG
import os
X = os.environ.get('MX', 'wER')
FSLEEP = int(os.environ.get('FSLEEP', '4'))
NT2 = ' nt' if 'n' in X else ''
TR = 1 if 't' in X else 0
HSC = '' if 's' in X else ' sc1'
WBAT = int(os.environ.get('WBAT', '16'))
RW = int(os.environ.get('K4RW', '4'))

STG1 = 45056; WOFF = 16384; NB1 = 3
STG2 = 32768; NB2 = 4; RES = NB2 * STG2; NST2 = 28
STATS = 151552
CSL = STATS + 1024
MISC = CSL + 1024
NCS = 4

def weave(e, ms, fill, waits=None, mid=None, sched=None):
    fill = list(fill)
    for i, m in enumerate(ms):
        if mid and i == mid[0]:
            for t in mid[1]: e(t)
        if waits and i in waits: e(waits[i])
        e(m)
        for _ in range(sched[i] if i < len(sched) else 0):
            if fill: e(fill.pop(0))
    assert not fill, fill

def emit_mlp(k):
    e = k.e
    k.pfx = "m_"
    def entry():
        e("s_load_dwordx4 s[4:7], s[0:1], 56")
        e("s_load_dwordx2 s[8:9], s[0:1], 88")
        e("s_load_dwordx2 s[56:57], s[0:1], 72")
        e("s_mov_b32 s10, s60")
        e("s_mov_b32 s55, s38")
        e("s_and_b32 s11, s2, 7")
        e("s_lshr_b32 s12, s2, 3")
        e("s_lshr_b32 s13, s11, 1")
        e("s_lshl_b32 s13, s13, 2")
        e("s_and_b32 s14, s12, 3")
        e("s_add_u32 s13, s13, s14")
        e("s_and_b32 s15, s11, 1")
        e("s_lshr_b32 s53, s12, 2")
        e("s_lshl_b32 s14, s15, 3")
        e("s_add_u32 s14, s14, s53")
        e("v_lshrrev_b32 v2, 4, v0")
    k.lines.append("Lmlp_compute:")
    k.role = "A"
    k.stamp(0)
    entry()
    def trcommon():
        e("v_bfe_u32 v3, v0, 2, 2")
        e("v_and_b32 v4, 3, v0")
        e("v_and_b32 v5, 1, v2")
        e("v_lshl_or_b32 v6, v5, 2, v3")
        e("v_lshl_add_u32 v7, v2, 3, v3")
        e("v_lshlrev_b32 v8, 8, v7")
        e("v_lshl_add_u32 v8, v4, 3, v8")

    trcommon()
    ACC = 16; FW = [128, 172]; FH = [156, 200]
    AH = [1, 2, 3, 4]; AW = [9, 10, 11]
    e("s_and_b32 s24, s10, 1")
    e("s_lshr_b32 s25, s10, 1")
    e("v_mul_u32_u24 v12, 448, v7")
    e("v_lshl_add_u32 v12, v4, 3, v12")
    e(f"v_add_u32 v12, {WOFF + 2*STG1}, v12")
    e(f"v_add_u32 v8, {2*STG1}, v8")
    e("v_lshl_add_u32 v13, v5, 5, v12")
    e("v_xor_b32 v14, 1, v5")
    e("v_lshl_add_u32 v14, v14, 5, v12")
    e("s_lshl_b32 s26, s25, 8")
    e("v_add_u32 v9, s26, v13")
    e("v_add_u32 v10, s26, v14")
    e("s_cmp_eq_u32 s25, 0")
    e("s_cselect_b64 vcc, -1, 0")
    e("v_cndmask_b32 v11, v14, v13, vcc")
    e("v_add_u32 v11, 192, v11")
    e("v_mov_b32 v15, v2")
    e("s_lshl_b32 s26, s24, 2")
    for j in range(4):
        e(f"s_add_u32 s27, s26, {j}")
        e(f"v_xor_b32 v12, s27, v6")
        e(f"v_lshl_add_u32 v{AH[j]}, v12, 5, v8")
    for i in range(112):
        e(f"v_mov_b32 v{ACC+i}, 0")
    e("s_waitcnt lgkmcnt(0)")
    k.srd(20, 8, 9, WS_BYTES)
    k.srd(44, 56, 57, 4*MB)
    def reads1(st, step):
        r = []
        for j in range(4):
            for h in range(2):
                r.append(f"ds_read_b64_tr_b16 {vr(FH[st]+4*j+2*h,2)}, v{AH[j]} offset:{8192*step+1024*h}")
        for i in range(7):
            a, o = (AW[i % 2], 64*(i//2)) if i < 6 else (AW[2], 0)
            for h in range(2):
                r.append(f"ds_read_b64_tr_b16 {vr(FW[st]+4*i+2*h,2)}, v{a} offset:{14336*step+1792*h+o}")
        return r
    def mfmas1(st):
        return [f"v_mfma_f32_16x16x32_bf16 {vr(ACC+4*(4*i+j),4)}, {vr(FW[st]+4*i,4)}, {vr(FH[st]+4*j,4)}, {vr(ACC+4*(4*i+j),4)}"
                for i in range(7) for j in range(4)]
    e("s_mov_b32 s28, 0")
    e("s_mov_b32 s29, 2")
    e("s_barrier")
    k.stamp(1)
    for r in reads1(0, 0): e(r)
    k.label("c1loop")
    sal = ["s_add_u32 s29, s29, 1", f"s_mov_b32 s30, {STG1}", "s_cmp_eq_u32 s29, 3", f"s_cselect_b32 s30, {-2*STG1}, s30",
           "s_cselect_b32 s29, 0, s29", "s_add_u32 s28, s28, 1"]
    weave(e, mfmas1(0), reads1(1, 1) + sal, waits={4*i: f"s_waitcnt lgkmcnt({min(15, 12+2*i)})" for i in range(7)}, sched=[1]*28)
    weave(e, mfmas1(1), [f"v_add_u32 v{a}, s30, v{a}" for a in AH + AW] + reads1(0, 0) + ["s_cmp_lt_u32 s28, 16"],
          waits={0: "s_waitcnt lgkmcnt(12)"}, mid=(4, ["s_waitcnt lgkmcnt(0)", "s_barrier"]), sched=[0]*4 + [2]*6 + [1]*18)
    e(f"s_cbranch_scc1 {k.L('c1loop')}")
    k.stamp(2)
    e("v_and_b32 v1, 15, v0")
    e("s_lshl_b32 s26, s24, 9")
    e(f"s_add_u32 s26, s26, {STATS}")
    e("v_lshl_add_u32 v1, v1, 3, s26")
    e("s_lshl_b32 s26, s25, 9")
    e(f"s_add_u32 s26, s26, {CSL}")
    e("v_lshl_add_u32 v2, v15, 4, s26")
    e("s_mul_i32 s26, s25, 64")
    e(f"s_add_u32 s26, s26, {CSL+384}")
    e("v_lshl_add_u32 v3, v15, 4, s26")
    e(f"v_mov_b32 v6, {MISC}")
    e("s_waitcnt lgkmcnt(0)")
    MR = 128; C2 = 136; CSV = 144
    e("ds_read_b32 v7, v6 offset:4")
    for j in range(4):
        e(f"ds_read_b64 {vr(MR+2*j,2)}, v1 offset:{128*j}")
    for i in range(7):
        e(f"ds_read_b128 {vr(CSV+4*i,4)}, v{2 if i < 6 else 3} offset:{64*i if i < 6 else 0}")
    e("s_lshl_b32 s26, s25, 12")
    e("v_lshl_add_u32 v4, v0, 4, s26")
    e("s_lshl_b32 s26, s25, 3")
    e("s_add_u32 s26, s26, 3072")
    e("v_lshl_add_u32 v5, v0, 4, s26")
    e("s_lshl_b32 s26, s13, 3")
    e("s_lshl_b32 s27, s24, 2")
    e("s_add_u32 s26, s26, s27")
    e("s_mul_i32 s26, s26, 112")
    e("s_mul_i32 s27, s14, 7")
    e("s_add_u32 s26, s26, s27")
    e("s_lshl_b32 s26, s26, 10")
    e(f"s_add_u32 s32, s26, 0x{HM:x}")
    for j in range(1, 4):
        e(f"s_add_u32 s{32+j}, s32, {112*1024*j}")
    e("s_waitcnt lgkmcnt(0)")
    e("v_readfirstlane_b32 s54, v7")
    for j in range(4):
        e(f"v_mul_f32 v{C2+2*j}, 0xbfb8aa3b, v{MR+2*j+1}")
    e("s_and_b32 s26, s53, 1")
    e("s_lshl_b32 s27, s25, 2")
    e("s_sub_u32 s27, s27, s26")
    for n in range(4):
        if n < 3: e(f"s_add_u32 s60, s27, {n}")
        else:     e("s_sub_u32 s60, 3, s26")
        e("s_lshr_b32 s61, s60, 1")
        e("s_lshl_b32 s61, s61, 15")
        e("s_and_b32 s62, s60, 1")
        e("s_lshl_b32 s62, s62, 10")
        e("s_add_u32 s61, s61, s62")
        e("s_cmp_lt_u32 s60, 6")
        e(f"s_cselect_b32 s61, s61, {3*STG2}")
        e("s_lshl_b32 s62, s24, 13")
        e("s_add_u32 s61, s61, s62")
        if n == 3:
            e("s_lshl_b32 s62, s25, 3")
            e("s_add_u32 s61, s61, s62")
        e(f"v_lshl_add_u32 v{8+n}, v0, 4, s61")
    e("s_mov_b32 s58, 0xbfb8aa3b")
    e("s_mov_b32 s59, 0xbfb8aa3b")
    e("s_cmp_eq_u32 s54, 1")
    nsite = [0]
    def store2(ops):
        n = nsite[0]; nsite[0] += 1
        e(f"s_cbranch_scc1 {k.L(f'pl{n}')}")
        for o in ops: e(o + " sc1")
        e(f"s_branch {k.L(f'st{n}')}")
        k.label(f"pl{n}")
        for o in ops: e(o)
        k.label(f"st{n}")
    T = 172
    def elem8(tiles, out):
        P = T; Xr = T + 8
        def each(f):
            for n, (i, j) in enumerate(tiles):
                for h in range(2):
                    e(f(ACC + 4*(4*i+j) + 2*h, CSV + 4*i + 2*h, j, P + 4*n + 2*h, Xr + 4*n + 2*h))
        each(lambda a, c, j, p, x: f"v_pk_fma_f32 {vr(a,2)}, {vr(c,2)}, {vr(MR+2*j,2)}, {vr(a,2)} op_sel_hi:[1,0,1] neg_lo:[0,1,0] neg_hi:[0,1,0]")
        each(lambda a, c, j, p, x: f"v_pk_mul_f32 {vr(p,2)}, {vr(a,2)}, {vr(C2+2*j,2)} op_sel_hi:[1,0]")
        for q in range(8): e(f"v_exp_f32 v{Xr+q}, v{P+q}")
        each(lambda a, c, j, p, x: f"v_pk_fma_f32 {vr(x,2)}, {vr(x,2)}, s[58:59], s[58:59]")
        for q in range(8): e(f"v_rcp_f32 v{Xr+q}, v{Xr+q}")
        each(lambda a, c, j, p, x: f"v_pk_mul_f32 {vr(p,2)}, {vr(p,2)}, {vr(x,2)}")
        for q in range(4): e(f"v_cvt_pk_bf16_f32 v{out+q}, v{P+2*q}, v{P+2*q+1}")
    n = 0
    for j in range(4):
        for pr in range(3):
            o = 192 + 4*(n % 4); n += 1
            elem8([(2*pr, j), (2*pr+1, j)], o)
            e(f"ds_write_b128 v{8+pr}, {vr(o,4)} offset:{2048*j}")
            store2([f"buffer_store_dwordx4 {vr(o,4)}, v4, s[20:23], s{32+j} offen offset:{1024*pr}"])
        if j % 2 == 1:
            o = 192 + 4*(n % 4); n += 1
            elem8([(6, j-1), (6, j)], o)
            e(f"ds_write_b64 v11, {vr(o,2)} offset:{2048*(j-1)}")
            e(f"ds_write_b64 v11, {vr(o+2,2)} offset:{2048*j}")
            store2([f"buffer_store_dwordx2 {vr(o,2)}, v5, s[20:23], s{32+j-1} offen",
                    f"buffer_store_dwordx2 {vr(o+2,2)}, v5, s[20:23], s{32+j} offen"])
    k.stamp(3)

    NS = 4
    F0 = ACC + 64
    GW = [F0, F0 + 32]; GH = [F0 + 16, F0 + 48]
    BW = [8, 9, 10, 11]; BH = 12
    e("v_mov_b32 v2, v15")
    e("v_bfe_u32 v3, v0, 2, 2")
    e("v_and_b32 v4, 3, v0")
    e("v_lshl_add_u32 v7, v2, 2, v3")
    e("v_and_b32 v5, 7, v7")
    e("v_lshlrev_b32 v13, 8, v7")
    e("v_lshl_add_u32 v13, v4, 3, v13")
    e(f"v_add_u32 v13, {WOFF}, v13")
    e("s_lshl_b32 s26, s25, 2")
    for i in range(4):
        e(f"s_add_u32 s27, s26, {i}")
        e(f"v_xor_b32 v14, s27, v5")
        e(f"v_lshl_add_u32 v{BW[i]}, v14, 5, v13")
    e("s_lshl_b32 s26, s24, 12")
    e(f"v_lshl_add_u32 v{BH}, v0, 4, s26")
    for i in range(64):
        e(f"v_mov_b32 v{ACC+i}, 0")
    e("v_mov_b32 v13, 1")
    e("s_lshl_b32 s26, s2, 11")
    e(f"s_add_u32 s26, s26, 0x{HFL:x}")
    e("v_mov_b32 v14, 0")
    e("v_mov_b32 v216, s98")
    e("v_mov_b32 v217, s99")
    e("s_waitcnt vmcnt(0)")
    e("s_mov_b64 exec, 1")
    e("ds_add_rtn_u32 v1, v6, v13")
    e("s_waitcnt lgkmcnt(0)")
    e("v_readfirstlane_b32 s27, v1")
    e("s_cmp_eq_u32 s27, 3")
    e(f"s_cbranch_scc0 {k.L('noflag')}")
    e("s_cmp_eq_u32 s54, 1")
    store2(["buffer_store_dwordx2 v[216:217], v14, s[20:23], s26 offen"])
    k.label("noflag")
    e("s_mov_b64 exec, -1")
    e("v_bfe_u32 v6, v7, 1, 2")
    def hoff(j): return 2048*(j % 2) + 8192*(j // 2)
    def reads2(st, step):
        r = []
        for j in range(NS):
            r.append(f"ds_read_b128 {vr(GH[st]+4*j,4)}, v{BH} offset:{hoff(j)+1024*step}")
        for i in range(4):
            for h in range(2):
                r.append(f"ds_read_b64_tr_b16 {vr(GW[st]+4*i+2*h,2)}, v{BW[i]} offset:{8192*step+4096*h}")
        return r
    def mfmas2(st):
        return [f"v_mfma_f32_16x16x32_bf16 {vr(ACC+4*(NS*i+j),4)}, {vr(GW[st]+4*i,4)}, {vr(GH[st]+4*j,4)}, {vr(ACC+4*(NS*i+j),4)}"
                for i in range(4) for j in range(NS)]
    e("s_mov_b32 s28, 0")
    e("s_mov_b32 s29, 0")
    e("s_add_u32 s61, s12, s10")
    e("s_cmp_eq_u32 s61, 0")
    e(f"s_cselect_b32 s61, {WBAT}, 99")
    e("s_barrier")
    k.stamp(4)
    for r in reads2(0, 0): e(r)
    k.label("c2loop")
    sal = ["s_add_u32 s29, s29, 1", f"s_mov_b32 s30, {STG2}", f"s_cmp_eq_u32 s29, {NB2}", f"s_cselect_b32 s30, {-(NB2-1)*STG2}, s30",
           "s_cselect_b32 s29, 0, s29", "s_add_u32 s28, s28, 1"]
    weave(e, mfmas2(0), reads2(1, 1) + sal,
          waits={0: "s_waitcnt lgkmcnt(6)", 4: "s_waitcnt lgkmcnt(12)", 8: "s_waitcnt lgkmcnt(14)", 12: "s_waitcnt lgkmcnt(12)"},
          sched=[2]*6 + [1]*6)
    weave(e, mfmas2(1), [f"v_add_u32 v{a}, s30, v{a}" for a in [BH] + BW] + reads2(0, 0) + [f"s_cmp_lt_u32 s28, {NST2}"],
          waits={0: "s_waitcnt lgkmcnt(6)"}, mid=(4, ["s_waitcnt lgkmcnt(0)", "s_barrier"]), sched=[0]*4 + [2]*6 + [1]*6)
    if 'b' in X:
        e(f"s_cbranch_scc0 {k.L('c2done')}")
        e(f"s_cmp_eq_u32 s28, s61")
        e(f"s_cbranch_scc0 {k.L('c2loop')}")
        e("buffer_wbl2 sc1")
        e(f"s_branch {k.L('c2loop')}")
        k.label("c2done")
    else:
        e(f"s_cbranch_scc1 {k.L('c2loop')}")
    k.stamp(5)
    T = F0
    e("s_lshl_b32 s26, s2, 2")
    e("s_add_u32 s26, s26, s10")
    e("s_xor_b32 s27, s26, 4")
    e("s_lshl_b32 s31, s26, 12")
    e(f"s_add_u32 s31, s31, 0x{PART:x}")
    e("s_lshl_b32 s32, s27, 12")
    e(f"s_add_u32 s32, s32, 0x{PART:x}")
    e("s_lshl_b32 s35, s2, 11")
    e("s_lshl_b32 s36, s10, 7")
    e("s_add_u32 s35, s35, s36")
    e(f"s_add_u32 s35, s35, 0x{FLG:x}")
    e("s_xor_b32 s36, s35, 0x800")
    e("v_lshlrev_b32 v14, 4, v0")
    e("s_cmp_eq_u32 s15, 0")
    e(f"s_cbranch_scc1 {k.L('send_hi')}")
    for own in (1, 0):
        if own == 0: k.label("send_hi")
        for i in range(4):
            a0 = ACC + 4*(NS*i + 2*(1-own)); o = T + 48 + 4*i
            for q in range(4):
                e(f"v_cvt_pk_bf16_f32 v{o+q}, v{a0+2*q}, v{a0+2*q+1}")
            e(f"buffer_store_dwordx4 {vr(o,4)}, v14, s[20:23], s31 offen offset:{1024*i} sc1")
        if own == 1:
            for i in range(4):
                for q in range(8):
                    e(f"v_mov_b32 v{ACC+4*NS*i+q}, v{ACC+4*NS*i+8+q}")
            e(f"s_branch {k.L('sent')}")
    k.label("sent")
    e("v_lshlrev_b32 v13, 7, v7")
    e("v_lshl_add_u32 v13, v4, 3, v13")
    e("s_lshl_b32 s26, s25, 13")
    e(f"s_add_u32 s26, s26, {RES}")
    e("v_add_u32 v13, s26, v13")
    e("s_lshl_b32 s26, s24, 1")
    for j in range(2):
        e(f"s_add_u32 s27, s26, {j}")
        e(f"v_xor_b32 v15, s27, v6")
        e(f"v_lshl_add_u32 v{8+j}, v15, 5, v13")
    e("s_waitcnt lgkmcnt(0)")
    HR = T
    for i in range(4):
        for j in range(2):
            e(f"ds_read_b64_tr_b16 {vr(HR+2*(2*i+j),2)}, v{8+j} offset:{2048*i}")
    e("v_and_b32 v10, 15, v0")
    e("v_lshrrev_b32 v11, 1, v2")
    e("v_and_b32 v12, 7, v10")
    e("v_xor_b32 v11, v11, v12")
    e("v_lshlrev_b32 v11, 4, v11")
    e("v_lshl_add_u32 v11, v10, 7, v11")
    e("v_and_b32 v12, 1, v2")
    e("v_lshl_add_u32 v11, v12, 3, v11")
    e("s_lshl_b32 s26, s10, 12")
    e("v_add_u32 v3, s26, v11")
    e("v_xor_b32 v4, 32, v3")
    e("v_xor_b32 v5, 64, v3")
    e("v_xor_b32 v6, 96, v3")
    e("v_lshrrev_b32 v10, 3, v0")
    e("v_and_b32 v11, 7, v0")
    e("v_xor_b32 v12, v11, v10")
    e("v_lshlrev_b32 v12, 4, v12")
    e("v_lshl_add_u32 v12, v10, 7, v12")
    e("v_add_u32 v7, s26, v12")
    e("v_lshlrev_b32 v10, 11, v10")
    e("v_lshl_add_u32 v10, v11, 4, v10")
    e("s_lshl_b32 s26, s13, 7")
    e("s_lshl_b32 s27, s24, 5")
    e("s_add_u32 s26, s26, s27")
    e("s_lshl_b32 s27, s15, 6")
    e("s_add_u32 s26, s26, s27")
    e("s_lshl_b32 s26, s26, 11")
    e("s_lshl_b32 s27, s53, 8")
    e("s_add_u32 s26, s26, s27")
    e("s_lshl_b32 s27, s25, 7")
    e("s_add_u32 s48, s26, s27")
    for q in range(1, 4):
        e(f"s_add_u32 s{48+q}, s48, {q*8*2048}")
    PR = T + 16; U = PR + 16
    e("s_mov_b32 s37, 0xffff0000")
    e("s_waitcnt lgkmcnt(0)")
    for i in range(4):
        for j in range(2):
            n = 2*i + j; a = ACC + 4*(NS*i + j); u = U + 4*(n % 2)
            e(f"v_lshlrev_b32 v{u}, 16, v{HR+2*n}")
            e(f"v_and_b32 v{u+1}, s37, v{HR+2*n}")
            e(f"v_lshlrev_b32 v{u+2}, 16, v{HR+2*n+1}")
            e(f"v_and_b32 v{u+3}, s37, v{HR+2*n+1}")
            for h in range(2):
                e(f"v_pk_add_f32 {vr(a+2*h,2)}, {vr(a+2*h,2)}, {vr(u+2*h,2)}")
    e("v_mov_b32 v15, 0")
    e("s_waitcnt vmcnt(0)")
    e("s_mov_b64 exec, 1")
    e("buffer_store_dwordx2 v[216:217], v15, s[20:23], s35 offen sc1")
    e("s_mov_b32 s38, 0")
    k.label("poll")
    e("buffer_load_dwordx2 v[218:219], v15, s[20:23], s36 offen sc1")
    e("s_add_u32 s38, s38, 1")
    e("s_cmp_gt_u32 s38, 0x200000")
    e(f"s_cbranch_scc1 {k.L('polled')}")
    e("s_waitcnt vmcnt(0)")
    e("v_cmp_ne_u64 vcc, v[218:219], v[216:217]")
    e(f"s_cbranch_vccnz {k.L('poll')}")
    k.label("polled")
    k.stamp(6)
    e("s_mov_b64 exec, -1")
    for i in range(4):
        e(f"buffer_load_dwordx4 {vr(PR+4*i,4)}, v14, s[20:23], s32 offen offset:{1024*i} sc1")
    for i in range(4):
        for j in range(2):
            n = 2*i + j; a = ACC + 4*(NS*i + j); u = U + 4*(n % 2)
            if j == 0: e(f"s_waitcnt vmcnt({3-i})")
            e(f"v_lshlrev_b32 v{u}, 16, v{PR+2*n}")
            e(f"v_and_b32 v{u+1}, s37, v{PR+2*n}")
            e(f"v_lshlrev_b32 v{u+2}, 16, v{PR+2*n+1}")
            e(f"v_and_b32 v{u+3}, s37, v{PR+2*n+1}")
            for h in range(2):
                e(f"v_pk_add_f32 {vr(a+2*h,2)}, {vr(a+2*h,2)}, {vr(u+2*h,2)}")
            e(f"v_cvt_pk_bf16_f32 v{HR+2*n}, v{a}, v{a+1}")
            e(f"v_cvt_pk_bf16_f32 v{HR+2*n+1}, v{a+2}, v{a+3}")
            e(f"ds_write_b64 v{3+i}, {vr(HR+2*n,2)} offset:{2048*j}")
    e("s_waitcnt lgkmcnt(0)")
    for q in range(4):
        e(f"ds_read_b128 {vr(PR+4*q,4)}, v7 offset:{1024*q}")
    for q in range(4):
        e(f"s_waitcnt lgkmcnt({3-q})")
        e(f"buffer_store_dwordx4 {vr(PR+4*q,4)}, v10, s[44:47], s{48+q} offen")
    if STAMP:
        e("s_waitcnt vmcnt(0)")
        k.dump_stamps(1, 20, 10)
    k.dbg_out()
    e("s_add_u32 s26, s2, s10")
    e("s_cmp_eq_u32 s26, 0")
    e(f"s_cbranch_scc0 {k.L('fin')}")
    e("s_load_dwordx2 s[60:61], s[0:1], 80")
    e("v_mov_b32 v2, 0")
    e("v_mov_b32 v3, 0")
    e("s_waitcnt lgkmcnt(0)")
    k.srd(60, 60, 61, 256)
    e("s_mov_b64 exec, 1")
    e("buffer_store_dwordx2 v[2:3], v2, s[60:63], 0 offen sc1")
    k.label("fin")
    e("s_endpgm")

    k.lines.append("Lmlp_loader:")
    k.role = "B"
    k.stamp(0)
    entry()
    e("v_mov_b32 v216, s98")
    e("v_mov_b32 v217, s99")
    e("s_sub_u32 s24, s10, 4")
    VH = 16; VW = 20
    e("s_lshl_b32 s47, s24, 16")
    e("s_lshl_b32 s26, s13, 8")
    e("s_add_u32 s47, s47, s26")
    e(f"s_add_u32 s47, s47, 0x{HT:x}")
    e(f"s_mul_i32 s48, s24, {16*7168}")
    e("s_mul_i32 s27, s14, 448")
    e("s_add_u32 s48, s48, s27")
    e("s_add_u32 s36, s14, s13")
    if 'A' in X:
        e("s_and_b32 s36, s36, 3")
        e("s_and_b32 s37, s13, 12")
        e("s_and_b32 s49, s14, 12")
        e("s_add_u32 s37, s37, s49")
        e("s_add_u32 s36, s36, s37")
    e("s_and_b32 s36, s36, 15")
    e("s_mov_b32 s49, 0")
    e("s_lshl_b32 s25, s36, 18")
    e("s_add_u32 s25, s25, s47")
    e(f"s_mul_i32 s26, s36, {64*7168}")
    e("s_add_u32 s26, s26, s48")
    e("s_lshl_b32 s27, s24, 12")
    e("s_mul_i32 s28, s24, 7168")
    e(f"s_add_u32 s28, s28, {WOFF}")
    e("v_bfe_u32 v9, v0, 1, 3")
    e("v_and_b32 v10, 1, v0")
    e("v_lshlrev_b32 v10, 4, v10")
    e("v_lshl_add_u32 v10, v2, 12, v10")
    e("v_xor_b32 v9, v9, v2")
    for pp in range(4):
        if pp == 2: e("v_xor_b32 v9, 4, v9")
        e(f"v_lshl_add_u32 v{VH+pp}, v9, 5, v10")
        if pp: e(f"v_add_u32 v{VH+pp}, {pp*(16384-1024)}, v{VH+pp}")
    def wpat(q):
        e(f"v_add_u32 v9, {64*q}, v0")
        e("v_mul_u32_u24 v10, 9363, v9")
        e("v_lshrrev_b32 v10, 18, v10")
        e("v_mul_u32_u24 v11, 28, v10")
        e("v_sub_u32 v11, v9, v11")
        e("v_lshrrev_b32 v12, 2, v10")
        e("v_and_b32 v12, 2, v12")
        e("v_xor_b32 v11, v11, v12")
        e("v_mul_u32_u24 v12, 7168, v10")
        e("v_lshl_add_u32 v12, v11, 4, v12")
        e(f"v_add_u32 v{VW+q}, {-1024*(q%4)}, v12")
    for q in range(7): wpat(q)
    e("s_waitcnt lgkmcnt(0)")
    k.srd(20, 8, 9, WS_BYTES)
    k.srd(16, 4, 5, 1024*3584*2)
    def advance():
        e("s_add_u32 s49, s49, 1")
        e("s_add_u32 s37, s36, 1")
        e("s_and_b32 s37, s37, 3")
        e("s_and_b32 s36, s36, 12")
        e("s_or_b32 s36, s36, s37")
        e("s_and_b32 s37, s49, 3")
        e("s_cmp_eq_u32 s37, 0")
        e("s_cselect_b32 s37, 4, 0")
        e("s_add_u32 s36, s36, s37")
        e("s_and_b32 s36, s36, 15")
        e("s_lshl_b32 s25, s36, 18")
        e("s_add_u32 s25, s25, s47")
        e(f"s_mul_i32 s26, s36, {64*7168}")
        e("s_add_u32 s26, s26, s48")
    def hpart(so, m0):
        e(m0); e("s_nop 0")
        for pp in range(4):
            e(f"buffer_load_dwordx4 v{VH+pp}, s[20:23], {so} offen offset:{1024*pp}{HSC} lds")
    def wpart(buf, pol=""):
        e(f"s_add_u32 m0, s28, {buf}"); e("s_nop 0")
        for q in range(7):
            if q == 4: e(f"s_add_u32 m0, s28, {buf+4096}"); e("s_nop 0")
            e(f"buffer_load_dwordx4 v{VW+q}, s[16:19], s26 offen offset:{1024*(q%4)}{pol} lds")
    e("s_cmp_ge_u32 s24, 2")
    e(f"s_cbranch_scc1 {k.L('now0')}")
    wpart(2*STG1, " nt" if 'N' in X else "")
    e(f"s_add_u32 s26, s26, {32*7168}")
    wpart(2*STG1 + 2*7168, " nt" if 'N' in X else "")
    k.label("now0")
    e("s_mov_b32 s50, s25")
    e("s_mov_b32 s62, s36")
    advance()
    e("v_lshrrev_b32 v9, 3, v0")
    e("v_lshlrev_b32 v9, 11, v9")
    e("v_bfe_u32 v10, v0, 2, 1")
    e("v_lshl_add_u32 v9, v10, 18, v9")
    e("v_and_b32 v10, 3, v0")
    e("v_lshl_add_u32 v38, v10, 14, v9")
    e("s_lshl_b32 s52, s24, 16")
    e(f"s_add_u32 s52, s52, 0x{FHT:x}")
    e("s_mov_b64 s[58:59], 0")
    e("s_mov_b32 s39, 0")
    e(f"v_mov_b32 v35, {FRONT_FLAG+(52 if 'E' not in X else 48)}")
    k.label("waitF")
    e("s_sleep 1")
    e("ds_read_b32 v34, v35")
    e("s_waitcnt lgkmcnt(0)")
    e(f"v_cmp_gt_u32 vcc, {8 if 'E' not in X else 4}, v34")
    e(f"s_cbranch_vccnz {k.L('waitF')}")
    nneed = [0]
    def need(stage, narrow=False):
        n = nneed[0]; nneed[0] += 1
        if narrow:
            e(f"s_lshl_b32 s60, {stage}, 2")
            if 'W' in X:
                e("s_and_b32 s60, s60, 48")
                e("s_mov_b64 s[66:67], 0xffff")
                e("s_lshl_b64 s[66:67], s[66:67], s60")
            else:
                e("s_lshl_b64 s[66:67], 15, s60")
        k.label(f"need{n}")
        e(f"s_lshl_b32 s60, {stage}, 2")
        e("s_lshr_b64 s[60:61], s[58:59], s60")
        e("s_and_b32 s60, s60, 15")
        e("s_cmp_eq_u32 s60, 15")
        e(f"s_cbranch_scc1 {k.L(f'have{n}')}")
        if narrow: e("s_mov_b64 exec, s[66:67]")
        e("buffer_load_dwordx2 v[100:101], v38, s[20:23], s52 offen sc1")
        if narrow: e("s_mov_b64 exec, -1")
        e("s_add_u32 s39, s39, 1")
        e("s_cmp_gt_u32 s39, 0x100000")
        e(f"s_cbranch_scc1 {k.L(f'have{n}')}")
        e("s_waitcnt vmcnt(0)")
        e("v_cmp_eq_u64 vcc, v[100:101], v[216:217]")
        e("s_or_b64 s[58:59], s[58:59], vcc")
        e(f"s_branch {k.L(f'need{n}')}")
        k.label(f"have{n}")
    e("v_mov_b32 v100, 0")
    need("s62", narrow='R' in X)
    k.stamp(5)
    k.note("s39", 17)
    hpart("s50", f"s_add_u32 m0, s27, {2*STG1}")
    wpart(0, " nt" if 'M' in X else "")
    e("s_waitcnt vmcnt(7)")
    e("s_barrier")
    need("s36", narrow='R' in X)
    hpart("s25", "s_mov_b32 m0, s27")
    advance()
    if 'W' in X:
        e("buffer_load_dwordx2 v[102:103], v38, s[20:23], s52 offen sc1")
    e(f"s_mov_b32 s29, {STG1}")
    k.srd(40, 6, 7, 1024*3584*2)
    e("s_lshl_b32 s63, s2, 2")
    e("s_add_u32 s63, s63, s24")
    e(f"s_mul_i32 s63, s63, {56*128}")
    if 'h' in X: e(f"s_add_u32 s63, s63, {28*128}")
    e("v_lshlrev_b32 v39, 7, v0")
    def issue1(first=False):
        need("s36", narrow=('Q' in X) or (first and 'W' in X))
        e("s_add_u32 m0, s27, s29")
        e("s_add_u32 s30, s28, s29")
        for pp in range(4):
            e(f"buffer_load_dwordx4 v{VH+pp}, s[20:23], s25 offen offset:{1024*pp}{HSC} lds")
        e("s_mov_b32 m0, s30")
        e("s_nop 0")
        for q in range(4):
            e(f"buffer_load_dwordx4 v{VW+q}, s[16:19], s26 offen offset:{1024*q} lds")
        e("s_add_u32 m0, s30, 4096")
        e(f"s_add_u32 s29, s29, {STG1}")
        for q in range(4, 7):
            e(f"buffer_load_dwordx4 v{VW+q}, s[16:19], s26 offen offset:{1024*(q-4)} lds")
        if TR:
            e(f"s_mov_b64 exec, {'0x7' if 'h' in X else '0x1f'}")
            e("buffer_load_dword v210, v39, s[40:43], s63 offen")
            e("s_mov_b64 exec, -1")
            e(f"s_add_u32 s63, s63, {384 if 'h' in X else 640}")
        e(f"s_cmp_eq_u32 s29, {NB1*STG1}")
        e("s_cselect_b32 s29, 0, s29")
        advance()
    k.stamp(1)
    issue1(first=True)
    trcommon()
    e("s_lshl_b32 s31, s24, 1")
    e("v_xor_b32 v12, s31, v6")
    e("v_lshl_add_u32 v36, v12, 5, v8")
    e(f"v_add_u32 v36, {2*STG1}, v36")
    e("v_xor_b32 v37, 32, v36")
    S = [40, 42]; Q = [44, 46]
    for r in range(40, 48): e(f"v_mov_b32 v{r}, 0")
    e("s_mov_b32 s33, 0xffff0000")
    D = 48; U = 64
    for t in range(2):
        for st in range(2):
            for h in range(2):
                e(f"ds_read_b64_tr_b16 {vr(D+8*t+4*st+2*h,2)}, v{36+t} offset:{8192*st+1024*h}")
    e("s_waitcnt lgkmcnt(0)")
    for j in range(8):
        for t in range(2):
            u = U + 2*t
            e(f"v_lshlrev_b32 v{u}, 16, v{D+8*t+j}")
            e(f"v_and_b32 v{u+1}, s33, v{D+8*t+j}")
        for t in range(2):
            u = U + 2*t
            for q in range(2):
                e(f"v_add_f32 v{S[t]+q}, v{S[t]+q}, v{u+q}")
                e(f"v_fmac_f32 v{Q[t]+q}, v{u+q}, v{u+q}")
    def greduce(regs):
        for op in ("v_permlane32_swap_b32", "v_permlane16_swap_b32"):
            for i, r in enumerate(regs): e(f"v_mov_b32 v{D+i}, v{r}")
            e("s_nop 1")
            for i, r in enumerate(regs): e(f"{op} v{r}, v{D+i}")
            e("s_nop 1")
            for i, r in enumerate(regs): e(f"v_add_f32 v{r}, v{r}, v{D+i}")
    for r in S + Q: e(f"v_add_f32 v{r}, v{r}, v{r+1}")
    greduce(S + Q)
    e("v_cmp_gt_u32 vcc, 16, v0")
    e("s_lshl_b32 s31, s13, 15")
    e("s_lshl_b32 s32, s24, 9")
    e("s_add_u32 s31, s31, s32")
    e(f"s_add_u32 s31, s31, 0x{SP2:x}")
    e("s_lshl_b32 s32, s14, 11")
    e("s_add_u32 s32, s32, s31")
    e(f"v_cndmask_b32 v214, v{S[1]}, v{S[0]}, vcc")
    e(f"v_cndmask_b32 v215, v{Q[1]}, v{Q[0]}, vcc")
    e("v_lshlrev_b32 v9, 4, v0")
    e("s_mov_b64 exec, 0xffffffff")
    e("buffer_store_dwordx4 v[214:217], v9, s[20:23], s32 offen sc1")
    e("s_mov_b64 exec, -1")
    e("v_mul_u32_u24 v12, 448, v7")
    e("v_lshl_add_u32 v12, v4, 3, v12")
    e("s_lshl_b32 s32, s24, 7")
    e(f"s_add_u32 s32, s32, {WOFF + 2*STG1}")
    e("v_add_u32 v12, s32, v12")
    e("v_lshl_add_u32 v13, v5, 5, v12")
    e("v_xor_b32 v14, 1, v5")
    e("v_lshl_add_u32 v14, v14, 5, v12")
    CW = 68
    for t in range(4):
        for st in range(2):
            for h in range(2):
                e(f"ds_read_b64_tr_b16 {vr(CW+8*t+4*st+2*h,2)}, v{13 + t%2} offset:{14336*st+1792*h+64*(t//2)}")
        if t == 2: e("s_waitcnt lgkmcnt(8)")
    for r in range(40, 48): e(f"v_mov_b32 v{r}, 0")
    e("s_waitcnt lgkmcnt(0)")
    for j in range(8):
        for t in range(4):
            e(f"v_lshlrev_b32 v{U}, 16, v{CW+8*t+j}")
            e(f"v_and_b32 v{U+1}, s33, v{CW+8*t+j}")
            e(f"v_add_f32 v{40+t}, v{40+t}, v{U}")
            e(f"v_add_f32 v{44+t}, v{44+t}, v{U+1}")
    for t in range(4): e(f"v_add_f32 v{40+t}, v{40+t}, v{44+t}")
    greduce([40, 41, 42, 43])
    e("v_cmp_gt_u32 vcc, 16, v0")
    e("s_lshl_b32 s32, s14, 4")
    e("s_add_u32 s32, s32, s13")
    e("s_lshl_b32 s32, s32, 11")
    e("s_lshl_b32 s34, s24, 9")
    e("s_add_u32 s32, s32, s34")
    e(f"s_add_u32 s32, s32, 0x{CP:x}")
    e("v_cndmask_b32 v214, v42, v40, vcc")
    e("v_cndmask_b32 v215, v43, v41, vcc")
    e("s_mov_b64 exec, 0xffffffff")
    e("buffer_store_dwordx4 v[214:217], v9, s[20:23], s32 offen sc1")
    e("s_mov_b64 exec, -1")
    e("s_mov_b32 s35, 0")
    k.label("l1loop")
    e("s_cmp_eq_u32 s35, 0")
    e(f"s_cbranch_scc1 {k.L('lw20')}")
    e("s_cmp_eq_u32 s35, 1")
    e(f"s_cbranch_scc1 {k.L('lw12')}")
    e(f"s_waitcnt vmcnt({11 + 2*TR})")
    k.label("lw12")
    e(f"s_waitcnt vmcnt({13 + 2*TR})")
    if 'W' in X:
        e("v_cmp_eq_u64 vcc, v[102:103], v[216:217]")
        e("s_or_b64 s[58:59], s[58:59], vcc")
    k.label("lw20")
    e(f"s_waitcnt vmcnt({13 + TR})")
    e("s_barrier")
    e("s_cmp_ge_u32 s35, 13")
    e(f"s_cbranch_scc1 {k.L('l1done')}")
    issue1()
    e("s_add_u32 s35, s35, 1")
    e(f"s_branch {k.L('l1loop')}")
    k.label("l1done")
    k.stamp(2)
    e("s_lshl_b32 s33, s14, 15")
    e("s_lshl_b32 s34, s24, 9")
    e("s_add_u32 s33, s33, s34")
    e(f"s_add_u32 s33, s33, 0x{CP:x}")
    e("v_and_b32 v10, 31, v0")
    e("v_lshlrev_b32 v9, 4, v10")
    e("v_lshrrev_b32 v11, 5, v0")
    e("v_lshl_add_u32 v9, v11, 11, v9")
    e("v_and_b32 v11, 7, v0")
    e("v_lshlrev_b32 v11, 16, v11")
    e("s_and_b32 s34, s2, 31")
    e("s_lshl_b32 s34, s34, 11")
    e(f"s_add_u32 s50, s34, 0x{XID:x}")
    e(f"s_add_u32 s51, s34, 0x{HFL:x}")
    e("s_mov_b32 s39, 0")
    G = 68
    k.label("spoll")
    e("s_mov_b32 s32, s31")
    for q in range(8):
        e(f"buffer_load_dwordx4 {vr(G+4*q,4)}, v9, s[20:23], s32 offen sc1")
        e("s_add_u32 s32, s32, 4096")
    e("s_mov_b32 s32, s33")
    for q in range(8):
        e(f"buffer_load_dwordx4 {vr(G+32+4*q,4)}, v9, s[20:23], s32 offen sc1")
        e("s_add_u32 s32, s32, 4096")
    e("buffer_load_dwordx3 v[64:66], v11, s[20:23], s50 offen sc1")
    e("s_add_u32 s39, s39, 1")
    e("s_cmp_gt_u32 s39, 0x100000")
    e(f"s_cbranch_scc1 {k.L('spolled')}")
    e("s_waitcnt vmcnt(0)")
    e("v_cmp_ne_u64 s[44:45], v[64:65], v[216:217]")
    for q in range(16):
        e(f"v_cmp_ne_u64 vcc, {vr(G+4*q+2,2)}, v[216:217]")
        e("s_or_b64 s[44:45], s[44:45], vcc")
    e("s_cmp_lg_u64 s[44:45], 0")
    e(f"s_cbranch_scc1 {k.L('spoll')}")
    k.label("spolled")
    e("s_waitcnt vmcnt(0)")
    e("v_cmp_ne_u32 vcc, s55, v66")
    for q in range(1, 8):
        for j in range(2):
            e(f"v_add_f32 v{40+j}, v{G+j if q == 1 else 40+j}, v{G+4*q+j}")
            e(f"v_add_f32 v{42+j}, v{G+32+j if q == 1 else 42+j}, v{G+32+4*q+j}")
    e("s_cmp_eq_u64 vcc, 0")
    e("s_cselect_b32 s54, 1, 2")
    if 'f' in X: e("s_mov_b32 s54, 2")
    for i in range(4): e(f"v_mov_b32 v{D+i}, v{40+i}")
    e("s_nop 1")
    for i in range(4): e(f"v_permlane32_swap_b32 v{40+i}, v{D+i}")
    e("s_nop 1")
    for i in range(4): e(f"v_add_f32 v{40+i}, v{40+i}, v{D+i}")
    ln_stats(k, [40], [41], [56], [57], [60])
    e("s_lshl_b32 s31, s24, 8")
    e(f"s_add_u32 s31, s31, {STATS}")
    e("v_lshl_add_u32 v9, v10, 3, s31")
    e("ds_write_b64 v9, v[56:57]")
    e(f"v_mov_b32 v9, {MISC}")
    e("v_mov_b32 v62, 0")
    e("v_mov_b32 v63, s54")
    e("ds_write_b64 v9, v[62:63]")
    e("v_and_b32 v9, 15, v0")
    e("v_and_b32 v12, 16, v0")
    e("v_lshl_add_u32 v9, v12, 1, v9")
    e("s_lshl_b32 s31, s24, 8")
    e(f"s_add_u32 s31, s31, {CSL}")
    e("v_lshl_add_u32 v9, v9, 2, s31")
    e("ds_write_b32 v9, v42")
    e("ds_write_b32 v9, v43 offset:64")
    if 'w' not in X:
        e("s_lshl_b32 s31, s2, 2")
        e("s_add_u32 s31, s31, s24")
        e(f"s_mul_i32 s31, s31, {56*128}")
        e("v_lshlrev_b32 v9, 7, v0")
        e("buffer_load_dword v210, v9, s[40:43], s31 offen")
    e("s_waitcnt lgkmcnt(0)")
    e("s_barrier")
    VA = 16; VW2 = 18; VR = 22
    e(f"v_lshlrev_b32 v{VA}, 4, v0")
    e(f"v_add_u32 v{VA+1}, {112*1024-2048}, v{VA}")
    e("v_bfe_u32 v9, v0, 1, 3")
    e("v_and_b32 v10, 1, v0")
    e("v_lshlrev_b32 v10, 4, v10")
    e("v_lshl_add_u32 v10, v2, 11, v10")
    e("v_xor_b32 v9, v9, v2")
    e("v_xor_b32 v12, 4, v9")
    for pp in range(4):
        e(f"v_lshl_add_u32 v{VW2+pp}, v{9 if pp % 2 == 0 else 12}, 5, v10")
        if pp: e(f"v_add_u32 v{VW2+pp}, {pp*(8192-1024)}, v{VW2+pp}")
    e("v_bfe_u32 v9, v0, 1, 2")
    e("v_xor_b32 v9, v9, v2")
    e("v_and_b32 v10, 1, v0")
    e("v_lshlrev_b32 v10, 4, v10")
    e("v_lshl_add_u32 v10, v9, 5, v10")
    e("v_lshrrev_b32 v9, 3, v0")
    e(f"v_lshl_add_u32 v{VR}, v9, 12, v10")
    for pp in range(1, 4):
        e(f"v_add_u32 v{VR+pp}, {pp*(32768-1024)}, v{VR}")
    e("s_lshl_b32 s47, s13, 3")
    e("s_lshl_b32 s26, s24, 1")
    e("s_add_u32 s47, s47, s26")
    e("s_mul_i32 s47, s47, 112")
    e("s_mul_i32 s26, s15, 56")
    e("s_add_u32 s47, s47, s26")
    e("s_lshl_b32 s47, s47, 10")
    e(f"s_add_u32 s47, s47, 0x{HM:x}")
    e("s_mul_i32 s48, s15, 1792")
    e("s_lshl_b32 s27, s24, 4")
    e("s_add_u32 s48, s48, s27")
    e("s_lshl_b32 s48, s48, 11")
    e("s_lshl_b32 s27, s53, 8")
    e("s_add_u32 s48, s48, s27")
    e("s_mul_i32 s36, s53, 7")
    e("s_add_u32 s36, s36, 1")
    e("s_lshr_b32 s36, s36, 1")
    e("s_lshl_b32 s27, s24, 12")
    e(f"s_add_u32 s28, s27, {WOFF}")
    e("s_lshr_b32 s62, s11, 1")
    e("s_mul_i32 s62, s62, 3")
    e("s_lshr_b32 s62, s62, 1")
    e("s_lshl_b32 s62, s62, 2")
    e(f"s_min_u32 s52, s36, {NST2-4}")
    def st_of(n):
        e(f"s_add_u32 s37, s36, {n}")
        e(f"s_cmp_ge_u32 s37, {NST2}")
        e(f"s_cselect_b32 s38, {4 if 'F' not in X else NST2}, 0")
        e("s_sub_u32 s37, s37, s38")
    e("s_barrier")
    k.stamp(3)
    def wpart2(n):
        st_of(n)
        e("s_lshl_b32 s26, s37, 17")
        e("s_add_u32 s26, s26, s48")
        e(f"s_add_u32 m0, s28, {n*STG2}")
        e("s_nop 0")
        for pp in range(4):
            e(f"buffer_load_dwordx4 v{VW2+pp}, s[40:43], s26 offen offset:{1024*pp}{NT2} lds")
    wpart2(0); wpart2(1); wpart2(2)
    if 'P' in X:
        e("s_lshl_b32 s31, s2, 2")
        e("s_add_u32 s31, s31, s24")
        e("s_lshl_b32 s31, s31, 12")
        e(f"s_add_u32 s31, s31, 0x{PART:x}")
        e("v_lshlrev_b32 v9, 6, v0")
        e("buffer_load_dword v210, v9, s[20:23], s31 offen sc1")
    wpart2(3)
    e("s_lshl_b32 s31, s53, 7")
    e("s_lshl_b32 s32, s24, 5")
    e("s_add_u32 s31, s31, s32")
    e("s_lshl_b32 s31, s31, 12")
    e("s_lshl_b32 s32, s13, 8")
    e("s_add_u32 s31, s31, s32")
    e("s_lshl_b32 s32, s15, 7")
    e("s_add_u32 s31, s31, s32")
    e(f"s_add_u32 s31, s31, 0x{HT:x}")
    e(f"s_add_u32 m0, s27, {RES}")
    e("s_nop 0")
    for pp in range(4):
        e(f"buffer_load_dwordx4 v{VR+pp}, s[20:23], s31 offen offset:{1024*pp} lds")
    def hpart2(n):
        st_of(n)
        e("s_lshl_b32 s25, s37, 11")
        e("s_add_u32 s25, s25, s47")
        e(f"s_add_u32 m0, s27, {n*STG2}")
        e("s_nop 0")
        for pp in range(4):
            e(f"buffer_load_dwordx4 v{VA+pp//2}, s[20:23], s25 offen offset:{1024*pp} lds")
    e(f"s_waitcnt vmcnt({17 if 'P' in X else 16})")
    k.stamp(4)
    e("s_barrier")
    e("s_mov_b32 s39, 0")
    e("s_mov_b64 exec, 0xff")
    k.label("hpoll")
    e("buffer_load_dwordx2 v[64:65], v11, s[20:23], s51 offen sc1")
    e("s_add_u32 s39, s39, 1")
    e("s_cmp_gt_u32 s39, 0x100000")
    e(f"s_cbranch_scc1 {k.L('hpolled')}")
    e("s_waitcnt vmcnt(0)")
    e("v_cmp_ne_u64 vcc, v[64:65], v[216:217]")
    e(f"s_cbranch_vccnz {k.L('hpoll')}")
    k.label("hpolled")
    e("s_mov_b64 exec, -1")
    hpart2(3)
    e("s_mov_b32 s29, 0")
    e(f"s_mov_b32 s35, {NB2}")
    def issue2():
        e("s_add_u32 s37, s35, s13")
        e(f"s_and_b32 s37, s37, {RW-1}")
        e(f"s_andn2_b32 s38, s35, {RW-1}")
        e("s_or_b32 s37, s37, s38")
        if 'F' in X:
            st_of("s37")
        else:
            e("s_sub_u32 s37, s37, 4")
            if 'g' not in X:
                e("s_add_u32 s37, s37, s62")
                e(f"s_cmp_ge_u32 s37, {NST2-4}")
                e(f"s_cselect_b32 s38, {NST2-4}, 0")
                e("s_sub_u32 s37, s37, s38")
            e("s_cmp_ge_u32 s37, s52")
            e("s_cselect_b32 s38, 4, 0")
            e("s_add_u32 s37, s37, s38")
        e("s_lshl_b32 s25, s37, 11")
        e("s_add_u32 s25, s25, s47")
        e("s_lshl_b32 s26, s37, 17")
        e("s_add_u32 m0, s27, s29")
        e("s_add_u32 s26, s26, s48")
        for pp in range(4):
            e(f"buffer_load_dwordx4 v{VA+pp//2}, s[20:23], s25 offen offset:{1024*pp} lds")
        e("s_add_u32 m0, s28, s29")
        e(f"s_add_u32 s29, s29, {STG2}")
        for pp in range(4):
            e(f"buffer_load_dwordx4 v{VW2+pp}, s[40:43], s26 offen offset:{1024*pp}{NT2} lds")
        e(f"s_and_b32 s29, s29, {NB2*STG2-1}")
        e("s_add_u32 s35, s35, 1")
    e("s_barrier")
    issue2()
    e("s_waitcnt vmcnt(12)")
    e("s_barrier")
    issue2()
    k.label("l2loop")
    e("s_waitcnt vmcnt(16)")
    e("s_barrier")
    issue2()
    e(f"s_cmp_lt_u32 s35, {NST2}")
    e(f"s_cbranch_scc1 {k.L('l2loop')}")
    for i in range(NST2-NB2, NST2):
        left = max(NST2 - 1 - (i + 1), 0)
        e(f"s_waitcnt vmcnt({left*8})")
        e("s_barrier")
    k.dump_stamps(1, 20, 10)
    e("s_endpgm")
```

```python
from asmlib import *
from layout import *
from k0 import ln_stats
from kf import FLAG as FRONT_FLAG
import os
X = os.environ.get('MX', 'wER')
FSLEEP = int(os.environ.get('FSLEEP', '4'))
NT2 = ' nt' if 'n' in X else ''
TR = 1 if 't' in X else 0
HSC = '' if 's' in X else ' sc1'
WBAT = int(os.environ.get('WBAT', '16'))
WL = int(os.environ.get('WL', '28'))
RW = int(os.environ.get('K4RW', '4'))

STG1 = 45056; WOFF = 16384; NB1 = 3
STG2 = 32768; NB2 = 4; RES = NB2 * STG2; NST2 = 28
STATS = 151552
CSL = STATS + 1024
MISC = CSL + 1024
NCS = 4

def weave(e, ms, fill, waits=None, mid=None, sched=None):
    fill = list(fill)
    for i, m in enumerate(ms):
        if mid and i == mid[0]:
            for t in mid[1]: e(t)
        if waits and i in waits: e(waits[i])
        e(m)
        for _ in range(sched[i] if i < len(sched) else 0):
            if fill: e(fill.pop(0))
    assert not fill, fill

def emit_mlp(k):
    e = k.e
    k.pfx = "m_"
    def entry():
        e("s_load_dwordx4 s[4:7], s[0:1], 56")
        e("s_load_dwordx2 s[8:9], s[0:1], 88")
        e("s_load_dwordx2 s[56:57], s[0:1], 72")
        e("s_mov_b32 s10, s60")
        e("s_mov_b32 s55, s38")
        e("s_and_b32 s11, s2, 7")
        e("s_lshr_b32 s12, s2, 3")
        e("s_lshr_b32 s13, s11, 1")
        e("s_lshl_b32 s13, s13, 2")
        e("s_and_b32 s14, s12, 3")
        e("s_add_u32 s13, s13, s14")
        e("s_and_b32 s15, s11, 1")
        e("s_lshr_b32 s53, s12, 2")
        e("s_lshl_b32 s14, s15, 3")
        e("s_add_u32 s14, s14, s53")
        e("v_lshrrev_b32 v2, 4, v0")
    k.lines.append("Lmlp_compute:")
    k.role = "A"
    k.stamp(0)
    entry()
    def trcommon():
        e("v_bfe_u32 v3, v0, 2, 2")
        e("v_and_b32 v4, 3, v0")
        e("v_and_b32 v5, 1, v2")
        e("v_lshl_or_b32 v6, v5, 2, v3")
        e("v_lshl_add_u32 v7, v2, 3, v3")
        e("v_lshlrev_b32 v8, 8, v7")
        e("v_lshl_add_u32 v8, v4, 3, v8")

    trcommon()
    ACC = 16; FW = [128, 172]; FH = [156, 200]
    AH = [1, 2, 3, 4]; AW = [9, 10, 11]
    e("s_and_b32 s24, s10, 1")
    e("s_lshr_b32 s25, s10, 1")
    e("v_mul_u32_u24 v12, 448, v7")
    e("v_lshl_add_u32 v12, v4, 3, v12")
    e(f"v_add_u32 v12, {WOFF + 2*STG1}, v12")
    e(f"v_add_u32 v8, {2*STG1}, v8")
    e("v_lshl_add_u32 v13, v5, 5, v12")
    e("v_xor_b32 v14, 1, v5")
    e("v_lshl_add_u32 v14, v14, 5, v12")
    e("s_lshl_b32 s26, s25, 8")
    e("v_add_u32 v9, s26, v13")
    e("v_add_u32 v10, s26, v14")
    e("s_cmp_eq_u32 s25, 0")
    e("s_cselect_b64 vcc, -1, 0")
    e("v_cndmask_b32 v11, v14, v13, vcc")
    e("v_add_u32 v11, 192, v11")
    e("v_mov_b32 v15, v2")
    e("s_lshl_b32 s26, s24, 2")
    for j in range(4):
        e(f"s_add_u32 s27, s26, {j}")
        e(f"v_xor_b32 v12, s27, v6")
        e(f"v_lshl_add_u32 v{AH[j]}, v12, 5, v8")
    for i in range(112):
        e(f"v_mov_b32 v{ACC+i}, 0")
    e("s_waitcnt lgkmcnt(0)")
    k.srd(20, 8, 9, WS_BYTES)
    k.srd(44, 56, 57, 4*MB)
    def reads1(st, step):
        r = []
        for j in range(4):
            for h in range(2):
                r.append(f"ds_read_b64_tr_b16 {vr(FH[st]+4*j+2*h,2)}, v{AH[j]} offset:{8192*step+1024*h}")
        for i in range(7):
            a, o = (AW[i % 2], 64*(i//2)) if i < 6 else (AW[2], 0)
            for h in range(2):
                r.append(f"ds_read_b64_tr_b16 {vr(FW[st]+4*i+2*h,2)}, v{a} offset:{14336*step+1792*h+o}")
        return r
    def mfmas1(st):
        return [f"v_mfma_f32_16x16x32_bf16 {vr(ACC+4*(4*i+j),4)}, {vr(FW[st]+4*i,4)}, {vr(FH[st]+4*j,4)}, {vr(ACC+4*(4*i+j),4)}"
                for i in range(7) for j in range(4)]
    e("s_mov_b32 s28, 0")
    e("s_mov_b32 s29, 2")
    e("s_barrier")
    k.stamp(1)
    for r in reads1(0, 0): e(r)
    k.label("c1loop")
    sal = ["s_add_u32 s29, s29, 1", f"s_mov_b32 s30, {STG1}", "s_cmp_eq_u32 s29, 3", f"s_cselect_b32 s30, {-2*STG1}, s30",
           "s_cselect_b32 s29, 0, s29", "s_add_u32 s28, s28, 1"]
    weave(e, mfmas1(0), reads1(1, 1) + sal, waits={4*i: f"s_waitcnt lgkmcnt({min(15, 12+2*i)})" for i in range(7)}, sched=[1]*28)
    weave(e, mfmas1(1), [f"v_add_u32 v{a}, s30, v{a}" for a in AH + AW] + reads1(0, 0) + ["s_cmp_lt_u32 s28, 16"],
          waits={0: "s_waitcnt lgkmcnt(12)"}, mid=(4, ["s_waitcnt lgkmcnt(0)", "s_barrier"]), sched=[0]*4 + [2]*6 + [1]*18)
    e(f"s_cbranch_scc1 {k.L('c1loop')}")
    k.stamp(2)
    e("v_and_b32 v1, 15, v0")
    e("s_lshl_b32 s26, s24, 9")
    e(f"s_add_u32 s26, s26, {STATS}")
    e("v_lshl_add_u32 v1, v1, 3, s26")
    e("s_lshl_b32 s26, s25, 9")
    e(f"s_add_u32 s26, s26, {CSL}")
    e("v_lshl_add_u32 v2, v15, 4, s26")
    e("s_mul_i32 s26, s25, 64")
    e(f"s_add_u32 s26, s26, {CSL+384}")
    e("v_lshl_add_u32 v3, v15, 4, s26")
    e(f"v_mov_b32 v6, {MISC}")
    e("s_waitcnt lgkmcnt(0)")
    MR = 128; C2 = 136; CSV = 144
    e("ds_read_b32 v7, v6 offset:4")
    for j in range(4):
        e(f"ds_read_b64 {vr(MR+2*j,2)}, v1 offset:{128*j}")
    for i in range(7):
        e(f"ds_read_b128 {vr(CSV+4*i,4)}, v{2 if i < 6 else 3} offset:{64*i if i < 6 else 0}")
    e("s_lshl_b32 s26, s25, 12")
    e("v_lshl_add_u32 v4, v0, 4, s26")
    e("s_lshl_b32 s26, s25, 3")
    e("s_add_u32 s26, s26, 3072")
    e("v_lshl_add_u32 v5, v0, 4, s26")
    e("s_lshl_b32 s26, s13, 3")
    e("s_lshl_b32 s27, s24, 2")
    e("s_add_u32 s26, s26, s27")
    e("s_mul_i32 s26, s26, 112")
    e("s_mul_i32 s27, s14, 7")
    e("s_add_u32 s26, s26, s27")
    e("s_lshl_b32 s26, s26, 10")
    e(f"s_add_u32 s32, s26, 0x{HM:x}")
    for j in range(1, 4):
        e(f"s_add_u32 s{32+j}, s32, {112*1024*j}")
    e("s_waitcnt lgkmcnt(0)")
    e("v_readfirstlane_b32 s54, v7")
    for j in range(4):
        e(f"v_mul_f32 v{C2+2*j}, 0xbfb8aa3b, v{MR+2*j+1}")
    e("s_and_b32 s26, s53, 1")
    e("s_lshl_b32 s27, s25, 2")
    e("s_sub_u32 s27, s27, s26")
    for n in range(4):
        if n < 3: e(f"s_add_u32 s60, s27, {n}")
        else:     e("s_sub_u32 s60, 3, s26")
        e("s_lshr_b32 s61, s60, 1")
        e("s_lshl_b32 s61, s61, 15")
        e("s_and_b32 s62, s60, 1")
        e("s_lshl_b32 s62, s62, 10")
        e("s_add_u32 s61, s61, s62")
        e("s_cmp_lt_u32 s60, 6")
        e(f"s_cselect_b32 s61, s61, {3*STG2}")
        e("s_lshl_b32 s62, s24, 13")
        e("s_add_u32 s61, s61, s62")
        if n == 3:
            e("s_lshl_b32 s62, s25, 3")
            e("s_add_u32 s61, s61, s62")
        e(f"v_lshl_add_u32 v{8+n}, v0, 4, s61")
    e("s_mov_b32 s58, 0xbfb8aa3b")
    e("s_mov_b32 s59, 0xbfb8aa3b")
    e("s_cmp_eq_u32 s54, 1")
    nsite = [0]
    def store2(ops):
        n = nsite[0]; nsite[0] += 1
        e(f"s_cbranch_scc1 {k.L(f'pl{n}')}")
        for o in ops: e(o + " sc1")
        e(f"s_branch {k.L(f'st{n}')}")
        k.label(f"pl{n}")
        for o in ops: e(o)
        k.label(f"st{n}")
    T = 172
    def elem8(tiles, out):
        P = T; Xr = T + 8
        def each(f):
            for n, (i, j) in enumerate(tiles):
                for h in range(2):
                    e(f(ACC + 4*(4*i+j) + 2*h, CSV + 4*i + 2*h, j, P + 4*n + 2*h, Xr + 4*n + 2*h))
        each(lambda a, c, j, p, x: f"v_pk_fma_f32 {vr(a,2)}, {vr(c,2)}, {vr(MR+2*j,2)}, {vr(a,2)} op_sel_hi:[1,0,1] neg_lo:[0,1,0] neg_hi:[0,1,0]")
        each(lambda a, c, j, p, x: f"v_pk_mul_f32 {vr(p,2)}, {vr(a,2)}, {vr(C2+2*j,2)} op_sel_hi:[1,0]")
        for q in range(8): e(f"v_exp_f32 v{Xr+q}, v{P+q}")
        each(lambda a, c, j, p, x: f"v_pk_fma_f32 {vr(x,2)}, {vr(x,2)}, s[58:59], s[58:59]")
        for q in range(8): e(f"v_rcp_f32 v{Xr+q}, v{Xr+q}")
        each(lambda a, c, j, p, x: f"v_pk_mul_f32 {vr(p,2)}, {vr(p,2)}, {vr(x,2)}")
        for q in range(4): e(f"v_cvt_pk_bf16_f32 v{out+q}, v{P+2*q}, v{P+2*q+1}")
    n = 0
    for j in range(4):
        for pr in range(3):
            o = 192 + 4*(n % 4); n += 1
            elem8([(2*pr, j), (2*pr+1, j)], o)
            e(f"ds_write_b128 v{8+pr}, {vr(o,4)} offset:{2048*j}")
            store2([f"buffer_store_dwordx4 {vr(o,4)}, v4, s[20:23], s{32+j} offen offset:{1024*pr}"])
        if j % 2 == 1:
            o = 192 + 4*(n % 4); n += 1
            elem8([(6, j-1), (6, j)], o)
            e(f"ds_write_b64 v11, {vr(o,2)} offset:{2048*(j-1)}")
            e(f"ds_write_b64 v11, {vr(o+2,2)} offset:{2048*j}")
            store2([f"buffer_store_dwordx2 {vr(o,2)}, v5, s[20:23], s{32+j-1} offen",
                    f"buffer_store_dwordx2 {vr(o+2,2)}, v5, s[20:23], s{32+j} offen"])
    k.stamp(3)

    NS = 4
    F0 = ACC + 64
    GW = [F0, F0 + 32]; GH = [F0 + 16, F0 + 48]
    BW = [8, 9, 10, 11]; BH = 12
    e("v_mov_b32 v2, v15")
    e("v_bfe_u32 v3, v0, 2, 2")
    e("v_and_b32 v4, 3, v0")
    e("v_lshl_add_u32 v7, v2, 2, v3")
    e("v_and_b32 v5, 7, v7")
    e("v_lshlrev_b32 v13, 8, v7")
    e("v_lshl_add_u32 v13, v4, 3, v13")
    e(f"v_add_u32 v13, {WOFF}, v13")
    e("s_lshl_b32 s26, s25, 2")
    for i in range(4):
        e(f"s_add_u32 s27, s26, {i}")
        e(f"v_xor_b32 v14, s27, v5")
        e(f"v_lshl_add_u32 v{BW[i]}, v14, 5, v13")
    e("s_lshl_b32 s26, s24, 12")
    e(f"v_lshl_add_u32 v{BH}, v0, 4, s26")
    for i in range(64):
        e(f"v_mov_b32 v{ACC+i}, 0")
    e("v_mov_b32 v13, 1")
    e("s_lshl_b32 s26, s2, 11")
    e(f"s_add_u32 s26, s26, 0x{HFL:x}")
    e("v_mov_b32 v14, 0")
    e("v_mov_b32 v216, s98")
    e("v_mov_b32 v217, s99")
    e("s_waitcnt vmcnt(0)")
    e("s_mov_b64 exec, 1")
    e("ds_add_rtn_u32 v1, v6, v13")
    e("s_waitcnt lgkmcnt(0)")
    e("v_readfirstlane_b32 s27, v1")
    e("s_cmp_eq_u32 s27, 3")
    e(f"s_cbranch_scc0 {k.L('noflag')}")
    e("s_cmp_eq_u32 s54, 1")
    store2(["buffer_store_dwordx2 v[216:217], v14, s[20:23], s26 offen"])
    k.label("noflag")
    e("s_mov_b64 exec, -1")
    e("v_bfe_u32 v6, v7, 1, 2")
    def hoff(j): return 2048*(j % 2) + 8192*(j // 2)
    def reads2(st, step):
        r = []
        for j in range(NS):
            r.append(f"ds_read_b128 {vr(GH[st]+4*j,4)}, v{BH} offset:{hoff(j)+1024*step}")
        for i in range(4):
            for h in range(2):
                r.append(f"ds_read_b64_tr_b16 {vr(GW[st]+4*i+2*h,2)}, v{BW[i]} offset:{8192*step+4096*h}")
        return r
    def mfmas2(st):
        return [f"v_mfma_f32_16x16x32_bf16 {vr(ACC+4*(NS*i+j),4)}, {vr(GW[st]+4*i,4)}, {vr(GH[st]+4*j,4)}, {vr(ACC+4*(NS*i+j),4)}"
                for i in range(4) for j in range(NS)]
    e("s_mov_b32 s28, 0")
    e("s_mov_b32 s29, 0")
    e("s_add_u32 s61, s12, s10")
    e("s_cmp_eq_u32 s61, 0")
    e(f"s_cselect_b32 s61, {WBAT}, 99")
    e("s_barrier")
    k.stamp(4)
    for r in reads2(0, 0): e(r)
    k.label("c2loop")
    sal = ["s_add_u32 s29, s29, 1", f"s_mov_b32 s30, {STG2}", f"s_cmp_eq_u32 s29, {NB2}", f"s_cselect_b32 s30, {-(NB2-1)*STG2}, s30",
           "s_cselect_b32 s29, 0, s29", "s_add_u32 s28, s28, 1"]
    weave(e, mfmas2(0), reads2(1, 1) + sal,
          waits={0: "s_waitcnt lgkmcnt(6)", 4: "s_waitcnt lgkmcnt(12)", 8: "s_waitcnt lgkmcnt(14)", 12: "s_waitcnt lgkmcnt(12)"},
          sched=[2]*6 + [1]*6)
    weave(e, mfmas2(1), [f"v_add_u32 v{a}, s30, v{a}" for a in [BH] + BW] + reads2(0, 0) + [f"s_cmp_lt_u32 s28, {NST2}"],
          waits={0: "s_waitcnt lgkmcnt(6)"}, mid=(4, ["s_waitcnt lgkmcnt(0)", "s_barrier"]), sched=[0]*4 + [2]*6 + [1]*6)
    if 'b' in X:
        e(f"s_cbranch_scc0 {k.L('c2done')}")
        e(f"s_cmp_eq_u32 s28, s61")
        e(f"s_cbranch_scc0 {k.L('c2loop')}")
        e("buffer_wbl2 sc1")
        e(f"s_branch {k.L('c2loop')}")
        k.label("c2done")
    else:
        e(f"s_cbranch_scc1 {k.L('c2loop')}")
    k.stamp(5)
    T = F0
    e("s_lshl_b32 s26, s2, 2")
    e("s_add_u32 s26, s26, s10")
    e("s_xor_b32 s27, s26, 4")
    e("s_lshl_b32 s31, s26, 12")
    e(f"s_add_u32 s31, s31, 0x{PART:x}")
    e("s_lshl_b32 s32, s27, 12")
    e(f"s_add_u32 s32, s32, 0x{PART:x}")
    e("s_lshl_b32 s35, s2, 11")
    e("s_lshl_b32 s36, s10, 7")
    e("s_add_u32 s35, s35, s36")
    e(f"s_add_u32 s35, s35, 0x{FLG:x}")
    e("s_xor_b32 s36, s35, 0x800")
    e("v_lshlrev_b32 v14, 4, v0")
    e("s_cmp_eq_u32 s15, 0")
    e(f"s_cbranch_scc1 {k.L('send_hi')}")
    for own in (1, 0):
        if own == 0: k.label("send_hi")
        for i in range(4):
            a0 = ACC + 4*(NS*i + 2*(1-own)); o = T + 48 + 4*i
            for q in range(4):
                e(f"v_cvt_pk_bf16_f32 v{o+q}, v{a0+2*q}, v{a0+2*q+1}")
            e(f"buffer_store_dwordx4 {vr(o,4)}, v14, s[20:23], s31 offen offset:{1024*i} sc1")
        if own == 1:
            for i in range(4):
                for q in range(8):
                    e(f"v_mov_b32 v{ACC+4*NS*i+q}, v{ACC+4*NS*i+8+q}")
            e(f"s_branch {k.L('sent')}")
    k.label("sent")
    e("v_lshlrev_b32 v13, 7, v7")
    e("v_lshl_add_u32 v13, v4, 3, v13")
    e("s_lshl_b32 s26, s25, 13")
    e(f"s_add_u32 s26, s26, {RES}")
    e("v_add_u32 v13, s26, v13")
    e("s_lshl_b32 s26, s24, 1")
    for j in range(2):
        e(f"s_add_u32 s27, s26, {j}")
        e(f"v_xor_b32 v15, s27, v6")
        e(f"v_lshl_add_u32 v{8+j}, v15, 5, v13")
    e("s_waitcnt lgkmcnt(0)")
    HR = T
    for i in range(4):
        for j in range(2):
            e(f"ds_read_b64_tr_b16 {vr(HR+2*(2*i+j),2)}, v{8+j} offset:{2048*i}")
    e("v_and_b32 v10, 15, v0")
    e("v_lshrrev_b32 v11, 1, v2")
    e("v_and_b32 v12, 7, v10")
    e("v_xor_b32 v11, v11, v12")
    e("v_lshlrev_b32 v11, 4, v11")
    e("v_lshl_add_u32 v11, v10, 7, v11")
    e("v_and_b32 v12, 1, v2")
    e("v_lshl_add_u32 v11, v12, 3, v11")
    e("s_lshl_b32 s26, s10, 12")
    e("v_add_u32 v3, s26, v11")
    e("v_xor_b32 v4, 32, v3")
    e("v_xor_b32 v5, 64, v3")
    e("v_xor_b32 v6, 96, v3")
    e("v_lshrrev_b32 v10, 3, v0")
    e("v_and_b32 v11, 7, v0")
    e("v_xor_b32 v12, v11, v10")
    e("v_lshlrev_b32 v12, 4, v12")
    e("v_lshl_add_u32 v12, v10, 7, v12")
    e("v_add_u32 v7, s26, v12")
    e("v_lshlrev_b32 v10, 11, v10")
    e("v_lshl_add_u32 v10, v11, 4, v10")
    e("s_lshl_b32 s26, s13, 7")
    e("s_lshl_b32 s27, s24, 5")
    e("s_add_u32 s26, s26, s27")
    e("s_lshl_b32 s27, s15, 6")
    e("s_add_u32 s26, s26, s27")
    e("s_lshl_b32 s26, s26, 11")
    e("s_lshl_b32 s27, s53, 8")
    e("s_add_u32 s26, s26, s27")
    e("s_lshl_b32 s27, s25, 7")
    e("s_add_u32 s48, s26, s27")
    for q in range(1, 4):
        e(f"s_add_u32 s{48+q}, s48, {q*8*2048}")
    PR = T + 16; U = PR + 16
    e("s_mov_b32 s37, 0xffff0000")
    e("s_waitcnt lgkmcnt(0)")
    for i in range(4):
        for j in range(2):
            n = 2*i + j; a = ACC + 4*(NS*i + j); u = U + 4*(n % 2)
            e(f"v_lshlrev_b32 v{u}, 16, v{HR+2*n}")
            e(f"v_and_b32 v{u+1}, s37, v{HR+2*n}")
            e(f"v_lshlrev_b32 v{u+2}, 16, v{HR+2*n+1}")
            e(f"v_and_b32 v{u+3}, s37, v{HR+2*n+1}")
            for h in range(2):
                e(f"v_pk_add_f32 {vr(a+2*h,2)}, {vr(a+2*h,2)}, {vr(u+2*h,2)}")
    e("v_mov_b32 v15, 0")
    e("s_waitcnt vmcnt(0)")
    e("s_mov_b64 exec, 1")
    e("buffer_store_dwordx2 v[216:217], v15, s[20:23], s35 offen sc1")
    e("s_mov_b32 s38, 0")
    k.label("poll")
    e("buffer_load_dwordx2 v[218:219], v15, s[20:23], s36 offen sc1")
    e("s_add_u32 s38, s38, 1")
    e("s_cmp_gt_u32 s38, 0x200000")
    e(f"s_cbranch_scc1 {k.L('polled')}")
    e("s_waitcnt vmcnt(0)")
    e("v_cmp_ne_u64 vcc, v[218:219], v[216:217]")
    e(f"s_cbranch_vccnz {k.L('poll')}")
    k.label("polled")
    k.stamp(6)
    e("s_mov_b64 exec, -1")
    for i in range(4):
        e(f"buffer_load_dwordx4 {vr(PR+4*i,4)}, v14, s[20:23], s32 offen offset:{1024*i} sc1")
    for i in range(4):
        for j in range(2):
            n = 2*i + j; a = ACC + 4*(NS*i + j); u = U + 4*(n % 2)
            if j == 0: e(f"s_waitcnt vmcnt({3-i})")
            e(f"v_lshlrev_b32 v{u}, 16, v{PR+2*n}")
            e(f"v_and_b32 v{u+1}, s37, v{PR+2*n}")
            e(f"v_lshlrev_b32 v{u+2}, 16, v{PR+2*n+1}")
            e(f"v_and_b32 v{u+3}, s37, v{PR+2*n+1}")
            for h in range(2):
                e(f"v_pk_add_f32 {vr(a+2*h,2)}, {vr(a+2*h,2)}, {vr(u+2*h,2)}")
            e(f"v_cvt_pk_bf16_f32 v{HR+2*n}, v{a}, v{a+1}")
            e(f"v_cvt_pk_bf16_f32 v{HR+2*n+1}, v{a+2}, v{a+3}")
            e(f"ds_write_b64 v{3+i}, {vr(HR+2*n,2)} offset:{2048*j}")
    e("s_waitcnt lgkmcnt(0)")
    for q in range(4):
        e(f"ds_read_b128 {vr(PR+4*q,4)}, v7 offset:{1024*q}")
    for q in range(4):
        e(f"s_waitcnt lgkmcnt({3-q})")
        e(f"buffer_store_dwordx4 {vr(PR+4*q,4)}, v10, s[44:47], s{48+q} offen")
    if STAMP:
        e("s_waitcnt vmcnt(0)")
        k.dump_stamps(1, 20, 10)
    k.dbg_out()
    e("s_add_u32 s26, s2, s10")
    e("s_cmp_eq_u32 s26, 0")
    e(f"s_cbranch_scc0 {k.L('fin')}")
    e("s_load_dwordx2 s[60:61], s[0:1], 80")
    e("v_mov_b32 v2, 0")
    e("v_mov_b32 v3, 0")
    e("s_waitcnt lgkmcnt(0)")
    k.srd(60, 60, 61, 256)
    e("s_mov_b64 exec, 1")
    e("buffer_store_dwordx2 v[2:3], v2, s[60:63], 0 offen sc1")
    k.label("fin")
    e("s_endpgm")

    k.lines.append("Lmlp_loader:")
    k.role = "B"
    k.stamp(0)
    entry()
    e("v_mov_b32 v216, s98")
    e("v_mov_b32 v217, s99")
    e("s_sub_u32 s24, s10, 4")
    VH = 16; VW = 20
    e("s_lshl_b32 s47, s24, 16")
    e("s_lshl_b32 s26, s13, 8")
    e("s_add_u32 s47, s47, s26")
    e(f"s_add_u32 s47, s47, 0x{HT:x}")
    e(f"s_mul_i32 s48, s24, {16*7168}")
    e("s_mul_i32 s27, s14, 448")
    e("s_add_u32 s48, s48, s27")
    e("s_add_u32 s36, s14, s13")
    if 'A' in X:
        e("s_and_b32 s36, s36, 3")
        e("s_and_b32 s37, s13, 12")
        e("s_and_b32 s49, s14, 12")
        e("s_add_u32 s37, s37, s49")
        e("s_add_u32 s36, s36, s37")
    e("s_and_b32 s36, s36, 15")
    e("s_mov_b32 s49, 0")
    e("s_lshl_b32 s25, s36, 18")
    e("s_add_u32 s25, s25, s47")
    e(f"s_mul_i32 s26, s36, {64*7168}")
    e("s_add_u32 s26, s26, s48")
    e("s_lshl_b32 s27, s24, 12")
    e("s_mul_i32 s28, s24, 7168")
    e(f"s_add_u32 s28, s28, {WOFF}")
    e("v_bfe_u32 v9, v0, 1, 3")
    e("v_and_b32 v10, 1, v0")
    e("v_lshlrev_b32 v10, 4, v10")
    e("v_lshl_add_u32 v10, v2, 12, v10")
    e("v_xor_b32 v9, v9, v2")
    for pp in range(4):
        if pp == 2: e("v_xor_b32 v9, 4, v9")
        e(f"v_lshl_add_u32 v{VH+pp}, v9, 5, v10")
        if pp: e(f"v_add_u32 v{VH+pp}, {pp*(16384-1024)}, v{VH+pp}")
    def wpat(q):
        e(f"v_add_u32 v9, {64*q}, v0")
        e("v_mul_u32_u24 v10, 9363, v9")
        e("v_lshrrev_b32 v10, 18, v10")
        e("v_mul_u32_u24 v11, 28, v10")
        e("v_sub_u32 v11, v9, v11")
        e("v_lshrrev_b32 v12, 2, v10")
        e("v_and_b32 v12, 2, v12")
        e("v_xor_b32 v11, v11, v12")
        e("v_mul_u32_u24 v12, 7168, v10")
        e("v_lshl_add_u32 v12, v11, 4, v12")
        e(f"v_add_u32 v{VW+q}, {-1024*(q%4)}, v12")
    for q in range(7): wpat(q)
    e("s_waitcnt lgkmcnt(0)")
    k.srd(20, 8, 9, WS_BYTES)
    k.srd(16, 4, 5, 1024*3584*2)
    def advance():
        e("s_add_u32 s49, s49, 1")
        e("s_add_u32 s37, s36, 1")
        e("s_and_b32 s37, s37, 3")
        e("s_and_b32 s36, s36, 12")
        e("s_or_b32 s36, s36, s37")
        e("s_and_b32 s37, s49, 3")
        e("s_cmp_eq_u32 s37, 0")
        e("s_cselect_b32 s37, 4, 0")
        e("s_add_u32 s36, s36, s37")
        e("s_and_b32 s36, s36, 15")
        e("s_lshl_b32 s25, s36, 18")
        e("s_add_u32 s25, s25, s47")
        e(f"s_mul_i32 s26, s36, {64*7168}")
        e("s_add_u32 s26, s26, s48")
    def hpart(so, m0):
        e(m0); e("s_nop 0")
        for pp in range(4):
            e(f"buffer_load_dwordx4 v{VH+pp}, s[20:23], {so} offen offset:{1024*pp}{HSC} lds")
    def wpart(buf, pol=""):
        e(f"s_add_u32 m0, s28, {buf}"); e("s_nop 0")
        for q in range(7):
            if q == 4: e(f"s_add_u32 m0, s28, {buf+4096}"); e("s_nop 0")
            e(f"buffer_load_dwordx4 v{VW+q}, s[16:19], s26 offen offset:{1024*(q%4)}{pol} lds")
    e("s_cmp_ge_u32 s24, 2")
    e(f"s_cbranch_scc1 {k.L('now0')}")
    wpart(2*STG1, " nt" if 'N' in X else "")
    e(f"s_add_u32 s26, s26, {32*7168}")
    wpart(2*STG1 + 2*7168, " nt" if 'N' in X else "")
    k.label("now0")
    e("s_mov_b32 s50, s25")
    e("s_mov_b32 s62, s36")
    advance()
    e("v_lshrrev_b32 v9, 3, v0")
    e("v_lshlrev_b32 v9, 11, v9")
    e("v_bfe_u32 v10, v0, 2, 1")
    e("v_lshl_add_u32 v9, v10, 18, v9")
    e("v_and_b32 v10, 3, v0")
    e("v_lshl_add_u32 v38, v10, 14, v9")
    e("s_lshl_b32 s52, s24, 16")
    e(f"s_add_u32 s52, s52, 0x{FHT:x}")
    e("s_mov_b64 s[58:59], 0")
    e("s_mov_b32 s39, 0")
    e(f"v_mov_b32 v35, {FRONT_FLAG+(52 if 'E' not in X else 48)}")
    k.label("waitF")
    e("s_sleep 1")
    e("ds_read_b32 v34, v35")
    e("s_waitcnt lgkmcnt(0)")
    e(f"v_cmp_gt_u32 vcc, {8 if 'E' not in X else 4}, v34")
    e(f"s_cbranch_vccnz {k.L('waitF')}")
    nneed = [0]
    def need(stage, narrow=False):
        n = nneed[0]; nneed[0] += 1
        if narrow:
            e(f"s_lshl_b32 s60, {stage}, 2")
            if 'W' in X:
                e("s_and_b32 s60, s60, 48")
                e("s_mov_b64 s[66:67], 0xffff")
                e("s_lshl_b64 s[66:67], s[66:67], s60")
            else:
                e("s_lshl_b64 s[66:67], 15, s60")
        k.label(f"need{n}")
        e(f"s_lshl_b32 s60, {stage}, 2")
        e("s_lshr_b64 s[60:61], s[58:59], s60")
        e("s_and_b32 s60, s60, 15")
        e("s_cmp_eq_u32 s60, 15")
        e(f"s_cbranch_scc1 {k.L(f'have{n}')}")
        if narrow: e("s_mov_b64 exec, s[66:67]")
        e("buffer_load_dwordx2 v[100:101], v38, s[20:23], s52 offen sc1")
        if narrow: e("s_mov_b64 exec, -1")
        e("s_add_u32 s39, s39, 1")
        e("s_cmp_gt_u32 s39, 0x100000")
        e(f"s_cbranch_scc1 {k.L(f'have{n}')}")
        e("s_waitcnt vmcnt(0)")
        e("v_cmp_eq_u64 vcc, v[100:101], v[216:217]")
        e("s_or_b64 s[58:59], s[58:59], vcc")
        e(f"s_branch {k.L(f'need{n}')}")
        k.label(f"have{n}")
    e("v_mov_b32 v100, 0")
    need("s62", narrow='R' in X)
    k.stamp(5)
    k.note("s39", 17)
    hpart("s50", f"s_add_u32 m0, s27, {2*STG1}")
    wpart(0, " nt" if 'M' in X else "")
    e("s_waitcnt vmcnt(7)")
    e("s_barrier")
    need("s36", narrow='R' in X)
    hpart("s25", "s_mov_b32 m0, s27")
    advance()
    if 'W' in X:
        e("buffer_load_dwordx2 v[102:103], v38, s[20:23], s52 offen sc1")
    e(f"s_mov_b32 s29, {STG1}")
    k.srd(40, 6, 7, 1024*3584*2)
    e("s_lshl_b32 s63, s2, 2")
    e("s_add_u32 s63, s63, s24")
    e(f"s_mul_i32 s63, s63, {56*128}")
    if 'h' in X: e(f"s_add_u32 s63, s63, {28*128}")
    e("v_lshlrev_b32 v39, 7, v0")
    def issue1(first=False):
        need("s36", narrow=('Q' in X) or (first and 'W' in X))
        e("s_add_u32 m0, s27, s29")
        e("s_add_u32 s30, s28, s29")
        for pp in range(4):
            e(f"buffer_load_dwordx4 v{VH+pp}, s[20:23], s25 offen offset:{1024*pp}{HSC} lds")
        e("s_mov_b32 m0, s30")
        e("s_nop 0")
        for q in range(4):
            e(f"buffer_load_dwordx4 v{VW+q}, s[16:19], s26 offen offset:{1024*q} lds")
        e("s_add_u32 m0, s30, 4096")
        e(f"s_add_u32 s29, s29, {STG1}")
        for q in range(4, 7):
            e(f"buffer_load_dwordx4 v{VW+q}, s[16:19], s26 offen offset:{1024*(q-4)} lds")
        if TR:
            e(f"s_mov_b64 exec, {'0x7' if 'h' in X else '0x1f'}")
            e("buffer_load_dword v210, v39, s[40:43], s63 offen")
            e("s_mov_b64 exec, -1")
            e(f"s_add_u32 s63, s63, {384 if 'h' in X else 640}")
        e(f"s_cmp_eq_u32 s29, {NB1*STG1}")
        e("s_cselect_b32 s29, 0, s29")
        advance()
    k.stamp(1)
    issue1(first=True)
    trcommon()
    e("s_lshl_b32 s31, s24, 1")
    e("v_xor_b32 v12, s31, v6")
    e("v_lshl_add_u32 v36, v12, 5, v8")
    e(f"v_add_u32 v36, {2*STG1}, v36")
    e("v_xor_b32 v37, 32, v36")
    S = [40, 42]; Q = [44, 46]
    for r in range(40, 48): e(f"v_mov_b32 v{r}, 0")
    e("s_mov_b32 s33, 0xffff0000")
    D = 48; U = 64
    for t in range(2):
        for st in range(2):
            for h in range(2):
                e(f"ds_read_b64_tr_b16 {vr(D+8*t+4*st+2*h,2)}, v{36+t} offset:{8192*st+1024*h}")
    e("s_waitcnt lgkmcnt(0)")
    for j in range(8):
        for t in range(2):
            u = U + 2*t
            e(f"v_lshlrev_b32 v{u}, 16, v{D+8*t+j}")
            e(f"v_and_b32 v{u+1}, s33, v{D+8*t+j}")
        for t in range(2):
            u = U + 2*t
            for q in range(2):
                e(f"v_add_f32 v{S[t]+q}, v{S[t]+q}, v{u+q}")
                e(f"v_fmac_f32 v{Q[t]+q}, v{u+q}, v{u+q}")
    def greduce(regs):
        for op in ("v_permlane32_swap_b32", "v_permlane16_swap_b32"):
            for i, r in enumerate(regs): e(f"v_mov_b32 v{D+i}, v{r}")
            e("s_nop 1")
            for i, r in enumerate(regs): e(f"{op} v{r}, v{D+i}")
            e("s_nop 1")
            for i, r in enumerate(regs): e(f"v_add_f32 v{r}, v{r}, v{D+i}")
    for r in S + Q: e(f"v_add_f32 v{r}, v{r}, v{r+1}")
    greduce(S + Q)
    e("v_cmp_gt_u32 vcc, 16, v0")
    e("s_lshl_b32 s31, s13, 15")
    e("s_lshl_b32 s32, s24, 9")
    e("s_add_u32 s31, s31, s32")
    e(f"s_add_u32 s31, s31, 0x{SP2:x}")
    e("s_lshl_b32 s32, s14, 11")
    e("s_add_u32 s32, s32, s31")
    e(f"v_cndmask_b32 v214, v{S[1]}, v{S[0]}, vcc")
    e(f"v_cndmask_b32 v215, v{Q[1]}, v{Q[0]}, vcc")
    e("v_lshlrev_b32 v9, 4, v0")
    e("s_mov_b64 exec, 0xffffffff")
    e("buffer_store_dwordx4 v[214:217], v9, s[20:23], s32 offen sc1")
    e("s_mov_b64 exec, -1")
    e("v_mul_u32_u24 v12, 448, v7")
    e("v_lshl_add_u32 v12, v4, 3, v12")
    e("s_lshl_b32 s32, s24, 7")
    e(f"s_add_u32 s32, s32, {WOFF + 2*STG1}")
    e("v_add_u32 v12, s32, v12")
    e("v_lshl_add_u32 v13, v5, 5, v12")
    e("v_xor_b32 v14, 1, v5")
    e("v_lshl_add_u32 v14, v14, 5, v12")
    CW = 68
    for t in range(4):
        for st in range(2):
            for h in range(2):
                e(f"ds_read_b64_tr_b16 {vr(CW+8*t+4*st+2*h,2)}, v{13 + t%2} offset:{14336*st+1792*h+64*(t//2)}")
        if t == 2: e("s_waitcnt lgkmcnt(8)")
    for r in range(40, 48): e(f"v_mov_b32 v{r}, 0")
    e("s_waitcnt lgkmcnt(0)")
    for j in range(8):
        for t in range(4):
            e(f"v_lshlrev_b32 v{U}, 16, v{CW+8*t+j}")
            e(f"v_and_b32 v{U+1}, s33, v{CW+8*t+j}")
            e(f"v_add_f32 v{40+t}, v{40+t}, v{U}")
            e(f"v_add_f32 v{44+t}, v{44+t}, v{U+1}")
    for t in range(4): e(f"v_add_f32 v{40+t}, v{40+t}, v{44+t}")
    greduce([40, 41, 42, 43])
    e("v_cmp_gt_u32 vcc, 16, v0")
    e("s_lshl_b32 s32, s14, 4")
    e("s_add_u32 s32, s32, s13")
    e("s_lshl_b32 s32, s32, 11")
    e("s_lshl_b32 s34, s24, 9")
    e("s_add_u32 s32, s32, s34")
    e(f"s_add_u32 s32, s32, 0x{CP:x}")
    e("v_cndmask_b32 v214, v42, v40, vcc")
    e("v_cndmask_b32 v215, v43, v41, vcc")
    e("s_mov_b64 exec, 0xffffffff")
    e("buffer_store_dwordx4 v[214:217], v9, s[20:23], s32 offen sc1")
    e("s_mov_b64 exec, -1")
    e("s_mov_b32 s35, 0")
    k.label("l1loop")
    e("s_cmp_eq_u32 s35, 0")
    e(f"s_cbranch_scc1 {k.L('lw20')}")
    e("s_cmp_eq_u32 s35, 1")
    e(f"s_cbranch_scc1 {k.L('lw12')}")
    e(f"s_waitcnt vmcnt({11 + 2*TR})")
    k.label("lw12")
    e(f"s_waitcnt vmcnt({13 + 2*TR})")
    if 'W' in X:
        e("v_cmp_eq_u64 vcc, v[102:103], v[216:217]")
        e("s_or_b64 s[58:59], s[58:59], vcc")
    k.label("lw20")
    e(f"s_waitcnt vmcnt({13 + TR})")
    e("s_barrier")
    e("s_cmp_ge_u32 s35, 13")
    e(f"s_cbranch_scc1 {k.L('l1done')}")
    issue1()
    e("s_add_u32 s35, s35, 1")
    e(f"s_branch {k.L('l1loop')}")
    k.label("l1done")
    k.stamp(2)
    e("s_lshl_b32 s33, s14, 15")
    e("s_lshl_b32 s34, s24, 9")
    e("s_add_u32 s33, s33, s34")
    e(f"s_add_u32 s33, s33, 0x{CP:x}")
    e("v_and_b32 v10, 31, v0")
    e("v_lshlrev_b32 v9, 4, v10")
    e("v_lshrrev_b32 v11, 5, v0")
    e("v_lshl_add_u32 v9, v11, 11, v9")
    e("v_and_b32 v11, 7, v0")
    e("v_lshlrev_b32 v11, 16, v11")
    e("s_and_b32 s34, s2, 31")
    e("s_lshl_b32 s34, s34, 11")
    e(f"s_add_u32 s50, s34, 0x{XID:x}")
    e(f"s_add_u32 s51, s34, 0x{HFL:x}")
    e("s_mov_b32 s39, 0")
    G = 68
    k.label("spoll")
    e("s_mov_b32 s32, s31")
    for q in range(8):
        e(f"buffer_load_dwordx4 {vr(G+4*q,4)}, v9, s[20:23], s32 offen sc1")
        e("s_add_u32 s32, s32, 4096")
    e("s_mov_b32 s32, s33")
    for q in range(8):
        e(f"buffer_load_dwordx4 {vr(G+32+4*q,4)}, v9, s[20:23], s32 offen sc1")
        e("s_add_u32 s32, s32, 4096")
    e("buffer_load_dwordx3 v[64:66], v11, s[20:23], s50 offen sc1")
    e("s_add_u32 s39, s39, 1")
    e("s_cmp_gt_u32 s39, 0x100000")
    e(f"s_cbranch_scc1 {k.L('spolled')}")
    e("s_waitcnt vmcnt(0)")
    e("v_cmp_ne_u64 s[44:45], v[64:65], v[216:217]")
    for q in range(16):
        e(f"v_cmp_ne_u64 vcc, {vr(G+4*q+2,2)}, v[216:217]")
        e("s_or_b64 s[44:45], s[44:45], vcc")
    e("s_cmp_lg_u64 s[44:45], 0")
    e(f"s_cbranch_scc1 {k.L('spoll')}")
    k.label("spolled")
    e("s_waitcnt vmcnt(0)")
    if 'w' not in X:
        e("s_lshl_b32 s60, s2, 2")
        e("s_add_u32 s60, s60, s24")
        e(f"s_mul_i32 s60, s60, {56*128}")
        e("v_lshlrev_b32 v30, 7, v0")
        e(f"s_mov_b64 exec, {hex((1 << WL) - 1) if WL <= 32 else -1}")
        e("buffer_load_dword v210, v30, s[40:43], s60 offen")
        e("s_mov_b64 exec, -1")
    e("v_cmp_ne_u32 vcc, s55, v66")
    for q in range(1, 8):
        for j in range(2):
            e(f"v_add_f32 v{40+j}, v{G+j if q == 1 else 40+j}, v{G+4*q+j}")
            e(f"v_add_f32 v{42+j}, v{G+32+j if q == 1 else 42+j}, v{G+32+4*q+j}")
    e("s_cmp_eq_u64 vcc, 0")
    e("s_cselect_b32 s54, 1, 2")
    if 'f' in X: e("s_mov_b32 s54, 2")
    for i in range(4): e(f"v_mov_b32 v{D+i}, v{40+i}")
    e("s_nop 1")
    for i in range(4): e(f"v_permlane32_swap_b32 v{40+i}, v{D+i}")
    e("s_nop 1")
    for i in range(4): e(f"v_add_f32 v{40+i}, v{40+i}, v{D+i}")
    ln_stats(k, [40], [41], [56], [57], [60])
    e("s_lshl_b32 s31, s24, 8")
    e(f"s_add_u32 s31, s31, {STATS}")
    e("v_lshl_add_u32 v9, v10, 3, s31")
    e("ds_write_b64 v9, v[56:57]")
    e(f"v_mov_b32 v9, {MISC}")
    e("v_mov_b32 v62, 0")
    e("v_mov_b32 v63, s54")
    e("ds_write_b64 v9, v[62:63]")
    e("v_and_b32 v9, 15, v0")
    e("v_and_b32 v12, 16, v0")
    e("v_lshl_add_u32 v9, v12, 1, v9")
    e("s_lshl_b32 s31, s24, 8")
    e(f"s_add_u32 s31, s31, {CSL}")
    e("v_lshl_add_u32 v9, v9, 2, s31")
    e("ds_write_b32 v9, v42")
    e("ds_write_b32 v9, v43 offset:64")
    e("s_waitcnt lgkmcnt(0)")
    e("s_barrier")
    VA = 16; VW2 = 18; VR = 22
    e(f"v_lshlrev_b32 v{VA}, 4, v0")
    e(f"v_add_u32 v{VA+1}, {112*1024-2048}, v{VA}")
    e("v_bfe_u32 v9, v0, 1, 3")
    e("v_and_b32 v10, 1, v0")
    e("v_lshlrev_b32 v10, 4, v10")
    e("v_lshl_add_u32 v10, v2, 11, v10")
    e("v_xor_b32 v9, v9, v2")
    e("v_xor_b32 v12, 4, v9")
    for pp in range(4):
        e(f"v_lshl_add_u32 v{VW2+pp}, v{9 if pp % 2 == 0 else 12}, 5, v10")
        if pp: e(f"v_add_u32 v{VW2+pp}, {pp*(8192-1024)}, v{VW2+pp}")
    e("v_bfe_u32 v9, v0, 1, 2")
    e("v_xor_b32 v9, v9, v2")
    e("v_and_b32 v10, 1, v0")
    e("v_lshlrev_b32 v10, 4, v10")
    e("v_lshl_add_u32 v10, v9, 5, v10")
    e("v_lshrrev_b32 v9, 3, v0")
    e(f"v_lshl_add_u32 v{VR}, v9, 12, v10")
    for pp in range(1, 4):
        e(f"v_add_u32 v{VR+pp}, {pp*(32768-1024)}, v{VR}")
    e("s_lshl_b32 s47, s13, 3")
    e("s_lshl_b32 s26, s24, 1")
    e("s_add_u32 s47, s47, s26")
    e("s_mul_i32 s47, s47, 112")
    e("s_mul_i32 s26, s15, 56")
    e("s_add_u32 s47, s47, s26")
    e("s_lshl_b32 s47, s47, 10")
    e(f"s_add_u32 s47, s47, 0x{HM:x}")
    e("s_mul_i32 s48, s15, 1792")
    e("s_lshl_b32 s27, s24, 4")
    e("s_add_u32 s48, s48, s27")
    e("s_lshl_b32 s48, s48, 11")
    e("s_lshl_b32 s27, s53, 8")
    e("s_add_u32 s48, s48, s27")
    e("s_mul_i32 s36, s53, 7")
    e("s_add_u32 s36, s36, 1")
    e("s_lshr_b32 s36, s36, 1")
    e("s_lshl_b32 s27, s24, 12")
    e(f"s_add_u32 s28, s27, {WOFF}")
    e("s_lshr_b32 s62, s11, 1")
    e("s_mul_i32 s62, s62, 3")
    e("s_lshr_b32 s62, s62, 1")
    e("s_lshl_b32 s62, s62, 2")
    e(f"s_min_u32 s52, s36, {NST2-4}")
    def st_of(n):
        e(f"s_add_u32 s37, s36, {n}")
        e(f"s_cmp_ge_u32 s37, {NST2}")
        e(f"s_cselect_b32 s38, {4 if 'F' not in X else NST2}, 0")
        e("s_sub_u32 s37, s37, s38")
    e("s_barrier")
    k.stamp(3)
    def wpart2(n):
        st_of(n)
        e("s_lshl_b32 s26, s37, 17")
        e("s_add_u32 s26, s26, s48")
        e(f"s_add_u32 m0, s28, {n*STG2}")
        e("s_nop 0")
        for pp in range(4):
            e(f"buffer_load_dwordx4 v{VW2+pp}, s[40:43], s26 offen offset:{1024*pp}{NT2} lds")
    wpart2(0); wpart2(1); wpart2(2)
    if 'P' in X:
        e("s_lshl_b32 s31, s2, 2")
        e("s_add_u32 s31, s31, s24")
        e("s_lshl_b32 s31, s31, 12")
        e(f"s_add_u32 s31, s31, 0x{PART:x}")
        e("v_lshlrev_b32 v9, 6, v0")
        e("buffer_load_dword v210, v9, s[20:23], s31 offen sc1")
    wpart2(3)
    e("s_lshl_b32 s31, s53, 7")
    e("s_lshl_b32 s32, s24, 5")
    e("s_add_u32 s31, s31, s32")
    e("s_lshl_b32 s31, s31, 12")
    e("s_lshl_b32 s32, s13, 8")
    e("s_add_u32 s31, s31, s32")
    e("s_lshl_b32 s32, s15, 7")
    e("s_add_u32 s31, s31, s32")
    e(f"s_add_u32 s31, s31, 0x{HT:x}")
    e(f"s_add_u32 m0, s27, {RES}")
    e("s_nop 0")
    for pp in range(4):
        e(f"buffer_load_dwordx4 v{VR+pp}, s[20:23], s31 offen offset:{1024*pp} lds")
    def hpart2(n):
        st_of(n)
        e("s_lshl_b32 s25, s37, 11")
        e("s_add_u32 s25, s25, s47")
        e(f"s_add_u32 m0, s27, {n*STG2}")
        e("s_nop 0")
        for pp in range(4):
            e(f"buffer_load_dwordx4 v{VA+pp//2}, s[20:23], s25 offen offset:{1024*pp} lds")
    e(f"s_waitcnt vmcnt({17 if 'P' in X else 16})")
    k.stamp(4)
    e("s_barrier")
    e("s_mov_b32 s39, 0")
    e("s_mov_b64 exec, 0xff")
    k.label("hpoll")
    e("buffer_load_dwordx2 v[64:65], v11, s[20:23], s51 offen sc1")
    e("s_add_u32 s39, s39, 1")
    e("s_cmp_gt_u32 s39, 0x100000")
    e(f"s_cbranch_scc1 {k.L('hpolled')}")
    e("s_waitcnt vmcnt(0)")
    e("v_cmp_ne_u64 vcc, v[64:65], v[216:217]")
    e(f"s_cbranch_vccnz {k.L('hpoll')}")
    k.label("hpolled")
    e("s_mov_b64 exec, -1")
    hpart2(3)
    e("s_mov_b32 s29, 0")
    e(f"s_mov_b32 s35, {NB2}")
    def issue2():
        e("s_add_u32 s37, s35, s13")
        e(f"s_and_b32 s37, s37, {RW-1}")
        e(f"s_andn2_b32 s38, s35, {RW-1}")
        e("s_or_b32 s37, s37, s38")
        if 'F' in X:
            st_of("s37")
        else:
            e("s_sub_u32 s37, s37, 4")
            if 'g' not in X:
                e("s_add_u32 s37, s37, s62")
                e(f"s_cmp_ge_u32 s37, {NST2-4}")
                e(f"s_cselect_b32 s38, {NST2-4}, 0")
                e("s_sub_u32 s37, s37, s38")
            e("s_cmp_ge_u32 s37, s52")
            e("s_cselect_b32 s38, 4, 0")
            e("s_add_u32 s37, s37, s38")
        e("s_lshl_b32 s25, s37, 11")
        e("s_add_u32 s25, s25, s47")
        e("s_lshl_b32 s26, s37, 17")
        e("s_add_u32 m0, s27, s29")
        e("s_add_u32 s26, s26, s48")
        for pp in range(4):
            e(f"buffer_load_dwordx4 v{VA+pp//2}, s[20:23], s25 offen offset:{1024*pp} lds")
        e("s_add_u32 m0, s28, s29")
        e(f"s_add_u32 s29, s29, {STG2}")
        for pp in range(4):
            e(f"buffer_load_dwordx4 v{VW2+pp}, s[40:43], s26 offen offset:{1024*pp}{NT2} lds")
        e(f"s_and_b32 s29, s29, {NB2*STG2-1}")
        e("s_add_u32 s35, s35, 1")
    e("s_barrier")
    issue2()
    e("s_waitcnt vmcnt(12)")
    e("s_barrier")
    issue2()
    k.label("l2loop")
    e("s_waitcnt vmcnt(16)")
    e("s_barrier")
    issue2()
    e(f"s_cmp_lt_u32 s35, {NST2}")
    e(f"s_cbranch_scc1 {k.L('l2loop')}")
    for i in range(NST2-NB2, NST2):
        left = max(NST2 - 1 - (i + 1), 0)
        e(f"s_waitcnt vmcnt({left*8})")
        e("s_barrier")
    k.dump_stamps(1, 20, 10)
    e("s_endpgm")
```

```python
from asmlib import *
from layout import *
from k0 import ln_stats
import os
F = os.environ.get('K0X', 'wncdT')

KCP = 4160
REG = 4*KCP + 512 + 4096
REG0 = 0
SKL = 4*REG
TILE = 90112
STAT = 135168
FLAG = 153664
LDS_ALL = FLAG + 128
TAG = 204

def emit_front(k):
    e = k.e
    k.pfx = "f_"
    e("s_cmp_ge_u32 s2, 256")
    e(f"s_cbranch_scc1 {k.L('end')}")
    k.clear_stamps()
    e("s_load_dwordx8 s[4:11], s[0:1], 0")
    e("s_load_dwordx4 s[52:55], s[0:1], 80")
    e("s_load_dwordx4 s[12:15], s[0:1], 32")
    e("s_load_dwordx4 s[56:59], s[0:1], 56")
    e("v_lshrrev_b32 v1, 6, v0")
    e("s_lshr_b32 s40, s2, 3")
    e("v_readfirstlane_b32 s60, v1")
    e("s_and_b32 s41, s2, 7")
    e("s_lshl_b32 s61, s41, 7")
    e("s_lshl_b32 s62, s40, 2")
    e("s_add_u32 s61, s61, s62")
    e("s_and_b32 s62, s60, 3")
    e("s_add_u32 s61, s61, s62")
    e(f"s_mul_i32 s63, s62, {REG}")
    e(f"s_add_u32 s63, s63, {REG0}")
    e("s_lshl_b32 s39, s41, 11")
    e("v_mov_b32 v207, 0")
    e("s_getreg_b32 s38, hwreg(HW_REG_XCC_ID, 0, 4)")
    if 'f' in F: e("s_add_u32 s38, s38, s40")
    e("v_mov_b32 v206, s38")
    e("s_cmp_ge_u32 s60, 4")
    e(f"s_cbranch_scc1 {k.L('bwave')}")

    def spin(off, cond, lab, sleep=0):
        if off is not None: e(f"v_mov_b32 v33, {off}")
        k.label(lab)
        if sleep: e(f"s_sleep {sleep}")
        e("ds_read_b32 v34, v33")
        e("s_waitcnt lgkmcnt(0)")
        e(cond)
        e(f"s_cbranch_vccnz {k.L(lab)}")
    def setflag(off):
        e(f"v_mov_b32 v200, {off}")
        e("v_mov_b32 v201, 1")
        e("ds_write_b32 v200, v201")
    def publish(cnt_off, base, lab, r=200):
        e(f"v_mov_b32 v{r}, {FLAG + cnt_off}")
        e(f"v_mov_b32 v{r+1}, 1")
        e("s_mov_b64 exec, 1")
        e(f"ds_add_rtn_u32 v{r+2}, v{r}, v{r+1}")
        e("s_waitcnt lgkmcnt(0)")
        e(f"v_readfirstlane_b32 s3, v{r+2}")
        e("s_cmp_eq_u32 s3, 3")
        e(f"s_cbranch_scc0 {k.L(lab)}")
        e("s_lshl_b32 s3, s40, 14")
        e(f"v_mov_b32 v{r}, s3")
        e(f"s_add_u32 s3, s39, 0x{base:x}")
        e(f"buffer_store_dwordx3 {vr(TAG,3)}, v{r}, s[32:35], s3 offen")
        e(f"s_add_u32 s3, s3, 0x{FB_:x}")
        e(f"buffer_store_dwordx3 {vr(TAG,3)}, v{r}, s[32:35], s3 offen sc1")
        k.label(lab)
        e("s_mov_b64 exec, -1")
    def poll(base, lab, dual=True):
        e("v_and_b32 v121, 31, v0")
        e("v_lshlrev_b32 v121, 14, v121")
        e(f"s_add_u32 s28, s39, 0x{base:x}")
        e(f"s_add_u32 s29, s39, 0x{base + FB_:x}")
        e("s_mov_b32 s3, 0")
        e("v_mov_b32 v122, 0")
        e("s_mov_b64 exec, 0xffffffff")
        k.label(lab)
        e("buffer_load_dwordx3 v[116:118], v121, s[32:35], s28 offen sc1")
        e("s_add_u32 s3, s3, 1")
        if dual:
            e("s_and_b32 s26, s3, 3")
            e(f"s_cbranch_scc1 {k.L(lab + '_a')}")
            e("buffer_load_dwordx3 v[122:124], v121, s[32:35], s29 offen sc1")
            k.label(lab + "_a")
        e("s_cmp_gt_u32 s3, 0x100000")
        e(f"s_cbranch_scc1 {k.L(lab + '_x')}")
        e("s_waitcnt vmcnt(0)")
        e(f"v_cmp_ne_u64 vcc, v[116:117], {vr(TAG,2)}")
        if dual:
            e(f"v_cmp_ne_u64 s[24:25], v[122:123], {vr(TAG,2)}")
            e("s_nop 0")
            e("v_cndmask_b32 v118, v118, v124, vcc")
            e("s_and_b64 vcc, vcc, s[24:25]")
        e(f"s_cbranch_vccnz {k.L(lab)}")
        k.label(lab + "_x")
        e("s_waitcnt vmcnt(0)")
        e("v_cmp_ne_u32 vcc, s38, v118")
        e("s_mov_b64 exec, -1")
    def tagload():
        e(f"buffer_load_dwordx2 {vr(TAG,2)}, v207, s[44:47], 0 offen sc1")
    def tagcheck(lab):
        e("s_mov_b32 s3, 0")
        k.label(lab)
        e(f"v_cmp_eq_u32 vcc, 0, v{TAG}")
        e(f"s_cbranch_vccz {k.L(lab + '_x')}")
        tagload()
        e("s_waitcnt vmcnt(0)")
        e("s_add_u32 s3, s3, 1")
        e("s_cmp_lt_u32 s3, 0x100000")
        e(f"s_cbranch_scc1 {k.L(lab)}")
        k.label(lab + "_x")
        e(f"v_readfirstlane_b32 s98, v{TAG}")
        e(f"v_readfirstlane_b32 s99, v{TAG+1}")
    def finish(lab, target):
        fin_count(lab)
        e(f"s_branch {target}")
    def fin_count(lab):
        e("s_mov_b64 exec, -1")
        e(f"v_mov_b32 v200, {FLAG+52}")
        e("v_mov_b32 v201, 1")
        e("s_waitcnt vmcnt(0)")
        e("s_mov_b64 exec, 1")
        e("ds_add_rtn_u32 v202, v200, v201")
        e("s_waitcnt lgkmcnt(0)")
        e("v_readfirstlane_b32 s3, v202")
        e("s_cmp_eq_u32 s3, 7")
        e(f"s_cbranch_scc0 {k.L(lab)}")
        e("s_lshl_b32 s3, s2, 11")
        e(f"s_add_u32 s3, s3, 0x{FHT:x}")
        e(f"buffer_store_dwordx2 {vr(TAG,2)}, v207, s[32:35], s3 offen sc1")
        k.label(lab)
        e("s_mov_b64 exec, -1")

    e("v_and_b32 v6, 15, v0")
    e("v_lshrrev_b32 v7, 4, v0")
    e("s_lshl_b32 s42, s40, 17")
    e("s_lshl_b32 s43, s41, 8")
    e("s_add_u32 s42, s42, s43")
    e("v_lshlrev_b32 v1, 13, v7")
    e("v_lshl_add_u32 v1, v6, 4, v1")
    e("v_add_u32 v1, s42, v1")
    e("v_add_u32 v2, 0x1000, v1")
    e("v_add_u32 v3, 0xffffe800, v1")
    e("v_add_u32 v4, 0xfffff000, v1")
    e("v_add_u32 v5, 0xfffff800, v1")
    e("s_lshl_b32 s48, s41, 10")
    e("v_and_b32 v9, 63, v0")
    e("v_lshlrev_b32 v9, 4, v9")
    e(f"s_mov_b32 m0, {SKL}")
    e("s_waitcnt lgkmcnt(0)")
    k.srd(20, 6, 7, 4*MB)
    k.srd(24, 8, 9, 4*MB)
    k.srd(28, 10, 11, 8192)
    KR = 12; VR = 40; XR = 56; SK = 72
    e("buffer_load_dwordx4 v9, s[28:31], s48 offen lds")
    for i in range(4):
        e(f"buffer_load_dwordx4 {vr(KR+12+4*i,4)}, v{1+i//2}, s[20:23], 0 offen offset:{2048*(i%2)} nt")
    for i in range(4):
        e(f"buffer_load_dwordx4 {vr(VR+4*i,4)}, v{1+i//2}, s[24:27], 0 offen offset:{2048*(i%2)} nt")
    e(f"buffer_load_dwordx4 {vr(KR,4)}, v3, s[20:23], 0 offen nt")
    e(f"buffer_load_dwordx4 {vr(KR+4,4)}, v4, s[20:23], 0 offen nt")
    e(f"buffer_load_dwordx4 {vr(KR+8,4)}, v5, s[20:23], 0 offen nt")
    k.srd(16, 4, 5, 4*MB)
    for i in range(4):
        e(f"buffer_load_dwordx4 {vr(XR+4*i,4)}, v{1+i//2}, s[16:19], 0 offen offset:{2048*(i%2)} nt")
    k.srd(44, 52, 53, 256)
    tagload()
    e("s_barrier")
    k.srd(32, 54, 55, WS_BYTES)
    e("s_and_b32 s3, s61, -2")
    e("s_lshl_b32 s3, s3, 1")
    e("s_load_dword s51, s[14:15], s3")
    e("v_and_b32 v10, 14, v6")
    e("v_xor_b32 v11, v10, v7")
    e("v_xor_b32 v10, 1, v11")
    e("v_lshlrev_b32 v8, 10, v6")
    e("v_lshl_add_u32 v10, v10, 3, v8")
    e("v_lshl_add_u32 v11, v11, 3, v8")
    e(f"v_add_u32 v10, {TILE}, v10")
    e(f"v_add_u32 v11, {TILE}, v11")
    e(f"v_lshlrev_b32 v8, 6, v6")
    e(f"v_add_u32 v8, {SKL}, v8")
    e("s_mov_b32 s48, 0x05040100")
    e("s_mov_b32 s49, 0x07060302")
    e("s_mov_b32 s50, 0xffff0000")
    T = 104; KU = 112
    ACC = [2, 4, 8, 6]
    k.stamp(1)
    e("s_waitcnt vmcnt(16)")
    for q in range(4):
        e(f"ds_read_b128 {vr(SK+4*q,4)}, v8 offset:{16*q}")
    e("s_waitcnt vmcnt(5) lgkmcnt(0)")
    setflag(FLAG + 24)
    k.stamp(2)
    k.label("kv")
    for jj in range(4):
        for c in range(2):
            d0 = SK + 4*jj + 2*c
            e(f"v_lshlrev_b32 v{T+0+c}, 16, v{d0}")
            e(f"v_and_b32 v{T+2+c}, s50, v{d0}")
            e(f"v_lshlrev_b32 v{T+4+c}, 16, v{d0+1}")
            e(f"v_and_b32 v{T+6+c}, s50, v{d0+1}")
        for r in range(7):
            e(f"v_lshlrev_b32 v{KU+2*r}, 16, v{KR+4*r+jj}")
            e(f"v_and_b32 v{KU+2*r+1}, s50, v{KR+4*r+jj}")
        for tap in (3, 2, 1, 0):
            for i in range(4):
                kk = KU + 2*(i+3-tap)
                if tap == 3:
                    e(f"v_pk_mul_f32 {vr(ACC[i],2)}, {vr(kk,2)}, {vr(T+2*tap,2)}")
                else:
                    e(f"v_pk_fma_f32 {vr(ACC[i],2)}, {vr(kk,2)}, {vr(T+2*tap,2)}, {vr(ACC[i],2)}")
        for i in range(4):
            e(f"v_lshlrev_b32 v{KU+2*i}, 16, v{VR+4*i+jj}")
            e(f"v_and_b32 v{KU+2*i+1}, s50, v{VR+4*i+jj}")
        for i in range(4):
            e(f"v_pk_mul_f32 {vr(ACC[i],2)}, {vr(ACC[i],2)}, {vr(KU+2*i,2)}")
        P = KU + 8
        for c in range(2):
            e(f"v_cvt_pk_bf16_f32 v{P+2*c}, v{ACC[3]+c}, v{ACC[2]+c}")
            e(f"v_cvt_pk_bf16_f32 v{P+2*c+1}, v{ACC[1]+c}, v{ACC[0]+c}")
        for c in range(2):
            e(f"ds_write_b64 v10, {vr(P+2*c,2)} offset:{128*(2*jj+c)}")
    e("s_waitcnt vmcnt(1)")
    for jj in range(4):
        for c in range(2):
            P = KR + 4*jj + 2*c
            sel = "s48" if c == 0 else "s49"
            e(f"v_perm_b32 v{P}, v{XR+4+jj}, v{XR+jj}, {sel}")
            e(f"v_perm_b32 v{P+1}, v{XR+12+jj}, v{XR+8+jj}, {sel}")
            e(f"ds_write_b64 v11, {vr(P,2)} offset:{16384+128*(2*jj+c)}")
    e("v_and_b32 v1, 7, v0")
    e("v_lshrrev_b32 v2, 7, v0")
    e("v_xor_b32 v2, v2, v1")
    e("v_lshrrev_b32 v3, 3, v0")
    e("v_lshlrev_b32 v4, 7, v3")
    e("v_lshl_add_u32 v4, v2, 4, v4")
    e(f"v_add_u32 v4, {TILE}, v4")
    e("v_xor_b32 v5, 32, v4")
    e("v_xor_b32 v6, 64, v4")
    e("v_xor_b32 v7, 96, v4")
    e("v_lshlrev_b32 v3, 12, v3")
    e("v_lshl_add_u32 v37, v1, 4, v3")
    e(f"v_mov_b32 v33, {FLAG+12}")
    e("v_mov_b32 v34, 1")
    e("s_waitcnt lgkmcnt(0)")
    e(f"s_cbranch_execz {k.L('kvback')}")
    e("s_mov_b64 exec, 1")
    e("ds_add_u32 v33, v34")
    e("s_mov_b64 exec, -1")
    e("s_lshl_b32 s4, s41, 19")
    e("s_lshl_b32 s5, s40, 7")
    e("s_add_u32 s4, s4, s5")
    for i in range(8):
        e(f"s_add_u32 s{16+i}, s4, 0x{(i%4)*131072 + (XT if i >= 4 else UT):x}")
    k.stamp(3)
    spin(None, "v_cmp_gt_u32 vcc, 4, v34", "waitT")
    R = 40
    for i in range(8):
        e(f"ds_read_b128 {vr(R+4*i,4)}, v{4+i%4} offset:{4096*(i%4) + (16384 if i >= 4 else 0)}")
    for i in range(4):
        e(f"s_waitcnt lgkmcnt({7-i})")
        e(f"buffer_store_dwordx4 {vr(R+4*i,4)}, v37, s[32:35], s{16+i} offen")
    e("v_and_b32 v0, 63, v0")
    e("v_and_b32 v5, 15, v0")
    e("v_lshrrev_b32 v6, 4, v0")
    e("s_lshl_b32 s12, s61, 12")
    e("v_lshlrev_b32 v7, 5, v5")
    e("v_lshl_add_u32 v7, v6, 3, v7")
    e(f"s_add_u32 s29, s12, 0x{HT:x}")
    e("v_sub_u32 v33, 7, v5")
    e("v_and_b32 v33, 3, v33")
    e(f"v_mul_u32_u24 v33, {KCP}, v33")
    e("v_lshrrev_b32 v34, 2, v5")
    e("v_lshl_add_u32 v33, v34, 3, v33")
    e("v_lshlrev_b32 v34, 4, v6")
    e("v_sub_u32 v33, v33, v34")
    e("s_add_u32 s30, s63, 24")
    e("v_add_u32 v1, s30, v33")
    e("v_lshlrev_b32 v33, 5, v5")
    e("v_add_u32 v33, v33, v34")
    e(f"s_add_u32 s30, s63, {4*KCP + 512 - 32*15}")
    e("v_add_u32 v3, s30, v33")
    AD = 192
    e("v_lshrrev_b32 v33, 3, v5")
    e("v_add_u32 v33, 2, v33")
    e("v_and_b32 v34, 7, v5")
    e("v_sub_u32 v34, 7, v34")
    e("v_cmp_eq_u32 vcc, v33, v6")
    e("v_lshrrev_b32 v35, 1, v34")
    e("v_and_b32 v34, 1, v34")
    e("v_cndmask_b32 v35, 9, v35, vcc")
    e("v_lshlrev_b32 v34, 4, v34")
    e("s_and_b32 s31, s61, 1")
    e("s_lshl_b32 s31, s31, 4")
    e("s_lshr_b32 s51, s51, s31")
    e("s_and_b32 s51, s51, 0xffff")
    e("v_mov_b32 v33, s51")
    e("v_lshlrev_b32 v34, v34, v33")
    for r in range(4):
        e(f"v_cmp_eq_u32 vcc, {r}, v35")
        e("s_nop 1")
        e(f"v_cndmask_b32 v{AD+r}, 0, v34, vcc")
    e("s_waitcnt vmcnt(0)")
    tagcheck("tagA")
    publish(0, FU, "pubU")
    k.stamp(4)
    for i in range(4, 8):
        e(f"buffer_store_dwordx4 {vr(R+4*i,4)}, v37, s[32:35], s{16+i} offen")
    FA = [64, 128]; FB = [96, 160]; AC = 8
    def reads(buf, ep):
        r = []
        for w in range(8):
            r.append(f"ds_read_b128 {vr(FB[buf]+4*w,4)}, v3 offset:{512*w + 32*(15-ep)}")
        for v in range(8):
            r.append(f"ds_read_b64 {vr(FA[buf]+4*v,2)}, v1 offset:{32*ep + 512*v}")
            r.append(f"ds_read_b64 {vr(FA[buf]+4*v+2,2)}, v1 offset:{32*ep + 512*v + 8}")
        return r
    def mfmas(buf):
        m = []
        for v in range(8):
            for w in range(8 - v):
                t = v + w
                m.append(f"v_mfma_f32_16x16x32_bf16 {vr(AC+4*t,4)}, {vr(FA[buf]+4*v,4)}, {vr(FB[buf]+4*w,4)}, {vr(AC+4*t,4)}")
        return m
    e("s_waitcnt vmcnt(0)")
    publish(4, FX, "pubX")
    e("s_lshl_b32 s3, s60, 2")
    e(f"s_add_u32 s3, s3, {FLAG+32}")
    e("v_mov_b32 v33, s3")
    spin(None, "v_cmp_eq_u32 vcc, 0, v34", "waitK")
    rd = reads(0, 1)
    for r in rd[8:]: e(r)
    spin(None, "v_cmp_gt_u32 vcc, 2, v34", "waitU")
    k.stamp(5)
    for r in rd[:8]: e(r)
    for t in range(8):
        e(f"s_waitcnt lgkmcnt({7-t})")
        e(f"v_mfma_f32_16x16x32_bf16 {vr(AC+4*t,4)}, {vr(AD,4)}, {vr(FB[0]+4*t,4)}, 0")
    e("s_mov_b32 s26, 0")
    k.label("loop")
    for buf, nxt in ((0, 3), (1, 5)):
        e("s_waitcnt lgkmcnt(0)")
        rd = reads(1 - buf, nxt)
        for i, m in enumerate(mfmas(buf)):
            e(m)
            if i < len(rd): e(rd[i])
    e("v_add_u32 v1, 128, v1")
    e("v_add_u32 v3, -128, v3")
    e("s_add_u32 s26, s26, 1")
    e("s_cmp_lt_u32 s26, 4")
    e(f"s_cbranch_scc1 {k.L('loop')}")
    e("v_lshlrev_b32 v1, 6, v5")
    e("v_lshl_add_u32 v1, v6, 4, v1")
    e(f"v_add_u32 v1, {STAT}, v1")
    e("s_lshl_b32 s26, s60, 12")
    e(f"s_add_u32 s26, s26, {TILE}")
    e("v_add_u32 v2, s26, v7")
    e(f"v_mov_b32 v3, {FLAG+16}")
    e("v_and_b32 v4, 1, v6")
    e("v_lshlrev_b32 v4, 9, v4")
    e("v_lshl_add_u32 v4, v5, 5, v4")
    e("v_lshrrev_b32 v200, 1, v6")
    e("v_lshl_add_u32 v4, v200, 4, v4")
    k.stamp(6)
    k.label("spoll")
    e("ds_read_b64 v[64:65], v3")
    e("s_waitcnt lgkmcnt(0)")
    e("v_and_b32 v64, v64, v65")
    e("v_cmp_eq_u32 vcc, 0, v64")
    e(f"s_cbranch_vccnz {k.L('spoll')}")
    MS = 64; RS = 96; XV = 176
    for t in range(8):
        e(f"ds_read_b64 {vr(XV+2*t,2)}, v2 offset:{512*t}")
    for t in range(3):
        e(f"ds_read_b128 {vr(MS+4*t,4)}, v1 offset:{1024*t}")
        e(f"ds_read_b128 {vr(RS+4*t,4)}, v1 offset:{1024*t+8192}")
    e("s_waitcnt lgkmcnt(6)")
    for t in range(8):
        if t + 3 < 8:
            e(f"ds_read_b128 {vr(MS+4*(t+3),4)}, v1 offset:{1024*(t+3)}")
            e(f"ds_read_b128 {vr(RS+4*(t+3),4)}, v1 offset:{1024*(t+3)+8192}")
        xu = 128 + 8*(t % 2); q = xu + 4
        e(f"v_lshlrev_b32 v{xu}, 16, v{XV+2*t}")
        e(f"v_and_b32 v{xu+1}, s50, v{XV+2*t}")
        e(f"v_lshlrev_b32 v{xu+2}, 16, v{XV+2*t+1}")
        e(f"v_and_b32 v{xu+3}, s50, v{XV+2*t+1}")
        e(f"s_waitcnt lgkmcnt({2*min(3, 7-t)})")
        for h in range(2):
            e(f"v_pk_add_f32 {vr(q+2*h,2)}, {vr(xu+2*h,2)}, {vr(MS+4*t+2*h,2)} neg_lo:[0,1] neg_hi:[0,1]")
        for h in range(2):
            e(f"v_pk_mul_f32 {vr(q+2*h,2)}, {vr(q+2*h,2)}, {vr(RS+4*t+2*h,2)}")
        for h in range(2):
            e(f"v_pk_fma_f32 {vr(q+2*h,2)}, {vr(q+2*h,2)}, {vr(AC+4*t+2*h,2)}, {vr(xu+2*h,2)}")
        e(f"v_cvt_pk_bf16_f32 v{XV+2*t}, v{q}, v{q+1}")
        e(f"v_cvt_pk_bf16_f32 v{XV+2*t+1}, v{q+2}, v{q+3}")
        if t % 2 == 1:
            e("s_nop 1")
            e(f"v_permlane16_swap_b32 v{XV+2*t-2}, v{XV+2*t}")
            e(f"v_permlane16_swap_b32 v{XV+2*t-1}, v{XV+2*t+1}")
            e(f"buffer_store_dwordx4 {vr(XV+2*t-2,4)}, v4, s[32:35], s29 offen offset:{512*(t-1)} sc1")
    e(f"v_mov_b32 v200, {FLAG+48}")
    e("v_mov_b32 v201, 1")
    e("s_waitcnt lgkmcnt(0)")
    e("s_mov_b64 exec, 1")
    e("ds_add_u32 v200, v201")
    e("s_mov_b64 exec, -1")
    k.stamp(7) if not STAMP else k.dump_stamps(0, 32, 60, keep=True)
    finish("finA", "Lmlp_compute")

    k.label("bwave")
    k.role = "B"
    e("s_setprio 3")
    e("v_and_b32 v0, 63, v0")
    e("v_lshlrev_b32 v2, 4, v0")
    e("v_mov_b32 v36, 0"); e("v_mov_b32 v37, 0"); e("v_mov_b32 v38, 0"); e("v_mov_b32 v39, 0")
    e("v_min_u32 v33, 48, v2")
    e(f"v_add_u32 v33, {FLAG}, v33")
    e("ds_write_b128 v33, v[36:39]")
    e("s_memrealtime s[48:49]")
    e("s_waitcnt lgkmcnt(0)")
    k.srd(44, 52, 53, 256)
    e("s_or_b32 s48, s48, 1")
    e("s_add_u32 s3, s2, s62")
    e("s_cmp_eq_u32 s3, 0")
    e(f"s_cbranch_scc0 {k.L('notag')}")
    e("v_mov_b32 v40, s48"); e("v_mov_b32 v41, s49")
    e("s_mov_b64 exec, 1")
    e("buffer_store_dwordx2 v[40:41], v207, s[44:47], 0 offen sc1")
    e("s_mov_b64 exec, -1")
    k.label("notag")
    e("s_setprio 0")
    e("v_add_u32 v3, -8, v2")
    e("v_add_u32 v4, 1016, v2")
    e("s_lshl_b32 s42, s61, 12")
    e("s_add_u32 s20, s12, s42")
    e("s_addc_u32 s21, s13, 0")
    e("s_and_b32 s21, s21, 0xffff")
    e("s_mov_b32 s22, 4096")
    e("s_mov_b32 s23, 0x20000")
    k.srd(16, 4, 5, 4*MB)
    k.srd(32, 54, 55, WS_BYTES)
    e("s_lshl_b32 s43, s2, 14")
    e("s_lshl_b32 s3, s62, 12")
    e("s_add_u32 s43, s43, s3")
    e("v_bfe_u32 v32, v0, 1, 2")
    e(f"v_mul_u32_u24 v32, {KCP}, v32")
    e("v_and_b32 v33, 1, v0")
    e("v_lshl_add_u32 v32, v33, 4, v32")
    e(f"v_add_u32 v33, {4*KCP}, v2")
    e("v_cmp_gt_u32 vcc, 32, v0")
    e("s_nop 1")
    e("v_cndmask_b32 v32, v32, v33, vcc")
    e("v_add_u32 v32, s63, v32")
    e("ds_write_b128 v32, v[36:39]")
    if 'd' not in F:
        e("s_mov_b64 exec, 0")
        e(f"s_branch {k.L('kv')}")
    k.label("kvback")
    e("s_mov_b64 exec, -1")
    e("s_barrier")
    if 'p' not in F:
        e("s_lshl_b32 s3, s2, 11")
        e(f"s_add_u32 s3, s3, 0x{HO:x}")
        e("s_lshr_b32 s24, s41, 1")
        e("s_lshl_b32 s24, s24, 2")
        e("s_and_b32 s25, s40, 3")
        e("s_add_u32 s24, s24, s25")
        e("s_and_b32 s25, s41, 1")
        e("s_lshl_b32 s25, s25, 3")
        e("s_lshr_b32 s26, s40, 2")
        e("s_add_u32 s25, s25, s26")
        e("s_lshl_b32 s26, s24, 4")
        e("s_add_u32 s26, s26, s25")
        e("s_lshl_b32 s26, s26, 11")
        e(f"s_add_u32 s26, s26, 0x{SP2:x}")
        e("s_lshl_b32 s25, s25, 4")
        e("s_add_u32 s25, s25, s24")
        e("s_lshl_b32 s25, s25, 11")
        e(f"s_add_u32 s25, s25, 0x{CP:x}")
        e("s_lshl_b32 s24, s2, 6")
        e(f"s_add_u32 s24, s24, 0x{SG:x}")
        e("s_cmp_eq_u32 s62, 1")
        e("s_cselect_b32 s3, s26, s3")
        e("s_cmp_eq_u32 s62, 2")
        e("s_cselect_b32 s3, s25, s3")
        e("s_cmp_eq_u32 s62, 3")
        e("s_cselect_b32 s3, s24, s3")
        e("s_cselect_b64 exec, 1, 0xffff")
        e("v_lshlrev_b32 v32, 7, v0")
        e("buffer_load_dword v211, v32, s[32:35], s3 offen")
        e("s_mov_b64 exec, -1")
    if 'U' in F or 'V' in F:
        e("s_lshl_b32 s24, s41, 19")
        e("s_lshl_b32 s25, s40, 7")
        e("s_add_u32 s24, s24, s25")
        e("s_lshl_b32 s25, s62, 17")
        e("s_add_u32 s24, s24, s25")
        e("v_and_b32 v32, 31, v0")
        e("v_lshlrev_b32 v32, 12, v32")
        e("v_lshrrev_b32 v33, 5, v0")
        e("v_lshl_add_u32 v32, v33, 22, v32")
        if 'V' not in F: e("s_mov_b64 exec, 0xffffffff")
        e("buffer_load_dword v209, v32, s[32:35], s24 offen nt")
        e("s_mov_b64 exec, -1")
    if 'c' not in F:
        e("s_and_b32 s3, s40, 7")
        e(f"s_cbranch_scc1 {k.L('nocode')}")
        e("s_getpc_b64 s[48:49]")
        k.label("pc")
        e("s_lshl_b32 s3, s62, 13")
        e("v_lshl_add_u32 v32, v0, 7, s3")
        e(f"v_min_u32 v32, Lcode_end-{k.L('pc')}-4, v32")
        e("global_load_dword v210, v32, s[48:49]")
        k.label("nocode")
    XW = 1 if ('x' in F or 'y' in F) else 0
    if XW:
        k.srd(28, 58, 59, 1024*3584*2)
        e("s_lshl_b32 s3, s2, 2")
        e("s_add_u32 s3, s3, s62")
        e(f"s_mul_i32 s3, s3, {56*128}")
        e("v_lshlrev_b32 v32, 7, v0")
        e(f"s_mov_b64 exec, {'0xfffffff' if 'y' in F else '-1'}")
        e("buffer_load_dword v209, v32, s[28:31], s3 offen")
        e("s_mov_b64 exec, -1")
    if 'e' not in F:
        spin(FLAG + 24, "v_cmp_eq_u32 vcc, 0, v34", "waitL", sleep=1)
    k.stamp(1)
    Y = 8; W = 24; ST = 88
    for i in range(4):
        e(f"buffer_load_dwordx4 {vr(Y+4*i,4)}, v2, s[20:23], 0 offen offset:{1024*i} nt")
        if i == 0: e(f"buffer_load_dwordx2 {vr(W,2)}, v3, s[20:23], 0 offen nt")
        else:      e(f"buffer_load_dwordx2 {vr(W+2*i,2)}, v4, s[20:23], 0 offen offset:{1024*(i-1)} nt")
    for i in range(4):
        e(f"buffer_load_dwordx4 {vr(ST+4*i,4)}, v2, s[16:19], s43 offen offset:{1024*i} nt")
    tagload()
    e("s_add_u32 s30, s63, 32")
    e("v_add_u32 v4, s30, v2")
    for i in range(4):
        e(f"s_waitcnt vmcnt({5 + 2*(3-i)})")
        y = Y + 4*i; w = W + 2*i
        X = 44 + 12*(i % 2); P1 = X + 4; P3 = X + 8
        e(f"ds_write_b128 v4, {vr(y,4)} offset:{1024*i}")
        e(f"v_mov_b32 v{X}, v{w+1}")
        for j in range(3): e(f"v_mov_b32 v{X+1+j}, v{y+j}")
        e(f"ds_write_b128 v4, {vr(X,4)} offset:{1024*i + 2*KCP}")
        e(f"v_alignbit_b32 v{P1}, v{y}, v{w+1}, 16")
        for j in range(3): e(f"v_alignbit_b32 v{P1+1+j}, v{y+1+j}, v{y+j}, 16")
        e(f"ds_write_b128 v4, {vr(P1,4)} offset:{1024*i + KCP}")
        e(f"v_alignbit_b32 v{P3}, v{w+1}, v{w}, 16")
        for j in range(3): e(f"v_mov_b32 v{P3+1+j}, v{P1+j}")
        e(f"ds_write_b128 v4, {vr(P3,4)} offset:{1024*i + 3*KCP}")
    e("s_lshl_b32 s3, s62, 2")
    e(f"s_add_u32 s3, s3, {FLAG+32}")
    e("v_mov_b32 v33, s3")
    e("v_mov_b32 v34, 1")
    e("s_waitcnt lgkmcnt(0)")
    e("ds_write_b32 v33, v34")
    k.stamp(2)
    S = [104, 105]; Q = [106, 107]
    for r in S + Q: e(f"v_mov_b32 v{r}, 0")
    e("s_mov_b32 s48, 0x3f803f80")
    e("s_waitcnt vmcnt(0)")
    for j in range(8):
        for r in range(2):
            e(f"v_dot2c_f32_bf16 v{S[r]}, s48, v{ST+8*r+j}")
            e(f"v_dot2c_f32_bf16 v{Q[r]}, v{ST+8*r+j}, v{ST+8*r+j}")
    e("s_nop 2")
    for mode in ("quad_perm:[1,0,3,2] row_mask:0xf", "quad_perm:[2,3,0,1] row_mask:0xf", "row_half_mirror row_mask:0xf",
                 "row_mirror row_mask:0xf", "row_bcast:15 row_mask:0xa", "row_bcast:31 row_mask:0xc"):
        for r in S + Q:
            e(f"v_add_f32_dpp v{r}, v{r}, v{r} {mode} bank_mask:0xf")
    ln_stats(k, S, Q, [108, 109], None, [112, 113], recip=False)
    tagcheck("tagB")
    e("s_mov_b32 s48, 0x07060302")
    e(f"v_perm_b32 v{TAG-2}, v112, v108, s48")
    e(f"v_perm_b32 v{TAG-1}, v113, v109, s48")
    e("s_lshl_b32 s48, s2, 6")
    e("s_lshl_b32 s49, s62, 4")
    e("s_add_u32 s48, s48, s49")
    e(f"s_add_u32 s48, s48, 0x{SG:x}")
    e("s_mov_b32 exec_lo, 0")
    e("s_mov_b32 exec_hi, 0x80000000")
    e(f"buffer_store_dwordx4 {vr(TAG-2,4)}, v207, s[32:35], s48 offen sc1")
    e("s_mov_b64 exec, -1")
    k.stamp(3)
    e("s_cmp_eq_u32 s62, 3")
    e(f"s_cbranch_scc0 {k.L('notB3')}")
    poll(FU, "pollU")
    e(f"s_cbranch_vccz {k.L('oneXCD')}")
    setflag(FLAG + 60)
    spin(FLAG + 4, "v_cmp_gt_u32 vcc, 4, v34", "waitX")
    e("buffer_wbl2 sc1")
    e("s_waitcnt vmcnt(0)")
    e("s_lshl_b32 s3, s40, 14")
    e("v_mov_b32 v200, s3")
    e(f"s_add_u32 s3, s39, 0x{F2:x}")
    e("s_mov_b64 exec, 1")
    e(f"buffer_store_dwordx3 {vr(TAG,3)}, v200, s[32:35], s3 offen sc1")
    e("s_mov_b64 exec, -1")
    poll(F2, "poll2", dual=False)
    e("buffer_inv sc1")
    e("s_waitcnt vmcnt(0)")
    k.label("oneXCD")
    k.stamp(1)
    k.note("s3", 16)
    setflag(FLAG + 8)
    k.label("notB3")
    spin(FLAG + 8, "v_cmp_eq_u32 vcc, 0, v34", "waitGo")
    e(f"s_add_u32 m0, s63, {4*KCP + 512}")
    e(f"s_add_u32 s14, s42, 0x{UT:x}")
    for p in range(4):
        e(f"buffer_load_dwordx4 v2, s[32:35], s14 offen offset:{1024*p}{' nt' if 'T' in F else ''} lds")
    e("s_lshl_b32 s3, s62, 2")
    e(f"s_add_u32 s3, s3, {FLAG+32}")
    e("v_mov_b32 v33, s3")
    e("v_mov_b32 v34, 2")
    e("s_waitcnt vmcnt(0)")
    e("ds_write_b32 v33, v34")
    k.stamp(2)
    if 'z' in F:
        k.srd(28, 58, 59, 1024*3584*2)
        e("s_lshl_b32 s3, s2, 2")
        e("s_add_u32 s3, s3, s62")
        e(f"s_mul_i32 s3, s3, {56*128}")
        e("v_lshlrev_b32 v32, 7, v0")
        e("buffer_load_dword v209, v32, s[28:31], s3 offen")
    e("s_cmp_eq_u32 s62, 1")
    e(f"s_cbranch_scc0 {k.L('notB1')}")
    e("s_lshl_b32 s3, s2, 11")
    e(f"s_add_u32 s3, s3, 0x{XID:x}")
    e("s_mov_b64 exec, 1")
    e(f"buffer_store_dwordx3 {vr(TAG,3)}, v207, s[32:35], s3 offen sc1")
    e("s_mov_b64 exec, -1")
    k.label("notB1")
    e("s_cmp_ge_u32 s62, 2")
    e(f"s_cbranch_scc1 {k.L('bfetch')}")
    fin_count("finB01")
    spin(FLAG + 56, "v_cmp_gt_u32 vcc, 2, v34", "waitG", sleep=2)
    k.stamp(4)
    for ch, ptr in (("n", 56), ("w", 58)):
        if ch in F: continue
        k.srd(16, ptr, ptr + 1, 1024*3584*2)
        e("s_lshl_b32 s30, s2, 1")
        e("s_add_u32 s30, s30, s62")
        e(f"s_mul_i32 s30, s30, {112*128}")
        e("v_lshlrev_b32 v6, 7, v0")
        e("v_add_u32 v7, 6144, v6")
        e("buffer_load_dword v210, v6, s[16:19], s30 offen")
        e("buffer_load_dword v211, v7, s[16:19], s30 offen")
    if STAMP: k.dump_stamps(0, 32, 60, keep=True)
    e("s_branch Lmlp_loader")
    k.label("bfetch")
    e("s_sub_u32 s11, s62, 2")
    e("s_lshl_b32 s12, s11, 13")
    poll(FX, "pollX")
    k.stamp(4)
    e("s_sub_u32 s13, s61, s62")
    e("s_lshl_b32 s13, s13, 12")
    e("s_add_u32 s13, s13, s12")
    for q in range(2):
        e(f"s_add_u32 m0, s12, {TILE + 4096*q}")
        e(f"s_add_u32 s14, s13, 0x{XT + 4096*q:x}")
        for p in range(4):
            e(f"buffer_load_dwordx4 v2, s[32:35], s14 offen offset:{1024*p}{' nt' if 'T' in F else ''} lds")
    e(f"s_add_u32 s13, s12, 0x{SG:x}")
    e("s_add_u32 s14, s13, 4096")
    e("s_mov_b32 s3, 0")
    for q in range(8):
        e(f"buffer_load_dwordx4 {vr(16+4*q,4)}, v2, s[32:35], s{13 + q//4} offen offset:{1024*(q%4)}")
    e(f"v_mov_b32 v200, {FLAG+56}")
    e("v_mov_b32 v201, 1")
    e("s_mov_b64 exec, 1")
    e("ds_add_u32 v200, v201")
    e("s_mov_b64 exec, -1")
    e(f"s_branch {k.L('pollS_c')}")
    k.label("pollS")
    for q in range(8):
        e(f"buffer_load_dwordx4 {vr(16+4*q,4)}, v2, s[32:35], s{13 + q//4} offen offset:{1024*(q%4)} sc1")
    k.label("pollS_c")
    e("s_add_u32 s3, s3, 1")
    e("s_cmp_gt_u32 s3, 0x40000")
    e(f"s_cbranch_scc1 {k.L('pollS_x')}")
    e("s_waitcnt vmcnt(0)")
    e("s_mov_b64 s[22:23], 0")
    for q in range(8):
        e(f"v_cmp_ne_u64 vcc, {vr(18+4*q,2)}, {vr(TAG,2)}")
        e("s_or_b64 s[22:23], s[22:23], vcc")
    e("s_cmp_lg_u64 s[22:23], 0")
    e(f"s_cbranch_scc0 {k.L('pollS_x')}")
    e("s_sleep 8")
    e(f"s_branch {k.L('pollS')}")
    k.label("pollS_x")
    e("s_waitcnt vmcnt(0)")
    k.stamp(6)
    e("s_lshl_b32 s13, s11, 12")
    e(f"s_add_u32 s13, s13, {STAT}")
    e("v_lshl_add_u32 v3, v0, 3, s13")
    e("s_mov_b32 s14, 0xffff0000")
    for q in range(8):
        g = 16 + 4*q
        e(f"v_and_b32 v{g+2}, s14, v{g}")
        e(f"v_and_b32 v{g+3}, s14, v{g+1}")
        e(f"v_lshlrev_b32 v{g}, 16, v{g}")
        e(f"v_lshlrev_b32 v{g+1}, 16, v{g+1}")
        e(f"v_rcp_f32 v{g+2}, v{g+2}")
        e(f"v_rcp_f32 v{g+3}, v{g+3}")
        e(f"ds_write_b64 v3, {vr(g,2)} offset:{512*q}")
        e(f"ds_write_b64 v3, {vr(g+2,2)} offset:{512*q+8192}")
    e("s_lshl_b32 s12, s11, 2")
    e(f"s_add_u32 s12, s12, {FLAG+16}")
    e("v_mov_b32 v4, s12")
    e("v_mov_b32 v5, 1")
    e("s_waitcnt vmcnt(0) lgkmcnt(0)")
    e("ds_write_b32 v4, v5")
    k.stamp(5)
    k.label("bdone")
    if STAMP: k.dump_stamps(0, 32, 60, keep=True)
    finish("finB", "Lmlp_loader")
    k.label("end")
    e("s_endpgm")
```

```python
from asmlib import *
from layout import *
from k0 import ln_stats
from kf import FLAG as FRONT_FLAG
import os
X = os.environ.get('MX', 'ER')
FSLEEP = int(os.environ.get('FSLEEP', '4'))
NT2 = ' nt' if 'n' in X else ''
TR = 1 if 't' in X else 0
HSC = '' if 's' in X else ' sc1'
WBAT = int(os.environ.get('WBAT', '16'))
WL = int(os.environ.get('WL', '28'))
HPOL = os.environ.get('HPOL', '')
RW = int(os.environ.get('K4RW', '4'))

STG1 = 45056; WOFF = 16384; NB1 = 3
STG2 = 32768; NB2 = 4; RES = NB2 * STG2; NST2 = 28
STATS = 151552
CSL = STATS + 1024
MISC = CSL + 1024
NCS = 4

def weave(e, ms, fill, waits=None, mid=None, sched=None):
    fill = list(fill)
    for i, m in enumerate(ms):
        if mid and i == mid[0]:
            for t in mid[1]: e(t)
        if waits and i in waits: e(waits[i])
        e(m)
        for _ in range(sched[i] if i < len(sched) else 0):
            if fill: e(fill.pop(0))
    assert not fill, fill

def emit_mlp(k):
    e = k.e
    k.pfx = "m_"
    def entry():
        e("s_load_dwordx4 s[4:7], s[0:1], 56")
        e("s_load_dwordx2 s[8:9], s[0:1], 88")
        e("s_load_dwordx2 s[56:57], s[0:1], 72")
        e("s_mov_b32 s10, s60")
        e("s_mov_b32 s55, s38")
        e("s_and_b32 s11, s2, 7")
        e("s_lshr_b32 s12, s2, 3")
        e("s_lshr_b32 s13, s11, 1")
        e("s_lshl_b32 s13, s13, 2")
        e("s_and_b32 s14, s12, 3")
        e("s_add_u32 s13, s13, s14")
        e("s_and_b32 s15, s11, 1")
        e("s_lshr_b32 s53, s12, 2")
        e("s_lshl_b32 s14, s15, 3")
        e("s_add_u32 s14, s14, s53")
        e("v_lshrrev_b32 v2, 4, v0")
    def hbase(dst, pair, t):
        e(f"s_and_b32 s{dst}, s12, 3")
        e(f"s_lshl_b32 s{t}, s{dst}, 1")
        e(f"s_add_u32 s{t}, s{t}, {pair}")
        e(f"s_lshl_b32 s{dst}, s{dst}, 2")
        e(f"s_add_u32 s{dst}, s{dst}, {pair}")
        e(f"s_lshl_b32 s{t+1}, s11, 4")
        e(f"s_add_u32 s{dst}, s{dst}, s{t+1}")
        e(f"s_mul_i32 s{dst}, s{dst}, {112*1024}")
        e(f"s_add_u32 s{dst}, s{dst}, 0x{HM:x}")
        e(f"s_and_b32 s{t+1}, s{t}, 3")
        e(f"s_mul_i32 s{t+1}, s{t+1}, {112*1024}")
        e(f"s_lshr_b32 s{t}, s{t}, 2")
        e(f"s_lshl_b32 s{t}, s{t}, 22")
        e(f"s_add_u32 s{t}, s{t}, s{t+1}")
        e(f"s_lshl_b32 s{t+1}, s11, 19")
        e(f"s_add_u32 s{t}, s{t}, s{t+1}")
        e(f"s_cmp_lt_u32 {pair}, s74")
        e(f"s_cselect_b32 s{dst}, s{t}, s{dst}")
    def alias_flag(v):
        e(f"v_mov_b32 v{v}, {FRONT_FLAG+60}")
        e(f"ds_read_b32 v{v}, v{v}")
        e("s_waitcnt lgkmcnt(0)")
        e(f"v_readfirstlane_b32 s74, v{v}")
        e("s_cmp_eq_u32 s74, 0")
        e(f"s_cselect_b32 s74, {0 if 'a' in X else 2}, 0")
    k.lines.append("Lmlp_compute:")
    k.role = "A"
    k.stamp(0)
    entry()
    def trcommon():
        e("v_bfe_u32 v3, v0, 2, 2")
        e("v_and_b32 v4, 3, v0")
        e("v_and_b32 v5, 1, v2")
        e("v_lshl_or_b32 v6, v5, 2, v3")
        e("v_lshl_add_u32 v7, v2, 3, v3")
        e("v_lshlrev_b32 v8, 8, v7")
        e("v_lshl_add_u32 v8, v4, 3, v8")

    trcommon()
    ACC = 16; FW = [128, 172]; FH = [156, 200]
    AH = [1, 2, 3, 4]; AW = [9, 10, 11]
    e("s_and_b32 s24, s10, 1")
    e("s_lshr_b32 s25, s10, 1")
    e("v_mul_u32_u24 v12, 448, v7")
    e("v_lshl_add_u32 v12, v4, 3, v12")
    e(f"v_add_u32 v12, {WOFF + 2*STG1}, v12")
    e(f"v_add_u32 v8, {2*STG1}, v8")
    e("v_lshl_add_u32 v13, v5, 5, v12")
    e("v_xor_b32 v14, 1, v5")
    e("v_lshl_add_u32 v14, v14, 5, v12")
    e("s_lshl_b32 s26, s25, 8")
    e("v_add_u32 v9, s26, v13")
    e("v_add_u32 v10, s26, v14")
    e("s_cmp_eq_u32 s25, 0")
    e("s_cselect_b64 vcc, -1, 0")
    e("v_cndmask_b32 v11, v14, v13, vcc")
    e("v_add_u32 v11, 192, v11")
    e("v_mov_b32 v15, v2")
    e("s_lshl_b32 s26, s24, 2")
    for j in range(4):
        e(f"s_add_u32 s27, s26, {j}")
        e(f"v_xor_b32 v12, s27, v6")
        e(f"v_lshl_add_u32 v{AH[j]}, v12, 5, v8")
    for i in range(112):
        e(f"v_mov_b32 v{ACC+i}, 0")
    alias_flag(12)
    k.srd(20, 8, 9, WS_BYTES)
    k.srd(44, 56, 57, 4*MB)
    def reads1(st, step):
        r = []
        for j in range(4):
            for h in range(2):
                r.append(f"ds_read_b64_tr_b16 {vr(FH[st]+4*j+2*h,2)}, v{AH[j]} offset:{8192*step+1024*h}")
        for i in range(7):
            a, o = (AW[i % 2], 64*(i//2)) if i < 6 else (AW[2], 0)
            for h in range(2):
                r.append(f"ds_read_b64_tr_b16 {vr(FW[st]+4*i+2*h,2)}, v{a} offset:{14336*step+1792*h+o}")
        return r
    def mfmas1(st):
        return [f"v_mfma_f32_16x16x32_bf16 {vr(ACC+4*(4*i+j),4)}, {vr(FW[st]+4*i,4)}, {vr(FH[st]+4*j,4)}, {vr(ACC+4*(4*i+j),4)}"
                for i in range(7) for j in range(4)]
    e("s_mov_b32 s28, 0")
    e("s_mov_b32 s29, 2")
    e("s_barrier")
    k.stamp(1)
    for r in reads1(0, 0): e(r)
    k.label("c1loop")
    sal = ["s_add_u32 s29, s29, 1", f"s_mov_b32 s30, {STG1}", "s_cmp_eq_u32 s29, 3", f"s_cselect_b32 s30, {-2*STG1}, s30",
           "s_cselect_b32 s29, 0, s29", "s_add_u32 s28, s28, 1"]
    weave(e, mfmas1(0), reads1(1, 1) + sal, waits={4*i: f"s_waitcnt lgkmcnt({min(15, 12+2*i)})" for i in range(7)}, sched=[1]*28)
    weave(e, mfmas1(1), [f"v_add_u32 v{a}, s30, v{a}" for a in AH + AW] + reads1(0, 0) + ["s_cmp_lt_u32 s28, 16"],
          waits={0: "s_waitcnt lgkmcnt(12)"}, mid=(4, ["s_waitcnt lgkmcnt(0)", "s_barrier"]), sched=[0]*4 + [2]*6 + [1]*18)
    e(f"s_cbranch_scc1 {k.L('c1loop')}")
    k.stamp(2)
    e("v_and_b32 v1, 15, v0")
    e("s_lshl_b32 s26, s24, 9")
    e(f"s_add_u32 s26, s26, {STATS}")
    e("v_lshl_add_u32 v1, v1, 3, s26")
    e("s_lshl_b32 s26, s25, 9")
    e(f"s_add_u32 s26, s26, {CSL}")
    e("v_lshl_add_u32 v2, v15, 4, s26")
    e("s_mul_i32 s26, s25, 64")
    e(f"s_add_u32 s26, s26, {CSL+384}")
    e("v_lshl_add_u32 v3, v15, 4, s26")
    e(f"v_mov_b32 v6, {MISC}")
    e("s_waitcnt lgkmcnt(0)")
    MR = 128; C2 = 136; CSV = 144
    e("ds_read_b32 v7, v6 offset:4")
    for j in range(4):
        e(f"ds_read_b64 {vr(MR+2*j,2)}, v1 offset:{128*j}")
    for i in range(7):
        e(f"ds_read_b128 {vr(CSV+4*i,4)}, v{2 if i < 6 else 3} offset:{64*i if i < 6 else 0}")
    e("s_lshl_b32 s26, s25, 12")
    e("v_lshl_add_u32 v4, v0, 4, s26")
    e("s_lshl_b32 s26, s25, 3")
    e("s_add_u32 s26, s26, 3072")
    e("v_lshl_add_u32 v5, v0, 4, s26")
    e("s_lshl_b32 s26, s24, 1")
    hbase(32, "s26", 60)
    e("s_add_u32 s26, s26, 1")
    hbase(34, "s26", 60)
    e("s_mul_i32 s27, s53, 7168")
    e("s_add_u32 s32, s32, s27")
    e("s_add_u32 s34, s34, s27")
    e(f"s_add_u32 s33, s32, {56*1024}")
    e(f"s_add_u32 s35, s34, {56*1024}")
    e("s_waitcnt lgkmcnt(0)")
    e("v_readfirstlane_b32 s54, v7")
    for j in range(4):
        e(f"v_mul_f32 v{C2+2*j}, 0xbfb8aa3b, v{MR+2*j+1}")
    e("s_and_b32 s26, s53, 1")
    e("s_lshl_b32 s27, s25, 2")
    e("s_sub_u32 s27, s27, s26")
    for n in range(4):
        if n < 3: e(f"s_add_u32 s60, s27, {n}")
        else:     e("s_sub_u32 s60, 3, s26")
        e("s_lshr_b32 s61, s60, 1")
        e("s_lshl_b32 s61, s61, 15")
        e("s_and_b32 s62, s60, 1")
        e("s_lshl_b32 s62, s62, 10")
        e("s_add_u32 s61, s61, s62")
        e("s_cmp_lt_u32 s60, 6")
        e(f"s_cselect_b32 s61, s61, {3*STG2}")
        e("s_lshl_b32 s62, s24, 13")
        e("s_add_u32 s61, s61, s62")
        if n == 3:
            e("s_lshl_b32 s62, s25, 3")
            e("s_add_u32 s61, s61, s62")
        e(f"v_lshl_add_u32 v{8+n}, v0, 4, s61")
    e("s_mov_b32 s58, 0xbfb8aa3b")
    e("s_mov_b32 s59, 0xbfb8aa3b")
    e("s_cmp_eq_u32 s54, 1")
    nsite = [0]
    def store2(ops):
        n = nsite[0]; nsite[0] += 1
        e(f"s_cbranch_scc1 {k.L(f'pl{n}')}")
        for o in ops: e(o + " sc1")
        e(f"s_branch {k.L(f'st{n}')}")
        k.label(f"pl{n}")
        for o in ops: e(o)
        k.label(f"st{n}")
    T = 172
    def elem8(tiles, out):
        P = T; Xr = T + 8
        def each(f):
            for n, (i, j) in enumerate(tiles):
                for h in range(2):
                    e(f(ACC + 4*(4*i+j) + 2*h, CSV + 4*i + 2*h, j, P + 4*n + 2*h, Xr + 4*n + 2*h))
        each(lambda a, c, j, p, x: f"v_pk_fma_f32 {vr(a,2)}, {vr(c,2)}, {vr(MR+2*j,2)}, {vr(a,2)} op_sel_hi:[1,0,1] neg_lo:[0,1,0] neg_hi:[0,1,0]")
        each(lambda a, c, j, p, x: f"v_pk_mul_f32 {vr(p,2)}, {vr(a,2)}, {vr(C2+2*j,2)} op_sel_hi:[1,0]")
        for q in range(8): e(f"v_exp_f32 v{Xr+q}, v{P+q}")
        each(lambda a, c, j, p, x: f"v_pk_fma_f32 {vr(x,2)}, {vr(x,2)}, s[58:59], s[58:59]")
        for q in range(8): e(f"v_rcp_f32 v{Xr+q}, v{Xr+q}")
        each(lambda a, c, j, p, x: f"v_pk_mul_f32 {vr(p,2)}, {vr(p,2)}, {vr(x,2)}")
        for q in range(4): e(f"v_cvt_pk_bf16_f32 v{out+q}, v{P+2*q}, v{P+2*q+1}")
    n = 0
    for j in range(4):
        for pr in range(3):
            o = 192 + 4*(n % 4); n += 1
            elem8([(2*pr, j), (2*pr+1, j)], o)
            e(f"ds_write_b128 v{8+pr}, {vr(o,4)} offset:{2048*j}")
            store2([f"buffer_store_dwordx4 {vr(o,4)}, v4, s[20:23], s{32+j} offen offset:{1024*pr}"])
        if j % 2 == 1:
            o = 192 + 4*(n % 4); n += 1
            elem8([(6, j-1), (6, j)], o)
            e(f"ds_write_b64 v11, {vr(o,2)} offset:{2048*(j-1)}")
            e(f"ds_write_b64 v11, {vr(o+2,2)} offset:{2048*j}")
            store2([f"buffer_store_dwordx2 {vr(o,2)}, v5, s[20:23], s{32+j-1} offen",
                    f"buffer_store_dwordx2 {vr(o+2,2)}, v5, s[20:23], s{32+j} offen"])
    k.stamp(3)

    NS = 4
    F0 = ACC + 64
    GW = [F0, F0 + 32]; GH = [F0 + 16, F0 + 48]
    BW = [8, 9, 10, 11]; BH = 12
    e("v_mov_b32 v2, v15")
    e("v_bfe_u32 v3, v0, 2, 2")
    e("v_and_b32 v4, 3, v0")
    e("v_lshl_add_u32 v7, v2, 2, v3")
    e("v_and_b32 v5, 7, v7")
    e("v_lshlrev_b32 v13, 8, v7")
    e("v_lshl_add_u32 v13, v4, 3, v13")
    e(f"v_add_u32 v13, {WOFF}, v13")
    e("s_lshl_b32 s26, s25, 2")
    for i in range(4):
        e(f"s_add_u32 s27, s26, {i}")
        e(f"v_xor_b32 v14, s27, v5")
        e(f"v_lshl_add_u32 v{BW[i]}, v14, 5, v13")
    e("s_lshl_b32 s26, s24, 12")
    e(f"v_lshl_add_u32 v{BH}, v0, 4, s26")
    for i in range(64):
        e(f"v_mov_b32 v{ACC+i}, 0")
    e("v_mov_b32 v13, 1")
    e("s_lshl_b32 s26, s2, 11")
    e(f"s_add_u32 s26, s26, 0x{HFL:x}")
    e("v_mov_b32 v14, 0")
    e("v_mov_b32 v216, s98")
    e("v_mov_b32 v217, s99")
    e("s_waitcnt vmcnt(0)")
    e("s_mov_b64 exec, 1")
    e("ds_add_rtn_u32 v1, v6, v13")
    e("s_waitcnt lgkmcnt(0)")
    e("v_readfirstlane_b32 s27, v1")
    e("s_cmp_eq_u32 s27, 3")
    e(f"s_cbranch_scc0 {k.L('noflag')}")
    e("s_cmp_eq_u32 s54, 1")
    store2(["buffer_store_dwordx2 v[216:217], v14, s[20:23], s26 offen"])
    k.label("noflag")
    e("s_mov_b64 exec, -1")
    e("v_bfe_u32 v6, v7, 1, 2")
    def hoff(j): return 2048*(j % 2) + 8192*(j // 2)
    def reads2(st, step):
        r = []
        for j in range(NS):
            r.append(f"ds_read_b128 {vr(GH[st]+4*j,4)}, v{BH} offset:{hoff(j)+1024*step}")
        for i in range(4):
            for h in range(2):
                r.append(f"ds_read_b64_tr_b16 {vr(GW[st]+4*i+2*h,2)}, v{BW[i]} offset:{8192*step+4096*h}")
        return r
    def mfmas2(st):
        return [f"v_mfma_f32_16x16x32_bf16 {vr(ACC+4*(NS*i+j),4)}, {vr(GW[st]+4*i,4)}, {vr(GH[st]+4*j,4)}, {vr(ACC+4*(NS*i+j),4)}"
                for i in range(4) for j in range(NS)]
    e("s_mov_b32 s28, 0")
    e("s_mov_b32 s29, 0")
    e("s_add_u32 s61, s12, s10")
    e("s_cmp_eq_u32 s61, 0")
    e(f"s_cselect_b32 s61, {WBAT}, 99")
    e("s_barrier")
    k.stamp(4)
    for r in reads2(0, 0): e(r)
    k.label("c2loop")
    sal = ["s_add_u32 s29, s29, 1", f"s_mov_b32 s30, {STG2}", f"s_cmp_eq_u32 s29, {NB2}", f"s_cselect_b32 s30, {-(NB2-1)*STG2}, s30",
           "s_cselect_b32 s29, 0, s29", "s_add_u32 s28, s28, 1"]
    weave(e, mfmas2(0), reads2(1, 1) + sal,
          waits={0: "s_waitcnt lgkmcnt(6)", 4: "s_waitcnt lgkmcnt(12)", 8: "s_waitcnt lgkmcnt(14)", 12: "s_waitcnt lgkmcnt(12)"},
          sched=[2]*6 + [1]*6)
    weave(e, mfmas2(1), [f"v_add_u32 v{a}, s30, v{a}" for a in [BH] + BW] + reads2(0, 0) + [f"s_cmp_lt_u32 s28, {NST2}"],
          waits={0: "s_waitcnt lgkmcnt(6)"}, mid=(4, ["s_waitcnt lgkmcnt(0)", "s_barrier"]), sched=[0]*4 + [2]*6 + [1]*6)
    if 'b' in X:
        e(f"s_cbranch_scc0 {k.L('c2done')}")
        e(f"s_cmp_eq_u32 s28, s61")
        e(f"s_cbranch_scc0 {k.L('c2loop')}")
        e("buffer_wbl2 sc1")
        e(f"s_branch {k.L('c2loop')}")
        k.label("c2done")
    else:
        e(f"s_cbranch_scc1 {k.L('c2loop')}")
    k.stamp(5)
    T = F0
    e("s_lshl_b32 s26, s2, 2")
    e("s_add_u32 s26, s26, s10")
    e("s_xor_b32 s27, s26, 4")
    e("s_lshl_b32 s31, s26, 12")
    e(f"s_add_u32 s31, s31, 0x{PART:x}")
    e("s_lshl_b32 s32, s27, 12")
    e(f"s_add_u32 s32, s32, 0x{PART:x}")
    e("s_lshl_b32 s35, s2, 11")
    e("s_lshl_b32 s36, s10, 7")
    e("s_add_u32 s35, s35, s36")
    e(f"s_add_u32 s35, s35, 0x{FLG:x}")
    e("s_xor_b32 s36, s35, 0x800")
    e("v_lshlrev_b32 v14, 4, v0")
    e("s_cmp_eq_u32 s15, 0")
    e(f"s_cbranch_scc1 {k.L('send_hi')}")
    for own in (1, 0):
        if own == 0: k.label("send_hi")
        for i in range(4):
            a0 = ACC + 4*(NS*i + 2*(1-own)); o = T + 48 + 4*i
            for q in range(4):
                e(f"v_cvt_pk_bf16_f32 v{o+q}, v{a0+2*q}, v{a0+2*q+1}")
            e(f"buffer_store_dwordx4 {vr(o,4)}, v14, s[20:23], s31 offen offset:{1024*i} sc1")
        if own == 1:
            for i in range(4):
                for q in range(8):
                    e(f"v_mov_b32 v{ACC+4*NS*i+q}, v{ACC+4*NS*i+8+q}")
            e(f"s_branch {k.L('sent')}")
    k.label("sent")
    e("v_lshlrev_b32 v13, 7, v7")
    e("v_lshl_add_u32 v13, v4, 3, v13")
    e("s_lshl_b32 s26, s25, 13")
    e(f"s_add_u32 s26, s26, {RES}")
    e("v_add_u32 v13, s26, v13")
    e("s_lshl_b32 s26, s24, 1")
    for j in range(2):
        e(f"s_add_u32 s27, s26, {j}")
        e(f"v_xor_b32 v15, s27, v6")
        e(f"v_lshl_add_u32 v{8+j}, v15, 5, v13")
    e("s_waitcnt lgkmcnt(0)")
    HR = T
    for i in range(4):
        for j in range(2):
            e(f"ds_read_b64_tr_b16 {vr(HR+2*(2*i+j),2)}, v{8+j} offset:{2048*i}")
    e("v_and_b32 v10, 15, v0")
    e("v_lshrrev_b32 v11, 1, v2")
    e("v_and_b32 v12, 7, v10")
    e("v_xor_b32 v11, v11, v12")
    e("v_lshlrev_b32 v11, 4, v11")
    e("v_lshl_add_u32 v11, v10, 7, v11")
    e("v_and_b32 v12, 1, v2")
    e("v_lshl_add_u32 v11, v12, 3, v11")
    e("s_lshl_b32 s26, s10, 12")
    e("v_add_u32 v3, s26, v11")
    e("v_xor_b32 v4, 32, v3")
    e("v_xor_b32 v5, 64, v3")
    e("v_xor_b32 v6, 96, v3")
    e("v_lshrrev_b32 v10, 3, v0")
    e("v_and_b32 v11, 7, v0")
    e("v_xor_b32 v12, v11, v10")
    e("v_lshlrev_b32 v12, 4, v12")
    e("v_lshl_add_u32 v12, v10, 7, v12")
    e("v_add_u32 v7, s26, v12")
    e("v_lshlrev_b32 v10, 11, v10")
    e("v_lshl_add_u32 v10, v11, 4, v10")
    e("s_lshl_b32 s26, s13, 7")
    e("s_lshl_b32 s27, s24, 5")
    e("s_add_u32 s26, s26, s27")
    e("s_lshl_b32 s27, s15, 6")
    e("s_add_u32 s26, s26, s27")
    e("s_lshl_b32 s26, s26, 11")
    e("s_lshl_b32 s27, s53, 8")
    e("s_add_u32 s26, s26, s27")
    e("s_lshl_b32 s27, s25, 7")
    e("s_add_u32 s48, s26, s27")
    for q in range(1, 4):
        e(f"s_add_u32 s{48+q}, s48, {q*8*2048}")
    PR = T + 16; U = PR + 16
    e("s_mov_b32 s37, 0xffff0000")
    e("s_waitcnt lgkmcnt(0)")
    for i in range(4):
        for j in range(2):
            n = 2*i + j; a = ACC + 4*(NS*i + j); u = U + 4*(n % 2)
            e(f"v_lshlrev_b32 v{u}, 16, v{HR+2*n}")
            e(f"v_and_b32 v{u+1}, s37, v{HR+2*n}")
            e(f"v_lshlrev_b32 v{u+2}, 16, v{HR+2*n+1}")
            e(f"v_and_b32 v{u+3}, s37, v{HR+2*n+1}")
            for h in range(2):
                e(f"v_pk_add_f32 {vr(a+2*h,2)}, {vr(a+2*h,2)}, {vr(u+2*h,2)}")
    e("v_mov_b32 v15, 0")
    e("s_waitcnt vmcnt(0)")
    e("s_mov_b64 exec, 1")
    e("buffer_store_dwordx2 v[216:217], v15, s[20:23], s35 offen sc1")
    e("s_mov_b32 s38, 0")
    k.label("poll")
    e("buffer_load_dwordx2 v[218:219], v15, s[20:23], s36 offen sc1")
    e("s_add_u32 s38, s38, 1")
    e("s_cmp_gt_u32 s38, 0x200000")
    e(f"s_cbranch_scc1 {k.L('polled')}")
    e("s_waitcnt vmcnt(0)")
    e("v_cmp_ne_u64 vcc, v[218:219], v[216:217]")
    e(f"s_cbranch_vccnz {k.L('poll')}")
    k.label("polled")
    k.stamp(6)
    e("s_mov_b64 exec, -1")
    for i in range(4):
        e(f"buffer_load_dwordx4 {vr(PR+4*i,4)}, v14, s[20:23], s32 offen offset:{1024*i} sc1")
    for i in range(4):
        for j in range(2):
            n = 2*i + j; a = ACC + 4*(NS*i + j); u = U + 4*(n % 2)
            if j == 0: e(f"s_waitcnt vmcnt({3-i})")
            e(f"v_lshlrev_b32 v{u}, 16, v{PR+2*n}")
            e(f"v_and_b32 v{u+1}, s37, v{PR+2*n}")
            e(f"v_lshlrev_b32 v{u+2}, 16, v{PR+2*n+1}")
            e(f"v_and_b32 v{u+3}, s37, v{PR+2*n+1}")
            for h in range(2):
                e(f"v_pk_add_f32 {vr(a+2*h,2)}, {vr(a+2*h,2)}, {vr(u+2*h,2)}")
            e(f"v_cvt_pk_bf16_f32 v{HR+2*n}, v{a}, v{a+1}")
            e(f"v_cvt_pk_bf16_f32 v{HR+2*n+1}, v{a+2}, v{a+3}")
            e(f"ds_write_b64 v{3+i}, {vr(HR+2*n,2)} offset:{2048*j}")
    e("s_waitcnt lgkmcnt(0)")
    for q in range(4):
        e(f"ds_read_b128 {vr(PR+4*q,4)}, v7 offset:{1024*q}")
    for q in range(4):
        e(f"s_waitcnt lgkmcnt({3-q})")
        e(f"buffer_store_dwordx4 {vr(PR+4*q,4)}, v10, s[44:47], s{48+q} offen")
    if STAMP:
        e("s_waitcnt vmcnt(0)")
        k.dump_stamps(1, 20, 10)
    k.dbg_out()
    e("s_add_u32 s26, s2, s10")
    e("s_cmp_eq_u32 s26, 0")
    e(f"s_cbranch_scc0 {k.L('fin')}")
    e("s_load_dwordx2 s[60:61], s[0:1], 80")
    e("v_mov_b32 v2, 0")
    e("v_mov_b32 v3, 0")
    e("s_waitcnt lgkmcnt(0)")
    k.srd(60, 60, 61, 256)
    e("s_mov_b64 exec, 1")
    e("buffer_store_dwordx2 v[2:3], v2, s[60:63], 0 offen sc1")
    k.label("fin")
    e("s_endpgm")

    k.lines.append("Lmlp_loader:")
    k.role = "B"
    k.stamp(0)
    entry()
    e("v_mov_b32 v216, s98")
    e("v_mov_b32 v217, s99")
    e("s_sub_u32 s24, s10, 4")
    VH = 16; VW = 20
    e("s_lshl_b32 s47, s24, 16")
    e("s_lshl_b32 s26, s13, 8")
    e("s_add_u32 s47, s47, s26")
    e(f"s_add_u32 s47, s47, 0x{HT:x}")
    e(f"s_mul_i32 s48, s24, {16*7168}")
    e("s_mul_i32 s27, s14, 448")
    e("s_add_u32 s48, s48, s27")
    e("s_add_u32 s36, s14, s13")
    if 'A' in X:
        e("s_and_b32 s36, s36, 3")
        e("s_and_b32 s37, s13, 12")
        e("s_and_b32 s49, s14, 12")
        e("s_add_u32 s37, s37, s49")
        e("s_add_u32 s36, s36, s37")
    e("s_and_b32 s36, s36, 15")
    e("s_mov_b32 s49, 0")
    e("s_lshl_b32 s25, s36, 18")
    e("s_add_u32 s25, s25, s47")
    e(f"s_mul_i32 s26, s36, {64*7168}")
    e("s_add_u32 s26, s26, s48")
    e("s_lshl_b32 s27, s24, 12")
    e("s_mul_i32 s28, s24, 7168")
    e(f"s_add_u32 s28, s28, {WOFF}")
    e("v_bfe_u32 v9, v0, 1, 3")
    e("v_and_b32 v10, 1, v0")
    e("v_lshlrev_b32 v10, 4, v10")
    e("v_lshl_add_u32 v10, v2, 12, v10")
    e("v_xor_b32 v9, v9, v2")
    for pp in range(4):
        if pp == 2: e("v_xor_b32 v9, 4, v9")
        e(f"v_lshl_add_u32 v{VH+pp}, v9, 5, v10")
        if pp: e(f"v_add_u32 v{VH+pp}, {pp*(16384-1024)}, v{VH+pp}")
    def wpat(q):
        e(f"v_add_u32 v9, {64*q}, v0")
        e("v_mul_u32_u24 v10, 9363, v9")
        e("v_lshrrev_b32 v10, 18, v10")
        e("v_mul_u32_u24 v11, 28, v10")
        e("v_sub_u32 v11, v9, v11")
        e("v_lshrrev_b32 v12, 2, v10")
        e("v_and_b32 v12, 2, v12")
        e("v_xor_b32 v11, v11, v12")
        e("v_mul_u32_u24 v12, 7168, v10")
        e("v_lshl_add_u32 v12, v11, 4, v12")
        e(f"v_add_u32 v{VW+q}, {-1024*(q%4)}, v12")
    for q in range(7): wpat(q)
    e("s_waitcnt lgkmcnt(0)")
    k.srd(20, 8, 9, WS_BYTES)
    k.srd(16, 4, 5, 1024*3584*2)
    def advance():
        e("s_add_u32 s49, s49, 1")
        e("s_add_u32 s37, s36, 1")
        e("s_and_b32 s37, s37, 3")
        e("s_and_b32 s36, s36, 12")
        e("s_or_b32 s36, s36, s37")
        e("s_and_b32 s37, s49, 3")
        e("s_cmp_eq_u32 s37, 0")
        e("s_cselect_b32 s37, 4, 0")
        e("s_add_u32 s36, s36, s37")
        e("s_and_b32 s36, s36, 15")
        e("s_lshl_b32 s25, s36, 18")
        e("s_add_u32 s25, s25, s47")
        e(f"s_mul_i32 s26, s36, {64*7168}")
        e("s_add_u32 s26, s26, s48")
    def hpart(so, m0):
        e(m0); e("s_nop 0")
        for pp in range(4):
            e(f"buffer_load_dwordx4 v{VH+pp}, s[20:23], {so} offen offset:{1024*pp}{HSC} lds")
    def wpart(buf, pol=""):
        e(f"s_add_u32 m0, s28, {buf}"); e("s_nop 0")
        for q in range(7):
            if q == 4: e(f"s_add_u32 m0, s28, {buf+4096}"); e("s_nop 0")
            e(f"buffer_load_dwordx4 v{VW+q}, s[16:19], s26 offen offset:{1024*(q%4)}{pol} lds")
    def htouch(sb="s24"):
        e("s_mov_b32 s74, 0")
        e(f"s_lshr_b32 s75, {sb}, 1")
        e("s_add_u32 s75, s75, 2")
        hbase(76, "s75", 60)
        e(f"s_and_b32 s60, {sb}, 1")
        e(f"s_mul_i32 s60, s60, {56*1024}")
        e("s_add_u32 s76, s76, s60")
        e("s_mul_i32 s60, s53, 7168")
        e("s_add_u32 s76, s76, s60")
        e("v_lshlrev_b32 v30, 7, v0")
        e("v_min_u32 v30, 7040, v30")
        e(f"buffer_load_dword v210, v30, s[20:23], s76 offen{HPOL}")
    e("s_cmp_ge_u32 s24, 2")
    e(f"s_cbranch_scc1 {k.L('now0')}")
    wpart(2*STG1, " nt" if 'N' in X else "")
    e(f"s_add_u32 s26, s26, {32*7168}")
    wpart(2*STG1 + 2*7168, " nt" if 'N' in X else "")
    if 'C' in X:
        htouch("s24")
        e("s_add_u32 s77, s24, 2")
        htouch("s77")
    k.label("now0")
    e("s_mov_b32 s50, s25")
    e("s_mov_b32 s62, s36")
    advance()
    e("v_lshrrev_b32 v9, 3, v0")
    e("v_lshlrev_b32 v9, 11, v9")
    e("v_bfe_u32 v10, v0, 2, 1")
    e("v_lshl_add_u32 v9, v10, 18, v9")
    e("v_and_b32 v10, 3, v0")
    e("v_lshl_add_u32 v38, v10, 14, v9")
    e("s_lshl_b32 s52, s24, 16")
    e(f"s_add_u32 s52, s52, 0x{FHT:x}")
    e("s_mov_b64 s[58:59], 0")
    e("s_mov_b32 s39, 0")
    e(f"v_mov_b32 v35, {FRONT_FLAG+(52 if 'E' not in X else 48)}")
    k.label("waitF")
    e("s_sleep 1")
    e("ds_read_b32 v34, v35")
    e("s_waitcnt lgkmcnt(0)")
    e(f"v_cmp_gt_u32 vcc, {8 if 'E' not in X else 4}, v34")
    e(f"s_cbranch_vccnz {k.L('waitF')}")
    nneed = [0]
    def need(stage, narrow=False):
        n = nneed[0]; nneed[0] += 1
        if narrow:
            e(f"s_lshl_b32 s60, {stage}, 2")
            if 'W' in X:
                e("s_and_b32 s60, s60, 48")
                e("s_mov_b64 s[66:67], 0xffff")
                e("s_lshl_b64 s[66:67], s[66:67], s60")
            else:
                e("s_lshl_b64 s[66:67], 15, s60")
        k.label(f"need{n}")
        e(f"s_lshl_b32 s60, {stage}, 2")
        e("s_lshr_b64 s[60:61], s[58:59], s60")
        e("s_and_b32 s60, s60, 15")
        e("s_cmp_eq_u32 s60, 15")
        e(f"s_cbranch_scc1 {k.L(f'have{n}')}")
        if narrow: e("s_mov_b64 exec, s[66:67]")
        e("buffer_load_dwordx2 v[100:101], v38, s[20:23], s52 offen sc1")
        if narrow: e("s_mov_b64 exec, -1")
        e("s_add_u32 s39, s39, 1")
        e("s_cmp_gt_u32 s39, 0x100000")
        e(f"s_cbranch_scc1 {k.L(f'have{n}')}")
        e("s_waitcnt vmcnt(0)")
        e("v_cmp_eq_u64 vcc, v[100:101], v[216:217]")
        e("s_or_b64 s[58:59], s[58:59], vcc")
        e(f"s_branch {k.L(f'need{n}')}")
        k.label(f"have{n}")
    e("v_mov_b32 v100, 0")
    need("s62", narrow='R' in X)
    k.stamp(5)
    k.note("s39", 17)
    hpart("s50", f"s_add_u32 m0, s27, {2*STG1}")
    wpart(0, " nt" if 'M' in X else "")
    e("s_waitcnt vmcnt(7)")
    e("s_barrier")
    need("s36", narrow='R' in X)
    hpart("s25", "s_mov_b32 m0, s27")
    advance()
    if 'W' in X:
        e("buffer_load_dwordx2 v[102:103], v38, s[20:23], s52 offen sc1")
    e(f"s_mov_b32 s29, {STG1}")
    k.srd(40, 6, 7, 1024*3584*2)
    e("s_lshl_b32 s63, s2, 2")
    e("s_add_u32 s63, s63, s24")
    e(f"s_mul_i32 s63, s63, {56*128}")
    if 'h' in X: e(f"s_add_u32 s63, s63, {28*128}")
    e("v_lshlrev_b32 v39, 7, v0")
    def issue1(first=False):
        need("s36", narrow=('Q' in X) or (first and 'W' in X))
        e("s_add_u32 m0, s27, s29")
        e("s_add_u32 s30, s28, s29")
        for pp in range(4):
            e(f"buffer_load_dwordx4 v{VH+pp}, s[20:23], s25 offen offset:{1024*pp}{HSC} lds")
        e("s_mov_b32 m0, s30")
        e("s_nop 0")
        for q in range(4):
            e(f"buffer_load_dwordx4 v{VW+q}, s[16:19], s26 offen offset:{1024*q} lds")
        e("s_add_u32 m0, s30, 4096")
        e(f"s_add_u32 s29, s29, {STG1}")
        for q in range(4, 7):
            e(f"buffer_load_dwordx4 v{VW+q}, s[16:19], s26 offen offset:{1024*(q-4)} lds")
        if TR:
            e(f"s_mov_b64 exec, {'0x7' if 'h' in X else '0x1f'}")
            e("buffer_load_dword v210, v39, s[40:43], s63 offen")
            e("s_mov_b64 exec, -1")
            e(f"s_add_u32 s63, s63, {384 if 'h' in X else 640}")
        e(f"s_cmp_eq_u32 s29, {NB1*STG1}")
        e("s_cselect_b32 s29, 0, s29")
        advance()
    k.stamp(1)
    issue1(first=True)
    trcommon()
    e("s_lshl_b32 s31, s24, 1")
    e("v_xor_b32 v12, s31, v6")
    e("v_lshl_add_u32 v36, v12, 5, v8")
    e(f"v_add_u32 v36, {2*STG1}, v36")
    e("v_xor_b32 v37, 32, v36")
    S = [40, 42]; Q = [44, 46]
    for r in range(40, 48): e(f"v_mov_b32 v{r}, 0")
    e("s_mov_b32 s33, 0xffff0000")
    D = 48; U = 64
    for t in range(2):
        for st in range(2):
            for h in range(2):
                e(f"ds_read_b64_tr_b16 {vr(D+8*t+4*st+2*h,2)}, v{36+t} offset:{8192*st+1024*h}")
    e("s_waitcnt lgkmcnt(0)")
    for j in range(8):
        for t in range(2):
            u = U + 2*t
            e(f"v_lshlrev_b32 v{u}, 16, v{D+8*t+j}")
            e(f"v_and_b32 v{u+1}, s33, v{D+8*t+j}")
        for t in range(2):
            u = U + 2*t
            for q in range(2):
                e(f"v_add_f32 v{S[t]+q}, v{S[t]+q}, v{u+q}")
                e(f"v_fmac_f32 v{Q[t]+q}, v{u+q}, v{u+q}")
    def greduce(regs):
        for op in ("v_permlane32_swap_b32", "v_permlane16_swap_b32"):
            for i, r in enumerate(regs): e(f"v_mov_b32 v{D+i}, v{r}")
            e("s_nop 1")
            for i, r in enumerate(regs): e(f"{op} v{r}, v{D+i}")
            e("s_nop 1")
            for i, r in enumerate(regs): e(f"v_add_f32 v{r}, v{r}, v{D+i}")
    for r in S + Q: e(f"v_add_f32 v{r}, v{r}, v{r+1}")
    greduce(S + Q)
    e("v_cmp_gt_u32 vcc, 16, v0")
    e("s_lshl_b32 s31, s13, 15")
    e("s_lshl_b32 s32, s24, 9")
    e("s_add_u32 s31, s31, s32")
    e(f"s_add_u32 s31, s31, 0x{SP2:x}")
    e("s_lshl_b32 s32, s14, 11")
    e("s_add_u32 s32, s32, s31")
    e(f"v_cndmask_b32 v214, v{S[1]}, v{S[0]}, vcc")
    e(f"v_cndmask_b32 v215, v{Q[1]}, v{Q[0]}, vcc")
    e("v_lshlrev_b32 v9, 4, v0")
    e("s_mov_b64 exec, 0xffffffff")
    e("buffer_store_dwordx4 v[214:217], v9, s[20:23], s32 offen sc1")
    e("s_mov_b64 exec, -1")
    e("v_mul_u32_u24 v12, 448, v7")
    e("v_lshl_add_u32 v12, v4, 3, v12")
    e("s_lshl_b32 s32, s24, 7")
    e(f"s_add_u32 s32, s32, {WOFF + 2*STG1}")
    e("v_add_u32 v12, s32, v12")
    e("v_lshl_add_u32 v13, v5, 5, v12")
    e("v_xor_b32 v14, 1, v5")
    e("v_lshl_add_u32 v14, v14, 5, v12")
    CW = 68
    for t in range(4):
        for st in range(2):
            for h in range(2):
                e(f"ds_read_b64_tr_b16 {vr(CW+8*t+4*st+2*h,2)}, v{13 + t%2} offset:{14336*st+1792*h+64*(t//2)}")
        if t == 2: e("s_waitcnt lgkmcnt(8)")
    for r in range(40, 48): e(f"v_mov_b32 v{r}, 0")
    e("s_waitcnt lgkmcnt(0)")
    for j in range(8):
        for t in range(4):
            e(f"v_lshlrev_b32 v{U}, 16, v{CW+8*t+j}")
            e(f"v_and_b32 v{U+1}, s33, v{CW+8*t+j}")
            e(f"v_add_f32 v{40+t}, v{40+t}, v{U}")
            e(f"v_add_f32 v{44+t}, v{44+t}, v{U+1}")
    for t in range(4): e(f"v_add_f32 v{40+t}, v{40+t}, v{44+t}")
    greduce([40, 41, 42, 43])
    e("v_cmp_gt_u32 vcc, 16, v0")
    e("s_lshl_b32 s32, s14, 4")
    e("s_add_u32 s32, s32, s13")
    e("s_lshl_b32 s32, s32, 11")
    e("s_lshl_b32 s34, s24, 9")
    e("s_add_u32 s32, s32, s34")
    e(f"s_add_u32 s32, s32, 0x{CP:x}")
    e("v_cndmask_b32 v214, v42, v40, vcc")
    e("v_cndmask_b32 v215, v43, v41, vcc")
    e("s_mov_b64 exec, 0xffffffff")
    e("buffer_store_dwordx4 v[214:217], v9, s[20:23], s32 offen sc1")
    e("s_mov_b64 exec, -1")
    e("s_mov_b32 s35, 0")
    k.label("l1loop")
    e("s_cmp_eq_u32 s35, 0")
    e(f"s_cbranch_scc1 {k.L('lw20')}")
    e("s_cmp_eq_u32 s35, 1")
    e(f"s_cbranch_scc1 {k.L('lw12')}")
    e(f"s_waitcnt vmcnt({11 + 2*TR})")
    k.label("lw12")
    e(f"s_waitcnt vmcnt({13 + 2*TR})")
    if 'W' in X:
        e("v_cmp_eq_u64 vcc, v[102:103], v[216:217]")
        e("s_or_b64 s[58:59], s[58:59], vcc")
    k.label("lw20")
    e(f"s_waitcnt vmcnt({13 + TR})")
    e("s_barrier")
    e("s_cmp_ge_u32 s35, 13")
    e(f"s_cbranch_scc1 {k.L('l1done')}")
    if 'D' in X or 'G' in X:
        e(f"s_mul_i32 s60, s24, {3 if 'D' in X else 6}")
        e(f"s_add_u32 s60, s60, {2 if 'D' in X else 3}")
        e("s_cmp_eq_u32 s35, s60")
        e(f"s_cbranch_scc0 {k.L('noht')}")
        htouch()
        k.label("noht")
    issue1()
    e("s_add_u32 s35, s35, 1")
    e(f"s_branch {k.L('l1loop')}")
    k.label("l1done")
    if 'H' in X: htouch()
    k.stamp(2)
    e("s_lshl_b32 s33, s14, 15")
    e("s_lshl_b32 s34, s24, 9")
    e("s_add_u32 s33, s33, s34")
    e(f"s_add_u32 s33, s33, 0x{CP:x}")
    e("v_and_b32 v10, 31, v0")
    e("v_lshlrev_b32 v9, 4, v10")
    e("v_lshrrev_b32 v11, 5, v0")
    e("v_lshl_add_u32 v9, v11, 11, v9")
    e("v_and_b32 v11, 7, v0")
    e("v_lshlrev_b32 v11, 16, v11")
    e("s_and_b32 s34, s2, 31")
    e("s_lshl_b32 s34, s34, 11")
    e(f"s_add_u32 s50, s34, 0x{XID:x}")
    e(f"s_add_u32 s51, s34, 0x{HFL:x}")
    e("s_mov_b32 s39, 0")
    G = 68
    k.label("spoll")
    e("s_mov_b32 s32, s31")
    for q in range(8):
        e(f"buffer_load_dwordx4 {vr(G+4*q,4)}, v9, s[20:23], s32 offen sc1")
        e("s_add_u32 s32, s32, 4096")
    e("s_mov_b32 s32, s33")
    for q in range(8):
        e(f"buffer_load_dwordx4 {vr(G+32+4*q,4)}, v9, s[20:23], s32 offen sc1")
        e("s_add_u32 s32, s32, 4096")
    e("buffer_load_dwordx3 v[64:66], v11, s[20:23], s50 offen sc1")
    e("s_add_u32 s39, s39, 1")
    e("s_cmp_gt_u32 s39, 0x100000")
    e(f"s_cbranch_scc1 {k.L('spolled')}")
    e("s_waitcnt vmcnt(0)")
    e("v_cmp_ne_u64 s[44:45], v[64:65], v[216:217]")
    for q in range(16):
        e(f"v_cmp_ne_u64 vcc, {vr(G+4*q+2,2)}, v[216:217]")
        e("s_or_b64 s[44:45], s[44:45], vcc")
    e("s_cmp_lg_u64 s[44:45], 0")
    e(f"s_cbranch_scc1 {k.L('spoll')}")
    k.label("spolled")
    e("s_waitcnt vmcnt(0)")
    if 'I' in X: htouch()
    if 'G' in X:
        e("s_cmp_lt_u32 s24, 2")
        e(f"s_cbranch_scc1 {k.L('noht2')}")
        htouch()
        k.label("noht2")
    if 'w' not in X:
        e("s_lshl_b32 s60, s2, 2")
        e("s_add_u32 s60, s60, s24")
        e(f"s_mul_i32 s60, s60, {56*128}")
        e("v_lshlrev_b32 v30, 7, v0")
        e(f"s_mov_b64 exec, {hex((1 << WL) - 1) if WL <= 32 else -1}")
        e("buffer_load_dword v210, v30, s[40:43], s60 offen")
        e("s_mov_b64 exec, -1")
    e("v_cmp_ne_u32 vcc, s55, v66")
    for q in range(1, 8):
        for j in range(2):
            e(f"v_add_f32 v{40+j}, v{G+j if q == 1 else 40+j}, v{G+4*q+j}")
            e(f"v_add_f32 v{42+j}, v{G+32+j if q == 1 else 42+j}, v{G+32+4*q+j}")
    e("s_cmp_eq_u64 vcc, 0")
    e("s_cselect_b32 s54, 1, 2")
    if 'f' in X: e("s_mov_b32 s54, 2")
    for i in range(4): e(f"v_mov_b32 v{D+i}, v{40+i}")
    e("s_nop 1")
    for i in range(4): e(f"v_permlane32_swap_b32 v{40+i}, v{D+i}")
    e("s_nop 1")
    for i in range(4): e(f"v_add_f32 v{40+i}, v{40+i}, v{D+i}")
    ln_stats(k, [40], [41], [56], [57], [60])
    e("s_lshl_b32 s31, s24, 8")
    e(f"s_add_u32 s31, s31, {STATS}")
    e("v_lshl_add_u32 v9, v10, 3, s31")
    e("ds_write_b64 v9, v[56:57]")
    e(f"v_mov_b32 v9, {MISC}")
    e("v_mov_b32 v62, 0")
    e("v_mov_b32 v63, s54")
    e("ds_write_b64 v9, v[62:63]")
    e("v_and_b32 v9, 15, v0")
    e("v_and_b32 v12, 16, v0")
    e("v_lshl_add_u32 v9, v12, 1, v9")
    e("s_lshl_b32 s31, s24, 8")
    e(f"s_add_u32 s31, s31, {CSL}")
    e("v_lshl_add_u32 v9, v9, 2, s31")
    e("ds_write_b32 v9, v42")
    e("ds_write_b32 v9, v43 offset:64")
    e("s_waitcnt lgkmcnt(0)")
    e("s_barrier")
    VA = 16; VW2 = 18; VR = 22
    e(f"v_lshlrev_b32 v{VA}, 4, v0")
    e(f"v_add_u32 v{VA+1}, {56*1024-2048}, v{VA}")
    e("v_bfe_u32 v9, v0, 1, 3")
    e("v_and_b32 v10, 1, v0")
    e("v_lshlrev_b32 v10, 4, v10")
    e("v_lshl_add_u32 v10, v2, 11, v10")
    e("v_xor_b32 v9, v9, v2")
    e("v_xor_b32 v12, 4, v9")
    for pp in range(4):
        e(f"v_lshl_add_u32 v{VW2+pp}, v{9 if pp % 2 == 0 else 12}, 5, v10")
        if pp: e(f"v_add_u32 v{VW2+pp}, {pp*(8192-1024)}, v{VW2+pp}")
    e("v_bfe_u32 v9, v0, 1, 2")
    e("v_xor_b32 v9, v9, v2")
    e("v_and_b32 v10, 1, v0")
    e("v_lshlrev_b32 v10, 4, v10")
    e("v_lshl_add_u32 v10, v9, 5, v10")
    e("v_lshrrev_b32 v9, 3, v0")
    e(f"v_lshl_add_u32 v{VR}, v9, 12, v10")
    for pp in range(1, 4):
        e(f"v_add_u32 v{VR+pp}, {pp*(32768-1024)}, v{VR}")
    alias_flag(9)
    hbase(47, "s24", 60)
    e("s_mul_i32 s48, s15, 1792")
    e("s_lshl_b32 s27, s24, 4")
    e("s_add_u32 s48, s48, s27")
    e("s_lshl_b32 s48, s48, 11")
    e("s_lshl_b32 s27, s53, 8")
    e("s_add_u32 s48, s48, s27")
    e("s_mul_i32 s36, s53, 7")
    e("s_add_u32 s36, s36, 1")
    e("s_lshr_b32 s36, s36, 1")
    e("s_lshl_b32 s27, s24, 12")
    e(f"s_add_u32 s28, s27, {WOFF}")
    e("s_lshr_b32 s62, s11, 1")
    e("s_mul_i32 s62, s62, 3")
    e("s_lshr_b32 s62, s62, 1")
    e("s_lshl_b32 s62, s62, 2")
    e(f"s_min_u32 s52, s36, {NST2-4}")
    def st_of(n):
        e(f"s_add_u32 s37, s36, {n}")
        e(f"s_cmp_ge_u32 s37, {NST2}")
        e(f"s_cselect_b32 s38, {4 if 'F' not in X else NST2}, 0")
        e("s_sub_u32 s37, s37, s38")
    e("s_barrier")
    k.stamp(3)
    def wpart2(n):
        st_of(n)
        e("s_lshl_b32 s26, s37, 17")
        e("s_add_u32 s26, s26, s48")
        e(f"s_add_u32 m0, s28, {n*STG2}")
        e("s_nop 0")
        for pp in range(4):
            e(f"buffer_load_dwordx4 v{VW2+pp}, s[40:43], s26 offen offset:{1024*pp}{NT2} lds")
    wpart2(0); wpart2(1); wpart2(2)
    if 'P' in X:
        e("s_lshl_b32 s31, s2, 2")
        e("s_add_u32 s31, s31, s24")
        e("s_lshl_b32 s31, s31, 12")
        e(f"s_add_u32 s31, s31, 0x{PART:x}")
        e("v_lshlrev_b32 v9, 6, v0")
        e("buffer_load_dword v210, v9, s[20:23], s31 offen sc1")
    wpart2(3)
    e("s_lshl_b32 s31, s53, 7")
    e("s_lshl_b32 s32, s24, 5")
    e("s_add_u32 s31, s31, s32")
    e("s_lshl_b32 s31, s31, 12")
    e("s_lshl_b32 s32, s13, 8")
    e("s_add_u32 s31, s31, s32")
    e("s_lshl_b32 s32, s15, 7")
    e("s_add_u32 s31, s31, s32")
    e(f"s_add_u32 s31, s31, 0x{HT:x}")
    e(f"s_add_u32 m0, s27, {RES}")
    e("s_nop 0")
    for pp in range(4):
        e(f"buffer_load_dwordx4 v{VR+pp}, s[20:23], s31 offen offset:{1024*pp} lds")
    def hpart2(n):
        st_of(n)
        e("s_lshl_b32 s25, s37, 11")
        e("s_add_u32 s25, s25, s47")
        e(f"s_add_u32 m0, s27, {n*STG2}")
        e("s_nop 0")
        for pp in range(4):
            e(f"buffer_load_dwordx4 v{VA+pp//2}, s[20:23], s25 offen offset:{1024*pp}{' nt' if 'T' in X else ''} lds")
    e(f"s_waitcnt vmcnt({17 if 'P' in X else 16})")
    k.stamp(4)
    e("s_barrier")
    e("s_mov_b32 s39, 0")
    e("s_mov_b64 exec, 0xff")
    k.label("hpoll")
    e("buffer_load_dwordx2 v[64:65], v11, s[20:23], s51 offen sc1")
    e("s_add_u32 s39, s39, 1")
    e("s_cmp_gt_u32 s39, 0x100000")
    e(f"s_cbranch_scc1 {k.L('hpolled')}")
    e("s_waitcnt vmcnt(0)")
    e("v_cmp_ne_u64 vcc, v[64:65], v[216:217]")
    e(f"s_cbranch_vccnz {k.L('hpoll')}")
    k.label("hpolled")
    e("s_mov_b64 exec, -1")
    hpart2(3)
    e("s_mov_b32 s29, 0")
    e(f"s_mov_b32 s35, {NB2}")
    def issue2():
        e("s_add_u32 s37, s35, s13")
        e(f"s_and_b32 s37, s37, {RW-1}")
        e(f"s_andn2_b32 s38, s35, {RW-1}")
        e("s_or_b32 s37, s37, s38")
        if 'F' in X:
            st_of("s37")
        else:
            e("s_sub_u32 s37, s37, 4")
            if 'g' not in X:
                e("s_add_u32 s37, s37, s62")
                e(f"s_cmp_ge_u32 s37, {NST2-4}")
                e(f"s_cselect_b32 s38, {NST2-4}, 0")
                e("s_sub_u32 s37, s37, s38")
            e("s_cmp_ge_u32 s37, s52")
            e("s_cselect_b32 s38, 4, 0")
            e("s_add_u32 s37, s37, s38")
        e("s_lshl_b32 s25, s37, 11")
        e("s_add_u32 s25, s25, s47")
        e("s_lshl_b32 s26, s37, 17")
        e("s_add_u32 m0, s27, s29")
        e("s_add_u32 s26, s26, s48")
        for pp in range(4):
            e(f"buffer_load_dwordx4 v{VA+pp//2}, s[20:23], s25 offen offset:{1024*pp}{' nt' if 'T' in X else ''} lds")
        e("s_add_u32 m0, s28, s29")
        e(f"s_add_u32 s29, s29, {STG2}")
        for pp in range(4):
            e(f"buffer_load_dwordx4 v{VW2+pp}, s[40:43], s26 offen offset:{1024*pp}{NT2} lds")
        e(f"s_and_b32 s29, s29, {NB2*STG2-1}")
        e("s_add_u32 s35, s35, 1")
    e("s_barrier")
    issue2()
    e("s_waitcnt vmcnt(12)")
    e("s_barrier")
    issue2()
    k.label("l2loop")
    e("s_waitcnt vmcnt(16)")
    e("s_barrier")
    issue2()
    e(f"s_cmp_lt_u32 s35, {NST2}")
    e(f"s_cbranch_scc1 {k.L('l2loop')}")
    for i in range(NST2-NB2, NST2):
        left = max(NST2 - 1 - (i + 1), 0)
        e(f"s_waitcnt vmcnt({left*8})")
        e("s_barrier")
    k.dump_stamps(1, 20, 10)
    e("s_endpgm")
```

```python
import os
STAMP = int(os.environ.get('STAMP', '0'))
TS = 200 << 20
PH = os.environ.get('PH', '').split(',') if os.environ.get('PH') else None
DBG = int(os.environ.get('DBG', '0'))
WT = os.environ.get('WT', '')
WT = (' ' + WT) if WT else ''
class Kern:
    def __init__(self, name, grid, block, lds, nvgpr, nsgpr=102, accum=None, nagpr=0):
        self.name = name; self.grid = grid; self.block = block; self.lds = lds
        self.nvgpr = nvgpr; self.nsgpr = nsgpr; self.nagpr = nagpr
        self.accum = accum if accum is not None else (nvgpr + 3) // 4 * 4
        self.lines = []
        self.uid = 0
        self.pfx = ""
        self.role = "A"
        self.dbgmap = {("f_", "A", 2): 2, ("f_", "A", 4): 3, ("f_", "A", 5): 4, ("f_", "A", 6): 5, ("m_", "A", 0): 6, ("m_", "A", 1): 7,
                       ("m_", "A", 2): 8, ("m_", "A", 3): 9, ("m_", "A", 4): 10, ("m_", "A", 5): 11, ("m_", "A", 6): 12, ("m_", "A", 7): 13}
    def e(self, s):
        for ln in s.strip("\n").split("\n"):
            ln = ln.strip()
            if ln:
                self.lines.append("    " + ln)
    def c(self, s):
        self.lines.append("    ; " + s)
    def label(self, l):
        self.lines.append(f"{self.L(l)}:")
    def L(self, l):
        return f"L{self.name[:6]}_{self.pfx}{l}"
    def srd(self, d, lo, hi, nbytes):
        self.e(f"s_mov_b32 s{d}, s{lo}")
        self.e(f"s_and_b32 s{d+1}, s{hi}, 0xffff")
        self.e(f"s_mov_b32 s{d+2}, 0x{nbytes:x}")
        self.e(f"s_mov_b32 s{d+3}, 0x20000")
    def stamp(self, i):
        if PH and self.role == "A":
            nm = self.pfx[0] + str(i)
            for w, p in enumerate(PH[:2]):
                if p == nm:
                    self.e(f"s_memrealtime s[{78+2*w}:{79+2*w}]")
                    self.e("s_waitcnt lgkmcnt(0)")
        if DBG and self.dbgmap.get((self.pfx, self.role, i)) is not None:
            self.e("s_memrealtime s[96:97]")
            self.e("s_waitcnt lgkmcnt(0)")
            self.e(f"v_writelane_b32 v220, s96, {self.dbgmap[(self.pfx, self.role, i)]}")
        if not STAMP: return
        ln = i + (8 if self.pfx == "m_" else 0)
        self.e("s_memrealtime s[96:97]")
        self.e("s_memtime s[94:95]")
        self.e("s_waitcnt lgkmcnt(0)")
        self.e(f"v_writelane_b32 v220, s96, {ln}")
        self.e(f"v_writelane_b32 v221, s94, {ln}")
    def note(self, sreg, ln):
        if STAMP: self.e(f"v_writelane_b32 v220, {sreg}, {ln}")
    def dump_stamps(self, kid, srd, wave_sreg, n=8, keep=False):
        if not STAMP: return
        self.stamp(n - 1)
        if keep: return
        self.e("s_mov_b64 exec, 0xffffffff")
        self.e("s_lshl_b32 s100, s2, 3")
        self.e(f"s_add_u32 s100, s100, s{wave_sreg}")
        self.e("s_lshl_b32 s100, s100, 8")
        self.e(f"s_add_u32 s100, s100, 0x{TS:x}")
        self.e("v_lshlrev_b32 v222, 2, v0")
        self.e(f"buffer_store_dword v220, v222, s[{srd}:{srd+3}], s100 offen")
        self.e(f"buffer_store_dword v221, v222, s[{srd}:{srd+3}], s100 offen offset:128")
    def dbg_out(self):
        if not DBG: return
        e = self.e
        e("s_waitcnt vmcnt(0)")
        self.stamp(7)
        e("s_cmp_eq_u32 s10, 0")
        e("s_cbranch_scc0 Ldbg_skip")
        e("s_load_dwordx2 s[60:61], s[0:1], 80")
        e("s_waitcnt lgkmcnt(0)")
        self.srd(60, 60, 61, 256)
        e("v_subrev_u32 v220, s98, v220")
        e("v_lshlrev_b32 v221, 2, v0")
        e("s_mov_b64 exec, 0x3ffc")
        e("buffer_atomic_add v220, v221, s[60:63], 0 offen sc1")
        e("s_mov_b64 exec, 0x2000")
        e("buffer_atomic_umax v220, v221, s[60:63], 0 offen offset:8 sc1")
        e("s_mov_b64 exec, 0x40")
        e("buffer_atomic_umax v220, v221, s[60:63], 0 offen offset:32 sc1")
        self.lines.append("Ldbg_skip:")
    def ph_end(self):
        if not PH: return
        e = self.e
        e("s_waitcnt vmcnt(0)")
        self.stamp(7)
        e("s_add_u32 s26, s2, s10")
        e("s_cmp_eq_u32 s26, 0")
        e("s_cbranch_scc0 Lph_skip")
        e("s_sub_u32 s78, s80, s78")
        e("s_lshl_b32 s78, s78, 2")
        e("s_memrealtime s[82:83]")
        e("s_waitcnt lgkmcnt(0)")
        self.lines.append("Lph_loop:")
        e("s_memrealtime s[84:85]")
        e("s_waitcnt lgkmcnt(0)")
        e("s_sub_u32 s84, s84, s82")
        e("s_cmp_lt_u32 s84, s78")
        e("s_cbranch_scc1 Lph_loop")
        self.lines.append("Lph_skip:")
    def clear_stamps(self):
        if PH: self.stamp(0)
        if not STAMP: return
        self.e("v_mov_b32 v220, 0")
        self.e("v_mov_b32 v221, 0")
        self.stamp(0)
    def text(self):
        out = [f".globl {self.name}", ".p2align 8", f".type {self.name},@function", f"{self.name}:"]
        out += self.lines
        return "\n".join(out) + "\n"
    def desc(self):
        nfv = self.accum + self.nagpr if self.nagpr else self.nvgpr
        return f""".amdhsa_kernel {self.name}
  .amdhsa_next_free_vgpr {nfv}
  .amdhsa_next_free_sgpr {self.nsgpr}
  .amdhsa_accum_offset {self.accum}
  .amdhsa_group_segment_fixed_size 0
  .amdhsa_kernarg_size 96
  .amdhsa_user_sgpr_count 2
  .amdhsa_user_sgpr_kernarg_segment_ptr 1
  .amdhsa_system_sgpr_workgroup_id_x 1
.end_amdhsa_kernel
"""

def vr(a, n):
    return f"v[{a}:{a+n-1}]" if n > 1 else f"v{a}"
def ar(a, n):
    return f"a[{a}:{a+n-1}]" if n > 1 else f"a{a}"
def sr(a, n):
    return f"s[{a}:{a+n-1}]" if n > 1 else f"s{a}"

HEADER = """; Kernarg layout (96 bytes, ptrs only, base s[0:1]):
;   0 A_q  8 A_k  16 A_v  24 A_shift_k  32 A_ssm_k  40 A_ssm_D  48 B_x  56 B_w1  64 B_w2  72 d_out  80 d_debug  88 d_ws
"""

def build(kerns, order=None):
    order = order or kerns
    s = HEADER
    for k in order:
        kn = f"kernel={k.name} " if len(order) > 1 else ""
        s += f"; @launch {kn}grid=({k.grid},1,1) block=({k.block},1,1) lds={k.lds}\n"
    s += '.amdgcn_target "amdgcn-amd-amdhsa--gfx950"\n.text\n'
    for k in kerns:
        s += k.text()
    s += '.section .rodata,"a"\n'
    for k in kerns:
        s += ".p2align 6\n" + k.desc()
    return s
```

```python
from asmlib import *
from layout import *
from k0 import ln_stats
from kf import FLAG as FRONT_FLAG
import os
X = os.environ.get('MX', 'wERI')
FSLEEP = int(os.environ.get('FSLEEP', '4'))
NT2 = ' nt' if 'n' in X else ''
TR = 1 if 't' in X else 0
HSC = '' if 's' in X else ' sc1'
WBAT = int(os.environ.get('WBAT', '16'))
WL = int(os.environ.get('WL', '28'))
HPOL = os.environ.get('HPOL', '')
OPOL = os.environ.get('OPOL', '')
RW = int(os.environ.get('K4RW', '4'))

STG1 = 45056; WOFF = 16384; NB1 = 3
STG2 = 32768; NB2 = 4; RES = NB2 * STG2; NST2 = 28
STATS = 151552
CSL = STATS + 1024
MISC = CSL + 1024
NCS = 4

def weave(e, ms, fill, waits=None, mid=None, sched=None):
    fill = list(fill)
    for i, m in enumerate(ms):
        if mid and i == mid[0]:
            for t in mid[1]: e(t)
        if waits and i in waits: e(waits[i])
        e(m)
        for _ in range(sched[i] if i < len(sched) else 0):
            if fill: e(fill.pop(0))
    assert not fill, fill

def emit_mlp(k):
    e = k.e
    k.pfx = "m_"
    def entry():
        e("s_load_dwordx4 s[4:7], s[0:1], 56")
        e("s_load_dwordx2 s[8:9], s[0:1], 88")
        e("s_load_dwordx2 s[56:57], s[0:1], 72")
        e("s_mov_b32 s10, s60")
        e("s_mov_b32 s55, s38")
        e("s_and_b32 s11, s2, 7")
        e("s_lshr_b32 s12, s2, 3")
        e("s_lshr_b32 s13, s11, 1")
        e("s_lshl_b32 s13, s13, 2")
        e("s_and_b32 s14, s12, 3")
        e("s_add_u32 s13, s13, s14")
        e("s_and_b32 s15, s11, 1")
        e("s_lshr_b32 s53, s12, 2")
        e("s_lshl_b32 s14, s15, 3")
        e("s_add_u32 s14, s14, s53")
        e("v_lshrrev_b32 v2, 4, v0")
    def hbase(dst, pair, t):
        e(f"s_and_b32 s{dst}, s12, 3")
        e(f"s_lshl_b32 s{t}, s{dst}, 1")
        e(f"s_add_u32 s{t}, s{t}, {pair}")
        e(f"s_lshl_b32 s{dst}, s{dst}, 2")
        e(f"s_add_u32 s{dst}, s{dst}, {pair}")
        e(f"s_lshl_b32 s{t+1}, s11, 4")
        e(f"s_add_u32 s{dst}, s{dst}, s{t+1}")
        e(f"s_mul_i32 s{dst}, s{dst}, {112*1024}")
        e(f"s_add_u32 s{dst}, s{dst}, 0x{HM:x}")
        e(f"s_and_b32 s{t+1}, s{t}, 3")
        e(f"s_mul_i32 s{t+1}, s{t+1}, {112*1024}")
        e(f"s_lshr_b32 s{t}, s{t}, 2")
        e(f"s_lshl_b32 s{t}, s{t}, 22")
        e(f"s_add_u32 s{t}, s{t}, s{t+1}")
        e(f"s_lshl_b32 s{t+1}, s11, 19")
        e(f"s_add_u32 s{t}, s{t}, s{t+1}")
        e(f"s_cmp_lt_u32 {pair}, s74")
        e(f"s_cselect_b32 s{dst}, s{t}, s{dst}")
    def alias_flag(v):
        e(f"v_mov_b32 v{v}, {FRONT_FLAG+60}")
        e(f"ds_read_b32 v{v}, v{v}")
        e("s_waitcnt lgkmcnt(0)")
        e(f"v_readfirstlane_b32 s74, v{v}")
        e("s_cmp_eq_u32 s74, 0")
        e(f"s_cselect_b32 s74, {0 if 'a' in X else 2}, 0")
    k.lines.append("Lmlp_compute:")
    k.role = "A"
    k.stamp(0)
    entry()
    def trcommon():
        e("v_bfe_u32 v3, v0, 2, 2")
        e("v_and_b32 v4, 3, v0")
        e("v_and_b32 v5, 1, v2")
        e("v_lshl_or_b32 v6, v5, 2, v3")
        e("v_lshl_add_u32 v7, v2, 3, v3")
        e("v_lshlrev_b32 v8, 8, v7")
        e("v_lshl_add_u32 v8, v4, 3, v8")

    trcommon()
    ACC = 16; FW = [128, 172]; FH = [156, 200]
    AH = [1, 2, 3, 4]; AW = [9, 10, 11]
    e("s_and_b32 s24, s10, 1")
    e("s_lshr_b32 s25, s10, 1")
    e("v_mul_u32_u24 v12, 448, v7")
    e("v_lshl_add_u32 v12, v4, 3, v12")
    e(f"v_add_u32 v12, {WOFF + 2*STG1}, v12")
    e(f"v_add_u32 v8, {2*STG1}, v8")
    e("v_lshl_add_u32 v13, v5, 5, v12")
    e("v_xor_b32 v14, 1, v5")
    e("v_lshl_add_u32 v14, v14, 5, v12")
    e("s_lshl_b32 s26, s25, 8")
    e("v_add_u32 v9, s26, v13")
    e("v_add_u32 v10, s26, v14")
    e("s_cmp_eq_u32 s25, 0")
    e("s_cselect_b64 vcc, -1, 0")
    e("v_cndmask_b32 v11, v14, v13, vcc")
    e("v_add_u32 v11, 192, v11")
    e("v_mov_b32 v15, v2")
    e("s_lshl_b32 s26, s24, 2")
    for j in range(4):
        e(f"s_add_u32 s27, s26, {j}")
        e(f"v_xor_b32 v12, s27, v6")
        e(f"v_lshl_add_u32 v{AH[j]}, v12, 5, v8")
    for i in range(112):
        e(f"v_mov_b32 v{ACC+i}, 0")
    alias_flag(12)
    k.srd(20, 8, 9, WS_BYTES)
    k.srd(44, 56, 57, 4*MB)
    def reads1(st, step):
        r = []
        for j in range(4):
            for h in range(2):
                r.append(f"ds_read_b64_tr_b16 {vr(FH[st]+4*j+2*h,2)}, v{AH[j]} offset:{8192*step+1024*h}")
        for i in range(7):
            a, o = (AW[i % 2], 64*(i//2)) if i < 6 else (AW[2], 0)
            for h in range(2):
                r.append(f"ds_read_b64_tr_b16 {vr(FW[st]+4*i+2*h,2)}, v{a} offset:{14336*step+1792*h+o}")
        return r
    def mfmas1(st):
        return [f"v_mfma_f32_16x16x32_bf16 {vr(ACC+4*(4*i+j),4)}, {vr(FW[st]+4*i,4)}, {vr(FH[st]+4*j,4)}, {vr(ACC+4*(4*i+j),4)}"
                for i in range(7) for j in range(4)]
    e("s_mov_b32 s28, 0")
    e("s_mov_b32 s29, 2")
    e("s_barrier")
    k.stamp(1)
    for r in reads1(0, 0): e(r)
    k.label("c1loop")
    sal = ["s_add_u32 s29, s29, 1", f"s_mov_b32 s30, {STG1}", "s_cmp_eq_u32 s29, 3", f"s_cselect_b32 s30, {-2*STG1}, s30",
           "s_cselect_b32 s29, 0, s29", "s_add_u32 s28, s28, 1"]
    weave(e, mfmas1(0), reads1(1, 1) + sal, waits={4*i: f"s_waitcnt lgkmcnt({min(15, 12+2*i)})" for i in range(7)}, sched=[1]*28)
    weave(e, mfmas1(1), [f"v_add_u32 v{a}, s30, v{a}" for a in AH + AW] + reads1(0, 0) + ["s_cmp_lt_u32 s28, 16"],
          waits={0: "s_waitcnt lgkmcnt(12)"}, mid=(4, ["s_waitcnt lgkmcnt(0)", "s_barrier"]), sched=[0]*4 + [2]*6 + [1]*18)
    e(f"s_cbranch_scc1 {k.L('c1loop')}")
    k.stamp(2)
    e("v_and_b32 v1, 15, v0")
    e("s_lshl_b32 s26, s24, 9")
    e(f"s_add_u32 s26, s26, {STATS}")
    e("v_lshl_add_u32 v1, v1, 3, s26")
    e("s_lshl_b32 s26, s25, 9")
    e(f"s_add_u32 s26, s26, {CSL}")
    e("v_lshl_add_u32 v2, v15, 4, s26")
    e("s_mul_i32 s26, s25, 64")
    e(f"s_add_u32 s26, s26, {CSL+384}")
    e("v_lshl_add_u32 v3, v15, 4, s26")
    e(f"v_mov_b32 v6, {MISC}")
    e("s_waitcnt lgkmcnt(0)")
    MR = 128; C2 = 136; CSV = 144
    e("ds_read_b32 v7, v6 offset:4")
    for j in range(4):
        e(f"ds_read_b64 {vr(MR+2*j,2)}, v1 offset:{128*j}")
    for i in range(7):
        e(f"ds_read_b128 {vr(CSV+4*i,4)}, v{2 if i < 6 else 3} offset:{64*i if i < 6 else 0}")
    e("s_lshl_b32 s26, s25, 12")
    e("v_lshl_add_u32 v4, v0, 4, s26")
    e("s_lshl_b32 s26, s25, 3")
    e("s_add_u32 s26, s26, 3072")
    e("v_lshl_add_u32 v5, v0, 4, s26")
    e("s_lshl_b32 s26, s24, 1")
    hbase(32, "s26", 60)
    e("s_add_u32 s26, s26, 1")
    hbase(34, "s26", 60)
    e("s_mul_i32 s27, s53, 7168")
    e("s_add_u32 s32, s32, s27")
    e("s_add_u32 s34, s34, s27")
    e(f"s_add_u32 s33, s32, {56*1024}")
    e(f"s_add_u32 s35, s34, {56*1024}")
    e("s_waitcnt lgkmcnt(0)")
    e("v_readfirstlane_b32 s54, v7")
    for j in range(4):
        e(f"v_mul_f32 v{C2+2*j}, 0xbfb8aa3b, v{MR+2*j+1}")
    e("s_and_b32 s26, s53, 1")
    e("s_lshl_b32 s27, s25, 2")
    e("s_sub_u32 s27, s27, s26")
    for n in range(4):
        if n < 3: e(f"s_add_u32 s60, s27, {n}")
        else:     e("s_sub_u32 s60, 3, s26")
        e("s_lshr_b32 s61, s60, 1")
        e("s_lshl_b32 s61, s61, 15")
        e("s_and_b32 s62, s60, 1")
        e("s_lshl_b32 s62, s62, 10")
        e("s_add_u32 s61, s61, s62")
        e("s_cmp_lt_u32 s60, 6")
        e(f"s_cselect_b32 s61, s61, {3*STG2}")
        e("s_lshl_b32 s62, s24, 13")
        e("s_add_u32 s61, s61, s62")
        if n == 3:
            e("s_lshl_b32 s62, s25, 3")
            e("s_add_u32 s61, s61, s62")
        e(f"v_lshl_add_u32 v{8+n}, v0, 4, s61")
    e("s_mov_b32 s58, 0xbfb8aa3b")
    e("s_mov_b32 s59, 0xbfb8aa3b")
    e("s_cmp_eq_u32 s54, 1")
    nsite = [0]
    def store2(ops):
        n = nsite[0]; nsite[0] += 1
        e(f"s_cbranch_scc1 {k.L(f'pl{n}')}")
        for o in ops: e(o + " sc1")
        e(f"s_branch {k.L(f'st{n}')}")
        k.label(f"pl{n}")
        for o in ops: e(o)
        k.label(f"st{n}")
    T = 172
    def elem8(tiles, out):
        P = T; Xr = T + 8
        def each(f):
            for n, (i, j) in enumerate(tiles):
                for h in range(2):
                    e(f(ACC + 4*(4*i+j) + 2*h, CSV + 4*i + 2*h, j, P + 4*n + 2*h, Xr + 4*n + 2*h))
        each(lambda a, c, j, p, x: f"v_pk_fma_f32 {vr(a,2)}, {vr(c,2)}, {vr(MR+2*j,2)}, {vr(a,2)} op_sel_hi:[1,0,1] neg_lo:[0,1,0] neg_hi:[0,1,0]")
        each(lambda a, c, j, p, x: f"v_pk_mul_f32 {vr(p,2)}, {vr(a,2)}, {vr(C2+2*j,2)} op_sel_hi:[1,0]")
        for q in range(8): e(f"v_exp_f32 v{Xr+q}, v{P+q}")
        each(lambda a, c, j, p, x: f"v_pk_fma_f32 {vr(x,2)}, {vr(x,2)}, s[58:59], s[58:59]")
        for q in range(8): e(f"v_rcp_f32 v{Xr+q}, v{Xr+q}")
        each(lambda a, c, j, p, x: f"v_pk_mul_f32 {vr(p,2)}, {vr(p,2)}, {vr(x,2)}")
        for q in range(4): e(f"v_cvt_pk_bf16_f32 v{out+q}, v{P+2*q}, v{P+2*q+1}")
    n = 0
    for j in range(4):
        for pr in range(3):
            o = 192 + 4*(n % 4); n += 1
            elem8([(2*pr, j), (2*pr+1, j)], o)
            e(f"ds_write_b128 v{8+pr}, {vr(o,4)} offset:{2048*j}")
            store2([f"buffer_store_dwordx4 {vr(o,4)}, v4, s[20:23], s{32+j} offen offset:{1024*pr}"])
        if j % 2 == 1:
            o = 192 + 4*(n % 4); n += 1
            elem8([(6, j-1), (6, j)], o)
            e(f"ds_write_b64 v11, {vr(o,2)} offset:{2048*(j-1)}")
            e(f"ds_write_b64 v11, {vr(o+2,2)} offset:{2048*j}")
            store2([f"buffer_store_dwordx2 {vr(o,2)}, v5, s[20:23], s{32+j-1} offen",
                    f"buffer_store_dwordx2 {vr(o+2,2)}, v5, s[20:23], s{32+j} offen"])
    k.stamp(3)

    NS = 4
    F0 = ACC + 64
    GW = [F0, F0 + 32]; GH = [F0 + 16, F0 + 48]
    BW = [8, 9, 10, 11]; BH = 12
    e("v_mov_b32 v2, v15")
    e("v_bfe_u32 v3, v0, 2, 2")
    e("v_and_b32 v4, 3, v0")
    e("v_lshl_add_u32 v7, v2, 2, v3")
    e("v_and_b32 v5, 7, v7")
    e("v_lshlrev_b32 v13, 8, v7")
    e("v_lshl_add_u32 v13, v4, 3, v13")
    e(f"v_add_u32 v13, {WOFF}, v13")
    e("s_lshl_b32 s26, s25, 2")
    for i in range(4):
        e(f"s_add_u32 s27, s26, {i}")
        e(f"v_xor_b32 v14, s27, v5")
        e(f"v_lshl_add_u32 v{BW[i]}, v14, 5, v13")
    e("s_lshl_b32 s26, s24, 12")
    e(f"v_lshl_add_u32 v{BH}, v0, 4, s26")
    for i in range(64):
        e(f"v_mov_b32 v{ACC+i}, 0")
    e("v_mov_b32 v13, 1")
    e("s_lshl_b32 s26, s2, 11")
    e(f"s_add_u32 s26, s26, 0x{HFL:x}")
    e("v_mov_b32 v14, 0")
    e("v_mov_b32 v216, s98")
    e("v_mov_b32 v217, s99")
    e("s_waitcnt vmcnt(0)")
    e("s_mov_b64 exec, 1")
    e("ds_add_rtn_u32 v1, v6, v13")
    e("s_waitcnt lgkmcnt(0)")
    e("v_readfirstlane_b32 s27, v1")
    e("s_cmp_eq_u32 s27, 3")
    e(f"s_cbranch_scc0 {k.L('noflag')}")
    e("s_cmp_eq_u32 s54, 1")
    store2(["buffer_store_dwordx2 v[216:217], v14, s[20:23], s26 offen"])
    k.label("noflag")
    e("s_mov_b64 exec, -1")
    e("v_bfe_u32 v6, v7, 1, 2")
    def hoff(j): return 2048*(j % 2) + 8192*(j // 2)
    def reads2(st, step):
        r = []
        for j in range(NS):
            r.append(f"ds_read_b128 {vr(GH[st]+4*j,4)}, v{BH} offset:{hoff(j)+1024*step}")
        for i in range(4):
            for h in range(2):
                r.append(f"ds_read_b64_tr_b16 {vr(GW[st]+4*i+2*h,2)}, v{BW[i]} offset:{8192*step+4096*h}")
        return r
    def mfmas2(st):
        return [f"v_mfma_f32_16x16x32_bf16 {vr(ACC+4*(NS*i+j),4)}, {vr(GW[st]+4*i,4)}, {vr(GH[st]+4*j,4)}, {vr(ACC+4*(NS*i+j),4)}"
                for i in range(4) for j in range(NS)]
    e("s_mov_b32 s28, 0")
    e("s_mov_b32 s29, 0")
    e("s_add_u32 s61, s12, s10")
    e("s_cmp_eq_u32 s61, 0")
    e(f"s_cselect_b32 s61, {WBAT}, 99")
    e("s_barrier")
    k.stamp(4)
    for r in reads2(0, 0): e(r)
    k.label("c2loop")
    sal = ["s_add_u32 s29, s29, 1", f"s_mov_b32 s30, {STG2}", f"s_cmp_eq_u32 s29, {NB2}", f"s_cselect_b32 s30, {-(NB2-1)*STG2}, s30",
           "s_cselect_b32 s29, 0, s29", "s_add_u32 s28, s28, 1"]
    weave(e, mfmas2(0), reads2(1, 1) + sal,
          waits={0: "s_waitcnt lgkmcnt(6)", 4: "s_waitcnt lgkmcnt(12)", 8: "s_waitcnt lgkmcnt(14)", 12: "s_waitcnt lgkmcnt(12)"},
          sched=[2]*6 + [1]*6)
    weave(e, mfmas2(1), [f"v_add_u32 v{a}, s30, v{a}" for a in [BH] + BW] + reads2(0, 0) + [f"s_cmp_lt_u32 s28, {NST2}"],
          waits={0: "s_waitcnt lgkmcnt(6)"}, mid=(4, ["s_waitcnt lgkmcnt(0)", "s_barrier"]), sched=[0]*4 + [2]*6 + [1]*6)
    if 'b' in X:
        e(f"s_cbranch_scc0 {k.L('c2done')}")
        e(f"s_cmp_eq_u32 s28, s61")
        e(f"s_cbranch_scc0 {k.L('c2loop')}")
        e("buffer_wbl2 sc1")
        e(f"s_branch {k.L('c2loop')}")
        k.label("c2done")
    else:
        e(f"s_cbranch_scc1 {k.L('c2loop')}")
    k.stamp(5)
    T = F0
    e("s_lshl_b32 s26, s2, 2")
    e("s_add_u32 s26, s26, s10")
    e("s_xor_b32 s27, s26, 4")
    e("s_lshl_b32 s31, s26, 12")
    e(f"s_add_u32 s31, s31, 0x{PART:x}")
    e("s_lshl_b32 s32, s27, 12")
    e(f"s_add_u32 s32, s32, 0x{PART:x}")
    e("s_lshl_b32 s35, s2, 11")
    e("s_lshl_b32 s36, s10, 7")
    e("s_add_u32 s35, s35, s36")
    e(f"s_add_u32 s35, s35, 0x{FLG:x}")
    e("s_xor_b32 s36, s35, 0x800")
    e("v_lshlrev_b32 v14, 4, v0")
    e("s_cmp_eq_u32 s15, 0")
    e(f"s_cbranch_scc1 {k.L('send_hi')}")
    for own in (1, 0):
        if own == 0: k.label("send_hi")
        for i in range(4):
            a0 = ACC + 4*(NS*i + 2*(1-own)); o = T + 48 + 4*i
            for q in range(4):
                e(f"v_cvt_pk_bf16_f32 v{o+q}, v{a0+2*q}, v{a0+2*q+1}")
            e(f"buffer_store_dwordx4 {vr(o,4)}, v14, s[20:23], s31 offen offset:{1024*i} sc1")
        if own == 1:
            for i in range(4):
                for q in range(8):
                    e(f"v_mov_b32 v{ACC+4*NS*i+q}, v{ACC+4*NS*i+8+q}")
            e(f"s_branch {k.L('sent')}")
    k.label("sent")
    e("v_lshlrev_b32 v13, 7, v7")
    e("v_lshl_add_u32 v13, v4, 3, v13")
    e("s_lshl_b32 s26, s25, 13")
    e(f"s_add_u32 s26, s26, {RES}")
    e("v_add_u32 v13, s26, v13")
    e("s_lshl_b32 s26, s24, 1")
    for j in range(2):
        e(f"s_add_u32 s27, s26, {j}")
        e(f"v_xor_b32 v15, s27, v6")
        e(f"v_lshl_add_u32 v{8+j}, v15, 5, v13")
    e("s_waitcnt lgkmcnt(0)")
    HR = T
    for i in range(4):
        for j in range(2):
            e(f"ds_read_b64_tr_b16 {vr(HR+2*(2*i+j),2)}, v{8+j} offset:{2048*i}")
    e("v_and_b32 v10, 15, v0")
    e("v_lshrrev_b32 v11, 1, v2")
    e("v_and_b32 v12, 7, v10")
    e("v_xor_b32 v11, v11, v12")
    e("v_lshlrev_b32 v11, 4, v11")
    e("v_lshl_add_u32 v11, v10, 7, v11")
    e("v_and_b32 v12, 1, v2")
    e("v_lshl_add_u32 v11, v12, 3, v11")
    e("s_lshl_b32 s26, s10, 12")
    e("v_add_u32 v3, s26, v11")
    e("v_xor_b32 v4, 32, v3")
    e("v_xor_b32 v5, 64, v3")
    e("v_xor_b32 v6, 96, v3")
    e("v_lshrrev_b32 v10, 3, v0")
    e("v_and_b32 v11, 7, v0")
    e("v_xor_b32 v12, v11, v10")
    e("v_lshlrev_b32 v12, 4, v12")
    e("v_lshl_add_u32 v12, v10, 7, v12")
    e("v_add_u32 v7, s26, v12")
    e("v_lshlrev_b32 v10, 11, v10")
    e("v_lshl_add_u32 v10, v11, 4, v10")
    e("s_lshl_b32 s26, s13, 7")
    e("s_lshl_b32 s27, s24, 5")
    e("s_add_u32 s26, s26, s27")
    e("s_lshl_b32 s27, s15, 6")
    e("s_add_u32 s26, s26, s27")
    e("s_lshl_b32 s26, s26, 11")
    e("s_lshl_b32 s27, s53, 8")
    e("s_add_u32 s26, s26, s27")
    e("s_lshl_b32 s27, s25, 7")
    e("s_add_u32 s48, s26, s27")
    for q in range(1, 4):
        e(f"s_add_u32 s{48+q}, s48, {q*8*2048}")
    PR = T + 16; U = PR + 16
    e("s_mov_b32 s37, 0xffff0000")
    e("s_waitcnt lgkmcnt(0)")
    for i in range(4):
        for j in range(2):
            n = 2*i + j; a = ACC + 4*(NS*i + j); u = U + 4*(n % 2)
            e(f"v_lshlrev_b32 v{u}, 16, v{HR+2*n}")
            e(f"v_and_b32 v{u+1}, s37, v{HR+2*n}")
            e(f"v_lshlrev_b32 v{u+2}, 16, v{HR+2*n+1}")
            e(f"v_and_b32 v{u+3}, s37, v{HR+2*n+1}")
            for h in range(2):
                e(f"v_pk_add_f32 {vr(a+2*h,2)}, {vr(a+2*h,2)}, {vr(u+2*h,2)}")
    e("v_mov_b32 v15, 0")
    e("s_waitcnt vmcnt(0)")
    e("s_mov_b64 exec, 1")
    e("buffer_store_dwordx2 v[216:217], v15, s[20:23], s35 offen sc1")
    e("s_mov_b32 s38, 0")
    k.label("poll")
    e("buffer_load_dwordx2 v[218:219], v15, s[20:23], s36 offen sc1")
    e("s_add_u32 s38, s38, 1")
    e("s_cmp_gt_u32 s38, 0x200000")
    e(f"s_cbranch_scc1 {k.L('polled')}")
    e("s_waitcnt vmcnt(0)")
    e("v_cmp_ne_u64 vcc, v[218:219], v[216:217]")
    e(f"s_cbranch_vccnz {k.L('poll')}")
    k.label("polled")
    k.stamp(6)
    e("s_mov_b64 exec, -1")
    for i in range(4):
        e(f"buffer_load_dwordx4 {vr(PR+4*i,4)}, v14, s[20:23], s32 offen offset:{1024*i} sc1")
    for i in range(4):
        for j in range(2):
            n = 2*i + j; a = ACC + 4*(NS*i + j); u = U + 4*(n % 2)
            if j == 0: e(f"s_waitcnt vmcnt({3-i})")
            e(f"v_lshlrev_b32 v{u}, 16, v{PR+2*n}")
            e(f"v_and_b32 v{u+1}, s37, v{PR+2*n}")
            e(f"v_lshlrev_b32 v{u+2}, 16, v{PR+2*n+1}")
            e(f"v_and_b32 v{u+3}, s37, v{PR+2*n+1}")
            for h in range(2):
                e(f"v_pk_add_f32 {vr(a+2*h,2)}, {vr(a+2*h,2)}, {vr(u+2*h,2)}")
            e(f"v_cvt_pk_bf16_f32 v{HR+2*n}, v{a}, v{a+1}")
            e(f"v_cvt_pk_bf16_f32 v{HR+2*n+1}, v{a+2}, v{a+3}")
            e(f"ds_write_b64 v{3+i}, {vr(HR+2*n,2)} offset:{2048*j}")
    e("s_waitcnt lgkmcnt(0)")
    for q in range(4):
        e(f"ds_read_b128 {vr(PR+4*q,4)}, v7 offset:{1024*q}")
    for q in range(4):
        e(f"s_waitcnt lgkmcnt({3-q})")
        e(f"buffer_store_dwordx4 {vr(PR+4*q,4)}, v10, s[44:47], s{48+q} offen{OPOL}")
    if STAMP:
        e("s_waitcnt vmcnt(0)")
        k.dump_stamps(1, 20, 10)
    k.dbg_out()
    k.ph_end()
    e("s_add_u32 s26, s2, s10")
    e("s_cmp_eq_u32 s26, 0")
    e(f"s_cbranch_scc0 {k.L('fin')}")
    e("s_load_dwordx2 s[60:61], s[0:1], 80")
    e("v_mov_b32 v2, 0")
    e("v_mov_b32 v3, 0")
    e("s_waitcnt lgkmcnt(0)")
    k.srd(60, 60, 61, 256)
    e("s_mov_b64 exec, 1")
    e("buffer_store_dwordx2 v[2:3], v2, s[60:63], 0 offen sc1")
    k.label("fin")
    e("s_endpgm")

    k.lines.append("Lmlp_loader:")
    k.role = "B"
    k.stamp(0)
    entry()
    e("v_mov_b32 v216, s98")
    e("v_mov_b32 v217, s99")
    e("s_sub_u32 s24, s10, 4")
    VH = 16; VW = 20
    e("s_lshl_b32 s47, s24, 16")
    e("s_lshl_b32 s26, s13, 8")
    e("s_add_u32 s47, s47, s26")
    e(f"s_add_u32 s47, s47, 0x{HT:x}")
    e(f"s_mul_i32 s48, s24, {16*7168}")
    e("s_mul_i32 s27, s14, 448")
    e("s_add_u32 s48, s48, s27")
    e("s_add_u32 s36, s14, s13")
    if 'A' in X:
        e("s_and_b32 s36, s36, 3")
        e("s_and_b32 s37, s13, 12")
        e("s_and_b32 s49, s14, 12")
        e("s_add_u32 s37, s37, s49")
        e("s_add_u32 s36, s36, s37")
    e("s_and_b32 s36, s36, 15")
    e("s_mov_b32 s49, 0")
    e("s_lshl_b32 s25, s36, 18")
    e("s_add_u32 s25, s25, s47")
    e(f"s_mul_i32 s26, s36, {64*7168}")
    e("s_add_u32 s26, s26, s48")
    e("s_lshl_b32 s27, s24, 12")
    e("s_mul_i32 s28, s24, 7168")
    e(f"s_add_u32 s28, s28, {WOFF}")
    e("v_bfe_u32 v9, v0, 1, 3")
    e("v_and_b32 v10, 1, v0")
    e("v_lshlrev_b32 v10, 4, v10")
    e("v_lshl_add_u32 v10, v2, 12, v10")
    e("v_xor_b32 v9, v9, v2")
    for pp in range(4):
        if pp == 2: e("v_xor_b32 v9, 4, v9")
        e(f"v_lshl_add_u32 v{VH+pp}, v9, 5, v10")
        if pp: e(f"v_add_u32 v{VH+pp}, {pp*(16384-1024)}, v{VH+pp}")
    def wpat(q):
        e(f"v_add_u32 v9, {64*q}, v0")
        e("v_mul_u32_u24 v10, 9363, v9")
        e("v_lshrrev_b32 v10, 18, v10")
        e("v_mul_u32_u24 v11, 28, v10")
        e("v_sub_u32 v11, v9, v11")
        e("v_lshrrev_b32 v12, 2, v10")
        e("v_and_b32 v12, 2, v12")
        e("v_xor_b32 v11, v11, v12")
        e("v_mul_u32_u24 v12, 7168, v10")
        e("v_lshl_add_u32 v12, v11, 4, v12")
        e(f"v_add_u32 v{VW+q}, {-1024*(q%4)}, v12")
    for q in range(7): wpat(q)
    e("s_waitcnt lgkmcnt(0)")
    k.srd(20, 8, 9, WS_BYTES)
    k.srd(16, 4, 5, 1024*3584*2)
    def advance():
        e("s_add_u32 s49, s49, 1")
        e("s_add_u32 s37, s36, 1")
        e("s_and_b32 s37, s37, 3")
        e("s_and_b32 s36, s36, 12")
        e("s_or_b32 s36, s36, s37")
        e("s_and_b32 s37, s49, 3")
        e("s_cmp_eq_u32 s37, 0")
        e("s_cselect_b32 s37, 4, 0")
        e("s_add_u32 s36, s36, s37")
        e("s_and_b32 s36, s36, 15")
        e("s_lshl_b32 s25, s36, 18")
        e("s_add_u32 s25, s25, s47")
        e(f"s_mul_i32 s26, s36, {64*7168}")
        e("s_add_u32 s26, s26, s48")
    def hpart(so, m0):
        e(m0); e("s_nop 0")
        for pp in range(4):
            e(f"buffer_load_dwordx4 v{VH+pp}, s[20:23], {so} offen offset:{1024*pp}{HSC} lds")
    def wpart(buf, pol=""):
        e(f"s_add_u32 m0, s28, {buf}"); e("s_nop 0")
        for q in range(7):
            if q == 4: e(f"s_add_u32 m0, s28, {buf+4096}"); e("s_nop 0")
            e(f"buffer_load_dwordx4 v{VW+q}, s[16:19], s26 offen offset:{1024*(q%4)}{pol} lds")
    def htouch(sb="s24", low=False):
        if low: alias_flag(31)
        else: e("s_mov_b32 s74, 0")
        e(f"s_lshr_b32 s75, {sb}, 1")
        if not low: e("s_add_u32 s75, s75, 2")
        hbase(76, "s75", 60)
        e(f"s_and_b32 s60, {sb}, 1")
        e(f"s_mul_i32 s60, s60, {56*1024}")
        e("s_add_u32 s76, s76, s60")
        e("s_mul_i32 s60, s53, 7168")
        e("s_add_u32 s76, s76, s60")
        e("v_lshlrev_b32 v30, 7, v0")
        e("v_min_u32 v30, 7040, v30")
        e(f"buffer_load_dword v210, v30, s[20:23], s76 offen{HPOL}")
    e("s_cmp_ge_u32 s24, 2")
    e(f"s_cbranch_scc1 {k.L('now0')}")
    wpart(2*STG1, " nt" if 'N' in X else "")
    e(f"s_add_u32 s26, s26, {32*7168}")
    wpart(2*STG1 + 2*7168, " nt" if 'N' in X else "")
    if 'C' in X:
        htouch("s24")
        e("s_add_u32 s77, s24, 2")
        htouch("s77")
    k.label("now0")
    e("s_mov_b32 s50, s25")
    e("s_mov_b32 s62, s36")
    advance()
    e("v_lshrrev_b32 v9, 3, v0")
    e("v_lshlrev_b32 v9, 11, v9")
    e("v_bfe_u32 v10, v0, 2, 1")
    e("v_lshl_add_u32 v9, v10, 18, v9")
    e("v_and_b32 v10, 3, v0")
    e("v_lshl_add_u32 v38, v10, 14, v9")
    e("s_lshl_b32 s52, s24, 16")
    e(f"s_add_u32 s52, s52, 0x{FHT:x}")
    e("s_mov_b64 s[58:59], 0")
    e("s_mov_b32 s39, 0")
    e(f"v_mov_b32 v35, {FRONT_FLAG+(52 if 'E' not in X else 48)}")
    k.label("waitF")
    e("s_sleep 1")
    e("ds_read_b32 v34, v35")
    e("s_waitcnt lgkmcnt(0)")
    e(f"v_cmp_gt_u32 vcc, {8 if 'E' not in X else 4}, v34")
    e(f"s_cbranch_vccnz {k.L('waitF')}")
    nneed = [0]
    def need(stage, narrow=False):
        n = nneed[0]; nneed[0] += 1
        if narrow:
            e(f"s_lshl_b32 s60, {stage}, 2")
            if 'W' in X:
                e("s_and_b32 s60, s60, 48")
                e("s_mov_b64 s[66:67], 0xffff")
                e("s_lshl_b64 s[66:67], s[66:67], s60")
            else:
                e("s_lshl_b64 s[66:67], 15, s60")
        k.label(f"need{n}")
        e(f"s_lshl_b32 s60, {stage}, 2")
        e("s_lshr_b64 s[60:61], s[58:59], s60")
        e("s_and_b32 s60, s60, 15")
        e("s_cmp_eq_u32 s60, 15")
        e(f"s_cbranch_scc1 {k.L(f'have{n}')}")
        if narrow: e("s_mov_b64 exec, s[66:67]")
        e("buffer_load_dwordx2 v[100:101], v38, s[20:23], s52 offen sc1")
        if narrow: e("s_mov_b64 exec, -1")
        e("s_add_u32 s39, s39, 1")
        e("s_cmp_gt_u32 s39, 0x100000")
        e(f"s_cbranch_scc1 {k.L(f'have{n}')}")
        e("s_waitcnt vmcnt(0)")
        e("v_cmp_eq_u64 vcc, v[100:101], v[216:217]")
        e("s_or_b64 s[58:59], s[58:59], vcc")
        e(f"s_branch {k.L(f'need{n}')}")
        k.label(f"have{n}")
    e("v_mov_b32 v100, 0")
    need("s62", narrow='R' in X)
    k.stamp(5)
    k.note("s39", 17)
    hpart("s50", f"s_add_u32 m0, s27, {2*STG1}")
    wpart(0, " nt" if 'M' in X else "")
    e("s_waitcnt vmcnt(7)")
    e("s_barrier")
    need("s36", narrow='R' in X)
    hpart("s25", "s_mov_b32 m0, s27")
    advance()
    if 'W' in X:
        e("buffer_load_dwordx2 v[102:103], v38, s[20:23], s52 offen sc1")
    e(f"s_mov_b32 s29, {STG1}")
    k.srd(40, 6, 7, 1024*3584*2)
    e("s_lshl_b32 s63, s2, 2")
    e("s_add_u32 s63, s63, s24")
    e(f"s_mul_i32 s63, s63, {56*128}")
    if 'h' in X: e(f"s_add_u32 s63, s63, {28*128}")
    e("v_lshlrev_b32 v39, 7, v0")
    def issue1(first=False):
        need("s36", narrow=('Q' in X) or (first and 'W' in X))
        e("s_add_u32 m0, s27, s29")
        e("s_add_u32 s30, s28, s29")
        for pp in range(4):
            e(f"buffer_load_dwordx4 v{VH+pp}, s[20:23], s25 offen offset:{1024*pp}{HSC} lds")
        e("s_mov_b32 m0, s30")
        e("s_nop 0")
        for q in range(4):
            e(f"buffer_load_dwordx4 v{VW+q}, s[16:19], s26 offen offset:{1024*q} lds")
        e("s_add_u32 m0, s30, 4096")
        e(f"s_add_u32 s29, s29, {STG1}")
        for q in range(4, 7):
            e(f"buffer_load_dwordx4 v{VW+q}, s[16:19], s26 offen offset:{1024*(q-4)} lds")
        if TR:
            e(f"s_mov_b64 exec, {'0x7' if 'h' in X else '0x1f'}")
            e("buffer_load_dword v210, v39, s[40:43], s63 offen")
            e("s_mov_b64 exec, -1")
            e(f"s_add_u32 s63, s63, {384 if 'h' in X else 640}")
        e(f"s_cmp_eq_u32 s29, {NB1*STG1}")
        e("s_cselect_b32 s29, 0, s29")
        advance()
    k.stamp(1)
    issue1(first=True)
    trcommon()
    e("s_lshl_b32 s31, s24, 1")
    e("v_xor_b32 v12, s31, v6")
    e("v_lshl_add_u32 v36, v12, 5, v8")
    e(f"v_add_u32 v36, {2*STG1}, v36")
    e("v_xor_b32 v37, 32, v36")
    S = [40, 42]; Q = [44, 46]
    for r in range(40, 48): e(f"v_mov_b32 v{r}, 0")
    e("s_mov_b32 s33, 0xffff0000")
    D = 48; U = 64
    for t in range(2):
        for st in range(2):
            for h in range(2):
                e(f"ds_read_b64_tr_b16 {vr(D+8*t+4*st+2*h,2)}, v{36+t} offset:{8192*st+1024*h}")
    e("s_waitcnt lgkmcnt(0)")
    for j in range(8):
        for t in range(2):
            u = U + 2*t
            e(f"v_lshlrev_b32 v{u}, 16, v{D+8*t+j}")
            e(f"v_and_b32 v{u+1}, s33, v{D+8*t+j}")
        for t in range(2):
            u = U + 2*t
            for q in range(2):
                e(f"v_add_f32 v{S[t]+q}, v{S[t]+q}, v{u+q}")
                e(f"v_fmac_f32 v{Q[t]+q}, v{u+q}, v{u+q}")
    def greduce(regs):
        for op in ("v_permlane32_swap_b32", "v_permlane16_swap_b32"):
            for i, r in enumerate(regs): e(f"v_mov_b32 v{D+i}, v{r}")
            e("s_nop 1")
            for i, r in enumerate(regs): e(f"{op} v{r}, v{D+i}")
            e("s_nop 1")
            for i, r in enumerate(regs): e(f"v_add_f32 v{r}, v{r}, v{D+i}")
    for r in S + Q: e(f"v_add_f32 v{r}, v{r}, v{r+1}")
    greduce(S + Q)
    e("v_cmp_gt_u32 vcc, 16, v0")
    e("s_lshl_b32 s31, s13, 15")
    e("s_lshl_b32 s32, s24, 9")
    e("s_add_u32 s31, s31, s32")
    e(f"s_add_u32 s31, s31, 0x{SP2:x}")
    e("s_lshl_b32 s32, s14, 11")
    e("s_add_u32 s32, s32, s31")
    e(f"v_cndmask_b32 v214, v{S[1]}, v{S[0]}, vcc")
    e(f"v_cndmask_b32 v215, v{Q[1]}, v{Q[0]}, vcc")
    e("v_lshlrev_b32 v9, 4, v0")
    e("s_mov_b64 exec, 0xffffffff")
    e("buffer_store_dwordx4 v[214:217], v9, s[20:23], s32 offen sc1")
    e("s_mov_b64 exec, -1")
    e("v_mul_u32_u24 v12, 448, v7")
    e("v_lshl_add_u32 v12, v4, 3, v12")
    e("s_lshl_b32 s32, s24, 7")
    e(f"s_add_u32 s32, s32, {WOFF + 2*STG1}")
    e("v_add_u32 v12, s32, v12")
    e("v_lshl_add_u32 v13, v5, 5, v12")
    e("v_xor_b32 v14, 1, v5")
    e("v_lshl_add_u32 v14, v14, 5, v12")
    CW = 68
    for t in range(4):
        for st in range(2):
            for h in range(2):
                e(f"ds_read_b64_tr_b16 {vr(CW+8*t+4*st+2*h,2)}, v{13 + t%2} offset:{14336*st+1792*h+64*(t//2)}")
        if t == 2: e("s_waitcnt lgkmcnt(8)")
    for r in range(40, 48): e(f"v_mov_b32 v{r}, 0")
    e("s_waitcnt lgkmcnt(0)")
    for j in range(8):
        for t in range(4):
            e(f"v_lshlrev_b32 v{U}, 16, v{CW+8*t+j}")
            e(f"v_and_b32 v{U+1}, s33, v{CW+8*t+j}")
            e(f"v_add_f32 v{40+t}, v{40+t}, v{U}")
            e(f"v_add_f32 v{44+t}, v{44+t}, v{U+1}")
    for t in range(4): e(f"v_add_f32 v{40+t}, v{40+t}, v{44+t}")
    greduce([40, 41, 42, 43])
    e("v_cmp_gt_u32 vcc, 16, v0")
    e("s_lshl_b32 s32, s14, 4")
    e("s_add_u32 s32, s32, s13")
    e("s_lshl_b32 s32, s32, 11")
    e("s_lshl_b32 s34, s24, 9")
    e("s_add_u32 s32, s32, s34")
    e(f"s_add_u32 s32, s32, 0x{CP:x}")
    e("v_cndmask_b32 v214, v42, v40, vcc")
    e("v_cndmask_b32 v215, v43, v41, vcc")
    e("s_mov_b64 exec, 0xffffffff")
    e("buffer_store_dwordx4 v[214:217], v9, s[20:23], s32 offen sc1")
    e("s_mov_b64 exec, -1")
    e("s_mov_b32 s35, 0")
    k.label("l1loop")
    e("s_cmp_eq_u32 s35, 0")
    e(f"s_cbranch_scc1 {k.L('lw20')}")
    e("s_cmp_eq_u32 s35, 1")
    e(f"s_cbranch_scc1 {k.L('lw12')}")
    e(f"s_waitcnt vmcnt({11 + 2*TR})")
    k.label("lw12")
    e(f"s_waitcnt vmcnt({13 + 2*TR})")
    if 'W' in X:
        e("v_cmp_eq_u64 vcc, v[102:103], v[216:217]")
        e("s_or_b64 s[58:59], s[58:59], vcc")
    k.label("lw20")
    e(f"s_waitcnt vmcnt({13 + TR})")
    e("s_barrier")
    e("s_cmp_ge_u32 s35, 13")
    e(f"s_cbranch_scc1 {k.L('l1done')}")
    if 'D' in X or 'G' in X:
        e(f"s_mul_i32 s60, s24, {3 if 'D' in X else 6}")
        e(f"s_add_u32 s60, s60, {2 if 'D' in X else 3}")
        e("s_cmp_eq_u32 s35, s60")
        e(f"s_cbranch_scc0 {k.L('noht')}")
        htouch()
        k.label("noht")
    issue1()
    e("s_add_u32 s35, s35, 1")
    e(f"s_branch {k.L('l1loop')}")
    k.label("l1done")
    if 'H' in X: htouch()
    k.stamp(2)
    e("s_lshl_b32 s33, s14, 15")
    e("s_lshl_b32 s34, s24, 9")
    e("s_add_u32 s33, s33, s34")
    e(f"s_add_u32 s33, s33, 0x{CP:x}")
    e("v_and_b32 v10, 31, v0")
    e("v_lshlrev_b32 v9, 4, v10")
    e("v_lshrrev_b32 v11, 5, v0")
    e("v_lshl_add_u32 v9, v11, 11, v9")
    e("v_and_b32 v11, 7, v0")
    e("v_lshlrev_b32 v11, 16, v11")
    e("s_and_b32 s34, s2, 31")
    e("s_lshl_b32 s34, s34, 11")
    e(f"s_add_u32 s50, s34, 0x{XID:x}")
    e(f"s_add_u32 s51, s34, 0x{HFL:x}")
    e("s_mov_b32 s39, 0")
    G = 68
    k.label("spoll")
    e("s_mov_b32 s32, s31")
    for q in range(8):
        e(f"buffer_load_dwordx4 {vr(G+4*q,4)}, v9, s[20:23], s32 offen sc1")
        e("s_add_u32 s32, s32, 4096")
    e("s_mov_b32 s32, s33")
    for q in range(8):
        e(f"buffer_load_dwordx4 {vr(G+32+4*q,4)}, v9, s[20:23], s32 offen sc1")
        e("s_add_u32 s32, s32, 4096")
    e("buffer_load_dwordx3 v[64:66], v11, s[20:23], s50 offen sc1")
    e("s_add_u32 s39, s39, 1")
    e("s_cmp_gt_u32 s39, 0x100000")
    e(f"s_cbranch_scc1 {k.L('spolled')}")
    e("s_waitcnt vmcnt(0)")
    e("v_cmp_ne_u64 s[44:45], v[64:65], v[216:217]")
    for q in range(16):
        e(f"v_cmp_ne_u64 vcc, {vr(G+4*q+2,2)}, v[216:217]")
        e("s_or_b64 s[44:45], s[44:45], vcc")
    e("s_cmp_lg_u64 s[44:45], 0")
    e(f"s_cbranch_scc1 {k.L('spoll')}")
    k.label("spolled")
    e("s_waitcnt vmcnt(0)")
    if 'J' in X: htouch(low=True)
    if 'I' in X: htouch()
    if 'G' in X:
        e("s_cmp_lt_u32 s24, 2")
        e(f"s_cbranch_scc1 {k.L('noht2')}")
        htouch()
        k.label("noht2")
    if 'w' not in X:
        e("s_lshl_b32 s60, s2, 2")
        e("s_add_u32 s60, s60, s24")
        e(f"s_mul_i32 s60, s60, {56*128}")
        e("v_lshlrev_b32 v30, 7, v0")
        e(f"s_mov_b64 exec, {hex((1 << WL) - 1) if WL <= 32 else -1}")
        e("buffer_load_dword v210, v30, s[40:43], s60 offen")
        e("s_mov_b64 exec, -1")
    e("v_cmp_ne_u32 vcc, s55, v66")
    for q in range(1, 8):
        for j in range(2):
            e(f"v_add_f32 v{40+j}, v{G+j if q == 1 else 40+j}, v{G+4*q+j}")
            e(f"v_add_f32 v{42+j}, v{G+32+j if q == 1 else 42+j}, v{G+32+4*q+j}")
    e("s_cmp_eq_u64 vcc, 0")
    e("s_cselect_b32 s54, 1, 2")
    if 'f' in X: e("s_mov_b32 s54, 2")
    for i in range(4): e(f"v_mov_b32 v{D+i}, v{40+i}")
    e("s_nop 1")
    for i in range(4): e(f"v_permlane32_swap_b32 v{40+i}, v{D+i}")
    e("s_nop 1")
    for i in range(4): e(f"v_add_f32 v{40+i}, v{40+i}, v{D+i}")
    ln_stats(k, [40], [41], [56], [57], [60])
    e("s_lshl_b32 s31, s24, 8")
    e(f"s_add_u32 s31, s31, {STATS}")
    e("v_lshl_add_u32 v9, v10, 3, s31")
    e("ds_write_b64 v9, v[56:57]")
    e(f"v_mov_b32 v9, {MISC}")
    e("v_mov_b32 v62, 0")
    e("v_mov_b32 v63, s54")
    e("ds_write_b64 v9, v[62:63]")
    e("v_and_b32 v9, 15, v0")
    e("v_and_b32 v12, 16, v0")
    e("v_lshl_add_u32 v9, v12, 1, v9")
    e("s_lshl_b32 s31, s24, 8")
    e(f"s_add_u32 s31, s31, {CSL}")
    e("v_lshl_add_u32 v9, v9, 2, s31")
    e("ds_write_b32 v9, v42")
    e("ds_write_b32 v9, v43 offset:64")
    e("s_waitcnt lgkmcnt(0)")
    e("s_barrier")
    VA = 16; VW2 = 18; VR = 22
    e(f"v_lshlrev_b32 v{VA}, 4, v0")
    e(f"v_add_u32 v{VA+1}, {56*1024-2048}, v{VA}")
    e("v_bfe_u32 v9, v0, 1, 3")
    e("v_and_b32 v10, 1, v0")
    e("v_lshlrev_b32 v10, 4, v10")
    e("v_lshl_add_u32 v10, v2, 11, v10")
    e("v_xor_b32 v9, v9, v2")
    e("v_xor_b32 v12, 4, v9")
    for pp in range(4):
        e(f"v_lshl_add_u32 v{VW2+pp}, v{9 if pp % 2 == 0 else 12}, 5, v10")
        if pp: e(f"v_add_u32 v{VW2+pp}, {pp*(8192-1024)}, v{VW2+pp}")
    e("v_bfe_u32 v9, v0, 1, 2")
    e("v_xor_b32 v9, v9, v2")
    e("v_and_b32 v10, 1, v0")
    e("v_lshlrev_b32 v10, 4, v10")
    e("v_lshl_add_u32 v10, v9, 5, v10")
    e("v_lshrrev_b32 v9, 3, v0")
    e(f"v_lshl_add_u32 v{VR}, v9, 12, v10")
    for pp in range(1, 4):
        e(f"v_add_u32 v{VR+pp}, {pp*(32768-1024)}, v{VR}")
    alias_flag(9)
    hbase(47, "s24", 60)
    e("s_mul_i32 s48, s15, 1792")
    e("s_lshl_b32 s27, s24, 4")
    e("s_add_u32 s48, s48, s27")
    e("s_lshl_b32 s48, s48, 11")
    e("s_lshl_b32 s27, s53, 8")
    e("s_add_u32 s48, s48, s27")
    e("s_mul_i32 s36, s53, 7")
    e("s_add_u32 s36, s36, 1")
    e("s_lshr_b32 s36, s36, 1")
    e("s_lshl_b32 s27, s24, 12")
    e(f"s_add_u32 s28, s27, {WOFF}")
    e("s_lshr_b32 s62, s11, 1")
    e("s_mul_i32 s62, s62, 3")
    e("s_lshr_b32 s62, s62, 1")
    e("s_lshl_b32 s62, s62, 2")
    e(f"s_min_u32 s52, s36, {NST2-4}")
    def st_of(n):
        e(f"s_add_u32 s37, s36, {n}")
        e(f"s_cmp_ge_u32 s37, {NST2}")
        e(f"s_cselect_b32 s38, {4 if 'F' not in X else NST2}, 0")
        e("s_sub_u32 s37, s37, s38")
    e("s_barrier")
    k.stamp(3)
    def wpart2(n):
        st_of(n)
        e("s_lshl_b32 s26, s37, 17")
        e("s_add_u32 s26, s26, s48")
        e(f"s_add_u32 m0, s28, {n*STG2}")
        e("s_nop 0")
        for pp in range(4):
            e(f"buffer_load_dwordx4 v{VW2+pp}, s[40:43], s26 offen offset:{1024*pp}{NT2} lds")
    wpart2(0); wpart2(1); wpart2(2)
    if 'P' in X:
        e("s_lshl_b32 s31, s2, 2")
        e("s_add_u32 s31, s31, s24")
        e("s_lshl_b32 s31, s31, 12")
        e(f"s_add_u32 s31, s31, 0x{PART:x}")
        e("v_lshlrev_b32 v9, 6, v0")
        e("buffer_load_dword v210, v9, s[20:23], s31 offen sc1")
    wpart2(3)
    e("s_lshl_b32 s31, s53, 7")
    e("s_lshl_b32 s32, s24, 5")
    e("s_add_u32 s31, s31, s32")
    e("s_lshl_b32 s31, s31, 12")
    e("s_lshl_b32 s32, s13, 8")
    e("s_add_u32 s31, s31, s32")
    e("s_lshl_b32 s32, s15, 7")
    e("s_add_u32 s31, s31, s32")
    e(f"s_add_u32 s31, s31, 0x{HT:x}")
    e(f"s_add_u32 m0, s27, {RES}")
    e("s_nop 0")
    for pp in range(4):
        e(f"buffer_load_dwordx4 v{VR+pp}, s[20:23], s31 offen offset:{1024*pp} lds")
    def hpart2(n):
        st_of(n)
        e("s_lshl_b32 s25, s37, 11")
        e("s_add_u32 s25, s25, s47")
        e(f"s_add_u32 m0, s27, {n*STG2}")
        e("s_nop 0")
        for pp in range(4):
            e(f"buffer_load_dwordx4 v{VA+pp//2}, s[20:23], s25 offen offset:{1024*pp}{' nt' if 'T' in X else ''} lds")
    e(f"s_waitcnt vmcnt({17 if 'P' in X else 16})")
    k.stamp(4)
    e("s_barrier")
    e("s_mov_b32 s39, 0")
    e("s_mov_b64 exec, 0xff")
    k.label("hpoll")
    e("buffer_load_dwordx2 v[64:65], v11, s[20:23], s51 offen sc1")
    e("s_add_u32 s39, s39, 1")
    e("s_cmp_gt_u32 s39, 0x100000")
    e(f"s_cbranch_scc1 {k.L('hpolled')}")
    e("s_waitcnt vmcnt(0)")
    e("v_cmp_ne_u64 vcc, v[64:65], v[216:217]")
    e(f"s_cbranch_vccnz {k.L('hpoll')}")
    k.label("hpolled")
    e("s_mov_b64 exec, -1")
    hpart2(3)
    e("s_mov_b32 s29, 0")
    e(f"s_mov_b32 s35, {NB2}")
    def issue2():
        e("s_add_u32 s37, s35, s13")
        e(f"s_and_b32 s37, s37, {RW-1}")
        e(f"s_andn2_b32 s38, s35, {RW-1}")
        e("s_or_b32 s37, s37, s38")
        if 'F' in X:
            st_of("s37")
        else:
            e("s_sub_u32 s37, s37, 4")
            if 'g' not in X:
                e("s_add_u32 s37, s37, s62")
                e(f"s_cmp_ge_u32 s37, {NST2-4}")
                e(f"s_cselect_b32 s38, {NST2-4}, 0")
                e("s_sub_u32 s37, s37, s38")
            e("s_cmp_ge_u32 s37, s52")
            e("s_cselect_b32 s38, 4, 0")
            e("s_add_u32 s37, s37, s38")
        e("s_lshl_b32 s25, s37, 11")
        e("s_add_u32 s25, s25, s47")
        e("s_lshl_b32 s26, s37, 17")
        e("s_add_u32 m0, s27, s29")
        e("s_add_u32 s26, s26, s48")
        for pp in range(4):
            e(f"buffer_load_dwordx4 v{VA+pp//2}, s[20:23], s25 offen offset:{1024*pp}{' nt' if 'T' in X else ''} lds")
        e("s_add_u32 m0, s28, s29")
        e(f"s_add_u32 s29, s29, {STG2}")
        for pp in range(4):
            e(f"buffer_load_dwordx4 v{VW2+pp}, s[40:43], s26 offen offset:{1024*pp}{NT2} lds")
        e(f"s_and_b32 s29, s29, {NB2*STG2-1}")
        e("s_add_u32 s35, s35, 1")
    e("s_barrier")
    issue2()
    e("s_waitcnt vmcnt(12)")
    e("s_barrier")
    issue2()
    k.label("l2loop")
    e("s_waitcnt vmcnt(16)")
    e("s_barrier")
    issue2()
    e(f"s_cmp_lt_u32 s35, {NST2}")
    e(f"s_cbranch_scc1 {k.L('l2loop')}")
    for i in range(NST2-NB2, NST2):
        left = max(NST2 - 1 - (i + 1), 0)
        e(f"s_waitcnt vmcnt({left*8})")
        e("s_barrier")
    k.dump_stamps(1, 20, 10)
    e("s_endpgm")
```

```python
from asmlib import *
from layout import *
from k0 import ln_stats
import os
NTA = os.environ.get('NTA', ' nt')
F = os.environ.get('K0X', 'wncdT')

KCP = 4160
REG = 4*KCP + 512 + 4096
REG0 = 0
SKL = 4*REG
TILE = 90112
STAT = 135168
FLAG = 153664
LDS_ALL = FLAG + 128
TAG = 204

def emit_front(k):
    e = k.e
    k.pfx = "f_"
    e("s_cmp_ge_u32 s2, 256")
    e(f"s_cbranch_scc1 {k.L('end')}")
    k.clear_stamps()
    e("s_load_dwordx8 s[4:11], s[0:1], 0")
    e("s_load_dwordx4 s[52:55], s[0:1], 80")
    e("s_load_dwordx4 s[12:15], s[0:1], 32")
    e("s_load_dwordx4 s[56:59], s[0:1], 56")
    e("v_lshrrev_b32 v1, 6, v0")
    e("s_lshr_b32 s40, s2, 3")
    e("v_readfirstlane_b32 s60, v1")
    e("s_and_b32 s41, s2, 7")
    e("s_lshl_b32 s61, s41, 7")
    e("s_lshl_b32 s62, s40, 2")
    e("s_add_u32 s61, s61, s62")
    e("s_and_b32 s62, s60, 3")
    e("s_add_u32 s61, s61, s62")
    e(f"s_mul_i32 s63, s62, {REG}")
    e(f"s_add_u32 s63, s63, {REG0}")
    e("s_lshl_b32 s39, s41, 11")
    e("v_mov_b32 v207, 0")
    e("s_getreg_b32 s38, hwreg(HW_REG_XCC_ID, 0, 4)")
    if 'f' in F: e("s_add_u32 s38, s38, s40")
    e("v_mov_b32 v206, s38")
    e("s_cmp_ge_u32 s60, 4")
    e(f"s_cbranch_scc1 {k.L('bwave')}")

    def spin(off, cond, lab, sleep=0):
        if off is not None: e(f"v_mov_b32 v33, {off}")
        k.label(lab)
        if sleep: e(f"s_sleep {sleep}")
        e("ds_read_b32 v34, v33")
        e("s_waitcnt lgkmcnt(0)")
        e(cond)
        e(f"s_cbranch_vccnz {k.L(lab)}")
    def setflag(off):
        e(f"v_mov_b32 v200, {off}")
        e("v_mov_b32 v201, 1")
        e("ds_write_b32 v200, v201")
    def publish(cnt_off, base, lab, r=200):
        e(f"v_mov_b32 v{r}, {FLAG + cnt_off}")
        e(f"v_mov_b32 v{r+1}, 1")
        e("s_mov_b64 exec, 1")
        e(f"ds_add_rtn_u32 v{r+2}, v{r}, v{r+1}")
        e("s_waitcnt lgkmcnt(0)")
        e(f"v_readfirstlane_b32 s3, v{r+2}")
        e("s_cmp_eq_u32 s3, 3")
        e(f"s_cbranch_scc0 {k.L(lab)}")
        e("s_lshl_b32 s3, s40, 14")
        e(f"v_mov_b32 v{r}, s3")
        e(f"s_add_u32 s3, s39, 0x{base:x}")
        e(f"buffer_store_dwordx3 {vr(TAG,3)}, v{r}, s[32:35], s3 offen")
        e(f"s_add_u32 s3, s3, 0x{FB_:x}")
        e(f"buffer_store_dwordx3 {vr(TAG,3)}, v{r}, s[32:35], s3 offen sc1")
        k.label(lab)
        e("s_mov_b64 exec, -1")
    def poll(base, lab, dual=True):
        e("v_and_b32 v121, 31, v0")
        e("v_lshlrev_b32 v121, 14, v121")
        e(f"s_add_u32 s28, s39, 0x{base:x}")
        e(f"s_add_u32 s29, s39, 0x{base + FB_:x}")
        e("s_mov_b32 s3, 0")
        e("v_mov_b32 v122, 0")
        e("s_mov_b64 exec, 0xffffffff")
        k.label(lab)
        e("buffer_load_dwordx3 v[116:118], v121, s[32:35], s28 offen sc1")
        e("s_add_u32 s3, s3, 1")
        if dual:
            e("s_and_b32 s26, s3, 3")
            e(f"s_cbranch_scc1 {k.L(lab + '_a')}")
            e("buffer_load_dwordx3 v[122:124], v121, s[32:35], s29 offen sc1")
            k.label(lab + "_a")
        e("s_cmp_gt_u32 s3, 0x100000")
        e(f"s_cbranch_scc1 {k.L(lab + '_x')}")
        e("s_waitcnt vmcnt(0)")
        e(f"v_cmp_ne_u64 vcc, v[116:117], {vr(TAG,2)}")
        if dual:
            e(f"v_cmp_ne_u64 s[24:25], v[122:123], {vr(TAG,2)}")
            e("s_nop 0")
            e("v_cndmask_b32 v118, v118, v124, vcc")
            e("s_and_b64 vcc, vcc, s[24:25]")
        e(f"s_cbranch_vccnz {k.L(lab)}")
        k.label(lab + "_x")
        e("s_waitcnt vmcnt(0)")
        e("v_cmp_ne_u32 vcc, s38, v118")
        e("s_mov_b64 exec, -1")
    def tagload():
        e(f"buffer_load_dwordx2 {vr(TAG,2)}, v207, s[44:47], 0 offen sc1")
    def tagcheck(lab):
        e("s_mov_b32 s3, 0")
        k.label(lab)
        e(f"v_cmp_eq_u32 vcc, 0, v{TAG}")
        e(f"s_cbranch_vccz {k.L(lab + '_x')}")
        tagload()
        e("s_waitcnt vmcnt(0)")
        e("s_add_u32 s3, s3, 1")
        e("s_cmp_lt_u32 s3, 0x100000")
        e(f"s_cbranch_scc1 {k.L(lab)}")
        k.label(lab + "_x")
        e(f"v_readfirstlane_b32 s98, v{TAG}")
        e(f"v_readfirstlane_b32 s99, v{TAG+1}")
    def finish(lab, target):
        fin_count(lab)
        e(f"s_branch {target}")
    def fin_count(lab):
        e("s_mov_b64 exec, -1")
        e(f"v_mov_b32 v200, {FLAG+52}")
        e("v_mov_b32 v201, 1")
        e("s_waitcnt vmcnt(0)")
        e("s_mov_b64 exec, 1")
        e("ds_add_rtn_u32 v202, v200, v201")
        e("s_waitcnt lgkmcnt(0)")
        e("v_readfirstlane_b32 s3, v202")
        e("s_cmp_eq_u32 s3, 7")
        e(f"s_cbranch_scc0 {k.L(lab)}")
        e("s_lshl_b32 s3, s2, 11")
        e(f"s_add_u32 s3, s3, 0x{FHT:x}")
        e(f"buffer_store_dwordx2 {vr(TAG,2)}, v207, s[32:35], s3 offen sc1")
        k.label(lab)
        e("s_mov_b64 exec, -1")

    e("v_and_b32 v6, 15, v0")
    e("v_lshrrev_b32 v7, 4, v0")
    e("s_lshl_b32 s42, s40, 17")
    e("s_lshl_b32 s43, s41, 8")
    e("s_add_u32 s42, s42, s43")
    e("v_lshlrev_b32 v1, 13, v7")
    e("v_lshl_add_u32 v1, v6, 4, v1")
    e("v_add_u32 v1, s42, v1")
    e("v_add_u32 v2, 0x1000, v1")
    e("v_add_u32 v3, 0xffffe800, v1")
    e("v_add_u32 v4, 0xfffff000, v1")
    e("v_add_u32 v5, 0xfffff800, v1")
    e("s_lshl_b32 s48, s41, 10")
    e("v_and_b32 v9, 63, v0")
    e("v_lshlrev_b32 v9, 4, v9")
    e(f"s_mov_b32 m0, {SKL}")
    e("s_waitcnt lgkmcnt(0)")
    k.srd(20, 6, 7, 4*MB)
    k.srd(24, 8, 9, 4*MB)
    k.srd(28, 10, 11, 8192)
    KR = 12; VR = 40; XR = 56; SK = 72
    e("buffer_load_dwordx4 v9, s[28:31], s48 offen lds")
    for i in range(4):
        e(f"buffer_load_dwordx4 {vr(KR+12+4*i,4)}, v{1+i//2}, s[20:23], 0 offen offset:{2048*(i%2)}{NTA}")
    for i in range(4):
        e(f"buffer_load_dwordx4 {vr(VR+4*i,4)}, v{1+i//2}, s[24:27], 0 offen offset:{2048*(i%2)}{NTA}")
    e(f"buffer_load_dwordx4 {vr(KR,4)}, v3, s[20:23], 0 offen{NTA}")
    e(f"buffer_load_dwordx4 {vr(KR+4,4)}, v4, s[20:23], 0 offen{NTA}")
    e(f"buffer_load_dwordx4 {vr(KR+8,4)}, v5, s[20:23], 0 offen{NTA}")
    k.srd(16, 4, 5, 4*MB)
    for i in range(4):
        e(f"buffer_load_dwordx4 {vr(XR+4*i,4)}, v{1+i//2}, s[16:19], 0 offen offset:{2048*(i%2)}{NTA}")
    k.srd(44, 52, 53, 256)
    tagload()
    e("s_barrier")
    k.srd(32, 54, 55, WS_BYTES)
    e("s_and_b32 s3, s61, -2")
    e("s_lshl_b32 s3, s3, 1")
    e("s_load_dword s51, s[14:15], s3")
    e("v_and_b32 v10, 14, v6")
    e("v_xor_b32 v11, v10, v7")
    e("v_xor_b32 v10, 1, v11")
    e("v_lshlrev_b32 v8, 10, v6")
    e("v_lshl_add_u32 v10, v10, 3, v8")
    e("v_lshl_add_u32 v11, v11, 3, v8")
    e(f"v_add_u32 v10, {TILE}, v10")
    e(f"v_add_u32 v11, {TILE}, v11")
    e(f"v_lshlrev_b32 v8, 6, v6")
    e(f"v_add_u32 v8, {SKL}, v8")
    e("s_mov_b32 s48, 0x05040100")
    e("s_mov_b32 s49, 0x07060302")
    e("s_mov_b32 s50, 0xffff0000")
    T = 104; KU = 112
    ACC = [2, 4, 8, 6]
    k.stamp(1)
    e("s_waitcnt vmcnt(16)")
    for q in range(4):
        e(f"ds_read_b128 {vr(SK+4*q,4)}, v8 offset:{16*q}")
    e("s_waitcnt vmcnt(5) lgkmcnt(0)")
    setflag(FLAG + 24)
    k.stamp(2)
    k.label("kv")
    for jj in range(4):
        for c in range(2):
            d0 = SK + 4*jj + 2*c
            e(f"v_lshlrev_b32 v{T+0+c}, 16, v{d0}")
            e(f"v_and_b32 v{T+2+c}, s50, v{d0}")
            e(f"v_lshlrev_b32 v{T+4+c}, 16, v{d0+1}")
            e(f"v_and_b32 v{T+6+c}, s50, v{d0+1}")
        for r in range(7):
            e(f"v_lshlrev_b32 v{KU+2*r}, 16, v{KR+4*r+jj}")
            e(f"v_and_b32 v{KU+2*r+1}, s50, v{KR+4*r+jj}")
        for tap in (3, 2, 1, 0):
            for i in range(4):
                kk = KU + 2*(i+3-tap)
                if tap == 3:
                    e(f"v_pk_mul_f32 {vr(ACC[i],2)}, {vr(kk,2)}, {vr(T+2*tap,2)}")
                else:
                    e(f"v_pk_fma_f32 {vr(ACC[i],2)}, {vr(kk,2)}, {vr(T+2*tap,2)}, {vr(ACC[i],2)}")
        for i in range(4):
            e(f"v_lshlrev_b32 v{KU+2*i}, 16, v{VR+4*i+jj}")
            e(f"v_and_b32 v{KU+2*i+1}, s50, v{VR+4*i+jj}")
        for i in range(4):
            e(f"v_pk_mul_f32 {vr(ACC[i],2)}, {vr(ACC[i],2)}, {vr(KU+2*i,2)}")
        P = KU + 8
        for c in range(2):
            e(f"v_cvt_pk_bf16_f32 v{P+2*c}, v{ACC[3]+c}, v{ACC[2]+c}")
            e(f"v_cvt_pk_bf16_f32 v{P+2*c+1}, v{ACC[1]+c}, v{ACC[0]+c}")
        for c in range(2):
            e(f"ds_write_b64 v10, {vr(P+2*c,2)} offset:{128*(2*jj+c)}")
    e("s_waitcnt vmcnt(1)")
    for jj in range(4):
        for c in range(2):
            P = KR + 4*jj + 2*c
            sel = "s48" if c == 0 else "s49"
            e(f"v_perm_b32 v{P}, v{XR+4+jj}, v{XR+jj}, {sel}")
            e(f"v_perm_b32 v{P+1}, v{XR+12+jj}, v{XR+8+jj}, {sel}")
            e(f"ds_write_b64 v11, {vr(P,2)} offset:{16384+128*(2*jj+c)}")
    e("v_and_b32 v1, 7, v0")
    e("v_lshrrev_b32 v2, 7, v0")
    e("v_xor_b32 v2, v2, v1")
    e("v_lshrrev_b32 v3, 3, v0")
    e("v_lshlrev_b32 v4, 7, v3")
    e("v_lshl_add_u32 v4, v2, 4, v4")
    e(f"v_add_u32 v4, {TILE}, v4")
    e("v_xor_b32 v5, 32, v4")
    e("v_xor_b32 v6, 64, v4")
    e("v_xor_b32 v7, 96, v4")
    e("v_lshlrev_b32 v3, 12, v3")
    e("v_lshl_add_u32 v37, v1, 4, v3")
    e(f"v_mov_b32 v33, {FLAG+12}")
    e("v_mov_b32 v34, 1")
    e("s_waitcnt lgkmcnt(0)")
    e(f"s_cbranch_execz {k.L('kvback')}")
    e("s_mov_b64 exec, 1")
    e("ds_add_u32 v33, v34")
    e("s_mov_b64 exec, -1")
    e("s_lshl_b32 s4, s41, 19")
    e("s_lshl_b32 s5, s40, 7")
    e("s_add_u32 s4, s4, s5")
    for i in range(8):
        e(f"s_add_u32 s{16+i}, s4, 0x{(i%4)*131072 + (XT if i >= 4 else UT):x}")
    k.stamp(3)
    spin(None, "v_cmp_gt_u32 vcc, 4, v34", "waitT")
    R = 40
    for i in range(8):
        e(f"ds_read_b128 {vr(R+4*i,4)}, v{4+i%4} offset:{4096*(i%4) + (16384 if i >= 4 else 0)}")
    for i in range(4):
        e(f"s_waitcnt lgkmcnt({7-i})")
        e(f"buffer_store_dwordx4 {vr(R+4*i,4)}, v37, s[32:35], s{16+i} offen")
    e("v_and_b32 v0, 63, v0")
    e("v_and_b32 v5, 15, v0")
    e("v_lshrrev_b32 v6, 4, v0")
    e("s_lshl_b32 s12, s61, 12")
    e("v_lshlrev_b32 v7, 5, v5")
    e("v_lshl_add_u32 v7, v6, 3, v7")
    e(f"s_add_u32 s29, s12, 0x{HT:x}")
    e("v_sub_u32 v33, 7, v5")
    e("v_and_b32 v33, 3, v33")
    e(f"v_mul_u32_u24 v33, {KCP}, v33")
    e("v_lshrrev_b32 v34, 2, v5")
    e("v_lshl_add_u32 v33, v34, 3, v33")
    e("v_lshlrev_b32 v34, 4, v6")
    e("v_sub_u32 v33, v33, v34")
    e("s_add_u32 s30, s63, 24")
    e("v_add_u32 v1, s30, v33")
    e("v_lshlrev_b32 v33, 5, v5")
    e("v_add_u32 v33, v33, v34")
    e(f"s_add_u32 s30, s63, {4*KCP + 512 - 32*15}")
    e("v_add_u32 v3, s30, v33")
    AD = 192
    e("v_lshrrev_b32 v33, 3, v5")
    e("v_add_u32 v33, 2, v33")
    e("v_and_b32 v34, 7, v5")
    e("v_sub_u32 v34, 7, v34")
    e("v_cmp_eq_u32 vcc, v33, v6")
    e("v_lshrrev_b32 v35, 1, v34")
    e("v_and_b32 v34, 1, v34")
    e("v_cndmask_b32 v35, 9, v35, vcc")
    e("v_lshlrev_b32 v34, 4, v34")
    e("s_and_b32 s31, s61, 1")
    e("s_lshl_b32 s31, s31, 4")
    e("s_lshr_b32 s51, s51, s31")
    e("s_and_b32 s51, s51, 0xffff")
    e("v_mov_b32 v33, s51")
    e("v_lshlrev_b32 v34, v34, v33")
    for r in range(4):
        e(f"v_cmp_eq_u32 vcc, {r}, v35")
        e("s_nop 1")
        e(f"v_cndmask_b32 v{AD+r}, 0, v34, vcc")
    e("s_waitcnt vmcnt(0)")
    tagcheck("tagA")
    publish(0, FU, "pubU")
    k.stamp(4)
    for i in range(4, 8):
        e(f"buffer_store_dwordx4 {vr(R+4*i,4)}, v37, s[32:35], s{16+i} offen")
    FA = [64, 128]; FB = [96, 160]; AC = 8
    def reads(buf, ep):
        r = []
        for w in range(8):
            r.append(f"ds_read_b128 {vr(FB[buf]+4*w,4)}, v3 offset:{512*w + 32*(15-ep)}")
        for v in range(8):
            r.append(f"ds_read_b64 {vr(FA[buf]+4*v,2)}, v1 offset:{32*ep + 512*v}")
            r.append(f"ds_read_b64 {vr(FA[buf]+4*v+2,2)}, v1 offset:{32*ep + 512*v + 8}")
        return r
    def mfmas(buf):
        m = []
        for v in range(8):
            for w in range(8 - v):
                t = v + w
                m.append(f"v_mfma_f32_16x16x32_bf16 {vr(AC+4*t,4)}, {vr(FA[buf]+4*v,4)}, {vr(FB[buf]+4*w,4)}, {vr(AC+4*t,4)}")
        return m
    e("s_waitcnt vmcnt(0)")
    publish(4, FX, "pubX")
    e("s_lshl_b32 s3, s60, 2")
    e(f"s_add_u32 s3, s3, {FLAG+32}")
    e("v_mov_b32 v33, s3")
    spin(None, "v_cmp_eq_u32 vcc, 0, v34", "waitK")
    rd = reads(0, 1)
    for r in rd[8:]: e(r)
    spin(None, "v_cmp_gt_u32 vcc, 2, v34", "waitU")
    k.stamp(5)
    for r in rd[:8]: e(r)
    for t in range(8):
        e(f"s_waitcnt lgkmcnt({7-t})")
        e(f"v_mfma_f32_16x16x32_bf16 {vr(AC+4*t,4)}, {vr(AD,4)}, {vr(FB[0]+4*t,4)}, 0")
    e("s_mov_b32 s26, 0")
    k.label("loop")
    for buf, nxt in ((0, 3), (1, 5)):
        e("s_waitcnt lgkmcnt(0)")
        rd = reads(1 - buf, nxt)
        for i, m in enumerate(mfmas(buf)):
            e(m)
            if i < len(rd): e(rd[i])
    e("v_add_u32 v1, 128, v1")
    e("v_add_u32 v3, -128, v3")
    e("s_add_u32 s26, s26, 1")
    e("s_cmp_lt_u32 s26, 4")
    e(f"s_cbranch_scc1 {k.L('loop')}")
    e("v_lshlrev_b32 v1, 6, v5")
    e("v_lshl_add_u32 v1, v6, 4, v1")
    e(f"v_add_u32 v1, {STAT}, v1")
    e("s_lshl_b32 s26, s60, 12")
    e(f"s_add_u32 s26, s26, {TILE}")
    e("v_add_u32 v2, s26, v7")
    e(f"v_mov_b32 v3, {FLAG+16}")
    e("v_and_b32 v4, 1, v6")
    e("v_lshlrev_b32 v4, 9, v4")
    e("v_lshl_add_u32 v4, v5, 5, v4")
    e("v_lshrrev_b32 v200, 1, v6")
    e("v_lshl_add_u32 v4, v200, 4, v4")
    k.stamp(6)
    k.label("spoll")
    e("ds_read_b64 v[64:65], v3")
    e("s_waitcnt lgkmcnt(0)")
    e("v_and_b32 v64, v64, v65")
    e("v_cmp_eq_u32 vcc, 0, v64")
    e(f"s_cbranch_vccnz {k.L('spoll')}")
    MS = 64; RS = 96; XV = 176
    for t in range(8):
        e(f"ds_read_b64 {vr(XV+2*t,2)}, v2 offset:{512*t}")
    for t in range(3):
        e(f"ds_read_b128 {vr(MS+4*t,4)}, v1 offset:{1024*t}")
        e(f"ds_read_b128 {vr(RS+4*t,4)}, v1 offset:{1024*t+8192}")
    e("s_waitcnt lgkmcnt(6)")
    for t in range(8):
        if t + 3 < 8:
            e(f"ds_read_b128 {vr(MS+4*(t+3),4)}, v1 offset:{1024*(t+3)}")
            e(f"ds_read_b128 {vr(RS+4*(t+3),4)}, v1 offset:{1024*(t+3)+8192}")
        xu = 128 + 8*(t % 2); q = xu + 4
        e(f"v_lshlrev_b32 v{xu}, 16, v{XV+2*t}")
        e(f"v_and_b32 v{xu+1}, s50, v{XV+2*t}")
        e(f"v_lshlrev_b32 v{xu+2}, 16, v{XV+2*t+1}")
        e(f"v_and_b32 v{xu+3}, s50, v{XV+2*t+1}")
        e(f"s_waitcnt lgkmcnt({2*min(3, 7-t)})")
        for h in range(2):
            e(f"v_pk_add_f32 {vr(q+2*h,2)}, {vr(xu+2*h,2)}, {vr(MS+4*t+2*h,2)} neg_lo:[0,1] neg_hi:[0,1]")
        for h in range(2):
            e(f"v_pk_mul_f32 {vr(q+2*h,2)}, {vr(q+2*h,2)}, {vr(RS+4*t+2*h,2)}")
        for h in range(2):
            e(f"v_pk_fma_f32 {vr(q+2*h,2)}, {vr(q+2*h,2)}, {vr(AC+4*t+2*h,2)}, {vr(xu+2*h,2)}")
        e(f"v_cvt_pk_bf16_f32 v{XV+2*t}, v{q}, v{q+1}")
        e(f"v_cvt_pk_bf16_f32 v{XV+2*t+1}, v{q+2}, v{q+3}")
        if t % 2 == 1:
            e("s_nop 1")
            e(f"v_permlane16_swap_b32 v{XV+2*t-2}, v{XV+2*t}")
            e(f"v_permlane16_swap_b32 v{XV+2*t-1}, v{XV+2*t+1}")
            e(f"buffer_store_dwordx4 {vr(XV+2*t-2,4)}, v4, s[32:35], s29 offen offset:{512*(t-1)} sc1")
    e(f"v_mov_b32 v200, {FLAG+48}")
    e("v_mov_b32 v201, 1")
    e("s_waitcnt lgkmcnt(0)")
    e("s_mov_b64 exec, 1")
    e("ds_add_u32 v200, v201")
    e("s_mov_b64 exec, -1")
    k.stamp(7) if not STAMP else k.dump_stamps(0, 32, 60, keep=True)
    finish("finA", "Lmlp_compute")

    k.label("bwave")
    k.role = "B"
    e("s_setprio 3")
    e("v_and_b32 v0, 63, v0")
    e("v_lshlrev_b32 v2, 4, v0")
    e("v_mov_b32 v36, 0"); e("v_mov_b32 v37, 0"); e("v_mov_b32 v38, 0"); e("v_mov_b32 v39, 0")
    e("v_min_u32 v33, 48, v2")
    e(f"v_add_u32 v33, {FLAG}, v33")
    e("ds_write_b128 v33, v[36:39]")
    e("s_memrealtime s[48:49]")
    e("s_waitcnt lgkmcnt(0)")
    k.srd(44, 52, 53, 256)
    e("s_or_b32 s48, s48, 1")
    e("s_add_u32 s3, s2, s62")
    e("s_cmp_eq_u32 s3, 0")
    e(f"s_cbranch_scc0 {k.L('notag')}")
    e("v_mov_b32 v40, s48"); e("v_mov_b32 v41, s49")
    e("s_mov_b64 exec, 1")
    e("buffer_store_dwordx2 v[40:41], v207, s[44:47], 0 offen sc1")
    e("s_mov_b64 exec, -1")
    k.label("notag")
    e("s_setprio 0")
    e("v_add_u32 v3, -8, v2")
    e("v_add_u32 v4, 1016, v2")
    e("s_lshl_b32 s42, s61, 12")
    e("s_add_u32 s20, s12, s42")
    e("s_addc_u32 s21, s13, 0")
    e("s_and_b32 s21, s21, 0xffff")
    e("s_mov_b32 s22, 4096")
    e("s_mov_b32 s23, 0x20000")
    k.srd(16, 4, 5, 4*MB)
    k.srd(32, 54, 55, WS_BYTES)
    e("s_lshl_b32 s43, s2, 14")
    e("s_lshl_b32 s3, s62, 12")
    e("s_add_u32 s43, s43, s3")
    e("v_bfe_u32 v32, v0, 1, 2")
    e(f"v_mul_u32_u24 v32, {KCP}, v32")
    e("v_and_b32 v33, 1, v0")
    e("v_lshl_add_u32 v32, v33, 4, v32")
    e(f"v_add_u32 v33, {4*KCP}, v2")
    e("v_cmp_gt_u32 vcc, 32, v0")
    e("s_nop 1")
    e("v_cndmask_b32 v32, v32, v33, vcc")
    e("v_add_u32 v32, s63, v32")
    e("ds_write_b128 v32, v[36:39]")
    if 'd' not in F:
        e("s_mov_b64 exec, 0")
        e(f"s_branch {k.L('kv')}")
    k.label("kvback")
    e("s_mov_b64 exec, -1")
    e("s_barrier")
    if 'p' not in F:
        e("s_lshl_b32 s3, s2, 11")
        e(f"s_add_u32 s3, s3, 0x{HO:x}")
        e("s_lshr_b32 s24, s41, 1")
        e("s_lshl_b32 s24, s24, 2")
        e("s_and_b32 s25, s40, 3")
        e("s_add_u32 s24, s24, s25")
        e("s_and_b32 s25, s41, 1")
        e("s_lshl_b32 s25, s25, 3")
        e("s_lshr_b32 s26, s40, 2")
        e("s_add_u32 s25, s25, s26")
        e("s_lshl_b32 s26, s24, 4")
        e("s_add_u32 s26, s26, s25")
        e("s_lshl_b32 s26, s26, 11")
        e(f"s_add_u32 s26, s26, 0x{SP2:x}")
        e("s_lshl_b32 s25, s25, 4")
        e("s_add_u32 s25, s25, s24")
        e("s_lshl_b32 s25, s25, 11")
        e(f"s_add_u32 s25, s25, 0x{CP:x}")
        e("s_lshl_b32 s24, s2, 6")
        e(f"s_add_u32 s24, s24, 0x{SG:x}")
        e("s_cmp_eq_u32 s62, 1")
        e("s_cselect_b32 s3, s26, s3")
        e("s_cmp_eq_u32 s62, 2")
        e("s_cselect_b32 s3, s25, s3")
        e("s_cmp_eq_u32 s62, 3")
        e("s_cselect_b32 s3, s24, s3")
        e("s_cselect_b64 exec, 1, 0xffff")
        e("v_lshlrev_b32 v32, 7, v0")
        e("buffer_load_dword v211, v32, s[32:35], s3 offen")
        e("s_mov_b64 exec, -1")
    if 'U' in F or 'V' in F:
        e("s_lshl_b32 s24, s41, 19")
        e("s_lshl_b32 s25, s40, 7")
        e("s_add_u32 s24, s24, s25")
        e("s_lshl_b32 s25, s62, 17")
        e("s_add_u32 s24, s24, s25")
        e("v_and_b32 v32, 31, v0")
        e("v_lshlrev_b32 v32, 12, v32")
        e("v_lshrrev_b32 v33, 5, v0")
        e("v_lshl_add_u32 v32, v33, 22, v32")
        if 'V' not in F: e("s_mov_b64 exec, 0xffffffff")
        e(f"buffer_load_dword v209, v32, s[32:35], s24 offen{NTA}")
        e("s_mov_b64 exec, -1")
    if 'c' not in F:
        e("s_and_b32 s3, s40, 7")
        e(f"s_cbranch_scc1 {k.L('nocode')}")
        e("s_getpc_b64 s[48:49]")
        k.label("pc")
        e("s_lshl_b32 s3, s62, 13")
        e("v_lshl_add_u32 v32, v0, 7, s3")
        e(f"v_min_u32 v32, Lcode_end-{k.L('pc')}-4, v32")
        e("global_load_dword v210, v32, s[48:49]")
        k.label("nocode")
    XW = 1 if ('x' in F or 'y' in F) else 0
    if XW:
        k.srd(28, 58, 59, 1024*3584*2)
        e("s_lshl_b32 s3, s2, 2")
        e("s_add_u32 s3, s3, s62")
        e(f"s_mul_i32 s3, s3, {56*128}")
        e("v_lshlrev_b32 v32, 7, v0")
        e(f"s_mov_b64 exec, {'0xfffffff' if 'y' in F else '-1'}")
        e("buffer_load_dword v209, v32, s[28:31], s3 offen")
        e("s_mov_b64 exec, -1")
    if 'e' not in F:
        spin(FLAG + 24, "v_cmp_eq_u32 vcc, 0, v34", "waitL", sleep=1)
    k.stamp(1)
    Y = 8; W = 24; ST = 88
    for i in range(4):
        e(f"buffer_load_dwordx4 {vr(Y+4*i,4)}, v2, s[20:23], 0 offen offset:{1024*i}{NTA}")
        if i == 0: e(f"buffer_load_dwordx2 {vr(W,2)}, v3, s[20:23], 0 offen{NTA}")
        else:      e(f"buffer_load_dwordx2 {vr(W+2*i,2)}, v4, s[20:23], 0 offen offset:{1024*(i-1)}{NTA}")
    for i in range(4):
        e(f"buffer_load_dwordx4 {vr(ST+4*i,4)}, v2, s[16:19], s43 offen offset:{1024*i}{NTA}")
    tagload()
    e("s_add_u32 s30, s63, 32")
    e("v_add_u32 v4, s30, v2")
    for i in range(4):
        e(f"s_waitcnt vmcnt({5 + 2*(3-i)})")
        y = Y + 4*i; w = W + 2*i
        X = 44 + 12*(i % 2); P1 = X + 4; P3 = X + 8
        e(f"ds_write_b128 v4, {vr(y,4)} offset:{1024*i}")
        e(f"v_mov_b32 v{X}, v{w+1}")
        for j in range(3): e(f"v_mov_b32 v{X+1+j}, v{y+j}")
        e(f"ds_write_b128 v4, {vr(X,4)} offset:{1024*i + 2*KCP}")
        e(f"v_alignbit_b32 v{P1}, v{y}, v{w+1}, 16")
        for j in range(3): e(f"v_alignbit_b32 v{P1+1+j}, v{y+1+j}, v{y+j}, 16")
        e(f"ds_write_b128 v4, {vr(P1,4)} offset:{1024*i + KCP}")
        e(f"v_alignbit_b32 v{P3}, v{w+1}, v{w}, 16")
        for j in range(3): e(f"v_mov_b32 v{P3+1+j}, v{P1+j}")
        e(f"ds_write_b128 v4, {vr(P3,4)} offset:{1024*i + 3*KCP}")
    e("s_lshl_b32 s3, s62, 2")
    e(f"s_add_u32 s3, s3, {FLAG+32}")
    e("v_mov_b32 v33, s3")
    e("v_mov_b32 v34, 1")
    e("s_waitcnt lgkmcnt(0)")
    e("ds_write_b32 v33, v34")
    k.stamp(2)
    S = [104, 105]; Q = [106, 107]
    for r in S + Q: e(f"v_mov_b32 v{r}, 0")
    e("s_mov_b32 s48, 0x3f803f80")
    e("s_waitcnt vmcnt(0)")
    for j in range(8):
        for r in range(2):
            e(f"v_dot2c_f32_bf16 v{S[r]}, s48, v{ST+8*r+j}")
            e(f"v_dot2c_f32_bf16 v{Q[r]}, v{ST+8*r+j}, v{ST+8*r+j}")
    e("s_nop 2")
    for mode in ("quad_perm:[1,0,3,2] row_mask:0xf", "quad_perm:[2,3,0,1] row_mask:0xf", "row_half_mirror row_mask:0xf",
                 "row_mirror row_mask:0xf", "row_bcast:15 row_mask:0xa", "row_bcast:31 row_mask:0xc"):
        for r in S + Q:
            e(f"v_add_f32_dpp v{r}, v{r}, v{r} {mode} bank_mask:0xf")
    ln_stats(k, S, Q, [108, 109], None, [112, 113], recip=False)
    tagcheck("tagB")
    e("s_mov_b32 s48, 0x07060302")
    e(f"v_perm_b32 v{TAG-2}, v112, v108, s48")
    e(f"v_perm_b32 v{TAG-1}, v113, v109, s48")
    e("s_lshl_b32 s48, s2, 6")
    e("s_lshl_b32 s49, s62, 4")
    e("s_add_u32 s48, s48, s49")
    e(f"s_add_u32 s48, s48, 0x{SG:x}")
    e("s_mov_b32 exec_lo, 0")
    e("s_mov_b32 exec_hi, 0x80000000")
    e(f"buffer_store_dwordx4 {vr(TAG-2,4)}, v207, s[32:35], s48 offen sc1")
    e("s_mov_b64 exec, -1")
    k.stamp(3)
    e("s_cmp_eq_u32 s62, 3")
    e(f"s_cbranch_scc0 {k.L('notB3')}")
    poll(FU, "pollU")
    e(f"s_cbranch_vccz {k.L('oneXCD')}")
    setflag(FLAG + 60)
    spin(FLAG + 4, "v_cmp_gt_u32 vcc, 4, v34", "waitX")
    e("buffer_wbl2 sc1")
    e("s_waitcnt vmcnt(0)")
    e("s_lshl_b32 s3, s40, 14")
    e("v_mov_b32 v200, s3")
    e(f"s_add_u32 s3, s39, 0x{F2:x}")
    e("s_mov_b64 exec, 1")
    e(f"buffer_store_dwordx3 {vr(TAG,3)}, v200, s[32:35], s3 offen sc1")
    e("s_mov_b64 exec, -1")
    poll(F2, "poll2", dual=False)
    e("buffer_inv sc1")
    e("s_waitcnt vmcnt(0)")
    k.label("oneXCD")
    k.stamp(1)
    k.note("s3", 16)
    setflag(FLAG + 8)
    k.label("notB3")
    spin(FLAG + 8, "v_cmp_eq_u32 vcc, 0, v34", "waitGo")
    e(f"s_add_u32 m0, s63, {4*KCP + 512}")
    e(f"s_add_u32 s14, s42, 0x{UT:x}")
    for p in range(4):
        e(f"buffer_load_dwordx4 v2, s[32:35], s14 offen offset:{1024*p}{' nt' if 'T' in F else ''} lds")
    e("s_lshl_b32 s3, s62, 2")
    e(f"s_add_u32 s3, s3, {FLAG+32}")
    e("v_mov_b32 v33, s3")
    e("v_mov_b32 v34, 2")
    e("s_waitcnt vmcnt(0)")
    e("ds_write_b32 v33, v34")
    k.stamp(2)
    if 'z' in F:
        k.srd(28, 58, 59, 1024*3584*2)
        e("s_lshl_b32 s3, s2, 2")
        e("s_add_u32 s3, s3, s62")
        e(f"s_mul_i32 s3, s3, {56*128}")
        e("v_lshlrev_b32 v32, 7, v0")
        e("buffer_load_dword v209, v32, s[28:31], s3 offen")
    e("s_cmp_eq_u32 s62, 1")
    e(f"s_cbranch_scc0 {k.L('notB1')}")
    e("s_lshl_b32 s3, s2, 11")
    e(f"s_add_u32 s3, s3, 0x{XID:x}")
    e("s_mov_b64 exec, 1")
    e(f"buffer_store_dwordx3 {vr(TAG,3)}, v207, s[32:35], s3 offen sc1")
    e("s_mov_b64 exec, -1")
    k.label("notB1")
    e("s_cmp_ge_u32 s62, 2")
    e(f"s_cbranch_scc1 {k.L('bfetch')}")
    fin_count("finB01")
    spin(FLAG + 56, "v_cmp_gt_u32 vcc, 2, v34", "waitG", sleep=2)
    k.stamp(4)
    for ch, ptr in (("n", 56), ("w", 58)):
        if ch in F: continue
        k.srd(16, ptr, ptr + 1, 1024*3584*2)
        e("s_lshl_b32 s30, s2, 1")
        e("s_add_u32 s30, s30, s62")
        e(f"s_mul_i32 s30, s30, {112*128}")
        e("v_lshlrev_b32 v6, 7, v0")
        e("v_add_u32 v7, 6144, v6")
        e("buffer_load_dword v210, v6, s[16:19], s30 offen")
        e("buffer_load_dword v211, v7, s[16:19], s30 offen")
    if STAMP: k.dump_stamps(0, 32, 60, keep=True)
    e("s_branch Lmlp_loader")
    k.label("bfetch")
    e("s_sub_u32 s11, s62, 2")
    e("s_lshl_b32 s12, s11, 13")
    poll(FX, "pollX")
    k.stamp(4)
    e("s_sub_u32 s13, s61, s62")
    e("s_lshl_b32 s13, s13, 12")
    e("s_add_u32 s13, s13, s12")
    for q in range(2):
        e(f"s_add_u32 m0, s12, {TILE + 4096*q}")
        e(f"s_add_u32 s14, s13, 0x{XT + 4096*q:x}")
        for p in range(4):
            e(f"buffer_load_dwordx4 v2, s[32:35], s14 offen offset:{1024*p}{' nt' if 'T' in F else ''} lds")
    e(f"s_add_u32 s13, s12, 0x{SG:x}")
    e("s_add_u32 s14, s13, 4096")
    e("s_mov_b32 s3, 0")
    for q in range(8):
        e(f"buffer_load_dwordx4 {vr(16+4*q,4)}, v2, s[32:35], s{13 + q//4} offen offset:{1024*(q%4)}")
    e(f"v_mov_b32 v200, {FLAG+56}")
    e("v_mov_b32 v201, 1")
    e("s_mov_b64 exec, 1")
    e("ds_add_u32 v200, v201")
    e("s_mov_b64 exec, -1")
    e(f"s_branch {k.L('pollS_c')}")
    k.label("pollS")
    for q in range(8):
        e(f"buffer_load_dwordx4 {vr(16+4*q,4)}, v2, s[32:35], s{13 + q//4} offen offset:{1024*(q%4)} sc1")
    k.label("pollS_c")
    e("s_add_u32 s3, s3, 1")
    e("s_cmp_gt_u32 s3, 0x40000")
    e(f"s_cbranch_scc1 {k.L('pollS_x')}")
    e("s_waitcnt vmcnt(0)")
    e("s_mov_b64 s[22:23], 0")
    for q in range(8):
        e(f"v_cmp_ne_u64 vcc, {vr(18+4*q,2)}, {vr(TAG,2)}")
        e("s_or_b64 s[22:23], s[22:23], vcc")
    e("s_cmp_lg_u64 s[22:23], 0")
    e(f"s_cbranch_scc0 {k.L('pollS_x')}")
    e("s_sleep 8")
    e(f"s_branch {k.L('pollS')}")
    k.label("pollS_x")
    e("s_waitcnt vmcnt(0)")
    k.stamp(6)
    e("s_lshl_b32 s13, s11, 12")
    e(f"s_add_u32 s13, s13, {STAT}")
    e("v_lshl_add_u32 v3, v0, 3, s13")
    e("s_mov_b32 s14, 0xffff0000")
    for q in range(8):
        g = 16 + 4*q
        e(f"v_and_b32 v{g+2}, s14, v{g}")
        e(f"v_and_b32 v{g+3}, s14, v{g+1}")
        e(f"v_lshlrev_b32 v{g}, 16, v{g}")
        e(f"v_lshlrev_b32 v{g+1}, 16, v{g+1}")
        e(f"v_rcp_f32 v{g+2}, v{g+2}")
        e(f"v_rcp_f32 v{g+3}, v{g+3}")
        e(f"ds_write_b64 v3, {vr(g,2)} offset:{512*q}")
        e(f"ds_write_b64 v3, {vr(g+2,2)} offset:{512*q+8192}")
    e("s_lshl_b32 s12, s11, 2")
    e(f"s_add_u32 s12, s12, {FLAG+16}")
    e("v_mov_b32 v4, s12")
    e("v_mov_b32 v5, 1")
    e("s_waitcnt vmcnt(0) lgkmcnt(0)")
    e("ds_write_b32 v4, v5")
    k.stamp(5)
    k.label("bdone")
    if STAMP: k.dump_stamps(0, 32, 60, keep=True)
    finish("finB", "Lmlp_loader")
    k.label("end")
    e("s_endpgm")
```
